```python
import torch

def _softmax(x, axis=-1):
    return torch.softmax(x, dim=axis)
def _gelu(x):
    return torch.nn.functional.gelu(x, approximate="tanh")
def _silu(x):
    return torch.nn.functional.silu(x)
def _sigmoid(x):
    return torch.sigmoid(x)
def _layernorm(x, axis=-1, eps=1e-5):
    m = x.mean(dim=axis, keepdim=True)
    v = x.var(dim=axis, keepdim=True, unbiased=False)
    return (x - m) / torch.sqrt(v + eps)
def _scatter_add(tgt, idx, src, axis=0):
    return tgt.clone().index_add_(axis, idx, src)
def _segment_sum(src, seg, n):
    out = torch.zeros((n,) + src.shape[1:], dtype=src.dtype)
    return out.index_add_(0, seg, src)
def _pad(x, pw):
    flat = tuple(v for pair in reversed(pw) for v in pair)
    return torch.nn.functional.pad(x, flat)

kernel_name = 'recurrent_scan__grouped_kv_mqa__dense_activation_relu__prompt'

def setup_inputs():

    _w = (lambda a: (lambda t: t.to(torch.bfloat16) if t.is_floating_point() else t)(torch.as_tensor(a)))
    def _A_setup():
        B, S, D, H = 1, 2048, 640, 32
        Dh = D // H
        return {
            "x": _w((lambda *s: torch.randn(*s, dtype=torch.bfloat16) * 0.05)(B, S, D)),
            "wq": _w((lambda *s: torch.randn(*s, dtype=torch.bfloat16) * 0.05)(D, H * Dh)),
            "wk": _w((lambda *s: torch.randn(*s, dtype=torch.bfloat16) * 0.05)(D, Dh)),
            "wv": _w((lambda *s: torch.randn(*s, dtype=torch.bfloat16) * 0.05)(D, Dh)),
            "wo": _w((lambda *s: torch.randn(*s, dtype=torch.bfloat16) * 0.05)(H * Dh, D)),
        }
    _A_in = _A_setup()

    def _B_setup():
        B, S, D, Dff = 1, 2048, 640, 1728
        return {
            "x": _w((lambda *s: torch.randn(*s, dtype=torch.bfloat16) * 0.05)(B, S, D)),
            "w1": _w((lambda *s: torch.randn(*s, dtype=torch.bfloat16) * 0.05)(D, Dff)),
            "w2": _w((lambda *s: torch.randn(*s, dtype=torch.bfloat16) * 0.05)(Dff, D)),
        }
    _B_in = _B_setup()

    return {
        "A_x": _A_in["x"],
        "A_wq": _A_in["wq"],
        "A_wk": _A_in["wk"],
        "A_wv": _A_in["wv"],
        "A_wo": _A_in["wo"],
        "B_x": _B_in["x"],
        "B_w1": _B_in["w1"],
        "B_w2": _B_in["w2"],
    }

def reference(A_x, A_wq, A_wk, A_wv, A_wo, B_x, B_w1, B_w2):
    def _A_ref(x, wq, wk, wv, wo):
        B, S, D = x.shape
        H = 32
        Dh = D // H
        q = (lambda x, *d: x.permute(*d))((x @ wq).reshape(B, S, H, Dh), 0, 2, 1, 3)
        k = x @ wk
        v = x @ wv
        scores = torch.einsum("bhqd,bkd->bhqk", q, k) * (Dh ** -0.5)
        p = _softmax(scores, axis=-1)
        o = torch.einsum("bhqk,bkd->bhqd", p, v)
        return (lambda x, *d: x.permute(*d))(o, 0, 2, 1, 3).reshape(B, S, H * Dh) @ wo

    def _B_ref(x, w1, w2):
        h = torch.einsum("bsd,df->bsf", x, w1)
        zero = torch.zeros_like(h)
        h = torch.maximum(h, zero)
        return torch.einsum("bsf,fd->bsd", h, w2)

    x = A_x
    xn = _layernorm(x, axis=-1)
    s = _A_ref(xn, A_wq, A_wk, A_wv, A_wo)
    g = _silu(_B_ref(xn, B_w1, B_w2))
    return x + s * g
```

```python
import re

class Asm:
    def __init__(self):
        self.lines = []
        self.vm = []
        self.lg = []
        self._id = 0
        self.uid = 0
    def i(self, text):
        self.lines.append(('i', text))
    def c(self, text):
        self.lines.append(('c', "; " + text))
    def label(self, name):
        self.lines.append(('l', name))
    def newlabel(self, base):
        self.uid += 1
        return f"L_{base}_{self.uid}"
    def raw(self, text):
        self.lines.append(('c', text))
    def vmem(self, text):
        self.i(text); self._id += 1; self.vm.append(self._id); assert len(self.vm) <= 63, "vmcnt overflow"; return self._id
    def lds(self, text):
        self.i(text); self._id += 1; self.lg.append(self._id); assert len(self.lg) <= 15, "lgkmcnt overflow: " + text; return self._id
    def _cnt(self, lst, tok):
        if tok not in lst: return None
        k = lst.index(tok)
        return len(lst) - 1 - k
    def wait(self, vm=None, lg=None):
        parts = []
        if vm is not None:
            if vm == 'all':
                if True: parts.append("vmcnt(0)"); self.vm = []
            else:
                toks = vm if isinstance(vm, (list, tuple)) else [vm]
                ns = [self._cnt(self.vm, t) for t in toks]; ns = [n for n in ns if n is not None]
                if ns:
                    n = min(ns); parts.append(f"vmcnt({n})"); self.vm = self.vm[len(self.vm) - n:] if n else []
        if lg is not None:
            if lg == 'all':
                parts.append("lgkmcnt(0)"); self.lg = []
            else:
                toks = lg if isinstance(lg, (list, tuple)) else [lg]
                ns = [self._cnt(self.lg, t) for t in toks]; ns = [n for n in ns if n is not None]
                if ns:
                    n = min(ns); parts.append(f"lgkmcnt({n})"); self.lg = self.lg[len(self.lg) - n:] if n else []
        if parts: self.i("s_waitcnt " + " ".join(parts))
    def reset_counters(self):
        self.vm = []; self.lg = []
    def nop(self, n):
        while n > 0:
            k = min(n, 16); self.i(f"s_nop {k-1}"); n -= k
    def text(self):
        out = []
        for k, t in self.lines:
            if k == 'i': out.append("    " + t)
            elif k == 'l': out.append(t + ":")
            else: out.append(t if not t.startswith(";") else "    " + t)
        return "\n".join(out) + "\n"

_reg = re.compile(r"^(-|abs\(|\|)?([vsa])(?:(\d+)|\[(\d+):(\d+)\])\)?\|?$")
def regs_of(op):
    op = op.strip()
    if op in ("vcc",): return [('s', 106), ('s', 107)]
    if op == "vcc_lo": return [('s', 106)]
    if op == "exec": return [('s', 126), ('s', 127)]
    if op == "m0": return [('s', 124)]
    m = _reg.match(op)
    if not m: return []
    k = m.group(2)
    if m.group(3) is not None: return [(k, int(m.group(3)))]
    return [(k, r) for r in range(int(m.group(4)), int(m.group(5)) + 1)]

TRANS = ("v_exp_f32", "v_log_f32", "v_rcp_f32", "v_rsq_f32", "v_sqrt_f32", "v_sin_f32", "v_cos_f32")
def parse(text):
    text = text.split(";")[0].strip()
    sp = text.split(None, 1)
    opc = sp[0]
    rest = sp[1] if len(sp) > 1 else ""
    ops = []; depth = 0; cur = ""
    for ch in rest:
        if ch == '[': depth += 1
        if ch == ']': depth -= 1
        if ch == ',' and depth == 0: ops.append(cur.strip()); cur = ""
        else: cur += ch
    if cur.strip(): ops.append(cur.strip())
    mods = ""
    if ops:
        last = ops[-1].split()
        if last:
            ops[-1] = last[0]; mods = " ".join(last[1:])
    d = dict(opc=opc, ops=ops, mods=mods, w=[], r=[], kind=None, text=text)
    R = lambda idx: sum((regs_of(ops[j]) for j in idx if j < len(ops)), [])
    n = len(ops)
    if opc.startswith("v_mfma"):
        d['kind'] = 'mfma'; d['w'] = R([0]); d['ab'] = R([1, 2]); d['cc'] = R([3]); d['r'] = d['ab'] + d['cc']
        d['passes'] = 4 if "16x16" in opc else (16 if "_2b" in opc else 8)
    elif opc.startswith("v_cmp"):
        d['kind'] = 'valu'; d['w'] = R([0]); d['r'] = R(range(1, n))
    elif opc.startswith("v_readfirstlane") or opc.startswith("v_readlane"):
        d['kind'] = 'valu'; d['w'] = R([0]); d['r'] = R(range(1, n)); d['rl'] = True
    elif opc.startswith("v_permlane32_swap") or opc.startswith("v_permlane16_swap"):
        d['kind'] = 'valu'; d['w'] = R([0, 1]); d['r'] = R([0, 1]); d['perm'] = True
    elif opc.startswith("v_"):
        d['kind'] = 'valu'; d['w'] = R([0]); d['r'] = R(range(1, n))
        if opc.startswith(("v_fmac", "v_dot2c", "v_pk_fmac")): d['r'] += d['w']
        if opc.startswith("v_cndmask") and n == 3: d['r'] += regs_of("vcc")
        if opc.startswith(("v_add_co", "v_addc_co")): d['w'] = R([0, 1]); d['r'] = R(range(2, n))
        if "quad_perm" in text or "row_" in text or "wave_" in text: d['dpp'] = True
        if opc.replace("_e32", "").replace("_e64", "") in TRANS: d['trans'] = True
        if opc.startswith("v_dot2"): d['dot'] = True
    elif opc.startswith("ds_read") :
        d['kind'] = 'ds'; d['w'] = R([0]); d['r'] = R([1])
    elif opc.startswith("ds_add_rtn"):
        d['kind'] = 'ds'; d['w'] = R([0]); d['r'] = R([1, 2])
    elif opc.startswith("ds_"):
        d['kind'] = 'ds'; d['r'] = R(range(0, n))
    elif opc.startswith("buffer_load"):
        d['kind'] = 'vmem'
        if " lds" in " " + text:
            d['r'] = R(range(0, n)) + regs_of("m0"); d['dma'] = True
        else:
            d['w'] = R([0]); d['r'] = R(range(1, n))
    elif opc.startswith("buffer_store"):
        d['kind'] = 'vmem'; d['r'] = R(range(0, n)); d['sdata'] = R([0]); d['wide'] = ("x3" in opc or "x4" in opc)
    elif opc.startswith("buffer_atomic") :
        d['kind'] = 'vmem'; d['r'] = R(range(0, n))
        if "sc0" in text: d['w'] = R([0])
    elif opc.startswith("global_load"):
        d['kind'] = 'vmem'; d['w'] = R([0]); d['r'] = R(range(1, n))
    elif opc.startswith("global_store"):
        d['kind'] = 'vmem'; d['r'] = R(range(0, n)); d['sdata'] = R([1]); d['wide'] = ("x3" in opc or "x4" in opc)
    elif opc.startswith("global_atomic"):
        d['kind'] = 'vmem'
        if "sc0" in text: d['w'] = R([0]); d['r'] = R(range(1, n))
        else: d['r'] = R(range(0, n))
    elif opc == "s_nop":
        d['kind'] = 'nop'; d['n'] = int(ops[0]) + 1
    elif opc.startswith("s_"):
        d['kind'] = 'salu'
        if opc.startswith(("s_cmp", "s_cbranch", "s_branch", "s_waitcnt", "s_barrier", "s_endpgm", "s_sleep", "s_setprio", "s_bitcmp")):
            d['r'] = R(range(0, n))
        else:
            d['w'] = R([0]); d['r'] = R(range(1, n))
    else:
        raise ValueError("unknown opcode " + text)
    return d

def check_hazards(instrs, name=""):
    P = [parse(t) for t in instrs]
    probs = []
    pos = []; s = 0
    for d in P:
        pos.append(s); s += d.get('n', 1)
    def dist(i, j):
        return pos[j] - pos[i] - 1 if P[i]['kind'] != 'nop' else 0
    N = len(P)
    for j, d in enumerate(P):
        if d['kind'] == 'nop': continue
        rs, ws = set(d['r']), set(d['w'])
        for i in range(j - 1, max(-1, j - 24), -1):
            p = P[i]
            if p['kind'] == 'nop': continue
            ds = pos[j] - pos[i] - 1
            if ds > 20: break
            pw = set(p['w'])
            def bad(need, why):
                if ds < need: probs.append(f"{name}: [{i}] {p['text']}  ->  [{j}] {d['text']} : {why} needs {need}, has {ds}")
            pv = {r for r in pw if r[0] == 'v'}; ps = {r for r in pw if r[0] == 's'}
            if p['kind'] == 'valu':
                if d['kind'] == 'mfma' and pv & rs: bad(2, "VALU write -> MFMA read")
                if p.get('trans') and d['kind'] == 'valu' and not d.get('trans') and pv & rs: bad(1, "trans -> VALU")
                if p.get('trans') and d['kind']=='valu' and d.get('trans') and pv & rs: pass
                if d.get('rl') and pv & rs: bad(1, "VALU write -> readlane")
                if d.get('dpp') and pv & rs: bad(2, "VALU write -> DPP")
                if d.get('perm') and pv & rs: bad(2, "VALU write -> permlane")
                if ps & rs:
                    if d['kind'] == 'valu': bad(2, "VALU write SGPR -> VALU read")
                    if d['kind'] in ('vmem',): bad(5, "VALU write SGPR -> VMEM read")
                    if d['kind'] == 'salu' and not d['opc'].startswith('s_cbranch'): bad(1, "VALU write SGPR -> SALU read (pad)")
                if p.get('dot') and d['kind'] == 'valu' and pv & (rs | ws):
                    same = d.get('dot') and d['opc'] == p['opc']
                    if same:
                        csrc = set(regs_of(d['ops'][3])) if len(d['ops']) > 3 else set()
                        ab = set(regs_of(d['ops'][1])) | set(regs_of(d['ops'][2]))
                        if pv & ab: bad(3, "dot -> dot A/B")
                    else: bad(3, "dot -> other")
                if p.get('dot') and d['kind'] in ('ds', 'vmem', 'mfma') and pv & rs: bad(3, "dot -> mem/mfma read")
            if p['kind'] == 'mfma':
                n = p['passes']
                far = {2: 5, 4: 8, 8: 12, 16: 20}[n]
                ovl = {2: 4, 4: 6, 8: 10, 16: 18}[n]
                war = {2: 1, 4: 3, 8: 7, 16: 15}[n]
                if d['kind'] == 'mfma':
                    if pv & set(d['ab']): bad(far, "MFMA D -> MFMA A/B")
                    cc = set(d['cc'])
                    if pv & cc and not (cc == pv and d['passes'] == n): bad(ovl, "MFMA D -> MFMA C overlapped")
                    if pv & cc and cc == pv and n == 2: bad(2, "2 pass chain")
                    if pv & set(d['w']) and not (set(d['w']) == pv and cc == pv) : bad(ovl, "MFMA D -> MFMA D (WAW) ")
                elif d['kind'] == 'valu':
                    if pv & (rs | ws): bad(far, "MFMA D -> VALU")
                    if set(p['cc']) & ws: bad(war, "MFMA C read -> VALU write")
                elif d['kind'] in ('ds', 'vmem'):
                    if pv & (rs | ws): bad(far, "MFMA D -> mem")
            if p['kind'] == 'salu' and ('s', 124) in pw and d.get('dma'): bad(1, "m0 write -> DMA")
            if p['kind'] == 'vmem' and p.get('wide') and set(p['sdata']) & ws:
                bad(2 if d['kind'] in ('valu',) else 1, "wide store data WAR")
    return probs
```

```python
import sys
from asmlib import Asm, check_hazards

NAME = "recurrent_scan__grouped_kv_mqa__dense_activation_relu__prompt"

XN    = 0
BST   = 81920
AREG  = 122880
APRIV = 9216
RSLOT = 12288
CTRL  = 159744
LDS_TOTAL = 163840
C_ARR, C_KVD, C_ABAR, C_QDONE, C_KVRDY, C_XND, C_HD, C_BBAR, C_OD, C_HRDY = [4 * i for i in range(10)]
CDUMMY = 1024

WS_X    = 0
WS_FKV  = 0x1000
WS_FH   = 0x4000
WS_FO   = 0x6000
WS_KN   = 0x8000
WS_VN   = 0x8400
WS_KV   = 0x10000
WS_H    = 0x100000
WS_O    = 0x800000
WS_DBG  = 0xB00000
WS_END  = 0x1400000

QSCALE = 0.22360679774997896 * 1.4426950408889634

import struct
def f2u(x): return struct.unpack("<I", struct.pack("<f", x))[0]
def hx(x): return "0x%08x" % (x & 0xffffffff)

sW, sRB, sCG, sN, sWR = "s3", "s4", "s5", "s6", "s7"
SRD_X, SRD_WQ, SRD_WKV, SRD_WO, SRD_W1, SRD_W2, SRD_OUT, SRD_WS = [f"s[{8+4*i}:{11+4*i}]" for i in range(8)]
sDBG, sWSP = "s[58:59]", "s[60:61]"

SPIN_LDS = 400000
SPIN_GLB = 40000

class Gen:
    def __init__(self, opt):
        self.o = opt
        self.a = Asm()

    def vr(self, base, n): return f"v[{base}:{base+n-1}]"

    def lds_spin_ge(self, cnt_off, target, vtmp, vctlr, stmp="s62"):
        a = self.a
        L = a.newlabel("spin"); Ld = a.newlabel("spind")
        a.i(f"s_mov_b32 {stmp}, 0")
        a.label(L)
        a.i(f"ds_read_b32 {vtmp}, {vctlr} offset:{cnt_off}")
        a.i("s_waitcnt lgkmcnt(0)")
        a.i(f"v_cmp_gt_u32 vcc, {target}, {vtmp}")
        a.i(f"s_cbranch_vccz {Ld}")
        a.i(f"s_add_u32 {stmp}, {stmp}, 1")
        a.i(f"s_cmp_lt_u32 {stmp}, {SPIN_LDS}")
        a.i("s_sleep 1")
        a.i(f"s_cbranch_scc1 {L}")
        a.label(Ld)
        a.lg = []

    def glb_poll(self, voff, soff, vtmp, stmp="s62"):
        a = self.a
        L = a.newlabel("poll"); Ld = a.newlabel("polld")
        a.i(f"s_mov_b32 {stmp}, 0")
        a.label(L)
        a.i(f"buffer_load_dword {vtmp}, {voff}, {SRD_WS}, {soff} offen sc1")
        a.i("s_waitcnt vmcnt(0)")
        a.i(f"v_cmp_ne_u32 vcc, {sN}, {vtmp}")
        a.i(f"s_cbranch_vccz {Ld}")
        a.i(f"s_add_u32 {stmp}, {stmp}, 1")
        a.i(f"s_cmp_lt_u32 {stmp}, {SPIN_GLB}")
        a.i("s_sleep 1")
        a.i(f"s_cbranch_scc1 {L}")
        a.label(Ld)
        a.vm = []

    def lds_count(self, cnt_off, vctlw, vone):
        return self.a.lds(f"ds_add_u32 {vctlw}, {vone} offset:{cnt_off}")

    def dump_regs(self, base, n, slot, vlane16, cond_wave=None):
        a = self.a
        a.i("s_lshl_b32 s70, s2, 3"); a.i(f"s_add_u32 s70, s70, {sW}")
        a.i("s_mul_i32 s70, s70, 0x4000")
        a.i(f"s_add_u32 s70, s70, {WS_DBG + 0x0}")
        for g in range(n // 4):
            a.i(f"s_add_u32 s71, s70, {(slot + g) * 1024}")
            a.i(f"buffer_store_dwordx4 v[{base+4*g}:{base+4*g+3}], {vlane16}, {SRD_WS}, s71 offen")
        a.i("s_waitcnt vmcnt(0)")
        a.vm = []

    def prologue(self):
        a = self.a
        a.i("s_cmp_ge_u32 s2, 256")
        a.i("s_cbranch_scc1 L_END")
        a.i("s_load_dwordx16 s[40:55], s[0:1], 0")
        a.i("s_load_dwordx4 s[56:59], s[0:1], 64")
        a.i("s_load_dwordx2 s[60:61], s[0:1], 80")
        a.i("v_lshrrev_b32 v1, 6, v0")
        a.i("v_and_b32 v0, 63, v0")
        a.i(f"s_and_b32 {sRB}, s2, 31")
        a.i(f"v_readfirstlane_b32 {sW}, v1")
        a.i(f"s_lshr_b32 {sCG}, s2, 5")
        a.i("v_lshrrev_b32 v2, 3, v0")
        a.i("v_and_b32 v3, 7, v0")
        a.i(f"s_and_b32 {sWR}, {sW}, 3")
        a.i(f"s_lshl_b32 s62, {sW}, 3")
        a.i(f"s_mul_i32 s63, {sRB}, 81920")
        a.i("v_add_u32 v4, s62, v2")
        a.i("v_mul_u32_u24 v4, 1280, v4")
        a.i("v_lshl_add_u32 v4, v3, 4, v4")
        a.i("s_waitcnt lgkmcnt(0)")
        def srd(base, lo, size):
            a.i(f"s_mov_b32 s{base}, s{lo}")
            a.i(f"s_mov_b32 s{base+1}, s{lo+1}")
            a.i(f"s_mov_b32 s{base+2}, {size}")
            a.i(f"s_mov_b32 s{base+3}, 0x20000")
        srd(8, 40, 2621440)
        self.xtok = []
        for i in range(10):
            self.xtok.append(a.vmem(f"buffer_load_dwordx4 v[{16+4*i}:{19+4*i}], v4, {SRD_X}, s63 offen offset:{128*i}"))
        a.i(f"s_load_dword {sN}, {sWSP}, {WS_X}")
        srd(12, 42, 819200)
        a.i(f"s_cmp_eq_u32 {sCG}, 7")
        a.i("s_cselect_b32 s16, s46, s44")
        a.i("s_cselect_b32 s17, s47, s45")
        a.i("s_mov_b32 s18, 25600")
        a.i("s_mov_b32 s19, 0x20000")
        srd(20, 48, 819200)
        srd(24, 52, 2211840)
        srd(28, 54, 2211840)
        srd(32, 56, 2621440)
        srd(36, 60, WS_END)
        for r in (200, 230, 231): a.i(f"v_mov_b32 v{r}, 0")

    def layernorm(self):
        a = self.a
        a.i("v_lshrrev_b32 v5, 1, v3")
        a.i("v_lshlrev_b32 v5, 10, v5")
        a.i("v_and_b32 v6, 1, v3")
        a.i("v_lshlrev_b32 v6, 9, v6")
        a.i("v_xor_b32 v7, v2, v3")
        a.i("v_lshlrev_b32 v7, 4, v7")
        a.i("v_add3_u32 v5, v5, v6, v7")
        a.i(f"s_lshl_b32 s62, {sWR}, 7")
        a.i(f"s_lshr_b32 s64, {sW}, 2")
        a.i("s_mul_i32 s64, s64, 40960")
        a.i("s_add_u32 s62, s62, s64")
        a.i("v_add_u32 v5, s62, v5")
        Lz = a.newlabel("nz")
        a.i(f"s_cmp_lg_u32 {sW}, 0")
        a.i(f"s_cbranch_scc1 {Lz}")
        a.i("v_lshlrev_b32 v6, 2, v0")
        a.i(f"v_add_u32 v6, {CTRL}, v6")
        a.i("v_mov_b32 v7, 0")
        a.i("ds_write_b32 v6, v7")
        a.label(Lz)
        a.i("s_mov_b32 s62, 0x3f803f80")
        a.i("s_mov_b32 s63, 0xffff0000")
        for k in range(4): a.i(f"v_mov_b32 v{64+k}, 0")
        a.nop(1)
        X = lambda j: f"v{16+j}"
        for j in range(40):
            a.i(f"v_dot2_f32_bf16 v{64+(j&1)}, {X(j)}, s62, v{64+(j&1)}")
            a.i(f"v_dot2_f32_bf16 v{66+(j&1)}, {X(j)}, {X(j)}, v{66+(j&1)}")
        a.nop(3)
        a.i("v_add_f32 v64, v64, v65")
        a.i("v_add_f32 v66, v66, v67")
        a.nop(1)
        for dpp in ("quad_perm:[1,0,3,2]", "quad_perm:[2,3,0,1]", "row_half_mirror"):
            a.i(f"v_add_f32_dpp v64, v64, v64 {dpp} row_mask:0xf bank_mask:0xf")
            a.i(f"v_add_f32_dpp v66, v66, v66 {dpp} row_mask:0xf bank_mask:0xf")
            a.nop(1)
        a.i(f"v_mul_f32 v64, {hx(f2u(1.0/640))}, v64")
        a.i(f"v_mul_f32 v66, {hx(f2u(1.0/640))}, v66")
        a.i("v_fma_f32 v66, -v64, v64, v66")
        a.i("v_max_f32 v66, 0, v66")
        a.i(f"v_add_f32 v66, {hx(f2u(1e-5))}, v66")
        a.i("v_rsq_f32 v68, v66")
        a.nop(1)
        a.i("v_mov_b32 v69, v68")
        a.i("v_mul_f32 v70, v64, v68")
        a.i("v_sub_f32 v70, 0, v70")
        a.i("v_mov_b32 v71, v70")
        for g in range(10):
            for d in range(4):
                j = 4 * g + d
                t = 56 + 2 * (j & 3)
                a.i(f"v_lshlrev_b32 v{t}, 16, {X(j)}")
                a.i(f"v_and_b32 v{t+1}, s63, {X(j)}")
            for d in range(4):
                j = 4 * g + d
                t = 56 + 2 * (j & 3)
                a.i(f"v_pk_fma_f32 v[{t}:{t+1}], v[{t}:{t+1}], v[68:69], v[70:71]")
            for d in range(4):
                j = 4 * g + d
                t = 56 + 2 * (j & 3)
                a.i(f"v_cvt_pk_bf16_f32 {X(j)}, v{t}, v{t+1}")
            a.i(f"ds_write_b128 v5, v[{16+4*g}:{19+4*g}] offset:{4096*g}")
        a.i("s_waitcnt lgkmcnt(0)")
        a.i("s_barrier")
        a.lg = []

    def xn_addr(self, vA, vB, vt0, vt1, phase_sgpr=None, base_sgpr=None, swap_sgpr=None):
        a = self.a
        a.i(f"v_and_b32 {vt0}, 31, v0")
        a.i(f"v_lshrrev_b32 {vt1}, 5, v0")
        for q in range(4):
            r = f"v{vA+q}"
            if phase_sgpr is None:
                a.i(f"v_add_u32 {r}, {2*q}, {vt1}")
            else:
                a.i(f"s_add_u32 s62, {phase_sgpr}, {q}")
                a.i("s_and_b32 s62, s62, 3")
                a.i("s_lshl_b32 s62, s62, 1")
                a.i(f"v_add_u32 {r}, s62, {vt1}")
            a.i(f"v_xor_b32 {r}, {r}, {vt0}")
            a.i(f"v_lshlrev_b32 {r}, 4, {r}")
            a.i(f"v_lshl_add_u32 {r}, {vt1}, 9, {r}")
            if base_sgpr is not None:
                a.i(f"v_add_u32 {r}, {base_sgpr}, {r}")
            a.i(f"v_add_u32 v{vB+q}, 40960, {r}")

    def ctl_regs(self, vW, vR, vOne):
        a = self.a
        a.i(f"v_lshlrev_b32 {vW}, 2, v0")
        a.i(f"v_add_u32 {vW}, {CTRL + CDUMMY}, {vW}")
        a.i(f"v_mov_b32 {vR}, {CTRL}")
        a.i("v_cmp_eq_u32 vcc, 0, v0")
        a.i(f"v_mov_b32 {vOne}, 1")
        a.nop(1)
        a.i(f"v_cndmask_b32 {vW}, {vW}, {vR}, vcc")

    vDq, vTRq, vTRk = "v200", "v201", "v202"
    A_XA, A_XB = 204, 208
    A_CW, A_CR, A_ONE, A_L16 = "v212", "v213", "v214", "v215"
    A_JA, A_JB = 220, 224

    def wq_dma(self, ks):
        a = self.a
        a.i(f"s_add_u32 m0, s66, {(ks % 9) * 1024}")
        a.i(f"s_mov_b32 s67, {ks * 20480}")
        return a.vmem(f"buffer_load_dwordx4 {self.vDq}, {SRD_WQ}, s67 offen lds")

    def a_setup_private(self):
        a = self.a
        a.i(f"s_mul_i32 s66, {sWR}, {APRIV}")
        a.i(f"s_add_u32 s66, s66, {AREG}")

    def a_prefetch_q_addr(self):
        a = self.a
        a.i("v_lshrrev_b32 v216, 2, v0")
        a.i("v_mul_u32_u24 v216, 1280, v216")
        a.i("v_and_b32 v217, 3, v0")
        a.i(f"v_lshl_add_u32 {self.vDq}, v217, 4, v216")
        a.i(f"s_lshl_b32 s62, {sCG}, 2")
        a.i(f"s_add_u32 s62, s62, {sWR}")
        a.i("s_mul_i32 s62, s62, 40")
        a.i(f"v_add_u32 {self.vDq}, s62, {self.vDq}")

    def a_prefetch(self):
        a = self.a
        self.a_setup_private()
        self.a_prefetch_q_addr()
        Lkv = a.newlabel("pfkv")
        a.i(f"s_cmp_ge_u32 {sCG}, 6")
        a.i(f"s_cbranch_scc1 {Lkv}")
        save = list(a.vm)
        for ks in range(9): self.wq_dma(ks)
        a.wait(vm=self.xtok)
        a.i("s_branch L_LN")
        a.label(Lkv)
        a.vm = list(save)
        a.i("v_lshlrev_b32 v216, 4, v0")
        a.i(f"s_mul_i32 s62, {sWR}, 6400")
        a.i("v_add_u32 v216, s62, v216")
        a.i("s_mov_b32 m0, s66")
        a.i("s_mov_b32 s67, 0")
        for j in range(4):
            a.vmem(f"buffer_load_dwordx4 v216, {SRD_WKV}, s67 offen offset:{1024*j} lds")
        a.i("s_add_u32 m0, s66, 4096")
        a.i("s_mov_b32 s67, 4096")
        for j in range(3):
            a.vmem(f"buffer_load_dwordx4 v216, {SRD_WKV}, s67 offen offset:{1024*j} lds")
        a.wait(vm=self.xtok)
        a.i("s_branch L_LN")

    def tr_addr_nat64(self, vdst, base_sgpr, pitch):
        a = self.a
        a.i("v_lshrrev_b32 v216, 5, v0")
        a.i("v_lshlrev_b32 v216, 3, v216")
        a.i("v_bfe_u32 v217, v0, 2, 2")
        a.i("v_add_u32 v216, v216, v217")
        a.i(f"v_mul_u32_u24 v216, {pitch}, v216")
        a.i("v_bfe_u32 v217, v0, 4, 1")
        a.i("v_lshl_add_u32 v216, v217, 5, v216")
        a.i("v_and_b32 v217, 3, v0")
        a.i("v_lshl_add_u32 v216, v217, 3, v216")
        a.i(f"v_add_u32 {vdst}, {base_sgpr}, v216")

    def wave_max(self, regs):
        a = self.a
        for dpp in ("row_shr:1 row_mask:0xf", "row_shr:2 row_mask:0xf", "row_shr:4 row_mask:0xf", "row_shr:8 row_mask:0xf",
                    "row_bcast:15 row_mask:0xa", "row_bcast:31 row_mask:0xc"):
            a.nop(2 if len(regs) == 1 else (1 if len(regs) == 2 else 0))
            for r in regs:
                a.i(f"v_max_f32_dpp {r}, {r}, {r} {dpp} bank_mask:0xf")
        a.nop(1)

    def kv_job(self, isV):
        a = self.a
        a.c("---- K/V projection job: split-K over the 4 A waves ----")
        D = [16, 32]
        def fr(set_): return 48 + 12 * set_
        toks = {}
        def reads(kk):
            b = fr(kk % 3); t = []
            t.append(a.lds(f"ds_read_b64_tr_b16 v[{b}:{b+1}], {self.vTRk} offset:{kk*640}"))
            t.append(a.lds(f"ds_read_b64_tr_b16 v[{b+2}:{b+3}], {self.vTRk} offset:{kk*640+160}"))
            t.append(a.lds(f"ds_read_b128 v[{b+4}:{b+7}], v{self.A_JA + kk % 4} offset:{kk*1024}"))
            t.append(a.lds(f"ds_read_b128 v[{b+8}:{b+11}], v{self.A_JB + kk % 4} offset:{kk*1024}"))
            toks[kk] = t
        a.wait(vm='all')
        reads(0); reads(1)
        for kk in range(10):
            if kk + 2 < 10: reads(kk + 2)
            a.wait(lg=toks[kk])
            b = fr(kk % 3)
            for m in range(2):
                W = f"v[{b}:{b+3}]"; X = f"v[{b+4+4*m}:{b+7+4*m}]"
                C = "0" if kk == 0 else f"v[{D[m]}:{D[m]+15}]"
                if isV: a.i(f"v_mfma_f32_32x32x16_bf16 v[{D[m]}:{D[m]+15}], {X}, {W}, {C}")
                else:   a.i(f"v_mfma_f32_32x32x16_bf16 v[{D[m]}:{D[m]+15}], {W}, {X}, {C}")
        a.i(f"v_add_u32 v216, s66, {self.A_L16}")
        a.i(f"s_lshl_b32 s62, {sWR}, 11")
        a.i(f"s_add_u32 s62, s62, {AREG}")
        a.i(f"v_add_u32 v217, s62, {self.A_L16}")
        a.nop(9)
        for g in range(8):
            r = 16 + 4 * g
            a.lds(f"ds_write_b128 v216, v[{r}:{r+3}] offset:{g*1024}")
        a.wait(lg='all')
        self.lds_count(C_ABAR, self.A_CW, self.A_ONE)
        self.lds_spin_ge(C_ABAR, 4, "v218", self.A_CR)
        tk = []
        for src in range(4):
            for e in range(2):
                r = 48 + 8 * src + 4 * e
                tk.append(a.lds(f"ds_read_b128 v[{r}:{r+3}], v217 offset:{src*APRIV + e*1024}"))
        a.wait(lg='all')
        for j in range(8): a.i(f"v_add_f32 v{80+j}, v{48+j}, v{56+j}")
        for j in range(8): a.i(f"v_add_f32 v{64+j}, v{64+j}, v{72+j}")
        for j in range(8): a.i(f"v_add_f32 v{80+j}, v{80+j}, v{64+j}")
        a.i(f"s_lshr_b32 s62, {sRB}, 1")
        a.i(f"s_mul_i32 s62, s62, {RSLOT}")
        a.i(f"s_add_u32 s62, s62, {WS_KV}")
        a.i(f"s_and_b32 s63, {sRB}, 1")
        a.i(f"s_lshr_b32 s64, {sWR}, 1")
        a.i("s_lshl_b32 s65, s63, 1")
        a.i("s_add_u32 s65, s65, s64")
        a.i(f"s_and_b32 s68, {sWR}, 1")
        for j in range(4): a.i(f"v_cvt_pk_bf16_f32 v{88+j}, v{80+2*j}, v{81+2*j}")
        if not isV:
            Lodd = a.newlabel("kodd"); Lj = a.newlabel("kjoin")
            a.i("s_cmp_lg_u32 s68, 0")
            a.i(f"s_cbranch_scc1 {Lodd}")
            a.i("s_lshl_b32 s65, s65, 10")
            a.i("s_add_u32 s62, s62, s65")
            a.vmem(f"buffer_store_dwordx4 v[88:91], {self.A_L16}, {SRD_WS}, s62 offen sc1")
            a.i("v_mul_f32 v92, v80, v80")
            for j in range(1, 8): a.i(f"v_fmac_f32 v92, v{80+j}, v{80+j}")
            a.i("v_mov_b32 v93, v92")
            a.nop(2)
            a.i("v_permlane32_swap_b32 v92, v93")
            a.nop(1)
            a.i("v_add_f32 v92, v92, v93")
            a.i(f"s_branch {Lj}")
            a.label(Lodd)
            a.i("s_lshl_b32 s63, s63, 9")
            a.i("s_add_u32 s62, s62, s63")
            a.i("s_lshl_b32 s64, s64, 3")
            a.i("s_add_u32 s62, s62, s64")
            a.i("s_add_u32 s62, s62, 4096")
            a.i("s_mov_b32 exec_lo, -1"); a.i("s_mov_b32 exec_hi, 0")
            a.vmem(f"buffer_store_dwordx2 v[88:89], {self.A_L16}, {SRD_WS}, s62 offen sc1")
            a.i("s_mov_b64 exec, -1")
            a.i("v_mul_f32 v92, v80, v80")
            for j in range(1, 4): a.i(f"v_fmac_f32 v92, v{80+j}, v{80+j}")
            a.i("v_cmp_gt_u32 vcc, 32, v0")
            a.nop(2)
            a.i("v_cndmask_b32 v92, 0, v92, vcc")
            a.label(Lj)
            norm_base = WS_KN
        else:
            a.i("v_and_b32 v93, 31, v0")
            a.i("v_cmp_eq_u32 vcc, 20, v93")
            a.i("v_mov_b32 v94, 0x3f803f80")
            a.i("v_lshrrev_b32 v95, 5, v0")
            for j in range(4): a.i(f"v_cndmask_b32 v{88+j}, v{88+j}, v94, vcc")
            a.i("v_mul_u32_u24 v95, 336, v95")
            a.i("v_lshl_add_u32 v95, v93, 4, v95")
            a.i("s_lshl_b32 s65, s65, 1")
            a.i("s_add_u32 s65, s65, s68")
            a.i("s_mul_i32 s65, s65, 672")
            a.i("s_add_u32 s62, s62, s65")
            a.i("s_add_u32 s62, s62, 5120")
            a.i("s_mov_b32 exec_lo, 0x1fffff")
            a.i("s_mov_b32 exec_hi, 0x1fffff")
            a.vmem(f"buffer_store_dwordx4 v[88:91], v95, {SRD_WS}, s62 offen sc1")
            a.i("s_mov_b64 exec, -1")
            a.i("v_max3_f32 v92, abs(v80), abs(v81), abs(v82)")
            a.i("v_max3_f32 v92, v92, abs(v83), abs(v84)")
            a.i("v_max3_f32 v92, v92, abs(v85), abs(v86)")
            a.i("v_max3_f32 v92, v92, abs(v87), abs(v87)")
            a.i("v_cmp_gt_u32 vcc, 20, v93")
            a.nop(2)
            a.i("v_cndmask_b32 v92, 0, v92, vcc")
            norm_base = WS_VN
        self.wave_max(["v92"])
        a.i("v_readlane_b32 s63, v92, 63")
        a.i(f"s_lshl_b32 s62, {sRB}, 2")
        a.i(f"s_add_u32 s62, s62, {sWR}")
        a.i("s_lshl_b32 s62, s62, 2")
        a.i(f"s_add_u32 s62, s62, {norm_base}")
        a.i("v_mov_b32 v92, s63")
        a.i("v_mov_b32 v93, 0")
        a.i("s_mov_b64 exec, 1")
        a.vmem(f"buffer_store_dword v92, v93, {SRD_WS}, s62 offen sc1")
        a.i("s_mov_b64 exec, -1")
        a.wait(vm='all')
        a.lds(f"ds_add_rtn_u32 v218, {self.A_CW}, {self.A_ONE} offset:{C_KVD}")
        a.wait(lg='all')
        a.i("v_readfirstlane_b32 s62, v218")
        Lnf = a.newlabel("kvnf")
        a.nop(1)
        a.i("s_cmp_lg_u32 s62, 3")
        a.i(f"s_cbranch_scc1 {Lnf}")
        a.i("v_lshlrev_b32 v92, 8, v0")
        a.i(f"v_mov_b32 v93, {sN}")
        a.i(f"s_lshl_b32 s62, {sRB}, 1")
        a.i(f"s_add_u32 s62, s62, {1 if isV else 0}")
        a.i("s_lshl_b32 s62, s62, 2")
        a.i(f"s_add_u32 s62, s62, {WS_FKV}")
        a.i("s_mov_b32 exec_lo, -1"); a.i("s_mov_b32 exec_hi, 0")
        a.i(f"buffer_store_dword v93, v92, {SRD_WS}, s62 offen sc1")
        a.i("s_mov_b64 exec, -1")
        a.label(Lnf)
        self.lds_spin_ge(C_KVD, 4, "v218", self.A_CR)
        a.i("s_waitcnt vmcnt(0)")
        a.vm = []

    def q_proj(self, dtoks):
        a = self.a
        a.c("---- Q projection (transposed): wave = head, both m-tiles ----")
        D = [16, 32]
        W = lambda s: 48 + 4 * s
        X = lambda s, m: 56 + 8 * m + 4 * s
        dm = {k: dtoks[k] for k in range(9)}
        toks = {}
        def reads(ks):
            a.wait(vm=dm[ks])
            s = ks % 2; sl = (ks % 9) * 1024; t = []
            t.append(a.lds(f"ds_read_b64_tr_b16 v[{W(s)}:{W(s)+1}], {self.vTRq} offset:{sl}"))
            t.append(a.lds(f"ds_read_b64_tr_b16 v[{W(s)+2}:{W(s)+3}], {self.vTRq} offset:{sl+256}"))
            t.append(a.lds(f"ds_read_b128 v[{X(s,0)}:{X(s,0)+3}], v{self.A_XA + ks % 4} offset:{ks*1024}"))
            t.append(a.lds(f"ds_read_b128 v[{X(s,1)}:{X(s,1)+3}], v{self.A_XB + ks % 4} offset:{ks*1024}"))
            toks[ks] = t
        reads(0)
        for ks in range(40):
            a.wait(lg=toks[ks])
            s = ks % 2
            C = "0" if ks == 0 else "v[16:31]"
            a.i(f"v_mfma_f32_32x32x16_bf16 v[16:31], v[{W(s)}:{W(s)+3}], v[{X(s,0)}:{X(s,0)+3}], {C}")
            if ks + 9 < 40: dm[ks + 9] = self.wq_dma(ks + 9)
            if ks + 1 < 40: reads(ks + 1)
            C = "0" if ks == 0 else "v[32:47]"
            a.i(f"v_mfma_f32_32x32x16_bf16 v[32:47], v[{W(s)}:{W(s)+3}], v[{X(s,1)}:{X(s,1)+3}], {C}")
        self.lds_count(C_XND, self.A_CW, self.A_ONE)
        self.lds_count(C_QDONE, self.A_CW, self.A_ONE)

    S_ = {'a': 16, 'b': 32}; O_ = {'a': 48, 'b': 64}; P_ = {'a': 80, 'b': 88}; C_ = {'a': 96, 'b': 112}
    QL = {'a': 128, 'b': 132}; QH = {'a': 136, 'b': 138}
    KL = [140, 144]; KH = [148, 152]; VV = [156, 164]
    vKL, vKH, vV, vKLn, vKHn, vKL0, vKH0, vV0, vCnt, vDkv = [f"v{172+i}" for i in range(10)]
    N2 = {'a': "v182", 'b': "v183"}

    def q_epilogue(self):
        a = self.a
        a.c("---- Q epilogue: scale, pack to bf16 B operands, squared norms ----")
        a.i("v_cmp_gt_u32 vcc, 32, v0")
        a.i(f"v_mov_b32 v216, {hx(f2u(QSCALE))}")
        a.i("v_mov_b32 v217, 0")
        a.nop(7)
        a.i("v_cndmask_b32 v217, v217, v216, vcc")
        for u, D in (('a', 16), ('b', 32)):
            for j in range(8): a.i(f"v_mul_f32 v{D+j}, v216, v{D+j}")
            for j in range(8, 12): a.i(f"v_mul_f32 v{D+j}, v217, v{D+j}")
            for j in range(4): a.i(f"v_cvt_pk_bf16_f32 v{self.QL[u]+j}, v{D+2*j}, v{D+2*j+1}")
            for j in range(2): a.i(f"v_cvt_pk_bf16_f32 v{self.QH[u]+j}, v{D+8+2*j}, v{D+9+2*j}")
            n = self.N2[u]
            a.i(f"v_mul_f32 {n}, v{D}, v{D}")
            for j in range(1, 12): a.i(f"v_fmac_f32 {n}, v{D+j}, v{D+j}")
        for u in "ab":
            a.i(f"v_mov_b32 v{218 if u=='a' else 219}, {self.N2[u]}")
        a.nop(1)
        a.i(f"v_permlane32_swap_b32 {self.N2['a']}, v218")
        a.i(f"v_permlane32_swap_b32 {self.N2['b']}, v219")
        a.nop(1)
        a.i(f"v_add_f32 {self.N2['a']}, {self.N2['a']}, v218")
        a.i(f"v_add_f32 {self.N2['b']}, {self.N2['b']}, v219")

    def qk(self, u, kl, kh, dst=None):
        S = self.S_[u] if dst is None else dst
        C = self.C_[u]
        m0 = f"v_mfma_f32_32x32x16_bf16 v[{S}:{S+15}], v[{kl}:{kl+3}], v[{self.QL[u]}:{self.QL[u]+3}], v[{C}:{C+15}]"
        m1 = f"v_mfma_f32_32x32x8_bf16 v[{S}:{S+15}], v[{kh}:{kh+1}], v[{self.QH[u]}:{self.QH[u]+1}], v[{S}:{S+15}]"
        return m0, m1
    def pv(self, u, vv):
        O = self.O_[u]; P = self.P_[u]
        m0 = f"v_mfma_f32_32x32x16_bf16 v[{O}:{O+15}], v[{vv}:{vv+3}], v[{P}:{P+3}], v[{O}:{O+15}]"
        m1 = f"v_mfma_f32_32x32x16_bf16 v[{O}:{O+15}], v[{vv+4}:{vv+7}], v[{P+4}:{P+7}], v[{O}:{O+15}]"
        return m0, m1

    def kv_wait_and_shift(self):
        a = self.a
        a.c("---- wait for K/V of all row blocks ----")
        Lw = a.newlabel("kvw"); Lj = a.newlabel("kvj")
        a.i(f"s_cmp_lg_u32 {sWR}, 0")
        a.i(f"s_cbranch_scc1 {Lw}")
        self.lds_spin_ge(C_QDONE, 4, "v218", self.A_CR)
        a.i("v_lshlrev_b32 v216, 2, v0")
        a.i(f"s_lshl_b32 s63, {sRB}, 8")
        a.i(f"s_add_u32 s63, s63, {WS_FKV}")
        self.glb_poll("v216", "s63", "v217")
        a.i(f"ds_add_u32 {self.A_CW}, {self.A_ONE} offset:{C_KVRDY}")
        a.i(f"s_branch {Lj}")
        a.label(Lw)
        self.lds_spin_ge(C_KVRDY, 1, "v218", self.A_CR)
        a.label(Lj)
        a.lg = []; a.vm = []
        a.i("s_waitcnt lgkmcnt(0)")

    def ring_prefill(self):
        a = self.a
        a.i(f"s_mul_i32 s62, {sWR}, 3072")
        a.i(f"v_add_u32 {self.vDkv}, s62, {self.A_L16}")
        a.i(f"s_add_u32 s72, s62, {AREG}")
        tok = []
        for c in range(2):
            a.i(f"s_add_u32 m0, s72, {c*RSLOT}")
            a.i(f"s_mov_b32 s73, {WS_KV + c*RSLOT}")
            tok.append([a.vmem(f"buffer_load_dwordx4 {self.vDkv}, {SRD_WS}, s73 offen offset:{1024*j} sc1 lds") for j in range(3)])
        return tok

    def shift_setup(self):
        a = self.a
        a.c("---- softmax shift ----")
        a.i("v_lshlrev_b32 v216, 3, v0")
        a.i(f"s_mov_b32 s62, {WS_KN}")
        t1 = a.vmem(f"buffer_load_dwordx2 v[184:185], v216, {SRD_WS}, s62 offen sc1")
        a.i(f"s_mov_b32 s63, {WS_VN}")
        t2 = a.vmem(f"buffer_load_dwordx2 v[186:187], v216, {SRD_WS}, s63 offen sc1")
        a.i(f"v_add_u32 {self.vKL0}, {AREG}, {self.A_L16}")
        a.i("v_and_b32 v216, 31, v0")
        a.i(f"v_lshlrev_b32 {self.vKH0}, 4, v216")
        a.i(f"v_add_u32 {self.vKH0}, {AREG + 4096}, {self.vKH0}")
        a.i("v_min_u32 v217, 20, v216")
        a.i("v_subrev_u32 v218, 16, v216")
        a.i("v_cmp_lt_u32 vcc, 27, v216")
        a.i("v_lshrrev_b32 v219, 5, v0")
        a.i("v_mul_u32_u24 v219, 336, v219")
        a.i("v_cndmask_b32 v217, v217, v218, vcc")
        a.i("v_lshl_add_u32 v217, v217, 4, v219")
        a.i(f"v_add_u32 {self.vV0}, {AREG + 5120}, v217")
        a.wait(vm=[t1, t2])
        a.i("v_max_f32 v186, v186, v187")
        self.wave_max(["v184", "v185", "v186"])
        a.i("v_readlane_b32 s62, v184, 63")
        a.i("v_readlane_b32 s63, v185, 63")
        a.i("v_readlane_b32 s64, v186, 63")
        a.nop(1)
        a.i("v_mov_b32 v184, s62")
        a.i("v_add_f32 v184, s63, v184")
        a.i("v_mov_b32 v186, s64")
        a.i("v_max_f32 v186, 1.0, v186")
        a.i("v_log_f32 v186, v186")
        a.nop(1)
        a.i(f"v_mov_b32 v185, {hx(f2u(56.5))}")
        a.i("v_fma_f32 v186, v186, -0.5, v185")
        for u in "ab":
            n = self.N2[u]
            a.i(f"v_mul_f32 {n}, {n}, v184")
            a.i(f"v_sqrt_f32 {n}, {n}")
            a.nop(1)
            a.i(f"v_mul_f32 {n}, {hx(f2u(1.02))}, {n}")
        a.i(f"v_max_f32 v187, {self.N2['a']}, {self.N2['b']}")
        a.i(f"v_cmp_nle_f32 vcc, {self.N2['a']}, v186")
        a.i(f"v_cmp_nle_f32 s[64:65], {self.N2['b']}, v186")
        a.nop(1)
        a.i("s_or_b64 vcc, vcc, s[64:65]")
        if self.o.get('force_fallback'): a.i("s_mov_b64 vcc, -1")
        Lsafe = a.newlabel("safe")
        a.i(f"s_cbranch_vccz {Lsafe}")
        self.true_max_pass()
        a.label(Lsafe)
        for u in "ab":
            for j in range(16): a.i(f"v_mov_b32 v{self.C_[u]+j}, {self.N2[u]}")

    def true_max_pass(self):
        a = self.a
        a.c("---- fallback: true row max ----")
        for u in "ab":
            for j in range(16): a.i(f"v_mov_b32 v{self.C_[u]+j}, 0")
            a.i(f"v_mov_b32 {self.N2[u]}, 0xff800000")
        a.i("v_and_b32 v216, 31, v0")
        a.i("v_lshlrev_b32 v216, 4, v216")
        a.i("s_mov_b32 s64, 0")
        L = a.newlabel("tm")
        a.label(L)
        a.i("s_lshr_b32 s62, s64, 2")
        a.i(f"s_mul_i32 s62, s62, {RSLOT}")
        a.i(f"s_add_u32 s62, s62, {WS_KV}")
        a.i("s_and_b32 s63, s64, 3")
        a.i("s_lshl_b32 s65, s63, 10")
        a.i("s_add_u32 s65, s65, s62")
        a.i(f"buffer_load_dwordx4 v[{self.KL[0]}:{self.KL[0]+3}], {self.A_L16}, {SRD_WS}, s65 offen sc1")
        a.i("s_lshr_b32 s65, s63, 1")
        a.i("s_lshl_b32 s65, s65, 9")
        a.i("s_and_b32 s63, s63, 1")
        a.i("s_lshl_b32 s63, s63, 3")
        a.i("s_add_u32 s65, s65, s63")
        a.i("s_add_u32 s65, s65, s62")
        a.i("s_add_u32 s65, s65, 4096")
        a.i(f"buffer_load_dwordx2 v[{self.KH[0]}:{self.KH[0]+1}], v216, {SRD_WS}, s65 offen sc1")
        a.i("s_waitcnt vmcnt(0)")
        for u in "ab":
            for m in self.qk(u, self.KL[0], self.KH[0]): a.i(m)
        a.nop(12)
        for u in "ab":
            S = self.S_[u]
            for j in range(8): a.i(f"v_max3_f32 {self.N2[u]}, {self.N2[u]}, v{S+2*j}, v{S+2*j+1}")
        a.i("s_add_u32 s64, s64, 1")
        a.i("s_cmp_lt_u32 s64, 64")
        a.i(f"s_cbranch_scc1 {L}")
        a.i(f"v_mov_b32 v218, {self.N2['a']}")
        a.i(f"v_mov_b32 v219, {self.N2['b']}")
        a.nop(1)
        a.i(f"v_permlane32_swap_b32 {self.N2['a']}, v218")
        a.i(f"v_permlane32_swap_b32 {self.N2['b']}, v219")
        a.nop(1)
        a.i(f"v_max_f32 {self.N2['a']}, {self.N2['a']}, v218")
        a.i(f"v_max_f32 {self.N2['b']}, {self.N2['b']}, v219")
        a.i(f"v_sub_f32 {self.N2['a']}, 0, {self.N2['a']}")
        a.i(f"v_sub_f32 {self.N2['b']}, 0, {self.N2['b']}")

    def attention(self, pre):
        a = self.a
        a.c("---- attention main loop ----")
        for r in list(range(48, 80)) + list(range(88, 96)) + list(range(self.VV[1], self.VV[1] + 8)):
            a.i(f"v_mov_b32 v{r}, 0")
        a.wait(vm=pre[0])
        a.lds(f"ds_add_u32 {self.A_CW}, {self.A_ONE} offset:{C_ARR}")
        self.lds_spin_ge(C_ARR, 4, self.vCnt, self.A_CR)
        a.i("s_mov_b32 s74, 0")
        a.i("s_mov_b32 s75, 0")
        a.i(f"s_mov_b32 s76, {RSLOT}")
        a.i(f"s_mov_b32 s77, {2*RSLOT}")
        a.i("s_mov_b32 s78, 8")
        a.i(f"s_mov_b32 s79, {WS_KV + 2*RSLOT}")
        a.i(f"v_mov_b32 {self.vKL}, {self.vKL0}")
        a.i(f"v_mov_b32 {self.vKH}, {self.vKH0}")
        t0 = a.lds(f"ds_read_b128 v[{self.KL[0]}:{self.KL[0]+3}], {self.vKL}")
        t1 = a.lds(f"ds_read_b128 v[{self.KH[0]}:{self.KH[0]+3}], {self.vKH}")
        a.wait(lg='all')
        for m in self.qk('a', self.KL[0], self.KH[0]): a.i(m)
        a.nop(4)
        L = "L_ATT"
        a.raw(".p2align 6")
        a.label(L)
        self.loop_start = len(a.lines)
        a.i(f"v_add_u32 {self.vKL}, s75, {self.vKL0}")
        a.i(f"v_add_u32 {self.vKH}, s75, {self.vKH0}")
        a.i(f"v_add_u32 {self.vV}, s75, {self.vV0}")
        a.i(f"v_add_u32 {self.vKLn}, s76, {self.vKL0}")
        a.i(f"v_add_u32 {self.vKHn}, s76, {self.vKH0}")
        a.i("s_waitcnt vmcnt(0)")
        a.vm = []
        a.lg = []
        a.lds(f"ds_add_u32 {self.A_CW}, {self.A_ONE} offset:{C_ARR}")
        def egroup(u, k):
            S = self.S_[u]; P = self.P_[u]
            for e in range(4): a.i(f"v_exp_f32 v{S+4*k+e}, v{S+4*k+e}")
            a.i(f"v_cvt_pk_bf16_f32 v{P+2*k}, v{S+4*k}, v{S+4*k+1}")
            a.i(f"v_cvt_pk_bf16_f32 v{P+2*k+1}, v{S+4*k+2}, v{S+4*k+3}")
        cnt_tok = None
        for t in range(4):
            kh = self.KH[(t >> 1) % 2] + 2 * (t & 1)
            q0, q1 = self.qk('b', self.KL[t % 2], kh)
            p0, p1 = self.pv('b', self.VV[(t - 1) % 2])
            rd = []
            kn = self.KL[(t + 1) % 2]
            if t < 3: rd.append(('K', f"ds_read_b128 v[{kn}:{kn+3}], {self.vKL} offset:{(t+1)*1024}"))
            else:     rd.append(('K', f"ds_read_b128 v[{kn}:{kn+3}], {self.vKLn}"))
            if t & 1:
                hn = self.KH[((t + 1) >> 1) % 2]
                if t < 3: rd.append(('K', f"ds_read_b128 v[{hn}:{hn+3}], {self.vKH} offset:512"))
                else:     rd.append(('K', f"ds_read_b128 v[{hn}:{hn+3}], {self.vKHn}"))
            vv = self.VV[t % 2]
            rd.append(('V', f"ds_read_b128 v[{vv}:{vv+3}], {self.vV} offset:{(2*t)*672}"))
            rd.append(('V', f"ds_read_b128 v[{vv+4}:{vv+7}], {self.vV} offset:{(2*t+1)*672}"))
            ktok, vtok = [], []
            for k, m in enumerate((q0, q1, p0, p1)):
                a.i(m)
                if k < len(rd):
                    tk = a.lds(rd[k][1]); (ktok if rd[k][0] == 'K' else vtok).append(tk)
                egroup('a', k)
            khn = self.KH[((t + 1) >> 1) % 2] + 2 * ((t + 1) & 1)
            q0, q1 = self.qk('a', self.KL[(t + 1) % 2], khn)
            p0, p1 = self.pv('a', self.VV[t % 2])
            a.wait(lg=ktok)
            for k, m in enumerate((q0, q1, p0, p1)):
                if k == 2: a.wait(lg=vtok)
                a.i(m)
                if t == 0 and k == 3:
                    cnt_tok = a.lds(f"ds_read_b32 {self.vCnt}, {self.A_CR} offset:{C_ARR}")
                if t == 1 and k == 0:
                    Lok = a.newlabel("arr"); Lsk = a.newlabel("nodma")
                    a.i(f"v_cmp_gt_u32 vcc, s78, {self.vCnt}")
                    a.i(f"s_cbranch_vccz {Lok}")
                    keep = list(a.lg)
                    self.lds_spin_ge(C_ARR, "s78", self.vCnt, self.A_CR)
                    a.lg = keep
                    a.label(Lok)
                    a.i("s_cmp_ge_u32 s74, 14")
                    a.i(f"s_cbranch_scc1 {Lsk}")
                    a.i("s_add_u32 m0, s72, s77")
                    a.nop(1)
                    for j in range(3):
                        a.i(f"buffer_load_dwordx4 {self.vDkv}, {SRD_WS}, s79 offen offset:{1024*j} sc1 lds")
                    a.label(Lsk)
                egroup('b', k)
        a.i("s_add_u32 s74, s74, 1")
        a.i("s_add_u32 s78, s78, 4")
        a.i(f"s_add_u32 s79, s79, {RSLOT}")
        a.i("s_mov_b32 s62, s75")
        a.i("s_mov_b32 s75, s76")
        a.i("s_mov_b32 s76, s77")
        a.i("s_mov_b32 s77, s62")
        a.i("s_cmp_lt_u32 s74, 16")
        self.loop_end = len(a.lines)
        a.i(f"s_cbranch_scc1 {L}")
        for m in self.pv('b', self.VV[1]): a.i(m)
        a.i("s_waitcnt vmcnt(0) lgkmcnt(0)")
        a.vm = []; a.lg = []

    def o_epilogue(self):
        a = self.a
        a.c("---- normalise O, publish ----")
        a.i("v_cmp_gt_u32 vcc, 32, v0")
        a.i(f"s_lshl_b32 s62, {sRB}, 1")
        a.i("s_mul_i32 s62, s62, 40960")
        a.i(f"s_add_u32 s62, s62, {WS_O}")
        a.i(f"s_mul_i32 s63, {sCG}, 5")
        a.i(f"s_add_u32 s64, s63, {sWR}")
        a.i("s_lshl_b32 s64, s64, 10")
        a.i("s_add_u32 s63, s63, 4")
        a.i("s_lshl_b32 s63, s63, 10")
        a.i(f"s_lshr_b32 s65, {sWR}, 1")
        a.i("s_lshl_b32 s65, s65, 9")
        a.i("s_add_u32 s63, s63, s65")
        a.i(f"s_and_b32 s65, {sWR}, 1")
        a.i("s_lshl_b32 s65, s65, 3")
        a.i("s_add_u32 s63, s63, s65")
        a.nop(4)
        for mt, u in enumerate("ab"):
            O = self.O_[u]
            a.i(f"v_cndmask_b32 v216, v{O+8}, v{O+12}, vcc")
            a.i("v_rcp_f32 v216, v216")
            a.nop(1)
            for j in range(12): a.i(f"v_mul_f32 v{O+j}, v216, v{O+j}")
            P = self.P_[u]
            for j in range(6): a.i(f"v_cvt_pk_bf16_f32 v{P+j}, v{O+2*j}, v{O+2*j+1}")
            a.i(f"s_add_u32 s68, s62, {mt*40960}")
            a.i("s_add_u32 s69, s68, s64")
            a.vmem(f"buffer_store_dwordx4 v[{P}:{P+3}], {self.A_L16}, {SRD_WS}, s69 offen sc1")
            a.i("s_add_u32 s69, s68, s63")
            a.i("s_mov_b32 exec_lo, -1"); a.i("s_mov_b32 exec_hi, 0")
            a.vmem(f"buffer_store_dwordx2 v[{P+4}:{P+5}], {self.A_L16}, {SRD_WS}, s69 offen sc1")
            a.i("s_mov_b64 exec, -1")
        a.wait(vm='all')
        a.lds(f"ds_add_rtn_u32 v218, {self.A_CW}, {self.A_ONE} offset:{C_OD}")
        a.wait(lg='all')
        a.i("v_readfirstlane_b32 s62, v218")
        a.nop(1)
        a.i("s_cmp_lg_u32 s62, 3")
        a.i("s_cbranch_scc1 L_END")
        a.i(f"s_lshl_b32 s62, {sRB}, 7")
        a.i(f"s_lshl_b32 s63, {sCG}, 2")
        a.i("s_add_u32 s62, s62, s63")
        a.i(f"s_add_u32 s62, s62, {WS_FO}")
        a.i(f"v_mov_b32 v217, {sN}")
        a.i("v_mov_b32 v216, 0")
        a.i("s_mov_b64 exec, 1")
        a.i(f"buffer_store_dword v217, v216, {SRD_WS}, s62 offen sc1")
        a.i("s_branch L_END")

    def role_a(self):
        a = self.a
        a.label("L_ROLE_A")
        a.i("s_setprio 2")
        self.ctl_regs(self.A_CW, self.A_CR, self.A_ONE)
        a.i(f"v_lshlrev_b32 {self.A_L16}, 4, v0")
        self.xn_addr(self.A_XA, self.A_XB, "v216", "v217")
        self.tr_addr_nat64(self.vTRq, "s66", 64)
        Lq = a.newlabel("qproj"); Lv = a.newlabel("vjob"); Lpf = a.newlabel("qpf")
        a.i(f"s_cmp_lt_u32 {sCG}, 6")
        a.i(f"s_cbranch_scc1 {Lq}")
        self.tr_addr_nat64(self.vTRk, "s66", 40)
        a.i(f"s_lshl_b32 s63, {sWR}, 1")
        a.i(f"s_mul_i32 s64, {sWR}, 10240")
        self.xn_addr(self.A_JA, self.A_JB, "v216", "v217", phase_sgpr="s63", base_sgpr="s64")
        a.i(f"s_cmp_eq_u32 {sCG}, 7")
        a.i(f"s_cbranch_scc1 {Lv}")
        a.vm = [0] * 7; a.lg = []
        self.kv_job(False)
        a.i(f"s_branch {Lpf}")
        a.label(Lv)
        a.vm = [0] * 7; a.lg = []
        self.kv_job(True)
        a.label(Lpf)
        a.vm = []; a.lg = []
        dt = [self.wq_dma(ks) for ks in range(9)]
        a.label(Lq)
        self.q_proj(dt)
        self.q_epilogue()
        if self.o.get('dump') == 'q':
            self.dump_regs(128, 12, 0, self.A_L16)
        self.kv_wait_and_shift()
        pre = self.ring_prefill()
        self.shift_setup()
        self.attention(pre)
        if self.o.get('dump') == 'o':
            a.nop(16)
            self.dump_regs(48, 32, 0, self.A_L16)
        self.o_epilogue()

    vD1a, vD1b, vTRa, vTRb = "v230", "v231", "v232", "v233"
    B_XA, B_XB = 234, 238
    B_CW, B_CR, B_ONE, B_L16 = "v242", "v243", "v244", "v245"
    vWa, vWb, vWc, vRa, vRb, vRc = "v230", "v231", "v232", "v233", "v234", "v235"
    vMa, vMb, vMc, vPW, vPR0, vPR1, vXO = "v236", "v237", "v238", "v239", "v240", "v241", "v250"

    def pair_dma_addr(self, va, vb, pitch, col_sgpr, comp_rows=8):
        a = self.a
        a.i("v_lshrrev_b32 v246, 3, v0")
        a.i("v_bfe_u32 v247, v0, 4, 1")
        a.i("v_lshlrev_b32 v247, 2, v247")
        a.i("v_and_b32 v248, 7, v0")
        a.i("v_xor_b32 v247, v247, v248")
        a.i(f"v_mul_u32_u24 v246, {pitch}, v246")
        a.i(f"v_lshl_add_u32 {va}, v247, 4, v246")
        a.i(f"v_add_u32 {va}, {col_sgpr}, {va}")
        a.i(f"v_add_u32 {vb}, {comp_rows*pitch - 1024}, {va}")

    def pair_tr_addr(self, va, vb, hmul, base_sgpr):
        a = self.a
        a.i("v_lshrrev_b32 v246, 5, v0")
        a.i(f"v_mul_u32_u24 v246, {hmul}, v246")
        a.i("v_bfe_u32 v247, v0, 2, 2")
        a.i("v_add_u32 v246, v246, v247")
        a.i("v_lshlrev_b32 v246, 7, v246")
        a.i("v_bfe_u32 v247, v0, 4, 1")
        a.i("v_lshlrev_b32 v247, 1, v247")
        a.i("v_bfe_u32 v248, v0, 1, 1")
        a.i("v_add_u32 v247, v247, v248")
        a.i("v_bfe_u32 v248, v0, 3, 1")
        a.i("v_lshlrev_b32 v248, 2, v248")
        a.i("v_xor_b32 v247, v247, v248")
        a.i("v_lshl_add_u32 v246, v247, 4, v246")
        a.i("v_and_b32 v247, 1, v0")
        a.i("v_lshl_add_u32 v246, v247, 3, v246")
        a.i(f"v_add_u32 {va}, {base_sgpr}, v246")
        a.i(f"v_xor_b32 {vb}, 64, v246")
        a.i(f"v_add_u32 {vb}, {base_sgpr}, {vb}")

    def w1_dma(self, ks):
        a = self.a
        a.i(f"s_add_u32 m0, s66, {(ks % 5) * 2048}")
        a.i(f"s_mov_b32 s67, {ks * 16 * 3456}")
        t0 = a.vmem(f"buffer_load_dwordx4 {self.vD1a}, {SRD_W1}, s67 offen lds")
        t1 = a.vmem(f"buffer_load_dwordx4 {self.vD1b}, {SRD_W1}, s67 offen offset:1024 lds")
        return [t0, t1]

    def b_prefetch(self):
        a = self.a
        a.i(f"s_mul_i32 s66, {sWR}, 10240")
        a.i(f"s_add_u32 s66, s66, {BST}")
        a.i(f"s_mul_i32 s68, {sCG}, 7")
        a.i(f"s_cmp_eq_u32 {sCG}, 7")
        a.i("s_cselect_b32 s68, 48, s68")
        a.i(f"s_lshl_b32 s62, {sWR}, 1")
        a.i("s_add_u32 s68, s68, s62")
        a.i("s_lshl_b32 s62, s68, 6")
        self.pair_dma_addr(self.vD1a, self.vD1b, 3456, "s62")
        self.w1tok = {ks: self.w1_dma(ks) for ks in range(5)}
        a.wait(vm=self.xtok)

    def ffn1(self):
        a = self.a
        a.c("---- FFN1 (transposed): h^T tiles, 2 n-tiles x 2 m-tiles per wave ----")
        self.xn_addr(self.B_XA, self.B_XB, "v246", "v247")
        self.pair_tr_addr(self.vTRa, self.vTRb, 8, "s66")
        acc = lambda t, m: 16 + 32 * t + 16 * m
        W = lambda s, t: 80 + 8 * s + 4 * t
        X = lambda s, m: 96 + 8 * s + 4 * m
        dm = dict(self.w1tok); toks = {}
        def reads(ks):
            a.wait(vm=dm[ks])
            s = ks % 2; sl = (ks % 5) * 2048; t = []
            for tt, va in enumerate((self.vTRa, self.vTRb)):
                t.append(a.lds(f"ds_read_b64_tr_b16 v[{W(s,tt)}:{W(s,tt)+1}], {va} offset:{sl}"))
                t.append(a.lds(f"ds_read_b64_tr_b16 v[{W(s,tt)+2}:{W(s,tt)+3}], {va} offset:{sl+512}"))
            t.append(a.lds(f"ds_read_b128 v[{X(s,0)}:{X(s,0)+3}], v{self.B_XA + ks % 4} offset:{ks*1024}"))
            t.append(a.lds(f"ds_read_b128 v[{X(s,1)}:{X(s,1)+3}], v{self.B_XB + ks % 4} offset:{ks*1024}"))
            toks[ks] = t
        def mf(ks, t, m):
            s = ks % 2; A = acc(t, m)
            C = "0" if ks == 0 else f"v[{A}:{A+15}]"
            a.i(f"v_mfma_f32_32x32x16_bf16 v[{A}:{A+15}], v[{W(s,t)}:{W(s,t)+3}], v[{X(s,m)}:{X(s,m)+3}], {C}")
        reads(0)
        for ks in range(40):
            a.wait(lg=toks[ks])
            mf(ks, 0, 0); mf(ks, 0, 1)
            if ks + 5 < 40: dm[ks + 5] = self.w1_dma(ks + 5)
            if ks + 1 < 40: reads(ks + 1)
            mf(ks, 1, 0); mf(ks, 1, 1)
        self.lds_count(C_XND, self.B_CW, self.B_ONE)
        a.i(f"s_lshl_b32 s62, {sRB}, 1")
        a.i("s_mul_i32 s62, s62, 110592")
        a.i("s_lshl_b32 s63, s68, 11")
        a.i("s_add_u32 s62, s62, s63")
        a.i(f"s_add_u32 s62, s62, {WS_H}")
        a.nop(8)
        Lend = a.newlabel("h_end");
        for t in range(2):
            if t == 0:
                a.i(f"s_cmp_lt_u32 {sWR}, 3")
                Lgo = a.newlabel("h_go")
                a.i(f"s_cbranch_scc1 {Lgo}")
                a.i(f"s_cmp_ge_u32 {sCG}, 6")
                a.i(f"s_cbranch_scc1 {Lend}")
                a.label(Lgo)
            else:
                a.i(f"s_cmp_ge_u32 {sWR}, 3")
                a.i(f"s_cbranch_scc1 {Lend}")
            for m in range(2):
                A = acc(t, m); R = 80 + 8 * m + 16 * (t & 1)
                for j in range(8): a.i(f"v_cvt_pk_bf16_f32 v{R+j}, v{A+2*j}, v{A+2*j+1}")
                for j in range(8): a.i(f"v_pk_max_i16 v{R+j}, v{R+j}, 0")
                a.i(f"s_add_u32 s63, s62, {m*110592 + t*2048}")
                a.vmem(f"buffer_store_dwordx4 v[{R}:{R+3}], {self.B_L16}, {SRD_WS}, s63 offen sc1")
                a.vmem(f"buffer_store_dwordx4 v[{R+4}:{R+7}], {self.B_L16}, {SRD_WS}, s63 offen offset:1024 sc1")
        a.label(Lend)
        a.i("s_waitcnt vmcnt(0)")
        a.vm = []
        a.lds(f"ds_add_rtn_u32 v246, {self.B_CW}, {self.B_ONE} offset:{C_HD}")
        a.wait(lg='all')
        a.i("v_readfirstlane_b32 s62, v246")
        Lnf = a.newlabel("hnf")
        a.nop(1)
        a.i("s_cmp_lg_u32 s62, 3")
        a.i(f"s_cbranch_scc1 {Lnf}")
        a.i(f"s_lshl_b32 s62, {sRB}, 7")
        a.i(f"s_lshl_b32 s63, {sCG}, 2")
        a.i("s_add_u32 s62, s62, s63")
        a.i(f"s_add_u32 s62, s62, {WS_FH}")
        a.i(f"v_mov_b32 v247, {sN}")
        a.i("v_mov_b32 v246, 0")
        a.i("s_mov_b64 exec, 1")
        a.i(f"buffer_store_dword v247, v246, {SRD_WS}, s62 offen sc1")
        a.i("s_mov_b64 exec, -1")
        a.label(Lnf)

    def out_tiles_setup(self):
        a = self.a
        a.i(f"s_lshr_b32 s62, {sCG}, 1")
        a.i("s_mul_i32 s62, s62, 5")
        a.i(f"s_and_b32 s82, {sCG}, 1")
        a.i("s_mul_i32 s63, s82, 3")
        a.i("s_add_u32 s80, s62, s63")
        a.i("s_lshl_b32 s80, s80, 6")
        a.i("s_add_u32 s81, s62, 2")
        a.i("s_lshl_b32 s81, s81, 6")
        a.i(f"s_mul_i32 s83, {sWR}, 30720")
        self.pair_dma_addr(self.vWa, self.vWb, 1280, "s80")
        a.i("v_lshrrev_b32 v246, 2, v0")
        a.i("v_mul_u32_u24 v246, 1280, v246")
        a.i("v_and_b32 v247, 3, v0")
        a.i(f"v_lshl_add_u32 {self.vWc}, v247, 4, v246")
        a.i(f"v_add_u32 {self.vWc}, s81, {self.vWc}")
        self.pair_tr_addr(self.vRa, self.vRb, 4, "s83")
        a.i("v_lshrrev_b32 v246, 5, v0")
        a.i("v_lshlrev_b32 v246, 2, v246")
        a.i("v_bfe_u32 v247, v0, 2, 2")
        a.i("v_add_u32 v246, v246, v247")
        a.i("v_lshlrev_b32 v246, 6, v246")
        a.i("v_bfe_u32 v247, v0, 4, 1")
        a.i("v_lshl_add_u32 v246, v247, 5, v246")
        a.i("v_and_b32 v247, 3, v0")
        a.i("v_lshl_add_u32 v246, v247, 3, v246")
        a.i("s_add_u32 s62, s83, 2048")
        a.i(f"v_add_u32 {self.vRc}, s62, v246")
        a.i(f"v_add_u32 {self.vPW}, s83, {self.B_L16}")
        a.i(f"s_mul_i32 s62, {sWR}, 5120")
        a.i(f"v_add_u32 {self.vPR0}, s62, {self.B_L16}")
        a.i(f"v_add_u32 {self.vPR1}, 61440, {self.vPR0}")

    def w3_dma(self, srd, slot, soff_sgpr, va, vb, vc):
        a = self.a
        a.i(f"s_add_u32 m0, s83, {slot*3072}")
        a.nop(1)
        t = [a.vmem(f"buffer_load_dwordx4 {va}, {srd}, {soff_sgpr} offen lds"),
             a.vmem(f"buffer_load_dwordx4 {vb}, {srd}, {soff_sgpr} offen offset:1024 lds")]
        a.i(f"s_add_u32 m0, s83, {slot*3072 + 2048}")
        a.nop(1)
        t.append(a.vmem(f"buffer_load_dwordx4 {vc}, {srd}, {soff_sgpr} offen lds"))
        return t

    def w3_reads(self, slot, Wb):
        a = self.a; t = []
        sl = slot * 3072
        t.append(a.lds(f"ds_read_b64_tr_b16 v[{Wb}:{Wb+1}], {self.vRa} offset:{sl}"))
        t.append(a.lds(f"ds_read_b64_tr_b16 v[{Wb+2}:{Wb+3}], {self.vRa} offset:{sl+1024}"))
        t.append(a.lds(f"ds_read_b64_tr_b16 v[{Wb+4}:{Wb+5}], {self.vRb} offset:{sl}"))
        t.append(a.lds(f"ds_read_b64_tr_b16 v[{Wb+6}:{Wb+7}], {self.vRb} offset:{sl+1024}"))
        t.append(a.lds(f"ds_read_b64_tr_b16 v[{Wb+8}:{Wb+9}], {self.vRc} offset:{sl}"))
        t.append(a.lds(f"ds_read_b64_tr_b16 v[{Wb+10}:{Wb+11}], {self.vRc} offset:{sl+512}"))
        return t

    def five_mfma(self, Wb, H0, H1, first, mid=None):
        a = self.a
        spec = [(0, 0, H0), (1, 0, H1), (2, 1, H0), (3, 1, H1), (4, 2, H0)]
        for n, (tau, nt, Hb) in enumerate(spec):
            A = 16 + 16 * tau
            C = "0" if first else f"v[{A}:{A+15}]"
            a.i(f"v_mfma_f32_32x32x16_bf16 v[{A}:{A+15}], v[{Wb+4*nt}:{Wb+4*nt+3}], v[{Hb}:{Hb+3}], {C}")
            if n == 1 and mid: mid()

    def reduce80(self, dst, bar_target):
        a = self.a
        a.nop(12)
        for g in range(20):
            if len(a.lg) >= 14: a.wait(lg=a.lg[6])
            a.lds(f"ds_write_b128 {self.vPW}, v[{16+4*g}:{19+4*g}] offset:{g*1024}")
        a.wait(lg='all')
        self.lds_count(C_BBAR, self.B_CW, self.B_ONE)
        self.lds_spin_ge(C_BBAR, bar_target, "v246", self.B_CR)
        tk = {}
        def rd(src):
            va = self.vPR0 if src < 2 else self.vPR1
            tk[src] = [a.lds(f"ds_read_b128 v[{16+20*src+4*e}:{19+20*src+4*e}], {va} offset:{(src&1)*30720 + e*1024}") for e in range(5)]
        rd(0); rd(1); rd(2)
        a.wait(lg=tk[1])
        rd(3)
        for j in range(20): a.i(f"v_add_f32 v{dst+j}, v{16+j}, v{36+j}")
        a.wait(lg='all')
        for j in range(20): a.i(f"v_add_f32 v{56+j}, v{56+j}, v{76+j}")
        for j in range(20): a.i(f"v_add_f32 v{dst+j}, v{dst+j}, v{56+j}")

    def ffn2(self):
        a = self.a
        a.c("---- FFN2 (transposed): 5 output tiles, split-K over the 4 B waves ----")
        self.lds_spin_ge(C_XND, 8, "v246", self.B_CR)
        self.out_tiles_setup()
        NS = 10; PF = 9; HD = 6
        a.i(f"s_mul_i32 s84, {sWR}, {27*20480}")
        dm = {}
        def dma(kk):
            a.i(f"s_add_u32 s67, s84, {kk*20480}")
            dm[kk] = self.w3_dma(SRD_W2, kk % NS, "s67", self.vWa, self.vWb, self.vWc)
        for kk in range(PF): dma(kk)
        a.i("v_and_b32 v246, 7, v0")
        a.i("v_lshlrev_b32 v246, 2, v246")
        a.i(f"s_lshl_b32 s63, {sRB}, 7")
        a.i(f"s_add_u32 s63, s63, {WS_FH}")
        self.glb_poll("v246", "s63", "v247")
        a.i(f"s_lshl_b32 s62, {sRB}, 1")
        a.i("s_add_u32 s63, s62, s82")
        a.i("s_xor_b32 s64, s82, 1")
        a.i("s_add_u32 s64, s62, s64")
        a.i("s_mul_i32 s85, s63, 110592")
        a.i("s_mul_i32 s86, s64, 110592")
        a.i(f"s_mul_i32 s62, {sWR}, {27*1024}")
        a.i(f"s_add_u32 s62, s62, {WS_H}")
        a.i("s_add_u32 s85, s85, s62")
        a.i("s_add_u32 s86, s86, s62")
        H = lambda kk, s: 120 + 8 * (kk % HD) + 4 * s
        hl = {}
        def hload(kk):
            a.i(f"s_add_u32 s62, s85, {kk*1024}")
            t0 = a.vmem(f"buffer_load_dwordx4 v[{H(kk,0)}:{H(kk,0)+3}], {self.B_L16}, {SRD_WS}, s62 offen sc1")
            a.i(f"s_add_u32 s63, s86, {kk*1024}")
            t1 = a.vmem(f"buffer_load_dwordx4 v[{H(kk,1)}:{H(kk,1)+3}], {self.B_L16}, {SRD_WS}, s63 offen sc1")
            hl[kk] = [t0, t1]
        for kk in range(HD - 1): hload(kk)
        Wb = lambda kk: 96 + 12 * (kk % 2)
        rt = {0: self.w3_reads(0, Wb(0))}
        for kk in range(27):
            a.wait(lg=rt[kk], vm=hl[kk])
            def mid(kk=kk):
                if kk + PF < 27: dma(kk + PF)
                if kk + HD - 1 < 27: hload(kk + HD - 1)
                if kk + 1 < 27:
                    if kk + 1 in dm: a.wait(vm=dm[kk + 1])
                    rt[kk + 1] = self.w3_reads((kk + 1) % NS, Wb(kk + 1))
            self.five_mfma(Wb(kk), H(kk, 0), H(kk, 1), kk == 0, mid)
        self.reduce80(200, 4)
        for j in range(20): a.i(f"v_mul_f32 v{16+j}, {hx(f2u(-1.4426950408889634))}, v{200+j}")
        for j in range(20): a.i(f"v_exp_f32 v{16+j}, v{16+j}")
        for j in range(20): a.i(f"v_add_f32 v{16+j}, 1.0, v{16+j}")
        for j in range(20): a.i(f"v_rcp_f32 v{16+j}, v{16+j}")
        for j in range(20): a.i(f"v_mul_f32 v{200+j}, v{200+j}, v{16+j}")
        self.lds_count(C_BBAR, self.B_CW, self.B_ONE)
        self.lds_spin_ge(C_BBAR, 8, "v246", self.B_CR)

    def out_proj(self):
        a = self.a
        a.c("---- output projection + final combine ----")
        a.i("v_lshrrev_b32 v246, 3, v0")
        a.i("v_lshrrev_b32 v247, 2, v246")
        a.i("v_mul_u32_u24 v247, 40, v247")
        a.i("v_and_b32 v248, 3, v246")
        a.i("v_add3_u32 v247, v247, v248, 16")
        a.i("v_mul_u32_u24 v247, 1280, v247")
        a.i("v_bfe_u32 v248, v0, 4, 1")
        a.i("v_lshlrev_b32 v248, 2, v248")
        a.i("v_and_b32 v249, 7, v0")
        a.i("v_xor_b32 v248, v248, v249")
        a.i(f"v_lshl_add_u32 {self.vMa}, v248, 4, v247")
        a.i(f"v_add_u32 {self.vMa}, s80, {self.vMa}")
        a.i(f"v_add_u32 {self.vMb}, {20*1280 - 1024}, {self.vMa}")
        a.i("v_lshrrev_b32 v246, 2, v0")
        a.i("v_bfe_u32 v247, v246, 2, 1")
        a.i("v_lshlrev_b32 v247, 1, v247")
        a.i("v_lshrrev_b32 v248, 3, v246")
        a.i("v_add_u32 v247, v247, v248")
        a.i("v_mul_u32_u24 v247, 20, v247")
        a.i("v_and_b32 v248, 3, v246")
        a.i("v_add3_u32 v247, v247, v248, 16")
        a.i("v_mul_u32_u24 v247, 1280, v247")
        a.i("v_and_b32 v248, 3, v0")
        a.i(f"v_lshl_add_u32 {self.vMc}, v248, 4, v247")
        a.i(f"v_add_u32 {self.vMc}, s81, {self.vMc}")
        dm = {}
        a.i(f"s_mul_i32 s84, {sWR}, {2*80*1280}")
        for e in range(10):
            cgo, jj = e // 5, e % 5
            if jj < 4:
                a.i(f"s_add_u32 s67, s84, {(cgo*80 + jj*20)*1280}")
                dm[e] = self.w3_dma(SRD_WO, e, "s67", self.vWa, self.vWb, self.vWc)
            else:
                a.i(f"s_add_u32 s67, s84, {cgo*80*1280}")
                dm[e] = self.w3_dma(SRD_WO, e, "s67", self.vMa, self.vMb, self.vMc)
        a.i("v_and_b32 v246, 31, v0")
        a.i("v_mul_u32_u24 v246, 1280, v246")
        a.i("v_lshrrev_b32 v247, 5, v0")
        a.i(f"v_lshl_add_u32 {self.vXO}, v247, 3, v246")
        xt = []
        for e in range(5):
            so = f"s{88+e}"
            a.i(f"s_mul_i32 s62, {sWR}, 5")
            a.i(f"s_add_u32 s62, s62, {e}")
            a.i("s_lshr_b32 s63, s62, 2")
            a.i("s_and_b32 s64, s62, 3")
            a.i("s_lshl_b32 s64, s64, 4")
            a.i("s_lshr_b32 s65, s63, 1")
            a.i("s_lshl_b32 s69, s65, 6")
            a.i("s_add_u32 s69, s69, s80")
            a.i("s_cmp_eq_u32 s63, 4")
            a.i("s_cselect_b32 s69, s81, s69")
            a.i("s_add_u32 s64, s64, s69")
            a.i("s_and_b32 s65, s63, 1")
            a.i("s_xor_b32 s65, s65, s82")
            a.i(f"s_lshl_b32 s69, {sRB}, 1")
            a.i("s_add_u32 s65, s65, s69")
            a.i("s_mul_i32 s65, s65, 40960")
            a.i(f"s_add_u32 {so}, s64, s65")
            xt.append(a.vmem(f"buffer_load_dwordx2 v[{220+2*e}:{221+2*e}], {self.vXO}, {SRD_X}, {so} offen"))
        a.i("v_and_b32 v246, 7, v0")
        a.i("v_lshlrev_b32 v246, 2, v246")
        a.i(f"s_lshl_b32 s63, {sRB}, 7")
        a.i(f"s_add_u32 s63, s63, {WS_FO}")
        self.glb_poll("v246", "s63", "v247")
        Lnl = a.newlabel("nolead")
        a.i(f"s_lshl_b32 s62, {sCG}, 2")
        a.i(f"s_add_u32 s62, s62, {sWR}")
        a.i("s_cmp_lg_u32 s62, 0")
        a.i(f"s_cbranch_scc1 {Lnl}")
        a.i("v_mov_b32 v246, 0")
        a.i("v_mov_b32 v247, 1")
        a.i("s_mov_b64 exec, 1")
        a.i(f"global_atomic_add v248, v246, v247, {sDBG} sc0 sc1")
        a.i("s_waitcnt vmcnt(0)")
        a.i("v_readfirstlane_b32 s62, v248")
        a.i("s_mov_b64 exec, -1")
        a.nop(1)
        a.i("s_cmp_lg_u32 s62, 31")
        a.i(f"s_cbranch_scc1 {Lnl}")
        a.i(f"v_mov_b32 v247, {sN}")
        a.i(f"v_mov_b32 v246, {WS_X}")
        a.i("s_mov_b32 s62, 0")
        a.i("s_mov_b64 exec, 1")
        a.i(f"buffer_store_dword v247, v246, {SRD_WS}, s62 offen sc1")
        a.i("s_mov_b64 exec, -1")
        a.label(Lnl)
        a.i(f"s_lshl_b32 s62, {sRB}, 1")
        a.i("s_add_u32 s63, s62, s82")
        a.i("s_xor_b32 s64, s82, 1")
        a.i("s_add_u32 s64, s62, s64")
        a.i("s_mul_i32 s85, s63, 40960")
        a.i("s_mul_i32 s86, s64, 40960")
        a.i(f"s_mul_i32 s62, {sWR}, 10240")
        a.i(f"s_add_u32 s62, s62, {WS_O}")
        a.i("s_add_u32 s85, s85, s62")
        a.i("s_add_u32 s86, s86, s62")
        ol = {}
        H = lambda e, s: 120 + 8 * e + 4 * s
        for e in range(10):
            a.i(f"s_add_u32 s62, s85, {e*1024}")
            t0 = a.vmem(f"buffer_load_dwordx4 v[{H(e,0)}:{H(e,0)+3}], {self.B_L16}, {SRD_WS}, s62 offen sc1")
            a.i(f"s_add_u32 s63, s86, {e*1024}")
            t1 = a.vmem(f"buffer_load_dwordx4 v[{H(e,1)}:{H(e,1)+3}], {self.B_L16}, {SRD_WS}, s63 offen sc1")
            ol[e] = [t0, t1]
        Wb = lambda e: 96 + 12 * (e % 2)
        rt = {0: self.w3_reads(0, Wb(0))}
        for e in range(10):
            a.wait(lg=rt[e], vm=ol[e])
            def mid(e=e):
                if e + 1 < 10: rt[e + 1] = self.w3_reads(e + 1, Wb(e + 1))
            self.five_mfma(Wb(e), H(e, 0), H(e, 1), e == 0, mid)
        self.reduce80(96, 12)
        a.i("s_mov_b32 s62, 0xffff0000")
        for e in range(5):
            x0, x1 = 220 + 2 * e, 221 + 2 * e
            a.i(f"v_lshlrev_b32 v16, 16, v{x0}")
            a.i(f"v_and_b32 v17, s62, v{x0}")
            a.i(f"v_lshlrev_b32 v18, 16, v{x1}")
            a.i(f"v_and_b32 v19, s62, v{x1}")
            for j in range(4): a.i(f"v_fma_f32 v{16+j}, v{96+4*e+j}, v{200+4*e+j}, v{16+j}")
            a.i(f"v_cvt_pk_bf16_f32 v{20+2*e}, v16, v17")
            a.i(f"v_cvt_pk_bf16_f32 v{21+2*e}, v18, v19")
            a.vmem(f"buffer_store_dwordx2 v[{20+2*e}:{21+2*e}], {self.vXO}, {SRD_OUT}, s{88+e} offen")

    def role_b(self):
        a = self.a
        a.label("L_ROLE_B")
        self.ctl_regs(self.B_CW, self.B_CR, self.B_ONE)
        a.i(f"v_lshlrev_b32 {self.B_L16}, 4, v0")
        a.vm = [t for k in range(5) for t in self.w1tok[k]]; a.lg = []
        self.ffn1()
        self.ffn2()
        if self.o.get('dump') == 'g':
            self.dump_regs(200, 20, 0, self.B_L16)
        self.out_proj()
        a.i("s_branch L_END")

    def build(self):
        a = self.a
        self.prologue()
        a.i(f"s_cmp_ge_u32 {sW}, 4")
        a.i("s_cbranch_scc1 L_PF_B")
        save = list(a.vm)
        self.a_prefetch()
        a.label("L_PF_B")
        a.vm = list(save)
        self.b_prefetch()
        a.label("L_LN")
        a.i("s_waitcnt lgkmcnt(0)")
        a.i(f"s_add_u32 {sN}, {sN}, 1")
        a.vm = []; a.lg = []
        self.layernorm()
        if self.o.get('dump') == 'xn':
            self.dump_lds_xn()
        a.i(f"s_cmp_ge_u32 {sW}, 4")
        a.i("s_cbranch_scc1 L_ROLE_B")
        self.role_a()
        self.role_b()
        a.label("L_END")
        a.i("s_endpgm")

    def dump_lds_xn(self):
        a = self.a
        a.i("v_lshlrev_b32 v72, 4, v0")
        a.i(f"s_mul_i32 s70, {sW}, 10240")
        a.i("v_add_u32 v73, s70, v72")
        a.i("s_mul_i32 s71, s2, 81920")
        a.i("s_add_u32 s71, s71, s70")
        a.i(f"s_add_u32 s71, s71, {WS_DBG}")
        for g in range(10):
            a.i(f"ds_read_b128 v[76:79], v73 offset:{g*1024}")
            a.i("s_waitcnt lgkmcnt(0)")
            a.i(f"s_add_u32 s70, s71, {g*1024}")
            a.i(f"buffer_store_dwordx4 v[76:79], v72, {SRD_WS}, s70 offen")
            a.i("s_waitcnt vmcnt(0)")

    def emit(self):
        self.build()
        body = self.a.text()
        hdr = f"""; Fused LayerNorm + MQA attention + ReLU FFN + gated residual, one persistent workgroup per CU.
; @launch grid=(256,1,1) block=(512,1,1) lds={LDS_TOTAL}
.amdgcn_target "amdgcn-amd-amdhsa--gfx950"
.text
.globl {NAME}_kernel
.p2align 8
.type {NAME}_kernel,@function
{NAME}_kernel:
"""
        ftr = f""".section .rodata,"a"
.p2align 6
.amdhsa_kernel {NAME}_kernel
  .amdhsa_next_free_vgpr 256
  .amdhsa_next_free_sgpr 102
  .amdhsa_accum_offset 256
  .amdhsa_group_segment_fixed_size 0
  .amdhsa_kernarg_size 88
  .amdhsa_user_sgpr_count 2
  .amdhsa_user_sgpr_kernarg_segment_ptr 1
  .amdhsa_system_sgpr_workgroup_id_x 1
  .amdhsa_float_denorm_mode_32 3
.end_amdhsa_kernel
"""
        return hdr + body + ftr

    def hazards(self):
        ins = [t for k, t in self.a.lines if k == 'i']
        probs = check_hazards(ins, "linear")
        body = [t for k, t in self.a.lines[self.loop_start:self.loop_end] if k == 'i']
        probs += check_hazards(body[-40:] + body[:40], "att-backedge")
        return probs

if __name__ == "__main__":
    opt = {}
    out = None
    for arg in sys.argv[1:]:
        if "=" in arg:
            k, v = arg.split("=", 1); opt[k] = v
        else: out = arg
    g = Gen(opt)
    txt = g.emit()
    pr = g.hazards()
    for p in pr: print("HAZARD:", p)
    open(out or "k.s", "w").write(txt)
    n = sum(1 for k, t in g.a.lines if k == 'i')
    print(f"wrote {out or 'k.s'}: {n} instructions, {len(pr)} hazards")
```

```python
import sys
from asmlib import Asm, check_hazards

NAME = "recurrent_scan__grouped_kv_mqa__dense_activation_relu__prompt"

XN    = 0
BST   = 81920
AREG  = 122880
APRIV = 9216
RSLOT = 12288
CTRL  = 159744
LDS_TOTAL = 163840
C_ARR, C_KVD, C_ABAR, C_QDONE, C_KVRDY, C_XND, C_HD, C_BBAR, C_OD, C_GO, C_HRDY, C_ORDY = [4 * i for i in range(12)]
CDUMMY = 1024

WS_X    = 0
WS_FKV  = 0x1000
WS_FH   = 0x4000
WS_FO   = 0x6000
WS_KN   = 0x8000
WS_VN   = 0x8400
WS_KV   = 0x10000
WS_H    = 0x100000
WS_O    = 0x800000
WS_DBG  = 0xB00000
WS_PROF = 0x1300000
WS_END  = 0x1400000

QSCALE = 0.22360679774997896 * 1.4426950408889634

import struct
def f2u(x): return struct.unpack("<I", struct.pack("<f", x))[0]
def hx(x): return "0x%08x" % (x & 0xffffffff)

sW, sRB, sCG, sN, sWR = "s3", "s4", "s5", "s6", "s7"
SRD_X, SRD_WQ, SRD_WKV, SRD_WO, SRD_W1, SRD_W2, SRD_OUT, SRD_WS = [f"s[{8+4*i}:{11+4*i}]" for i in range(8)]
sDBG, sWSP = "s[58:59]", "s[60:61]"

SPIN_LDS = 400000
SPIN_GLB = 40000

class Gen:
    def __init__(self, opt):
        self.o = opt
        self.a = Asm()

    def vr(self, base, n): return f"v[{base}:{base+n-1}]"

    def lds_spin_ge(self, cnt_off, target, vtmp, vctlr, stmp="s62", sleep=1):
        a = self.a
        L = a.newlabel("spin"); Ld = a.newlabel("spind")
        a.i(f"s_mov_b32 {stmp}, 0")
        a.label(L)
        a.i(f"ds_read_b32 {vtmp}, {vctlr} offset:{cnt_off}")
        a.i("s_waitcnt lgkmcnt(0)")
        a.i(f"v_cmp_gt_u32 vcc, {target}, {vtmp}")
        a.i(f"s_cbranch_vccz {Ld}")
        a.i(f"s_add_u32 {stmp}, {stmp}, 1")
        a.i(f"s_cmp_lt_u32 {stmp}, {SPIN_LDS}")
        a.i(f"s_sleep {sleep}")
        a.i(f"s_cbranch_scc1 {L}")
        a.label(Ld)
        a.lg = []

    def glb_poll(self, voff, soff, vtmp, stmp="s62", sleep=4):
        a = self.a
        L = a.newlabel("poll"); Ld = a.newlabel("polld")
        a.i(f"s_mov_b32 {stmp}, 0")
        a.label(L)
        a.i(f"buffer_load_dword {vtmp}, {voff}, {SRD_WS}, {soff} offen sc1")
        a.i("s_waitcnt vmcnt(0)")
        a.i(f"v_cmp_ne_u32 vcc, {sN}, {vtmp}")
        a.i(f"s_cbranch_vccz {Ld}")
        a.i(f"s_add_u32 {stmp}, {stmp}, 1")
        a.i(f"s_cmp_lt_u32 {stmp}, {SPIN_GLB}")
        a.i(f"s_sleep {sleep}")
        a.i(f"s_cbranch_scc1 {L}")
        a.label(Ld)
        a.vm = []

    def one_wave_poll(self, flag_base, rdy_off, pre=None, sleep=4):
        a = self.a
        Lw = a.newlabel("opw"); Lj = a.newlabel("opj")
        keep = list(a.vm)
        a.i(f"s_cmp_lg_u32 {sWR}, 0")
        a.i(f"s_cbranch_scc1 {Lw}")
        if pre: pre()
        a.i("v_and_b32 v246, 7, v0")
        a.i("v_lshlrev_b32 v246, 2, v246")
        a.i(f"s_lshl_b32 s63, {sRB}, 7")
        a.i(f"s_add_u32 s63, s63, {flag_base}")
        self.glb_poll("v246", "s63", "v247", sleep=sleep)
        a.i(f"ds_add_u32 {self.B_CW}, {self.B_ONE} offset:{rdy_off}")
        a.i(f"s_branch {Lj}")
        a.label(Lw)
        self.lds_spin_ge(rdy_off, 1, "v246", self.B_CR, sleep=2)
        a.label(Lj)
        a.i("s_waitcnt lgkmcnt(0)")
        a.vm = keep; a.lg = []

    def lds_count(self, cnt_off, vctlw, vone):
        return self.a.lds(f"ds_add_u32 {vctlw}, {vone} offset:{cnt_off}")

    def dump_regs(self, base, n, slot, vlane16, cond_wave=None):
        a = self.a
        a.i("s_lshl_b32 s70, s2, 3"); a.i(f"s_add_u32 s70, s70, {sW}")
        a.i("s_mul_i32 s70, s70, 0x4000")
        a.i(f"s_add_u32 s70, s70, {WS_DBG + 0x0}")
        for g in range(n // 4):
            a.i(f"s_add_u32 s71, s70, {(slot + g) * 1024}")
            a.i(f"buffer_store_dwordx4 v[{base+4*g}:{base+4*g+3}], {vlane16}, {SRD_WS}, s71 offen")
        a.i("s_waitcnt vmcnt(0)")
        a.vm = []

    def stamp(self, k, cyc=False):
        if not self.o.get('prof'): return
        a = self.a
        a.i("s_memtime s[56:57]" if cyc else "s_memrealtime s[56:57]")
        a.i("s_waitcnt lgkmcnt(0)")
        a.i(f"s_mov_b32 s{40+k}, s56")
        a.lg = []

    def stamp_flush(self):
        if not self.o.get('prof'): return
        a = self.a
        a.i("s_mov_b64 exec, 1")
        a.i("s_lshl_b32 s62, s2, 3")
        a.i(f"s_add_u32 s62, s62, {sW}")
        a.i("s_lshl_b32 s62, s62, 6")
        a.i(f"s_add_u32 s62, s62, {WS_PROF}")
        a.i("v_mov_b32 v1, 0")
        for g in range(4):
            for j in range(4): a.i(f"v_mov_b32 v{4+j}, s{40+4*g+j}")
            a.i(f"buffer_store_dwordx4 v[4:7], v1, {SRD_WS}, s62 offen offset:{16*g}")
            a.nop(2)
        a.i("s_mov_b64 exec, -1")

    def l2_prefetch(self, srd, total_bytes, ninstr, vtmp, vdst, sub_sgpr, nsub):
        a = self.a
        st = self.o.get('pfstride', 128)
        lines = total_bytes // st
        per_cu = -(-lines // 32); per_w = -(-per_cu // nsub); per_i = -(-per_w // ninstr)
        assert per_i <= 64, per_i
        a.i(f"s_lshr_b32 s62, {sRB}, 3")
        a.i(f"s_lshl_b32 s63, {sCG}, 2")
        a.i("s_add_u32 s62, s62, s63")
        a.i(f"s_mul_i32 s62, s62, {per_cu}")
        a.i(f"s_mul_i32 s63, {sub_sgpr}, {per_w}")
        a.i("s_add_u32 s62, s62, s63")
        a.i(f"v_min_u32 {vtmp}, {per_i - 1}, v0")
        a.i(f"v_add_u32 {vtmp}, s62, {vtmp}")
        a.i(f"v_mul_u32_u24 {vtmp}, {st}, {vtmp}")
        toks = []
        for i in range(ninstr):
            a.i(f"s_mov_b32 s63, {i * per_i * st}")
            toks.append(a.vmem(f"buffer_load_dword {vdst}, {vtmp}, {srd}, s63 offen"))
        return toks

    def prologue(self):
        a = self.a
        a.i("s_cmp_ge_u32 s2, 256")
        a.i("s_cbranch_scc1 L_END")
        if self.o.get('prof'): a.i("s_memrealtime s[94:95]")
        a.i("s_load_dwordx16 s[40:55], s[0:1], 0")
        a.i("s_load_dwordx4 s[56:59], s[0:1], 64")
        a.i("s_load_dwordx2 s[60:61], s[0:1], 80")
        a.i("v_lshrrev_b32 v1, 6, v0")
        a.i("v_and_b32 v0, 63, v0")
        a.i(f"s_and_b32 {sRB}, s2, 31")
        a.i(f"v_readfirstlane_b32 {sW}, v1")
        a.i(f"s_lshr_b32 {sCG}, s2, 5")
        a.i("v_lshrrev_b32 v2, 3, v0")
        a.i("v_and_b32 v3, 7, v0")
        a.i(f"s_and_b32 {sWR}, {sW}, 3")
        a.i(f"s_and_b32 s65, {sCG}, 1")
        a.i("s_lshl_b32 s65, s65, 2")
        a.i(f"s_xor_b32 s65, s65, {sW}")
        a.i("s_lshl_b32 s62, s65, 3")
        a.i(f"s_mul_i32 s63, {sRB}, 81920")
        a.i("v_add_u32 v4, s62, v2")
        a.i("v_mul_u32_u24 v4, 1280, v4")
        a.i("v_lshl_add_u32 v4, v3, 4, v4")
        a.i("s_waitcnt lgkmcnt(0)")
        def srd(base, lo, size):
            a.i(f"s_mov_b32 s{base}, s{lo}")
            a.i(f"s_mov_b32 s{base+1}, s{lo+1}")
            a.i(f"s_mov_b32 s{base+2}, {size}")
            a.i(f"s_mov_b32 s{base+3}, 0x20000")
        srd(8, 40, 2621440)
        self.xtok = []
        for i in range(10):
            self.xtok.append(a.vmem(f"buffer_load_dwordx4 v[{16+4*i}:{19+4*i}], v4, {SRD_X}, s63 offen offset:{128*i}"))
        a.i(f"s_load_dword {sN}, {sWSP}, {WS_X}")
        srd(12, 42, 819200)
        a.i(f"s_cmp_eq_u32 {sCG}, 7")
        a.i("s_cselect_b32 s16, s46, s44")
        a.i("s_cselect_b32 s17, s47, s45")
        a.i("s_mov_b32 s18, 25600")
        a.i("s_mov_b32 s19, 0x20000")
        srd(20, 48, 819200)
        srd(24, 52, 2211840)
        srd(28, 54, 2211840)
        srd(32, 56, 2621440)
        srd(36, 60, WS_END)
        for r in (200, 230, 231): a.i(f"v_mov_b32 v{r}, 0")
        if self.o.get('prof'):
            for k in range(16): a.i(f"s_mov_b32 s{40+k}, 0")
            a.i("s_mov_b32 s55, s94")
        self.stamp(0)

    def layernorm(self):
        a = self.a
        a.i("v_lshrrev_b32 v5, 1, v3")
        a.i("v_lshlrev_b32 v5, 10, v5")
        a.i("v_and_b32 v6, 1, v3")
        a.i("v_lshlrev_b32 v6, 9, v6")
        a.i("v_xor_b32 v7, v2, v3")
        a.i("v_lshlrev_b32 v7, 4, v7")
        a.i("v_add3_u32 v5, v5, v6, v7")
        a.i("s_and_b32 s62, s65, 3")
        a.i("s_lshl_b32 s62, s62, 7")
        a.i("s_lshr_b32 s64, s65, 2")
        a.i("s_mul_i32 s64, s64, 40960")
        a.i("s_add_u32 s62, s62, s64")
        a.i("v_add_u32 v5, s62, v5")
        Lz = a.newlabel("nz")
        a.i(f"s_cmp_lg_u32 {sW}, 0")
        a.i(f"s_cbranch_scc1 {Lz}")
        a.i("v_lshlrev_b32 v6, 2, v0")
        a.i(f"v_add_u32 v6, {CTRL}, v6")
        a.i("v_mov_b32 v7, 0")
        a.i("ds_write_b32 v6, v7")
        a.label(Lz)
        a.i("s_mov_b32 s62, 0x3f803f80")
        a.i("s_mov_b32 s63, 0xffff0000")
        for k in range(4): a.i(f"v_mov_b32 v{64+k}, 0")
        a.nop(1)
        X = lambda j: f"v{16+j}"
        for j in range(40):
            a.i(f"v_dot2_f32_bf16 v{64+(j&1)}, {X(j)}, s62, v{64+(j&1)}")
            a.i(f"v_dot2_f32_bf16 v{66+(j&1)}, {X(j)}, {X(j)}, v{66+(j&1)}")
        a.nop(3)
        a.i("v_add_f32 v64, v64, v65")
        a.i("v_add_f32 v66, v66, v67")
        a.nop(1)
        for dpp in ("quad_perm:[1,0,3,2]", "quad_perm:[2,3,0,1]", "row_half_mirror"):
            a.i(f"v_add_f32_dpp v64, v64, v64 {dpp} row_mask:0xf bank_mask:0xf")
            a.i(f"v_add_f32_dpp v66, v66, v66 {dpp} row_mask:0xf bank_mask:0xf")
            a.nop(1)
        a.i(f"v_mul_f32 v64, {hx(f2u(1.0/640))}, v64")
        a.i(f"v_mul_f32 v66, {hx(f2u(1.0/640))}, v66")
        a.i("v_fma_f32 v66, -v64, v64, v66")
        a.i("v_max_f32 v66, 0, v66")
        a.i(f"v_add_f32 v66, {hx(f2u(1e-5))}, v66")
        a.i("v_rsq_f32 v68, v66")
        a.nop(1)
        a.i("v_mov_b32 v69, v68")
        a.i("v_mul_f32 v70, v64, v68")
        a.i("v_sub_f32 v70, 0, v70")
        a.i("v_mov_b32 v71, v70")
        self.role_prefetch()
        a.label("L_LN2")
        a.i("s_mov_b32 s63, 0xffff0000")
        for g in range(10):
            for d in range(4):
                j = 4 * g + d
                t = 56 + 2 * (j & 3)
                a.i(f"v_lshlrev_b32 v{t}, 16, {X(j)}")
                a.i(f"v_and_b32 v{t+1}, s63, {X(j)}")
            for d in range(4):
                j = 4 * g + d
                t = 56 + 2 * (j & 3)
                a.i(f"v_pk_fma_f32 v[{t}:{t+1}], v[{t}:{t+1}], v[68:69], v[70:71]")
            for d in range(4):
                j = 4 * g + d
                t = 56 + 2 * (j & 3)
                a.i(f"v_cvt_pk_bf16_f32 {X(j)}, v{t}, v{t+1}")
            a.i(f"ds_write_b128 v5, v[{16+4*g}:{19+4*g}] offset:{4096*g}")
        a.i("s_waitcnt lgkmcnt(0)")
        a.i("s_barrier")
        a.lg = []

    def xn_addr(self, vA, vB, vt0, vt1, phase_sgpr=None, base_sgpr=None, swap_sgpr=None):
        a = self.a
        a.i(f"v_and_b32 {vt0}, 31, v0")
        a.i(f"v_lshrrev_b32 {vt1}, 5, v0")
        for q in range(4):
            r = f"v{vA+q}"
            if phase_sgpr is None:
                a.i(f"v_add_u32 {r}, {2*q}, {vt1}")
            else:
                a.i(f"s_add_u32 s62, {phase_sgpr}, {q}")
                a.i("s_and_b32 s62, s62, 3")
                a.i("s_lshl_b32 s62, s62, 1")
                a.i(f"v_add_u32 {r}, s62, {vt1}")
            a.i(f"v_xor_b32 {r}, {r}, {vt0}")
            a.i(f"v_lshlrev_b32 {r}, 4, {r}")
            a.i(f"v_lshl_add_u32 {r}, {vt1}, 9, {r}")
            if base_sgpr is not None:
                a.i(f"v_add_u32 {r}, {base_sgpr}, {r}")
            a.i(f"v_add_u32 v{vB+q}, 40960, {r}")

    SEG = [0, 8, 20, 28, 40]
    def rot_setup(self, stride, sK, sRot):
        a = self.a
        a.i(f"s_lshr_b32 s62, {sRB}, 3")
        a.i("s_mul_i32 s63, s62, 10")
        a.i("s_and_b32 s62, s62, 1")
        a.i("s_lshl_b32 s62, s62, 1")
        a.i(f"s_add_u32 {sRot}, s63, s62")
        if not self.o.get('rot', 1): a.i(f"s_mov_b32 {sRot}, 0")
        a.i(f"s_mul_i32 {sK}, {sRot}, {stride}")
    def rot_next(self, stride, sK):
        a = self.a
        a.i(f"s_add_u32 {sK}, {sK}, {stride}")
        a.i(f"s_cmp_eq_u32 {sK}, {40*stride}")
        a.i(f"s_cselect_b32 {sK}, 0, {sK}")
    def rot_xn_base(self, vA, vB, sRot):
        a = self.a
        a.i(f"s_lshl_b32 s62, {sRot}, 10")
        for q in range(4):
            a.i(f"v_add_u32 v{vA+q}, s62, v{vA+q}")
            a.i(f"v_add_u32 v{vB+q}, s62, v{vB+q}")
    def rot_xn_seg(self, vA, vB, sRot, ks):
        a = self.a
        if ks not in self.SEG[1:4]: return
        prev = self.SEG[self.SEG.index(ks) - 1]
        a.i(f"s_add_u32 s62, {sRot}, {ks}")
        a.i("s_cmp_eq_u32 s62, 40")
        a.i(f"s_cselect_b32 s62, {hx(-40960)}, 0")
        a.i(f"s_add_u32 s62, s62, {(ks - prev) * 1024}")
        for q in range(4):
            a.i(f"v_add_u32 v{vA+q}, s62, v{vA+q}")
            a.i(f"v_add_u32 v{vB+q}, s62, v{vB+q}")
    def seg_imm(self, ks):
        st = max(x for x in self.SEG if x <= ks)
        return (ks - st) * 1024

    def ctl_regs(self, vW, vR, vOne):
        a = self.a
        a.i(f"v_lshlrev_b32 {vW}, 2, v0")
        a.i(f"v_add_u32 {vW}, {CTRL + CDUMMY}, {vW}")
        a.i(f"v_mov_b32 {vR}, {CTRL}")
        a.i("v_cmp_eq_u32 vcc, 0, v0")
        a.i(f"v_mov_b32 {vOne}, 1")
        a.nop(1)
        a.i(f"v_cndmask_b32 {vW}, {vW}, {vR}, vcc")

    vDq, vTRq, vTRk = "v200", "v201", "v202"
    A_XA, A_XB = 204, 208
    A_CW, A_CR, A_ONE, A_L16 = "v212", "v213", "v214", "v215"
    A_JA, A_JB = 220, 224

    def wq_dma(self, ks):
        a = self.a
        a.i(f"s_add_u32 m0, s66, {(ks % 9) * 1024}")
        a.nop(1)
        t = a.vmem(f"buffer_load_dwordx4 {self.vDq}, {SRD_WQ}, s67 offen lds")
        self.rot_next(20480, "s67")
        return t

    def a_setup_private(self):
        a = self.a
        a.i(f"s_mul_i32 s66, {sWR}, {APRIV}")
        a.i(f"s_add_u32 s66, s66, {AREG}")

    def a_prefetch_q_addr(self):
        a = self.a
        a.i("v_lshrrev_b32 v216, 2, v0")
        a.i("v_mul_u32_u24 v216, 1280, v216")
        a.i("v_and_b32 v217, 3, v0")
        a.i(f"v_lshl_add_u32 {self.vDq}, v217, 4, v216")
        a.i(f"s_lshl_b32 s62, {sCG}, 2")
        a.i(f"s_add_u32 s62, s62, {sWR}")
        a.i("s_mul_i32 s62, s62, 40")
        a.i(f"v_add_u32 {self.vDq}, s62, {self.vDq}")

    def role_prefetch(self):
        a = self.a
        a.i(f"s_cmp_ge_u32 {sW}, 4")
        a.i("s_cbranch_scc1 L_PF_B")
        self.a_setup_private()
        self.a_prefetch_q_addr()
        n = 1 if self.o.get('pfstride', 128) == 128 else 2
        a.vm = []
        if self.o.get('pf', 0): self.l2_prefetch(SRD_WQ, 819200, n, "v216", "v203", sWR, 4)
        self.rot_setup(20480, "s67", "s69")
        self.qtok = [self.wq_dma(ks) for ks in range(9)]
        a.i("s_branch L_LN2")
        a.label("L_PF_B")
        a.vm = []
        self.b_prefetch()

    def tr_addr_nat64(self, vdst, base_sgpr, pitch, t0="v216", t1="v217"):
        a = self.a
        a.i(f"v_lshrrev_b32 {t0}, 5, v0")
        a.i(f"v_lshlrev_b32 {t0}, 3, {t0}")
        a.i(f"v_bfe_u32 {t1}, v0, 2, 2")
        a.i(f"v_add_u32 {t0}, {t0}, {t1}")
        a.i(f"v_mul_u32_u24 {t0}, {pitch}, {t0}")
        a.i(f"v_bfe_u32 {t1}, v0, 4, 1")
        a.i(f"v_lshl_add_u32 {t0}, {t1}, 5, {t0}")
        a.i(f"v_and_b32 {t1}, 3, v0")
        a.i(f"v_lshl_add_u32 {t0}, {t1}, 3, {t0}")
        a.i(f"v_add_u32 {vdst}, {base_sgpr}, {t0}")

    def wave_max(self, regs):
        a = self.a
        for dpp in ("row_shr:1 row_mask:0xf", "row_shr:2 row_mask:0xf", "row_shr:4 row_mask:0xf", "row_shr:8 row_mask:0xf",
                    "row_bcast:15 row_mask:0xa", "row_bcast:31 row_mask:0xc"):
            a.nop(2 if len(regs) == 1 else (1 if len(regs) == 2 else 0))
            for r in regs:
                a.i(f"v_max_f32_dpp {r}, {r}, {r} {dpp} bank_mask:0xf")
        a.nop(1)

    def kv_job(self, isV):
        a = self.a
        a.c("---- K/V projection job: split-K over the 4 B waves ----")
        D = [16, 32]
        def fr(set_): return 48 + 12 * set_
        toks = {}
        def reads(kk):
            b = fr(kk % 3); t = []
            t.append(a.lds(f"ds_read_b64_tr_b16 v[{b}:{b+1}], {self.B_TRK} offset:{kk*640}"))
            t.append(a.lds(f"ds_read_b64_tr_b16 v[{b+2}:{b+3}], {self.B_TRK} offset:{kk*640+160}"))
            t.append(a.lds(f"ds_read_b128 v[{b+4}:{b+7}], v{self.B_JA + kk % 4} offset:{kk*1024}"))
            t.append(a.lds(f"ds_read_b128 v[{b+8}:{b+11}], v{self.B_JB + kk % 4} offset:{kk*1024}"))
            toks[kk] = t
        a.wait(vm='all')
        reads(0); reads(1)
        for kk in range(10):
            if kk + 2 < 10: reads(kk + 2)
            a.wait(lg=toks[kk])
            b = fr(kk % 3)
            for m in range(2):
                W = f"v[{b}:{b+3}]"; X = f"v[{b+4+4*m}:{b+7+4*m}]"
                C = "0" if kk == 0 else f"v[{D[m]}:{D[m]+15}]"
                if isV: a.i(f"v_mfma_f32_32x32x16_bf16 v[{D[m]}:{D[m]+15}], {X}, {W}, {C}")
                else:   a.i(f"v_mfma_f32_32x32x16_bf16 v[{D[m]}:{D[m]+15}], {W}, {X}, {C}")
        a.i(f"v_add_u32 v246, s66, {self.B_L16}")
        a.i(f"s_lshl_b32 s62, {sWR}, 11")
        a.i(f"s_add_u32 s62, s62, {BST}")
        a.i(f"v_add_u32 v247, s62, {self.B_L16}")
        a.nop(9)
        for g in range(8):
            r = 16 + 4 * g
            a.lds(f"ds_write_b128 v246, v[{r}:{r+3}] offset:{g*1024}")
        a.wait(lg='all')
        self.lds_count(C_ABAR, self.B_CW, self.B_ONE)
        self.lds_spin_ge(C_ABAR, 4, "v248", self.B_CR)
        tk = []
        for src in range(4):
            for e in range(2):
                r = 48 + 8 * src + 4 * e
                tk.append(a.lds(f"ds_read_b128 v[{r}:{r+3}], v247 offset:{src*10240 + e*1024}"))
        a.wait(lg='all')
        for j in range(8): a.i(f"v_add_f32 v{80+j}, v{48+j}, v{56+j}")
        for j in range(8): a.i(f"v_add_f32 v{64+j}, v{64+j}, v{72+j}")
        for j in range(8): a.i(f"v_add_f32 v{80+j}, v{80+j}, v{64+j}")
        a.i(f"s_lshr_b32 s62, {sRB}, 1")
        a.i(f"s_mul_i32 s62, s62, {RSLOT}")
        a.i(f"s_add_u32 s62, s62, {WS_KV}")
        a.i(f"s_and_b32 s63, {sRB}, 1")
        a.i(f"s_lshr_b32 s64, {sWR}, 1")
        a.i("s_lshl_b32 s65, s63, 1")
        a.i("s_add_u32 s65, s65, s64")
        a.i(f"s_and_b32 s87, {sWR}, 1")
        for j in range(4): a.i(f"v_cvt_pk_bf16_f32 v{88+j}, v{80+2*j}, v{81+2*j}")
        if not isV:
            Lodd = a.newlabel("kodd"); Lj = a.newlabel("kjoin")
            a.i("s_cmp_lg_u32 s87, 0")
            a.i(f"s_cbranch_scc1 {Lodd}")
            a.i("s_lshl_b32 s65, s65, 10")
            a.i("s_add_u32 s62, s62, s65")
            a.vmem(f"buffer_store_dwordx4 v[88:91], {self.B_L16}, {SRD_WS}, s62 offen sc1")
            a.i("v_mul_f32 v92, v80, v80")
            for j in range(1, 8): a.i(f"v_fmac_f32 v92, v{80+j}, v{80+j}")
            a.i("v_mov_b32 v93, v92")
            a.nop(2)
            a.i("v_permlane32_swap_b32 v92, v93")
            a.nop(1)
            a.i("v_add_f32 v92, v92, v93")
            a.i(f"s_branch {Lj}")
            a.label(Lodd)
            a.i("s_lshl_b32 s63, s63, 9")
            a.i("s_add_u32 s62, s62, s63")
            a.i("s_lshl_b32 s64, s64, 3")
            a.i("s_add_u32 s62, s62, s64")
            a.i("s_add_u32 s62, s62, 4096")
            a.i("s_mov_b32 exec_lo, -1"); a.i("s_mov_b32 exec_hi, 0")
            a.vmem(f"buffer_store_dwordx2 v[88:89], {self.B_L16}, {SRD_WS}, s62 offen sc1")
            a.i("s_mov_b64 exec, -1")
            a.i("v_mul_f32 v92, v80, v80")
            for j in range(1, 4): a.i(f"v_fmac_f32 v92, v{80+j}, v{80+j}")
            a.i("v_cmp_gt_u32 vcc, 32, v0")
            a.nop(2)
            a.i("v_cndmask_b32 v92, 0, v92, vcc")
            a.label(Lj)
            norm_base = WS_KN
        else:
            a.i("v_and_b32 v93, 31, v0")
            a.i("v_cmp_eq_u32 vcc, 20, v93")
            a.i("v_mov_b32 v94, 0x3f803f80")
            a.i("v_lshrrev_b32 v95, 5, v0")
            for j in range(4): a.i(f"v_cndmask_b32 v{88+j}, v{88+j}, v94, vcc")
            a.i("v_mul_u32_u24 v95, 336, v95")
            a.i("v_lshl_add_u32 v95, v93, 4, v95")
            a.i("s_lshl_b32 s65, s65, 1")
            a.i("s_add_u32 s65, s65, s87")
            a.i("s_mul_i32 s65, s65, 672")
            a.i("s_add_u32 s62, s62, s65")
            a.i("s_add_u32 s62, s62, 5120")
            a.i("s_mov_b32 exec_lo, 0x1fffff")
            a.i("s_mov_b32 exec_hi, 0x1fffff")
            a.vmem(f"buffer_store_dwordx4 v[88:91], v95, {SRD_WS}, s62 offen sc1")
            a.i("s_mov_b64 exec, -1")
            a.i("v_max3_f32 v92, abs(v80), abs(v81), abs(v82)")
            a.i("v_max3_f32 v92, v92, abs(v83), abs(v84)")
            a.i("v_max3_f32 v92, v92, abs(v85), abs(v86)")
            a.i("v_max3_f32 v92, v92, abs(v87), abs(v87)")
            a.i("v_cmp_gt_u32 vcc, 20, v93")
            a.nop(2)
            a.i("v_cndmask_b32 v92, 0, v92, vcc")
            norm_base = WS_VN
        self.wave_max(["v92"])
        a.i("v_readlane_b32 s63, v92, 63")
        a.i(f"s_lshl_b32 s62, {sRB}, 2")
        a.i(f"s_add_u32 s62, s62, {sWR}")
        a.i("s_lshl_b32 s62, s62, 2")
        a.i(f"s_add_u32 s62, s62, {norm_base}")
        a.i("v_mov_b32 v92, s63")
        a.i("v_mov_b32 v93, 0")
        a.i("s_mov_b64 exec, 1")
        a.vmem(f"buffer_store_dword v92, v93, {SRD_WS}, s62 offen sc1")
        a.i("s_mov_b64 exec, -1")
        a.wait(vm='all')
        a.lds(f"ds_add_rtn_u32 v248, {self.B_CW}, {self.B_ONE} offset:{C_KVD}")
        a.wait(lg='all')
        a.i("v_readfirstlane_b32 s62, v248")
        Lnf = a.newlabel("kvnf")
        a.nop(1)
        a.i("s_cmp_lg_u32 s62, 3")
        a.i(f"s_cbranch_scc1 {Lnf}")
        a.i("v_lshlrev_b32 v92, 8, v0")
        a.i(f"v_mov_b32 v93, {sN}")
        a.i(f"s_lshl_b32 s62, {sRB}, 1")
        a.i(f"s_add_u32 s62, s62, {1 if isV else 0}")
        a.i("s_lshl_b32 s62, s62, 2")
        a.i(f"s_add_u32 s62, s62, {WS_FKV}")
        a.i("s_mov_b32 exec_lo, -1"); a.i("s_mov_b32 exec_hi, 0")
        a.i(f"buffer_store_dword v93, v92, {SRD_WS}, s62 offen sc1")
        a.i("s_mov_b64 exec, -1")
        a.label(Lnf)
        self.lds_spin_ge(C_KVD, 4, "v248", self.B_CR)
        a.i("s_waitcnt vmcnt(0)")
        a.vm = []

    def q_proj(self, dtoks):
        a = self.a
        a.c("---- Q projection (transposed): wave = head, both m-tiles ----")
        D = [16, 32]
        W = lambda s: 48 + 4 * s
        X = lambda s, m: 56 + 8 * m + 4 * s
        dm = {k: dtoks[k] for k in range(9)}
        toks = {}
        def reads(ks):
            a.wait(vm=dm[ks])
            s = ks % 2; sl = (ks % 9) * 1024; t = []
            t.append(a.lds(f"ds_read_b64_tr_b16 v[{W(s)}:{W(s)+1}], {self.vTRq} offset:{sl}"))
            t.append(a.lds(f"ds_read_b64_tr_b16 v[{W(s)+2}:{W(s)+3}], {self.vTRq} offset:{sl+256}"))
            self.rot_xn_seg(self.A_XA, self.A_XB, "s69", ks)
            t.append(a.lds(f"ds_read_b128 v[{X(s,0)}:{X(s,0)+3}], v{self.A_XA + ks % 4} offset:{self.seg_imm(ks)}"))
            t.append(a.lds(f"ds_read_b128 v[{X(s,1)}:{X(s,1)+3}], v{self.A_XB + ks % 4} offset:{self.seg_imm(ks)}"))
            toks[ks] = t
        self.rot_xn_base(self.A_XA, self.A_XB, "s69")
        reads(0)
        for ks in range(40):
            a.wait(lg=toks[ks])
            s = ks % 2
            C = "0" if ks == 0 else "v[16:31]"
            a.i(f"v_mfma_f32_32x32x16_bf16 v[16:31], v[{W(s)}:{W(s)+3}], v[{X(s,0)}:{X(s,0)+3}], {C}")
            if ks + 9 < 40: dm[ks + 9] = self.wq_dma(ks + 9)
            if ks + 1 < 40: reads(ks + 1)
            C = "0" if ks == 0 else "v[32:47]"
            a.i(f"v_mfma_f32_32x32x16_bf16 v[32:47], v[{W(s)}:{W(s)+3}], v[{X(s,1)}:{X(s,1)+3}], {C}")
        self.lds_count(C_XND, self.A_CW, self.A_ONE)
        self.lds_count(C_QDONE, self.A_CW, self.A_ONE)

    S_ = {'a': 16, 'b': 32}; O_ = {'a': 48, 'b': 64}; P_ = {'a': 80, 'b': 88}; C_ = {'a': 96, 'b': 112}
    QL = {'a': 128, 'b': 132}; QH = {'a': 136, 'b': 138}
    KL = [140, 144]; KH = [148, 152]; VV = [156, 164]
    vKL, vKH, vV, vKLn, vKHn, vKL0, vKH0, vV0, vCnt, vDkv = [f"v{172+i}" for i in range(10)]
    N2 = {'a': "v182", 'b': "v183"}

    def q_epilogue(self):
        a = self.a
        a.c("---- Q epilogue: scale, pack to bf16 B operands, squared norms ----")
        a.i("v_cmp_gt_u32 vcc, 32, v0")
        a.i(f"v_mov_b32 v216, {hx(f2u(QSCALE))}")
        a.i("v_mov_b32 v217, 0")
        a.nop(7)
        a.i("v_cndmask_b32 v217, v217, v216, vcc")
        for u, D in (('a', 16), ('b', 32)):
            for j in range(8): a.i(f"v_mul_f32 v{D+j}, v216, v{D+j}")
            for j in range(8, 12): a.i(f"v_mul_f32 v{D+j}, v217, v{D+j}")
            for j in range(4): a.i(f"v_cvt_pk_bf16_f32 v{self.QL[u]+j}, v{D+2*j}, v{D+2*j+1}")
            for j in range(2): a.i(f"v_cvt_pk_bf16_f32 v{self.QH[u]+j}, v{D+8+2*j}, v{D+9+2*j}")
            n = self.N2[u]
            a.i(f"v_mul_f32 {n}, v{D}, v{D}")
            for j in range(1, 12): a.i(f"v_fmac_f32 {n}, v{D+j}, v{D+j}")
        for u in "ab":
            a.i(f"v_mov_b32 v{218 if u=='a' else 219}, {self.N2[u]}")
        a.nop(1)
        a.i(f"v_permlane32_swap_b32 {self.N2['a']}, v218")
        a.i(f"v_permlane32_swap_b32 {self.N2['b']}, v219")
        a.nop(1)
        a.i(f"v_add_f32 {self.N2['a']}, {self.N2['a']}, v218")
        a.i(f"v_add_f32 {self.N2['b']}, {self.N2['b']}, v219")

    def qk(self, u, kl, kh, dst=None):
        S = self.S_[u] if dst is None else dst
        C = self.C_[u]
        m0 = f"v_mfma_f32_32x32x16_bf16 v[{S}:{S+15}], v[{kl}:{kl+3}], v[{self.QL[u]}:{self.QL[u]+3}], v[{C}:{C+15}]"
        m1 = f"v_mfma_f32_32x32x8_bf16 v[{S}:{S+15}], v[{kh}:{kh+1}], v[{self.QH[u]}:{self.QH[u]+1}], v[{S}:{S+15}]"
        return m0, m1
    def pv(self, u, vv):
        O = self.O_[u]; P = self.P_[u]
        m0 = f"v_mfma_f32_32x32x16_bf16 v[{O}:{O+15}], v[{vv}:{vv+3}], v[{P}:{P+3}], v[{O}:{O+15}]"
        m1 = f"v_mfma_f32_32x32x16_bf16 v[{O}:{O+15}], v[{vv+4}:{vv+7}], v[{P+4}:{P+7}], v[{O}:{O+15}]"
        return m0, m1

    def kv_wait_and_shift(self):
        a = self.a
        a.c("---- wait for K/V of all row blocks ----")
        Lw = a.newlabel("kvw"); Lj = a.newlabel("kvj")
        a.i(f"s_cmp_lg_u32 {sWR}, 0")
        a.i(f"s_cbranch_scc1 {Lw}")
        self.lds_spin_ge(C_QDONE, 4, "v218", self.A_CR)
        a.i("v_lshlrev_b32 v216, 2, v0")
        a.i(f"s_lshl_b32 s63, {sRB}, 8")
        a.i(f"s_add_u32 s63, s63, {WS_FKV}")
        self.glb_poll("v216", "s63", "v217")
        a.i(f"ds_add_u32 {self.A_CW}, {self.A_ONE} offset:{C_KVRDY}")
        a.i(f"s_branch {Lj}")
        a.label(Lw)
        self.lds_spin_ge(C_KVRDY, 1, "v218", self.A_CR)
        a.label(Lj)
        a.lg = []; a.vm = []
        a.i("s_waitcnt lgkmcnt(0)")

    def ring_prefill(self):
        a = self.a
        a.i(f"s_mul_i32 s62, {sWR}, 3072")
        a.i(f"v_add_u32 {self.vDkv}, s62, {self.A_L16}")
        a.i(f"s_add_u32 s72, s62, {AREG}")
        a.i(f"s_lshr_b32 s62, {sRB}, 3")
        a.i(f"s_lshl_b32 s63, {sCG}, 2")
        a.i("s_add_u32 s62, s62, s63")
        a.i("s_and_b32 s62, s62, 15")
        if not self.o.get('rot', 1): a.i("s_mov_b32 s62, 0")
        a.i(f"s_mul_i32 s79, s62, {RSLOT}")
        tok = []
        for c in range(2):
            a.i(f"s_add_u32 m0, s72, {c*RSLOT}")
            a.i(f"s_add_u32 s73, s79, {WS_KV}")
            tok.append([a.vmem(f"buffer_load_dwordx4 {self.vDkv}, {SRD_WS}, s73 offen offset:{1024*j} sc1 lds") for j in range(3)])
            a.i(f"s_add_u32 s79, s79, {RSLOT}")
            a.i(f"s_cmp_eq_u32 s79, {16*RSLOT}")
            a.i("s_cselect_b32 s79, 0, s79")
        self.lds_count(C_GO, self.A_CW, self.A_ONE)
        return tok

    def shift_setup(self):
        a = self.a
        a.c("---- softmax shift ----")
        a.i("v_lshlrev_b32 v216, 3, v0")
        a.i(f"s_mov_b32 s62, {WS_KN}")
        t1 = a.vmem(f"buffer_load_dwordx2 v[184:185], v216, {SRD_WS}, s62 offen sc1")
        a.i(f"s_mov_b32 s63, {WS_VN}")
        t2 = a.vmem(f"buffer_load_dwordx2 v[186:187], v216, {SRD_WS}, s63 offen sc1")
        a.i(f"v_add_u32 {self.vKL0}, {AREG}, {self.A_L16}")
        a.i("v_and_b32 v216, 31, v0")
        a.i(f"v_lshlrev_b32 {self.vKH0}, 4, v216")
        a.i(f"v_add_u32 {self.vKH0}, {AREG + 4096}, {self.vKH0}")
        a.i("v_min_u32 v217, 20, v216")
        a.i("v_subrev_u32 v218, 16, v216")
        a.i("v_cmp_lt_u32 vcc, 27, v216")
        a.i("v_lshrrev_b32 v219, 5, v0")
        a.i("v_mul_u32_u24 v219, 336, v219")
        a.i("v_cndmask_b32 v217, v217, v218, vcc")
        a.i("v_lshl_add_u32 v217, v217, 4, v219")
        a.i(f"v_add_u32 {self.vV0}, {AREG + 5120}, v217")
        a.wait(vm=[t1, t2])
        a.i("v_max_f32 v186, v186, v187")
        self.wave_max(["v184", "v185", "v186"])
        a.i("v_readlane_b32 s62, v184, 63")
        a.i("v_readlane_b32 s63, v185, 63")
        a.i("v_readlane_b32 s64, v186, 63")
        a.nop(1)
        a.i("v_mov_b32 v184, s62")
        a.i("v_add_f32 v184, s63, v184")
        a.i("v_mov_b32 v186, s64")
        a.i("v_max_f32 v186, 1.0, v186")
        a.i("v_log_f32 v186, v186")
        a.nop(1)
        a.i(f"v_mov_b32 v185, {hx(f2u(56.5))}")
        a.i("v_fma_f32 v186, v186, -0.5, v185")
        for u in "ab":
            n = self.N2[u]
            a.i(f"v_mul_f32 {n}, {n}, v184")
            a.i(f"v_sqrt_f32 {n}, {n}")
            a.nop(1)
            a.i(f"v_mul_f32 {n}, {hx(f2u(1.02))}, {n}")
        a.i(f"v_max_f32 v187, {self.N2['a']}, {self.N2['b']}")
        a.i(f"v_cmp_nle_f32 vcc, {self.N2['a']}, v186")
        a.i(f"v_cmp_nle_f32 s[64:65], {self.N2['b']}, v186")
        a.nop(1)
        a.i("s_or_b64 vcc, vcc, s[64:65]")
        if self.o.get('force_fallback'): a.i("s_mov_b64 vcc, -1")
        Lsafe = a.newlabel("safe")
        a.i(f"s_cbranch_vccz {Lsafe}")
        self.true_max_pass()
        a.label(Lsafe)
        for u in "ab":
            for j in range(16): a.i(f"v_mov_b32 v{self.C_[u]+j}, {self.N2[u]}")

    def true_max_pass(self):
        a = self.a
        a.c("---- fallback: true row max ----")
        for u in "ab":
            for j in range(16): a.i(f"v_mov_b32 v{self.C_[u]+j}, 0")
            a.i(f"v_mov_b32 {self.N2[u]}, 0xff800000")
        a.i("v_and_b32 v216, 31, v0")
        a.i("v_lshlrev_b32 v216, 4, v216")
        a.i("s_mov_b32 s64, 0")
        L = a.newlabel("tm")
        a.label(L)
        a.i("s_lshr_b32 s62, s64, 2")
        a.i(f"s_mul_i32 s62, s62, {RSLOT}")
        a.i(f"s_add_u32 s62, s62, {WS_KV}")
        a.i("s_and_b32 s63, s64, 3")
        a.i("s_lshl_b32 s65, s63, 10")
        a.i("s_add_u32 s65, s65, s62")
        a.i(f"buffer_load_dwordx4 v[{self.KL[0]}:{self.KL[0]+3}], {self.A_L16}, {SRD_WS}, s65 offen sc1")
        a.i("s_lshr_b32 s65, s63, 1")
        a.i("s_lshl_b32 s65, s65, 9")
        a.i("s_and_b32 s63, s63, 1")
        a.i("s_lshl_b32 s63, s63, 3")
        a.i("s_add_u32 s65, s65, s63")
        a.i("s_add_u32 s65, s65, s62")
        a.i("s_add_u32 s65, s65, 4096")
        a.i(f"buffer_load_dwordx2 v[{self.KH[0]}:{self.KH[0]+1}], v216, {SRD_WS}, s65 offen sc1")
        a.i("s_waitcnt vmcnt(0)")
        for u in "ab":
            for m in self.qk(u, self.KL[0], self.KH[0]): a.i(m)
        a.nop(12)
        for u in "ab":
            S = self.S_[u]
            for j in range(8): a.i(f"v_max3_f32 {self.N2[u]}, {self.N2[u]}, v{S+2*j}, v{S+2*j+1}")
        a.i("s_add_u32 s64, s64, 1")
        a.i("s_cmp_lt_u32 s64, 64")
        a.i(f"s_cbranch_scc1 {L}")
        a.i(f"v_mov_b32 v218, {self.N2['a']}")
        a.i(f"v_mov_b32 v219, {self.N2['b']}")
        a.nop(1)
        a.i(f"v_permlane32_swap_b32 {self.N2['a']}, v218")
        a.i(f"v_permlane32_swap_b32 {self.N2['b']}, v219")
        a.nop(1)
        a.i(f"v_max_f32 {self.N2['a']}, {self.N2['a']}, v218")
        a.i(f"v_max_f32 {self.N2['b']}, {self.N2['b']}, v219")
        a.i(f"v_sub_f32 {self.N2['a']}, 0, {self.N2['a']}")
        a.i(f"v_sub_f32 {self.N2['b']}, 0, {self.N2['b']}")

    def attention(self, pre):
        a = self.a
        a.c("---- attention main loop ----")
        for r in list(range(48, 80)) + list(range(88, 96)) + list(range(self.VV[1], self.VV[1] + 8)):
            a.i(f"v_mov_b32 v{r}, 0")
        a.wait(vm=pre[0])
        a.lds(f"ds_add_u32 {self.A_CW}, {self.A_ONE} offset:{C_ARR}")
        self.lds_spin_ge(C_ARR, 4, self.vCnt, self.A_CR)
        a.i("s_mov_b32 s74, 0")
        a.i("s_mov_b32 s75, 0")
        a.i(f"s_mov_b32 s76, {RSLOT}")
        a.i(f"s_mov_b32 s77, {2*RSLOT}")
        a.i("s_mov_b32 s78, 8")
        a.i(f"v_mov_b32 {self.vKL}, {self.vKL0}")
        a.i(f"v_mov_b32 {self.vKH}, {self.vKH0}")
        t0 = a.lds(f"ds_read_b128 v[{self.KL[0]}:{self.KL[0]+3}], {self.vKL}")
        t1 = a.lds(f"ds_read_b128 v[{self.KH[0]}:{self.KH[0]+3}], {self.vKH}")
        a.wait(lg='all')
        for m in self.qk('a', self.KL[0], self.KH[0]): a.i(m)
        a.nop(4)
        self.stamp(7)
        self.stamp(10, True)
        L = "L_ATT"
        a.raw(".p2align 6")
        a.label(L)
        self.loop_start = len(a.lines)
        a.i(f"v_add_u32 {self.vKL}, s75, {self.vKL0}")
        a.i(f"v_add_u32 {self.vKH}, s75, {self.vKH0}")
        a.i(f"v_add_u32 {self.vV}, s75, {self.vV0}")
        a.i(f"v_add_u32 {self.vKLn}, s76, {self.vKL0}")
        a.i(f"v_add_u32 {self.vKHn}, s76, {self.vKH0}")
        a.i("s_waitcnt vmcnt(0)")
        a.vm = []
        a.lg = []
        a.lds(f"ds_add_u32 {self.A_CW}, {self.A_ONE} offset:{C_ARR}")
        def egroup(u, k):
            S = self.S_[u]; P = self.P_[u]
            for e in range(4): a.i(f"v_exp_f32 v{S+4*k+e}, v{S+4*k+e}")
            a.i(f"v_cvt_pk_bf16_f32 v{P+2*k}, v{S+4*k}, v{S+4*k+1}")
            a.i(f"v_cvt_pk_bf16_f32 v{P+2*k+1}, v{S+4*k+2}, v{S+4*k+3}")
        cnt_tok = None
        for t in range(4):
            kh = self.KH[(t >> 1) % 2] + 2 * (t & 1)
            q0, q1 = self.qk('b', self.KL[t % 2], kh)
            p0, p1 = self.pv('b', self.VV[(t - 1) % 2])
            rd = []
            kn = self.KL[(t + 1) % 2]
            if t < 3: rd.append(('K', f"ds_read_b128 v[{kn}:{kn+3}], {self.vKL} offset:{(t+1)*1024}"))
            else:     rd.append(('K', f"ds_read_b128 v[{kn}:{kn+3}], {self.vKLn}"))
            if t & 1:
                hn = self.KH[((t + 1) >> 1) % 2]
                if t < 3: rd.append(('K', f"ds_read_b128 v[{hn}:{hn+3}], {self.vKH} offset:512"))
                else:     rd.append(('K', f"ds_read_b128 v[{hn}:{hn+3}], {self.vKHn}"))
            vv = self.VV[t % 2]
            rd.append(('V', f"ds_read_b128 v[{vv}:{vv+3}], {self.vV} offset:{(2*t)*672}"))
            rd.append(('V', f"ds_read_b128 v[{vv+4}:{vv+7}], {self.vV} offset:{(2*t+1)*672}"))
            ktok, vtok = [], []
            for k, m in enumerate((q0, q1, p0, p1)):
                a.i(m)
                if k < len(rd):
                    tk = a.lds(rd[k][1]); (ktok if rd[k][0] == 'K' else vtok).append(tk)
                egroup('a', k)
            khn = self.KH[((t + 1) >> 1) % 2] + 2 * ((t + 1) & 1)
            q0, q1 = self.qk('a', self.KL[(t + 1) % 2], khn)
            p0, p1 = self.pv('a', self.VV[t % 2])
            a.wait(lg=ktok)
            for k, m in enumerate((q0, q1, p0, p1)):
                if k == 2: a.wait(lg=vtok)
                a.i(m)
                if t == 0 and k == 3:
                    cnt_tok = a.lds(f"ds_read_b32 {self.vCnt}, {self.A_CR} offset:{C_ARR}")
                if t == 1 and k == 0:
                    Lok = a.newlabel("arr"); Lsk = a.newlabel("nodma")
                    a.i(f"v_cmp_gt_u32 vcc, s78, {self.vCnt}")
                    a.i(f"s_cbranch_vccz {Lok}")
                    if self.o.get('prof'): a.i("s_add_u32 s52, s52, 1")
                    keep = list(a.lg)
                    self.lds_spin_ge(C_ARR, "s78", self.vCnt, self.A_CR)
                    a.lg = keep
                    a.label(Lok)
                    a.i("s_cmp_ge_u32 s74, 14")
                    a.i(f"s_cbranch_scc1 {Lsk}")
                    a.i("s_add_u32 m0, s72, s77")
                    a.i(f"s_add_u32 s73, s79, {WS_KV}")
                    for j in range(3):
                        a.i(f"buffer_load_dwordx4 {self.vDkv}, {SRD_WS}, s73 offen offset:{1024*j} sc1 lds")
                    a.label(Lsk)
                egroup('b', k)
        a.i("s_add_u32 s74, s74, 1")
        a.i("s_add_u32 s78, s78, 4")
        a.i(f"s_add_u32 s79, s79, {RSLOT}")
        a.i(f"s_cmp_eq_u32 s79, {16*RSLOT}")
        a.i("s_cselect_b32 s79, 0, s79")
        a.i("s_mov_b32 s62, s75")
        a.i("s_mov_b32 s75, s76")
        a.i("s_mov_b32 s76, s77")
        a.i("s_mov_b32 s77, s62")
        a.i("s_cmp_lt_u32 s74, 16")
        self.loop_end = len(a.lines)
        a.i(f"s_cbranch_scc1 {L}")
        for m in self.pv('b', self.VV[1]): a.i(m)
        a.i("s_waitcnt vmcnt(0) lgkmcnt(0)")
        a.vm = []; a.lg = []

    def o_epilogue(self):
        a = self.a
        a.c("---- normalise O, publish ----")
        a.i("v_cmp_gt_u32 vcc, 32, v0")
        a.i(f"s_lshl_b32 s62, {sRB}, 1")
        a.i("s_mul_i32 s62, s62, 40960")
        a.i(f"s_add_u32 s62, s62, {WS_O}")
        a.i(f"s_mul_i32 s63, {sCG}, 5")
        a.i(f"s_add_u32 s64, s63, {sWR}")
        a.i("s_lshl_b32 s64, s64, 10")
        a.i("s_add_u32 s63, s63, 4")
        a.i("s_lshl_b32 s63, s63, 10")
        a.i(f"s_lshr_b32 s65, {sWR}, 1")
        a.i("s_lshl_b32 s65, s65, 9")
        a.i("s_add_u32 s63, s63, s65")
        a.i(f"s_and_b32 s65, {sWR}, 1")
        a.i("s_lshl_b32 s65, s65, 3")
        a.i("s_add_u32 s63, s63, s65")
        a.nop(4)
        for mt, u in enumerate("ab"):
            O = self.O_[u]
            a.i(f"v_cndmask_b32 v216, v{O+8}, v{O+12}, vcc")
            a.i("v_rcp_f32 v216, v216")
            a.nop(1)
            for j in range(12): a.i(f"v_mul_f32 v{O+j}, v216, v{O+j}")
            P = self.P_[u]
            for j in range(6): a.i(f"v_cvt_pk_bf16_f32 v{P+j}, v{O+2*j}, v{O+2*j+1}")
            a.i(f"s_add_u32 s68, s62, {mt*40960}")
            a.i("s_add_u32 s69, s68, s64")
            a.vmem(f"buffer_store_dwordx4 v[{P}:{P+3}], {self.A_L16}, {SRD_WS}, s69 offen sc1")
            a.i("s_add_u32 s69, s68, s63")
            a.i("s_mov_b32 exec_lo, -1"); a.i("s_mov_b32 exec_hi, 0")
            a.vmem(f"buffer_store_dwordx2 v[{P+4}:{P+5}], {self.A_L16}, {SRD_WS}, s69 offen sc1")
            a.i("s_mov_b64 exec, -1")
        a.wait(vm='all')
        a.lds(f"ds_add_rtn_u32 v218, {self.A_CW}, {self.A_ONE} offset:{C_OD}")
        a.wait(lg='all')
        a.i("v_readfirstlane_b32 s62, v218")
        a.nop(1)
        a.i("s_cmp_lg_u32 s62, 3")
        a.i("s_cbranch_scc1 L_AEND")
        a.i(f"s_lshl_b32 s62, {sRB}, 7")
        a.i(f"s_lshl_b32 s63, {sCG}, 2")
        a.i("s_add_u32 s62, s62, s63")
        a.i(f"s_add_u32 s62, s62, {WS_FO}")
        a.i(f"v_mov_b32 v217, {sN}")
        a.i("v_mov_b32 v216, 0")
        a.i("s_mov_b64 exec, 1")
        a.i(f"buffer_store_dword v217, v216, {SRD_WS}, s62 offen sc1")
        a.i("s_mov_b64 exec, -1")
        a.label("L_AEND")
        self.stamp(9)
        self.stamp_flush()
        a.i("s_branch L_END")

    def role_a(self):
        a = self.a
        a.label("L_ROLE_A")
        a.i(f"s_setprio {self.o.get('prioA', 2)}")
        self.ctl_regs(self.A_CW, self.A_CR, self.A_ONE)
        a.i(f"v_lshlrev_b32 {self.A_L16}, 4, v0")
        self.xn_addr(self.A_XA, self.A_XB, "v216", "v217")
        self.tr_addr_nat64(self.vTRq, "s66", 64)
        a.vm = list(self.qtok); a.lg = []
        dt = self.qtok
        self.q_proj(dt)
        self.stamp(4)
        self.q_epilogue()
        if self.o.get('dump') == 'q':
            self.dump_regs(128, 12, 0, self.A_L16)
        self.kv_wait_and_shift()
        self.stamp(5)
        pre = self.ring_prefill()
        self.shift_setup()
        self.stamp(6)
        self.attention(pre)
        self.stamp(11, True)
        self.stamp(8)
        if self.o.get('dump') == 'o':
            a.nop(16)
            self.dump_regs(48, 32, 0, self.A_L16)
        self.o_epilogue()

    vD1a, vD1b, vTRa, vTRb = "v230", "v231", "v232", "v233"
    B_XA, B_XB = 234, 238
    B_CW, B_CR, B_ONE, B_L16 = "v242", "v243", "v244", "v245"
    B_TRK = "v252"
    B_JA, B_JB = 220, 224
    vWa, vWb, vWc, vRa, vRb, vRc = "v230", "v231", "v232", "v233", "v234", "v235"
    vMa, vMb, vMc, vPW, vPR0, vPR1, vXO = "v236", "v237", "v238", "v239", "v240", "v241", "v250"

    def pair_dma_addr(self, va, vb, pitch, col_sgpr, comp_rows=8):
        a = self.a
        a.i("v_lshrrev_b32 v246, 3, v0")
        a.i("v_bfe_u32 v247, v0, 4, 1")
        a.i("v_lshlrev_b32 v247, 2, v247")
        a.i("v_and_b32 v248, 7, v0")
        a.i("v_xor_b32 v247, v247, v248")
        a.i(f"v_mul_u32_u24 v246, {pitch}, v246")
        a.i(f"v_lshl_add_u32 {va}, v247, 4, v246")
        a.i(f"v_add_u32 {va}, {col_sgpr}, {va}")
        a.i(f"v_add_u32 {vb}, {comp_rows*pitch - 1024}, {va}")

    def pair_tr_addr(self, va, vb, hmul, base_sgpr):
        a = self.a
        a.i("v_lshrrev_b32 v246, 5, v0")
        a.i(f"v_mul_u32_u24 v246, {hmul}, v246")
        a.i("v_bfe_u32 v247, v0, 2, 2")
        a.i("v_add_u32 v246, v246, v247")
        a.i("v_lshlrev_b32 v246, 7, v246")
        a.i("v_bfe_u32 v247, v0, 4, 1")
        a.i("v_lshlrev_b32 v247, 1, v247")
        a.i("v_bfe_u32 v248, v0, 1, 1")
        a.i("v_add_u32 v247, v247, v248")
        a.i("v_bfe_u32 v248, v0, 3, 1")
        a.i("v_lshlrev_b32 v248, 2, v248")
        a.i("v_xor_b32 v247, v247, v248")
        a.i("v_lshl_add_u32 v246, v247, 4, v246")
        a.i("v_and_b32 v247, 1, v0")
        a.i("v_lshl_add_u32 v246, v247, 3, v246")
        a.i(f"v_add_u32 {va}, {base_sgpr}, v246")
        a.i(f"v_xor_b32 {vb}, 64, v246")
        a.i(f"v_add_u32 {vb}, {base_sgpr}, {vb}")

    def w1_dma(self, ks):
        a = self.a
        a.i(f"s_add_u32 m0, s66, {(ks % 5) * 2048}")
        a.nop(1)
        t0 = a.vmem(f"buffer_load_dwordx4 {self.vD1a}, {SRD_W1}, s67 offen lds")
        t1 = a.vmem(f"buffer_load_dwordx4 {self.vD1b}, {SRD_W1}, s67 offen offset:1024 lds")
        self.rot_next(16 * 3456, "s67")
        return [t0, t1]

    def b_prefetch(self):
        a = self.a
        a.i(f"s_mul_i32 s66, {sWR}, 10240")
        a.i(f"s_add_u32 s66, s66, {BST}")
        a.i(f"s_mul_i32 s68, {sCG}, 7")
        a.i(f"s_cmp_eq_u32 {sCG}, 7")
        a.i("s_cselect_b32 s68, 48, s68")
        a.i(f"s_lshl_b32 s62, {sWR}, 1")
        a.i("s_add_u32 s68, s68, s62")
        a.i("s_lshl_b32 s62, s68, 6")
        self.pair_dma_addr(self.vD1a, self.vD1b, 3456, "s62")
        n1 = 3 if self.o.get('pfstride', 128) == 128 else 5
        Lkv = a.newlabel("pfkv")
        a.i(f"s_cmp_ge_u32 {sCG}, 6")
        a.i(f"s_cbranch_scc1 {Lkv}")
        a.i("s_branch L_LN2")
        a.label(Lkv)
        a.vm = []
        a.i("v_lshlrev_b32 v246, 4, v0")
        a.i(f"s_mul_i32 s62, {sWR}, 6400")
        a.i("v_add_u32 v246, s62, v246")
        a.i("s_mov_b32 m0, s66")
        a.i("s_mov_b32 s67, 0")
        for j in range(4):
            a.vmem(f"buffer_load_dwordx4 v246, {SRD_WKV}, s67 offen offset:{1024*j} lds")
        a.i("s_add_u32 m0, s66, 4096")
        a.i("s_mov_b32 s67, 4096")
        for j in range(3):
            a.vmem(f"buffer_load_dwordx4 v246, {SRD_WKV}, s67 offen offset:{1024*j} lds")

    def ffn1(self):
        a = self.a
        a.c("---- FFN1 (transposed): h^T tiles, 2 n-tiles x 2 m-tiles per wave ----")
        self.xn_addr(self.B_XA, self.B_XB, "v246", "v247")
        self.pair_tr_addr(self.vTRa, self.vTRb, 8, "s66")
        self.rot_xn_base(self.B_XA, self.B_XB, "s69")
        acc = lambda t, m: 16 + 32 * t + 16 * m
        W = lambda s, t: 80 + 8 * s + 4 * t
        X = lambda s, m: 96 + 8 * s + 4 * m
        dm = dict(self.w1tok); toks = {}
        def reads(ks):
            a.wait(vm=dm[ks])
            s = ks % 2; sl = (ks % 5) * 2048; t = []
            for tt, va in enumerate((self.vTRa, self.vTRb)):
                t.append(a.lds(f"ds_read_b64_tr_b16 v[{W(s,tt)}:{W(s,tt)+1}], {va} offset:{sl}"))
                t.append(a.lds(f"ds_read_b64_tr_b16 v[{W(s,tt)+2}:{W(s,tt)+3}], {va} offset:{sl+512}"))
            self.rot_xn_seg(self.B_XA, self.B_XB, "s69", ks)
            t.append(a.lds(f"ds_read_b128 v[{X(s,0)}:{X(s,0)+3}], v{self.B_XA + ks % 4} offset:{self.seg_imm(ks)}"))
            t.append(a.lds(f"ds_read_b128 v[{X(s,1)}:{X(s,1)+3}], v{self.B_XB + ks % 4} offset:{self.seg_imm(ks)}"))
            toks[ks] = t
        def mf(ks, t, m):
            s = ks % 2; A = acc(t, m)
            C = "0" if ks == 0 else f"v[{A}:{A+15}]"
            a.i(f"v_mfma_f32_32x32x16_bf16 v[{A}:{A+15}], v[{W(s,t)}:{W(s,t)+3}], v[{X(s,m)}:{X(s,m)+3}], {C}")
        reads(0)
        for ks in range(40):
            a.wait(lg=toks[ks])
            mf(ks, 0, 0); mf(ks, 0, 1)
            d1 = self.o.get('d1', 5)
            if ks + d1 < 40: dm[ks + d1] = self.w1_dma(ks + d1)
            if ks + 1 < 40: reads(ks + 1)
            mf(ks, 1, 0); mf(ks, 1, 1)
        self.lds_count(C_XND, self.B_CW, self.B_ONE)
        if self.o.get('pf', 0): self.l2_prefetch(SRD_W2, 2211840, 3 if self.o.get('pfstride', 128) == 128 else 5, "v246", "v251", sWR, 4)
        self.stamp(3)
        a.i(f"s_lshl_b32 s62, {sRB}, 1")
        a.i("s_mul_i32 s62, s62, 110592")
        a.i("s_lshl_b32 s63, s68, 11")
        a.i("s_add_u32 s62, s62, s63")
        a.i(f"s_add_u32 s62, s62, {WS_H}")
        a.nop(8)
        Lend = a.newlabel("h_end");
        for t in range(2):
            if t == 0:
                a.i(f"s_cmp_lt_u32 {sWR}, 3")
                Lgo = a.newlabel("h_go")
                a.i(f"s_cbranch_scc1 {Lgo}")
                a.i(f"s_cmp_ge_u32 {sCG}, 6")
                a.i(f"s_cbranch_scc1 {Lend}")
                a.label(Lgo)
            else:
                a.i(f"s_cmp_ge_u32 {sWR}, 3")
                a.i(f"s_cbranch_scc1 {Lend}")
            for m in range(2):
                A = acc(t, m); R = 80 + 8 * m + 16 * (t & 1)
                for j in range(8): a.i(f"v_cvt_pk_bf16_f32 v{R+j}, v{A+2*j}, v{A+2*j+1}")
                for j in range(8): a.i(f"v_pk_max_i16 v{R+j}, v{R+j}, 0")
                a.i(f"s_add_u32 s63, s62, {m*110592 + t*2048}")
                a.vmem(f"buffer_store_dwordx4 v[{R}:{R+3}], {self.B_L16}, {SRD_WS}, s63 offen sc1")
                a.vmem(f"buffer_store_dwordx4 v[{R+4}:{R+7}], {self.B_L16}, {SRD_WS}, s63 offen offset:1024 sc1")
        a.label(Lend)
        a.i("s_waitcnt vmcnt(0)")
        a.vm = []
        a.lds(f"ds_add_rtn_u32 v246, {self.B_CW}, {self.B_ONE} offset:{C_HD}")
        a.wait(lg='all')
        a.i("v_readfirstlane_b32 s62, v246")
        Lnf = a.newlabel("hnf")
        a.nop(1)
        a.i("s_cmp_lg_u32 s62, 3")
        a.i(f"s_cbranch_scc1 {Lnf}")
        a.i(f"s_lshl_b32 s62, {sRB}, 7")
        a.i(f"s_lshl_b32 s63, {sCG}, 2")
        a.i("s_add_u32 s62, s62, s63")
        a.i(f"s_add_u32 s62, s62, {WS_FH}")
        a.i(f"v_mov_b32 v247, {sN}")
        a.i("v_mov_b32 v246, 0")
        a.i("s_mov_b64 exec, 1")
        a.i(f"buffer_store_dword v247, v246, {SRD_WS}, s62 offen sc1")
        a.i("s_mov_b64 exec, -1")
        a.label(Lnf)

    def out_tiles_setup(self):
        a = self.a
        a.i(f"s_lshr_b32 s62, {sCG}, 1")
        a.i("s_mul_i32 s62, s62, 5")
        a.i(f"s_and_b32 s82, {sCG}, 1")
        a.i("s_mul_i32 s63, s82, 3")
        a.i("s_add_u32 s80, s62, s63")
        a.i("s_lshl_b32 s80, s80, 6")
        a.i("s_add_u32 s81, s62, 2")
        a.i("s_lshl_b32 s81, s81, 6")
        a.i(f"s_mul_i32 s83, {sWR}, 30720")
        self.pair_dma_addr(self.vWa, self.vWb, 1280, "s80")
        a.i("v_lshrrev_b32 v246, 2, v0")
        a.i("v_mul_u32_u24 v246, 1280, v246")
        a.i("v_and_b32 v247, 3, v0")
        a.i(f"v_lshl_add_u32 {self.vWc}, v247, 4, v246")
        a.i(f"v_add_u32 {self.vWc}, s81, {self.vWc}")
        self.pair_tr_addr(self.vRa, self.vRb, 4, "s83")
        a.i("v_lshrrev_b32 v246, 5, v0")
        a.i("v_lshlrev_b32 v246, 2, v246")
        a.i("v_bfe_u32 v247, v0, 2, 2")
        a.i("v_add_u32 v246, v246, v247")
        a.i("v_lshlrev_b32 v246, 6, v246")
        a.i("v_bfe_u32 v247, v0, 4, 1")
        a.i("v_lshl_add_u32 v246, v247, 5, v246")
        a.i("v_and_b32 v247, 3, v0")
        a.i("v_lshl_add_u32 v246, v247, 3, v246")
        a.i("s_add_u32 s62, s83, 2048")
        a.i(f"v_add_u32 {self.vRc}, s62, v246")
        a.i(f"v_add_u32 {self.vPW}, s83, {self.B_L16}")
        a.i(f"s_mul_i32 s62, {sWR}, 5120")
        a.i(f"v_add_u32 {self.vPR0}, s62, {self.B_L16}")
        a.i(f"v_add_u32 {self.vPR1}, 61440, {self.vPR0}")

    def w3_dma(self, srd, slot, soff_sgpr, va, vb, vc):
        a = self.a
        a.i(f"s_add_u32 m0, s83, {slot*3072}")
        a.nop(1)
        t = [a.vmem(f"buffer_load_dwordx4 {va}, {srd}, {soff_sgpr} offen lds"),
             a.vmem(f"buffer_load_dwordx4 {vb}, {srd}, {soff_sgpr} offen offset:1024 lds")]
        a.i(f"s_add_u32 m0, s83, {slot*3072 + 2048}")
        a.nop(1)
        t.append(a.vmem(f"buffer_load_dwordx4 {vc}, {srd}, {soff_sgpr} offen lds"))
        return t

    def w3_reads(self, slot, Wb):
        a = self.a; t = []
        sl = slot * 3072
        t.append(a.lds(f"ds_read_b64_tr_b16 v[{Wb}:{Wb+1}], {self.vRa} offset:{sl}"))
        t.append(a.lds(f"ds_read_b64_tr_b16 v[{Wb+2}:{Wb+3}], {self.vRa} offset:{sl+1024}"))
        t.append(a.lds(f"ds_read_b64_tr_b16 v[{Wb+4}:{Wb+5}], {self.vRb} offset:{sl}"))
        t.append(a.lds(f"ds_read_b64_tr_b16 v[{Wb+6}:{Wb+7}], {self.vRb} offset:{sl+1024}"))
        t.append(a.lds(f"ds_read_b64_tr_b16 v[{Wb+8}:{Wb+9}], {self.vRc} offset:{sl}"))
        t.append(a.lds(f"ds_read_b64_tr_b16 v[{Wb+10}:{Wb+11}], {self.vRc} offset:{sl+512}"))
        return t

    def five_mfma(self, Wb, H0, H1, first, mid=None):
        a = self.a
        spec = [(0, 0, H0), (1, 0, H1), (2, 1, H0), (3, 1, H1), (4, 2, H0)]
        for n, (tau, nt, Hb) in enumerate(spec):
            A = 16 + 16 * tau
            C = "0" if first else f"v[{A}:{A+15}]"
            a.i(f"v_mfma_f32_32x32x16_bf16 v[{A}:{A+15}], v[{Wb+4*nt}:{Wb+4*nt+3}], v[{Hb}:{Hb+3}], {C}")
            if n == 1 and mid: mid()

    def reduce80(self, dst, bar_target):
        a = self.a
        a.nop(12)
        for g in range(20):
            if len(a.lg) >= 14: a.wait(lg=a.lg[6])
            a.lds(f"ds_write_b128 {self.vPW}, v[{16+4*g}:{19+4*g}] offset:{g*1024}")
        a.wait(lg='all')
        self.lds_count(C_BBAR, self.B_CW, self.B_ONE)
        self.lds_spin_ge(C_BBAR, bar_target, "v246", self.B_CR)
        tk = {}
        def rd(src):
            va = self.vPR0 if src < 2 else self.vPR1
            tk[src] = [a.lds(f"ds_read_b128 v[{16+20*src+4*e}:{19+20*src+4*e}], {va} offset:{(src&1)*30720 + e*1024}") for e in range(5)]
        rd(0); rd(1); rd(2)
        a.wait(lg=tk[1])
        rd(3)
        for j in range(20): a.i(f"v_add_f32 v{dst+j}, v{16+j}, v{36+j}")
        a.wait(lg='all')
        for j in range(20): a.i(f"v_add_f32 v{56+j}, v{56+j}, v{76+j}")
        for j in range(20): a.i(f"v_add_f32 v{dst+j}, v{dst+j}, v{56+j}")

    def ffn2(self):
        a = self.a
        a.c("---- FFN2 (transposed): 5 output tiles, split-K over the 4 B waves ----")
        self.lds_spin_ge(C_XND, 8, "v246", self.B_CR)
        self.out_tiles_setup()
        NS = 10; PF = self.o.get('d2', 9); HD = self.o.get('dh', 5) + 1
        a.i(f"s_mul_i32 s84, {sWR}, {27*20480}")
        a.i(f"s_lshr_b32 s62, {sRB}, 3")
        a.i("s_mul_i32 s62, s62, 7")
        a.i(f"s_mul_i32 s63, {sCG}, 3")
        a.i("s_add_u32 s62, s62, s63")
        a.i("s_cmp_ge_u32 s62, 27")
        a.i("s_cselect_b32 s63, 27, 0")
        a.i("s_sub_u32 s87, s62, s63")
        if not self.o.get('rot', 1): a.i("s_mov_b32 s87, 0")
        a.i("s_mul_i32 s95, s87, 20480")
        dm = {}
        def dma(kk):
            a.i("s_add_u32 s67, s84, s95")
            dm[kk] = self.w3_dma(SRD_W2, kk % NS, "s67", self.vWa, self.vWb, self.vWc)
            a.i("s_add_u32 s95, s95, 20480")
            a.i(f"s_cmp_eq_u32 s95, {27*20480}")
            a.i("s_cselect_b32 s95, 0, s95")
        for kk in range(PF): dma(kk)
        self.stamp(5)
        self.one_wave_poll(WS_FH, C_HRDY, sleep=8)
        self.stamp(6)
        if self.o.get('pf', 0):
            a.i("v_min_u32 v246, 53, v0")
            a.i("v_lshlrev_b32 v246, 7, v246")
            a.i(f"s_mul_i32 s62, {sRB}, 221184")
            a.i(f"s_lshl_b32 s63, {sCG}, 2")
            a.i(f"s_add_u32 s63, s63, {sWR}")
            a.i(f"s_mul_i32 s63, s63, {54*128}")
            a.i("s_add_u32 s62, s62, s63")
            a.i(f"s_add_u32 s62, s62, {WS_H}")
            a.vmem(f"buffer_load_dword v251, v246, {SRD_WS}, s62 offen sc1")
            self.l2_prefetch(SRD_WO, 819200, 1 if self.o.get('pfstride', 128) == 128 else 2, "v246", "v253", sWR, 4)
        a.i(f"s_lshl_b32 s62, {sRB}, 1")
        a.i("s_add_u32 s63, s62, s82")
        a.i("s_xor_b32 s64, s82, 1")
        a.i("s_add_u32 s64, s62, s64")
        a.i("s_mul_i32 s85, s63, 110592")
        a.i("s_mul_i32 s86, s64, 110592")
        a.i(f"s_mul_i32 s62, {sWR}, {27*1024}")
        a.i(f"s_add_u32 s62, s62, {WS_H}")
        a.i("s_add_u32 s85, s85, s62")
        a.i("s_add_u32 s86, s86, s62")
        H = lambda kk, s: 120 + 8 * (kk % HD) + 4 * s
        hl = {}
        a.i("s_lshl_b32 s96, s87, 10")
        def hload(kk):
            a.i("s_add_u32 s62, s85, s96")
            t0 = a.vmem(f"buffer_load_dwordx4 v[{H(kk,0)}:{H(kk,0)+3}], {self.B_L16}, {SRD_WS}, s62 offen sc1")
            a.i("s_add_u32 s63, s86, s96")
            t1 = a.vmem(f"buffer_load_dwordx4 v[{H(kk,1)}:{H(kk,1)+3}], {self.B_L16}, {SRD_WS}, s63 offen sc1")
            a.i("s_add_u32 s96, s96, 1024")
            a.i(f"s_cmp_eq_u32 s96, {27*1024}")
            a.i("s_cselect_b32 s96, 0, s96")
            hl[kk] = [t0, t1]
        for kk in range(HD - 1): hload(kk)
        Wb = lambda kk: 96 + 12 * (kk % 2)
        rt = {0: self.w3_reads(0, Wb(0))}
        for kk in range(27):
            a.wait(lg=rt[kk], vm=hl[kk])
            def mid(kk=kk):
                if kk + PF < 27: dma(kk + PF)
                if kk + HD - 1 < 27: hload(kk + HD - 1)
                if kk + 1 < 27:
                    if kk + 1 in dm: a.wait(vm=dm[kk + 1])
                    rt[kk + 1] = self.w3_reads((kk + 1) % NS, Wb(kk + 1))
            self.five_mfma(Wb(kk), H(kk, 0), H(kk, 1), kk == 0, mid)
        self.stamp(7)
        a.i(f"s_setprio {self.o.get('prioBv', 3)}")
        self.reduce80(200, 4)
        for j in range(20): a.i(f"v_mul_f32 v{16+j}, {hx(f2u(-1.4426950408889634))}, v{200+j}")
        for j in range(20): a.i(f"v_exp_f32 v{16+j}, v{16+j}")
        for j in range(20): a.i(f"v_add_f32 v{16+j}, 1.0, v{16+j}")
        for j in range(20): a.i(f"v_rcp_f32 v{16+j}, v{16+j}")
        for j in range(20): a.i(f"v_mul_f32 v{200+j}, v{200+j}, v{16+j}")
        a.i(f"s_setprio {self.o.get('prioB', 0)}")
        self.lds_count(C_BBAR, self.B_CW, self.B_ONE)
        self.lds_spin_ge(C_BBAR, 8, "v246", self.B_CR)

    def out_proj(self):
        a = self.a
        a.c("---- output projection + final combine ----")
        a.i("v_lshrrev_b32 v246, 3, v0")
        a.i("v_lshrrev_b32 v247, 2, v246")
        a.i("v_mul_u32_u24 v247, 40, v247")
        a.i("v_and_b32 v248, 3, v246")
        a.i("v_add3_u32 v247, v247, v248, 16")
        a.i("v_mul_u32_u24 v247, 1280, v247")
        a.i("v_bfe_u32 v248, v0, 4, 1")
        a.i("v_lshlrev_b32 v248, 2, v248")
        a.i("v_and_b32 v249, 7, v0")
        a.i("v_xor_b32 v248, v248, v249")
        a.i(f"v_lshl_add_u32 {self.vMa}, v248, 4, v247")
        a.i(f"v_add_u32 {self.vMa}, s80, {self.vMa}")
        a.i(f"v_add_u32 {self.vMb}, {20*1280 - 1024}, {self.vMa}")
        a.i("v_lshrrev_b32 v246, 2, v0")
        a.i("v_bfe_u32 v247, v246, 2, 1")
        a.i("v_lshlrev_b32 v247, 1, v247")
        a.i("v_lshrrev_b32 v248, 3, v246")
        a.i("v_add_u32 v247, v247, v248")
        a.i("v_mul_u32_u24 v247, 20, v247")
        a.i("v_and_b32 v248, 3, v246")
        a.i("v_add3_u32 v247, v247, v248, 16")
        a.i("v_mul_u32_u24 v247, 1280, v247")
        a.i("v_and_b32 v248, 3, v0")
        a.i(f"v_lshl_add_u32 {self.vMc}, v248, 4, v247")
        a.i(f"v_add_u32 {self.vMc}, s81, {self.vMc}")
        dm = {}
        a.i(f"s_lshl_b32 s62, {sWR}, 1")
        a.i("s_add_u32 s93, s62, s82")
        a.i("s_xor_b32 s63, s82, 1")
        a.i("s_add_u32 s94, s62, s63")
        a.i(f"s_mul_i32 s84, s93, {80*1280}")
        a.i(f"s_mul_i32 s87, s94, {80*1280}")
        for e in range(10):
            cgo, jj = e // 5, e % 5
            base = "s84" if cgo == 0 else "s87"
            if jj < 4:
                a.i(f"s_add_u32 s67, {base}, {jj*20*1280}")
                dm[e] = self.w3_dma(SRD_WO, e, "s67", self.vWa, self.vWb, self.vWc)
            else:
                dm[e] = self.w3_dma(SRD_WO, e, base, self.vMa, self.vMb, self.vMc)
            dw = self.o.get('dw', 10)
            if e - dw >= 0: a.wait(vm=dm[e - dw])
        a.i("v_and_b32 v246, 31, v0")
        a.i("v_mul_u32_u24 v246, 1280, v246")
        a.i("v_lshrrev_b32 v247, 5, v0")
        a.i(f"v_lshl_add_u32 {self.vXO}, v247, 3, v246")
        xt = []
        for e in range(5):
            so = f"s{88+e}"
            a.i(f"s_mul_i32 s62, {sWR}, 5")
            a.i(f"s_add_u32 s62, s62, {e}")
            a.i("s_lshr_b32 s63, s62, 2")
            a.i("s_and_b32 s64, s62, 3")
            a.i("s_lshl_b32 s64, s64, 4")
            a.i("s_lshr_b32 s65, s63, 1")
            a.i("s_lshl_b32 s69, s65, 6")
            a.i("s_add_u32 s69, s69, s80")
            a.i("s_cmp_eq_u32 s63, 4")
            a.i("s_cselect_b32 s69, s81, s69")
            a.i("s_add_u32 s64, s64, s69")
            a.i("s_and_b32 s65, s63, 1")
            a.i("s_xor_b32 s65, s65, s82")
            a.i(f"s_lshl_b32 s69, {sRB}, 1")
            a.i("s_add_u32 s65, s65, s69")
            a.i("s_mul_i32 s65, s65, 40960")
            a.i(f"s_add_u32 {so}, s64, s65")
            xt.append(a.vmem(f"buffer_load_dwordx2 v[{220+2*e}:{221+2*e}], {self.vXO}, {SRD_X}, {so} offen"))
        self.stamp(9)
        self.one_wave_poll(WS_FO, C_ORDY, pre=lambda: self.lds_spin_ge(C_OD, 4, "v246", self.B_CR, sleep=8), sleep=1)
        self.stamp(10)
        Lnl = a.newlabel("nolead")
        a.i(f"s_lshl_b32 s62, {sCG}, 2")
        a.i(f"s_add_u32 s62, s62, {sWR}")
        a.i("s_cmp_lg_u32 s62, 0")
        a.i(f"s_cbranch_scc1 {Lnl}")
        a.i("v_mov_b32 v246, 0")
        a.i("v_mov_b32 v247, 1")
        a.i("s_mov_b64 exec, 1")
        a.i(f"global_atomic_add v248, v246, v247, {sDBG} sc0 sc1")
        a.i("s_waitcnt vmcnt(0)")
        a.i("v_readfirstlane_b32 s62, v248")
        a.i("s_mov_b64 exec, -1")
        a.nop(1)
        a.i("s_cmp_lg_u32 s62, 31")
        a.i(f"s_cbranch_scc1 {Lnl}")
        a.i(f"v_mov_b32 v247, {sN}")
        a.i(f"v_mov_b32 v246, {WS_X}")
        a.i("s_mov_b32 s62, 0")
        a.i("s_mov_b64 exec, 1")
        a.i(f"buffer_store_dword v247, v246, {SRD_WS}, s62 offen sc1")
        a.i("s_mov_b64 exec, -1")
        a.label(Lnl)
        a.i(f"s_lshl_b32 s62, {sRB}, 1")
        a.i("s_add_u32 s63, s62, s82")
        a.i("s_xor_b32 s64, s82, 1")
        a.i("s_add_u32 s64, s62, s64")
        a.i("s_mul_i32 s85, s63, 40960")
        a.i("s_mul_i32 s86, s64, 40960")
        a.i(f"s_add_u32 s85, s85, {WS_O}")
        a.i(f"s_add_u32 s86, s86, {WS_O}")
        a.i("s_mul_i32 s93, s93, 5120")
        a.i("s_mul_i32 s94, s94, 5120")
        ol = {}
        H = lambda e, s: 120 + 8 * e + 4 * s
        for e in range(10):
            grp = "s93" if e < 5 else "s94"
            a.i(f"s_add_u32 s62, s85, {grp}")
            t0 = a.vmem(f"buffer_load_dwordx4 v[{H(e,0)}:{H(e,0)+3}], {self.B_L16}, {SRD_WS}, s62 offen offset:{(e%5)*1024 if (e%5) < 4 else 0} sc1") if (e % 5) < 4 else None
            if t0 is None:
                a.i("s_add_u32 s62, s62, 4096")
                t0 = a.vmem(f"buffer_load_dwordx4 v[{H(e,0)}:{H(e,0)+3}], {self.B_L16}, {SRD_WS}, s62 offen sc1")
            a.i(f"s_add_u32 s63, s86, {grp}")
            if (e % 5) < 4:
                t1 = a.vmem(f"buffer_load_dwordx4 v[{H(e,1)}:{H(e,1)+3}], {self.B_L16}, {SRD_WS}, s63 offen offset:{(e%5)*1024} sc1")
            else:
                a.i("s_add_u32 s63, s63, 4096")
                t1 = a.vmem(f"buffer_load_dwordx4 v[{H(e,1)}:{H(e,1)+3}], {self.B_L16}, {SRD_WS}, s63 offen sc1")
            ol[e] = [t0, t1]
        Wb = lambda e: 96 + 12 * (e % 2)
        rt = {0: self.w3_reads(0, Wb(0))}
        for e in range(10):
            a.wait(lg=rt[e], vm=ol[e])
            def mid(e=e):
                if e + 1 < 10: rt[e + 1] = self.w3_reads(e + 1, Wb(e + 1))
            self.five_mfma(Wb(e), H(e, 0), H(e, 1), e == 0, mid)
        self.stamp(11)
        self.reduce80(96, 12)
        self.stamp(12)
        a.i("s_mov_b32 s62, 0xffff0000")
        for e in range(5):
            x0, x1 = 220 + 2 * e, 221 + 2 * e
            a.i(f"v_lshlrev_b32 v16, 16, v{x0}")
            a.i(f"v_and_b32 v17, s62, v{x0}")
            a.i(f"v_lshlrev_b32 v18, 16, v{x1}")
            a.i(f"v_and_b32 v19, s62, v{x1}")
            for j in range(4): a.i(f"v_fma_f32 v{16+j}, v{96+4*e+j}, v{200+4*e+j}, v{16+j}")
            a.i(f"v_cvt_pk_bf16_f32 v{20+2*e}, v16, v17")
            a.i(f"v_cvt_pk_bf16_f32 v{21+2*e}, v18, v19")
            a.vmem(f"buffer_store_dwordx2 v[{20+2*e}:{21+2*e}], {self.vXO}, {SRD_OUT}, s{88+e} offen")

    def role_b(self):
        a = self.a
        a.label("L_ROLE_B")
        self.ctl_regs(self.B_CW, self.B_CR, self.B_ONE)
        a.i(f"v_lshlrev_b32 {self.B_L16}, 4, v0")
        if self.o.get('noB'):
            a.i("s_waitcnt vmcnt(0)")
            a.i("s_branch L_END")
        Lf1 = a.newlabel("ffn1"); Lv = a.newlabel("vjob"); Lpf = a.newlabel("w1pf")
        a.i(f"s_cmp_lt_u32 {sCG}, 6")
        a.i(f"s_cbranch_scc1 {Lf1}")
        a.i("s_setprio 3")
        self.tr_addr_nat64(self.B_TRK, "s66", 40, "v246", "v247")
        a.i(f"s_lshl_b32 s63, {sWR}, 1")
        a.i(f"s_mul_i32 s64, {sWR}, 10240")
        self.xn_addr(self.B_JA, self.B_JB, "v246", "v247", phase_sgpr="s63", base_sgpr="s64")
        a.i(f"s_cmp_eq_u32 {sCG}, 7")
        a.i(f"s_cbranch_scc1 {Lv}")
        a.vm = [0] * 7; a.lg = []
        self.kv_job(False)
        a.i(f"s_branch {Lpf}")
        a.label(Lv)
        a.vm = [0] * 7; a.lg = []
        self.kv_job(True)
        a.label(Lpf)
        self.stamp(14)
        a.label(Lf1)
        a.i(f"s_setprio {self.o.get('prioB', 0)}")
        a.vm = []; a.lg = []
        bs = self.o.get('bstart', 'ring')
        if bs == 'ring': self.lds_spin_ge(C_GO, 4, "v246", self.B_CR)
        if bs == 'q': self.lds_spin_ge(C_QDONE, 4, "v246", self.B_CR)
        self.rot_setup(16 * 3456, "s67", "s69")
        self.w1tok = {ks: self.w1_dma(ks) for ks in range(self.o.get('d1', 5))}
        self.ffn1()
        self.stamp(4)
        self.ffn2()
        self.stamp(8)
        if self.o.get('dump') == 'g':
            self.dump_regs(200, 20, 0, self.B_L16)
        self.out_proj()
        a.i("s_waitcnt vmcnt(0)") if self.o.get('prof') else None
        self.stamp(13)
        self.stamp_flush()
        a.i("s_branch L_END")

    def build(self):
        a = self.a
        self.prologue()
        a.i("s_barrier")
        a.wait(vm=self.xtok)
        a.i("s_waitcnt lgkmcnt(0)")
        a.i(f"s_add_u32 {sN}, {sN}, 1")
        a.vm = []; a.lg = []
        self.stamp(1)
        self.layernorm()
        self.stamp(2)
        if self.o.get('dump') == 'xn':
            self.dump_lds_xn()
        a.i(f"s_cmp_ge_u32 {sW}, 4")
        a.i("s_cbranch_scc1 L_ROLE_B")
        self.role_a()
        self.role_b()
        a.label("L_END")
        a.i("s_endpgm")

    def dump_lds_xn(self):
        a = self.a
        a.i("v_lshlrev_b32 v72, 4, v0")
        a.i(f"s_mul_i32 s70, {sW}, 10240")
        a.i("v_add_u32 v73, s70, v72")
        a.i("s_mul_i32 s71, s2, 81920")
        a.i("s_add_u32 s71, s71, s70")
        a.i(f"s_add_u32 s71, s71, {WS_DBG}")
        for g in range(10):
            a.i(f"ds_read_b128 v[76:79], v73 offset:{g*1024}")
            a.i("s_waitcnt lgkmcnt(0)")
            a.i(f"s_add_u32 s70, s71, {g*1024}")
            a.i(f"buffer_store_dwordx4 v[76:79], v72, {SRD_WS}, s70 offen")
            a.i("s_waitcnt vmcnt(0)")

    def emit(self):
        self.build()
        body = self.a.text()
        hdr = f"""; Fused LayerNorm + MQA attention + ReLU FFN + gated residual, one persistent workgroup per CU.
; @launch grid=(256,1,1) block=(512,1,1) lds={LDS_TOTAL}
.amdgcn_target "amdgcn-amd-amdhsa--gfx950"
.text
.globl {NAME}_kernel
.p2align 8
.type {NAME}_kernel,@function
{NAME}_kernel:
"""
        ftr = f""".section .rodata,"a"
.p2align 6
.amdhsa_kernel {NAME}_kernel
  .amdhsa_next_free_vgpr 256
  .amdhsa_next_free_sgpr 102
  .amdhsa_accum_offset 256
  .amdhsa_group_segment_fixed_size 0
  .amdhsa_kernarg_size 88
  .amdhsa_user_sgpr_count 2
  .amdhsa_user_sgpr_kernarg_segment_ptr 1
  .amdhsa_system_sgpr_workgroup_id_x 1
  .amdhsa_float_denorm_mode_32 3
.end_amdhsa_kernel
"""
        return hdr + body + ftr

    def hazards(self):
        ins = [t for k, t in self.a.lines if k == 'i']
        probs = check_hazards(ins, "linear")
        body = [t for k, t in self.a.lines[self.loop_start:self.loop_end] if k == 'i']
        probs += check_hazards(body[-40:] + body[:40], "att-backedge")
        return probs

if __name__ == "__main__":
    opt = {}
    out = None
    for arg in sys.argv[1:]:
        if "=" in arg:
            k, v = arg.split("=", 1); opt[k] = int(v) if v.lstrip('-').isdigit() else v
        else: out = arg
    g = Gen(opt)
    txt = g.emit()
    pr = g.hazards()
    for p in pr: print("HAZARD:", p)
    open(out or "k.s", "w").write(txt)
    n = sum(1 for k, t in g.a.lines if k == 'i')
    print(f"wrote {out or 'k.s'}: {n} instructions, {len(pr)} hazards")
```

```python
import sys, struct
from asmlib import Asm, check_hazards

NAME = "recurrent_scan__grouped_kv_mqa__dense_activation_relu__prompt"

XN    = 0
BST   = 81920
BPRIV = 9216
AREG  = 118784
APRIV = 11136
RSLOT = 11136
RSHARE = 2688
KVCH  = 12288
BREG  = 29696
CTRL  = 163328
LDS_TOTAL = 163840
VROW  = 352
VFR   = 2 * VROW
KV_KH = 4096
KV_V  = 5120
C_ARR, C_KVD, C_ABAR, C_QDONE, C_KVRDY, C_XND, C_HD, C_BBAR, C_OD, C_GO, C_HRDY, C_ORDY, C_KVS, C_QISS = [4 * i for i in range(14)]
CDUMMY = 128

WS_X    = 0
WS_FKV  = 0x1000
WS_FH   = 0x4000
WS_FO   = 0x6000
WS_KN   = 0x8000
WS_VN   = 0x8400
WS_KV   = 0x10000
WS_H    = 0x100000
WS_O    = 0x800000
WS_DBG  = 0xB00000
WS_PROF = 0x1300000
WS_END  = 0x1400000

QSCALE = 0.22360679774997896 * 1.4426950408889634

def f2u(x): return struct.unpack("<I", struct.pack("<f", x))[0]
def hx(x): return "0x%08x" % (x & 0xffffffff)

sW, sRB, sCG, sN, sWR = "s3", "s4", "s5", "s6", "s7"
SRD_X, SRD_WQ, SRD_WKV, SRD_WO, SRD_W1, SRD_W2, SRD_OUT, SRD_WS = [f"s[{8+4*i}:{11+4*i}]" for i in range(8)]
sDBG, sWSP = "s[58:59]", "s[60:61]"

SPIN_LDS = 400000
SPIN_GLB = 40000

class Gen:
    def __init__(self, opt):
        self.o = opt
        self.a = Asm()

    def vr(self, base, n): return f"v[{base}:{base+n-1}]"

    def lds_spin_ge(self, cnt_off, target, vtmp, vctlr, stmp="s62", sleep=1):
        a = self.a
        L = a.newlabel("spin"); Ld = a.newlabel("spind")
        a.i(f"s_mov_b32 {stmp}, 0")
        a.label(L)
        a.i(f"ds_read_b32 {vtmp}, {vctlr} offset:{cnt_off}")
        a.i("s_waitcnt lgkmcnt(0)")
        a.i(f"v_cmp_gt_u32 vcc, {target}, {vtmp}")
        a.i(f"s_cbranch_vccz {Ld}")
        a.i(f"s_add_u32 {stmp}, {stmp}, 1")
        a.i(f"s_cmp_lt_u32 {stmp}, {SPIN_LDS}")
        if sleep: a.i(f"s_sleep {sleep}")
        a.i(f"s_cbranch_scc1 {L}")
        a.label(Ld)
        a.lg = []

    def glb_poll(self, voff, soff, vtmp, stmp="s62", sleep=4):
        a = self.a
        L = a.newlabel("poll"); Ld = a.newlabel("polld")
        a.i(f"s_mov_b32 {stmp}, 0")
        a.label(L)
        a.i(f"buffer_load_dword {vtmp}, {voff}, {SRD_WS}, {soff} offen sc1")
        a.i("s_waitcnt vmcnt(0)")
        a.i(f"v_cmp_ne_u32 vcc, {sN}, {vtmp}")
        a.i(f"s_cbranch_vccz {Ld}")
        a.i(f"s_add_u32 {stmp}, {stmp}, 1")
        a.i(f"s_cmp_lt_u32 {stmp}, {SPIN_GLB}")
        a.i(f"s_sleep {sleep}")
        a.i(f"s_cbranch_scc1 {L}")
        a.label(Ld)
        a.vm = []

    def one_wave_poll(self, flag_base, rdy_off, pre=None, sleep=4):
        a = self.a
        Lw = a.newlabel("opw"); Lj = a.newlabel("opj")
        keep = list(a.vm)
        a.i(f"s_cmp_lg_u32 {sWR}, 0")
        a.i(f"s_cbranch_scc1 {Lw}")
        if pre: pre()
        a.i("v_and_b32 v246, 7, v0")
        a.i("v_lshlrev_b32 v246, 2, v246")
        a.i(f"s_lshl_b32 s63, {sRB}, 7")
        a.i(f"s_add_u32 s63, s63, {flag_base}")
        self.glb_poll("v246", "s63", "v247", sleep=sleep)
        a.i(f"ds_add_u32 {self.B_CW}, {self.B_ONE} offset:{rdy_off}")
        a.i(f"s_branch {Lj}")
        a.label(Lw)
        self.lds_spin_ge(rdy_off, 1, "v246", self.B_CR, sleep=2)
        a.label(Lj)
        a.i("s_waitcnt lgkmcnt(0)")
        a.vm = keep; a.lg = []

    def lds_count(self, cnt_off, vctlw, vone):
        return self.a.lds(f"ds_add_u32 {vctlw}, {vone} offset:{cnt_off}")

    def dump_regs(self, base, n, slot, vlane16, cond_wave=None):
        a = self.a
        a.i("s_lshl_b32 s70, s2, 3"); a.i(f"s_add_u32 s70, s70, {sW}")
        a.i("s_mul_i32 s70, s70, 0x4000")
        a.i(f"s_add_u32 s70, s70, {WS_DBG + 0x0}")
        for g in range(n // 4):
            a.i(f"s_add_u32 s71, s70, {(slot + g) * 1024}")
            a.i(f"buffer_store_dwordx4 v[{base+4*g}:{base+4*g+3}], {vlane16}, {SRD_WS}, s71 offen")
        a.i("s_waitcnt vmcnt(0)")
        a.vm = []

    def stamp(self, k, cyc=False, lvl=1):
        if self.o.get('prof') != lvl and not (k <= 2 and self.o.get('prof')): return
        a = self.a
        a.i("s_memtime s[56:57]" if cyc else "s_memrealtime s[56:57]")
        a.i("s_waitcnt lgkmcnt(0)")
        a.i(f"s_mov_b32 s{40+k}, s56")
        a.lg = []

    def stamp_flush(self):
        if not self.o.get('prof'): return
        a = self.a
        a.i("s_mov_b64 exec, 1")
        a.i("s_lshl_b32 s62, s2, 3")
        a.i(f"s_add_u32 s62, s62, {sW}")
        a.i("s_lshl_b32 s62, s62, 6")
        a.i(f"s_add_u32 s62, s62, {WS_PROF}")
        a.i("v_mov_b32 v1, 0")
        for g in range(4):
            for j in range(4): a.i(f"v_mov_b32 v{4+j}, s{40+4*g+j}")
            a.i(f"buffer_store_dwordx4 v[4:7], v1, {SRD_WS}, s62 offen offset:{16*g}")
            a.nop(2)
        a.i("s_mov_b64 exec, -1")

    def l2_prefetch(self, srd, total_bytes, ninstr, vtmp, vdst, sub_sgpr, nsub):
        a = self.a
        st = self.o.get('pfstride', 128)
        lines = total_bytes // st
        per_cu = -(-lines // 32); per_w = -(-per_cu // nsub); per_i = -(-per_w // ninstr)
        assert per_i <= 64, per_i
        a.i(f"s_lshr_b32 s62, {sRB}, 3")
        a.i(f"s_lshl_b32 s63, {sCG}, 2")
        a.i("s_add_u32 s62, s62, s63")
        a.i(f"s_mul_i32 s62, s62, {per_cu}")
        a.i(f"s_mul_i32 s63, {sub_sgpr}, {per_w}")
        a.i("s_add_u32 s62, s62, s63")
        a.i(f"v_min_u32 {vtmp}, {per_i - 1}, v0")
        a.i(f"v_add_u32 {vtmp}, s62, {vtmp}")
        a.i(f"v_mul_u32_u24 {vtmp}, {st}, {vtmp}")
        toks = []
        for i in range(ninstr):
            a.i(f"s_mov_b32 s63, {i * per_i * st}")
            toks.append(a.vmem(f"buffer_load_dword {vdst}, {vtmp}, {srd}, s63 offen"))
        return toks

    def prologue(self):
        a = self.a
        a.i("s_cmp_ge_u32 s2, 256")
        a.i("s_cbranch_scc1 L_END")
        if self.o.get('prof'): a.i("s_memrealtime s[94:95]")
        a.i("s_load_dwordx16 s[40:55], s[0:1], 0")
        a.i("s_load_dwordx4 s[56:59], s[0:1], 64")
        a.i("s_load_dwordx2 s[60:61], s[0:1], 80")
        a.i("v_lshrrev_b32 v1, 6, v0")
        a.i("v_and_b32 v0, 63, v0")
        a.i("s_and_b32 s62, s2, 1")
        a.i("s_lshl_b32 s62, s62, 2")
        a.i("s_bfe_u32 s63, s2, 0x20003")
        a.i(f"s_add_u32 {sCG}, s62, s63")
        a.i(f"v_readfirstlane_b32 {sW}, v1")
        a.i("s_bfe_u32 s62, s2, 0x20001")
        a.i("s_lshl_b32 s62, s62, 3")
        a.i("s_lshr_b32 s63, s2, 5")
        a.i(f"s_add_u32 {sRB}, s62, s63")
        a.i("v_lshrrev_b32 v2, 3, v0")
        a.i("v_and_b32 v3, 7, v0")
        a.i(f"s_and_b32 {sWR}, {sW}, 3")
        a.i(f"s_and_b32 s65, {sCG}, 1")
        a.i("s_lshl_b32 s65, s65, 2")
        a.i(f"s_xor_b32 s97, s65, {sW}")
        a.i("s_lshl_b32 s62, s97, 3")
        a.i(f"s_mul_i32 s98, {sRB}, 81920")
        a.i("v_add_u32 v4, s62, v2")
        a.i("v_mul_u32_u24 v4, 1280, v4")
        a.i("v_lshl_add_u32 v4, v3, 4, v4")
        a.i("s_waitcnt lgkmcnt(0)")
        def srd(base, lo, size):
            a.i(f"s_mov_b32 s{base}, s{lo}")
            a.i(f"s_mov_b32 s{base+1}, s{lo+1}")
            a.i(f"s_mov_b32 s{base+2}, {size}")
            a.i(f"s_mov_b32 s{base+3}, 0x20000")
        srd(8, 40, 2621440)
        a.i(f"s_load_dword {sN}, {sWSP}, {WS_X}")
        srd(12, 42, 819200)
        a.i(f"s_cmp_eq_u32 {sCG}, 7")
        a.i("s_cselect_b32 s16, s46, s44")
        a.i("s_cselect_b32 s17, s47, s45")
        a.i("s_mov_b32 s18, 25600")
        a.i("s_mov_b32 s19, 0x20000")
        srd(20, 48, 819200)
        srd(24, 52, 2211840)
        srd(28, 54, 2211840)
        srd(32, 56, 2621440)
        srd(36, 60, WS_END)
        for r in (200, 230, 231, 253, 181, 215, 245): a.i(f"v_mov_b32 v{r}, 0")
        if self.o.get('prof'):
            for k in range(16): a.i(f"s_mov_b32 s{40+k}, 0")
            a.i("s_mov_b32 s55, s94")
        self.stamp(0)

    def layernorm(self):
        a = self.a
        a.i("v_lshrrev_b32 v5, 1, v3")
        a.i("v_lshlrev_b32 v5, 10, v5")
        a.i("v_and_b32 v6, 1, v3")
        a.i("v_lshlrev_b32 v6, 9, v6")
        a.i("v_xor_b32 v7, v2, v3")
        a.i("v_lshlrev_b32 v7, 4, v7")
        a.i("v_add3_u32 v5, v5, v6, v7")
        a.i("s_and_b32 s62, s97, 3")
        a.i("s_lshl_b32 s62, s62, 7")
        a.i("s_lshr_b32 s64, s97, 2")
        a.i("s_mul_i32 s64, s64, 40960")
        a.i("s_add_u32 s62, s62, s64")
        a.i("v_add_u32 v5, s62, v5")
        Lz = a.newlabel("nz")
        a.i(f"s_cmp_lg_u32 {sW}, 0")
        a.i(f"s_cbranch_scc1 {Lz}")
        a.i("v_lshlrev_b32 v6, 2, v0")
        a.i(f"v_add_u32 v6, {CTRL}, v6")
        a.i("v_mov_b32 v7, 0")
        a.i("ds_write_b32 v6, v7")
        a.label(Lz)
        a.i("s_mov_b32 s62, 0x3f803f80")
        a.i("s_mov_b32 s63, 0xffff0000")
        for k in range(4): a.i(f"v_mov_b32 v{64+k}, 0")
        a.nop(1)
        X = lambda j: f"v{16+j}"
        for j in range(40):
            a.i(f"v_dot2_f32_bf16 v{64+(j&1)}, {X(j)}, s62, v{64+(j&1)}")
            a.i(f"v_dot2_f32_bf16 v{66+(j&1)}, {X(j)}, {X(j)}, v{66+(j&1)}")
        a.nop(3)
        a.i("v_add_f32 v64, v64, v65")
        a.i("v_add_f32 v66, v66, v67")
        a.nop(1)
        for dpp in ("quad_perm:[1,0,3,2]", "quad_perm:[2,3,0,1]", "row_half_mirror"):
            a.i(f"v_add_f32_dpp v64, v64, v64 {dpp} row_mask:0xf bank_mask:0xf")
            a.i(f"v_add_f32_dpp v66, v66, v66 {dpp} row_mask:0xf bank_mask:0xf")
            a.nop(1)
        a.i(f"v_mul_f32 v64, {hx(f2u(1.0/640))}, v64")
        a.i(f"v_mul_f32 v66, {hx(f2u(1.0/640))}, v66")
        a.i("v_fma_f32 v66, -v64, v64, v66")
        a.i("v_max_f32 v66, 0, v66")
        a.i(f"v_add_f32 v66, {hx(f2u(1e-5))}, v66")
        a.i("v_rsq_f32 v68, v66")
        a.nop(1)
        a.i("v_mov_b32 v69, v68")
        a.i("v_mul_f32 v70, v64, v68")
        a.i("v_sub_f32 v70, 0, v70")
        a.i("v_mov_b32 v71, v70")
        self.stamp(3, lvl=2)
        self.role_prefetch()
        a.label("L_LN2")
        self.stamp(4, lvl=2)
        a.i("s_mov_b32 s63, 0xffff0000")
        for g in range(10):
            for d in range(4):
                j = 4 * g + d
                t = 56 + 2 * (j & 3)
                a.i(f"v_lshlrev_b32 v{t}, 16, {X(j)}")
                a.i(f"v_and_b32 v{t+1}, s63, {X(j)}")
            for d in range(4):
                j = 4 * g + d
                t = 56 + 2 * (j & 3)
                a.i(f"v_pk_fma_f32 v[{t}:{t+1}], v[{t}:{t+1}], v[68:69], v[70:71]")
            for d in range(4):
                j = 4 * g + d
                t = 56 + 2 * (j & 3)
                a.i(f"v_cvt_pk_bf16_f32 {X(j)}, v{t}, v{t+1}")
            a.i(f"ds_write_b128 v5, v[{16+4*g}:{19+4*g}] offset:{4096*g}")
        a.i("s_waitcnt lgkmcnt(0)")
        self.stamp(5, lvl=2)
        Lnw = a.newlabel("nw")
        a.i(f"s_cmp_lt_u32 {sW}, 4")
        a.i(f"s_cbranch_scc1 {Lnw}")
        a.i("s_waitcnt vmcnt(0)")
        a.label(Lnw)
        a.i("s_barrier")
        a.lg = []

    def xn_addr(self, vA, vB, vt0, vt1, phase_sgpr=None, base_sgpr=None, swap_sgpr=None):
        a = self.a
        a.i(f"v_and_b32 {vt0}, 31, v0")
        a.i(f"v_lshrrev_b32 {vt1}, 5, v0")
        for q in range(4):
            r = f"v{vA+q}"
            if phase_sgpr is None:
                a.i(f"v_add_u32 {r}, {2*q}, {vt1}")
            else:
                a.i(f"s_add_u32 s62, {phase_sgpr}, {q}")
                a.i("s_and_b32 s62, s62, 3")
                a.i("s_lshl_b32 s62, s62, 1")
                a.i(f"v_add_u32 {r}, s62, {vt1}")
            a.i(f"v_xor_b32 {r}, {r}, {vt0}")
            a.i(f"v_lshlrev_b32 {r}, 4, {r}")
            a.i(f"v_lshl_add_u32 {r}, {vt1}, 9, {r}")
            if base_sgpr is not None:
                a.i(f"v_add_u32 {r}, {base_sgpr}, {r}")
            if vB is not None: a.i(f"v_add_u32 v{vB+q}, 40960, {r}")

    WRAPS = (8, 12, 16, 20, 28, 32, 36)
    def rot_setup(self, stride, sK, sRot):
        a = self.a
        a.i(f"s_and_b32 s62, {sRB}, 7")
        a.i("s_lshr_b32 s63, s62, 2")
        a.i("s_add_u32 s62, s62, s63")
        a.i(f"s_lshl_b32 {sRot}, s62, 2")
        if not self.o.get('rot', 1): a.i(f"s_mov_b32 {sRot}, 0")
        a.i(f"s_mul_i32 {sK}, {sRot}, {stride}")
    def rot_next(self, stride, sK, ks=None):
        a = self.a
        a.i(f"s_add_u32 {sK}, {sK}, {stride}")
        if ks is None or (ks + 1) in self.WRAPS:
            a.i(f"s_cmp_eq_u32 {sK}, {40*stride}")
            a.i(f"s_cselect_b32 {sK}, 0, {sK}")
    def rot_xn_base(self, vA, vB, sRot):
        a = self.a
        a.i(f"s_lshl_b32 s62, {sRot}, 10")
        for q in range(4):
            a.i(f"v_add_u32 v{vA+q}, s62, v{vA+q}")
            a.i(f"v_add_u32 v{vB+q}, s62, v{vB+q}")
    def rot_xn_seg(self, vA, vB, sRot, ks):
        a = self.a
        if ks not in self.WRAPS: return
        L = a.newlabel("wrap")
        a.i(f"s_cmp_eq_u32 {sRot}, {40 - ks}")
        a.i(f"s_cbranch_scc0 {L}")
        for q in range(4):
            a.i(f"v_subrev_u32 v{vA+q}, 40960, v{vA+q}")
            a.i(f"v_subrev_u32 v{vB+q}, 40960, v{vB+q}")
        a.label(L)
    def seg_imm(self, ks):
        return ks * 1024

    def ctl_regs(self, vW, vR, vOne):
        a = self.a
        a.i(f"v_lshlrev_b32 {vW}, 2, v0")
        a.i(f"v_add_u32 {vW}, {CTRL + CDUMMY}, {vW}")
        a.i(f"v_mov_b32 {vR}, {CTRL}")
        a.i("v_cmp_eq_u32 vcc, 0, v0")
        a.i(f"v_mov_b32 {vOne}, 1")
        a.nop(1)
        a.i(f"v_cndmask_b32 {vW}, {vW}, {vR}, vcc")

    vDq, vTRq, vTRk = "v200", "v201", "v202"
    A_XA, A_XB = 204, 208
    A_CW, A_CR, A_ONE, A_L16 = "v212", "v213", "v214", "v215"
    A_JA, A_JB = 220, 224

    def wq_dma(self, ks):
        a = self.a
        a.i(f"s_add_u32 m0, s66, {(ks % 10) * 1024}")
        a.nop(1)
        t = a.vmem(f"buffer_load_dwordx4 {self.vDq}, {SRD_WQ}, s67 offen lds")
        self.rot_next(20480, "s67", ks)
        return t

    def a_setup_private(self):
        a = self.a
        a.i(f"s_mul_i32 s66, {sWR}, {APRIV}")
        a.i(f"s_add_u32 s66, s66, {AREG}")

    def a_prefetch_q_addr(self):
        a = self.a
        a.i("v_lshrrev_b32 v216, 2, v0")
        a.i("v_mul_u32_u24 v216, 1280, v216")
        a.i("v_and_b32 v217, 3, v0")
        a.i(f"v_lshl_add_u32 {self.vDq}, v217, 4, v216")
        a.i(f"s_lshl_b32 s62, {sCG}, 2")
        a.i(f"s_add_u32 s62, s62, {sWR}")
        a.i("s_mul_i32 s62, s62, 40")
        a.i(f"v_add_u32 {self.vDq}, s62, {self.vDq}")

    def x_loads(self):
        a = self.a
        for i in range(10):
            a.i(f"buffer_load_dwordx4 v[{16+4*i}:{19+4*i}], v4, {SRD_X}, s98 offen offset:{128*i}")

    def role_setup(self):
        a = self.a
        a.i(f"s_cmp_ge_u32 {sW}, 4")
        a.i("s_cbranch_scc1 L_SET_B")
        self.x_loads()
        self.a_setup_private()
        self.a_prefetch_q_addr()
        self.rot_setup(20480, "s67", "s69")
        self.ctl_regs(self.A_CW, self.A_CR, self.A_ONE)
        a.i(f"v_lshlrev_b32 {self.A_L16}, 4, v0")
        self.xn_addr(self.A_XA, self.A_XB, "v216", "v217")
        self.rot_xn_base(self.A_XA, self.A_XB, "s69")
        self.tr_addr_nat64(self.vTRq, "s66", 64)
        self.ring_addr()
        a.i("s_branch L_SET_J")
        a.label("L_SET_B")
        a.i(f"s_mul_i32 s66, {sWR}, {BPRIV}")
        a.i(f"s_add_u32 s66, s66, {BST}")
        a.i(f"s_lshl_b32 s62, {sCG}, 3")
        a.i("s_mov_b32 s63, 0x0b080400")
        a.i("s_mov_b32 s64, 0x1815120e")
        a.i(f"s_cmp_ge_u32 {sCG}, 4")
        a.i("s_cselect_b32 s63, s64, s63")
        a.i("s_and_b32 s62, s62, 31")
        a.i("s_lshr_b32 s63, s63, s62")
        a.i("s_and_b32 s63, s63, 0xff")
        a.i(f"s_add_u32 s68, s63, {sWR}")
        a.i("s_lshl_b32 s68, s68, 1")
        a.i(f"s_lshr_b32 s62, 0x13, {sCG}")
        a.i("s_and_b32 s62, s62, 1")
        a.i(f"s_cmp_lt_u32 {sWR}, 3")
        a.i("s_cselect_b32 s99, 1, s62")
        a.i("s_lshl_b32 s62, s68, 6")
        self.pair_dma_addr(self.vD1a, self.vD1b, 3456, "s62")
        self.ctl_regs(self.B_CW, self.B_CR, self.B_ONE)
        a.i(f"v_lshlrev_b32 {self.B_L16}, 4, v0")
        self.rot_setup(16 * 3456, "s67", "s69")
        self.xn_addr(self.B_XA, self.B_XB, "v246", "v247")
        self.rot_xn_base(self.B_XA, self.B_XB, "s69")
        self.pair_tr_addr(self.vTRa, self.vTRb, 8, "s66")
        a.i(f"s_mov_b32 s62, {BST}")
        self.tr_addr_nat64(self.B_TRK, "s62", 40, "v246", "v247")
        a.i(f"s_and_b32 s64, {sWR}, 1")
        a.i("s_mul_i32 s64, s64, 40960")
        self.xn_addr(self.B_JA, None, "v246", "v247", base_sgpr="s64")
        a.i("v_lshlrev_b32 v253, 4, v0")
        a.i(f"s_mul_i32 s62, {sWR}, 6400")
        a.i("v_add_u32 v253, s62, v253")
        self.x_loads()
        a.i(f"s_and_b32 s64, {sCG}, 3")
        a.i("s_cmp_lg_u32 s64, 3")
        a.i("s_cbranch_scc1 L_SET_J")
        a.i(f"s_add_u32 s63, s62, {BST}")
        a.i("s_mov_b32 m0, s63")
        a.i("s_mov_b32 s62, 0")
        for j in range(4):
            a.i(f"buffer_load_dwordx4 v253, {SRD_WKV}, s62 offen offset:{1024*j} lds")
        a.i("s_add_u32 m0, s63, 4096")
        a.i("s_mov_b32 s62, 4096")
        for j in range(3):
            a.i(f"buffer_load_dwordx4 v253, {SRD_WKV}, s62 offen offset:{1024*j} lds")
        a.i("s_waitcnt vmcnt(7)")
        a.i("s_branch L_SET_X")
        a.label("L_SET_J")
        a.i("s_waitcnt vmcnt(0)")
        a.label("L_SET_X")

    def role_prefetch(self):
        a = self.a
        a.i(f"s_cmp_ge_u32 {sW}, 4")
        a.i("s_cbranch_scc1 L_LN2")
        a.vm = []
        self.qtok = [self.wq_dma(ks) for ks in range(10)]

    def tr_addr_nat64(self, vdst, base_sgpr, pitch, t0="v216", t1="v217"):
        a = self.a
        a.i(f"v_lshrrev_b32 {t0}, 5, v0")
        a.i(f"v_lshlrev_b32 {t0}, 3, {t0}")
        a.i(f"v_bfe_u32 {t1}, v0, 2, 2")
        a.i(f"v_add_u32 {t0}, {t0}, {t1}")
        a.i(f"v_mul_u32_u24 {t0}, {pitch}, {t0}")
        a.i(f"v_bfe_u32 {t1}, v0, 4, 1")
        a.i(f"v_lshl_add_u32 {t0}, {t1}, 5, {t0}")
        a.i(f"v_and_b32 {t1}, 3, v0")
        a.i(f"v_lshl_add_u32 {t0}, {t1}, 3, {t0}")
        a.i(f"v_add_u32 {vdst}, {base_sgpr}, {t0}")

    def wave_max(self, regs):
        a = self.a
        for dpp in ("row_shr:1 row_mask:0xf", "row_shr:2 row_mask:0xf", "row_shr:4 row_mask:0xf", "row_shr:8 row_mask:0xf",
                    "row_bcast:15 row_mask:0xa", "row_bcast:31 row_mask:0xc"):
            a.nop(2 if len(regs) == 1 else (1 if len(regs) == 2 else 0))
            for r in regs:
                a.i(f"v_max_f32_dpp {r}, {r}, {r} {dpp} bank_mask:0xf")
        a.nop(1)

    def kv_job(self, isV):
        a = self.a
        a.c("---- K/V projection job: B waves 0/1 = m-tile, full K ----")
        D = 16
        def fr(kk): return 48 + 8 * (kk % 4)
        toks = {}
        def reads(kk):
            b = fr(kk); t = []
            t.append(a.lds(f"ds_read_b64_tr_b16 v[{b}:{b+1}], {self.B_TRK} offset:{kk*640}"))
            t.append(a.lds(f"ds_read_b64_tr_b16 v[{b+2}:{b+3}], {self.B_TRK} offset:{kk*640+160}"))
            t.append(a.lds(f"ds_read_b128 v[{b+4}:{b+7}], v{self.B_JA + kk % 4} offset:{kk*1024}"))
            toks[kk] = t
        for kk in range(3): reads(kk)
        for kk in range(40):
            a.wait(lg=toks[kk])
            b = fr(kk)
            W = f"v[{b}:{b+3}]"; X = f"v[{b+4}:{b+7}]"
            C = "0" if kk == 0 else f"v[{D}:{D+15}]"
            if isV: a.i(f"v_mfma_f32_32x32x16_bf16 v[{D}:{D+15}], {X}, {W}, {C}")
            else:   a.i(f"v_mfma_f32_32x32x16_bf16 v[{D}:{D+15}], {W}, {X}, {C}")
            if kk + 3 < 40: reads(kk + 3)
        self.stamp(7, lvl=2)
        a.i(f"s_lshr_b32 s62, {sRB}, 1")
        a.i(f"s_mul_i32 s62, s62, {KVCH}")
        a.i(f"s_add_u32 s62, s62, {WS_KV}")
        a.i(f"s_and_b32 s63, {sRB}, 1")
        a.i("s_lshl_b32 s65, s63, 1")
        a.i(f"s_add_u32 s65, s65, {sWR}")
        a.i("v_and_b32 v93, 31, v0")
        a.i("v_lshrrev_b32 v95, 5, v0")
        if not isV:
            a.i("s_lshl_b32 s64, s65, 10")
            a.i("s_add_u32 s64, s62, s64")
            a.i("s_lshl_b32 s63, s63, 9")
            a.i("s_add_u32 s62, s62, s63")
            a.i(f"s_lshl_b32 s63, {sWR}, 3")
            a.i("s_add_u32 s62, s62, s63")
            a.i(f"s_add_u32 s62, s62, {KV_KH}")
            a.i("v_cmp_gt_u32 vcc, 32, v0")
            a.nop(2)
            for j in range(6): a.i(f"v_cvt_pk_bf16_f32 v{88+j if j < 4 else 96+j-4}, v{D+2*j}, v{D+2*j+1}")
            a.vmem(f"buffer_store_dwordx4 v[88:91], {self.B_L16}, {SRD_WS}, s64 offen sc1")
            a.i("s_mov_b32 exec_lo, -1"); a.i("s_mov_b32 exec_hi, 0")
            a.vmem(f"buffer_store_dwordx2 v[96:97], {self.B_L16}, {SRD_WS}, s62 offen sc1")
            a.i("s_mov_b64 exec, -1")
            a.i(f"v_mul_f32 v92, v{D+8}, v{D+8}")
            for j in range(9, 12): a.i(f"v_fmac_f32 v92, v{D+j}, v{D+j}")
            a.nop(1)
            a.i("v_cndmask_b32 v92, 0, v92, vcc")
            for j in range(8): a.i(f"v_fmac_f32 v92, v{D+j}, v{D+j}")
            a.i("v_mov_b32 v93, v92")
            a.nop(2)
            a.i("v_permlane32_swap_b32 v92, v93")
            a.nop(1)
            a.i("v_add_f32 v92, v92, v93")
            norm_base = WS_KN
        else:
            a.i(f"v_mul_u32_u24 v95, {VROW}, v95")
            a.i("v_lshl_add_u32 v95, v93, 4, v95")
            a.i("s_lshl_b32 s65, s65, 1")
            a.i(f"s_mul_i32 s65, s65, {VFR}")
            a.i("s_add_u32 s62, s62, s65")
            a.i(f"s_add_u32 s62, s62, {KV_V}")
            a.i("v_cmp_eq_u32 vcc, 20, v93")
            a.i("v_cmp_eq_u32 s[64:65], 21, v93")
            a.i("v_mov_b32 v94, 0x3f803f80")
            a.i("v_mov_b32 v98, 0")
            for j in range(8): a.i(f"v_cvt_pk_bf16_f32 v{80+j}, v{D+2*j}, v{D+2*j+1}")
            for j in range(8): a.i(f"v_cndmask_b32 v{80+j}, v{80+j}, v94, vcc")
            for j in range(8): a.i(f"v_cndmask_b32 v{80+j}, v{80+j}, v98, s[64:65]")
            a.i("s_mov_b32 exec_lo, 0x3fffff")
            a.i("s_mov_b32 exec_hi, 0x3fffff")
            a.vmem(f"buffer_store_dwordx4 v[80:83], v95, {SRD_WS}, s62 offen sc1")
            a.vmem(f"buffer_store_dwordx4 v[84:87], v95, {SRD_WS}, s62 offen offset:{VFR} sc1")
            a.i("s_mov_b64 exec, -1")
            a.i(f"v_max3_f32 v92, abs(v{D}), abs(v{D+1}), abs(v{D+2})")
            for j in range(3, 15, 2): a.i(f"v_max3_f32 v92, v92, abs(v{D+j}), abs(v{D+j+1})")
            a.i(f"v_max3_f32 v92, v92, abs(v{D+15}), abs(v{D+15})")
            a.i("v_cmp_gt_u32 vcc, 20, v93")
            a.nop(2)
            a.i("v_cndmask_b32 v92, 0, v92, vcc")
            norm_base = WS_VN
        self.stamp(9, lvl=2)
        self.wave_max(["v92"])
        a.i("v_readlane_b32 s63, v92, 63")
        a.i(f"s_lshl_b32 s62, {sRB}, 1")
        a.i(f"s_add_u32 s62, s62, {sWR}")
        a.i("s_lshl_b32 s62, s62, 2")
        a.i(f"s_add_u32 s62, s62, {norm_base}")
        a.i("v_mov_b32 v92, s63")
        a.i("v_mov_b32 v93, 0")
        a.i("s_mov_b64 exec, 1")
        a.vmem(f"buffer_store_dword v92, v93, {SRD_WS}, s62 offen sc1")
        a.i("s_mov_b64 exec, -1")
        a.wait(vm='all')
        self.stamp(10, lvl=2)
        a.lds(f"ds_add_rtn_u32 v248, {self.B_CW}, {self.B_ONE} offset:{C_KVD}")
        a.wait(lg='all')
        a.i("v_readfirstlane_b32 s62, v248")
        Lnf = a.newlabel("kvnf")
        a.nop(1)
        a.i("s_cmp_lg_u32 s62, 1")
        a.i(f"s_cbranch_scc1 {Lnf}")
        a.i("v_lshlrev_b32 v92, 8, v0")
        a.i(f"v_mov_b32 v93, {sN}")
        a.i(f"s_lshl_b32 s62, {sRB}, 1")
        a.i(f"s_add_u32 s62, s62, {1 if isV else 0}")
        a.i("s_lshl_b32 s62, s62, 2")
        a.i(f"s_add_u32 s62, s62, {WS_FKV}")
        a.i("s_mov_b32 exec_lo, -1"); a.i("s_mov_b32 exec_hi, 0")
        a.i(f"buffer_store_dword v93, v92, {SRD_WS}, s62 offen sc1")
        a.i("s_mov_b64 exec, -1")
        a.label(Lnf)
        a.vm = []

    def q_proj(self):
        a = self.a
        a.c("---- Q projection (transposed): wave = head, both m-tiles ----")
        NS = 10
        dt = self.qtok
        a.vm = list(dt); a.lg = []
        B = lambda ks: 48 + 12 * (ks % 3)
        dm = {k: dt[k] for k in range(NS)}
        toks = {}
        def reads(ks):
            a.wait(vm=dm[ks])
            b = B(ks); sl = (ks % NS) * 1024; t = []
            t.append(a.lds(f"ds_read_b64_tr_b16 v[{b}:{b+1}], {self.vTRq} offset:{sl}"))
            t.append(a.lds(f"ds_read_b64_tr_b16 v[{b+2}:{b+3}], {self.vTRq} offset:{sl+256}"))
            self.rot_xn_seg(self.A_XA, self.A_XB, "s69", ks)
            t.append(a.lds(f"ds_read_b128 v[{b+4}:{b+7}], v{self.A_XA + ks % 4} offset:{self.seg_imm(ks)}"))
            t.append(a.lds(f"ds_read_b128 v[{b+8}:{b+11}], v{self.A_XB + ks % 4} offset:{self.seg_imm(ks)}"))
            toks[ks] = t
        reads(0); reads(1)
        for ks in range(40):
            if ks in (0, 10, 20, 30): self.stamp(6 + ks // 10, lvl=2)
            a.wait(lg=toks[ks])
            b = B(ks)
            C = "0" if ks == 0 else "v[16:31]"
            a.i(f"v_mfma_f32_32x32x16_bf16 v[16:31], v[{b}:{b+3}], v[{b+4}:{b+7}], {C}")
            if ks + 2 < 40: reads(ks + 2)
            C = "0" if ks == 0 else "v[32:47]"
            a.i(f"v_mfma_f32_32x32x16_bf16 v[32:47], v[{b}:{b+3}], v[{b+8}:{b+11}], {C}")
            if ks + NS < 40: dm[ks + NS] = self.wq_dma(ks + NS)
            if ks + NS == 39: self.lds_count(C_QISS, self.A_CW, self.A_ONE)
        self.lds_count(C_XND, self.A_CW, self.A_ONE)
        self.lds_count(C_QDONE, self.A_CW, self.A_ONE)

    S_ = {'a': 16, 'b': 32}; O_ = {'a': 48, 'b': 64}; P_ = {'a': 80, 'b': 88}; C_ = {'a': 96, 'b': 112}
    QL = {'a': 128, 'b': 132}; QH = {'a': 136, 'b': 138}
    KL = [140, 144]; KH = [148, 152]; VV = [156, 164]
    vKL, vKH, vV, vCnt, vDkv = "v172", "v173", "v174", "v180", "v181"
    N2 = {'a': "v182", 'b': "v183"}

    def q_epilogue(self):
        a = self.a
        a.c("---- Q epilogue: scale, pack to bf16 B operands, squared norms ----")
        a.i("v_cmp_gt_u32 vcc, 32, v0")
        a.i(f"v_mov_b32 v216, {hx(f2u(QSCALE))}")
        a.i("v_mov_b32 v217, 0")
        a.nop(7)
        a.i("v_cndmask_b32 v217, v217, v216, vcc")
        for u, D in (('a', 16), ('b', 32)):
            for j in range(8): a.i(f"v_mul_f32 v{D+j}, v216, v{D+j}")
            for j in range(8, 12): a.i(f"v_mul_f32 v{D+j}, v217, v{D+j}")
            for j in range(4): a.i(f"v_cvt_pk_bf16_f32 v{self.QL[u]+j}, v{D+2*j}, v{D+2*j+1}")
            for j in range(2): a.i(f"v_cvt_pk_bf16_f32 v{self.QH[u]+j}, v{D+8+2*j}, v{D+9+2*j}")
            n = self.N2[u]
            a.i(f"v_mul_f32 {n}, v{D}, v{D}")
            for j in range(1, 12): a.i(f"v_fmac_f32 {n}, v{D+j}, v{D+j}")
        for u in "ab":
            a.i(f"v_mov_b32 v{218 if u=='a' else 219}, {self.N2[u]}")
        a.nop(1)
        a.i(f"v_permlane32_swap_b32 {self.N2['a']}, v218")
        a.i(f"v_permlane32_swap_b32 {self.N2['b']}, v219")
        a.nop(1)
        a.i(f"v_add_f32 {self.N2['a']}, {self.N2['a']}, v218")
        a.i(f"v_add_f32 {self.N2['b']}, {self.N2['b']}, v219")

    def qk(self, u, kl, kh, dst=None):
        S = self.S_[u] if dst is None else dst
        C = self.C_[u]
        m0 = f"v_mfma_f32_32x32x16_bf16 v[{S}:{S+15}], v[{kl}:{kl+3}], v[{self.QL[u]}:{self.QL[u]+3}], v[{C}:{C+15}]"
        m1 = f"v_mfma_f32_32x32x8_bf16 v[{S}:{S+15}], v[{kh}:{kh+1}], v[{self.QH[u]}:{self.QH[u]+1}], v[{S}:{S+15}]"
        return m0, m1
    def pv(self, u, vv):
        O = self.O_[u]; P = self.P_[u]
        m0 = f"v_mfma_f32_32x32x16_bf16 v[{O}:{O+15}], v[{vv}:{vv+3}], v[{P}:{P+3}], v[{O}:{O+15}]"
        m1 = f"v_mfma_f32_32x32x16_bf16 v[{O}:{O+15}], v[{vv+4}:{vv+7}], v[{P+4}:{P+7}], v[{O}:{O+15}]"
        return m0, m1

    def ring_addr(self):
        a = self.a
        a.i(f"v_add_u32 {self.vKL}, {AREG}, {self.A_L16}")
        a.i("v_and_b32 v216, 31, v0")
        a.i(f"v_lshlrev_b32 {self.vKH}, 4, v216")
        a.i(f"v_add_u32 {self.vKH}, {AREG + KV_KH}, {self.vKH}")
        a.i("v_min_u32 v217, 21, v216")
        a.i("v_cmp_eq_u32 vcc, 24, v216")
        a.i("v_lshrrev_b32 v219, 5, v0")
        a.i(f"v_mul_u32_u24 v219, {VROW}, v219")
        a.i("v_mov_b32 v218, 20")
        a.i("v_cndmask_b32 v217, v217, v218, vcc")
        a.i("v_lshl_add_u32 v217, v217, 4, v219")
        a.i(f"v_add_u32 {self.vV}, {AREG + KV_V}, v217")
        a.i(f"s_mul_i32 s62, {sWR}, {RSHARE}")
        a.i(f"v_add_u32 {self.vDkv}, s62, {self.A_L16}")
        a.i(f"s_add_u32 s72, s62, {AREG}")
        a.i("s_bfe_u32 s62, s2, 0x40003")
        if not self.o.get('rot', 1): a.i("s_mov_b32 s62, 0")
        a.i(f"s_mul_i32 s79, s62, {KVCH}")
        a.i(f"s_add_u32 s79, s79, {WS_KV}")

    def ring_dma(self, slot):
        a = self.a
        a.i(f"s_add_u32 m0, s72, {slot*RSLOT}")
        a.i(f"s_add_u32 s73, s79, {KVCH}")
        t = [a.vmem(f"buffer_load_dwordx4 {self.vDkv}, {SRD_WS}, s79 offen offset:{1024*j} sc1 lds") for j in range(3)]
        a.i(f"s_cmp_eq_u32 s73, {WS_KV + 16*KVCH}")
        a.i(f"s_cselect_b32 s79, {WS_KV}, s73")
        return t

    def att_init_regs(self):
        a = self.a
        for r in list(range(48, 80)) + list(range(88, 96)) + list(range(self.VV[1], self.VV[1] + 8)):
            a.i(f"v_mov_b32 v{r}, 0")

    def kv_wait(self):
        a = self.a
        a.c("---- wait for K/V of all row blocks ----")
        Lw = a.newlabel("kvw"); Lj = a.newlabel("kvj")
        a.i(f"s_cmp_lg_u32 {sWR}, 0")
        a.i(f"s_cbranch_scc1 {Lw}")
        self.lds_spin_ge(C_QDONE, 4, "v218", self.A_CR, sleep=0)
        a.i("v_lshlrev_b32 v216, 2, v0")
        a.i(f"s_lshl_b32 s63, {sRB}, 8")
        a.i(f"s_add_u32 s63, s63, {WS_FKV}")
        self.glb_poll("v216", "s63", "v217", sleep=2)
        a.i(f"ds_add_u32 {self.A_CW}, {self.A_ONE} offset:{C_KVRDY}")
        a.i(f"s_branch {Lj}")
        a.label(Lw)
        self.lds_spin_ge(C_KVRDY, 1, "v218", self.A_CR, sleep=0)
        a.label(Lj)
        a.lg = []; a.vm = []
        a.i("s_waitcnt lgkmcnt(0)")

    def shift_setup(self):
        a = self.a
        a.c("---- softmax shift ----")
        a.i("v_lshlrev_b32 v216, 2, v0")
        a.i(f"s_mov_b32 s62, {WS_KN}")
        t1 = a.vmem(f"buffer_load_dword v184, v216, {SRD_WS}, s62 offen sc1")
        a.i(f"s_mov_b32 s63, {WS_VN}")
        t2 = a.vmem(f"buffer_load_dword v186, v216, {SRD_WS}, s63 offen sc1")
        pre = [self.ring_dma(c) for c in range(3)]
        self.lds_count(C_GO, self.A_CW, self.A_ONE)
        a.wait(vm=[t1, t2])
        self.wave_max(["v184", "v186"])
        a.i("v_readlane_b32 s62, v184, 63")
        a.i("v_readlane_b32 s64, v186, 63")
        a.nop(1)
        a.i("v_mov_b32 v184, s62")
        a.i("v_mov_b32 v186, s64")
        a.i("v_max_f32 v186, 1.0, v186")
        a.i("v_log_f32 v186, v186")
        a.i(f"v_mov_b32 v185, {hx(f2u(56.5))}")
        for u in "ab":
            n = self.N2[u]
            a.i(f"v_mul_f32 {n}, {n}, v184")
        a.i("v_fma_f32 v186, v186, -0.5, v185")
        for u in "ab": a.i(f"v_sqrt_f32 {self.N2[u]}, {self.N2[u]}")
        a.nop(1)
        for u in "ab": a.i(f"v_mul_f32 {self.N2[u]}, {hx(f2u(1.02))}, {self.N2[u]}")
        a.i(f"v_cmp_nle_f32 vcc, {self.N2['a']}, v186")
        a.i(f"v_cmp_nle_f32 s[64:65], {self.N2['b']}, v186")
        a.nop(1)
        a.i("s_or_b64 vcc, vcc, s[64:65]")
        if self.o.get('force_fallback'): a.i("s_mov_b64 vcc, -1")
        Lsafe = a.newlabel("safe")
        a.i(f"s_cbranch_vccz {Lsafe}")
        self.true_max_pass()
        a.label(Lsafe)
        for u in "ab":
            for j in range(16): a.i(f"v_mov_b32 v{self.C_[u]+j}, {self.N2[u]}")
        return pre

    def true_max_pass(self):
        a = self.a
        a.c("---- fallback: true row max ----")
        for u in "ab":
            for j in range(16): a.i(f"v_mov_b32 v{self.C_[u]+j}, 0")
            a.i(f"v_mov_b32 {self.N2[u]}, 0xff800000")
        a.i("v_and_b32 v216, 31, v0")
        a.i("v_lshlrev_b32 v216, 4, v216")
        a.i("s_mov_b32 s64, 0")
        L = a.newlabel("tm")
        a.label(L)
        a.i("s_lshr_b32 s62, s64, 2")
        a.i(f"s_mul_i32 s62, s62, {KVCH}")
        a.i(f"s_add_u32 s62, s62, {WS_KV}")
        a.i("s_and_b32 s63, s64, 3")
        a.i("s_lshl_b32 s65, s63, 10")
        a.i("s_add_u32 s65, s65, s62")
        a.i(f"buffer_load_dwordx4 v[{self.KL[0]}:{self.KL[0]+3}], {self.A_L16}, {SRD_WS}, s65 offen sc1")
        a.i("s_lshr_b32 s65, s63, 1")
        a.i("s_lshl_b32 s65, s65, 9")
        a.i("s_and_b32 s63, s63, 1")
        a.i("s_lshl_b32 s63, s63, 3")
        a.i("s_add_u32 s65, s65, s63")
        a.i("s_add_u32 s65, s65, s62")
        a.i("s_add_u32 s65, s65, 4096")
        a.i(f"buffer_load_dwordx2 v[{self.KH[0]}:{self.KH[0]+1}], v216, {SRD_WS}, s65 offen sc1")
        a.i("s_waitcnt vmcnt(0)")
        for u in "ab":
            for m in self.qk(u, self.KL[0], self.KH[0]): a.i(m)
        a.nop(12)
        for u in "ab":
            S = self.S_[u]
            for j in range(8): a.i(f"v_max3_f32 {self.N2[u]}, {self.N2[u]}, v{S+2*j}, v{S+2*j+1}")
        a.i("s_add_u32 s64, s64, 1")
        a.i("s_cmp_lt_u32 s64, 64")
        a.i(f"s_cbranch_scc1 {L}")
        a.i(f"v_mov_b32 v218, {self.N2['a']}")
        a.i(f"v_mov_b32 v219, {self.N2['b']}")
        a.nop(1)
        a.i(f"v_permlane32_swap_b32 {self.N2['a']}, v218")
        a.i(f"v_permlane32_swap_b32 {self.N2['b']}, v219")
        a.nop(1)
        a.i(f"v_max_f32 {self.N2['a']}, {self.N2['a']}, v218")
        a.i(f"v_max_f32 {self.N2['b']}, {self.N2['b']}, v219")
        a.i(f"v_sub_f32 {self.N2['a']}, 0, {self.N2['a']}")
        a.i(f"v_sub_f32 {self.N2['b']}, 0, {self.N2['b']}")

    def attention(self, pre):
        a = self.a
        a.c("---- attention main loop ----")
        a.wait(vm=pre[0])
        a.lds(f"ds_add_u32 {self.A_CW}, {self.A_ONE} offset:{C_ARR}")
        self.lds_spin_ge(C_ARR, 4, self.vCnt, self.A_CR, sleep=0)
        a.i("s_mov_b32 s74, 0")
        a.i("s_mov_b32 s78, 8")
        a.lds(f"ds_read_b128 v[{self.KL[0]}:{self.KL[0]+3}], {self.vKL}")
        a.lds(f"ds_read_b128 v[{self.KH[0]}:{self.KH[0]+3}], {self.vKH}")
        a.wait(lg='all')
        for m in self.qk('a', self.KL[0], self.KH[0]): a.i(m)
        a.nop(9)
        self.stamp(7)
        self.stamp(10, True)
        L = "L_ATT"
        a.raw(".p2align 6")
        a.label(L)
        self.loop_start = len(a.lines)
        def egroup(u, k):
            S = self.S_[u]; P = self.P_[u]
            for e in range(4): a.i(f"v_exp_f32 v{S+4*k+e}, v{S+4*k+e}")
            a.i(f"v_cvt_pk_bf16_f32 v{P+2*k}, v{S+4*k}, v{S+4*k+1}")
            a.i(f"v_cvt_pk_bf16_f32 v{P+2*k+1}, v{S+4*k+2}, v{S+4*k+3}")
        for slot in range(4):
            base = slot * RSLOT; nbase = ((slot + 1) % 4) * RSLOT
            a.vm = []; a.lg = []
            a.i("s_waitcnt vmcnt(3)")
            a.lds(f"ds_add_u32 {self.A_CW}, {self.A_ONE} offset:{C_ARR}")
            for t in range(4):
                kh = self.KH[(t >> 1) % 2] + 2 * (t & 1)
                q0, q1 = self.qk('b', self.KL[t % 2], kh)
                p0, p1 = self.pv('b', self.VV[(t - 1) % 2])
                rd = []
                kn = self.KL[(t + 1) % 2]
                rd.append(('K', f"ds_read_b128 v[{kn}:{kn+3}], {self.vKL} offset:{base + (t+1)*1024 if t < 3 else nbase}"))
                if t & 1:
                    hn = self.KH[((t + 1) >> 1) % 2]
                    rd.append(('K', f"ds_read_b128 v[{hn}:{hn+3}], {self.vKH} offset:{base + 512 if t < 3 else nbase}"))
                vv = self.VV[t % 2]
                rd.append(('V', f"ds_read_b128 v[{vv}:{vv+3}], {self.vV} offset:{base + (2*t)*VFR}"))
                rd.append(('V', f"ds_read_b128 v[{vv+4}:{vv+7}], {self.vV} offset:{base + (2*t+1)*VFR}"))
                ktok, vtok = [], []
                for k, m in enumerate((q0, q1, p0, p1)):
                    a.i(m)
                    if k < len(rd):
                        tk = a.lds(rd[k][1]); (ktok if rd[k][0] == 'K' else vtok).append(tk)
                    egroup('a', k)
                khn = self.KH[((t + 1) >> 1) % 2] + 2 * ((t + 1) & 1)
                q0, q1 = self.qk('a', self.KL[(t + 1) % 2], khn)
                p0, p1 = self.pv('a', self.VV[t % 2])
                a.wait(lg=ktok)
                for k, m in enumerate((q0, q1, p0, p1)):
                    if k == 2: a.wait(lg=vtok)
                    a.i(m)
                    if t == 0 and k == 3:
                        a.lds(f"ds_read_b32 {self.vCnt}, {self.A_CR} offset:{C_ARR}")
                    if t == 1 and k == 0:
                        Lok = a.newlabel("arr")
                        a.i(f"v_cmp_gt_u32 vcc, s78, {self.vCnt}")
                        a.i(f"s_cbranch_vccz {Lok}")
                        if self.o.get('prof'): a.i("s_add_u32 s52, s52, 1")
                        keep = list(a.lg)
                        self.lds_spin_ge(C_ARR, "s78", self.vCnt, self.A_CR, sleep=0)
                        a.lg = keep
                        a.label(Lok)
                    if t == 1 and k == 1:
                        self.ring_dma((slot + 3) % 4)
                        a.i("s_add_u32 s78, s78, 4")
                    egroup('b', k)
        a.i("s_add_u32 s74, s74, 1")
        a.i("s_cmp_lt_u32 s74, 4")
        self.loop_end = len(a.lines)
        a.i(f"s_cbranch_scc1 {L}")
        for m in self.pv('b', self.VV[1]): a.i(m)
        a.vm = []; a.lg = []

    def o_addr(self):
        a = self.a
        a.i(f"s_lshl_b32 s62, {sRB}, 1")
        a.i("s_mul_i32 s62, s62, 40960")
        a.i(f"s_add_u32 s80, s62, {WS_O}")
        a.i(f"s_mul_i32 s63, {sCG}, 5")
        a.i(f"s_add_u32 s81, s63, {sWR}")
        a.i("s_lshl_b32 s81, s81, 10")
        a.i("s_add_u32 s63, s63, 4")
        a.i("s_lshl_b32 s63, s63, 10")
        a.i(f"s_lshr_b32 s65, {sWR}, 1")
        a.i("s_lshl_b32 s65, s65, 9")
        a.i("s_add_u32 s63, s63, s65")
        a.i(f"s_and_b32 s65, {sWR}, 1")
        a.i("s_lshl_b32 s65, s65, 3")
        a.i("s_add_u32 s82, s63, s65")

    def o_epilogue(self):
        a = self.a
        a.c("---- normalise O, publish ----")
        a.i("v_cmp_gt_u32 vcc, 32, v0")
        a.nop(2)
        for mt, u in enumerate("ab"):
            O = self.O_[u]
            a.i(f"v_cndmask_b32 v216, v{O+8}, v{O+12}, vcc")
            a.i("v_rcp_f32 v216, v216")
            a.nop(1)
            for j in range(12): a.i(f"v_mul_f32 v{O+j}, v216, v{O+j}")
            P = self.P_[u]
            for j in range(6): a.i(f"v_cvt_pk_bf16_f32 v{P+j}, v{O+2*j}, v{O+2*j+1}")
            a.i(f"s_add_u32 s68, s80, {mt*40960}")
            a.i("s_add_u32 s69, s68, s81")
            a.vmem(f"buffer_store_dwordx4 v[{P}:{P+3}], {self.A_L16}, {SRD_WS}, s69 offen sc1")
            a.i("s_add_u32 s69, s68, s82")
            a.i("s_mov_b32 exec_lo, -1"); a.i("s_mov_b32 exec_hi, 0")
            a.vmem(f"buffer_store_dwordx2 v[{P+4}:{P+5}], {self.A_L16}, {SRD_WS}, s69 offen sc1")
            a.i("s_mov_b64 exec, -1")
        a.wait(vm='all')
        a.lds(f"ds_add_rtn_u32 v218, {self.A_CW}, {self.A_ONE} offset:{C_OD}")
        a.wait(lg='all')
        a.i("v_readfirstlane_b32 s62, v218")
        a.nop(1)
        a.i("s_cmp_lg_u32 s62, 3")
        a.i("s_cbranch_scc1 L_AEND")
        a.i(f"s_lshl_b32 s62, {sRB}, 7")
        a.i(f"s_lshl_b32 s63, {sCG}, 2")
        a.i("s_add_u32 s62, s62, s63")
        a.i(f"s_add_u32 s62, s62, {WS_FO}")
        a.i(f"v_mov_b32 v217, {sN}")
        a.i("v_mov_b32 v216, 0")
        a.i("s_mov_b64 exec, 1")
        a.i(f"buffer_store_dword v217, v216, {SRD_WS}, s62 offen sc1")
        a.i("s_mov_b64 exec, -1")
        a.label("L_AEND")
        self.stamp(9)
        self.stamp_flush()
        a.i("s_branch L_END")

    def role_a(self):
        a = self.a
        a.label("L_ROLE_A")
        a.i(f"s_setprio {self.o.get('prioA', 2)}")
        dt = None
        self.q_proj()
        self.stamp(10, lvl=2)
        self.stamp(4)
        self.q_epilogue()
        if self.o.get('dump') == 'q':
            self.dump_regs(128, 12, 0, self.A_L16)
        self.att_init_regs()
        self.o_addr()
        self.kv_wait()
        self.stamp(5)
        pre = self.shift_setup()
        self.stamp(6)
        if not self.o.get('noatt'): self.attention(pre)
        else:
            self.loop_start = self.loop_end = len(a.lines)
            a.i("s_waitcnt vmcnt(0)")
        self.stamp(11, True)
        self.stamp(8)
        if self.o.get('dump') == 'o':
            a.nop(16)
            self.dump_regs(48, 32, 0, self.A_L16)
        self.o_epilogue()

    vD1a, vD1b, vTRa, vTRb = "v230", "v231", "v232", "v233"
    B_XA, B_XB = 234, 238
    B_CW, B_CR, B_ONE, B_L16 = "v242", "v243", "v244", "v245"
    B_TRK = "v252"
    B_JA, B_JB = 220, 224
    vWa, vWb, vWc, vRa, vRb, vRc = "v230", "v231", "v232", "v233", "v234", "v235"
    vMa, vMb, vMc, vPW, vPR0, vPR1, vXO = "v236", "v237", "v238", "v239", "v240", "v241", "v250"

    def pair_dma_addr(self, va, vb, pitch, col_sgpr, comp_rows=8):
        a = self.a
        a.i("v_lshrrev_b32 v246, 3, v0")
        a.i("v_bfe_u32 v247, v0, 4, 1")
        a.i("v_lshlrev_b32 v247, 2, v247")
        a.i("v_and_b32 v248, 7, v0")
        a.i("v_xor_b32 v247, v247, v248")
        a.i(f"v_mul_u32_u24 v246, {pitch}, v246")
        a.i(f"v_lshl_add_u32 {va}, v247, 4, v246")
        a.i(f"v_add_u32 {va}, {col_sgpr}, {va}")
        a.i(f"v_add_u32 {vb}, {comp_rows*pitch - 1024}, {va}")

    def pair_tr_addr(self, va, vb, hmul, base_sgpr):
        a = self.a
        a.i("v_lshrrev_b32 v246, 5, v0")
        a.i(f"v_mul_u32_u24 v246, {hmul}, v246")
        a.i("v_bfe_u32 v247, v0, 2, 2")
        a.i("v_add_u32 v246, v246, v247")
        a.i("v_lshlrev_b32 v246, 7, v246")
        a.i("v_bfe_u32 v247, v0, 4, 1")
        a.i("v_lshlrev_b32 v247, 1, v247")
        a.i("v_bfe_u32 v248, v0, 1, 1")
        a.i("v_add_u32 v247, v247, v248")
        a.i("v_bfe_u32 v248, v0, 3, 1")
        a.i("v_lshlrev_b32 v248, 2, v248")
        a.i("v_xor_b32 v247, v247, v248")
        a.i("v_lshl_add_u32 v246, v247, 4, v246")
        a.i("v_and_b32 v247, 1, v0")
        a.i("v_lshl_add_u32 v246, v247, 3, v246")
        a.i(f"v_add_u32 {va}, {base_sgpr}, v246")
        a.i(f"v_xor_b32 {vb}, 64, v246")
        a.i(f"v_add_u32 {vb}, {base_sgpr}, {vb}")

    def w1_dma(self, ks, part=None):
        a = self.a
        t = []
        if part in (None, 0):
            a.i(f"s_add_u32 m0, s66, {(ks % 4) * 2048}")
            if part is None: a.nop(1)
        if part in (None, 1):
            t.append(a.vmem(f"buffer_load_dwordx4 {self.vD1a}, {SRD_W1}, s67 offen lds"))
        if part in (None, 2):
            t.append(a.vmem(f"buffer_load_dwordx4 {self.vD1b}, {SRD_W1}, s67 offen offset:1024 lds"))
            self.rot_next(16 * 3456, "s67", ks)
        return t

    def ffn1(self):
        a = self.a
        a.c("---- FFN1 (transposed): h^T tiles, 2 n-tiles x 2 m-tiles per wave ----")
        acc = lambda t, m: 16 + 32 * t + 16 * m
        W = lambda s, t: 80 + 8 * s + 4 * t
        X = lambda s, m: 96 + 8 * s + 4 * m
        d1 = 4
        dm = dict(self.w1tok); ta = {}; tb = {}
        def rd_wa(ks):
            a.wait(vm=dm[ks])
            s = ks % 2; sl = (ks % 4) * 2048
            ta[ks] = [a.lds(f"ds_read_b64_tr_b16 v[{W(s,0)}:{W(s,0)+1}], {self.vTRa} offset:{sl}"),
                      a.lds(f"ds_read_b64_tr_b16 v[{W(s,0)+2}:{W(s,0)+3}], {self.vTRa} offset:{sl+512}")]
        def rd_x(ks):
            s = ks % 2
            self.rot_xn_seg(self.B_XA, self.B_XB, "s69", ks)
            ta[ks].append(a.lds(f"ds_read_b128 v[{X(s,0)}:{X(s,0)+3}], v{self.B_XA + ks % 4} offset:{self.seg_imm(ks)}"))
            ta[ks].append(a.lds(f"ds_read_b128 v[{X(s,1)}:{X(s,1)+3}], v{self.B_XB + ks % 4} offset:{self.seg_imm(ks)}"))
        def rd_wb(ks):
            s = ks % 2; sl = (ks % 4) * 2048
            tb[ks] = [a.lds(f"ds_read_b64_tr_b16 v[{W(s,1)}:{W(s,1)+1}], {self.vTRb} offset:{sl}"),
                      a.lds(f"ds_read_b64_tr_b16 v[{W(s,1)+2}:{W(s,1)+3}], {self.vTRb} offset:{sl+512}")]
        def mf(ks, t, m):
            s = ks % 2; A = acc(t, m)
            C = "0" if ks == 0 else f"v[{A}:{A+15}]"
            a.i(f"v_mfma_f32_32x32x16_bf16 v[{A}:{A+15}], v[{W(s,t)}:{W(s,t)+3}], v[{X(s,m)}:{X(s,m)+3}], {C}")
        rd_wa(0); rd_x(0); rd_wb(0)
        for ks in range(40):
            nx = ks + 1 < 40; dd = ks + d1 < 40
            a.wait(lg=ta[ks])
            mf(ks, 0, 0)
            if nx: rd_wa(ks + 1)
            mf(ks, 0, 1)
            a.wait(lg=tb[ks])
            if nx: rd_x(ks + 1)
            if dd: self.w1_dma(ks + d1, 0)
            mf(ks, 1, 0)
            if nx: rd_wb(ks + 1)
            if dd: dm[ks + d1] = self.w1_dma(ks + d1, 1)
            mf(ks, 1, 1)
            if dd: dm[ks + d1] += self.w1_dma(ks + d1, 2)
        self.lds_count(C_XND, self.B_CW, self.B_ONE)
        if self.o.get('pf', 0): self.l2_prefetch(SRD_W2, 2211840, 3 if self.o.get('pfstride', 128) == 128 else 5, "v246", "v251", sWR, 4)
        self.stamp(3)
        a.i(f"s_setprio {self.o.get('prioBv', 3)}")
        a.i(f"s_lshl_b32 s62, {sRB}, 1")
        a.i("s_mul_i32 s62, s62, 110592")
        a.i("s_lshl_b32 s63, s68, 11")
        a.i("s_add_u32 s62, s62, s63")
        a.i(f"s_add_u32 s62, s62, {WS_H}")
        a.nop(6)
        for t in range(2):
            for m in range(2):
                A = acc(t, m); R = 80 + 8 * m + 16 * (t & 1)
                for j in range(8): a.i(f"v_cvt_pk_bf16_f32 v{R+j}, v{A+2*j}, v{A+2*j+1}")
                for j in range(8): a.i(f"v_pk_max_i16 v{R+j}, v{R+j}, 0")
                a.i(f"s_add_u32 s63, s62, {m*110592 + t*2048}")
                a.vmem(f"buffer_store_dwordx4 v[{R}:{R+3}], {self.B_L16}, {SRD_WS}, s63 offen sc1")
                a.vmem(f"buffer_store_dwordx4 v[{R+4}:{R+7}], {self.B_L16}, {SRD_WS}, s63 offen offset:1024 sc1")
        a.i(f"s_setprio {self.o.get('prioB', 0)}")

    def h_publish(self):
        a = self.a
        a.i("s_waitcnt vmcnt(0)")
        a.vm = []
        a.lds(f"ds_add_rtn_u32 v246, {self.B_CW}, {self.B_ONE} offset:{C_HD}")
        a.wait(lg='all')
        a.i("v_readfirstlane_b32 s62, v246")
        Lnf = a.newlabel("hnf")
        a.nop(1)
        a.i("s_cmp_lg_u32 s62, 3")
        a.i(f"s_cbranch_scc1 {Lnf}")
        a.i(f"s_lshl_b32 s62, {sRB}, 7")
        a.i(f"s_lshl_b32 s63, {sCG}, 2")
        a.i("s_add_u32 s62, s62, s63")
        a.i(f"s_add_u32 s62, s62, {WS_FH}")
        a.i(f"v_mov_b32 v247, {sN}")
        a.i("v_mov_b32 v246, 0")
        a.i("s_mov_b64 exec, 1")
        a.i(f"buffer_store_dword v247, v246, {SRD_WS}, s62 offen sc1")
        a.i("s_mov_b64 exec, -1")
        a.label(Lnf)

    def out_tiles_setup(self):
        a = self.a
        a.i(f"s_lshr_b32 s62, {sCG}, 1")
        a.i("s_and_b32 s64, s62, 1")
        a.i("s_mul_i32 s62, s62, 5")
        a.i(f"s_and_b32 s82, {sCG}, 1")
        a.i("s_lshl_b32 s63, s82, 1")
        a.i("s_add_u32 s80, s62, s63")
        a.i("s_add_u32 s80, s80, s64")
        a.i("s_lshl_b32 s80, s80, 6")
        a.i("s_xor_b32 s64, s64, 1")
        a.i("s_lshl_b32 s64, s64, 2")
        a.i("s_add_u32 s81, s62, s64")
        a.i("s_lshl_b32 s81, s81, 6")
        a.i(f"s_mul_i32 s83, {sWR}, {BREG}")
        self.pair_dma_addr(self.vWa, self.vWb, 1280, "s80")
        a.i("v_lshrrev_b32 v246, 2, v0")
        a.i("v_mul_u32_u24 v246, 1280, v246")
        a.i("v_and_b32 v247, 3, v0")
        a.i(f"v_lshl_add_u32 {self.vWc}, v247, 4, v246")
        a.i(f"v_add_u32 {self.vWc}, s81, {self.vWc}")
        self.pair_tr_addr(self.vRa, self.vRb, 4, "s83")
        a.i("v_lshrrev_b32 v246, 5, v0")
        a.i("v_lshlrev_b32 v246, 2, v246")
        a.i("v_bfe_u32 v247, v0, 2, 2")
        a.i("v_add_u32 v246, v246, v247")
        a.i("v_lshlrev_b32 v246, 6, v246")
        a.i("v_bfe_u32 v247, v0, 4, 1")
        a.i("v_lshl_add_u32 v246, v247, 5, v246")
        a.i("v_and_b32 v247, 3, v0")
        a.i("v_lshl_add_u32 v246, v247, 3, v246")
        a.i("s_add_u32 s62, s83, 2048")
        a.i(f"v_add_u32 {self.vRc}, s62, v246")
        a.i(f"v_add_u32 {self.vPW}, s83, {self.B_L16}")
        a.i(f"s_mul_i32 s62, {sWR}, 5120")
        a.i(f"v_add_u32 {self.vPR0}, s62, {self.B_L16}")
        a.i(f"v_add_u32 {self.vPR1}, {2*BREG}, {self.vPR0}")

    def w3_dma(self, srd, slot, soff_sgpr, va, vb, vc):
        a = self.a
        a.i(f"s_add_u32 m0, s83, {slot*3072}")
        a.nop(1)
        t = [a.vmem(f"buffer_load_dwordx4 {va}, {srd}, {soff_sgpr} offen lds"),
             a.vmem(f"buffer_load_dwordx4 {vb}, {srd}, {soff_sgpr} offen offset:1024 lds")]
        a.i(f"s_add_u32 m0, s83, {slot*3072 + 2048}")
        a.nop(1)
        t.append(a.vmem(f"buffer_load_dwordx4 {vc}, {srd}, {soff_sgpr} offen lds"))
        return t

    def w3_reads(self, slot, Wb, part=None):
        a = self.a; t = []
        sl = slot * 3072
        if isinstance(part, tuple):
            p = part[1]
            va, o2 = ((self.vRa, 1024), (self.vRb, 1024), (self.vRc, 512))[p]
            t.append(a.lds(f"ds_read_b64_tr_b16 v[{Wb+4*p}:{Wb+4*p+1}], {va} offset:{sl}"))
            t.append(a.lds(f"ds_read_b64_tr_b16 v[{Wb+4*p+2}:{Wb+4*p+3}], {va} offset:{sl+o2}"))
            return t
        if part in (None, 0):
            t.append(a.lds(f"ds_read_b64_tr_b16 v[{Wb}:{Wb+1}], {self.vRa} offset:{sl}"))
            t.append(a.lds(f"ds_read_b64_tr_b16 v[{Wb+2}:{Wb+3}], {self.vRa} offset:{sl+1024}"))
            t.append(a.lds(f"ds_read_b64_tr_b16 v[{Wb+4}:{Wb+5}], {self.vRb} offset:{sl}"))
        if part in (None, 1):
            t.append(a.lds(f"ds_read_b64_tr_b16 v[{Wb+6}:{Wb+7}], {self.vRb} offset:{sl+1024}"))
            t.append(a.lds(f"ds_read_b64_tr_b16 v[{Wb+8}:{Wb+9}], {self.vRc} offset:{sl}"))
            t.append(a.lds(f"ds_read_b64_tr_b16 v[{Wb+10}:{Wb+11}], {self.vRc} offset:{sl+512}"))
        return t

    def five_mfma(self, Wb, H0, H1, first, fill):
        a = self.a
        spec = [(0, 0, H0), (1, 0, H1), (2, 1, H0), (3, 1, H1), (4, 2, H0)]
        for n, (tau, nt, Hb) in enumerate(spec):
            A = 16 + 16 * tau
            C = "0" if first else f"v[{A}:{A+15}]"
            a.i(f"v_mfma_f32_32x32x16_bf16 v[{A}:{A+15}], v[{Wb+4*nt}:{Wb+4*nt+3}], v[{Hb}:{Hb+3}], {C}")
            if n < len(fill) and fill[n]: fill[n]()

    def reduce80(self, dst, bar_target):
        a = self.a
        a.nop(12)
        for g in range(20):
            if len(a.lg) >= 14: a.wait(lg=a.lg[6])
            a.lds(f"ds_write_b128 {self.vPW}, v[{16+4*g}:{19+4*g}] offset:{g*1024}")
        a.wait(lg='all')
        self.lds_count(C_BBAR, self.B_CW, self.B_ONE)
        self.lds_spin_ge(C_BBAR, bar_target, "v246", self.B_CR)
        tk = {}
        def rd(src):
            va = self.vPR0 if src < 2 else self.vPR1
            tk[src] = [a.lds(f"ds_read_b128 v[{16+20*src+4*e}:{19+20*src+4*e}], {va} offset:{(src&1)*BREG + e*1024}") for e in range(5)]
        rd(0); rd(1); rd(2)
        a.wait(lg=tk[1])
        rd(3)
        for j in range(20): a.i(f"v_add_f32 v{dst+j}, v{16+j}, v{36+j}")
        a.wait(lg='all')
        for j in range(20): a.i(f"v_add_f32 v{56+j}, v{56+j}, v{76+j}")
        for j in range(20): a.i(f"v_add_f32 v{dst+j}, v{dst+j}, v{56+j}")

    def ffn2(self):
        a = self.a
        a.c("---- FFN2 (transposed): 5 output tiles, split-K over the 4 B waves ----")
        self.lds_spin_ge(C_XND, 8, "v246", self.B_CR)
        self.out_tiles_setup()
        NS = 9; PF = self.o.get('d2', 4); HD = self.o.get('dh', 3) + 1
        a.i(f"s_mul_i32 s84, {sWR}, {27*20480}")
        a.i(f"s_and_b32 s62, {sRB}, 7")
        a.i("s_mul_i32 s62, s62, 3")
        a.i(f"s_and_b32 s63, {sCG}, 3")
        a.i("s_mul_i32 s63, s63, 7")
        a.i("s_add_u32 s62, s62, s63")
        a.i("s_cmp_ge_u32 s62, 27")
        a.i("s_cselect_b32 s63, 27, 0")
        a.i("s_sub_u32 s87, s62, s63")
        if not self.o.get('rot', 1): a.i("s_mov_b32 s87, 0")
        a.i("s_mul_i32 s95, s87, 20480")
        dm = {}
        a.i("s_add_u32 s95, s95, s84")
        a.i(f"s_add_u32 s93, s84, {27*20480}")
        def dma(kk, part=None):
            slot = kk % NS
            if part in (None, 0):
                a.i(f"s_add_u32 m0, s83, {slot*3072}")
                if part is None: a.nop(1)
            if part in (None, 1):
                dm[kk] = [a.vmem(f"buffer_load_dwordx4 {self.vWa}, {SRD_W2}, s95 offen lds")]
            if part in (None, 2):
                dm[kk].append(a.vmem(f"buffer_load_dwordx4 {self.vWb}, {SRD_W2}, s95 offen offset:1024 lds"))
                a.i(f"s_add_u32 m0, s83, {slot*3072 + 2048}")
                if part is None: a.nop(1)
            if part in (None, 3):
                dm[kk].append(a.vmem(f"buffer_load_dwordx4 {self.vWc}, {SRD_W2}, s95 offen lds"))
                a.i("s_add_u32 s95, s95, 20480")
                a.i("s_cmp_eq_u32 s95, s93")
                a.i("s_cselect_b32 s95, s84, s95")
        for kk in range(PF): dma(kk)
        self.stamp(5)
        self.one_wave_poll(WS_FH, C_HRDY, sleep=8)
        self.stamp(6)
        if self.o.get('pf', 0):
            a.i("v_min_u32 v246, 53, v0")
            a.i("v_lshlrev_b32 v246, 7, v246")
            a.i(f"s_mul_i32 s62, {sRB}, 221184")
            a.i(f"s_lshl_b32 s63, {sCG}, 2")
            a.i(f"s_add_u32 s63, s63, {sWR}")
            a.i(f"s_mul_i32 s63, s63, {54*128}")
            a.i("s_add_u32 s62, s62, s63")
            a.i(f"s_add_u32 s62, s62, {WS_H}")
            a.vmem(f"buffer_load_dword v251, v246, {SRD_WS}, s62 offen sc1")
            self.l2_prefetch(SRD_WO, 819200, 1 if self.o.get('pfstride', 128) == 128 else 2, "v246", "v253", sWR, 4)
        a.i(f"s_lshl_b32 s62, {sRB}, 1")
        a.i("s_add_u32 s63, s62, s82")
        a.i("s_xor_b32 s64, s82, 1")
        a.i("s_add_u32 s64, s62, s64")
        a.i("s_mul_i32 s85, s63, 110592")
        a.i("s_mul_i32 s86, s64, 110592")
        a.i(f"s_mul_i32 s62, {sWR}, {27*1024}")
        a.i(f"s_add_u32 s62, s62, {WS_H}")
        a.i("s_add_u32 s85, s85, s62")
        a.i("s_add_u32 s86, s86, s62")
        a.i(f"v_add_u32 v246, s85, {self.B_L16}")
        a.i(f"v_add_u32 v247, s86, {self.B_L16}")
        H = lambda kk, s: 120 + 8 * (kk % HD) + 4 * s
        hl = {}
        a.i("s_lshl_b32 s96, s87, 10")
        def hload(kk, part=None):
            if part in (None, 0):
                hl[kk] = [a.vmem(f"buffer_load_dwordx4 v[{H(kk,0)}:{H(kk,0)+3}], v246, {SRD_WS}, s96 offen sc1")]
            if part in (None, 1):
                hl[kk].append(a.vmem(f"buffer_load_dwordx4 v[{H(kk,1)}:{H(kk,1)+3}], v247, {SRD_WS}, s96 offen sc1"))
                a.i("s_add_u32 s96, s96, 1024")
                a.i(f"s_cmp_eq_u32 s96, {27*1024}")
                a.i("s_cselect_b32 s96, 0, s96")
        for kk in range(HD - 1): hload(kk)
        Wb = lambda kk: 96 + 12 * (kk % 2)
        a.wait(vm=dm[0])
        rt = {0: self.w3_reads(0, Wb(0))}
        for kk in range(27):
            a.wait(lg=rt[kk], vm=hl[kk])
            nx = kk + 1 < 27; dd = kk + PF < 27; hh = kk + HD - 1 < 27
            def rd(p, kk=kk):
                if p == 0:
                    a.wait(vm=dm[kk + 1]); rt[kk + 1] = []
                rt[kk + 1] += self.w3_reads((kk + 1) % NS, Wb(kk + 1), ('t', p))
            def g0(kk=kk):
                if nx: rd(0)
                if hh: hload(kk + HD - 1, 0)
            def g1(kk=kk):
                if nx: rd(1)
                if hh: hload(kk + HD - 1, 1)
                if dd: dma(kk + PF, 0)
            def g2(kk=kk):
                if nx: rd(2)
                if dd: dma(kk + PF, 1)
            def g3(kk=kk):
                if dd: dma(kk + PF, 2)
            def g4(kk=kk):
                if dd: dma(kk + PF, 3)
            self.five_mfma(Wb(kk), H(kk, 0), H(kk, 1), kk == 0, [g0, g1, g2, g3, g4])
        self.stamp(7)
        a.i(f"s_setprio {self.o.get('prioBv', 3)}")
        self.reduce80(200, 4)
        for j in range(20): a.i(f"v_mul_f32 v{16+j}, {hx(f2u(-1.4426950408889634))}, v{200+j}")
        for j in range(20): a.i(f"v_exp_f32 v{16+j}, v{16+j}")
        for j in range(20): a.i(f"v_add_f32 v{16+j}, 1.0, v{16+j}")
        for j in range(20): a.i(f"v_rcp_f32 v{16+j}, v{16+j}")
        for j in range(20): a.i(f"v_mul_f32 v{200+j}, v{200+j}, v{16+j}")
        a.i(f"s_setprio {self.o.get('prioB', 0)}")
        self.lds_count(C_BBAR, self.B_CW, self.B_ONE)
        self.lds_spin_ge(C_BBAR, 8, "v246", self.B_CR)

    def out_proj(self):
        a = self.a
        a.c("---- output projection + final combine ----")
        a.i("v_lshrrev_b32 v246, 3, v0")
        a.i("v_lshrrev_b32 v247, 2, v246")
        a.i("v_mul_u32_u24 v247, 40, v247")
        a.i("v_and_b32 v248, 3, v246")
        a.i("v_add3_u32 v247, v247, v248, 16")
        a.i("v_mul_u32_u24 v247, 1280, v247")
        a.i("v_bfe_u32 v248, v0, 4, 1")
        a.i("v_lshlrev_b32 v248, 2, v248")
        a.i("v_and_b32 v249, 7, v0")
        a.i("v_xor_b32 v248, v248, v249")
        a.i(f"v_lshl_add_u32 {self.vMa}, v248, 4, v247")
        a.i(f"v_add_u32 {self.vMa}, s80, {self.vMa}")
        a.i(f"v_add_u32 {self.vMb}, {20*1280 - 1024}, {self.vMa}")
        a.i("v_lshrrev_b32 v246, 2, v0")
        a.i("v_bfe_u32 v247, v246, 2, 1")
        a.i("v_lshlrev_b32 v247, 1, v247")
        a.i("v_lshrrev_b32 v248, 3, v246")
        a.i("v_add_u32 v247, v247, v248")
        a.i("v_mul_u32_u24 v247, 20, v247")
        a.i("v_and_b32 v248, 3, v246")
        a.i("v_add3_u32 v247, v247, v248, 16")
        a.i("v_mul_u32_u24 v247, 1280, v247")
        a.i("v_and_b32 v248, 3, v0")
        a.i(f"v_lshl_add_u32 {self.vMc}, v248, 4, v247")
        a.i(f"v_add_u32 {self.vMc}, s81, {self.vMc}")
        dm = {}
        a.i(f"s_lshl_b32 s62, {sWR}, 1")
        a.i("s_add_u32 s93, s62, s82")
        a.i("s_xor_b32 s63, s82, 1")
        a.i("s_add_u32 s94, s62, s63")
        a.i(f"s_mul_i32 s84, s93, {80*1280}")
        a.i(f"s_mul_i32 s87, s94, {80*1280}")
        def wo_dma(e):
            cgo, jj = e // 5, e % 5
            base = "s84" if cgo == 0 else "s87"
            if jj < 4:
                a.i(f"s_add_u32 s67, {base}, {jj*20*1280}")
                dm[e] = self.w3_dma(SRD_WO, e % 9, "s67", self.vWa, self.vWb, self.vWc)
            else:
                dm[e] = self.w3_dma(SRD_WO, e % 9, base, self.vMa, self.vMb, self.vMc)
        for e in range(9):
            wo_dma(e)
            dw = self.o.get('dw', 2)
            if e - dw >= 0: a.wait(vm=dm[e - dw])
        a.i("v_and_b32 v246, 31, v0")
        a.i("v_mul_u32_u24 v246, 1280, v246")
        a.i("v_lshrrev_b32 v247, 5, v0")
        a.i(f"v_lshl_add_u32 {self.vXO}, v247, 3, v246")
        xt = []
        for e in range(5):
            so = f"s{88+e}"
            a.i(f"s_mul_i32 s62, {sWR}, 5")
            a.i(f"s_add_u32 s62, s62, {e}")
            a.i("s_lshr_b32 s63, s62, 2")
            a.i("s_and_b32 s64, s62, 3")
            a.i("s_lshl_b32 s64, s64, 4")
            a.i("s_lshr_b32 s65, s63, 1")
            a.i("s_lshl_b32 s69, s65, 6")
            a.i("s_add_u32 s69, s69, s80")
            a.i("s_cmp_eq_u32 s63, 4")
            a.i("s_cselect_b32 s69, s81, s69")
            a.i("s_add_u32 s64, s64, s69")
            a.i("s_and_b32 s65, s63, 1")
            a.i("s_xor_b32 s65, s65, s82")
            a.i(f"s_lshl_b32 s69, {sRB}, 1")
            a.i("s_add_u32 s65, s65, s69")
            a.i("s_mul_i32 s65, s65, 40960")
            a.i(f"s_add_u32 {so}, s64, s65")
            xt.append(a.vmem(f"buffer_load_dwordx2 v[{220+2*e}:{221+2*e}], {self.vXO}, {SRD_X}, {so} offen"))
        a.wait(vm=dm[8])
        rt0 = self.w3_reads(0, 96)
        a.wait(lg=rt0)
        wo_dma(9)
        a.wait(vm=dm[9])
        self.stamp(9)
        self.one_wave_poll(WS_FO, C_ORDY, pre=lambda: self.lds_spin_ge(C_OD, 4, "v246", self.B_CR, sleep=3), sleep=1)
        self.stamp(10)
        Lnl = a.newlabel("nolead")
        a.i(f"s_lshl_b32 s62, {sCG}, 2")
        a.i(f"s_add_u32 s62, s62, {sWR}")
        a.i("s_cmp_lg_u32 s62, 0")
        a.i(f"s_cbranch_scc1 {Lnl}")
        a.i("v_mov_b32 v246, 0")
        a.i("v_mov_b32 v247, 1")
        a.i("s_mov_b64 exec, 1")
        a.i(f"global_atomic_add v248, v246, v247, {sDBG} sc0 sc1")
        a.i("s_waitcnt vmcnt(0)")
        a.i("v_readfirstlane_b32 s62, v248")
        a.i("s_mov_b64 exec, -1")
        a.nop(1)
        a.i("s_cmp_lg_u32 s62, 31")
        a.i(f"s_cbranch_scc1 {Lnl}")
        a.i(f"v_mov_b32 v247, {sN}")
        a.i(f"v_mov_b32 v246, {WS_X}")
        a.i("s_mov_b32 s62, 0")
        a.i("s_mov_b64 exec, 1")
        a.i(f"buffer_store_dword v247, v246, {SRD_WS}, s62 offen sc1")
        a.i("s_mov_b64 exec, -1")
        a.label(Lnl)
        a.i(f"s_lshl_b32 s62, {sRB}, 1")
        a.i("s_add_u32 s63, s62, s82")
        a.i("s_xor_b32 s64, s82, 1")
        a.i("s_add_u32 s64, s62, s64")
        a.i("s_mul_i32 s85, s63, 40960")
        a.i("s_mul_i32 s86, s64, 40960")
        a.i(f"s_add_u32 s85, s85, {WS_O}")
        a.i(f"s_add_u32 s86, s86, {WS_O}")
        a.i("s_mul_i32 s93, s93, 5120")
        a.i("s_mul_i32 s94, s94, 5120")
        ol = {}
        H = lambda e, s: 120 + 8 * e + 4 * s
        for e in range(10):
            grp = "s93" if e < 5 else "s94"
            a.i(f"s_add_u32 s62, s85, {grp}")
            t0 = a.vmem(f"buffer_load_dwordx4 v[{H(e,0)}:{H(e,0)+3}], {self.B_L16}, {SRD_WS}, s62 offen offset:{(e%5)*1024 if (e%5) < 4 else 0} sc1") if (e % 5) < 4 else None
            if t0 is None:
                a.i("s_add_u32 s62, s62, 4096")
                t0 = a.vmem(f"buffer_load_dwordx4 v[{H(e,0)}:{H(e,0)+3}], {self.B_L16}, {SRD_WS}, s62 offen sc1")
            a.i(f"s_add_u32 s63, s86, {grp}")
            if (e % 5) < 4:
                t1 = a.vmem(f"buffer_load_dwordx4 v[{H(e,1)}:{H(e,1)+3}], {self.B_L16}, {SRD_WS}, s63 offen offset:{(e%5)*1024} sc1")
            else:
                a.i("s_add_u32 s63, s63, 4096")
                t1 = a.vmem(f"buffer_load_dwordx4 v[{H(e,1)}:{H(e,1)+3}], {self.B_L16}, {SRD_WS}, s63 offen sc1")
            ol[e] = [t0, t1]
        Wb = lambda e: 96 + 12 * (e % 2)
        rt = {0: rt0}
        for e in range(10):
            a.wait(lg=rt[e], vm=ol[e])
            def f0(e=e):
                if e + 1 < 10:
                    a.wait(vm=dm[e + 1])
                    rt[e + 1] = self.w3_reads((e + 1) % 9, Wb(e + 1), 0)
            def f1(e=e):
                if e + 1 < 10: rt[e + 1] += self.w3_reads((e + 1) % 9, Wb(e + 1), 1)
            self.five_mfma(Wb(e), H(e, 0), H(e, 1), e == 0, [f0, f1])
        self.stamp(11)
        self.reduce80(96, 12)
        self.stamp(12)
        a.i("s_mov_b32 s62, 0xffff0000")
        for e in range(5):
            x0, x1 = 220 + 2 * e, 221 + 2 * e
            a.i(f"v_lshlrev_b32 v16, 16, v{x0}")
            a.i(f"v_and_b32 v17, s62, v{x0}")
            a.i(f"v_lshlrev_b32 v18, 16, v{x1}")
            a.i(f"v_and_b32 v19, s62, v{x1}")
            for j in range(4): a.i(f"v_fma_f32 v{16+j}, v{96+4*e+j}, v{200+4*e+j}, v{16+j}")
            a.i(f"v_cvt_pk_bf16_f32 v{20+2*e}, v16, v17")
            a.i(f"v_cvt_pk_bf16_f32 v{21+2*e}, v18, v19")
            a.vmem(f"buffer_store_dwordx2 v[{20+2*e}:{21+2*e}], {self.vXO}, {SRD_OUT}, s{88+e} offen")

    def role_b(self):
        a = self.a
        a.label("L_ROLE_B")
        if self.o.get('noB'):
            a.i("s_waitcnt vmcnt(0)")
            a.i("s_branch L_END")
        Lf1 = a.newlabel("ffn1"); Lv = a.newlabel("vjob"); Lpf = a.newlabel("w1pf")
        a.i(f"s_and_b32 s62, {sCG}, 3")
        a.i("s_cmp_lg_u32 s62, 3")
        a.i(f"s_cbranch_scc1 {Lf1}")
        Lwait = a.newlabel("kvidle")
        a.i(f"s_cmp_ge_u32 {sWR}, 2")
        a.i(f"s_cbranch_scc1 {Lwait}")
        a.i("s_setprio 3")
        a.i(f"s_cmp_eq_u32 {sCG}, 7")
        a.i(f"s_cbranch_scc1 {Lv}")
        a.vm = []; a.lg = []
        self.kv_job(False)
        a.i(f"s_branch {Lwait}")
        a.label(Lv)
        a.vm = []; a.lg = []
        self.kv_job(True)
        a.label(Lwait)
        self.lds_spin_ge(C_KVD, 2, "v246", self.B_CR)
        a.label(Lpf)
        self.stamp(11, lvl=2)
        self.stamp(14)
        a.label(Lf1)
        a.i(f"s_setprio {self.o.get('prioB', 0)}")
        a.vm = []; a.lg = []
        bs = self.o.get('bstart', 'qiss')
        if bs == 'ring': self.lds_spin_ge(C_GO, 4, "v246", self.B_CR)
        if bs == 'q': self.lds_spin_ge(C_QDONE, 4, "v246", self.B_CR)
        if bs == 'qiss': self.lds_spin_ge(C_QISS, 4, "v246", self.B_CR)
        Lnop = a.newlabel("nopair"); Lhd = a.newlabel("hdone")
        a.i("s_cmp_eq_u32 s99, 0")
        a.i(f"s_cbranch_scc1 {Lnop}")
        self.w1tok = {ks: self.w1_dma(ks) for ks in range(4)}
        self.ffn1()
        a.i(f"s_branch {Lhd}")
        a.label(Lnop)
        self.lds_count(C_XND, self.B_CW, self.B_ONE)
        a.label(Lhd)
        a.vm = []; a.lg = []
        self.h_publish()
        self.stamp(4)
        self.ffn2()
        self.stamp(8)
        if self.o.get('dump') == 'g':
            self.dump_regs(200, 20, 0, self.B_L16)
        self.out_proj()
        a.i("s_waitcnt vmcnt(0)") if self.o.get('prof') else None
        self.stamp(13)
        self.stamp_flush()
        a.i("s_branch L_END")

    def build(self):
        a = self.a
        self.prologue()
        self.role_setup()
        a.i("s_waitcnt lgkmcnt(0)")
        a.i(f"s_add_u32 {sN}, {sN}, 1")
        a.vm = []; a.lg = []
        self.stamp(1)
        self.layernorm()
        self.stamp(2)
        if self.o.get('dump') == 'xn':
            self.dump_lds_xn()
        a.i(f"s_cmp_ge_u32 {sW}, 4")
        a.i("s_cbranch_scc1 L_ROLE_B")
        self.role_a()
        self.role_b()
        a.label("L_END")
        a.i("s_endpgm")

    def dump_lds_xn(self):
        a = self.a
        a.i("v_lshlrev_b32 v72, 4, v0")
        a.i(f"s_mul_i32 s70, {sW}, 10240")
        a.i("v_add_u32 v73, s70, v72")
        a.i("s_mul_i32 s71, s2, 81920")
        a.i("s_add_u32 s71, s71, s70")
        a.i(f"s_add_u32 s71, s71, {WS_DBG}")
        for g in range(10):
            a.i(f"ds_read_b128 v[76:79], v73 offset:{g*1024}")
            a.i("s_waitcnt lgkmcnt(0)")
            a.i(f"s_add_u32 s70, s71, {g*1024}")
            a.i(f"buffer_store_dwordx4 v[76:79], v72, {SRD_WS}, s70 offen")
            a.i("s_waitcnt vmcnt(0)")

    def emit(self):
        self.build()
        body = self.a.text()
        hdr = f"""; Fused LayerNorm + MQA attention + ReLU FFN + gated residual, one persistent workgroup per CU.
; @launch grid=(256,1,1) block=(512,1,1) lds={LDS_TOTAL}
.amdgcn_target "amdgcn-amd-amdhsa--gfx950"
.text
.globl {NAME}_kernel
.p2align 8
.type {NAME}_kernel,@function
{NAME}_kernel:
"""
        ftr = f""".section .rodata,"a"
.p2align 6
.amdhsa_kernel {NAME}_kernel
  .amdhsa_next_free_vgpr 256
  .amdhsa_next_free_sgpr 102
  .amdhsa_accum_offset 256
  .amdhsa_group_segment_fixed_size 0
  .amdhsa_kernarg_size 88
  .amdhsa_user_sgpr_count 2
  .amdhsa_user_sgpr_kernarg_segment_ptr 1
  .amdhsa_system_sgpr_workgroup_id_x 1
  .amdhsa_float_denorm_mode_32 3
.end_amdhsa_kernel
"""
        return hdr + body + ftr

    def hazards(self):
        ins = [t for k, t in self.a.lines if k == 'i']
        probs = check_hazards(ins, "linear")
        body = [t for k, t in self.a.lines[self.loop_start:self.loop_end] if k == 'i']
        probs += check_hazards(body[-40:] + body[:40], "att-backedge")
        return probs

if __name__ == "__main__":
    opt = {}
    out = None
    for arg in sys.argv[1:]:
        if "=" in arg:
            k, v = arg.split("=", 1); opt[k] = int(v) if v.lstrip('-').isdigit() else v
        else: out = arg
    g = Gen(opt)
    txt = g.emit()
    pr = g.hazards()
    for p in pr: print("HAZARD:", p)
    open(out or "k.s", "w").write(txt)
    n = sum(1 for k, t in g.a.lines if k == 'i')
    print(f"wrote {out or 'k.s'}: {n} instructions, {len(pr)} hazards")
```

```python
import sys, struct
from asmlib import Asm, check_hazards

NAME = "recurrent_scan__grouped_kv_mqa__dense_activation_relu__prompt"

XN    = 0
QST   = 81920
APRIV = 7168
NSQ   = 7
WKI   = 110592
BST   = 114176
BPRIV = 12288
NS1   = 6
AREG  = 118784
RSLOT = 11136
RSHARE = 2688
KVCH  = 12288
BREG  = 29696
CTRL  = 163328
LDS_TOTAL = 163840
VROW  = 352
VFR   = 2 * VROW
KV_KH = 4096
KV_V  = 5120
C_ARR, C_KVD, C_ABAR, C_QDONE, C_KVRDY, C_XND, C_HD, C_BBAR, C_OD, C_GO, C_HRDY, C_ORDY, C_KVS, C_QISS = [4 * i for i in range(14)]
CDUMMY = 128

WS_X    = 0
WS_FKV  = 0x1000
WS_FH   = 0x4000
WS_FO   = 0x6000
WS_KN   = 0x8000
WS_VN   = 0x8400
WS_KV   = 0x10000
WS_H    = 0x100000
WS_O    = 0x800000
WS_DBG  = 0xB00000
WS_PROF = 0x1300000
WS_END  = 0x1400000

QSCALE = 0.22360679774997896 * 1.4426950408889634

def f2u(x): return struct.unpack("<I", struct.pack("<f", x))[0]
def hx(x): return "0x%08x" % (x & 0xffffffff)

sW, sRB, sCG, sN, sWR = "s3", "s4", "s5", "s6", "s7"
SRD_X, SRD_WQ, SRD_WKV, SRD_WO, SRD_W1, SRD_W2, SRD_OUT, SRD_WS = [f"s[{8+4*i}:{11+4*i}]" for i in range(8)]
sDBG, sWSP = "s[58:59]", "s[60:61]"

SPIN_LDS = 400000
SPIN_GLB = 40000

class Gen:
    def __init__(self, opt):
        self.o = opt
        self.a = Asm()

    def vr(self, base, n): return f"v[{base}:{base+n-1}]"

    def lds_spin_ge(self, cnt_off, target, vtmp, vctlr, stmp="s62", sleep=1):
        a = self.a
        L = a.newlabel("spin"); Ld = a.newlabel("spind")
        a.i(f"s_mov_b32 {stmp}, 0")
        a.label(L)
        a.i(f"ds_read_b32 {vtmp}, {vctlr} offset:{cnt_off}")
        a.i("s_waitcnt lgkmcnt(0)")
        a.i(f"v_cmp_gt_u32 vcc, {target}, {vtmp}")
        a.i(f"s_cbranch_vccz {Ld}")
        a.i(f"s_add_u32 {stmp}, {stmp}, 1")
        a.i(f"s_cmp_lt_u32 {stmp}, {SPIN_LDS}")
        if sleep: a.i(f"s_sleep {sleep}")
        a.i(f"s_cbranch_scc1 {L}")
        a.label(Ld)
        a.lg = []

    def glb_poll(self, voff, soff, vtmp, stmp="s62", sleep=4):
        a = self.a
        L = a.newlabel("poll"); Ld = a.newlabel("polld")
        a.i(f"s_mov_b32 {stmp}, 0")
        a.label(L)
        a.i(f"buffer_load_dword {vtmp}, {voff}, {SRD_WS}, {soff} offen sc1")
        a.i("s_waitcnt vmcnt(0)")
        a.i(f"v_cmp_ne_u32 vcc, {sN}, {vtmp}")
        a.i(f"s_cbranch_vccz {Ld}")
        a.i(f"s_add_u32 {stmp}, {stmp}, 1")
        a.i(f"s_cmp_lt_u32 {stmp}, {SPIN_GLB}")
        a.i(f"s_sleep {sleep}")
        a.i(f"s_cbranch_scc1 {L}")
        a.label(Ld)
        a.vm = []

    def one_wave_poll(self, flag_base, rdy_off, pre=None, sleep=4):
        a = self.a
        Lw = a.newlabel("opw"); Lj = a.newlabel("opj")
        keep = list(a.vm)
        a.i(f"s_cmp_lg_u32 {sWR}, 0")
        a.i(f"s_cbranch_scc1 {Lw}")
        if pre: pre()
        a.i("v_and_b32 v246, 7, v0")
        a.i("v_lshlrev_b32 v246, 2, v246")
        a.i(f"s_lshl_b32 s63, {sRB}, 7")
        a.i(f"s_add_u32 s63, s63, {flag_base}")
        self.glb_poll("v246", "s63", "v247", sleep=sleep)
        a.i(f"ds_add_u32 {self.B_CW}, {self.B_ONE} offset:{rdy_off}")
        a.i(f"s_branch {Lj}")
        a.label(Lw)
        self.lds_spin_ge(rdy_off, 1, "v246", self.B_CR, sleep=2)
        a.label(Lj)
        a.i("s_waitcnt lgkmcnt(0)")
        a.vm = keep; a.lg = []

    def lds_count(self, cnt_off, vctlw, vone):
        return self.a.lds(f"ds_add_u32 {vctlw}, {vone} offset:{cnt_off}")

    def dump_regs(self, base, n, slot, vlane16, cond_wave=None):
        a = self.a
        a.i("s_lshl_b32 s70, s2, 3"); a.i(f"s_add_u32 s70, s70, {sW}")
        a.i("s_mul_i32 s70, s70, 0x4000")
        a.i(f"s_add_u32 s70, s70, {WS_DBG + 0x0}")
        for g in range(n // 4):
            a.i(f"s_add_u32 s71, s70, {(slot + g) * 1024}")
            a.i(f"buffer_store_dwordx4 v[{base+4*g}:{base+4*g+3}], {vlane16}, {SRD_WS}, s71 offen")
        a.i("s_waitcnt vmcnt(0)")
        a.vm = []

    def stamp(self, k, cyc=False, lvl=1):
        if self.o.get('prof') != lvl and not (k <= 2 and self.o.get('prof')): return
        a = self.a
        a.i("s_memtime s[56:57]" if cyc else "s_memrealtime s[56:57]")
        a.i("s_waitcnt lgkmcnt(0)")
        a.i(f"s_mov_b32 s{40+k}, s56")
        a.lg = []

    def stamp_flush(self):
        if not self.o.get('prof'): return
        a = self.a
        a.i("s_mov_b64 exec, 1")
        a.i("s_lshl_b32 s62, s2, 3")
        a.i(f"s_add_u32 s62, s62, {sW}")
        a.i("s_lshl_b32 s62, s62, 6")
        a.i(f"s_add_u32 s62, s62, {WS_PROF}")
        a.i("v_mov_b32 v1, 0")
        for g in range(4):
            for j in range(4): a.i(f"v_mov_b32 v{4+j}, s{40+4*g+j}")
            a.i(f"buffer_store_dwordx4 v[4:7], v1, {SRD_WS}, s62 offen offset:{16*g}")
            a.nop(2)
        a.i("s_mov_b64 exec, -1")

    def l2_prefetch(self, srd, total_bytes, ninstr, vtmp, vdst, sub_sgpr, nsub):
        a = self.a
        st = self.o.get('pfstride', 128)
        lines = total_bytes // st
        per_cu = -(-lines // 32); per_w = -(-per_cu // nsub); per_i = -(-per_w // ninstr)
        assert per_i <= 64, per_i
        a.i(f"s_lshr_b32 s62, {sRB}, 3")
        a.i(f"s_lshl_b32 s63, {sCG}, 2")
        a.i("s_add_u32 s62, s62, s63")
        a.i(f"s_mul_i32 s62, s62, {per_cu}")
        a.i(f"s_mul_i32 s63, {sub_sgpr}, {per_w}")
        a.i("s_add_u32 s62, s62, s63")
        a.i(f"v_min_u32 {vtmp}, {per_i - 1}, v0")
        a.i(f"v_add_u32 {vtmp}, s62, {vtmp}")
        a.i(f"v_mul_u32_u24 {vtmp}, {st}, {vtmp}")
        toks = []
        for i in range(ninstr):
            a.i(f"s_mov_b32 s63, {i * per_i * st}")
            toks.append(a.vmem(f"buffer_load_dword {vdst}, {vtmp}, {srd}, s63 offen"))
        return toks

    def prologue(self):
        a = self.a
        a.i("s_cmp_ge_u32 s2, 256")
        a.i("s_cbranch_scc1 L_END")
        if self.o.get('prof'): a.i("s_memrealtime s[94:95]")
        a.i("s_load_dwordx16 s[40:55], s[0:1], 0")
        a.i("s_load_dwordx4 s[56:59], s[0:1], 64")
        a.i("s_load_dwordx2 s[60:61], s[0:1], 80")
        a.i("v_lshrrev_b32 v1, 6, v0")
        a.i("v_and_b32 v0, 63, v0")
        a.i("s_and_b32 s62, s2, 1")
        a.i("s_lshl_b32 s62, s62, 2")
        a.i("s_bfe_u32 s63, s2, 0x20003")
        a.i(f"s_add_u32 {sCG}, s62, s63")
        a.i(f"v_readfirstlane_b32 {sW}, v1")
        a.i("s_bfe_u32 s62, s2, 0x20001")
        a.i("s_lshl_b32 s62, s62, 3")
        a.i("s_lshr_b32 s63, s2, 5")
        a.i(f"s_add_u32 {sRB}, s62, s63")
        a.i("v_lshrrev_b32 v2, 3, v0")
        a.i("v_and_b32 v3, 7, v0")
        a.i(f"s_and_b32 {sWR}, {sW}, 3")
        a.i(f"s_and_b32 s65, {sCG}, 1")
        a.i("s_lshl_b32 s65, s65, 2")
        a.i(f"s_xor_b32 s97, s65, {sW}")
        a.i("s_lshl_b32 s62, s97, 3")
        a.i(f"s_mul_i32 s98, {sRB}, 81920")
        a.i("v_add_u32 v4, s62, v2")
        a.i("v_mul_u32_u24 v4, 1280, v4")
        a.i("v_lshl_add_u32 v4, v3, 4, v4")
        a.i("s_waitcnt lgkmcnt(0)")
        def srd(base, lo, size):
            a.i(f"s_mov_b32 s{base}, s{lo}")
            a.i(f"s_mov_b32 s{base+1}, s{lo+1}")
            a.i(f"s_mov_b32 s{base+2}, {size}")
            a.i(f"s_mov_b32 s{base+3}, 0x20000")
        srd(8, 40, 2621440)
        a.i(f"s_load_dword {sN}, {sWSP}, {WS_X}")
        srd(12, 42, 819200)
        a.i(f"s_cmp_eq_u32 {sCG}, 7")
        a.i("s_cselect_b32 s16, s46, s44")
        a.i("s_cselect_b32 s17, s47, s45")
        a.i("s_mov_b32 s18, 25600")
        a.i("s_mov_b32 s19, 0x20000")
        srd(20, 48, 819200)
        srd(24, 52, 2211840)
        srd(28, 54, 2211840)
        srd(32, 56, 2621440)
        srd(36, 60, WS_END)
        for r in (200, 202, 230, 231, 253, 181, 215, 245, 220, 221, 222, 223, 224, 225, 226, 227, 228, 14, 15, 250): a.i(f"v_mov_b32 v{r}, 0")
        if self.o.get('prof'):
            for k in range(16): a.i(f"s_mov_b32 s{40+k}, 0")
            a.i("s_mov_b32 s55, s94")
        self.stamp(0)
        if self.o.get('span'):
            a.i("s_memrealtime s[90:91]")
            a.i("s_waitcnt lgkmcnt(0)")
            a.i("s_mov_b32 s101, s90")

    def layernorm(self):
        a = self.a
        a.i("v_lshrrev_b32 v5, 1, v3")
        a.i("v_lshlrev_b32 v5, 10, v5")
        a.i("v_and_b32 v6, 1, v3")
        a.i("v_lshlrev_b32 v6, 9, v6")
        a.i("v_xor_b32 v7, v2, v3")
        a.i("v_lshlrev_b32 v7, 4, v7")
        a.i("v_add3_u32 v5, v5, v6, v7")
        a.i("s_and_b32 s62, s97, 3")
        a.i("s_lshl_b32 s62, s62, 7")
        a.i("s_lshr_b32 s64, s97, 2")
        a.i("s_mul_i32 s64, s64, 40960")
        a.i("s_add_u32 s62, s62, s64")
        a.i("v_add_u32 v5, s62, v5")
        Lz = a.newlabel("nz")
        a.i(f"s_cmp_lg_u32 {sW}, 0")
        a.i(f"s_cbranch_scc1 {Lz}")
        a.i("v_lshlrev_b32 v6, 2, v0")
        a.i(f"v_add_u32 v6, {CTRL}, v6")
        a.i("v_mov_b32 v7, 0")
        a.i("ds_write_b32 v6, v7")
        a.label(Lz)
        a.i("s_mov_b32 s62, 0x3f803f80")
        a.i("s_mov_b32 s63, 0xffff0000")
        for k in range(4): a.i(f"v_mov_b32 v{64+k}, 0")
        a.nop(1)
        X = lambda j: f"v{16+j}"
        for j in range(40):
            a.i(f"v_dot2_f32_bf16 v{64+(j&1)}, {X(j)}, s62, v{64+(j&1)}")
            a.i(f"v_dot2_f32_bf16 v{66+(j&1)}, {X(j)}, {X(j)}, v{66+(j&1)}")
        a.nop(3)
        a.i("v_add_f32 v64, v64, v65")
        a.i("v_add_f32 v66, v66, v67")
        a.nop(1)
        for dpp in ("quad_perm:[1,0,3,2]", "quad_perm:[2,3,0,1]", "row_half_mirror"):
            a.i(f"v_add_f32_dpp v64, v64, v64 {dpp} row_mask:0xf bank_mask:0xf")
            a.i(f"v_add_f32_dpp v66, v66, v66 {dpp} row_mask:0xf bank_mask:0xf")
            a.nop(1)
        a.i(f"v_mul_f32 v64, {hx(f2u(1.0/640))}, v64")
        a.i(f"v_mul_f32 v66, {hx(f2u(1.0/640))}, v66")
        a.i("v_fma_f32 v66, -v64, v64, v66")
        a.i("v_max_f32 v66, 0, v66")
        a.i(f"v_add_f32 v66, {hx(f2u(1e-5))}, v66")
        a.i("v_rsq_f32 v68, v66")
        a.nop(1)
        a.i("v_mov_b32 v69, v68")
        a.i("v_mul_f32 v70, v64, v68")
        a.i("v_sub_f32 v70, 0, v70")
        a.i("v_mov_b32 v71, v70")
        self.stamp(3, lvl=2)
        self.role_prefetch()
        a.label("L_LN2")
        self.stamp(4, lvl=2)
        a.i("s_mov_b32 s63, 0xffff0000")
        for g in range(10):
            for d in range(4):
                j = 4 * g + d
                t = 56 + 2 * (j & 3)
                a.i(f"v_lshlrev_b32 v{t}, 16, {X(j)}")
                a.i(f"v_and_b32 v{t+1}, s63, {X(j)}")
            for d in range(4):
                j = 4 * g + d
                t = 56 + 2 * (j & 3)
                a.i(f"v_pk_fma_f32 v[{t}:{t+1}], v[{t}:{t+1}], v[68:69], v[70:71]")
            for d in range(4):
                j = 4 * g + d
                t = 56 + 2 * (j & 3)
                a.i(f"v_cvt_pk_bf16_f32 {X(j)}, v{t}, v{t+1}")
            a.i(f"ds_write_b128 v5, v[{16+4*g}:{19+4*g}] offset:{4096*g}")
        a.i("s_waitcnt lgkmcnt(0)")
        self.stamp(5, lvl=2)
        Lnw = a.newlabel("nw")
        a.i(f"s_cmp_lt_u32 {sW}, 4")
        a.i(f"s_cbranch_scc1 {Lnw}")
        a.i(f"s_and_b32 s62, {sCG}, 3")
        a.i("s_cmp_lg_u32 s62, 3")
        a.i(f"s_cbranch_scc1 {Lnw}")
        Lz2 = a.newlabel("nw0")
        a.i("s_cmp_eq_u32 s99, 0")
        a.i(f"s_cbranch_scc1 {Lz2}")
        a.i(f"s_waitcnt vmcnt({2*NS1})")
        a.i(f"s_branch {Lnw}")
        a.label(Lz2)
        a.i("s_waitcnt vmcnt(0)")
        a.label(Lnw)
        a.i("s_barrier")
        a.lg = []

    def xn_addr(self, vA, vB, vt0, vt1, phase_sgpr=None, base_sgpr=None, swap_sgpr=None):
        a = self.a
        a.i(f"v_and_b32 {vt0}, 31, v0")
        a.i(f"v_lshrrev_b32 {vt1}, 5, v0")
        for q in range(4):
            r = f"v{vA+q}"
            if phase_sgpr is None:
                a.i(f"v_add_u32 {r}, {2*q}, {vt1}")
            else:
                a.i(f"s_add_u32 s62, {phase_sgpr}, {q}")
                a.i("s_and_b32 s62, s62, 3")
                a.i("s_lshl_b32 s62, s62, 1")
                a.i(f"v_add_u32 {r}, s62, {vt1}")
            a.i(f"v_xor_b32 {r}, {r}, {vt0}")
            a.i(f"v_lshlrev_b32 {r}, 4, {r}")
            a.i(f"v_lshl_add_u32 {r}, {vt1}, 9, {r}")
            if base_sgpr is not None:
                a.i(f"v_add_u32 {r}, {base_sgpr}, {r}")
            if vB is not None: a.i(f"v_add_u32 v{vB+q}, 40960, {r}")

    WRAPS = (8, 12, 16, 20, 28, 32, 36)
    def rot_setup(self, stride, sK, sRot):
        a = self.a
        a.i(f"s_and_b32 s62, {sRB}, 7")
        a.i("s_lshr_b32 s63, s62, 2")
        a.i("s_add_u32 s62, s62, s63")
        a.i(f"s_lshl_b32 {sRot}, s62, 2")
        if not self.o.get('rot', 1): a.i(f"s_mov_b32 {sRot}, 0")
        a.i(f"s_mul_i32 {sK}, {sRot}, {stride}")
    def rot_next(self, stride, sK, ks=None):
        a = self.a
        a.i(f"s_add_u32 {sK}, {sK}, {stride}")
        if ks is None or (ks + 1) in self.WRAPS:
            a.i(f"s_cmp_eq_u32 {sK}, {40*stride}")
            a.i(f"s_cselect_b32 {sK}, 0, {sK}")
    def rot_xn_base(self, vA, vB, sRot):
        a = self.a
        a.i(f"s_lshl_b32 s62, {sRot}, 10")
        for q in range(4):
            a.i(f"v_add_u32 v{vA+q}, s62, v{vA+q}")
            a.i(f"v_add_u32 v{vB+q}, s62, v{vB+q}")
    def rot_xn_seg(self, vA, vB, sRot, ks):
        a = self.a
        if ks not in self.WRAPS: return
        L = a.newlabel("wrap")
        a.i(f"s_cmp_eq_u32 {sRot}, {40 - ks}")
        a.i(f"s_cbranch_scc0 {L}")
        for q in range(4):
            a.i(f"v_subrev_u32 v{vA+q}, 40960, v{vA+q}")
            a.i(f"v_subrev_u32 v{vB+q}, 40960, v{vB+q}")
        a.label(L)
    def seg_imm(self, ks):
        return ks * 1024

    def ctl_regs(self, vW, vR, vOne):
        a = self.a
        a.i(f"v_lshlrev_b32 {vW}, 2, v0")
        a.i(f"v_add_u32 {vW}, {CTRL + CDUMMY}, {vW}")
        a.i(f"v_mov_b32 {vR}, {CTRL}")
        a.i("v_cmp_eq_u32 vcc, 0, v0")
        a.i(f"v_mov_b32 {vOne}, 1")
        a.nop(1)
        a.i(f"v_cndmask_b32 {vW}, {vW}, {vR}, vcc")

    vDq, vTRq, vTRk = "v200", "v201", "v202"
    A_XA, A_XB = 204, 208
    A_CW, A_CR, A_ONE, A_L16 = "v212", "v213", "v214", "v215"
    A_JA, A_JB = 220, 224

    def wq_dma(self, ks):
        a = self.a
        a.i(f"s_add_u32 m0, s66, {(ks % NSQ) * 1024}")
        a.nop(1)
        t = a.vmem(f"buffer_load_dwordx4 {self.vDq}, {SRD_WQ}, s67 offen lds")
        self.rot_next(20480, "s67", ks)
        return t

    def a_setup_private(self):
        a = self.a
        a.i(f"s_mul_i32 s66, {sWR}, {APRIV}")
        a.i(f"s_add_u32 s66, s66, {QST}")

    def a_prefetch_q_addr(self):
        a = self.a
        a.i("v_lshrrev_b32 v216, 2, v0")
        a.i("v_mul_u32_u24 v216, 1280, v216")
        a.i("v_and_b32 v217, 3, v0")
        a.i("v_min_u32 v217, 2, v217")
        a.i(f"v_lshl_add_u32 {self.vDq}, v217, 4, v216")
        a.i(f"s_lshl_b32 s62, {sCG}, 2")
        a.i(f"s_add_u32 s62, s62, {sWR}")
        a.i("s_mul_i32 s62, s62, 40")
        a.i(f"s_cmp_eq_u32 {sWR}, 3")
        a.i("s_cselect_b32 s63, 8, 0")
        a.i("s_sub_u32 s62, s62, s63")
        a.i(f"v_add_u32 {self.vDq}, s62, {self.vDq}")

    def x_loads(self):
        a = self.a
        for i in range(10):
            a.i(f"buffer_load_dwordx4 v[{16+4*i}:{19+4*i}], v4, {SRD_X}, s98 offen offset:{128*i}")

    def role_setup(self):
        a = self.a
        a.i(f"s_cmp_ge_u32 {sW}, 4")
        a.i("s_cbranch_scc1 L_SET_B")
        self.x_loads()
        self.a_setup_private()
        self.a_prefetch_q_addr()
        self.rot_setup(20480, "s67", "s69")
        self.ctl_regs(self.A_CW, self.A_CR, self.A_ONE)
        a.i(f"v_lshlrev_b32 {self.A_L16}, 4, v0")
        self.xn_addr(self.A_XA, self.A_XB, "v216", "v217")
        self.rot_xn_base(self.A_XA, self.A_XB, "s69")
        a.i(f"s_cmp_eq_u32 {sWR}, 3")
        a.i("s_cselect_b32 s63, 8, 0")
        a.i("s_add_u32 s63, s63, s66")
        self.tr_addr_nat64(self.vTRq, "s63", 64)
        self.ring_addr()
        a.i(f"s_and_b32 s62, {sRB}, 7")
        a.i("s_mul_i32 s62, s62, 240")
        a.i(f"s_mul_i32 s63, {sWR}, 60")
        a.i("s_add_u32 s62, s62, s63")
        a.i("v_min_u32 v216, 59, v0")
        a.i("v_add_u32 v216, s62, v216")
        a.i("v_mul_u32_u24 v217, 0x5556, v216")
        a.i("v_lshrrev_b32 v217, 16, v217")
        a.i("v_mul_u32_u24 v218, 3, v217")
        a.i("v_sub_u32 v216, v216, v218")
        a.i("v_mul_u32_u24 v217, 1280, v217")
        a.i("v_lshl_add_u32 v202, v216, 7, v217")
        a.i(f"s_mul_i32 s62, {sCG}, 160")
        a.i("s_and_b32 s100, s62, 0xffffff80")
        a.i("s_branch L_SET_J")
        a.label("L_SET_B")
        a.i(f"s_mul_i32 s66, {sWR}, {BPRIV}")
        a.i(f"s_add_u32 s66, s66, {BST}")
        a.i(f"s_lshr_b32 s62, {sCG}, 2")
        a.i(f"s_sub_u32 s63, {sCG}, s62")
        a.i("s_lshl_b32 s63, s63, 2")
        a.i(f"s_add_u32 s68, s63, {sWR}")
        a.i("s_mov_b32 s99, 1")
        a.i(f"s_and_b32 s63, {sCG}, 3")
        a.i("s_cmp_lg_u32 s63, 3")
        Lp = a.newlabel("pair")
        a.i(f"s_cbranch_scc1 {Lp}")
        a.i("s_lshl_b32 s62, s62, 1")
        a.i(f"s_add_u32 s68, s62, {sWR}")
        a.i("s_add_u32 s68, s68, 22")
        a.i(f"s_cmp_ge_u32 {sWR}, 2")
        a.i("s_cselect_b32 s99, 1, 0")
        a.i("s_cmp_ge_u32 s68, 27")
        a.i("s_cselect_b32 s99, 0, s99")
        a.i("s_cselect_b32 s68, 0, s68")
        a.label(Lp)
        a.i("s_lshl_b32 s68, s68, 1")
        a.i("s_lshl_b32 s62, s68, 6")
        self.pair_dma_addr(self.vD1a, self.vD1b, 3456, "s62")
        self.ctl_regs(self.B_CW, self.B_CR, self.B_ONE)
        a.i(f"v_lshlrev_b32 {self.B_L16}, 4, v0")
        self.rot_setup(16 * 3456, "s67", "s69")
        self.xn_addr(self.B_XA, self.B_XB, "v246", "v247")
        self.rot_xn_base(self.B_XA, self.B_XB, "s69")
        self.pair_tr_addr(self.vTRa, self.vTRb, 8, "s66")
        self.out_tiles_setup()
        self.out_mixed_addr()
        self.ffn2_addr()
        a.i(f"s_and_b32 s64, {sRB}, 7")
        a.i("s_mul_i32 s62, s64, 80")
        a.i("v_min_u32 v246, 39, v0")
        a.i("v_add_u32 v246, s62, v246")
        a.i("v_mul_u32_u24 v246, 3456, v246")
        a.i("s_lshl_b32 s62, s68, 6")
        a.i("v_add_u32 v226, s62, v246")
        a.i("s_mul_i32 s62, s64, 54")
        a.i(f"s_mul_i32 s63, {sWR}, 432")
        a.i("s_add_u32 s62, s62, s63")
        a.i("v_min_u32 v246, 53, v0")
        a.i("v_add_u32 v246, s62, v246")
        a.i("v_mul_u32_u24 v227, 1280, v246")
        a.i("s_mul_i32 s62, s64, 20")
        a.i(f"s_mul_i32 s63, {sWR}, 160")
        a.i("s_add_u32 s62, s62, s63")
        a.i("v_min_u32 v246, 39, v0")
        a.i("v_cmp_gt_u32 vcc, 20, v246")
        a.i("v_subrev_u32 v247, 20, v246")
        a.i("v_mov_b32 v248, s81")
        a.i("v_mov_b32 v249, s80")
        a.i("v_cndmask_b32 v246, v247, v246, vcc")
        a.i("v_cndmask_b32 v248, v248, v249, vcc")
        a.i("v_add_u32 v246, s62, v246")
        a.i("v_mul_u32_u24 v246, 1280, v246")
        a.i("v_add_u32 v228, v246, v248")
        a.i(f"s_mov_b32 s62, {WKI}")
        self.tr_addr_nat64(self.B_TRK, "s62", 40, "v246", "v247")
        a.i(f"s_and_b32 s64, {sWR}, 1")
        a.i("s_mul_i32 s64, s64, 40960")
        self.xn_addr(self.B_JA, None, "v246", "v247", base_sgpr="s64")
        a.i("v_lshlrev_b32 v253, 4, v0")
        a.i(f"s_mul_i32 s62, {sWR}, 6400")
        a.i("v_add_u32 v253, s62, v253")
        self.x_loads()
        a.i(f"s_and_b32 s64, {sCG}, 3")
        a.i("s_cmp_lg_u32 s64, 3")
        a.i("s_cbranch_scc1 L_SET_J")
        a.i(f"s_add_u32 s63, s62, {WKI}")
        a.i("s_mov_b32 m0, s63")
        a.i("s_mov_b32 s62, 0")
        for j in range(4):
            a.i(f"buffer_load_dwordx4 v253, {SRD_WKV}, s62 offen offset:{1024*j} lds")
        a.i("s_add_u32 m0, s63, 4096")
        a.i("s_mov_b32 s62, 4096")
        for j in range(3):
            a.i(f"buffer_load_dwordx4 v253, {SRD_WKV}, s62 offen offset:{1024*j} lds")
        a.i("s_waitcnt vmcnt(7)")
        a.i("s_branch L_SET_X")
        a.label("L_SET_J")
        a.i("s_waitcnt vmcnt(0)")
        a.label("L_SET_X")

    def role_prefetch(self):
        a = self.a
        Lb = a.newlabel("pfb")
        a.i(f"s_cmp_ge_u32 {sW}, 4")
        a.i(f"s_cbranch_scc1 {Lb}")
        a.vm = []
        self.qtok = [self.wq_dma(ks) for ks in range(NSQ)]
        a.i("s_branch L_LN2")
        a.label(Lb)
        a.i("s_cmp_eq_u32 s99, 0")
        a.i("s_cbranch_scc1 L_LN2")
        a.vm = []
        self.w1tok = {ks: self.w1_dma(ks) for ks in range(NS1)}

    def tr_addr_nat64(self, vdst, base_sgpr, pitch, t0="v216", t1="v217"):
        a = self.a
        a.i(f"v_lshrrev_b32 {t0}, 5, v0")
        a.i(f"v_lshlrev_b32 {t0}, 3, {t0}")
        a.i(f"v_bfe_u32 {t1}, v0, 2, 2")
        a.i(f"v_add_u32 {t0}, {t0}, {t1}")
        a.i(f"v_mul_u32_u24 {t0}, {pitch}, {t0}")
        a.i(f"v_bfe_u32 {t1}, v0, 4, 1")
        a.i(f"v_lshl_add_u32 {t0}, {t1}, 5, {t0}")
        a.i(f"v_and_b32 {t1}, 3, v0")
        a.i(f"v_lshl_add_u32 {t0}, {t1}, 3, {t0}")
        a.i(f"v_add_u32 {vdst}, {base_sgpr}, {t0}")

    def wave_max(self, regs):
        a = self.a
        for dpp in ("row_shr:1 row_mask:0xf", "row_shr:2 row_mask:0xf", "row_shr:4 row_mask:0xf", "row_shr:8 row_mask:0xf",
                    "row_bcast:15 row_mask:0xa", "row_bcast:31 row_mask:0xc"):
            a.nop(2 if len(regs) == 1 else (1 if len(regs) == 2 else 0))
            for r in regs:
                a.i(f"v_max_f32_dpp {r}, {r}, {r} {dpp} bank_mask:0xf")
        a.nop(1)

    def kv_job(self, isV):
        a = self.a
        a.c("---- K/V projection job: B waves 0/1 = m-tile, full K ----")
        D = 16
        def fr(kk): return 48 + 8 * (kk % 4)
        toks = {}
        def reads(kk):
            b = fr(kk); t = []
            t.append(a.lds(f"ds_read_b64_tr_b16 v[{b}:{b+1}], {self.B_TRK} offset:{kk*640}"))
            t.append(a.lds(f"ds_read_b64_tr_b16 v[{b+2}:{b+3}], {self.B_TRK} offset:{kk*640+160}"))
            t.append(a.lds(f"ds_read_b128 v[{b+4}:{b+7}], v{self.B_JA + kk % 4} offset:{kk*1024}"))
            toks[kk] = t
        for kk in range(3): reads(kk)
        for kk in range(40):
            a.wait(lg=toks[kk])
            b = fr(kk)
            W = f"v[{b}:{b+3}]"; X = f"v[{b+4}:{b+7}]"
            C = "0" if kk == 0 else f"v[{D}:{D+15}]"
            if isV: a.i(f"v_mfma_f32_32x32x16_bf16 v[{D}:{D+15}], {X}, {W}, {C}")
            else:   a.i(f"v_mfma_f32_32x32x16_bf16 v[{D}:{D+15}], {W}, {X}, {C}")
            if kk + 3 < 40: reads(kk + 3)
        self.stamp(7, lvl=2)
        a.i(f"s_lshr_b32 s62, {sRB}, 1")
        a.i(f"s_mul_i32 s62, s62, {KVCH}")
        a.i(f"s_add_u32 s62, s62, {WS_KV}")
        a.i(f"s_and_b32 s63, {sRB}, 1")
        a.i("s_lshl_b32 s65, s63, 1")
        a.i(f"s_add_u32 s65, s65, {sWR}")
        a.i("v_and_b32 v93, 31, v0")
        a.i("v_lshrrev_b32 v95, 5, v0")
        if not isV:
            a.i("s_lshl_b32 s64, s65, 10")
            a.i("s_add_u32 s64, s62, s64")
            a.i("s_lshl_b32 s63, s63, 9")
            a.i("s_add_u32 s62, s62, s63")
            a.i(f"s_lshl_b32 s63, {sWR}, 3")
            a.i("s_add_u32 s62, s62, s63")
            a.i(f"s_add_u32 s62, s62, {KV_KH}")
            a.i("v_cmp_gt_u32 vcc, 32, v0")
            a.nop(2)
            for j in range(6): a.i(f"v_cvt_pk_bf16_f32 v{88+j if j < 4 else 96+j-4}, v{D+2*j}, v{D+2*j+1}")
            a.vmem(f"buffer_store_dwordx4 v[88:91], {self.B_L16}, {SRD_WS}, s64 offen sc1")
            a.i("s_mov_b32 exec_lo, -1"); a.i("s_mov_b32 exec_hi, 0")
            a.vmem(f"buffer_store_dwordx2 v[96:97], {self.B_L16}, {SRD_WS}, s62 offen sc1")
            a.i("s_mov_b64 exec, -1")
            a.i(f"v_mul_f32 v92, v{D+8}, v{D+8}")
            for j in range(9, 12): a.i(f"v_fmac_f32 v92, v{D+j}, v{D+j}")
            a.nop(1)
            a.i("v_cndmask_b32 v92, 0, v92, vcc")
            for j in range(8): a.i(f"v_fmac_f32 v92, v{D+j}, v{D+j}")
            a.i("v_mov_b32 v93, v92")
            a.nop(2)
            a.i("v_permlane32_swap_b32 v92, v93")
            a.nop(1)
            a.i("v_add_f32 v92, v92, v93")
            norm_base = WS_KN
        else:
            a.i(f"v_mul_u32_u24 v95, {VROW}, v95")
            a.i("v_lshl_add_u32 v95, v93, 4, v95")
            a.i("s_lshl_b32 s65, s65, 1")
            a.i(f"s_mul_i32 s65, s65, {VFR}")
            a.i("s_add_u32 s62, s62, s65")
            a.i(f"s_add_u32 s62, s62, {KV_V}")
            a.i("v_cmp_eq_u32 vcc, 20, v93")
            a.i("v_cmp_eq_u32 s[64:65], 21, v93")
            a.i("v_mov_b32 v94, 0x3f803f80")
            a.i("v_mov_b32 v98, 0")
            for j in range(8): a.i(f"v_cvt_pk_bf16_f32 v{80+j}, v{D+2*j}, v{D+2*j+1}")
            for j in range(8): a.i(f"v_cndmask_b32 v{80+j}, v{80+j}, v94, vcc")
            for j in range(8): a.i(f"v_cndmask_b32 v{80+j}, v{80+j}, v98, s[64:65]")
            a.i("s_mov_b32 exec_lo, 0x3fffff")
            a.i("s_mov_b32 exec_hi, 0x3fffff")
            a.vmem(f"buffer_store_dwordx4 v[80:83], v95, {SRD_WS}, s62 offen sc1")
            a.vmem(f"buffer_store_dwordx4 v[84:87], v95, {SRD_WS}, s62 offen offset:{VFR} sc1")
            a.i("s_mov_b64 exec, -1")
            a.i(f"v_max3_f32 v92, abs(v{D}), abs(v{D+1}), abs(v{D+2})")
            for j in range(3, 15, 2): a.i(f"v_max3_f32 v92, v92, abs(v{D+j}), abs(v{D+j+1})")
            a.i(f"v_max3_f32 v92, v92, abs(v{D+15}), abs(v{D+15})")
            a.i("v_cmp_gt_u32 vcc, 20, v93")
            a.nop(2)
            a.i("v_cndmask_b32 v92, 0, v92, vcc")
            norm_base = WS_VN
        self.stamp(9, lvl=2)
        self.wave_max(["v92"])
        a.i("v_readlane_b32 s63, v92, 63")
        a.i(f"s_lshl_b32 s62, {sRB}, 1")
        a.i(f"s_add_u32 s62, s62, {sWR}")
        a.i("s_lshl_b32 s62, s62, 2")
        a.i(f"s_add_u32 s62, s62, {norm_base}")
        a.i("v_mov_b32 v92, s63")
        a.i("v_mov_b32 v93, 0")
        a.i("s_mov_b64 exec, 1")
        a.vmem(f"buffer_store_dword v92, v93, {SRD_WS}, s62 offen sc1")
        a.i("s_mov_b64 exec, -1")
        a.wait(vm='all')
        self.stamp(10, lvl=2)
        a.lds(f"ds_add_rtn_u32 v248, {self.B_CW}, {self.B_ONE} offset:{C_KVD}")
        a.wait(lg='all')
        a.i("v_readfirstlane_b32 s62, v248")
        Lnf = a.newlabel("kvnf")
        a.nop(1)
        a.i("s_cmp_lg_u32 s62, 1")
        a.i(f"s_cbranch_scc1 {Lnf}")
        a.i("v_lshlrev_b32 v92, 8, v0")
        a.i(f"v_mov_b32 v93, {sN}")
        a.i(f"s_lshl_b32 s62, {sRB}, 1")
        a.i(f"s_add_u32 s62, s62, {1 if isV else 0}")
        a.i("s_lshl_b32 s62, s62, 2")
        a.i(f"s_add_u32 s62, s62, {WS_FKV}")
        a.i("s_mov_b32 exec_lo, -1"); a.i("s_mov_b32 exec_hi, 0")
        a.i(f"buffer_store_dword v93, v92, {SRD_WS}, s62 offen sc1")
        a.i("s_mov_b64 exec, -1")
        a.label(Lnf)
        a.vm = []

    def q_proj(self):
        a = self.a
        a.c("---- Q projection (transposed): wave = head, both m-tiles ----")
        NS = NSQ
        dt = self.qtok
        a.vm = list(dt); a.lg = []
        B = lambda ks: 48 + 12 * (ks % 3)
        dm = {k: dt[k] for k in range(NS)}
        toks = {}
        def reads(ks):
            a.wait(vm=dm[ks])
            b = B(ks); sl = (ks % NS) * 1024; t = []
            t.append(a.lds(f"ds_read_b64_tr_b16 v[{b}:{b+1}], {self.vTRq} offset:{sl}"))
            t.append(a.lds(f"ds_read_b64_tr_b16 v[{b+2}:{b+3}], {self.vTRq} offset:{sl+256}"))
            self.rot_xn_seg(self.A_XA, self.A_XB, "s69", ks)
            t.append(a.lds(f"ds_read_b128 v[{b+4}:{b+7}], v{self.A_XA + ks % 4} offset:{self.seg_imm(ks)}"))
            t.append(a.lds(f"ds_read_b128 v[{b+8}:{b+11}], v{self.A_XB + ks % 4} offset:{self.seg_imm(ks)}"))
            toks[ks] = t
        reads(0); reads(1)
        for ks in range(40):
            if ks in (0, 10, 20, 30): self.stamp(6 + ks // 10, lvl=2)
            a.wait(lg=toks[ks])
            b = B(ks)
            C = "0" if ks == 0 else "v[16:31]"
            a.i(f"v_mfma_f32_32x32x16_bf16 v[16:31], v[{b}:{b+3}], v[{b+4}:{b+7}], {C}")
            if ks + 2 < 40: reads(ks + 2)
            C = "0" if ks == 0 else "v[32:47]"
            a.i(f"v_mfma_f32_32x32x16_bf16 v[32:47], v[{b}:{b+3}], v[{b+8}:{b+11}], {C}")
            if ks + NS < 40: dm[ks + NS] = self.wq_dma(ks + NS)
        self.lds_count(C_XND, self.A_CW, self.A_ONE)

    S_ = {'a': 16, 'b': 32}; O_ = {'a': 48, 'b': 64}; P_ = {'a': 80, 'b': 88}; C_ = {'a': 96, 'b': 112}
    QL = {'a': 128, 'b': 132}; QH = {'a': 136, 'b': 138}
    KL = [140, 144]; KH = [148, 152]; VV = [156, 164]
    vKL, vKH, vV, vCnt, vDkv = "v172", "v173", "v174", "v180", "v181"
    N2 = {'a': "v182", 'b': "v183"}

    def q_epilogue(self):
        a = self.a
        a.c("---- Q epilogue: scale, pack to bf16 B operands, squared norms ----")
        a.i("v_cmp_gt_u32 vcc, 32, v0")
        a.i(f"v_mov_b32 v216, {hx(f2u(QSCALE))}")
        a.i("v_mov_b32 v217, 0")
        a.nop(7)
        a.i("v_cndmask_b32 v217, v217, v216, vcc")
        for u, D in (('a', 16), ('b', 32)):
            for j in range(8): a.i(f"v_mul_f32 v{D+j}, v216, v{D+j}")
            for j in range(8, 12): a.i(f"v_mul_f32 v{D+j}, v217, v{D+j}")
            for j in range(4): a.i(f"v_cvt_pk_bf16_f32 v{self.QL[u]+j}, v{D+2*j}, v{D+2*j+1}")
            for j in range(2): a.i(f"v_cvt_pk_bf16_f32 v{self.QH[u]+j}, v{D+8+2*j}, v{D+9+2*j}")
            n = self.N2[u]
            a.i(f"v_mul_f32 {n}, v{D}, v{D}")
            for j in range(1, 12): a.i(f"v_fmac_f32 {n}, v{D+j}, v{D+j}")
        for u in "ab":
            a.i(f"v_mov_b32 v{218 if u=='a' else 219}, {self.N2[u]}")
        a.nop(1)
        a.i(f"v_permlane32_swap_b32 {self.N2['a']}, v218")
        a.i(f"v_permlane32_swap_b32 {self.N2['b']}, v219")
        a.nop(1)
        a.i(f"v_add_f32 {self.N2['a']}, {self.N2['a']}, v218")
        a.i(f"v_add_f32 {self.N2['b']}, {self.N2['b']}, v219")

    def qk(self, u, kl, kh, dst=None):
        S = self.S_[u] if dst is None else dst
        C = self.C_[u]
        m0 = f"v_mfma_f32_32x32x16_bf16 v[{S}:{S+15}], v[{kl}:{kl+3}], v[{self.QL[u]}:{self.QL[u]+3}], v[{C}:{C+15}]"
        m1 = f"v_mfma_f32_32x32x8_bf16 v[{S}:{S+15}], v[{kh}:{kh+1}], v[{self.QH[u]}:{self.QH[u]+1}], v[{S}:{S+15}]"
        return m0, m1
    def pv(self, u, vv):
        O = self.O_[u]; P = self.P_[u]
        m0 = f"v_mfma_f32_32x32x16_bf16 v[{O}:{O+15}], v[{vv}:{vv+3}], v[{P}:{P+3}], v[{O}:{O+15}]"
        m1 = f"v_mfma_f32_32x32x16_bf16 v[{O}:{O+15}], v[{vv+4}:{vv+7}], v[{P+4}:{P+7}], v[{O}:{O+15}]"
        return m0, m1

    def ring_addr(self):
        a = self.a
        a.i(f"v_add_u32 {self.vKL}, {AREG}, {self.A_L16}")
        a.i("v_and_b32 v216, 31, v0")
        a.i(f"v_lshlrev_b32 {self.vKH}, 4, v216")
        a.i(f"v_add_u32 {self.vKH}, {AREG + KV_KH}, {self.vKH}")
        a.i("v_min_u32 v217, 21, v216")
        a.i("v_cmp_eq_u32 vcc, 24, v216")
        a.i("v_lshrrev_b32 v219, 5, v0")
        a.i(f"v_mul_u32_u24 v219, {VROW}, v219")
        a.i("v_mov_b32 v218, 20")
        a.i("v_cndmask_b32 v217, v217, v218, vcc")
        a.i("v_lshl_add_u32 v217, v217, 4, v219")
        a.i(f"v_add_u32 {self.vV}, {AREG + KV_V}, v217")
        a.i(f"s_mul_i32 s62, {sWR}, {RSHARE}")
        a.i(f"v_add_u32 {self.vDkv}, s62, {self.A_L16}")
        a.i(f"s_add_u32 s72, s62, {AREG}")
        a.i("s_bfe_u32 s62, s2, 0x40003")
        if not self.o.get('rot', 1): a.i("s_mov_b32 s62, 0")
        a.i(f"s_mul_i32 s79, s62, {KVCH}")
        a.i(f"s_add_u32 s79, s79, {WS_KV}")

    def ring_dma(self, slot):
        a = self.a
        a.i(f"s_add_u32 m0, s72, {slot*RSLOT}")
        a.i(f"s_add_u32 s73, s79, {KVCH}")
        t = [a.vmem(f"buffer_load_dwordx4 {self.vDkv}, {SRD_WS}, s79 offen offset:{1024*j} sc1 lds") for j in range(3)]
        a.i(f"s_cmp_eq_u32 s73, {WS_KV + 16*KVCH}")
        a.i(f"s_cselect_b32 s79, {WS_KV}, s73")
        return t

    def att_init_regs(self):
        a = self.a
        for r in list(range(48, 80)) + list(range(88, 96)) + list(range(self.VV[1], self.VV[1] + 8)):
            a.i(f"v_mov_b32 v{r}, 0")

    def kv_wait(self):
        a = self.a
        a.c("---- wait for K/V of all row blocks ----")
        Lw = a.newlabel("kvw"); Lj = a.newlabel("kvj")
        a.i(f"s_cmp_lg_u32 {sWR}, 0")
        a.i(f"s_cbranch_scc1 {Lw}")
        a.i("v_lshlrev_b32 v216, 2, v0")
        a.i(f"s_lshl_b32 s63, {sRB}, 8")
        a.i(f"s_add_u32 s63, s63, {WS_FKV}")
        self.glb_poll("v216", "s63", "v217", sleep=2)
        a.i(f"ds_add_u32 {self.A_CW}, {self.A_ONE} offset:{C_KVRDY}")
        a.i(f"s_branch {Lj}")
        a.label(Lw)
        self.lds_spin_ge(C_KVRDY, 1, "v218", self.A_CR, sleep=0)
        a.label(Lj)
        a.lg = []; a.vm = []
        a.i("s_waitcnt lgkmcnt(0)")

    def shift_setup(self):
        a = self.a
        a.c("---- softmax shift ----")
        a.i("v_lshlrev_b32 v216, 2, v0")
        a.i(f"s_mov_b32 s62, {WS_KN}")
        t1 = a.vmem(f"buffer_load_dword v184, v216, {SRD_WS}, s62 offen sc1")
        a.i(f"s_mov_b32 s63, {WS_VN}")
        t2 = a.vmem(f"buffer_load_dword v186, v216, {SRD_WS}, s63 offen sc1")
        a.wait(vm=[t1, t2])
        self.wave_max(["v184", "v186"])
        a.i("v_readlane_b32 s62, v184, 63")
        a.i("v_readlane_b32 s64, v186, 63")
        a.nop(1)
        a.i("v_mov_b32 v184, s62")
        a.i("v_mov_b32 v186, s64")
        a.i("v_max_f32 v186, 1.0, v186")
        a.i("v_log_f32 v186, v186")
        a.i(f"v_mov_b32 v185, {hx(f2u(56.5))}")
        for u in "ab":
            n = self.N2[u]
            a.i(f"v_mul_f32 {n}, {n}, v184")
        a.i("v_fma_f32 v186, v186, -0.5, v185")
        for u in "ab": a.i(f"v_sqrt_f32 {self.N2[u]}, {self.N2[u]}")
        a.nop(1)
        for u in "ab": a.i(f"v_mul_f32 {self.N2[u]}, {hx(f2u(1.02))}, {self.N2[u]}")
        a.i(f"v_cmp_nle_f32 vcc, {self.N2['a']}, v186")
        a.i(f"v_cmp_nle_f32 s[64:65], {self.N2['b']}, v186")
        a.nop(1)
        a.i("s_or_b64 vcc, vcc, s[64:65]")
        if self.o.get('force_fallback'): a.i("s_mov_b64 vcc, -1")
        Lsafe = a.newlabel("safe")
        a.i(f"s_cbranch_vccz {Lsafe}")
        self.true_max_pass()
        a.label(Lsafe)
        for u in "ab":
            for j in range(16): a.i(f"v_mov_b32 v{self.C_[u]+j}, {self.N2[u]}")
        self.lds_spin_ge(C_XND, 8, "v218", self.A_CR, sleep=0)
        pre = [self.ring_dma(c) for c in range(3)]
        return pre

    def true_max_pass(self):
        a = self.a
        a.c("---- fallback: true row max ----")
        for u in "ab":
            for j in range(16): a.i(f"v_mov_b32 v{self.C_[u]+j}, 0")
            a.i(f"v_mov_b32 {self.N2[u]}, 0xff800000")
        a.i("v_and_b32 v216, 31, v0")
        a.i("v_lshlrev_b32 v216, 4, v216")
        a.i("s_mov_b32 s64, 0")
        L = a.newlabel("tm")
        a.label(L)
        a.i("s_lshr_b32 s62, s64, 2")
        a.i(f"s_mul_i32 s62, s62, {KVCH}")
        a.i(f"s_add_u32 s62, s62, {WS_KV}")
        a.i("s_and_b32 s63, s64, 3")
        a.i("s_lshl_b32 s65, s63, 10")
        a.i("s_add_u32 s65, s65, s62")
        a.i(f"buffer_load_dwordx4 v[{self.KL[0]}:{self.KL[0]+3}], {self.A_L16}, {SRD_WS}, s65 offen sc1")
        a.i("s_lshr_b32 s65, s63, 1")
        a.i("s_lshl_b32 s65, s65, 9")
        a.i("s_and_b32 s63, s63, 1")
        a.i("s_lshl_b32 s63, s63, 3")
        a.i("s_add_u32 s65, s65, s63")
        a.i("s_add_u32 s65, s65, s62")
        a.i("s_add_u32 s65, s65, 4096")
        a.i(f"buffer_load_dwordx2 v[{self.KH[0]}:{self.KH[0]+1}], v216, {SRD_WS}, s65 offen sc1")
        a.i("s_waitcnt vmcnt(0)")
        for u in "ab":
            for m in self.qk(u, self.KL[0], self.KH[0]): a.i(m)
        a.nop(12)
        for u in "ab":
            S = self.S_[u]
            for j in range(8): a.i(f"v_max3_f32 {self.N2[u]}, {self.N2[u]}, v{S+2*j}, v{S+2*j+1}")
        a.i("s_add_u32 s64, s64, 1")
        a.i("s_cmp_lt_u32 s64, 64")
        a.i(f"s_cbranch_scc1 {L}")
        a.i(f"v_mov_b32 v218, {self.N2['a']}")
        a.i(f"v_mov_b32 v219, {self.N2['b']}")
        a.nop(1)
        a.i(f"v_permlane32_swap_b32 {self.N2['a']}, v218")
        a.i(f"v_permlane32_swap_b32 {self.N2['b']}, v219")
        a.nop(1)
        a.i(f"v_max_f32 {self.N2['a']}, {self.N2['a']}, v218")
        a.i(f"v_max_f32 {self.N2['b']}, {self.N2['b']}, v219")
        a.i(f"v_sub_f32 {self.N2['a']}, 0, {self.N2['a']}")
        a.i(f"v_sub_f32 {self.N2['b']}, 0, {self.N2['b']}")

    def attention(self, pre):
        a = self.a
        a.c("---- attention main loop ----")
        a.wait(vm=pre[0])
        a.lds(f"ds_add_u32 {self.A_CW}, {self.A_ONE} offset:{C_ARR}")
        self.lds_spin_ge(C_ARR, 4, self.vCnt, self.A_CR, sleep=0)
        a.i("s_mov_b32 s74, 0")
        a.i("s_mov_b32 s78, 8")
        a.lds(f"ds_read_b128 v[{self.KL[0]}:{self.KL[0]+3}], {self.vKL}")
        a.lds(f"ds_read_b128 v[{self.KH[0]}:{self.KH[0]+3}], {self.vKH}")
        a.wait(lg='all')
        for m in self.qk('a', self.KL[0], self.KH[0]): a.i(m)
        a.nop(9)
        self.stamp(7)
        self.stamp(10, True)
        L = "L_ATT"
        a.raw(".p2align 6")
        a.label(L)
        self.loop_start = len(a.lines)
        def egroup(u, k):
            S = self.S_[u]; P = self.P_[u]
            for e in range(4): a.i(f"v_exp_f32 v{S+4*k+e}, v{S+4*k+e}")
            a.i(f"v_cvt_pk_bf16_f32 v{P+2*k}, v{S+4*k}, v{S+4*k+1}")
            a.i(f"v_cvt_pk_bf16_f32 v{P+2*k+1}, v{S+4*k+2}, v{S+4*k+3}")
        for slot in range(4):
            base = slot * RSLOT; nbase = ((slot + 1) % 4) * RSLOT
            a.vm = []; a.lg = []
            if self.o.get('prof') == 3:
                a.i("s_memtime s[90:91]"); a.i("s_waitcnt lgkmcnt(0)")
            a.i("s_waitcnt vmcnt(3)")
            if self.o.get('prof') == 3:
                a.i("s_memtime s[92:93]"); a.i("s_waitcnt lgkmcnt(0)")
                a.i("s_sub_u32 s92, s92, s90"); a.i("s_add_u32 s44, s44, s92")
            a.lds(f"ds_add_u32 {self.A_CW}, {self.A_ONE} offset:{C_ARR}")
            for t in range(4):
                kh = self.KH[(t >> 1) % 2] + 2 * (t & 1)
                q0, q1 = self.qk('b', self.KL[t % 2], kh)
                p0, p1 = self.pv('b', self.VV[(t - 1) % 2])
                rd = []
                kn = self.KL[(t + 1) % 2]
                rd.append(('K', f"ds_read_b128 v[{kn}:{kn+3}], {self.vKL} offset:{base + (t+1)*1024 if t < 3 else nbase}"))
                if t & 1:
                    hn = self.KH[((t + 1) >> 1) % 2]
                    rd.append(('K', f"ds_read_b128 v[{hn}:{hn+3}], {self.vKH} offset:{base + 512 if t < 3 else nbase}"))
                vv = self.VV[t % 2]
                rd.append(('V', f"ds_read_b128 v[{vv}:{vv+3}], {self.vV} offset:{base + (2*t)*VFR}"))
                rd.append(('V', f"ds_read_b128 v[{vv+4}:{vv+7}], {self.vV} offset:{base + (2*t+1)*VFR}"))
                ktok, vtok = [], []
                for k, m in enumerate((q0, q1, p0, p1)):
                    a.i(m)
                    if k < len(rd):
                        tk = a.lds(rd[k][1]); (ktok if rd[k][0] == 'K' else vtok).append(tk)
                    egroup('a', k)
                khn = self.KH[((t + 1) >> 1) % 2] + 2 * ((t + 1) & 1)
                q0, q1 = self.qk('a', self.KL[(t + 1) % 2], khn)
                p0, p1 = self.pv('a', self.VV[t % 2])
                a.wait(lg=ktok)
                for k, m in enumerate((q0, q1, p0, p1)):
                    if k == 2: a.wait(lg=vtok)
                    a.i(m)
                    if t == 0 and k == 3:
                        a.lds(f"ds_read_b32 {self.vCnt}, {self.A_CR} offset:{C_ARR}")
                    if t == 1 and k == 0:
                        Lok = a.newlabel("arr")
                        a.i(f"v_cmp_gt_u32 vcc, s78, {self.vCnt}")
                        a.i(f"s_cbranch_vccz {Lok}")
                        if self.o.get('prof'): a.i("s_add_u32 s52, s52, 1")
                        keep = list(a.lg)
                        self.lds_spin_ge(C_ARR, "s78", self.vCnt, self.A_CR, sleep=0)
                        a.lg = keep
                        a.label(Lok)
                    if t == 1 and k == 1:
                        if self.o.get('prof') == 3:
                            a.i("s_memtime s[90:91]"); a.i("s_waitcnt lgkmcnt(0)")
                        self.ring_dma((slot + 3) % 4)
                        if self.o.get('prof') == 3:
                            a.i("s_memtime s[92:93]"); a.i("s_waitcnt lgkmcnt(0)")
                            a.i("s_sub_u32 s92, s92, s90"); a.i("s_add_u32 s45, s45, s92")
                        a.i("s_add_u32 s78, s78, 4")
                    egroup('b', k)
        if self.o.get('prof') == 1:
            a.i("s_memtime s[56:57]" if self.o.get('qcyc') else "s_memrealtime s[56:57]")
            a.i("s_waitcnt lgkmcnt(0)")
            for k in range(3):
                a.i(f"s_cmp_eq_u32 s74, {k}")
                a.i(f"s_cselect_b32 s{53+k if k < 2 else 43}, s56, s{53+k if k < 2 else 43}")
        a.i("s_add_u32 s74, s74, 1")
        a.i("s_cmp_lt_u32 s74, 4")
        self.loop_end = len(a.lines)
        a.i(f"s_cbranch_scc1 {L}")
        for m in self.pv('b', self.VV[1]): a.i(m)
        a.vm = []; a.lg = []

    def o_addr(self):
        a = self.a
        a.i(f"s_lshl_b32 s62, {sRB}, 1")
        a.i("s_mul_i32 s62, s62, 40960")
        a.i(f"s_add_u32 s80, s62, {WS_O}")
        a.i(f"s_mul_i32 s63, {sCG}, 5")
        a.i(f"s_add_u32 s81, s63, {sWR}")
        a.i("s_lshl_b32 s81, s81, 10")
        a.i("s_add_u32 s63, s63, 4")
        a.i("s_lshl_b32 s63, s63, 10")
        a.i(f"s_lshr_b32 s65, {sWR}, 1")
        a.i("s_lshl_b32 s65, s65, 9")
        a.i("s_add_u32 s63, s63, s65")
        a.i(f"s_and_b32 s65, {sWR}, 1")
        a.i("s_lshl_b32 s65, s65, 3")
        a.i("s_add_u32 s82, s63, s65")

    def o_epilogue(self):
        a = self.a
        a.c("---- normalise O, publish ----")
        a.i("v_cmp_gt_u32 vcc, 32, v0")
        a.nop(2)
        for mt, u in enumerate("ab"):
            O = self.O_[u]
            a.i(f"v_cndmask_b32 v216, v{O+8}, v{O+12}, vcc")
            a.i("v_rcp_f32 v216, v216")
            a.nop(1)
            for j in range(12): a.i(f"v_mul_f32 v{O+j}, v216, v{O+j}")
            P = self.P_[u]
            for j in range(6): a.i(f"v_cvt_pk_bf16_f32 v{P+j}, v{O+2*j}, v{O+2*j+1}")
            a.i(f"s_add_u32 s68, s80, {mt*40960}")
            a.i("s_add_u32 s69, s68, s81")
            a.vmem(f"buffer_store_dwordx4 v[{P}:{P+3}], {self.A_L16}, {SRD_WS}, s69 offen sc1")
            a.i("s_add_u32 s69, s68, s82")
            a.i("s_mov_b32 exec_lo, -1"); a.i("s_mov_b32 exec_hi, 0")
            a.vmem(f"buffer_store_dwordx2 v[{P+4}:{P+5}], {self.A_L16}, {SRD_WS}, s69 offen sc1")
            a.i("s_mov_b64 exec, -1")
        a.wait(vm='all')
        a.lds(f"ds_add_rtn_u32 v218, {self.A_CW}, {self.A_ONE} offset:{C_OD}")
        a.wait(lg='all')
        a.i("v_readfirstlane_b32 s62, v218")
        a.nop(1)
        a.i("s_cmp_lg_u32 s62, 3")
        a.i("s_cbranch_scc1 L_AEND")
        a.i(f"s_lshl_b32 s62, {sRB}, 7")
        a.i(f"s_lshl_b32 s63, {sCG}, 2")
        a.i("s_add_u32 s62, s62, s63")
        a.i(f"s_add_u32 s62, s62, {WS_FO}")
        a.i(f"v_mov_b32 v217, {sN}")
        a.i("v_mov_b32 v216, 0")
        a.i("s_mov_b64 exec, 1")
        a.i(f"buffer_store_dword v217, v216, {SRD_WS}, s62 offen sc1")
        a.i("s_mov_b64 exec, -1")
        a.label("L_AEND")
        self.stamp(9)
        self.stamp(9, lvl=3)
        self.stamp_flush()
        a.i("s_branch L_END")

    def role_a(self):
        a = self.a
        a.label("L_ROLE_A")
        a.i(f"s_setprio {self.o.get('prioQ', 1)}")
        dt = None
        if self.o.get('noQ'):
            a.i("s_waitcnt vmcnt(0)")
            self.lds_count(C_XND, self.A_CW, self.A_ONE)
            for r in range(16, 48): a.i(f"v_mov_b32 v{r}, 0")
        else: self.q_proj()
        self.stamp(10, lvl=2)
        self.stamp(4)
        self.q_epilogue()
        if self.o.get('dump') == 'q':
            self.dump_regs(128, 12, 0, self.A_L16)
        self.att_init_regs()
        self.o_addr()
        a.i(f"s_setprio {self.o.get('prioA', 2)}")
        self.kv_wait()
        self.stamp(5)
        pre = self.shift_setup()
        self.stamp(6)
        if not self.o.get('noatt'): self.attention(pre)
        else:
            self.loop_start = self.loop_end = len(a.lines)
            a.i("s_waitcnt vmcnt(0)")
        self.stamp(11, True)
        self.stamp(8)
        if self.o.get('dump') == 'o':
            a.nop(16)
            self.dump_regs(48, 32, 0, self.A_L16)
        self.o_epilogue()

    vD1a, vD1b, vTRa, vTRb = "v230", "v231", "v232", "v233"
    B_XA, B_XB = 234, 238
    B_CW, B_CR, B_ONE, B_L16 = "v242", "v243", "v244", "v245"
    B_TRK = "v252"
    B_JA, B_JB = 112, None
    vWa, vWb, vWc, vMa, vMb, vMc = "v220", "v221", "v222", "v223", "v224", "v225"
    vRa, vRb, vRc, vPW, vPR0, vPR1, vXO, vH0 = "v8", "v9", "v10", "v11", "v12", "v13", "v14", "v15"
    vH1 = "v250"

    def pair_dma_addr(self, va, vb, pitch, col_sgpr, comp_rows=8):
        a = self.a
        a.i("v_lshrrev_b32 v246, 3, v0")
        a.i("v_bfe_u32 v247, v0, 4, 1")
        a.i("v_lshlrev_b32 v247, 2, v247")
        a.i("v_and_b32 v248, 7, v0")
        a.i("v_xor_b32 v247, v247, v248")
        a.i(f"v_mul_u32_u24 v246, {pitch}, v246")
        a.i(f"v_lshl_add_u32 {va}, v247, 4, v246")
        a.i(f"v_add_u32 {va}, {col_sgpr}, {va}")
        a.i(f"v_add_u32 {vb}, {comp_rows*pitch - 1024}, {va}")

    def pair_tr_addr(self, va, vb, hmul, base_sgpr):
        a = self.a
        a.i("v_lshrrev_b32 v246, 5, v0")
        a.i(f"v_mul_u32_u24 v246, {hmul}, v246")
        a.i("v_bfe_u32 v247, v0, 2, 2")
        a.i("v_add_u32 v246, v246, v247")
        a.i("v_lshlrev_b32 v246, 7, v246")
        a.i("v_bfe_u32 v247, v0, 4, 1")
        a.i("v_lshlrev_b32 v247, 1, v247")
        a.i("v_bfe_u32 v248, v0, 1, 1")
        a.i("v_add_u32 v247, v247, v248")
        a.i("v_bfe_u32 v248, v0, 3, 1")
        a.i("v_lshlrev_b32 v248, 2, v248")
        a.i("v_xor_b32 v247, v247, v248")
        a.i("v_lshl_add_u32 v246, v247, 4, v246")
        a.i("v_and_b32 v247, 1, v0")
        a.i("v_lshl_add_u32 v246, v247, 3, v246")
        a.i(f"v_add_u32 {va}, {base_sgpr}, v246")
        a.i(f"v_xor_b32 {vb}, 64, v246")
        a.i(f"v_add_u32 {vb}, {base_sgpr}, {vb}")

    def w1_dma(self, ks, part=None):
        a = self.a
        t = []
        if part in (None, 0):
            a.i(f"s_add_u32 m0, s66, {(ks % NS1) * 2048}")
            if part is None: a.nop(1)
        if part in (None, 1):
            t.append(a.vmem(f"buffer_load_dwordx4 {self.vD1a}, {SRD_W1}, s67 offen lds"))
        if part in (None, 2):
            t.append(a.vmem(f"buffer_load_dwordx4 {self.vD1b}, {SRD_W1}, s67 offen offset:1024 lds"))
            self.rot_next(16 * 3456, "s67", ks)
        return t

    def ffn1(self):
        a = self.a
        a.c("---- FFN1 (transposed): h^T tiles, 2 n-tiles x 2 m-tiles per wave ----")
        acc = lambda t, m: 16 + 32 * t + 16 * m
        W = lambda s, t: 80 + 8 * s + 4 * t
        X = lambda s, m: 96 + 8 * s + 4 * m
        d1 = NS1
        dm = dict(self.w1tok); ta = {}; tb = {}
        def rd_wa(ks):
            a.wait(vm=dm[ks])
            s = ks % 2; sl = (ks % NS1) * 2048
            ta[ks] = [a.lds(f"ds_read_b64_tr_b16 v[{W(s,0)}:{W(s,0)+1}], {self.vTRa} offset:{sl}"),
                      a.lds(f"ds_read_b64_tr_b16 v[{W(s,0)+2}:{W(s,0)+3}], {self.vTRa} offset:{sl+512}")]
        def rd_x(ks):
            s = ks % 2
            self.rot_xn_seg(self.B_XA, self.B_XB, "s69", ks)
            ta[ks].append(a.lds(f"ds_read_b128 v[{X(s,0)}:{X(s,0)+3}], v{self.B_XA + ks % 4} offset:{self.seg_imm(ks)}"))
            ta[ks].append(a.lds(f"ds_read_b128 v[{X(s,1)}:{X(s,1)+3}], v{self.B_XB + ks % 4} offset:{self.seg_imm(ks)}"))
        def rd_wb(ks):
            s = ks % 2; sl = (ks % NS1) * 2048
            tb[ks] = [a.lds(f"ds_read_b64_tr_b16 v[{W(s,1)}:{W(s,1)+1}], {self.vTRb} offset:{sl}"),
                      a.lds(f"ds_read_b64_tr_b16 v[{W(s,1)+2}:{W(s,1)+3}], {self.vTRb} offset:{sl+512}")]
        def mf(ks, t, m):
            s = ks % 2; A = acc(t, m)
            C = "0" if ks == 0 else f"v[{A}:{A+15}]"
            a.i(f"v_mfma_f32_32x32x16_bf16 v[{A}:{A+15}], v[{W(s,t)}:{W(s,t)+3}], v[{X(s,m)}:{X(s,m)+3}], {C}")
        rd_wa(0); rd_x(0); rd_wb(0)
        for ks in range(40):
            nx = ks + 1 < 40; dd = ks + d1 < 40
            if ks in (0, 10, 20, 30): self.stamp(6 + ks // 10, lvl=2)
            a.wait(lg=ta[ks])
            mf(ks, 0, 0)
            if nx: rd_wa(ks + 1)
            mf(ks, 0, 1)
            a.wait(lg=tb[ks])
            if nx: rd_x(ks + 1)
            if dd: self.w1_dma(ks + d1, 0)
            mf(ks, 1, 0)
            if nx: rd_wb(ks + 1)
            if dd: dm[ks + d1] = self.w1_dma(ks + d1, 1)
            mf(ks, 1, 1)
            if dd: dm[ks + d1] += self.w1_dma(ks + d1, 2)
        self.lds_count(C_XND, self.B_CW, self.B_ONE)
        if self.o.get('pf', 0): self.l2_prefetch(SRD_W2, 2211840, 3 if self.o.get('pfstride', 128) == 128 else 5, "v246", "v251", sWR, 4)
        self.stamp(10, lvl=2)
        self.stamp(3)
        a.i(f"s_setprio {self.o.get('prioBv', 3)}")
        a.i(f"s_lshl_b32 s62, {sRB}, 1")
        a.i("s_mul_i32 s62, s62, 110592")
        a.i("s_lshl_b32 s63, s68, 11")
        a.i("s_add_u32 s62, s62, s63")
        a.i(f"s_add_u32 s62, s62, {WS_H}")
        a.nop(6)
        for t in range(2):
            for m in range(2):
                A = acc(t, m); R = 80 + 8 * m + 16 * (t & 1)
                for j in range(8): a.i(f"v_cvt_pk_bf16_f32 v{R+j}, v{A+2*j}, v{A+2*j+1}")
                for j in range(8): a.i(f"v_pk_max_i16 v{R+j}, v{R+j}, 0")
                a.i(f"s_add_u32 s63, s62, {m*110592 + t*2048}")
                a.vmem(f"buffer_store_dwordx4 v[{R}:{R+3}], {self.B_L16}, {SRD_WS}, s63 offen sc1")
                a.vmem(f"buffer_store_dwordx4 v[{R+4}:{R+7}], {self.B_L16}, {SRD_WS}, s63 offen offset:1024 sc1")
        a.i(f"s_setprio {self.o.get('prioB', 0)}")

    def h_publish(self):
        a = self.a
        a.i("s_waitcnt vmcnt(0)")
        a.vm = []
        a.lds(f"ds_add_rtn_u32 v246, {self.B_CW}, {self.B_ONE} offset:{C_HD}")
        a.wait(lg='all')
        a.i("v_readfirstlane_b32 s62, v246")
        Lnf = a.newlabel("hnf")
        a.nop(1)
        a.i("s_cmp_lg_u32 s62, 3")
        a.i(f"s_cbranch_scc1 {Lnf}")
        a.i(f"s_lshl_b32 s62, {sRB}, 7")
        a.i(f"s_lshl_b32 s63, {sCG}, 2")
        a.i("s_add_u32 s62, s62, s63")
        a.i(f"s_add_u32 s62, s62, {WS_FH}")
        a.i(f"v_mov_b32 v247, {sN}")
        a.i("v_mov_b32 v246, 0")
        a.i("s_mov_b64 exec, 1")
        a.i(f"buffer_store_dword v247, v246, {SRD_WS}, s62 offen sc1")
        a.i("s_mov_b64 exec, -1")
        a.label(Lnf)

    def out_tiles_setup(self):
        a = self.a
        a.i(f"s_lshr_b32 s62, {sCG}, 1")
        a.i("s_and_b32 s64, s62, 1")
        a.i("s_mul_i32 s62, s62, 5")
        a.i(f"s_and_b32 s82, {sCG}, 1")
        a.i("s_lshl_b32 s63, s82, 1")
        a.i("s_add_u32 s80, s62, s63")
        a.i("s_add_u32 s80, s80, s64")
        a.i("s_lshl_b32 s80, s80, 6")
        a.i("s_xor_b32 s64, s64, 1")
        a.i("s_lshl_b32 s64, s64, 2")
        a.i("s_add_u32 s81, s62, s64")
        a.i("s_lshl_b32 s81, s81, 6")
        a.i(f"s_mul_i32 s83, {sWR}, {BREG}")
        self.pair_dma_addr(self.vWa, self.vWb, 1280, "s80")
        a.i("v_lshrrev_b32 v246, 2, v0")
        a.i("v_mul_u32_u24 v246, 1280, v246")
        a.i("v_and_b32 v247, 3, v0")
        a.i(f"v_lshl_add_u32 {self.vWc}, v247, 4, v246")
        a.i(f"v_add_u32 {self.vWc}, s81, {self.vWc}")
        self.pair_tr_addr(self.vRa, self.vRb, 4, "s83")
        a.i("v_lshrrev_b32 v246, 5, v0")
        a.i("v_lshlrev_b32 v246, 2, v246")
        a.i("v_bfe_u32 v247, v0, 2, 2")
        a.i("v_add_u32 v246, v246, v247")
        a.i("v_lshlrev_b32 v246, 6, v246")
        a.i("v_bfe_u32 v247, v0, 4, 1")
        a.i("v_lshl_add_u32 v246, v247, 5, v246")
        a.i("v_and_b32 v247, 3, v0")
        a.i("v_lshl_add_u32 v246, v247, 3, v246")
        a.i("s_add_u32 s62, s83, 2048")
        a.i(f"v_add_u32 {self.vRc}, s62, v246")
        a.i(f"v_add_u32 {self.vPW}, s83, {self.B_L16}")
        a.i(f"s_mul_i32 s62, {sWR}, 5120")
        a.i(f"v_add_u32 {self.vPR0}, s62, {self.B_L16}")
        a.i(f"v_add_u32 {self.vPR1}, {2*BREG}, {self.vPR0}")

    def w3_dma(self, srd, slot, soff_sgpr, va, vb, vc):
        a = self.a
        a.i(f"s_add_u32 m0, s83, {slot*3072}")
        a.nop(1)
        t = [a.vmem(f"buffer_load_dwordx4 {va}, {srd}, {soff_sgpr} offen lds"),
             a.vmem(f"buffer_load_dwordx4 {vb}, {srd}, {soff_sgpr} offen offset:1024 lds")]
        a.i(f"s_add_u32 m0, s83, {slot*3072 + 2048}")
        a.nop(1)
        t.append(a.vmem(f"buffer_load_dwordx4 {vc}, {srd}, {soff_sgpr} offen lds"))
        return t

    def w3_reads(self, slot, Wb, part=None):
        a = self.a; t = []
        sl = slot * 3072
        if isinstance(part, tuple):
            p = part[1]
            va, o2 = ((self.vRa, 1024), (self.vRb, 1024), (self.vRc, 512))[p]
            t.append(a.lds(f"ds_read_b64_tr_b16 v[{Wb+4*p}:{Wb+4*p+1}], {va} offset:{sl}"))
            t.append(a.lds(f"ds_read_b64_tr_b16 v[{Wb+4*p+2}:{Wb+4*p+3}], {va} offset:{sl+o2}"))
            return t
        if part in (None, 0):
            t.append(a.lds(f"ds_read_b64_tr_b16 v[{Wb}:{Wb+1}], {self.vRa} offset:{sl}"))
            t.append(a.lds(f"ds_read_b64_tr_b16 v[{Wb+2}:{Wb+3}], {self.vRa} offset:{sl+1024}"))
            t.append(a.lds(f"ds_read_b64_tr_b16 v[{Wb+4}:{Wb+5}], {self.vRb} offset:{sl}"))
        if part in (None, 1):
            t.append(a.lds(f"ds_read_b64_tr_b16 v[{Wb+6}:{Wb+7}], {self.vRb} offset:{sl+1024}"))
            t.append(a.lds(f"ds_read_b64_tr_b16 v[{Wb+8}:{Wb+9}], {self.vRc} offset:{sl}"))
            t.append(a.lds(f"ds_read_b64_tr_b16 v[{Wb+10}:{Wb+11}], {self.vRc} offset:{sl+512}"))
        return t

    def five_mfma(self, Wb, H0, H1, first, fill):
        a = self.a
        spec = [(0, 0, H0), (1, 0, H1), (2, 1, H0), (3, 1, H1), (4, 2, H0)]
        for n, (tau, nt, Hb) in enumerate(spec):
            A = 16 + 16 * tau
            C = "0" if first else f"v[{A}:{A+15}]"
            a.i(f"v_mfma_f32_32x32x16_bf16 v[{A}:{A+15}], v[{Wb+4*nt}:{Wb+4*nt+3}], v[{Hb}:{Hb+3}], {C}")
            if n < len(fill) and fill[n]: fill[n]()

    def reduce80(self, dst, bar_target):
        a = self.a
        a.nop(12)
        for g in range(20):
            if len(a.lg) >= 14: a.wait(lg=a.lg[6])
            a.lds(f"ds_write_b128 {self.vPW}, v[{16+4*g}:{19+4*g}] offset:{g*1024}")
        a.wait(lg='all')
        self.lds_count(C_BBAR, self.B_CW, self.B_ONE)
        self.lds_spin_ge(C_BBAR, bar_target, "v246", self.B_CR)
        tk = {}
        def rd(src):
            va = self.vPR0 if src < 2 else self.vPR1
            tk[src] = [a.lds(f"ds_read_b128 v[{16+20*src+4*e}:{19+20*src+4*e}], {va} offset:{(src&1)*BREG + e*1024}") for e in range(5)]
        rd(0); rd(1); rd(2)
        a.wait(lg=tk[1])
        rd(3)
        for j in range(20): a.i(f"v_add_f32 v{dst+j}, v{16+j}, v{36+j}")
        a.wait(lg='all')
        for j in range(20): a.i(f"v_add_f32 v{56+j}, v{56+j}, v{76+j}")
        for j in range(20): a.i(f"v_add_f32 v{dst+j}, v{dst+j}, v{56+j}")

    def ffn2(self):
        a = self.a
        a.c("---- FFN2 (transposed): 5 output tiles, split-K over the 4 B waves ----")
        if self.o.get('touch', 0):
            a.vmem(f"buffer_load_dword v251, v227, {SRD_W2}, s80 offen")
            a.vmem(f"buffer_load_dword v254, v227, {SRD_W2}, s81 offen")
        self.lds_spin_ge(C_XND, 8, "v246", self.B_CR)
        NS = 9; PF = self.o.get('d2', 4); HD = self.o.get('dh', 3) + 1
        a.i(f"s_mul_i32 s84, {sWR}, {27*20480}")
        a.i(f"s_and_b32 s62, {sRB}, 7")
        a.i("s_mul_i32 s62, s62, 3")
        a.i(f"s_and_b32 s63, {sCG}, 3")
        a.i("s_mul_i32 s63, s63, 7")
        a.i("s_add_u32 s62, s62, s63")
        a.i("s_cmp_ge_u32 s62, 27")
        a.i("s_cselect_b32 s63, 27, 0")
        a.i("s_sub_u32 s87, s62, s63")
        if not self.o.get('rot', 1): a.i("s_mov_b32 s87, 0")
        a.i("s_mul_i32 s95, s87, 20480")
        dm = {}
        a.i("s_add_u32 s95, s95, s84")
        a.i(f"s_add_u32 s93, s84, {27*20480}")
        def dma(kk, part=None):
            slot = kk % NS
            if part in (None, 0):
                a.i(f"s_add_u32 m0, s83, {slot*3072}")
                if part is None: a.nop(1)
            if part in (None, 1):
                dm[kk] = [a.vmem(f"buffer_load_dwordx4 {self.vWa}, {SRD_W2}, s95 offen lds")]
            if part in (None, 2):
                dm[kk].append(a.vmem(f"buffer_load_dwordx4 {self.vWb}, {SRD_W2}, s95 offen offset:1024 lds"))
                a.i(f"s_add_u32 m0, s83, {slot*3072 + 2048}")
                if part is None: a.nop(1)
            if part in (None, 3):
                dm[kk].append(a.vmem(f"buffer_load_dwordx4 {self.vWc}, {SRD_W2}, s95 offen lds"))
                a.i("s_add_u32 s95, s95, 20480")
                a.i("s_cmp_eq_u32 s95, s93")
                a.i("s_cselect_b32 s95, s84, s95")
        for kk in range(PF): dma(kk)
        self.stamp(5)
        self.one_wave_poll(WS_FH, C_HRDY, sleep=8)
        self.stamp(6)
        if self.o.get('pf', 0):
            a.i("v_min_u32 v246, 53, v0")
            a.i("v_lshlrev_b32 v246, 7, v246")
            a.i(f"s_mul_i32 s62, {sRB}, 221184")
            a.i(f"s_lshl_b32 s63, {sCG}, 2")
            a.i(f"s_add_u32 s63, s63, {sWR}")
            a.i(f"s_mul_i32 s63, s63, {54*128}")
            a.i("s_add_u32 s62, s62, s63")
            a.i(f"s_add_u32 s62, s62, {WS_H}")
            a.vmem(f"buffer_load_dword v251, v246, {SRD_WS}, s62 offen sc1")
            self.l2_prefetch(SRD_WO, 819200, 1 if self.o.get('pfstride', 128) == 128 else 2, "v246", "v253", sWR, 4)
        H = lambda kk, s: 120 + 8 * (kk % HD) + 4 * s
        hl = {}
        a.i("s_lshl_b32 s96, s87, 10")
        def hload(kk, part=None):
            if part in (None, 0):
                hl[kk] = [a.vmem(f"buffer_load_dwordx4 v[{H(kk,0)}:{H(kk,0)+3}], {self.vH0}, {SRD_WS}, s96 offen sc1")]
            if part in (None, 1):
                hl[kk].append(a.vmem(f"buffer_load_dwordx4 v[{H(kk,1)}:{H(kk,1)+3}], {self.vH1}, {SRD_WS}, s96 offen sc1"))
                a.i("s_add_u32 s96, s96, 1024")
                a.i(f"s_cmp_eq_u32 s96, {27*1024}")
                a.i("s_cselect_b32 s96, 0, s96")
        for kk in range(HD - 1): hload(kk)
        Wb = lambda kk: 96 + 12 * (kk % 2)
        a.wait(vm=dm[0])
        rt = {0: self.w3_reads(0, Wb(0))}
        for kk in range(27):
            a.wait(lg=rt[kk], vm=hl[kk])
            nx = kk + 1 < 27; dd = kk + PF < 27; hh = kk + HD - 1 < 27
            def rd(p, kk=kk):
                if p == 0:
                    a.wait(vm=dm[kk + 1]); rt[kk + 1] = []
                rt[kk + 1] += self.w3_reads((kk + 1) % NS, Wb(kk + 1), ('t', p))
            def g0(kk=kk):
                if nx: rd(0)
                if hh: hload(kk + HD - 1, 0)
            def g1(kk=kk):
                if nx: rd(1)
                if hh: hload(kk + HD - 1, 1)
                if dd: dma(kk + PF, 0)
            def g2(kk=kk):
                if nx: rd(2)
                if dd: dma(kk + PF, 1)
            def g3(kk=kk):
                if dd: dma(kk + PF, 2)
            def g4(kk=kk):
                if dd: dma(kk + PF, 3)
            self.five_mfma(Wb(kk), H(kk, 0), H(kk, 1), kk == 0, [g0, g1, g2, g3, g4])
        self.stamp(7)
        if self.o.get('touch', 0):
            a.i("s_mov_b32 s62, 0")
            a.vmem(f"buffer_load_dword v251, v228, {SRD_WO}, s62 offen")
        a.i(f"s_setprio {self.o.get('prioBv', 3)}")
        self.reduce80(200, 4)
        for j in range(20): a.i(f"v_mul_f32 v{16+j}, {hx(f2u(-1.4426950408889634))}, v{200+j}")
        for j in range(20): a.i(f"v_exp_f32 v{16+j}, v{16+j}")
        for j in range(20): a.i(f"v_add_f32 v{16+j}, 1.0, v{16+j}")
        for j in range(20): a.i(f"v_rcp_f32 v{16+j}, v{16+j}")
        for j in range(20): a.i(f"v_mul_f32 v{200+j}, v{200+j}, v{16+j}")
        a.i(f"s_setprio {self.o.get('prioB', 0)}")
        self.lds_count(C_BBAR, self.B_CW, self.B_ONE)
        self.lds_spin_ge(C_BBAR, 8, "v246", self.B_CR)

    def out_mixed_addr(self):
        a = self.a
        a.i("v_lshrrev_b32 v246, 3, v0")
        a.i("v_lshrrev_b32 v247, 2, v246")
        a.i("v_mul_u32_u24 v247, 40, v247")
        a.i("v_and_b32 v248, 3, v246")
        a.i("v_add3_u32 v247, v247, v248, 16")
        a.i("v_mul_u32_u24 v247, 1280, v247")
        a.i("v_bfe_u32 v248, v0, 4, 1")
        a.i("v_lshlrev_b32 v248, 2, v248")
        a.i("v_and_b32 v249, 7, v0")
        a.i("v_xor_b32 v248, v248, v249")
        a.i(f"v_lshl_add_u32 {self.vMa}, v248, 4, v247")
        a.i(f"v_add_u32 {self.vMa}, s80, {self.vMa}")
        a.i(f"v_add_u32 {self.vMb}, {20*1280 - 1024}, {self.vMa}")
        a.i("v_lshrrev_b32 v246, 2, v0")
        a.i("v_bfe_u32 v247, v246, 2, 1")
        a.i("v_lshlrev_b32 v247, 1, v247")
        a.i("v_lshrrev_b32 v248, 3, v246")
        a.i("v_add_u32 v247, v247, v248")
        a.i("v_mul_u32_u24 v247, 20, v247")
        a.i("v_and_b32 v248, 3, v246")
        a.i("v_add3_u32 v247, v247, v248, 16")
        a.i("v_mul_u32_u24 v247, 1280, v247")
        a.i("v_and_b32 v248, 3, v0")
        a.i(f"v_lshl_add_u32 {self.vMc}, v248, 4, v247")
        a.i(f"v_add_u32 {self.vMc}, s81, {self.vMc}")
        a.i("v_and_b32 v246, 31, v0")
        a.i("v_mul_u32_u24 v246, 1280, v246")
        a.i("v_lshrrev_b32 v247, 5, v0")
        a.i(f"v_lshl_add_u32 {self.vXO}, v247, 3, v246")

    def ffn2_addr(self):
        a = self.a
        a.i(f"s_lshl_b32 s62, {sRB}, 1")
        a.i("s_add_u32 s63, s62, s82")
        a.i("s_xor_b32 s64, s82, 1")
        a.i("s_add_u32 s64, s62, s64")
        a.i("s_mul_i32 s85, s63, 110592")
        a.i("s_mul_i32 s86, s64, 110592")
        a.i(f"s_mul_i32 s62, {sWR}, {27*1024}")
        a.i(f"s_add_u32 s62, s62, {WS_H}")
        a.i("s_add_u32 s85, s85, s62")
        a.i("s_add_u32 s86, s86, s62")
        a.i(f"v_add_u32 {self.vH0}, s85, {self.B_L16}")
        a.i(f"v_add_u32 {self.vH1}, s86, {self.B_L16}")

    def out_proj(self):
        a = self.a
        a.c("---- output projection + final combine ----")
        dm = {}
        a.i(f"s_lshl_b32 s62, {sWR}, 1")
        a.i("s_add_u32 s93, s62, s82")
        a.i("s_xor_b32 s63, s82, 1")
        a.i("s_add_u32 s94, s62, s63")
        a.i(f"s_mul_i32 s84, s93, {80*1280}")
        a.i(f"s_mul_i32 s87, s94, {80*1280}")
        def wo_dma(e):
            cgo, jj = e // 5, e % 5
            base = "s84" if cgo == 0 else "s87"
            if jj < 4:
                a.i(f"s_add_u32 s67, {base}, {jj*20*1280}")
                dm[e] = self.w3_dma(SRD_WO, e % 9, "s67", self.vWa, self.vWb, self.vWc)
            else:
                dm[e] = self.w3_dma(SRD_WO, e % 9, base, self.vMa, self.vMb, self.vMc)
        for e in range(9):
            wo_dma(e)
            dw = self.o.get('dw', 2)
            if e - dw >= 0: a.wait(vm=dm[e - dw])
        a.wait(vm=dm[8])
        rt0 = self.w3_reads(0, 96)
        a.wait(lg=rt0)
        wo_dma(9)
        a.wait(vm=dm[9])
        xt = []
        for e in range(5):
            so = f"s{88+e}"
            a.i(f"s_mul_i32 s62, {sWR}, 5")
            a.i(f"s_add_u32 s62, s62, {e}")
            a.i("s_lshr_b32 s63, s62, 2")
            a.i("s_and_b32 s64, s62, 3")
            a.i("s_lshl_b32 s64, s64, 4")
            a.i("s_lshr_b32 s65, s63, 1")
            a.i("s_lshl_b32 s69, s65, 6")
            a.i("s_add_u32 s69, s69, s80")
            a.i("s_cmp_eq_u32 s63, 4")
            a.i("s_cselect_b32 s69, s81, s69")
            a.i("s_add_u32 s64, s64, s69")
            a.i("s_and_b32 s65, s63, 1")
            a.i("s_xor_b32 s65, s65, s82")
            a.i(f"s_lshl_b32 s69, {sRB}, 1")
            a.i("s_add_u32 s65, s65, s69")
            a.i("s_mul_i32 s65, s65, 40960")
            a.i(f"s_add_u32 {so}, s64, s65")
            xt.append(a.vmem(f"buffer_load_dwordx2 v[{220+2*e}:{221+2*e}], {self.vXO}, {SRD_X}, {so} offen"))
        self.stamp(9)
        self.one_wave_poll(WS_FO, C_ORDY, pre=lambda: self.lds_spin_ge(C_OD, 4, "v246", self.B_CR, sleep=3), sleep=1)
        self.stamp(10)
        Lnl = a.newlabel("nolead")
        a.i(f"s_lshl_b32 s62, {sCG}, 2")
        a.i(f"s_add_u32 s62, s62, {sWR}")
        a.i("s_cmp_lg_u32 s62, 0")
        a.i(f"s_cbranch_scc1 {Lnl}")
        a.i("v_mov_b32 v246, 0")
        a.i("v_mov_b32 v247, 1")
        a.i("s_mov_b64 exec, 1")
        a.i(f"global_atomic_add v248, v246, v247, {sDBG} sc0 sc1")
        a.i("s_waitcnt vmcnt(0)")
        a.i("v_readfirstlane_b32 s62, v248")
        a.i("s_mov_b64 exec, -1")
        a.nop(1)
        a.i("s_cmp_lg_u32 s62, 31")
        a.i(f"s_cbranch_scc1 {Lnl}")
        a.i(f"v_mov_b32 v247, {sN}")
        a.i(f"v_mov_b32 v246, {WS_X}")
        a.i("s_mov_b32 s62, 0")
        a.i("s_mov_b64 exec, 1")
        a.i(f"buffer_store_dword v247, v246, {SRD_WS}, s62 offen sc1")
        a.i("s_mov_b64 exec, -1")
        a.label(Lnl)
        a.i(f"s_lshl_b32 s62, {sRB}, 1")
        a.i("s_add_u32 s63, s62, s82")
        a.i("s_xor_b32 s64, s82, 1")
        a.i("s_add_u32 s64, s62, s64")
        a.i("s_mul_i32 s85, s63, 40960")
        a.i("s_mul_i32 s86, s64, 40960")
        a.i(f"s_add_u32 s85, s85, {WS_O}")
        a.i(f"s_add_u32 s86, s86, {WS_O}")
        a.i("s_mul_i32 s93, s93, 5120")
        a.i("s_mul_i32 s94, s94, 5120")
        ol = {}
        H = lambda e, s: 120 + 8 * e + 4 * s
        for e in range(10):
            grp = "s93" if e < 5 else "s94"
            a.i(f"s_add_u32 s62, s85, {grp}")
            t0 = a.vmem(f"buffer_load_dwordx4 v[{H(e,0)}:{H(e,0)+3}], {self.B_L16}, {SRD_WS}, s62 offen offset:{(e%5)*1024 if (e%5) < 4 else 0} sc1") if (e % 5) < 4 else None
            if t0 is None:
                a.i("s_add_u32 s62, s62, 4096")
                t0 = a.vmem(f"buffer_load_dwordx4 v[{H(e,0)}:{H(e,0)+3}], {self.B_L16}, {SRD_WS}, s62 offen sc1")
            a.i(f"s_add_u32 s63, s86, {grp}")
            if (e % 5) < 4:
                t1 = a.vmem(f"buffer_load_dwordx4 v[{H(e,1)}:{H(e,1)+3}], {self.B_L16}, {SRD_WS}, s63 offen offset:{(e%5)*1024} sc1")
            else:
                a.i("s_add_u32 s63, s63, 4096")
                t1 = a.vmem(f"buffer_load_dwordx4 v[{H(e,1)}:{H(e,1)+3}], {self.B_L16}, {SRD_WS}, s63 offen sc1")
            ol[e] = [t0, t1]
        Wb = lambda e: 96 + 12 * (e % 2)
        rt = {0: rt0}
        for e in range(10):
            a.wait(lg=rt[e], vm=ol[e])
            def f0(e=e):
                if e + 1 < 10:
                    a.wait(vm=dm[e + 1])
                    rt[e + 1] = self.w3_reads((e + 1) % 9, Wb(e + 1), 0)
            def f1(e=e):
                if e + 1 < 10: rt[e + 1] += self.w3_reads((e + 1) % 9, Wb(e + 1), 1)
            self.five_mfma(Wb(e), H(e, 0), H(e, 1), e == 0, [f0, f1])
        self.stamp(11)
        self.reduce80(96, 12)
        self.stamp(12)
        a.i("s_mov_b32 s62, 0xffff0000")
        for e in range(5):
            x0, x1 = 220 + 2 * e, 221 + 2 * e
            a.i(f"v_lshlrev_b32 v16, 16, v{x0}")
            a.i(f"v_and_b32 v17, s62, v{x0}")
            a.i(f"v_lshlrev_b32 v18, 16, v{x1}")
            a.i(f"v_and_b32 v19, s62, v{x1}")
            for j in range(4): a.i(f"v_fma_f32 v{16+j}, v{96+4*e+j}, v{200+4*e+j}, v{16+j}")
            a.i(f"v_cvt_pk_bf16_f32 v{20+2*e}, v16, v17")
            a.i(f"v_cvt_pk_bf16_f32 v{21+2*e}, v18, v19")
            a.vmem(f"buffer_store_dwordx2 v[{20+2*e}:{21+2*e}], {self.vXO}, {SRD_OUT}, s{88+e} offen")

    def role_b(self):
        a = self.a
        a.label("L_ROLE_B")
        Lf1 = a.newlabel("ffn1"); Lv = a.newlabel("vjob"); Lpf = a.newlabel("w1pf")
        a.i(f"s_and_b32 s62, {sCG}, 3")
        a.i("s_cmp_lg_u32 s62, 3")
        a.i(f"s_cbranch_scc1 {Lf1}")
        a.i(f"s_cmp_ge_u32 {sWR}, 2")
        a.i(f"s_cbranch_scc1 {Lf1}")
        a.i("s_setprio 3")
        a.i(f"s_cmp_eq_u32 {sCG}, 7")
        a.i(f"s_cbranch_scc1 {Lv}")
        a.vm = []; a.lg = []
        self.kv_job(False)
        a.i(f"s_branch {Lpf}")
        a.label(Lv)
        a.vm = []; a.lg = []
        self.kv_job(True)
        a.label(Lpf)
        self.stamp(11, lvl=2)
        self.stamp(14)
        a.label(Lf1)
        a.i(f"s_setprio {self.o.get('prioF', 1)}")
        if self.o.get('noB'):
            a.i("s_waitcnt vmcnt(0)")
            a.i("s_branch L_END")
        a.vm = []; a.lg = []
        Lnop = a.newlabel("nopair"); Lhd = a.newlabel("hdone")
        a.i("s_cmp_eq_u32 s99, 0")
        a.i(f"s_cbranch_scc1 {Lnop}")
        if self.o.get('noF1'): a.i(f"s_branch {Lnop}")
        a.vm = [t for ks in range(NS1) for t in self.w1tok[ks]]; a.lg = []
        self.ffn1()
        a.i(f"s_branch {Lhd}")
        a.label(Lnop)
        a.i(f"s_setprio {self.o.get('prioB', 0)}")
        self.lds_count(C_XND, self.B_CW, self.B_ONE)
        a.label(Lhd)
        a.vm = []; a.lg = []
        self.h_publish()
        self.stamp(4)
        self.ffn2()
        self.stamp(8)
        if self.o.get('dump') == 'g':
            self.dump_regs(200, 20, 0, self.B_L16)
        self.out_proj()
        a.i("s_waitcnt vmcnt(0)") if self.o.get('prof') else None
        self.stamp(13)
        self.stamp_flush()
        if self.o.get('span'):
            a.i("s_waitcnt vmcnt(0)")
            a.i("s_memrealtime s[90:91]")
            a.i("s_waitcnt lgkmcnt(0)")
            a.i("s_not_b32 s62, s101")
            a.i("v_mov_b32 v1, 8")
            a.i("v_mov_b32 v2, s62")
            a.i("v_mov_b32 v3, s90")
            a.i("s_mov_b64 exec, 1")
            a.i(f"global_atomic_umax v1, v2, {sDBG} sc1")
            a.i(f"global_atomic_umax v1, v3, {sDBG} offset:4 sc1")
            a.i("s_mov_b64 exec, -1")
        a.i("s_branch L_END")

    def build(self):
        a = self.a
        self.prologue()
        self.role_setup()
        a.i("s_waitcnt lgkmcnt(0)")
        a.i(f"s_add_u32 {sN}, {sN}, 1")
        a.vm = []; a.lg = []
        self.stamp(1)
        self.layernorm()
        self.stamp(2)
        if self.o.get('dump') == 'xn':
            self.dump_lds_xn()
        a.i(f"s_cmp_ge_u32 {sW}, 4")
        a.i("s_cbranch_scc1 L_ROLE_B")
        self.role_a()
        self.role_b()
        a.label("L_END")
        a.i("s_endpgm")

    def dump_lds_xn(self):
        a = self.a
        a.i("v_lshlrev_b32 v72, 4, v0")
        a.i(f"s_mul_i32 s70, {sW}, 10240")
        a.i("v_add_u32 v73, s70, v72")
        a.i("s_mul_i32 s71, s2, 81920")
        a.i("s_add_u32 s71, s71, s70")
        a.i(f"s_add_u32 s71, s71, {WS_DBG}")
        for g in range(10):
            a.i(f"ds_read_b128 v[76:79], v73 offset:{g*1024}")
            a.i("s_waitcnt lgkmcnt(0)")
            a.i(f"s_add_u32 s70, s71, {g*1024}")
            a.i(f"buffer_store_dwordx4 v[76:79], v72, {SRD_WS}, s70 offen")
            a.i("s_waitcnt vmcnt(0)")

    def emit(self):
        self.build()
        body = self.a.text()
        hdr = f"""; Fused LayerNorm + MQA attention + ReLU FFN + gated residual, one persistent workgroup per CU.
; @launch grid=(256,1,1) block=(512,1,1) lds={LDS_TOTAL}
.amdgcn_target "amdgcn-amd-amdhsa--gfx950"
.text
.globl {NAME}_kernel
.p2align 8
.type {NAME}_kernel,@function
{NAME}_kernel:
"""
        ftr = f""".section .rodata,"a"
.p2align 6
.amdhsa_kernel {NAME}_kernel
  .amdhsa_next_free_vgpr 256
  .amdhsa_next_free_sgpr 102
  .amdhsa_accum_offset 256
  .amdhsa_group_segment_fixed_size 0
  .amdhsa_kernarg_size 88
  .amdhsa_user_sgpr_count 2
  .amdhsa_user_sgpr_kernarg_segment_ptr 1
  .amdhsa_system_sgpr_workgroup_id_x 1
  .amdhsa_float_denorm_mode_32 3
.end_amdhsa_kernel
"""
        return hdr + body + ftr

    def hazards(self):
        ins = [t for k, t in self.a.lines if k == 'i']
        probs = check_hazards(ins, "linear")
        body = [t for k, t in self.a.lines[self.loop_start:self.loop_end] if k == 'i']
        probs += check_hazards(body[-40:] + body[:40], "att-backedge")
        return probs

if __name__ == "__main__":
    opt = {}
    out = None
    for arg in sys.argv[1:]:
        if "=" in arg:
            k, v = arg.split("=", 1); opt[k] = int(v) if v.lstrip('-').isdigit() else v
        else: out = arg
    g = Gen(opt)
    txt = g.emit()
    pr = g.hazards()
    for p in pr: print("HAZARD:", p)
    open(out or "k.s", "w").write(txt)
    n = sum(1 for k, t in g.a.lines if k == 'i')
    print(f"wrote {out or 'k.s'}: {n} instructions, {len(pr)} hazards")
```

```python
import sys, struct
from asmlib import Asm, check_hazards

NAME = "recurrent_scan__grouped_kv_mqa__dense_activation_relu__prompt"

XN    = 0
BST   = 81920
BPRIV = 9216
NS1   = 4
WKI   = BST
AREG  = 118784
QST   = AREG
APRIV = 11136
NSQ   = 10
RSLOT = 11136
RSHARE = 2688
KVCH  = 12288
BREG  = 29696
CTRL  = 163328
LDS_TOTAL = 163840
VROW  = 352
VFR   = 2 * VROW
KV_KH = 4096
KV_V  = 5120
C_ARR, C_KVD, C_ABAR, C_QDONE, C_KVRDY, C_XND, C_HD, C_BBAR, C_OD, C_GO, C_HRDY, C_ORDY, C_KVS, C_QISS = [4 * i for i in range(14)]
CDUMMY = 128

WS_X    = 0
WS_FKV  = 0x1000
WS_FH   = 0x4000
WS_FO   = 0x6000
WS_KN   = 0x8000
WS_VN   = 0x8400
WS_KV   = 0x10000
WS_H    = 0x100000
WS_O    = 0x800000
WS_DBG  = 0xB00000
WS_PROF = 0x1300000
WS_END  = 0x1400000

QSCALE = 0.22360679774997896 * 1.4426950408889634

def f2u(x): return struct.unpack("<I", struct.pack("<f", x))[0]
def hx(x): return "0x%08x" % (x & 0xffffffff)

sW, sRB, sCG, sN, sWR = "s3", "s4", "s5", "s6", "s7"
SRD_X, SRD_WQ, SRD_WKV, SRD_WO, SRD_W1, SRD_W2, SRD_OUT, SRD_WS = [f"s[{8+4*i}:{11+4*i}]" for i in range(8)]
sDBG, sWSP = "s[58:59]", "s[60:61]"

SPIN_LDS = 400000
SPIN_GLB = 40000

class Gen:
    def __init__(self, opt):
        self.o = opt
        self.a = Asm()

    def vr(self, base, n): return f"v[{base}:{base+n-1}]"

    def lds_spin_ge(self, cnt_off, target, vtmp, vctlr, stmp="s62", sleep=1):
        a = self.a
        L = a.newlabel("spin"); Ld = a.newlabel("spind")
        a.i(f"s_mov_b32 {stmp}, 0")
        a.label(L)
        a.i(f"ds_read_b32 {vtmp}, {vctlr} offset:{cnt_off}")
        a.i("s_waitcnt lgkmcnt(0)")
        a.i(f"v_cmp_gt_u32 vcc, {target}, {vtmp}")
        a.i(f"s_cbranch_vccz {Ld}")
        a.i(f"s_add_u32 {stmp}, {stmp}, 1")
        a.i(f"s_cmp_lt_u32 {stmp}, {SPIN_LDS}")
        if sleep: a.i(f"s_sleep {sleep}")
        a.i(f"s_cbranch_scc1 {L}")
        a.label(Ld)
        a.lg = []

    def glb_poll(self, voff, soff, vtmp, stmp="s62", sleep=4):
        a = self.a
        L = a.newlabel("poll"); Ld = a.newlabel("polld")
        a.i(f"s_mov_b32 {stmp}, 0")
        a.label(L)
        a.i(f"buffer_load_dword {vtmp}, {voff}, {SRD_WS}, {soff} offen sc1")
        a.i("s_waitcnt vmcnt(0)")
        a.i(f"v_cmp_ne_u32 vcc, {sN}, {vtmp}")
        a.i(f"s_cbranch_vccz {Ld}")
        a.i(f"s_add_u32 {stmp}, {stmp}, 1")
        a.i(f"s_cmp_lt_u32 {stmp}, {SPIN_GLB}")
        a.i(f"s_sleep {sleep}")
        a.i(f"s_cbranch_scc1 {L}")
        a.label(Ld)
        a.vm = []

    def one_wave_poll(self, flag_base, rdy_off, pre=None, sleep=4):
        a = self.a
        Lw = a.newlabel("opw"); Lj = a.newlabel("opj")
        keep = list(a.vm)
        a.i(f"s_cmp_lg_u32 {sWR}, 0")
        a.i(f"s_cbranch_scc1 {Lw}")
        if pre: pre()
        a.i("v_and_b32 v246, 7, v0")
        a.i("v_lshlrev_b32 v246, 2, v246")
        a.i(f"s_lshl_b32 s63, {sRB}, 7")
        a.i(f"s_add_u32 s63, s63, {flag_base}")
        self.glb_poll("v246", "s63", "v247", sleep=sleep)
        a.i(f"ds_add_u32 {self.B_CW}, {self.B_ONE} offset:{rdy_off}")
        a.i(f"s_branch {Lj}")
        a.label(Lw)
        self.lds_spin_ge(rdy_off, 1, "v246", self.B_CR, sleep=2)
        a.label(Lj)
        a.i("s_waitcnt lgkmcnt(0)")
        a.vm = keep; a.lg = []

    def lds_count(self, cnt_off, vctlw, vone):
        return self.a.lds(f"ds_add_u32 {vctlw}, {vone} offset:{cnt_off}")

    def dump_regs(self, base, n, slot, vlane16, cond_wave=None):
        a = self.a
        a.i("s_lshl_b32 s70, s2, 3"); a.i(f"s_add_u32 s70, s70, {sW}")
        a.i("s_mul_i32 s70, s70, 0x4000")
        a.i(f"s_add_u32 s70, s70, {WS_DBG + 0x0}")
        for g in range(n // 4):
            a.i(f"s_add_u32 s71, s70, {(slot + g) * 1024}")
            a.i(f"buffer_store_dwordx4 v[{base+4*g}:{base+4*g+3}], {vlane16}, {SRD_WS}, s71 offen")
        a.i("s_waitcnt vmcnt(0)")
        a.vm = []

    def stamp(self, k, cyc=False, lvl=1):
        if self.o.get('prof') != lvl and not (k <= 2 and self.o.get('prof')): return
        a = self.a
        a.i("s_memtime s[56:57]" if cyc else "s_memrealtime s[56:57]")
        a.i("s_waitcnt lgkmcnt(0)")
        a.i(f"s_mov_b32 s{40+k}, s56")
        a.lg = []

    def stamp_flush(self):
        if not self.o.get('prof'): return
        a = self.a
        a.i("s_mov_b64 exec, 1")
        a.i("s_lshl_b32 s62, s2, 3")
        a.i(f"s_add_u32 s62, s62, {sW}")
        a.i("s_lshl_b32 s62, s62, 6")
        a.i(f"s_add_u32 s62, s62, {WS_PROF}")
        a.i("v_mov_b32 v1, 0")
        for g in range(4):
            for j in range(4): a.i(f"v_mov_b32 v{4+j}, s{40+4*g+j}")
            a.i(f"buffer_store_dwordx4 v[4:7], v1, {SRD_WS}, s62 offen offset:{16*g}")
            a.nop(2)
        a.i("s_mov_b64 exec, -1")

    def l2_prefetch(self, srd, total_bytes, ninstr, vtmp, vdst, sub_sgpr, nsub):
        a = self.a
        st = self.o.get('pfstride', 128)
        lines = total_bytes // st
        per_cu = -(-lines // 32); per_w = -(-per_cu // nsub); per_i = -(-per_w // ninstr)
        assert per_i <= 64, per_i
        a.i(f"s_lshr_b32 s62, {sRB}, 3")
        a.i(f"s_lshl_b32 s63, {sCG}, 2")
        a.i("s_add_u32 s62, s62, s63")
        a.i(f"s_mul_i32 s62, s62, {per_cu}")
        a.i(f"s_mul_i32 s63, {sub_sgpr}, {per_w}")
        a.i("s_add_u32 s62, s62, s63")
        a.i(f"v_min_u32 {vtmp}, {per_i - 1}, v0")
        a.i(f"v_add_u32 {vtmp}, s62, {vtmp}")
        a.i(f"v_mul_u32_u24 {vtmp}, {st}, {vtmp}")
        toks = []
        for i in range(ninstr):
            a.i(f"s_mov_b32 s63, {i * per_i * st}")
            toks.append(a.vmem(f"buffer_load_dword {vdst}, {vtmp}, {srd}, s63 offen"))
        return toks

    def prologue(self):
        a = self.a
        a.i("s_cmp_ge_u32 s2, 256")
        a.i("s_cbranch_scc1 L_END")
        if self.o.get('prof'): a.i("s_memrealtime s[94:95]")
        a.i("s_load_dwordx16 s[40:55], s[0:1], 0")
        a.i("s_load_dwordx4 s[56:59], s[0:1], 64")
        a.i("s_load_dwordx2 s[60:61], s[0:1], 80")
        a.i("v_lshrrev_b32 v1, 6, v0")
        a.i("v_and_b32 v0, 63, v0")
        a.i("s_and_b32 s62, s2, 1")
        a.i("s_lshl_b32 s62, s62, 2")
        a.i("s_lshr_b32 s63, s2, 6")
        a.i(f"s_add_u32 {sCG}, s62, s63")
        a.i(f"v_readfirstlane_b32 {sW}, v1")
        a.i("s_bfe_u32 s62, s2, 0x20001")
        a.i("s_lshl_b32 s62, s62, 3")
        a.i("s_bfe_u32 s63, s2, 0x30003")
        a.i(f"s_add_u32 {sRB}, s62, s63")
        a.i("v_lshrrev_b32 v2, 3, v0")
        a.i("v_and_b32 v3, 7, v0")
        a.i(f"s_and_b32 {sWR}, {sW}, 3")
        a.i(f"s_and_b32 s65, {sCG}, 1")
        a.i("s_lshl_b32 s65, s65, 2")
        a.i(f"s_xor_b32 s97, s65, {sW}")
        a.i("s_lshl_b32 s62, s97, 3")
        a.i(f"s_mul_i32 s98, {sRB}, 81920")
        a.i("v_add_u32 v4, s62, v2")
        a.i("v_mul_u32_u24 v4, 1280, v4")
        a.i("v_lshl_add_u32 v4, v3, 4, v4")
        a.i("s_waitcnt lgkmcnt(0)")
        def srd(base, lo, size):
            a.i(f"s_mov_b32 s{base}, s{lo}")
            a.i(f"s_mov_b32 s{base+1}, s{lo+1}")
            a.i(f"s_mov_b32 s{base+2}, {size}")
            a.i(f"s_mov_b32 s{base+3}, 0x20000")
        srd(8, 40, 2621440)
        a.i(f"s_load_dword {sN}, {sWSP}, {WS_X}")
        srd(12, 42, 819200)
        a.i(f"s_cmp_eq_u32 {sCG}, 4")
        a.i("s_cselect_b32 s16, s46, s44")
        a.i("s_cselect_b32 s17, s47, s45")
        a.i("s_mov_b32 s18, 25600")
        a.i("s_mov_b32 s19, 0x20000")
        srd(20, 48, 819200)
        srd(24, 52, 2211840)
        srd(28, 54, 2211840)
        srd(32, 56, 2621440)
        srd(36, 60, WS_END)
        for r in (200, 202, 230, 231, 253, 181, 215, 245, 220, 221, 222, 223, 224, 225, 226, 227, 228, 14, 15, 250): a.i(f"v_mov_b32 v{r}, 0")
        if self.o.get('prof'):
            for k in range(16): a.i(f"s_mov_b32 s{40+k}, 0")
            a.i("s_mov_b32 s55, s94")
        self.stamp(0)
        if self.o.get('span'):
            a.i("s_memrealtime s[90:91]")
            a.i("s_waitcnt lgkmcnt(0)")
            a.i("s_mov_b32 s101, s90")

    def layernorm(self):
        a = self.a
        a.i("v_lshrrev_b32 v5, 1, v3")
        a.i("v_lshlrev_b32 v5, 10, v5")
        a.i("v_and_b32 v6, 1, v3")
        a.i("v_lshlrev_b32 v6, 9, v6")
        a.i("v_xor_b32 v7, v2, v3")
        a.i("v_lshlrev_b32 v7, 4, v7")
        a.i("v_add3_u32 v5, v5, v6, v7")
        a.i("s_and_b32 s62, s97, 3")
        a.i("s_lshl_b32 s62, s62, 7")
        a.i("s_lshr_b32 s64, s97, 2")
        a.i("s_mul_i32 s64, s64, 40960")
        a.i("s_add_u32 s62, s62, s64")
        a.i("v_add_u32 v5, s62, v5")
        Lz = a.newlabel("nz")
        a.i(f"s_cmp_lg_u32 {sW}, 0")
        a.i(f"s_cbranch_scc1 {Lz}")
        a.i("v_lshlrev_b32 v6, 2, v0")
        a.i(f"v_add_u32 v6, {CTRL}, v6")
        a.i("v_mov_b32 v7, 0")
        a.i("ds_write_b32 v6, v7")
        a.label(Lz)
        a.i("s_mov_b32 s62, 0x3f803f80")
        a.i("s_mov_b32 s63, 0xffff0000")
        for k in range(4): a.i(f"v_mov_b32 v{64+k}, 0")
        a.nop(1)
        X = lambda j: f"v{16+j}"
        for j in range(40):
            a.i(f"v_dot2_f32_bf16 v{64+(j&1)}, {X(j)}, s62, v{64+(j&1)}")
            a.i(f"v_dot2_f32_bf16 v{66+(j&1)}, {X(j)}, {X(j)}, v{66+(j&1)}")
        a.nop(3)
        a.i("v_add_f32 v64, v64, v65")
        a.i("v_add_f32 v66, v66, v67")
        a.nop(1)
        for dpp in ("quad_perm:[1,0,3,2]", "quad_perm:[2,3,0,1]", "row_half_mirror"):
            a.i(f"v_add_f32_dpp v64, v64, v64 {dpp} row_mask:0xf bank_mask:0xf")
            a.i(f"v_add_f32_dpp v66, v66, v66 {dpp} row_mask:0xf bank_mask:0xf")
            a.nop(1)
        a.i(f"v_mul_f32 v64, {hx(f2u(1.0/640))}, v64")
        a.i(f"v_mul_f32 v66, {hx(f2u(1.0/640))}, v66")
        a.i("v_fma_f32 v66, -v64, v64, v66")
        a.i("v_max_f32 v66, 0, v66")
        a.i(f"v_add_f32 v66, {hx(f2u(1e-5))}, v66")
        a.i("v_rsq_f32 v68, v66")
        a.nop(1)
        a.i("v_mov_b32 v69, v68")
        a.i("v_mul_f32 v70, v64, v68")
        a.i("v_sub_f32 v70, 0, v70")
        a.i("v_mov_b32 v71, v70")
        self.stamp(3, lvl=2)
        self.role_prefetch()
        a.label("L_LN2")
        self.stamp(4, lvl=2)
        a.i("s_mov_b32 s63, 0xffff0000")
        for g in range(10):
            for d in range(4):
                j = 4 * g + d
                t = 56 + 2 * (j & 3)
                a.i(f"v_lshlrev_b32 v{t}, 16, {X(j)}")
                a.i(f"v_and_b32 v{t+1}, s63, {X(j)}")
            for d in range(4):
                j = 4 * g + d
                t = 56 + 2 * (j & 3)
                a.i(f"v_pk_fma_f32 v[{t}:{t+1}], v[{t}:{t+1}], v[68:69], v[70:71]")
            for d in range(4):
                j = 4 * g + d
                t = 56 + 2 * (j & 3)
                a.i(f"v_cvt_pk_bf16_f32 {X(j)}, v{t}, v{t+1}")
            a.i(f"ds_write_b128 v5, v[{16+4*g}:{19+4*g}] offset:{4096*g}")
        a.i("s_waitcnt lgkmcnt(0)")
        self.stamp(5, lvl=2)
        Lnw = a.newlabel("nw")
        a.i(f"s_cmp_lt_u32 {sW}, 4")
        a.i(f"s_cbranch_scc1 {Lnw}")
        a.i(f"s_and_b32 s62, {sCG}, 3")
        a.i("s_cmp_lg_u32 s62, 0")
        a.i(f"s_cbranch_scc1 {Lnw}")
        a.i("s_waitcnt vmcnt(0)")
        a.label(Lnw)
        a.i("s_barrier")
        a.lg = []

    def xn_addr(self, vA, vB, vt0, vt1, phase_sgpr=None, base_sgpr=None, swap_sgpr=None):
        a = self.a
        a.i(f"v_and_b32 {vt0}, 31, v0")
        a.i(f"v_lshrrev_b32 {vt1}, 5, v0")
        for q in range(4):
            r = f"v{vA+q}"
            if phase_sgpr is None:
                a.i(f"v_add_u32 {r}, {2*q}, {vt1}")
            else:
                a.i(f"s_add_u32 s62, {phase_sgpr}, {q}")
                a.i("s_and_b32 s62, s62, 3")
                a.i("s_lshl_b32 s62, s62, 1")
                a.i(f"v_add_u32 {r}, s62, {vt1}")
            a.i(f"v_xor_b32 {r}, {r}, {vt0}")
            a.i(f"v_lshlrev_b32 {r}, 4, {r}")
            a.i(f"v_lshl_add_u32 {r}, {vt1}, 9, {r}")
            if base_sgpr is not None:
                a.i(f"v_add_u32 {r}, {base_sgpr}, {r}")
            if vB is not None: a.i(f"v_add_u32 v{vB+q}, 40960, {r}")

    WRAPS = (8, 12, 16, 20, 28, 32, 36)
    def rot_setup(self, stride, sK, sRot):
        a = self.a
        a.i(f"s_and_b32 s62, {sRB}, 7")
        a.i("s_lshr_b32 s63, s62, 2")
        a.i("s_add_u32 s62, s62, s63")
        a.i(f"s_lshl_b32 {sRot}, s62, 2")
        if not self.o.get('rot', 1): a.i(f"s_mov_b32 {sRot}, 0")
        a.i(f"s_mul_i32 {sK}, {sRot}, {stride}")
    def rot_next(self, stride, sK, ks=None):
        a = self.a
        a.i(f"s_add_u32 {sK}, {sK}, {stride}")
        if ks is None or (ks + 1) in self.WRAPS:
            a.i(f"s_cmp_eq_u32 {sK}, {40*stride}")
            a.i(f"s_cselect_b32 {sK}, 0, {sK}")
    def rot_xn_base(self, vA, vB, sRot):
        a = self.a
        a.i(f"s_lshl_b32 s62, {sRot}, 10")
        for q in range(4):
            a.i(f"v_add_u32 v{vA+q}, s62, v{vA+q}")
            a.i(f"v_add_u32 v{vB+q}, s62, v{vB+q}")
    def rot_xn_seg(self, vA, vB, sRot, ks):
        a = self.a
        if ks not in self.WRAPS: return
        L = a.newlabel("wrap")
        a.i(f"s_cmp_eq_u32 {sRot}, {40 - ks}")
        a.i(f"s_cbranch_scc0 {L}")
        for q in range(4):
            a.i(f"v_subrev_u32 v{vA+q}, 40960, v{vA+q}")
            a.i(f"v_subrev_u32 v{vB+q}, 40960, v{vB+q}")
        a.label(L)
    def seg_imm(self, ks):
        return ks * 1024

    def ctl_regs(self, vW, vR, vOne):
        a = self.a
        a.i(f"v_lshlrev_b32 {vW}, 2, v0")
        a.i(f"v_add_u32 {vW}, {CTRL + CDUMMY}, {vW}")
        a.i(f"v_mov_b32 {vR}, {CTRL}")
        a.i("v_cmp_eq_u32 vcc, 0, v0")
        a.i(f"v_mov_b32 {vOne}, 1")
        a.nop(1)
        a.i(f"v_cndmask_b32 {vW}, {vW}, {vR}, vcc")

    vDq, vTRq, vTRk = "v200", "v201", "v202"
    A_XA, A_XB = 204, 208
    A_CW, A_CR, A_ONE, A_L16 = "v212", "v213", "v214", "v215"
    A_JA, A_JB = 220, 224

    def wq_dma(self, ks):
        a = self.a
        a.i(f"s_add_u32 m0, s66, {(ks % NSQ) * 1024}")
        a.nop(1)
        t = a.vmem(f"buffer_load_dwordx4 {self.vDq}, {SRD_WQ}, s67 offen lds")
        self.rot_next(20480, "s67", ks)
        return t

    def a_setup_private(self):
        a = self.a
        a.i(f"s_mul_i32 s66, {sWR}, {APRIV}")
        a.i(f"s_add_u32 s66, s66, {QST}")

    def a_prefetch_q_addr(self):
        a = self.a
        a.i("v_lshrrev_b32 v216, 2, v0")
        a.i("v_mul_u32_u24 v216, 1280, v216")
        a.i("v_and_b32 v217, 3, v0")
        a.i("v_min_u32 v217, 2, v217")
        a.i(f"v_lshl_add_u32 {self.vDq}, v217, 4, v216")
        a.i(f"s_lshl_b32 s62, {sCG}, 2")
        a.i(f"s_add_u32 s62, s62, {sWR}")
        a.i("s_mul_i32 s62, s62, 40")
        a.i(f"s_cmp_eq_u32 {sWR}, 3")
        a.i("s_cselect_b32 s63, 8, 0")
        a.i("s_sub_u32 s62, s62, s63")
        a.i(f"v_add_u32 {self.vDq}, s62, {self.vDq}")

    def x_loads(self):
        a = self.a
        for i in range(10):
            a.i(f"buffer_load_dwordx4 v[{16+4*i}:{19+4*i}], v4, {SRD_X}, s98 offen offset:{128*i}")

    def role_setup(self):
        a = self.a
        a.i(f"s_cmp_ge_u32 {sW}, 4")
        a.i("s_cbranch_scc1 L_SET_B")
        self.x_loads()
        self.a_setup_private()
        self.a_prefetch_q_addr()
        self.rot_setup(20480, "s67", "s69")
        self.ctl_regs(self.A_CW, self.A_CR, self.A_ONE)
        a.i(f"v_lshlrev_b32 {self.A_L16}, 4, v0")
        self.xn_addr(self.A_XA, self.A_XB, "v216", "v217")
        self.rot_xn_base(self.A_XA, self.A_XB, "s69")
        a.i(f"s_cmp_eq_u32 {sWR}, 3")
        a.i("s_cselect_b32 s63, 8, 0")
        a.i("s_add_u32 s63, s63, s66")
        self.tr_addr_nat64(self.vTRq, "s63", 64)
        self.ring_addr()
        a.i(f"s_and_b32 s62, {sRB}, 7")
        a.i("s_mul_i32 s62, s62, 240")
        a.i(f"s_mul_i32 s63, {sWR}, 60")
        a.i("s_add_u32 s62, s62, s63")
        a.i("v_min_u32 v216, 59, v0")
        a.i("v_add_u32 v216, s62, v216")
        a.i("v_mul_u32_u24 v217, 0x5556, v216")
        a.i("v_lshrrev_b32 v217, 16, v217")
        a.i("v_mul_u32_u24 v218, 3, v217")
        a.i("v_sub_u32 v216, v216, v218")
        a.i("v_mul_u32_u24 v217, 1280, v217")
        a.i("v_lshl_add_u32 v202, v216, 7, v217")
        a.i(f"s_mul_i32 s62, {sCG}, 160")
        a.i("s_and_b32 s100, s62, 0xffffff80")
        a.i("s_branch L_SET_J")
        a.label("L_SET_B")
        a.i(f"s_mul_i32 s66, {sWR}, {BPRIV}")
        a.i(f"s_add_u32 s66, s66, {BST}")
        a.i(f"s_lshr_b32 s62, {sCG}, 2")
        a.i(f"s_sub_u32 s63, {sCG}, s62")
        a.i("s_sub_u32 s63, s63, 1")
        a.i("s_lshl_b32 s63, s63, 2")
        a.i(f"s_add_u32 s68, s63, {sWR}")
        a.i("s_mov_b32 s99, 1")
        a.i(f"s_and_b32 s63, {sCG}, 3")
        a.i("s_cmp_lg_u32 s63, 0")
        Lp = a.newlabel("pair")
        a.i(f"s_cbranch_scc1 {Lp}")
        a.i("s_lshl_b32 s62, s62, 1")
        a.i(f"s_add_u32 s68, s62, {sWR}")
        a.i("s_add_u32 s68, s68, 22")
        a.i(f"s_cmp_ge_u32 {sWR}, 2")
        a.i("s_cselect_b32 s99, 1, 0")
        a.i("s_cmp_ge_u32 s68, 27")
        a.i("s_cselect_b32 s99, 0, s99")
        a.i("s_cselect_b32 s68, 0, s68")
        a.label(Lp)
        a.i("s_lshl_b32 s68, s68, 1")
        a.i("s_lshl_b32 s62, s68, 6")
        self.pair_dma_addr(self.vD1a, self.vD1b, 3456, "s62")
        self.ctl_regs(self.B_CW, self.B_CR, self.B_ONE)
        a.i(f"v_lshlrev_b32 {self.B_L16}, 4, v0")
        self.rot_setup(16 * 3456, "s67", "s69")
        self.xn_addr(self.B_XA, self.B_XB, "v246", "v247")
        self.rot_xn_base(self.B_XA, self.B_XB, "s69")
        self.pair_tr_addr(self.vTRa, self.vTRb, 8, "s66")
        self.out_tiles_setup()
        self.out_mixed_addr()
        self.ffn2_addr()
        a.i(f"s_and_b32 s64, {sRB}, 7")
        a.i("s_mul_i32 s62, s64, 80")
        a.i("v_min_u32 v246, 39, v0")
        a.i("v_add_u32 v246, s62, v246")
        a.i("v_mul_u32_u24 v246, 3456, v246")
        a.i("s_lshl_b32 s62, s68, 6")
        a.i("v_add_u32 v226, s62, v246")
        a.i("s_mul_i32 s62, s64, 54")
        a.i(f"s_mul_i32 s63, {sWR}, 432")
        a.i("s_add_u32 s62, s62, s63")
        a.i("v_min_u32 v246, 53, v0")
        a.i("v_add_u32 v246, s62, v246")
        a.i("v_mul_u32_u24 v227, 1280, v246")
        a.i("s_mul_i32 s62, s64, 20")
        a.i(f"s_mul_i32 s63, {sWR}, 160")
        a.i("s_add_u32 s62, s62, s63")
        a.i("v_min_u32 v246, 39, v0")
        a.i("v_cmp_gt_u32 vcc, 20, v246")
        a.i("v_subrev_u32 v247, 20, v246")
        a.i("v_mov_b32 v248, s81")
        a.i("v_mov_b32 v249, s80")
        a.i("v_cndmask_b32 v246, v247, v246, vcc")
        a.i("v_cndmask_b32 v248, v248, v249, vcc")
        a.i("v_add_u32 v246, s62, v246")
        a.i("v_mul_u32_u24 v246, 1280, v246")
        a.i("v_add_u32 v228, v246, v248")
        a.i(f"s_mov_b32 s62, {WKI}")
        self.tr_addr_nat64(self.B_TRK, "s62", 40, "v246", "v247")
        a.i(f"s_and_b32 s64, {sWR}, 1")
        a.i("s_mul_i32 s64, s64, 40960")
        self.xn_addr(self.B_JA, None, "v246", "v247", base_sgpr="s64")
        a.i("v_lshlrev_b32 v253, 4, v0")
        a.i(f"s_mul_i32 s62, {sWR}, 6400")
        a.i("v_add_u32 v253, s62, v253")
        self.x_loads()
        a.i(f"s_and_b32 s64, {sCG}, 3")
        a.i("s_cmp_lg_u32 s64, 0")
        a.i("s_cbranch_scc1 L_SET_J")
        a.i(f"s_add_u32 s63, s62, {WKI}")
        a.i("s_mov_b32 m0, s63")
        a.i("s_mov_b32 s62, 0")
        for j in range(4):
            a.i(f"buffer_load_dwordx4 v253, {SRD_WKV}, s62 offen offset:{1024*j} lds")
        a.i("s_add_u32 m0, s63, 4096")
        a.i("s_mov_b32 s62, 4096")
        for j in range(3):
            a.i(f"buffer_load_dwordx4 v253, {SRD_WKV}, s62 offen offset:{1024*j} lds")
        a.i("s_waitcnt vmcnt(7)")
        a.i("s_branch L_SET_X")
        a.label("L_SET_J")
        a.i("s_waitcnt vmcnt(0)")
        a.label("L_SET_X")

    def role_prefetch(self):
        a = self.a
        Lb = a.newlabel("pfb")
        a.i(f"s_cmp_ge_u32 {sW}, 4")
        a.i(f"s_cbranch_scc1 {Lb}")
        a.vm = []
        self.qtok = [self.wq_dma(ks) for ks in range(NSQ)]
        a.i("s_branch L_LN2")
        a.label(Lb)

    def tr_addr_nat64(self, vdst, base_sgpr, pitch, t0="v216", t1="v217"):
        a = self.a
        a.i(f"v_lshrrev_b32 {t0}, 5, v0")
        a.i(f"v_lshlrev_b32 {t0}, 3, {t0}")
        a.i(f"v_bfe_u32 {t1}, v0, 2, 2")
        a.i(f"v_add_u32 {t0}, {t0}, {t1}")
        a.i(f"v_mul_u32_u24 {t0}, {pitch}, {t0}")
        a.i(f"v_bfe_u32 {t1}, v0, 4, 1")
        a.i(f"v_lshl_add_u32 {t0}, {t1}, 5, {t0}")
        a.i(f"v_and_b32 {t1}, 3, v0")
        a.i(f"v_lshl_add_u32 {t0}, {t1}, 3, {t0}")
        a.i(f"v_add_u32 {vdst}, {base_sgpr}, {t0}")

    def wave_max(self, regs):
        a = self.a
        for dpp in ("row_shr:1 row_mask:0xf", "row_shr:2 row_mask:0xf", "row_shr:4 row_mask:0xf", "row_shr:8 row_mask:0xf",
                    "row_bcast:15 row_mask:0xa", "row_bcast:31 row_mask:0xc"):
            a.nop(2 if len(regs) == 1 else (1 if len(regs) == 2 else 0))
            for r in regs:
                a.i(f"v_max_f32_dpp {r}, {r}, {r} {dpp} bank_mask:0xf")
        a.nop(1)

    def kv_job(self, isV):
        a = self.a
        a.c("---- K/V projection job: B waves 0/1 = m-tile, full K ----")
        D = 16
        def fr(kk): return 48 + 8 * (kk % 4)
        toks = {}
        def reads(kk):
            b = fr(kk); t = []
            t.append(a.lds(f"ds_read_b64_tr_b16 v[{b}:{b+1}], {self.B_TRK} offset:{kk*640}"))
            t.append(a.lds(f"ds_read_b64_tr_b16 v[{b+2}:{b+3}], {self.B_TRK} offset:{kk*640+160}"))
            t.append(a.lds(f"ds_read_b128 v[{b+4}:{b+7}], v{self.B_JA + kk % 4} offset:{kk*1024}"))
            toks[kk] = t
        for kk in range(3): reads(kk)
        for kk in range(40):
            a.wait(lg=toks[kk])
            b = fr(kk)
            W = f"v[{b}:{b+3}]"; X = f"v[{b+4}:{b+7}]"
            C = "0" if kk == 0 else f"v[{D}:{D+15}]"
            if isV: a.i(f"v_mfma_f32_32x32x16_bf16 v[{D}:{D+15}], {X}, {W}, {C}")
            else:   a.i(f"v_mfma_f32_32x32x16_bf16 v[{D}:{D+15}], {W}, {X}, {C}")
            if kk + 3 < 40: reads(kk + 3)
        self.stamp(7, lvl=2)
        a.i(f"s_lshr_b32 s62, {sRB}, 1")
        a.i(f"s_mul_i32 s62, s62, {KVCH}")
        a.i(f"s_add_u32 s62, s62, {WS_KV}")
        a.i(f"s_and_b32 s63, {sRB}, 1")
        a.i("s_lshl_b32 s65, s63, 1")
        a.i(f"s_add_u32 s65, s65, {sWR}")
        a.i("v_and_b32 v93, 31, v0")
        a.i("v_lshrrev_b32 v95, 5, v0")
        if not isV:
            a.i("s_lshl_b32 s64, s65, 10")
            a.i("s_add_u32 s64, s62, s64")
            a.i("s_lshl_b32 s63, s63, 9")
            a.i("s_add_u32 s62, s62, s63")
            a.i(f"s_lshl_b32 s63, {sWR}, 3")
            a.i("s_add_u32 s62, s62, s63")
            a.i(f"s_add_u32 s62, s62, {KV_KH}")
            a.i("v_cmp_gt_u32 vcc, 32, v0")
            a.nop(2)
            for j in range(6): a.i(f"v_cvt_pk_bf16_f32 v{88+j if j < 4 else 96+j-4}, v{D+2*j}, v{D+2*j+1}")
            a.vmem(f"buffer_store_dwordx4 v[88:91], {self.B_L16}, {SRD_WS}, s64 offen sc1")
            a.i("s_mov_b32 exec_lo, -1"); a.i("s_mov_b32 exec_hi, 0")
            a.vmem(f"buffer_store_dwordx2 v[96:97], {self.B_L16}, {SRD_WS}, s62 offen sc1")
            a.i("s_mov_b64 exec, -1")
            a.i(f"v_mul_f32 v92, v{D+8}, v{D+8}")
            for j in range(9, 12): a.i(f"v_fmac_f32 v92, v{D+j}, v{D+j}")
            a.nop(1)
            a.i("v_cndmask_b32 v92, 0, v92, vcc")
            for j in range(8): a.i(f"v_fmac_f32 v92, v{D+j}, v{D+j}")
            a.i("v_mov_b32 v93, v92")
            a.nop(2)
            a.i("v_permlane32_swap_b32 v92, v93")
            a.nop(1)
            a.i("v_add_f32 v92, v92, v93")
            norm_base = WS_KN
        else:
            a.i(f"v_mul_u32_u24 v95, {VROW}, v95")
            a.i("v_lshl_add_u32 v95, v93, 4, v95")
            a.i("s_lshl_b32 s65, s65, 1")
            a.i(f"s_mul_i32 s65, s65, {VFR}")
            a.i("s_add_u32 s62, s62, s65")
            a.i(f"s_add_u32 s62, s62, {KV_V}")
            a.i("v_cmp_eq_u32 vcc, 20, v93")
            a.i("v_cmp_eq_u32 s[64:65], 21, v93")
            a.i("v_mov_b32 v94, 0x3f803f80")
            a.i("v_mov_b32 v98, 0")
            for j in range(8): a.i(f"v_cvt_pk_bf16_f32 v{80+j}, v{D+2*j}, v{D+2*j+1}")
            for j in range(8): a.i(f"v_cndmask_b32 v{80+j}, v{80+j}, v94, vcc")
            for j in range(8): a.i(f"v_cndmask_b32 v{80+j}, v{80+j}, v98, s[64:65]")
            a.i("s_mov_b32 exec_lo, 0x3fffff")
            a.i("s_mov_b32 exec_hi, 0x3fffff")
            a.vmem(f"buffer_store_dwordx4 v[80:83], v95, {SRD_WS}, s62 offen sc1")
            a.vmem(f"buffer_store_dwordx4 v[84:87], v95, {SRD_WS}, s62 offen offset:{VFR} sc1")
            a.i("s_mov_b64 exec, -1")
            a.i(f"v_max3_f32 v92, abs(v{D}), abs(v{D+1}), abs(v{D+2})")
            for j in range(3, 15, 2): a.i(f"v_max3_f32 v92, v92, abs(v{D+j}), abs(v{D+j+1})")
            a.i(f"v_max3_f32 v92, v92, abs(v{D+15}), abs(v{D+15})")
            a.i("v_cmp_gt_u32 vcc, 20, v93")
            a.nop(2)
            a.i("v_cndmask_b32 v92, 0, v92, vcc")
            norm_base = WS_VN
        self.stamp(9, lvl=2)
        self.wave_max(["v92"])
        a.i("v_readlane_b32 s63, v92, 63")
        a.i(f"s_lshl_b32 s62, {sRB}, 1")
        a.i(f"s_add_u32 s62, s62, {sWR}")
        a.i("s_lshl_b32 s62, s62, 2")
        a.i(f"s_add_u32 s62, s62, {norm_base}")
        a.i("v_mov_b32 v92, s63")
        a.i("v_mov_b32 v93, 0")
        a.i("s_mov_b64 exec, 1")
        a.vmem(f"buffer_store_dword v92, v93, {SRD_WS}, s62 offen sc1")
        a.i("s_mov_b64 exec, -1")
        a.wait(vm='all')
        self.stamp(10, lvl=2)
        a.lds(f"ds_add_rtn_u32 v248, {self.B_CW}, {self.B_ONE} offset:{C_KVD}")
        a.wait(lg='all')
        a.i("v_readfirstlane_b32 s62, v248")
        Lnf = a.newlabel("kvnf")
        a.nop(1)
        a.i("s_cmp_lg_u32 s62, 1")
        a.i(f"s_cbranch_scc1 {Lnf}")
        a.i("v_lshlrev_b32 v92, 8, v0")
        a.i(f"v_mov_b32 v93, {sN}")
        a.i(f"s_lshl_b32 s62, {sRB}, 1")
        a.i(f"s_add_u32 s62, s62, {1 if isV else 0}")
        a.i("s_lshl_b32 s62, s62, 2")
        a.i(f"s_add_u32 s62, s62, {WS_FKV}")
        a.i("s_mov_b32 exec_lo, -1"); a.i("s_mov_b32 exec_hi, 0")
        a.i(f"buffer_store_dword v93, v92, {SRD_WS}, s62 offen sc1")
        a.i("s_mov_b64 exec, -1")
        a.label(Lnf)
        a.vm = []

    def q_proj(self):
        a = self.a
        a.c("---- Q projection (transposed): wave = head, both m-tiles ----")
        NS = NSQ
        dt = self.qtok
        if self.o.get('kvgate', 1):
            Lgo = a.newlabel("qgo")
            a.i(f"s_and_b32 s62, {sCG}, 3")
            a.i("s_cmp_lg_u32 s62, 0")
            a.i(f"s_cbranch_scc1 {Lgo}")
            self.lds_spin_ge(C_KVD, 2, "v218", self.A_CR, sleep=1)
            a.label(Lgo)
        a.vm = list(dt); a.lg = []
        B = lambda ks: 48 + 12 * (ks % 3)
        dm = {k: dt[k] for k in range(NS)}
        toks = {}
        def reads(ks):
            a.wait(vm=dm[ks])
            b = B(ks); sl = (ks % NS) * 1024; t = []
            t.append(a.lds(f"ds_read_b64_tr_b16 v[{b}:{b+1}], {self.vTRq} offset:{sl}"))
            t.append(a.lds(f"ds_read_b64_tr_b16 v[{b+2}:{b+3}], {self.vTRq} offset:{sl+256}"))
            self.rot_xn_seg(self.A_XA, self.A_XB, "s69", ks)
            t.append(a.lds(f"ds_read_b128 v[{b+4}:{b+7}], v{self.A_XA + ks % 4} offset:{self.seg_imm(ks)}"))
            t.append(a.lds(f"ds_read_b128 v[{b+8}:{b+11}], v{self.A_XB + ks % 4} offset:{self.seg_imm(ks)}"))
            toks[ks] = t
        reads(0); reads(1)
        for ks in range(40):
            if ks in (0, 10, 20, 30): self.stamp(6 + ks // 10, lvl=2)
            a.wait(lg=toks[ks])
            b = B(ks)
            C = "0" if ks == 0 else "v[16:31]"
            a.i(f"v_mfma_f32_32x32x16_bf16 v[16:31], v[{b}:{b+3}], v[{b+4}:{b+7}], {C}")
            if ks + 2 < 40: reads(ks + 2)
            C = "0" if ks == 0 else "v[32:47]"
            a.i(f"v_mfma_f32_32x32x16_bf16 v[32:47], v[{b}:{b+3}], v[{b+8}:{b+11}], {C}")
            if ks + NS < 40: dm[ks + NS] = self.wq_dma(ks + NS)
            if ks + NS == 39: self.lds_count(C_QISS, self.A_CW, self.A_ONE)
        self.lds_count(C_XND, self.A_CW, self.A_ONE)
        self.lds_count(C_QDONE, self.A_CW, self.A_ONE)

    S_ = {'a': 16, 'b': 32}; O_ = {'a': 48, 'b': 64}; P_ = {'a': 80, 'b': 88}; C_ = {'a': 96, 'b': 112}
    QL = {'a': 128, 'b': 132}; QH = {'a': 136, 'b': 138}
    KL = [140, 144]; KH = [148, 152]; VV = [156, 164]
    vKL, vKH, vV, vCnt, vDkv = "v172", "v173", "v174", "v180", "v181"
    N2 = {'a': "v182", 'b': "v183"}

    def q_epilogue(self):
        a = self.a
        a.c("---- Q epilogue: scale, pack to bf16 B operands, squared norms ----")
        a.i("v_cmp_gt_u32 vcc, 32, v0")
        a.i(f"v_mov_b32 v216, {hx(f2u(QSCALE))}")
        a.i("v_mov_b32 v217, 0")
        a.nop(7)
        a.i("v_cndmask_b32 v217, v217, v216, vcc")
        for u, D in (('a', 16), ('b', 32)):
            for j in range(8): a.i(f"v_mul_f32 v{D+j}, v216, v{D+j}")
            for j in range(8, 12): a.i(f"v_mul_f32 v{D+j}, v217, v{D+j}")
            for j in range(4): a.i(f"v_cvt_pk_bf16_f32 v{self.QL[u]+j}, v{D+2*j}, v{D+2*j+1}")
            for j in range(2): a.i(f"v_cvt_pk_bf16_f32 v{self.QH[u]+j}, v{D+8+2*j}, v{D+9+2*j}")
            n = self.N2[u]
            a.i(f"v_mul_f32 {n}, v{D}, v{D}")
            for j in range(1, 12): a.i(f"v_fmac_f32 {n}, v{D+j}, v{D+j}")
        for u in "ab":
            a.i(f"v_mov_b32 v{218 if u=='a' else 219}, {self.N2[u]}")
        a.nop(1)
        a.i(f"v_permlane32_swap_b32 {self.N2['a']}, v218")
        a.i(f"v_permlane32_swap_b32 {self.N2['b']}, v219")
        a.nop(1)
        a.i(f"v_add_f32 {self.N2['a']}, {self.N2['a']}, v218")
        a.i(f"v_add_f32 {self.N2['b']}, {self.N2['b']}, v219")

    def qk(self, u, kl, kh, dst=None):
        S = self.S_[u] if dst is None else dst
        C = self.C_[u]
        m0 = f"v_mfma_f32_32x32x16_bf16 v[{S}:{S+15}], v[{kl}:{kl+3}], v[{self.QL[u]}:{self.QL[u]+3}], v[{C}:{C+15}]"
        m1 = f"v_mfma_f32_32x32x8_bf16 v[{S}:{S+15}], v[{kh}:{kh+1}], v[{self.QH[u]}:{self.QH[u]+1}], v[{S}:{S+15}]"
        return m0, m1
    def pv(self, u, vv):
        O = self.O_[u]; P = self.P_[u]
        m0 = f"v_mfma_f32_32x32x16_bf16 v[{O}:{O+15}], v[{vv}:{vv+3}], v[{P}:{P+3}], v[{O}:{O+15}]"
        m1 = f"v_mfma_f32_32x32x16_bf16 v[{O}:{O+15}], v[{vv+4}:{vv+7}], v[{P+4}:{P+7}], v[{O}:{O+15}]"
        return m0, m1

    def ring_addr(self):
        a = self.a
        a.i(f"v_add_u32 {self.vKL}, {AREG}, {self.A_L16}")
        a.i("v_and_b32 v216, 31, v0")
        a.i(f"v_lshlrev_b32 {self.vKH}, 4, v216")
        a.i(f"v_add_u32 {self.vKH}, {AREG + KV_KH}, {self.vKH}")
        a.i("v_min_u32 v217, 21, v216")
        a.i("v_cmp_eq_u32 vcc, 24, v216")
        a.i("v_lshrrev_b32 v219, 5, v0")
        a.i(f"v_mul_u32_u24 v219, {VROW}, v219")
        a.i("v_mov_b32 v218, 20")
        a.i("v_cndmask_b32 v217, v217, v218, vcc")
        a.i("v_lshl_add_u32 v217, v217, 4, v219")
        a.i(f"v_add_u32 {self.vV}, {AREG + KV_V}, v217")
        a.i(f"s_mul_i32 s62, {sWR}, {RSHARE}")
        a.i(f"v_add_u32 {self.vDkv}, s62, {self.A_L16}")
        a.i(f"s_add_u32 s72, s62, {AREG}")
        a.i("s_bfe_u32 s62, s2, 0x40003")
        if not self.o.get('rot', 1): a.i("s_mov_b32 s62, 0")
        a.i(f"s_mul_i32 s79, s62, {KVCH}")
        a.i(f"s_add_u32 s79, s79, {WS_KV}")

    def ring_dma(self, slot):
        a = self.a
        a.i(f"s_add_u32 m0, s72, {slot*RSLOT}")
        a.i(f"s_add_u32 s73, s79, {KVCH}")
        t = [a.vmem(f"buffer_load_dwordx4 {self.vDkv}, {SRD_WS}, s79 offen offset:{1024*j} sc1 lds") for j in range(3)]
        a.i(f"s_cmp_eq_u32 s73, {WS_KV + 16*KVCH}")
        a.i(f"s_cselect_b32 s79, {WS_KV}, s73")
        return t

    def att_init_regs(self):
        a = self.a
        for r in list(range(48, 80)) + list(range(88, 96)) + list(range(self.VV[1], self.VV[1] + 8)):
            a.i(f"v_mov_b32 v{r}, 0")

    def kv_wait(self):
        a = self.a
        a.c("---- wait for K/V of all row blocks ----")
        Lw = a.newlabel("kvw"); Lj = a.newlabel("kvj")
        a.i(f"s_cmp_lg_u32 {sWR}, 0")
        a.i(f"s_cbranch_scc1 {Lw}")
        a.i("v_lshlrev_b32 v216, 2, v0")
        a.i(f"s_lshl_b32 s63, {sRB}, 8")
        a.i(f"s_add_u32 s63, s63, {WS_FKV}")
        self.glb_poll("v216", "s63", "v217", sleep=2)
        a.i(f"ds_add_u32 {self.A_CW}, {self.A_ONE} offset:{C_KVRDY}")
        a.i(f"s_branch {Lj}")
        a.label(Lw)
        self.lds_spin_ge(C_KVRDY, 1, "v218", self.A_CR, sleep=0)
        a.label(Lj)
        a.lg = []; a.vm = []
        a.i("s_waitcnt lgkmcnt(0)")

    def shift_setup(self):
        a = self.a
        a.c("---- softmax shift ----")
        a.i("v_lshlrev_b32 v216, 2, v0")
        a.i(f"s_mov_b32 s62, {WS_KN}")
        t1 = a.vmem(f"buffer_load_dword v184, v216, {SRD_WS}, s62 offen sc1")
        a.i(f"s_mov_b32 s63, {WS_VN}")
        t2 = a.vmem(f"buffer_load_dword v186, v216, {SRD_WS}, s63 offen sc1")
        self.lds_spin_ge(C_QDONE, 4, "v218", self.A_CR, sleep=0)
        pre = [self.ring_dma(c) for c in range(3)]
        self.lds_count(C_GO, self.A_CW, self.A_ONE)
        a.wait(vm=[t1, t2])
        self.wave_max(["v184", "v186"])
        a.i("v_readlane_b32 s62, v184, 63")
        a.i("v_readlane_b32 s64, v186, 63")
        a.nop(1)
        a.i("v_mov_b32 v184, s62")
        a.i("v_mov_b32 v186, s64")
        a.i("v_max_f32 v186, 1.0, v186")
        a.i("v_log_f32 v186, v186")
        a.i(f"v_mov_b32 v185, {hx(f2u(56.5))}")
        for u in "ab":
            n = self.N2[u]
            a.i(f"v_mul_f32 {n}, {n}, v184")
        a.i("v_fma_f32 v186, v186, -0.5, v185")
        for u in "ab": a.i(f"v_sqrt_f32 {self.N2[u]}, {self.N2[u]}")
        a.nop(1)
        for u in "ab": a.i(f"v_mul_f32 {self.N2[u]}, {hx(f2u(1.02))}, {self.N2[u]}")
        a.i(f"v_cmp_nle_f32 vcc, {self.N2['a']}, v186")
        a.i(f"v_cmp_nle_f32 s[64:65], {self.N2['b']}, v186")
        a.nop(1)
        a.i("s_or_b64 vcc, vcc, s[64:65]")
        if self.o.get('force_fallback'): a.i("s_mov_b64 vcc, -1")
        Lsafe = a.newlabel("safe")
        a.i(f"s_cbranch_vccz {Lsafe}")
        self.true_max_pass()
        a.label(Lsafe)
        for u in "ab":
            for j in range(16): a.i(f"v_mov_b32 v{self.C_[u]+j}, {self.N2[u]}")
        return pre

    def true_max_pass(self):
        a = self.a
        a.c("---- fallback: true row max ----")
        for u in "ab":
            for j in range(16): a.i(f"v_mov_b32 v{self.C_[u]+j}, 0")
            a.i(f"v_mov_b32 {self.N2[u]}, 0xff800000")
        a.i("v_and_b32 v216, 31, v0")
        a.i("v_lshlrev_b32 v216, 4, v216")
        a.i("s_mov_b32 s64, 0")
        L = a.newlabel("tm")
        a.label(L)
        a.i("s_lshr_b32 s62, s64, 2")
        a.i(f"s_mul_i32 s62, s62, {KVCH}")
        a.i(f"s_add_u32 s62, s62, {WS_KV}")
        a.i("s_and_b32 s63, s64, 3")
        a.i("s_lshl_b32 s65, s63, 10")
        a.i("s_add_u32 s65, s65, s62")
        a.i(f"buffer_load_dwordx4 v[{self.KL[0]}:{self.KL[0]+3}], {self.A_L16}, {SRD_WS}, s65 offen sc1")
        a.i("s_lshr_b32 s65, s63, 1")
        a.i("s_lshl_b32 s65, s65, 9")
        a.i("s_and_b32 s63, s63, 1")
        a.i("s_lshl_b32 s63, s63, 3")
        a.i("s_add_u32 s65, s65, s63")
        a.i("s_add_u32 s65, s65, s62")
        a.i("s_add_u32 s65, s65, 4096")
        a.i(f"buffer_load_dwordx2 v[{self.KH[0]}:{self.KH[0]+1}], v216, {SRD_WS}, s65 offen sc1")
        a.i("s_waitcnt vmcnt(0)")
        for u in "ab":
            for m in self.qk(u, self.KL[0], self.KH[0]): a.i(m)
        a.nop(12)
        for u in "ab":
            S = self.S_[u]
            for j in range(8): a.i(f"v_max3_f32 {self.N2[u]}, {self.N2[u]}, v{S+2*j}, v{S+2*j+1}")
        a.i("s_add_u32 s64, s64, 1")
        a.i("s_cmp_lt_u32 s64, 64")
        a.i(f"s_cbranch_scc1 {L}")
        a.i(f"v_mov_b32 v218, {self.N2['a']}")
        a.i(f"v_mov_b32 v219, {self.N2['b']}")
        a.nop(1)
        a.i(f"v_permlane32_swap_b32 {self.N2['a']}, v218")
        a.i(f"v_permlane32_swap_b32 {self.N2['b']}, v219")
        a.nop(1)
        a.i(f"v_max_f32 {self.N2['a']}, {self.N2['a']}, v218")
        a.i(f"v_max_f32 {self.N2['b']}, {self.N2['b']}, v219")
        a.i(f"v_sub_f32 {self.N2['a']}, 0, {self.N2['a']}")
        a.i(f"v_sub_f32 {self.N2['b']}, 0, {self.N2['b']}")

    def attention(self, pre):
        a = self.a
        a.c("---- attention main loop ----")
        a.wait(vm=pre[0])
        a.lds(f"ds_add_u32 {self.A_CW}, {self.A_ONE} offset:{C_ARR}")
        self.lds_spin_ge(C_ARR, 4, self.vCnt, self.A_CR, sleep=0)
        a.i("s_mov_b32 s74, 0")
        a.i("s_mov_b32 s78, 8")
        a.lds(f"ds_read_b128 v[{self.KL[0]}:{self.KL[0]+3}], {self.vKL}")
        a.lds(f"ds_read_b128 v[{self.KH[0]}:{self.KH[0]+3}], {self.vKH}")
        a.wait(lg='all')
        for m in self.qk('a', self.KL[0], self.KH[0]): a.i(m)
        a.nop(9)
        self.stamp(7)
        self.stamp(10, True)
        L = "L_ATT"
        a.raw(".p2align 6")
        a.label(L)
        self.loop_start = len(a.lines)
        def egroup(u, k):
            S = self.S_[u]; P = self.P_[u]
            for e in range(4): a.i(f"v_exp_f32 v{S+4*k+e}, v{S+4*k+e}")
            a.i(f"v_cvt_pk_bf16_f32 v{P+2*k}, v{S+4*k}, v{S+4*k+1}")
            a.i(f"v_cvt_pk_bf16_f32 v{P+2*k+1}, v{S+4*k+2}, v{S+4*k+3}")
        for slot in range(4):
            base = slot * RSLOT; nbase = ((slot + 1) % 4) * RSLOT
            a.vm = []; a.lg = []
            if self.o.get('prof') == 3:
                a.i("s_memtime s[90:91]"); a.i("s_waitcnt lgkmcnt(0)")
            a.i("s_waitcnt vmcnt(3)")
            if self.o.get('prof') == 3:
                a.i("s_memtime s[92:93]"); a.i("s_waitcnt lgkmcnt(0)")
                a.i("s_sub_u32 s92, s92, s90"); a.i("s_add_u32 s44, s44, s92")
            a.lds(f"ds_add_u32 {self.A_CW}, {self.A_ONE} offset:{C_ARR}")
            for t in range(4):
                kh = self.KH[(t >> 1) % 2] + 2 * (t & 1)
                q0, q1 = self.qk('b', self.KL[t % 2], kh)
                p0, p1 = self.pv('b', self.VV[(t - 1) % 2])
                rd = []
                kn = self.KL[(t + 1) % 2]
                rd.append(('K', f"ds_read_b128 v[{kn}:{kn+3}], {self.vKL} offset:{base + (t+1)*1024 if t < 3 else nbase}"))
                if t & 1:
                    hn = self.KH[((t + 1) >> 1) % 2]
                    rd.append(('K', f"ds_read_b128 v[{hn}:{hn+3}], {self.vKH} offset:{base + 512 if t < 3 else nbase}"))
                vv = self.VV[t % 2]
                rd.append(('V', f"ds_read_b128 v[{vv}:{vv+3}], {self.vV} offset:{base + (2*t)*VFR}"))
                rd.append(('V', f"ds_read_b128 v[{vv+4}:{vv+7}], {self.vV} offset:{base + (2*t+1)*VFR}"))
                ktok, vtok = [], []
                for k, m in enumerate((q0, q1, p0, p1)):
                    a.i(m)
                    if k < len(rd):
                        tk = a.lds(rd[k][1]); (ktok if rd[k][0] == 'K' else vtok).append(tk)
                    egroup('a', k)
                khn = self.KH[((t + 1) >> 1) % 2] + 2 * ((t + 1) & 1)
                q0, q1 = self.qk('a', self.KL[(t + 1) % 2], khn)
                p0, p1 = self.pv('a', self.VV[t % 2])
                a.wait(lg=ktok)
                for k, m in enumerate((q0, q1, p0, p1)):
                    if k == 2: a.wait(lg=vtok)
                    a.i(m)
                    if t == 0 and k == 3:
                        a.lds(f"ds_read_b32 {self.vCnt}, {self.A_CR} offset:{C_ARR}")
                    if t == 1 and k == 0:
                        Lok = a.newlabel("arr")
                        a.i(f"v_cmp_gt_u32 vcc, s78, {self.vCnt}")
                        a.i(f"s_cbranch_vccz {Lok}")
                        if self.o.get('prof'): a.i("s_add_u32 s52, s52, 1")
                        keep = list(a.lg)
                        self.lds_spin_ge(C_ARR, "s78", self.vCnt, self.A_CR, sleep=0)
                        a.lg = keep
                        a.label(Lok)
                    if t == 1 and k == 1:
                        if self.o.get('prof') == 3:
                            a.i("s_memtime s[90:91]"); a.i("s_waitcnt lgkmcnt(0)")
                        self.ring_dma((slot + 3) % 4)
                        if self.o.get('prof') == 3:
                            a.i("s_memtime s[92:93]"); a.i("s_waitcnt lgkmcnt(0)")
                            a.i("s_sub_u32 s92, s92, s90"); a.i("s_add_u32 s45, s45, s92")
                        a.i("s_add_u32 s78, s78, 4")
                    egroup('b', k)
        if self.o.get('prof') == 1:
            a.i("s_memtime s[56:57]" if self.o.get('qcyc') else "s_memrealtime s[56:57]")
            a.i("s_waitcnt lgkmcnt(0)")
            for k in range(3):
                a.i(f"s_cmp_eq_u32 s74, {k}")
                a.i(f"s_cselect_b32 s{53+k if k < 2 else 43}, s56, s{53+k if k < 2 else 43}")
        a.i("s_add_u32 s74, s74, 1")
        a.i("s_cmp_lt_u32 s74, 4")
        self.loop_end = len(a.lines)
        a.i(f"s_cbranch_scc1 {L}")
        for m in self.pv('b', self.VV[1]): a.i(m)
        a.vm = []; a.lg = []

    def o_addr(self):
        a = self.a
        a.i(f"s_lshl_b32 s62, {sRB}, 1")
        a.i("s_mul_i32 s62, s62, 40960")
        a.i(f"s_add_u32 s80, s62, {WS_O}")
        a.i(f"s_mul_i32 s63, {sCG}, 5")
        a.i(f"s_add_u32 s81, s63, {sWR}")
        a.i("s_lshl_b32 s81, s81, 10")
        a.i("s_add_u32 s63, s63, 4")
        a.i("s_lshl_b32 s63, s63, 10")
        a.i(f"s_lshr_b32 s65, {sWR}, 1")
        a.i("s_lshl_b32 s65, s65, 9")
        a.i("s_add_u32 s63, s63, s65")
        a.i(f"s_and_b32 s65, {sWR}, 1")
        a.i("s_lshl_b32 s65, s65, 3")
        a.i("s_add_u32 s82, s63, s65")

    def o_epilogue(self):
        a = self.a
        a.c("---- normalise O, publish ----")
        a.i("v_cmp_gt_u32 vcc, 32, v0")
        a.nop(2)
        for mt, u in enumerate("ab"):
            O = self.O_[u]
            a.i(f"v_cndmask_b32 v216, v{O+8}, v{O+12}, vcc")
            a.i("v_rcp_f32 v216, v216")
            a.nop(1)
            for j in range(12): a.i(f"v_mul_f32 v{O+j}, v216, v{O+j}")
            P = self.P_[u]
            for j in range(6): a.i(f"v_cvt_pk_bf16_f32 v{P+j}, v{O+2*j}, v{O+2*j+1}")
            a.i(f"s_add_u32 s68, s80, {mt*40960}")
            a.i("s_add_u32 s69, s68, s81")
            a.vmem(f"buffer_store_dwordx4 v[{P}:{P+3}], {self.A_L16}, {SRD_WS}, s69 offen sc1")
            a.i("s_add_u32 s69, s68, s82")
            a.i("s_mov_b32 exec_lo, -1"); a.i("s_mov_b32 exec_hi, 0")
            a.vmem(f"buffer_store_dwordx2 v[{P+4}:{P+5}], {self.A_L16}, {SRD_WS}, s69 offen sc1")
            a.i("s_mov_b64 exec, -1")
        a.wait(vm='all')
        a.lds(f"ds_add_rtn_u32 v218, {self.A_CW}, {self.A_ONE} offset:{C_OD}")
        a.wait(lg='all')
        a.i("v_readfirstlane_b32 s62, v218")
        a.nop(1)
        a.i("s_cmp_lg_u32 s62, 3")
        a.i("s_cbranch_scc1 L_AEND")
        a.i(f"s_lshl_b32 s62, {sRB}, 7")
        a.i(f"s_lshl_b32 s63, {sCG}, 2")
        a.i("s_add_u32 s62, s62, s63")
        a.i(f"s_add_u32 s62, s62, {WS_FO}")
        a.i(f"v_mov_b32 v217, {sN}")
        a.i("v_mov_b32 v216, 0")
        a.i("s_mov_b64 exec, 1")
        a.i(f"buffer_store_dword v217, v216, {SRD_WS}, s62 offen sc1")
        a.i("s_mov_b64 exec, -1")
        a.label("L_AEND")
        self.stamp(9)
        self.stamp(9, lvl=3)
        self.stamp_flush()
        a.i("s_branch L_END")

    def role_a(self):
        a = self.a
        a.label("L_ROLE_A")
        a.i(f"s_setprio {self.o.get('prioQ', 2)}")
        dt = None
        if self.o.get('noQ'):
            a.i("s_waitcnt vmcnt(0)")
            self.lds_count(C_XND, self.A_CW, self.A_ONE)
            for r in range(16, 48): a.i(f"v_mov_b32 v{r}, 0")
        else: self.q_proj()
        self.stamp(10, lvl=2)
        self.stamp(4)
        self.q_epilogue()
        if self.o.get('dump') == 'q':
            self.dump_regs(128, 12, 0, self.A_L16)
        self.att_init_regs()
        self.o_addr()
        a.i(f"s_setprio {self.o.get('prioA', 2)}")
        self.kv_wait()
        self.stamp(5)
        pre = self.shift_setup()
        self.stamp(6)
        if not self.o.get('noatt'): self.attention(pre)
        else:
            self.loop_start = self.loop_end = len(a.lines)
            a.i("s_waitcnt vmcnt(0)")
        self.stamp(11, True)
        self.stamp(8)
        if self.o.get('dump') == 'o':
            a.nop(16)
            self.dump_regs(48, 32, 0, self.A_L16)
        self.o_epilogue()

    vD1a, vD1b, vTRa, vTRb = "v230", "v231", "v232", "v233"
    B_XA, B_XB = 234, 238
    B_CW, B_CR, B_ONE, B_L16 = "v242", "v243", "v244", "v245"
    B_TRK = "v252"
    B_JA, B_JB = 112, None
    vWa, vWb, vWc, vMa, vMb, vMc = "v220", "v221", "v222", "v223", "v224", "v225"
    vRa, vRb, vRc, vPW, vPR0, vPR1, vXO, vH0 = "v8", "v9", "v10", "v11", "v12", "v13", "v14", "v15"
    vH1 = "v250"

    def pair_dma_addr(self, va, vb, pitch, col_sgpr, comp_rows=8):
        a = self.a
        a.i("v_lshrrev_b32 v246, 3, v0")
        a.i("v_bfe_u32 v247, v0, 4, 1")
        a.i("v_lshlrev_b32 v247, 2, v247")
        a.i("v_and_b32 v248, 7, v0")
        a.i("v_xor_b32 v247, v247, v248")
        a.i(f"v_mul_u32_u24 v246, {pitch}, v246")
        a.i(f"v_lshl_add_u32 {va}, v247, 4, v246")
        a.i(f"v_add_u32 {va}, {col_sgpr}, {va}")
        a.i(f"v_add_u32 {vb}, {comp_rows*pitch - 1024}, {va}")

    def pair_tr_addr(self, va, vb, hmul, base_sgpr):
        a = self.a
        a.i("v_lshrrev_b32 v246, 5, v0")
        a.i(f"v_mul_u32_u24 v246, {hmul}, v246")
        a.i("v_bfe_u32 v247, v0, 2, 2")
        a.i("v_add_u32 v246, v246, v247")
        a.i("v_lshlrev_b32 v246, 7, v246")
        a.i("v_bfe_u32 v247, v0, 4, 1")
        a.i("v_lshlrev_b32 v247, 1, v247")
        a.i("v_bfe_u32 v248, v0, 1, 1")
        a.i("v_add_u32 v247, v247, v248")
        a.i("v_bfe_u32 v248, v0, 3, 1")
        a.i("v_lshlrev_b32 v248, 2, v248")
        a.i("v_xor_b32 v247, v247, v248")
        a.i("v_lshl_add_u32 v246, v247, 4, v246")
        a.i("v_and_b32 v247, 1, v0")
        a.i("v_lshl_add_u32 v246, v247, 3, v246")
        a.i(f"v_add_u32 {va}, {base_sgpr}, v246")
        a.i(f"v_xor_b32 {vb}, 64, v246")
        a.i(f"v_add_u32 {vb}, {base_sgpr}, {vb}")

    def w1_dma(self, ks, part=None):
        a = self.a
        t = []
        if part in (None, 0):
            a.i(f"s_add_u32 m0, s66, {(ks % NS1) * 2048}")
            if part is None: a.nop(1)
        if part in (None, 1):
            t.append(a.vmem(f"buffer_load_dwordx4 {self.vD1a}, {SRD_W1}, s67 offen lds"))
        if part in (None, 2):
            t.append(a.vmem(f"buffer_load_dwordx4 {self.vD1b}, {SRD_W1}, s67 offen offset:1024 lds"))
            self.rot_next(16 * 3456, "s67", ks)
        return t

    def ffn1(self):
        a = self.a
        a.c("---- FFN1 (transposed): h^T tiles, 2 n-tiles x 2 m-tiles per wave ----")
        acc = lambda t, m: 16 + 32 * t + 16 * m
        W = lambda s, t: 80 + 8 * s + 4 * t
        X = lambda s, m: 96 + 8 * s + 4 * m
        d1 = NS1
        dm = dict(self.w1tok); ta = {}; tb = {}
        def rd_wa(ks):
            a.wait(vm=dm[ks])
            s = ks % 2; sl = (ks % NS1) * 2048
            ta[ks] = [a.lds(f"ds_read_b64_tr_b16 v[{W(s,0)}:{W(s,0)+1}], {self.vTRa} offset:{sl}"),
                      a.lds(f"ds_read_b64_tr_b16 v[{W(s,0)+2}:{W(s,0)+3}], {self.vTRa} offset:{sl+512}")]
        def rd_x(ks):
            s = ks % 2
            self.rot_xn_seg(self.B_XA, self.B_XB, "s69", ks)
            ta[ks].append(a.lds(f"ds_read_b128 v[{X(s,0)}:{X(s,0)+3}], v{self.B_XA + ks % 4} offset:{self.seg_imm(ks)}"))
            ta[ks].append(a.lds(f"ds_read_b128 v[{X(s,1)}:{X(s,1)+3}], v{self.B_XB + ks % 4} offset:{self.seg_imm(ks)}"))
        def rd_wb(ks):
            s = ks % 2; sl = (ks % NS1) * 2048
            tb[ks] = [a.lds(f"ds_read_b64_tr_b16 v[{W(s,1)}:{W(s,1)+1}], {self.vTRb} offset:{sl}"),
                      a.lds(f"ds_read_b64_tr_b16 v[{W(s,1)+2}:{W(s,1)+3}], {self.vTRb} offset:{sl+512}")]
        def mf(ks, t, m):
            s = ks % 2; A = acc(t, m)
            C = "0" if ks == 0 else f"v[{A}:{A+15}]"
            a.i(f"v_mfma_f32_32x32x16_bf16 v[{A}:{A+15}], v[{W(s,t)}:{W(s,t)+3}], v[{X(s,m)}:{X(s,m)+3}], {C}")
        rd_wa(0); rd_x(0); rd_wb(0)
        for ks in range(40):
            nx = ks + 1 < 40; dd = ks + d1 < 40
            if ks in (0, 10, 20, 30): self.stamp(6 + ks // 10, lvl=2)
            a.wait(lg=ta[ks])
            mf(ks, 0, 0)
            if nx: rd_wa(ks + 1)
            mf(ks, 0, 1)
            a.wait(lg=tb[ks])
            if nx: rd_x(ks + 1)
            if dd: self.w1_dma(ks + d1, 0)
            mf(ks, 1, 0)
            if nx: rd_wb(ks + 1)
            if dd: dm[ks + d1] = self.w1_dma(ks + d1, 1)
            mf(ks, 1, 1)
            if dd: dm[ks + d1] += self.w1_dma(ks + d1, 2)
        self.lds_count(C_XND, self.B_CW, self.B_ONE)
        if self.o.get('pf', 0): self.l2_prefetch(SRD_W2, 2211840, 3 if self.o.get('pfstride', 128) == 128 else 5, "v246", "v251", sWR, 4)
        self.stamp(10, lvl=2)
        self.stamp(3)
        a.i(f"s_setprio {self.o.get('prioBv', 3)}")
        a.i(f"s_lshl_b32 s62, {sRB}, 1")
        a.i("s_mul_i32 s62, s62, 110592")
        a.i("s_lshl_b32 s63, s68, 11")
        a.i("s_add_u32 s62, s62, s63")
        a.i(f"s_add_u32 s62, s62, {WS_H}")
        a.nop(6)
        for t in range(2):
            for m in range(2):
                A = acc(t, m); R = 80 + 8 * m + 16 * (t & 1)
                for j in range(8): a.i(f"v_cvt_pk_bf16_f32 v{R+j}, v{A+2*j}, v{A+2*j+1}")
                for j in range(8): a.i(f"v_pk_max_i16 v{R+j}, v{R+j}, 0")
                a.i(f"s_add_u32 s63, s62, {m*110592 + t*2048}")
                a.vmem(f"buffer_store_dwordx4 v[{R}:{R+3}], {self.B_L16}, {SRD_WS}, s63 offen sc1")
                a.vmem(f"buffer_store_dwordx4 v[{R+4}:{R+7}], {self.B_L16}, {SRD_WS}, s63 offen offset:1024 sc1")
        a.i(f"s_setprio {self.o.get('prioB', 0)}")

    def h_publish(self):
        a = self.a
        a.i("s_waitcnt vmcnt(0)")
        a.vm = []
        a.lds(f"ds_add_rtn_u32 v246, {self.B_CW}, {self.B_ONE} offset:{C_HD}")
        a.wait(lg='all')
        a.i("v_readfirstlane_b32 s62, v246")
        Lnf = a.newlabel("hnf")
        a.nop(1)
        a.i("s_cmp_lg_u32 s62, 3")
        a.i(f"s_cbranch_scc1 {Lnf}")
        a.i(f"s_lshl_b32 s62, {sRB}, 7")
        a.i(f"s_lshl_b32 s63, {sCG}, 2")
        a.i("s_add_u32 s62, s62, s63")
        a.i(f"s_add_u32 s62, s62, {WS_FH}")
        a.i(f"v_mov_b32 v247, {sN}")
        a.i("v_mov_b32 v246, 0")
        a.i("s_mov_b64 exec, 1")
        a.i(f"buffer_store_dword v247, v246, {SRD_WS}, s62 offen sc1")
        a.i("s_mov_b64 exec, -1")
        a.label(Lnf)

    def out_tiles_setup(self):
        a = self.a
        a.i(f"s_lshr_b32 s62, {sCG}, 1")
        a.i("s_and_b32 s64, s62, 1")
        a.i("s_mul_i32 s62, s62, 5")
        a.i(f"s_and_b32 s82, {sCG}, 1")
        a.i("s_lshl_b32 s63, s82, 1")
        a.i("s_add_u32 s80, s62, s63")
        a.i("s_add_u32 s80, s80, s64")
        a.i("s_lshl_b32 s80, s80, 6")
        a.i("s_xor_b32 s64, s64, 1")
        a.i("s_lshl_b32 s64, s64, 2")
        a.i("s_add_u32 s81, s62, s64")
        a.i("s_lshl_b32 s81, s81, 6")
        a.i(f"s_mul_i32 s83, {sWR}, {BREG}")
        self.pair_dma_addr(self.vWa, self.vWb, 1280, "s80")
        a.i("v_lshrrev_b32 v246, 2, v0")
        a.i("v_mul_u32_u24 v246, 1280, v246")
        a.i("v_and_b32 v247, 3, v0")
        a.i(f"v_lshl_add_u32 {self.vWc}, v247, 4, v246")
        a.i(f"v_add_u32 {self.vWc}, s81, {self.vWc}")
        self.pair_tr_addr(self.vRa, self.vRb, 4, "s83")
        a.i("v_lshrrev_b32 v246, 5, v0")
        a.i("v_lshlrev_b32 v246, 2, v246")
        a.i("v_bfe_u32 v247, v0, 2, 2")
        a.i("v_add_u32 v246, v246, v247")
        a.i("v_lshlrev_b32 v246, 6, v246")
        a.i("v_bfe_u32 v247, v0, 4, 1")
        a.i("v_lshl_add_u32 v246, v247, 5, v246")
        a.i("v_and_b32 v247, 3, v0")
        a.i("v_lshl_add_u32 v246, v247, 3, v246")
        a.i("s_add_u32 s62, s83, 2048")
        a.i(f"v_add_u32 {self.vRc}, s62, v246")
        a.i(f"v_add_u32 {self.vPW}, s83, {self.B_L16}")
        a.i(f"s_mul_i32 s62, {sWR}, 5120")
        a.i(f"v_add_u32 {self.vPR0}, s62, {self.B_L16}")
        a.i(f"v_add_u32 {self.vPR1}, {2*BREG}, {self.vPR0}")

    def w3_dma(self, srd, slot, soff_sgpr, va, vb, vc):
        a = self.a
        a.i(f"s_add_u32 m0, s83, {slot*3072}")
        a.nop(1)
        t = [a.vmem(f"buffer_load_dwordx4 {va}, {srd}, {soff_sgpr} offen lds"),
             a.vmem(f"buffer_load_dwordx4 {vb}, {srd}, {soff_sgpr} offen offset:1024 lds")]
        a.i(f"s_add_u32 m0, s83, {slot*3072 + 2048}")
        a.nop(1)
        t.append(a.vmem(f"buffer_load_dwordx4 {vc}, {srd}, {soff_sgpr} offen lds"))
        return t

    def w3_reads(self, slot, Wb, part=None):
        a = self.a; t = []
        sl = slot * 3072
        if isinstance(part, tuple):
            p = part[1]
            va, o2 = ((self.vRa, 1024), (self.vRb, 1024), (self.vRc, 512))[p]
            t.append(a.lds(f"ds_read_b64_tr_b16 v[{Wb+4*p}:{Wb+4*p+1}], {va} offset:{sl}"))
            t.append(a.lds(f"ds_read_b64_tr_b16 v[{Wb+4*p+2}:{Wb+4*p+3}], {va} offset:{sl+o2}"))
            return t
        if part in (None, 0):
            t.append(a.lds(f"ds_read_b64_tr_b16 v[{Wb}:{Wb+1}], {self.vRa} offset:{sl}"))
            t.append(a.lds(f"ds_read_b64_tr_b16 v[{Wb+2}:{Wb+3}], {self.vRa} offset:{sl+1024}"))
            t.append(a.lds(f"ds_read_b64_tr_b16 v[{Wb+4}:{Wb+5}], {self.vRb} offset:{sl}"))
        if part in (None, 1):
            t.append(a.lds(f"ds_read_b64_tr_b16 v[{Wb+6}:{Wb+7}], {self.vRb} offset:{sl+1024}"))
            t.append(a.lds(f"ds_read_b64_tr_b16 v[{Wb+8}:{Wb+9}], {self.vRc} offset:{sl}"))
            t.append(a.lds(f"ds_read_b64_tr_b16 v[{Wb+10}:{Wb+11}], {self.vRc} offset:{sl+512}"))
        return t

    def five_mfma(self, Wb, H0, H1, first, fill):
        a = self.a
        spec = [(0, 0, H0), (1, 0, H1), (2, 1, H0), (3, 1, H1), (4, 2, H0)]
        for n, (tau, nt, Hb) in enumerate(spec):
            A = 16 + 16 * tau
            C = "0" if first else f"v[{A}:{A+15}]"
            a.i(f"v_mfma_f32_32x32x16_bf16 v[{A}:{A+15}], v[{Wb+4*nt}:{Wb+4*nt+3}], v[{Hb}:{Hb+3}], {C}")
            if n < len(fill) and fill[n]: fill[n]()

    def reduce80(self, dst, bar_target):
        a = self.a
        a.nop(12)
        for g in range(20):
            if len(a.lg) >= 14: a.wait(lg=a.lg[6])
            a.lds(f"ds_write_b128 {self.vPW}, v[{16+4*g}:{19+4*g}] offset:{g*1024}")
        a.wait(lg='all')
        self.lds_count(C_BBAR, self.B_CW, self.B_ONE)
        self.lds_spin_ge(C_BBAR, bar_target, "v246", self.B_CR)
        tk = {}
        def rd(src):
            va = self.vPR0 if src < 2 else self.vPR1
            tk[src] = [a.lds(f"ds_read_b128 v[{16+20*src+4*e}:{19+20*src+4*e}], {va} offset:{(src&1)*BREG + e*1024}") for e in range(5)]
        rd(0); rd(1); rd(2)
        a.wait(lg=tk[1])
        rd(3)
        for j in range(20): a.i(f"v_add_f32 v{dst+j}, v{16+j}, v{36+j}")
        a.wait(lg='all')
        for j in range(20): a.i(f"v_add_f32 v{56+j}, v{56+j}, v{76+j}")
        for j in range(20): a.i(f"v_add_f32 v{dst+j}, v{dst+j}, v{56+j}")

    def ffn2(self):
        a = self.a
        a.c("---- FFN2 (transposed): 5 output tiles, split-K over the 4 B waves ----")
        if self.o.get('touch', 0):
            a.vmem(f"buffer_load_dword v251, v227, {SRD_W2}, s80 offen")
            a.vmem(f"buffer_load_dword v254, v227, {SRD_W2}, s81 offen")
        self.lds_spin_ge(C_XND, 8, "v246", self.B_CR)
        NS = 9; PF = self.o.get('d2', 4); HD = self.o.get('dh', 3) + 1
        a.i(f"s_mul_i32 s84, {sWR}, {27*20480}")
        a.i(f"s_and_b32 s62, {sRB}, 7")
        a.i("s_mul_i32 s62, s62, 3")
        a.i(f"s_and_b32 s63, {sCG}, 3")
        a.i("s_mul_i32 s63, s63, 7")
        a.i("s_add_u32 s62, s62, s63")
        a.i("s_cmp_ge_u32 s62, 27")
        a.i("s_cselect_b32 s63, 27, 0")
        a.i("s_sub_u32 s87, s62, s63")
        if not self.o.get('rot', 1): a.i("s_mov_b32 s87, 0")
        a.i("s_mul_i32 s95, s87, 20480")
        dm = {}
        a.i("s_add_u32 s95, s95, s84")
        a.i(f"s_add_u32 s93, s84, {27*20480}")
        def dma(kk, part=None):
            slot = kk % NS
            if part in (None, 0):
                a.i(f"s_add_u32 m0, s83, {slot*3072}")
                if part is None: a.nop(1)
            if part in (None, 1):
                dm[kk] = [a.vmem(f"buffer_load_dwordx4 {self.vWa}, {SRD_W2}, s95 offen lds")]
            if part in (None, 2):
                dm[kk].append(a.vmem(f"buffer_load_dwordx4 {self.vWb}, {SRD_W2}, s95 offen offset:1024 lds"))
                a.i(f"s_add_u32 m0, s83, {slot*3072 + 2048}")
                if part is None: a.nop(1)
            if part in (None, 3):
                dm[kk].append(a.vmem(f"buffer_load_dwordx4 {self.vWc}, {SRD_W2}, s95 offen lds"))
                a.i("s_add_u32 s95, s95, 20480")
                a.i("s_cmp_eq_u32 s95, s93")
                a.i("s_cselect_b32 s95, s84, s95")
        for kk in range(PF): dma(kk)
        self.stamp(5)
        self.one_wave_poll(WS_FH, C_HRDY, sleep=8)
        self.stamp(6)
        if self.o.get('pf', 0):
            a.i("v_min_u32 v246, 53, v0")
            a.i("v_lshlrev_b32 v246, 7, v246")
            a.i(f"s_mul_i32 s62, {sRB}, 221184")
            a.i(f"s_lshl_b32 s63, {sCG}, 2")
            a.i(f"s_add_u32 s63, s63, {sWR}")
            a.i(f"s_mul_i32 s63, s63, {54*128}")
            a.i("s_add_u32 s62, s62, s63")
            a.i(f"s_add_u32 s62, s62, {WS_H}")
            a.vmem(f"buffer_load_dword v251, v246, {SRD_WS}, s62 offen sc1")
            self.l2_prefetch(SRD_WO, 819200, 1 if self.o.get('pfstride', 128) == 128 else 2, "v246", "v253", sWR, 4)
        H = lambda kk, s: 120 + 8 * (kk % HD) + 4 * s
        hl = {}
        a.i("s_lshl_b32 s96, s87, 10")
        def hload(kk, part=None):
            if part in (None, 0):
                hl[kk] = [a.vmem(f"buffer_load_dwordx4 v[{H(kk,0)}:{H(kk,0)+3}], {self.vH0}, {SRD_WS}, s96 offen sc1")]
            if part in (None, 1):
                hl[kk].append(a.vmem(f"buffer_load_dwordx4 v[{H(kk,1)}:{H(kk,1)+3}], {self.vH1}, {SRD_WS}, s96 offen sc1"))
                a.i("s_add_u32 s96, s96, 1024")
                a.i(f"s_cmp_eq_u32 s96, {27*1024}")
                a.i("s_cselect_b32 s96, 0, s96")
        for kk in range(HD - 1): hload(kk)
        Wb = lambda kk: 96 + 12 * (kk % 2)
        a.wait(vm=dm[0])
        rt = {0: self.w3_reads(0, Wb(0))}
        for kk in range(27):
            a.wait(lg=rt[kk], vm=hl[kk])
            nx = kk + 1 < 27; dd = kk + PF < 27; hh = kk + HD - 1 < 27
            def rd(p, kk=kk):
                if p == 0:
                    a.wait(vm=dm[kk + 1]); rt[kk + 1] = []
                rt[kk + 1] += self.w3_reads((kk + 1) % NS, Wb(kk + 1), ('t', p))
            def g0(kk=kk):
                if nx: rd(0)
                if hh: hload(kk + HD - 1, 0)
            def g1(kk=kk):
                if nx: rd(1)
                if hh: hload(kk + HD - 1, 1)
                if dd: dma(kk + PF, 0)
            def g2(kk=kk):
                if nx: rd(2)
                if dd: dma(kk + PF, 1)
            def g3(kk=kk):
                if dd: dma(kk + PF, 2)
            def g4(kk=kk):
                if dd: dma(kk + PF, 3)
            self.five_mfma(Wb(kk), H(kk, 0), H(kk, 1), kk == 0, [g0, g1, g2, g3, g4])
        self.stamp(7)
        if self.o.get('touch', 0):
            a.i("s_mov_b32 s62, 0")
            a.vmem(f"buffer_load_dword v251, v228, {SRD_WO}, s62 offen")
        a.i(f"s_setprio {self.o.get('prioBv', 3)}")
        self.reduce80(200, 4)
        for j in range(20): a.i(f"v_mul_f32 v{16+j}, {hx(f2u(-1.4426950408889634))}, v{200+j}")
        for j in range(20): a.i(f"v_exp_f32 v{16+j}, v{16+j}")
        for j in range(20): a.i(f"v_add_f32 v{16+j}, 1.0, v{16+j}")
        for j in range(20): a.i(f"v_rcp_f32 v{16+j}, v{16+j}")
        for j in range(20): a.i(f"v_mul_f32 v{200+j}, v{200+j}, v{16+j}")
        a.i(f"s_setprio {self.o.get('prioB', 0)}")
        self.lds_count(C_BBAR, self.B_CW, self.B_ONE)
        self.lds_spin_ge(C_BBAR, 8, "v246", self.B_CR)

    def out_mixed_addr(self):
        a = self.a
        a.i("v_lshrrev_b32 v246, 3, v0")
        a.i("v_lshrrev_b32 v247, 2, v246")
        a.i("v_mul_u32_u24 v247, 40, v247")
        a.i("v_and_b32 v248, 3, v246")
        a.i("v_add3_u32 v247, v247, v248, 16")
        a.i("v_mul_u32_u24 v247, 1280, v247")
        a.i("v_bfe_u32 v248, v0, 4, 1")
        a.i("v_lshlrev_b32 v248, 2, v248")
        a.i("v_and_b32 v249, 7, v0")
        a.i("v_xor_b32 v248, v248, v249")
        a.i(f"v_lshl_add_u32 {self.vMa}, v248, 4, v247")
        a.i(f"v_add_u32 {self.vMa}, s80, {self.vMa}")
        a.i(f"v_add_u32 {self.vMb}, {20*1280 - 1024}, {self.vMa}")
        a.i("v_lshrrev_b32 v246, 2, v0")
        a.i("v_bfe_u32 v247, v246, 2, 1")
        a.i("v_lshlrev_b32 v247, 1, v247")
        a.i("v_lshrrev_b32 v248, 3, v246")
        a.i("v_add_u32 v247, v247, v248")
        a.i("v_mul_u32_u24 v247, 20, v247")
        a.i("v_and_b32 v248, 3, v246")
        a.i("v_add3_u32 v247, v247, v248, 16")
        a.i("v_mul_u32_u24 v247, 1280, v247")
        a.i("v_and_b32 v248, 3, v0")
        a.i(f"v_lshl_add_u32 {self.vMc}, v248, 4, v247")
        a.i(f"v_add_u32 {self.vMc}, s81, {self.vMc}")
        a.i("v_and_b32 v246, 31, v0")
        a.i("v_mul_u32_u24 v246, 1280, v246")
        a.i("v_lshrrev_b32 v247, 5, v0")
        a.i(f"v_lshl_add_u32 {self.vXO}, v247, 3, v246")

    def ffn2_addr(self):
        a = self.a
        a.i(f"s_lshl_b32 s62, {sRB}, 1")
        a.i("s_add_u32 s63, s62, s82")
        a.i("s_xor_b32 s64, s82, 1")
        a.i("s_add_u32 s64, s62, s64")
        a.i("s_mul_i32 s85, s63, 110592")
        a.i("s_mul_i32 s86, s64, 110592")
        a.i(f"s_mul_i32 s62, {sWR}, {27*1024}")
        a.i(f"s_add_u32 s62, s62, {WS_H}")
        a.i("s_add_u32 s85, s85, s62")
        a.i("s_add_u32 s86, s86, s62")
        a.i(f"v_add_u32 {self.vH0}, s85, {self.B_L16}")
        a.i(f"v_add_u32 {self.vH1}, s86, {self.B_L16}")

    def out_proj(self):
        a = self.a
        a.c("---- output projection + final combine ----")
        dm = {}
        a.i(f"s_lshl_b32 s62, {sWR}, 1")
        a.i("s_add_u32 s93, s62, s82")
        a.i("s_xor_b32 s63, s82, 1")
        a.i("s_add_u32 s94, s62, s63")
        a.i(f"s_mul_i32 s84, s93, {80*1280}")
        a.i(f"s_mul_i32 s87, s94, {80*1280}")
        def wo_dma(e):
            cgo, jj = e // 5, e % 5
            base = "s84" if cgo == 0 else "s87"
            if jj < 4:
                a.i(f"s_add_u32 s67, {base}, {jj*20*1280}")
                dm[e] = self.w3_dma(SRD_WO, e % 9, "s67", self.vWa, self.vWb, self.vWc)
            else:
                dm[e] = self.w3_dma(SRD_WO, e % 9, base, self.vMa, self.vMb, self.vMc)
        for e in range(9):
            wo_dma(e)
            dw = self.o.get('dw', 2)
            if e - dw >= 0: a.wait(vm=dm[e - dw])
        a.wait(vm=dm[8])
        rt0 = self.w3_reads(0, 96)
        a.wait(lg=rt0)
        wo_dma(9)
        a.wait(vm=dm[9])
        xt = []
        for e in range(5):
            so = f"s{88+e}"
            a.i(f"s_mul_i32 s62, {sWR}, 5")
            a.i(f"s_add_u32 s62, s62, {e}")
            a.i("s_lshr_b32 s63, s62, 2")
            a.i("s_and_b32 s64, s62, 3")
            a.i("s_lshl_b32 s64, s64, 4")
            a.i("s_lshr_b32 s65, s63, 1")
            a.i("s_lshl_b32 s69, s65, 6")
            a.i("s_add_u32 s69, s69, s80")
            a.i("s_cmp_eq_u32 s63, 4")
            a.i("s_cselect_b32 s69, s81, s69")
            a.i("s_add_u32 s64, s64, s69")
            a.i("s_and_b32 s65, s63, 1")
            a.i("s_xor_b32 s65, s65, s82")
            a.i(f"s_lshl_b32 s69, {sRB}, 1")
            a.i("s_add_u32 s65, s65, s69")
            a.i("s_mul_i32 s65, s65, 40960")
            a.i(f"s_add_u32 {so}, s64, s65")
            xt.append(a.vmem(f"buffer_load_dwordx2 v[{220+2*e}:{221+2*e}], {self.vXO}, {SRD_X}, {so} offen"))
        self.stamp(9)
        self.one_wave_poll(WS_FO, C_ORDY, pre=lambda: self.lds_spin_ge(C_OD, 4, "v246", self.B_CR, sleep=3), sleep=1)
        self.stamp(10)
        Lnl = a.newlabel("nolead")
        a.i(f"s_lshl_b32 s62, {sCG}, 2")
        a.i(f"s_add_u32 s62, s62, {sWR}")
        a.i("s_cmp_lg_u32 s62, 0")
        a.i(f"s_cbranch_scc1 {Lnl}")
        a.i("v_mov_b32 v246, 0")
        a.i("v_mov_b32 v247, 1")
        a.i("s_mov_b64 exec, 1")
        a.i(f"global_atomic_add v248, v246, v247, {sDBG} sc0 sc1")
        a.i("s_waitcnt vmcnt(0)")
        a.i("v_readfirstlane_b32 s62, v248")
        a.i("s_mov_b64 exec, -1")
        a.nop(1)
        a.i("s_cmp_lg_u32 s62, 31")
        a.i(f"s_cbranch_scc1 {Lnl}")
        a.i(f"v_mov_b32 v247, {sN}")
        a.i(f"v_mov_b32 v246, {WS_X}")
        a.i("s_mov_b32 s62, 0")
        a.i("s_mov_b64 exec, 1")
        a.i(f"buffer_store_dword v247, v246, {SRD_WS}, s62 offen sc1")
        a.i("s_mov_b64 exec, -1")
        a.label(Lnl)
        a.i(f"s_lshl_b32 s62, {sRB}, 1")
        a.i("s_add_u32 s63, s62, s82")
        a.i("s_xor_b32 s64, s82, 1")
        a.i("s_add_u32 s64, s62, s64")
        a.i("s_mul_i32 s85, s63, 40960")
        a.i("s_mul_i32 s86, s64, 40960")
        a.i(f"s_add_u32 s85, s85, {WS_O}")
        a.i(f"s_add_u32 s86, s86, {WS_O}")
        a.i("s_mul_i32 s93, s93, 5120")
        a.i("s_mul_i32 s94, s94, 5120")
        ol = {}
        H = lambda e, s: 120 + 8 * e + 4 * s
        for e in range(10):
            grp = "s93" if e < 5 else "s94"
            a.i(f"s_add_u32 s62, s85, {grp}")
            t0 = a.vmem(f"buffer_load_dwordx4 v[{H(e,0)}:{H(e,0)+3}], {self.B_L16}, {SRD_WS}, s62 offen offset:{(e%5)*1024 if (e%5) < 4 else 0} sc1") if (e % 5) < 4 else None
            if t0 is None:
                a.i("s_add_u32 s62, s62, 4096")
                t0 = a.vmem(f"buffer_load_dwordx4 v[{H(e,0)}:{H(e,0)+3}], {self.B_L16}, {SRD_WS}, s62 offen sc1")
            a.i(f"s_add_u32 s63, s86, {grp}")
            if (e % 5) < 4:
                t1 = a.vmem(f"buffer_load_dwordx4 v[{H(e,1)}:{H(e,1)+3}], {self.B_L16}, {SRD_WS}, s63 offen offset:{(e%5)*1024} sc1")
            else:
                a.i("s_add_u32 s63, s63, 4096")
                t1 = a.vmem(f"buffer_load_dwordx4 v[{H(e,1)}:{H(e,1)+3}], {self.B_L16}, {SRD_WS}, s63 offen sc1")
            ol[e] = [t0, t1]
        Wb = lambda e: 96 + 12 * (e % 2)
        rt = {0: rt0}
        for e in range(10):
            a.wait(lg=rt[e], vm=ol[e])
            def f0(e=e):
                if e + 1 < 10:
                    a.wait(vm=dm[e + 1])
                    rt[e + 1] = self.w3_reads((e + 1) % 9, Wb(e + 1), 0)
            def f1(e=e):
                if e + 1 < 10: rt[e + 1] += self.w3_reads((e + 1) % 9, Wb(e + 1), 1)
            self.five_mfma(Wb(e), H(e, 0), H(e, 1), e == 0, [f0, f1])
        self.stamp(11)
        self.reduce80(96, 12)
        self.stamp(12)
        a.i("s_mov_b32 s62, 0xffff0000")
        for e in range(5):
            x0, x1 = 220 + 2 * e, 221 + 2 * e
            a.i(f"v_lshlrev_b32 v16, 16, v{x0}")
            a.i(f"v_and_b32 v17, s62, v{x0}")
            a.i(f"v_lshlrev_b32 v18, 16, v{x1}")
            a.i(f"v_and_b32 v19, s62, v{x1}")
            for j in range(4): a.i(f"v_fma_f32 v{16+j}, v{96+4*e+j}, v{200+4*e+j}, v{16+j}")
            a.i(f"v_cvt_pk_bf16_f32 v{20+2*e}, v16, v17")
            a.i(f"v_cvt_pk_bf16_f32 v{21+2*e}, v18, v19")
            a.vmem(f"buffer_store_dwordx2 v[{20+2*e}:{21+2*e}], {self.vXO}, {SRD_OUT}, s{88+e} offen")

    def role_b(self):
        a = self.a
        a.label("L_ROLE_B")
        Lf1 = a.newlabel("ffn1"); Lv = a.newlabel("vjob"); Lpf = a.newlabel("w1pf")
        a.i(f"s_and_b32 s62, {sCG}, 3")
        a.i("s_cmp_lg_u32 s62, 0")
        a.i(f"s_cbranch_scc1 {Lf1}")
        Lwait = a.newlabel("kvidle")
        a.i(f"s_cmp_ge_u32 {sWR}, 2")
        a.i(f"s_cbranch_scc1 {Lwait}")
        a.i("s_setprio 3")
        a.i(f"s_cmp_eq_u32 {sCG}, 4")
        a.i(f"s_cbranch_scc1 {Lv}")
        a.vm = []; a.lg = []
        self.kv_job(False)
        a.i(f"s_branch {Lwait}")
        a.label(Lv)
        a.vm = []; a.lg = []
        self.kv_job(True)
        a.label(Lwait)
        self.lds_spin_ge(C_KVD, 2, "v246", self.B_CR)
        a.label(Lpf)
        self.stamp(11, lvl=2)
        self.stamp(14)
        a.label(Lf1)
        a.i(f"s_setprio {self.o.get('prioF', 0)}")
        if self.o.get('noB'):
            a.i("s_waitcnt vmcnt(0)")
            a.i("s_branch L_END")
        a.vm = []; a.lg = []
        Lnop = a.newlabel("nopair"); Lhd = a.newlabel("hdone")
        a.i("s_cmp_eq_u32 s99, 0")
        a.i(f"s_cbranch_scc1 {Lnop}")
        if self.o.get('noF1'): a.i(f"s_branch {Lnop}")
        bs = self.o.get('bstart', 'qiss')
        if bs == 'ring': self.lds_spin_ge(C_GO, 4, "v246", self.B_CR)
        if bs == 'qiss': self.lds_spin_ge(C_QISS, 4, "v246", self.B_CR)
        self.w1tok = {ks: self.w1_dma(ks) for ks in range(NS1)}
        self.ffn1()
        a.i(f"s_branch {Lhd}")
        a.label(Lnop)
        a.i(f"s_setprio {self.o.get('prioB', 0)}")
        self.lds_count(C_XND, self.B_CW, self.B_ONE)
        a.label(Lhd)
        a.vm = []; a.lg = []
        self.h_publish()
        self.stamp(4)
        self.ffn2()
        self.stamp(8)
        if self.o.get('dump') == 'g':
            self.dump_regs(200, 20, 0, self.B_L16)
        self.out_proj()
        a.i("s_waitcnt vmcnt(0)") if self.o.get('prof') else None
        self.stamp(13)
        self.stamp_flush()
        if self.o.get('span'):
            a.i("s_waitcnt vmcnt(0)")
            a.i("s_memrealtime s[90:91]")
            a.i("s_waitcnt lgkmcnt(0)")
            a.i("s_not_b32 s62, s101")
            a.i("v_mov_b32 v1, 8")
            a.i("v_mov_b32 v2, s62")
            a.i("v_mov_b32 v3, s90")
            a.i("s_mov_b64 exec, 1")
            a.i(f"global_atomic_umax v1, v2, {sDBG} sc1")
            a.i(f"global_atomic_umax v1, v3, {sDBG} offset:4 sc1")
            a.i("s_mov_b64 exec, -1")
        a.i("s_branch L_END")

    def build(self):
        a = self.a
        self.prologue()
        self.role_setup()
        a.i("s_waitcnt lgkmcnt(0)")
        a.i(f"s_add_u32 {sN}, {sN}, 1")
        a.vm = []; a.lg = []
        self.stamp(1)
        self.layernorm()
        self.stamp(2)
        if self.o.get('dump') == 'xn':
            self.dump_lds_xn()
        a.i(f"s_cmp_ge_u32 {sW}, 4")
        a.i("s_cbranch_scc1 L_ROLE_B")
        self.role_a()
        self.role_b()
        a.label("L_END")
        a.i("s_endpgm")

    def dump_lds_xn(self):
        a = self.a
        a.i("v_lshlrev_b32 v72, 4, v0")
        a.i(f"s_mul_i32 s70, {sW}, 10240")
        a.i("v_add_u32 v73, s70, v72")
        a.i("s_mul_i32 s71, s2, 81920")
        a.i("s_add_u32 s71, s71, s70")
        a.i(f"s_add_u32 s71, s71, {WS_DBG}")
        for g in range(10):
            a.i(f"ds_read_b128 v[76:79], v73 offset:{g*1024}")
            a.i("s_waitcnt lgkmcnt(0)")
            a.i(f"s_add_u32 s70, s71, {g*1024}")
            a.i(f"buffer_store_dwordx4 v[76:79], v72, {SRD_WS}, s70 offen")
            a.i("s_waitcnt vmcnt(0)")

    def emit(self):
        self.build()
        body = self.a.text()
        hdr = f"""; Fused LayerNorm + MQA attention + ReLU FFN + gated residual, one persistent workgroup per CU.
; @launch grid=(256,1,1) block=(512,1,1) lds={LDS_TOTAL}
.amdgcn_target "amdgcn-amd-amdhsa--gfx950"
.text
.globl {NAME}_kernel
.p2align 8
.type {NAME}_kernel,@function
{NAME}_kernel:
"""
        ftr = f""".section .rodata,"a"
.p2align 6
.amdhsa_kernel {NAME}_kernel
  .amdhsa_next_free_vgpr 256
  .amdhsa_next_free_sgpr 102
  .amdhsa_accum_offset 256
  .amdhsa_group_segment_fixed_size 0
  .amdhsa_kernarg_size 88
  .amdhsa_user_sgpr_count 2
  .amdhsa_user_sgpr_kernarg_segment_ptr 1
  .amdhsa_system_sgpr_workgroup_id_x 1
  .amdhsa_float_denorm_mode_32 3
.end_amdhsa_kernel
"""
        return hdr + body + ftr

    def hazards(self):
        ins = [t for k, t in self.a.lines if k == 'i']
        probs = check_hazards(ins, "linear")
        body = [t for k, t in self.a.lines[self.loop_start:self.loop_end] if k == 'i']
        probs += check_hazards(body[-40:] + body[:40], "att-backedge")
        return probs

if __name__ == "__main__":
    opt = {}
    out = None
    for arg in sys.argv[1:]:
        if "=" in arg:
            k, v = arg.split("=", 1); opt[k] = int(v) if v.lstrip('-').isdigit() else v
        else: out = arg
    g = Gen(opt)
    txt = g.emit()
    pr = g.hazards()
    for p in pr: print("HAZARD:", p)
    open(out or "k.s", "w").write(txt)
    n = sum(1 for k, t in g.a.lines if k == 'i')
    print(f"wrote {out or 'k.s'}: {n} instructions, {len(pr)} hazards")
```

```python
import sys, struct
from asmlib import Asm, check_hazards

NAME = "recurrent_scan__grouped_kv_mqa__dense_activation_relu__prompt"

XN    = 0
BST   = 81920
BPRIV = 9216
NS1   = 4
WKI   = BST
AREG  = 118784
QST   = AREG
APRIV = 11136
NSQ   = 10
RSLOT = 11136
RSHARE = 2688
KVCH  = 12288
BREG  = 29696
CTRL  = 163328
LDS_TOTAL = 163840
VROW  = 352
VFR   = 2 * VROW
KV_KH = 4096
KV_V  = 5120
C_ARR, C_KVD, C_ABAR, C_QDONE, C_KVRDY, C_XND, C_HD, C_BBAR, C_OD, C_GO, C_HRDY, C_ORDY, C_KVS, C_QISS = [4 * i for i in range(14)]
CDUMMY = 128

WS_X    = 0
WS_FKV  = 0x1000
WS_FH   = 0x4000
WS_FO   = 0x6000
WS_KN   = 0x8000
WS_VN   = 0x8400
WS_KV   = 0x10000
WS_H    = 0x100000
WS_O    = 0x800000
WS_DBG  = 0xB00000
WS_PROF = 0x1300000
WS_END  = 0x1400000

QSCALE = 0.22360679774997896 * 1.4426950408889634

def f2u(x): return struct.unpack("<I", struct.pack("<f", x))[0]
def hx(x): return "0x%08x" % (x & 0xffffffff)

sW, sRB, sCG, sN, sWR = "s3", "s4", "s5", "s6", "s7"
SRD_X, SRD_WQ, SRD_WKV, SRD_WO, SRD_W1, SRD_W2, SRD_OUT, SRD_WS = [f"s[{8+4*i}:{11+4*i}]" for i in range(8)]
sDBG, sWSP = "s[58:59]", "s[60:61]"

SPIN_LDS = 400000
SPIN_GLB = 40000

class Gen:
    def __init__(self, opt):
        self.o = opt
        self.a = Asm()

    def vr(self, base, n): return f"v[{base}:{base+n-1}]"

    def lds_spin_ge(self, cnt_off, target, vtmp, vctlr, stmp="s62", sleep=1):
        a = self.a
        L = a.newlabel("spin"); Ld = a.newlabel("spind")
        a.i(f"s_mov_b32 {stmp}, 0")
        a.label(L)
        a.i(f"ds_read_b32 {vtmp}, {vctlr} offset:{cnt_off}")
        a.i("s_waitcnt lgkmcnt(0)")
        a.i(f"v_cmp_gt_u32 vcc, {target}, {vtmp}")
        a.i(f"s_cbranch_vccz {Ld}")
        a.i(f"s_add_u32 {stmp}, {stmp}, 1")
        a.i(f"s_cmp_lt_u32 {stmp}, {SPIN_LDS}")
        if sleep: a.i(f"s_sleep {sleep}")
        a.i(f"s_cbranch_scc1 {L}")
        a.label(Ld)
        a.lg = []

    def glb_poll(self, voff, soff, vtmp, stmp="s62", sleep=4):
        a = self.a
        L = a.newlabel("poll"); Ld = a.newlabel("polld")
        a.i(f"s_mov_b32 {stmp}, 0")
        a.label(L)
        a.i(f"buffer_load_dword {vtmp}, {voff}, {SRD_WS}, {soff} offen sc1")
        a.i("s_waitcnt vmcnt(0)")
        a.i(f"v_cmp_ne_u32 vcc, {sN}, {vtmp}")
        a.i(f"s_cbranch_vccz {Ld}")
        a.i(f"s_add_u32 {stmp}, {stmp}, 1")
        a.i(f"s_cmp_lt_u32 {stmp}, {SPIN_GLB}")
        a.i(f"s_sleep {sleep}")
        a.i(f"s_cbranch_scc1 {L}")
        a.label(Ld)
        a.vm = []

    def one_wave_poll(self, flag_base, rdy_off, pre=None, sleep=4):
        a = self.a
        Lw = a.newlabel("opw"); Lj = a.newlabel("opj")
        keep = list(a.vm)
        a.i(f"s_cmp_lg_u32 {sWR}, 0")
        a.i(f"s_cbranch_scc1 {Lw}")
        if pre: pre()
        a.i("v_and_b32 v246, 7, v0")
        a.i("v_lshlrev_b32 v246, 2, v246")
        a.i(f"s_lshl_b32 s63, {sRB}, 7")
        a.i(f"s_add_u32 s63, s63, {flag_base}")
        self.glb_poll("v246", "s63", "v247", sleep=sleep)
        a.i(f"ds_add_u32 {self.B_CW}, {self.B_ONE} offset:{rdy_off}")
        a.i(f"s_branch {Lj}")
        a.label(Lw)
        self.lds_spin_ge(rdy_off, 1, "v246", self.B_CR, sleep=2)
        a.label(Lj)
        a.i("s_waitcnt lgkmcnt(0)")
        a.vm = keep; a.lg = []

    def lds_count(self, cnt_off, vctlw, vone):
        return self.a.lds(f"ds_add_u32 {vctlw}, {vone} offset:{cnt_off}")

    def dump_regs(self, base, n, slot, vlane16, cond_wave=None):
        a = self.a
        a.i("s_lshl_b32 s70, s2, 3"); a.i(f"s_add_u32 s70, s70, {sW}")
        a.i("s_mul_i32 s70, s70, 0x4000")
        a.i(f"s_add_u32 s70, s70, {WS_DBG + 0x0}")
        for g in range(n // 4):
            a.i(f"s_add_u32 s71, s70, {(slot + g) * 1024}")
            a.i(f"buffer_store_dwordx4 v[{base+4*g}:{base+4*g+3}], {vlane16}, {SRD_WS}, s71 offen")
        a.i("s_waitcnt vmcnt(0)")
        a.vm = []

    def stamp(self, k, cyc=False, lvl=1):
        if self.o.get('prof') != lvl and not (k <= 2 and self.o.get('prof')): return
        a = self.a
        a.i("s_memtime s[56:57]" if cyc else "s_memrealtime s[56:57]")
        a.i("s_waitcnt lgkmcnt(0)")
        a.i(f"s_mov_b32 s{40+k}, s56")
        a.lg = []

    def stamp_flush(self):
        if not self.o.get('prof'): return
        a = self.a
        a.i("s_mov_b64 exec, 1")
        a.i("s_lshl_b32 s62, s2, 3")
        a.i(f"s_add_u32 s62, s62, {sW}")
        a.i("s_lshl_b32 s62, s62, 6")
        a.i(f"s_add_u32 s62, s62, {WS_PROF}")
        a.i("v_mov_b32 v1, 0")
        for g in range(4):
            for j in range(4): a.i(f"v_mov_b32 v{4+j}, s{40+4*g+j}")
            a.i(f"buffer_store_dwordx4 v[4:7], v1, {SRD_WS}, s62 offen offset:{16*g}")
            a.nop(2)
        a.i("s_mov_b64 exec, -1")

    def l2_prefetch(self, srd, total_bytes, ninstr, vtmp, vdst, sub_sgpr, nsub):
        a = self.a
        st = self.o.get('pfstride', 128)
        lines = total_bytes // st
        per_cu = -(-lines // 32); per_w = -(-per_cu // nsub); per_i = -(-per_w // ninstr)
        assert per_i <= 64, per_i
        a.i(f"s_lshr_b32 s62, {sRB}, 3")
        a.i(f"s_lshl_b32 s63, {sCG}, 2")
        a.i("s_add_u32 s62, s62, s63")
        a.i(f"s_mul_i32 s62, s62, {per_cu}")
        a.i(f"s_mul_i32 s63, {sub_sgpr}, {per_w}")
        a.i("s_add_u32 s62, s62, s63")
        a.i(f"v_min_u32 {vtmp}, {per_i - 1}, v0")
        a.i(f"v_add_u32 {vtmp}, s62, {vtmp}")
        a.i(f"v_mul_u32_u24 {vtmp}, {st}, {vtmp}")
        toks = []
        for i in range(ninstr):
            a.i(f"s_mov_b32 s63, {i * per_i * st}")
            toks.append(a.vmem(f"buffer_load_dword {vdst}, {vtmp}, {srd}, s63 offen"))
        return toks

    def prologue(self):
        a = self.a
        a.i("s_cmp_ge_u32 s2, 256")
        a.i("s_cbranch_scc1 L_END")
        if self.o.get('prof'): a.i("s_memrealtime s[94:95]")
        a.i("s_load_dwordx16 s[40:55], s[0:1], 0")
        a.i("s_load_dwordx4 s[56:59], s[0:1], 64")
        a.i("s_load_dwordx2 s[60:61], s[0:1], 80")
        a.i("v_lshrrev_b32 v1, 6, v0")
        a.i("v_and_b32 v0, 63, v0")
        a.i("s_and_b32 s62, s2, 1")
        a.i("s_lshl_b32 s62, s62, 2")
        a.i("s_lshr_b32 s63, s2, 6")
        a.i(f"s_add_u32 {sCG}, s62, s63")
        a.i(f"v_readfirstlane_b32 {sW}, v1")
        a.i("s_bfe_u32 s62, s2, 0x20001")
        a.i("s_lshl_b32 s62, s62, 3")
        a.i("s_bfe_u32 s63, s2, 0x30003")
        a.i(f"s_add_u32 {sRB}, s62, s63")
        a.i("v_lshrrev_b32 v2, 3, v0")
        a.i("v_and_b32 v3, 7, v0")
        a.i(f"s_and_b32 {sWR}, {sW}, 3")
        a.i(f"s_and_b32 s65, {sCG}, 1")
        a.i("s_lshl_b32 s65, s65, 2")
        a.i(f"s_xor_b32 s97, s65, {sW}")
        a.i("s_lshl_b32 s62, s97, 3")
        a.i(f"s_mul_i32 s98, {sRB}, 81920")
        a.i("v_add_u32 v4, s62, v2")
        a.i("v_mul_u32_u24 v4, 1280, v4")
        a.i("v_lshl_add_u32 v4, v3, 4, v4")
        a.i("s_waitcnt lgkmcnt(0)")
        def srd(base, lo, size):
            a.i(f"s_mov_b32 s{base}, s{lo}")
            a.i(f"s_mov_b32 s{base+1}, s{lo+1}")
            a.i(f"s_mov_b32 s{base+2}, {size}")
            a.i(f"s_mov_b32 s{base+3}, 0x20000")
        srd(8, 40, 2621440)
        Lx = a.newlabel("xa")
        a.i(f"s_cmp_ge_u32 {sW}, 4")
        a.i(f"s_cbranch_scc1 {Lx}")
        self.x_loads()
        a.label(Lx)
        a.i(f"s_load_dword {sN}, {sWSP}, {WS_X}")
        srd(12, 42, 819200)
        a.i(f"s_cmp_eq_u32 {sCG}, 4")
        a.i("s_cselect_b32 s16, s46, s44")
        a.i("s_cselect_b32 s17, s47, s45")
        a.i("s_mov_b32 s18, 25600")
        a.i("s_mov_b32 s19, 0x20000")
        srd(20, 48, 819200)
        srd(24, 52, 2211840)
        srd(28, 54, 2211840)
        srd(32, 56, 2621440)
        srd(36, 60, WS_END)
        for r in (200, 202, 230, 231, 253, 181, 215, 245, 220, 221, 222, 223, 224, 225, 226, 227, 228, 14, 15, 250): a.i(f"v_mov_b32 v{r}, 0")
        if self.o.get('prof'):
            for k in range(16): a.i(f"s_mov_b32 s{40+k}, 0")
            a.i("s_mov_b32 s55, s94")
        self.stamp(0)
        if self.o.get('span'):
            a.i("s_memrealtime s[90:91]")
            a.i("s_waitcnt lgkmcnt(0)")
            a.i("s_mov_b32 s101, s90")

    def layernorm(self):
        a = self.a
        a.i("v_lshrrev_b32 v5, 1, v3")
        a.i("v_lshlrev_b32 v5, 10, v5")
        a.i("v_and_b32 v6, 1, v3")
        a.i("v_lshlrev_b32 v6, 9, v6")
        a.i("v_xor_b32 v7, v2, v3")
        a.i("v_lshlrev_b32 v7, 4, v7")
        a.i("v_add3_u32 v5, v5, v6, v7")
        a.i("s_and_b32 s62, s97, 3")
        a.i("s_lshl_b32 s62, s62, 7")
        a.i("s_lshr_b32 s64, s97, 2")
        a.i("s_mul_i32 s64, s64, 40960")
        a.i("s_add_u32 s62, s62, s64")
        a.i("v_add_u32 v5, s62, v5")
        Lz = a.newlabel("nz")
        a.i(f"s_cmp_lg_u32 {sW}, 0")
        a.i(f"s_cbranch_scc1 {Lz}")
        a.i("v_lshlrev_b32 v6, 2, v0")
        a.i(f"v_add_u32 v6, {CTRL}, v6")
        a.i("v_mov_b32 v7, 0")
        a.i("ds_write_b32 v6, v7")
        a.label(Lz)
        a.i("s_mov_b32 s62, 0x3f803f80")
        a.i("s_mov_b32 s63, 0xffff0000")
        for k in range(4): a.i(f"v_mov_b32 v{64+k}, 0")
        a.nop(1)
        X = lambda j: f"v{16+j}"
        for j in range(40):
            a.i(f"v_dot2_f32_bf16 v{64+(j&1)}, {X(j)}, s62, v{64+(j&1)}")
            a.i(f"v_dot2_f32_bf16 v{66+(j&1)}, {X(j)}, {X(j)}, v{66+(j&1)}")
        a.nop(3)
        a.i("v_add_f32 v64, v64, v65")
        a.i("v_add_f32 v66, v66, v67")
        a.nop(1)
        for dpp in ("quad_perm:[1,0,3,2]", "quad_perm:[2,3,0,1]", "row_half_mirror"):
            a.i(f"v_add_f32_dpp v64, v64, v64 {dpp} row_mask:0xf bank_mask:0xf")
            a.i(f"v_add_f32_dpp v66, v66, v66 {dpp} row_mask:0xf bank_mask:0xf")
            a.nop(1)
        a.i(f"v_mul_f32 v64, {hx(f2u(1.0/640))}, v64")
        a.i(f"v_mul_f32 v66, {hx(f2u(1.0/640))}, v66")
        a.i("v_fma_f32 v66, -v64, v64, v66")
        a.i("v_max_f32 v66, 0, v66")
        a.i(f"v_add_f32 v66, {hx(f2u(1e-5))}, v66")
        a.i("v_rsq_f32 v68, v66")
        a.nop(1)
        a.i("v_mov_b32 v69, v68")
        a.i("v_mul_f32 v70, v64, v68")
        a.i("v_sub_f32 v70, 0, v70")
        a.i("v_mov_b32 v71, v70")
        self.stamp(3, lvl=2)
        self.role_prefetch()
        a.label("L_LN2")
        self.stamp(4, lvl=2)
        a.i("s_mov_b32 s63, 0xffff0000")
        for g in range(10):
            for d in range(4):
                j = 4 * g + d
                t = 56 + 2 * (j & 3)
                a.i(f"v_lshlrev_b32 v{t}, 16, {X(j)}")
                a.i(f"v_and_b32 v{t+1}, s63, {X(j)}")
            for d in range(4):
                j = 4 * g + d
                t = 56 + 2 * (j & 3)
                a.i(f"v_pk_fma_f32 v[{t}:{t+1}], v[{t}:{t+1}], v[68:69], v[70:71]")
            for d in range(4):
                j = 4 * g + d
                t = 56 + 2 * (j & 3)
                a.i(f"v_cvt_pk_bf16_f32 {X(j)}, v{t}, v{t+1}")
            a.i(f"ds_write_b128 v5, v[{16+4*g}:{19+4*g}] offset:{4096*g}")
        a.i("s_waitcnt lgkmcnt(0)")
        self.stamp(5, lvl=2)
        Lnw = a.newlabel("nw")
        a.i(f"s_cmp_lt_u32 {sW}, 4")
        a.i(f"s_cbranch_scc1 {Lnw}")
        a.i(f"s_and_b32 s62, {sCG}, 3")
        a.i("s_cmp_lg_u32 s62, 0")
        a.i(f"s_cbranch_scc1 {Lnw}")
        a.i("s_waitcnt vmcnt(0)")
        a.label(Lnw)
        a.i("s_barrier")
        a.lg = []

    def xn_addr(self, vA, vB, vt0, vt1, phase_sgpr=None, base_sgpr=None, swap_sgpr=None):
        a = self.a
        a.i(f"v_and_b32 {vt0}, 31, v0")
        a.i(f"v_lshrrev_b32 {vt1}, 5, v0")
        for q in range(4):
            r = f"v{vA+q}"
            if phase_sgpr is None:
                a.i(f"v_add_u32 {r}, {2*q}, {vt1}")
            else:
                a.i(f"s_add_u32 s62, {phase_sgpr}, {q}")
                a.i("s_and_b32 s62, s62, 3")
                a.i("s_lshl_b32 s62, s62, 1")
                a.i(f"v_add_u32 {r}, s62, {vt1}")
            a.i(f"v_xor_b32 {r}, {r}, {vt0}")
            a.i(f"v_lshlrev_b32 {r}, 4, {r}")
            a.i(f"v_lshl_add_u32 {r}, {vt1}, 9, {r}")
            if base_sgpr is not None:
                a.i(f"v_add_u32 {r}, {base_sgpr}, {r}")
            if vB is not None: a.i(f"v_add_u32 v{vB+q}, 40960, {r}")

    WRAPS = (8, 12, 16, 20, 28, 32, 36)
    def rot_setup(self, stride, sK, sRot):
        a = self.a
        a.i(f"s_and_b32 s62, {sRB}, 7")
        a.i("s_lshr_b32 s63, s62, 2")
        a.i("s_add_u32 s62, s62, s63")
        a.i(f"s_lshl_b32 {sRot}, s62, 2")
        if not self.o.get('rot', 1): a.i(f"s_mov_b32 {sRot}, 0")
        a.i(f"s_mul_i32 {sK}, {sRot}, {stride}")
    def rot_next(self, stride, sK, ks=None):
        a = self.a
        a.i(f"s_add_u32 {sK}, {sK}, {stride}")
        if ks is None or (ks + 1) in self.WRAPS:
            a.i(f"s_cmp_eq_u32 {sK}, {40*stride}")
            a.i(f"s_cselect_b32 {sK}, 0, {sK}")
    def rot_xn_base(self, vA, vB, sRot):
        a = self.a
        a.i(f"s_lshl_b32 s62, {sRot}, 10")
        for q in range(4):
            a.i(f"v_add_u32 v{vA+q}, s62, v{vA+q}")
            a.i(f"v_add_u32 v{vB+q}, s62, v{vB+q}")
    def rot_xn_seg(self, vA, vB, sRot, ks):
        a = self.a
        if ks not in self.WRAPS: return
        L = a.newlabel("wrap")
        a.i(f"s_cmp_eq_u32 {sRot}, {40 - ks}")
        a.i(f"s_cbranch_scc0 {L}")
        for q in range(4):
            a.i(f"v_subrev_u32 v{vA+q}, 40960, v{vA+q}")
            a.i(f"v_subrev_u32 v{vB+q}, 40960, v{vB+q}")
        a.label(L)
    def seg_imm(self, ks):
        return ks * 1024

    def ctl_regs(self, vW, vR, vOne):
        a = self.a
        a.i(f"v_lshlrev_b32 {vW}, 2, v0")
        a.i(f"v_add_u32 {vW}, {CTRL + CDUMMY}, {vW}")
        a.i(f"v_mov_b32 {vR}, {CTRL}")
        a.i("v_cmp_eq_u32 vcc, 0, v0")
        a.i(f"v_mov_b32 {vOne}, 1")
        a.nop(1)
        a.i(f"v_cndmask_b32 {vW}, {vW}, {vR}, vcc")

    vDq, vTRq, vTRk = "v200", "v201", "v202"
    A_XA, A_XB = 204, 208
    A_CW, A_CR, A_ONE, A_L16 = "v212", "v213", "v214", "v215"
    A_JA, A_JB = 220, 224

    def wq_dma(self, ks):
        a = self.a
        a.i(f"s_add_u32 m0, s66, {(ks % NSQ) * 1024}")
        a.nop(1)
        t = a.vmem(f"buffer_load_dwordx4 {self.vDq}, {SRD_WQ}, s67 offen lds")
        self.rot_next(20480, "s67", ks)
        return t

    def a_setup_private(self):
        a = self.a
        a.i(f"s_mul_i32 s66, {sWR}, {APRIV}")
        a.i(f"s_add_u32 s66, s66, {QST}")

    def a_prefetch_q_addr(self):
        a = self.a
        a.i("v_lshrrev_b32 v216, 2, v0")
        a.i("v_mul_u32_u24 v216, 1280, v216")
        a.i("v_and_b32 v217, 3, v0")
        a.i("v_cmp_eq_u32 vcc, 3, v217")
        a.i(f"v_lshl_add_u32 {self.vDq}, v217, 4, v216")
        a.i("v_mov_b32 v217, 0x40000000")
        a.i(f"v_cndmask_b32 {self.vDq}, {self.vDq}, v217, vcc")
        a.i(f"s_lshl_b32 s62, {sCG}, 2")
        a.i(f"s_add_u32 s62, s62, {sWR}")
        a.i("s_mul_i32 s62, s62, 40")
        a.i(f"s_cmp_eq_u32 {sWR}, 3")
        a.i("s_cselect_b32 s63, 8, 0")
        a.i("s_sub_u32 s62, s62, s63")
        a.i(f"v_add_u32 {self.vDq}, s62, {self.vDq}")

    def x_loads(self):
        a = self.a
        for i in range(10):
            a.i(f"buffer_load_dwordx4 v[{16+4*i}:{19+4*i}], v4, {SRD_X}, s98 offen offset:{128*i}")

    def role_setup(self):
        a = self.a
        a.i(f"s_cmp_ge_u32 {sW}, 4")
        a.i("s_cbranch_scc1 L_SET_B")
        self.a_setup_private()
        self.a_prefetch_q_addr()
        self.rot_setup(20480, "s67", "s69")
        self.ctl_regs(self.A_CW, self.A_CR, self.A_ONE)
        a.i(f"v_lshlrev_b32 {self.A_L16}, 4, v0")
        self.xn_addr(self.A_XA, self.A_XB, "v216", "v217")
        self.rot_xn_base(self.A_XA, self.A_XB, "s69")
        a.i(f"s_cmp_eq_u32 {sWR}, 3")
        a.i("s_cselect_b32 s63, 8, 0")
        a.i("s_add_u32 s63, s63, s66")
        self.tr_addr_nat64(self.vTRq, "s63", 64)
        self.ring_addr()
        a.i(f"s_and_b32 s62, {sRB}, 7")
        a.i("s_mul_i32 s62, s62, 240")
        a.i(f"s_mul_i32 s63, {sWR}, 60")
        a.i("s_add_u32 s62, s62, s63")
        a.i("v_min_u32 v216, 59, v0")
        a.i("v_add_u32 v216, s62, v216")
        a.i("v_mul_u32_u24 v217, 0x5556, v216")
        a.i("v_lshrrev_b32 v217, 16, v217")
        a.i("v_mul_u32_u24 v218, 3, v217")
        a.i("v_sub_u32 v216, v216, v218")
        a.i("v_mul_u32_u24 v217, 1280, v217")
        a.i("v_lshl_add_u32 v202, v216, 7, v217")
        a.i(f"s_mul_i32 s62, {sCG}, 160")
        a.i("s_and_b32 s100, s62, 0xffffff80")
        a.i("s_branch L_SET_J")
        a.label("L_SET_B")
        a.i(f"s_mul_i32 s66, {sWR}, {BPRIV}")
        a.i(f"s_add_u32 s66, s66, {BST}")
        a.i(f"s_lshr_b32 s62, {sCG}, 2")
        a.i(f"s_sub_u32 s63, {sCG}, s62")
        a.i("s_sub_u32 s63, s63, 1")
        a.i("s_lshl_b32 s63, s63, 2")
        a.i(f"s_add_u32 s68, s63, {sWR}")
        a.i("s_mov_b32 s99, 1")
        a.i(f"s_and_b32 s63, {sCG}, 3")
        a.i("s_cmp_lg_u32 s63, 0")
        Lp = a.newlabel("pair")
        a.i(f"s_cbranch_scc1 {Lp}")
        a.i("s_lshl_b32 s62, s62, 1")
        a.i(f"s_add_u32 s68, s62, {sWR}")
        a.i("s_add_u32 s68, s68, 22")
        a.i(f"s_cmp_ge_u32 {sWR}, 2")
        a.i("s_cselect_b32 s99, 1, 0")
        a.i("s_cmp_ge_u32 s68, 27")
        a.i("s_cselect_b32 s99, 0, s99")
        a.i("s_cselect_b32 s68, 0, s68")
        a.label(Lp)
        a.i("s_lshl_b32 s68, s68, 1")
        a.i("s_lshl_b32 s62, s68, 6")
        self.pair_dma_addr(self.vD1a, self.vD1b, 3456, "s62")
        self.ctl_regs(self.B_CW, self.B_CR, self.B_ONE)
        a.i(f"v_lshlrev_b32 {self.B_L16}, 4, v0")
        self.rot_setup(16 * 3456, "s67", "s69")
        self.xn_addr(self.B_XA, self.B_XB, "v246", "v247")
        self.rot_xn_base(self.B_XA, self.B_XB, "s69")
        self.pair_tr_addr(self.vTRa, self.vTRb, 8, "s66")
        self.out_tiles_setup()
        self.out_mixed_addr()
        self.ffn2_addr()
        a.i(f"s_and_b32 s64, {sRB}, 7")
        a.i("s_mul_i32 s62, s64, 80")
        a.i("v_min_u32 v246, 39, v0")
        a.i("v_add_u32 v246, s62, v246")
        a.i("v_mul_u32_u24 v246, 3456, v246")
        a.i("s_lshl_b32 s62, s68, 6")
        a.i("v_add_u32 v226, s62, v246")
        a.i("s_mul_i32 s62, s64, 54")
        a.i(f"s_mul_i32 s63, {sWR}, 432")
        a.i("s_add_u32 s62, s62, s63")
        a.i("v_min_u32 v246, 53, v0")
        a.i("v_add_u32 v246, s62, v246")
        a.i("v_mul_u32_u24 v227, 1280, v246")
        a.i("s_mul_i32 s62, s64, 20")
        a.i(f"s_mul_i32 s63, {sWR}, 160")
        a.i("s_add_u32 s62, s62, s63")
        a.i("v_min_u32 v246, 39, v0")
        a.i("v_cmp_gt_u32 vcc, 20, v246")
        a.i("v_subrev_u32 v247, 20, v246")
        a.i("v_mov_b32 v248, s81")
        a.i("v_mov_b32 v249, s80")
        a.i("v_cndmask_b32 v246, v247, v246, vcc")
        a.i("v_cndmask_b32 v248, v248, v249, vcc")
        a.i("v_add_u32 v246, s62, v246")
        a.i("v_mul_u32_u24 v246, 1280, v246")
        a.i("v_add_u32 v228, v246, v248")
        a.i(f"s_mov_b32 s62, {WKI}")
        self.tr_addr_nat64(self.B_TRK, "s62", 40, "v246", "v247")
        a.i(f"s_and_b32 s64, {sWR}, 1")
        a.i("s_mul_i32 s64, s64, 40960")
        self.xn_addr(self.B_JA, None, "v246", "v247", base_sgpr="s64")
        a.i("v_lshlrev_b32 v253, 4, v0")
        a.i(f"s_mul_i32 s62, {sWR}, 6400")
        a.i("v_add_u32 v253, s62, v253")
        self.x_loads()
        a.i(f"s_and_b32 s64, {sCG}, 3")
        a.i("s_cmp_lg_u32 s64, 0")
        a.i("s_cbranch_scc1 L_SET_J")
        a.i(f"s_add_u32 s63, s62, {WKI}")
        a.i("s_mov_b32 m0, s63")
        a.i("s_mov_b32 s62, 0")
        for j in range(4):
            a.i(f"buffer_load_dwordx4 v253, {SRD_WKV}, s62 offen offset:{1024*j} lds")
        a.i("s_add_u32 m0, s63, 4096")
        a.i("s_mov_b32 s62, 4096")
        for j in range(3):
            a.i(f"buffer_load_dwordx4 v253, {SRD_WKV}, s62 offen offset:{1024*j} lds")
        a.i("s_waitcnt vmcnt(7)")
        a.i("s_branch L_SET_X")
        a.label("L_SET_J")
        a.i("s_waitcnt vmcnt(0)")
        a.label("L_SET_X")

    def role_prefetch(self):
        a = self.a
        Lb = a.newlabel("pfb")
        a.i(f"s_cmp_ge_u32 {sW}, 4")
        a.i(f"s_cbranch_scc1 {Lb}")
        a.vm = []
        self.qtok = [self.wq_dma(ks) for ks in range(NSQ)]
        a.i("s_branch L_LN2")
        a.label(Lb)

    def tr_addr_nat64(self, vdst, base_sgpr, pitch, t0="v216", t1="v217"):
        a = self.a
        a.i(f"v_lshrrev_b32 {t0}, 5, v0")
        a.i(f"v_lshlrev_b32 {t0}, 3, {t0}")
        a.i(f"v_bfe_u32 {t1}, v0, 2, 2")
        a.i(f"v_add_u32 {t0}, {t0}, {t1}")
        a.i(f"v_mul_u32_u24 {t0}, {pitch}, {t0}")
        a.i(f"v_bfe_u32 {t1}, v0, 4, 1")
        a.i(f"v_lshl_add_u32 {t0}, {t1}, 5, {t0}")
        a.i(f"v_and_b32 {t1}, 3, v0")
        a.i(f"v_lshl_add_u32 {t0}, {t1}, 3, {t0}")
        a.i(f"v_add_u32 {vdst}, {base_sgpr}, {t0}")

    def wave_max(self, regs):
        a = self.a
        for dpp in ("row_shr:1 row_mask:0xf", "row_shr:2 row_mask:0xf", "row_shr:4 row_mask:0xf", "row_shr:8 row_mask:0xf",
                    "row_bcast:15 row_mask:0xa", "row_bcast:31 row_mask:0xc"):
            a.nop(2 if len(regs) == 1 else (1 if len(regs) == 2 else 0))
            for r in regs:
                a.i(f"v_max_f32_dpp {r}, {r}, {r} {dpp} bank_mask:0xf")
        a.nop(1)

    def kv_job(self, isV):
        a = self.a
        a.c("---- K/V projection job: B waves 0/1 = m-tile, full K ----")
        D = 16
        def fr(kk): return 48 + 8 * (kk % 4)
        toks = {}
        def reads(kk):
            b = fr(kk); t = []
            t.append(a.lds(f"ds_read_b64_tr_b16 v[{b}:{b+1}], {self.B_TRK} offset:{kk*640}"))
            t.append(a.lds(f"ds_read_b64_tr_b16 v[{b+2}:{b+3}], {self.B_TRK} offset:{kk*640+160}"))
            t.append(a.lds(f"ds_read_b128 v[{b+4}:{b+7}], v{self.B_JA + kk % 4} offset:{kk*1024}"))
            toks[kk] = t
        for kk in range(3): reads(kk)
        for kk in range(40):
            a.wait(lg=toks[kk])
            b = fr(kk)
            W = f"v[{b}:{b+3}]"; X = f"v[{b+4}:{b+7}]"
            C = "0" if kk == 0 else f"v[{D}:{D+15}]"
            if isV: a.i(f"v_mfma_f32_32x32x16_bf16 v[{D}:{D+15}], {X}, {W}, {C}")
            else:   a.i(f"v_mfma_f32_32x32x16_bf16 v[{D}:{D+15}], {W}, {X}, {C}")
            if kk + 3 < 40: reads(kk + 3)
        self.stamp(7, lvl=2)
        a.i(f"s_lshr_b32 s62, {sRB}, 1")
        a.i(f"s_mul_i32 s62, s62, {KVCH}")
        a.i(f"s_add_u32 s62, s62, {WS_KV}")
        a.i(f"s_and_b32 s63, {sRB}, 1")
        a.i("s_lshl_b32 s65, s63, 1")
        a.i(f"s_add_u32 s65, s65, {sWR}")
        a.i("v_and_b32 v93, 31, v0")
        a.i("v_lshrrev_b32 v95, 5, v0")
        if not isV:
            a.i("s_lshl_b32 s64, s65, 10")
            a.i("s_add_u32 s64, s62, s64")
            a.i("s_lshl_b32 s63, s63, 9")
            a.i("s_add_u32 s62, s62, s63")
            a.i(f"s_lshl_b32 s63, {sWR}, 3")
            a.i("s_add_u32 s62, s62, s63")
            a.i(f"s_add_u32 s62, s62, {KV_KH}")
            a.i("v_cmp_gt_u32 vcc, 32, v0")
            a.nop(2)
            for j in range(6): a.i(f"v_cvt_pk_bf16_f32 v{88+j if j < 4 else 96+j-4}, v{D+2*j}, v{D+2*j+1}")
            a.vmem(f"buffer_store_dwordx4 v[88:91], {self.B_L16}, {SRD_WS}, s64 offen sc1")
            a.i("s_mov_b32 exec_lo, -1"); a.i("s_mov_b32 exec_hi, 0")
            a.vmem(f"buffer_store_dwordx2 v[96:97], {self.B_L16}, {SRD_WS}, s62 offen sc1")
            a.i("s_mov_b64 exec, -1")
            a.i(f"v_mul_f32 v92, v{D+8}, v{D+8}")
            for j in range(9, 12): a.i(f"v_fmac_f32 v92, v{D+j}, v{D+j}")
            a.nop(1)
            a.i("v_cndmask_b32 v92, 0, v92, vcc")
            for j in range(8): a.i(f"v_fmac_f32 v92, v{D+j}, v{D+j}")
            a.i("v_mov_b32 v93, v92")
            a.nop(2)
            a.i("v_permlane32_swap_b32 v92, v93")
            a.nop(1)
            a.i("v_add_f32 v92, v92, v93")
            norm_base = WS_KN
        else:
            a.i(f"v_mul_u32_u24 v95, {VROW}, v95")
            a.i("v_lshl_add_u32 v95, v93, 4, v95")
            a.i("s_lshl_b32 s65, s65, 1")
            a.i(f"s_mul_i32 s65, s65, {VFR}")
            a.i("s_add_u32 s62, s62, s65")
            a.i(f"s_add_u32 s62, s62, {KV_V}")
            a.i("v_cmp_eq_u32 vcc, 20, v93")
            a.i("v_cmp_eq_u32 s[64:65], 21, v93")
            a.i("v_mov_b32 v94, 0x3f803f80")
            a.i("v_mov_b32 v98, 0")
            for j in range(8): a.i(f"v_cvt_pk_bf16_f32 v{80+j}, v{D+2*j}, v{D+2*j+1}")
            for j in range(8): a.i(f"v_cndmask_b32 v{80+j}, v{80+j}, v94, vcc")
            for j in range(8): a.i(f"v_cndmask_b32 v{80+j}, v{80+j}, v98, s[64:65]")
            a.i("s_mov_b32 exec_lo, 0x3fffff")
            a.i("s_mov_b32 exec_hi, 0x3fffff")
            a.vmem(f"buffer_store_dwordx4 v[80:83], v95, {SRD_WS}, s62 offen sc1")
            a.vmem(f"buffer_store_dwordx4 v[84:87], v95, {SRD_WS}, s62 offen offset:{VFR} sc1")
            a.i("s_mov_b64 exec, -1")
            a.i(f"v_max3_f32 v92, abs(v{D}), abs(v{D+1}), abs(v{D+2})")
            for j in range(3, 15, 2): a.i(f"v_max3_f32 v92, v92, abs(v{D+j}), abs(v{D+j+1})")
            a.i(f"v_max3_f32 v92, v92, abs(v{D+15}), abs(v{D+15})")
            a.i("v_cmp_gt_u32 vcc, 20, v93")
            a.nop(2)
            a.i("v_cndmask_b32 v92, 0, v92, vcc")
            norm_base = WS_VN
        self.stamp(9, lvl=2)
        self.wave_max(["v92"])
        a.i("v_readlane_b32 s63, v92, 63")
        a.i(f"s_lshl_b32 s62, {sRB}, 1")
        a.i(f"s_add_u32 s62, s62, {sWR}")
        a.i("s_lshl_b32 s62, s62, 2")
        a.i(f"s_add_u32 s62, s62, {norm_base}")
        a.i("v_mov_b32 v92, s63")
        a.i("v_mov_b32 v93, 0")
        a.i("s_mov_b64 exec, 1")
        a.vmem(f"buffer_store_dword v92, v93, {SRD_WS}, s62 offen sc1")
        a.i("s_mov_b64 exec, -1")
        a.wait(vm='all')
        self.stamp(10, lvl=2)
        a.lds(f"ds_add_rtn_u32 v248, {self.B_CW}, {self.B_ONE} offset:{C_KVD}")
        a.wait(lg='all')
        a.i("v_readfirstlane_b32 s62, v248")
        Lnf = a.newlabel("kvnf")
        a.nop(1)
        a.i("s_cmp_lg_u32 s62, 1")
        a.i(f"s_cbranch_scc1 {Lnf}")
        a.i("v_lshlrev_b32 v92, 8, v0")
        a.i(f"v_mov_b32 v93, {sN}")
        a.i(f"s_lshl_b32 s62, {sRB}, 1")
        a.i(f"s_add_u32 s62, s62, {1 if isV else 0}")
        a.i("s_lshl_b32 s62, s62, 2")
        a.i(f"s_add_u32 s62, s62, {WS_FKV}")
        a.i("s_mov_b32 exec_lo, -1"); a.i("s_mov_b32 exec_hi, 0")
        a.i(f"buffer_store_dword v93, v92, {SRD_WS}, s62 offen sc1")
        a.i("s_mov_b64 exec, -1")
        a.label(Lnf)
        a.vm = []

    def q_proj(self):
        a = self.a
        a.c("---- Q projection (transposed): wave = head, both m-tiles ----")
        NS = NSQ
        dt = self.qtok
        if self.o.get('kvgate', 0):
            Lgo = a.newlabel("qgo")
            a.i(f"s_and_b32 s62, {sCG}, 3")
            a.i("s_cmp_lg_u32 s62, 0")
            a.i(f"s_cbranch_scc1 {Lgo}")
            self.lds_spin_ge(C_KVD, 2, "v218", self.A_CR, sleep=1)
            a.label(Lgo)
        a.vm = list(dt); a.lg = []
        B = lambda ks: 48 + 12 * (ks % 3)
        dm = {k: dt[k] for k in range(NS)}
        toks = {}
        def reads(ks):
            a.wait(vm=dm[ks])
            b = B(ks); sl = (ks % NS) * 1024; t = []
            t.append(a.lds(f"ds_read_b64_tr_b16 v[{b}:{b+1}], {self.vTRq} offset:{sl}"))
            t.append(a.lds(f"ds_read_b64_tr_b16 v[{b+2}:{b+3}], {self.vTRq} offset:{sl+256}"))
            self.rot_xn_seg(self.A_XA, self.A_XB, "s69", ks)
            t.append(a.lds(f"ds_read_b128 v[{b+4}:{b+7}], v{self.A_XA + ks % 4} offset:{self.seg_imm(ks)}"))
            t.append(a.lds(f"ds_read_b128 v[{b+8}:{b+11}], v{self.A_XB + ks % 4} offset:{self.seg_imm(ks)}"))
            toks[ks] = t
        reads(0); reads(1)
        for ks in range(40):
            if ks in (0, 10, 20, 30): self.stamp(6 + ks // 10, lvl=2)
            a.wait(lg=toks[ks])
            b = B(ks)
            C = "0" if ks == 0 else "v[16:31]"
            a.i(f"v_mfma_f32_32x32x16_bf16 v[16:31], v[{b}:{b+3}], v[{b+4}:{b+7}], {C}")
            if ks + 2 < 40: reads(ks + 2)
            C = "0" if ks == 0 else "v[32:47]"
            a.i(f"v_mfma_f32_32x32x16_bf16 v[32:47], v[{b}:{b+3}], v[{b+8}:{b+11}], {C}")
            if ks + NS < 40: dm[ks + NS] = self.wq_dma(ks + NS)
            if ks + NS == 39: self.lds_count(C_QISS, self.A_CW, self.A_ONE)
        self.lds_count(C_XND, self.A_CW, self.A_ONE)
        self.lds_count(C_QDONE, self.A_CW, self.A_ONE)

    S_ = {'a': 16, 'b': 32}; O_ = {'a': 48, 'b': 64}; P_ = {'a': 80, 'b': 88}; C_ = {'a': 96, 'b': 112}
    QL = {'a': 128, 'b': 132}; QH = {'a': 136, 'b': 138}
    KL = [140, 144]; KH = [148, 152]; VV = [156, 164]
    vKL, vKH, vV, vCnt, vDkv = "v172", "v173", "v174", "v180", "v181"
    N2 = {'a': "v182", 'b': "v183"}

    def q_epilogue(self):
        a = self.a
        a.c("---- Q epilogue: scale, pack to bf16 B operands, squared norms ----")
        a.i("v_cmp_gt_u32 vcc, 32, v0")
        a.i(f"v_mov_b32 v216, {hx(f2u(QSCALE))}")
        a.i("v_mov_b32 v217, 0")
        a.nop(7)
        a.i("v_cndmask_b32 v217, v217, v216, vcc")
        for u, D in (('a', 16), ('b', 32)):
            for j in range(8): a.i(f"v_mul_f32 v{D+j}, v216, v{D+j}")
            for j in range(8, 12): a.i(f"v_mul_f32 v{D+j}, v217, v{D+j}")
            for j in range(4): a.i(f"v_cvt_pk_bf16_f32 v{self.QL[u]+j}, v{D+2*j}, v{D+2*j+1}")
            for j in range(2): a.i(f"v_cvt_pk_bf16_f32 v{self.QH[u]+j}, v{D+8+2*j}, v{D+9+2*j}")
            n = self.N2[u]
            a.i(f"v_mul_f32 {n}, v{D}, v{D}")
            for j in range(1, 12): a.i(f"v_fmac_f32 {n}, v{D+j}, v{D+j}")
        for u in "ab":
            a.i(f"v_mov_b32 v{218 if u=='a' else 219}, {self.N2[u]}")
        a.nop(1)
        a.i(f"v_permlane32_swap_b32 {self.N2['a']}, v218")
        a.i(f"v_permlane32_swap_b32 {self.N2['b']}, v219")
        a.nop(1)
        a.i(f"v_add_f32 {self.N2['a']}, {self.N2['a']}, v218")
        a.i(f"v_add_f32 {self.N2['b']}, {self.N2['b']}, v219")

    def qk(self, u, kl, kh, dst=None):
        S = self.S_[u] if dst is None else dst
        C = self.C_[u]
        m0 = f"v_mfma_f32_32x32x16_bf16 v[{S}:{S+15}], v[{kl}:{kl+3}], v[{self.QL[u]}:{self.QL[u]+3}], v[{C}:{C+15}]"
        m1 = f"v_mfma_f32_32x32x8_bf16 v[{S}:{S+15}], v[{kh}:{kh+1}], v[{self.QH[u]}:{self.QH[u]+1}], v[{S}:{S+15}]"
        return m0, m1
    def pv(self, u, vv):
        O = self.O_[u]; P = self.P_[u]
        m0 = f"v_mfma_f32_32x32x16_bf16 v[{O}:{O+15}], v[{vv}:{vv+3}], v[{P}:{P+3}], v[{O}:{O+15}]"
        m1 = f"v_mfma_f32_32x32x16_bf16 v[{O}:{O+15}], v[{vv+4}:{vv+7}], v[{P+4}:{P+7}], v[{O}:{O+15}]"
        return m0, m1

    def ring_addr(self):
        a = self.a
        a.i(f"v_add_u32 {self.vKL}, {AREG}, {self.A_L16}")
        a.i("v_and_b32 v216, 31, v0")
        a.i(f"v_lshlrev_b32 {self.vKH}, 4, v216")
        a.i(f"v_add_u32 {self.vKH}, {AREG + KV_KH}, {self.vKH}")
        a.i("v_min_u32 v217, 21, v216")
        a.i("v_cmp_eq_u32 vcc, 24, v216")
        a.i("v_lshrrev_b32 v219, 5, v0")
        a.i(f"v_mul_u32_u24 v219, {VROW}, v219")
        a.i("v_mov_b32 v218, 20")
        a.i("v_cndmask_b32 v217, v217, v218, vcc")
        a.i("v_lshl_add_u32 v217, v217, 4, v219")
        a.i(f"v_add_u32 {self.vV}, {AREG + KV_V}, v217")
        a.i(f"s_mul_i32 s62, {sWR}, {RSHARE}")
        a.i(f"v_add_u32 {self.vDkv}, s62, {self.A_L16}")
        a.i(f"s_add_u32 s72, s62, {AREG}")
        a.i("s_bfe_u32 s62, s2, 0x40003")
        if not self.o.get('rot', 1): a.i("s_mov_b32 s62, 0")
        a.i(f"s_mul_i32 s79, s62, {KVCH}")
        a.i(f"s_add_u32 s79, s79, {WS_KV}")

    def ring_dma(self, slot):
        a = self.a
        a.i(f"s_add_u32 m0, s72, {slot*RSLOT}")
        a.i(f"s_add_u32 s73, s79, {KVCH}")
        t = [a.vmem(f"buffer_load_dwordx4 {self.vDkv}, {SRD_WS}, s79 offen offset:{1024*j} sc1 lds") for j in range(3)]
        a.i(f"s_cmp_eq_u32 s73, {WS_KV + 16*KVCH}")
        a.i(f"s_cselect_b32 s79, {WS_KV}, s73")
        return t

    def att_init_regs(self):
        a = self.a
        for r in list(range(48, 80)) + list(range(88, 96)) + list(range(self.VV[1], self.VV[1] + 8)):
            a.i(f"v_mov_b32 v{r}, 0")

    def kv_wait(self):
        a = self.a
        a.c("---- wait for K/V of all row blocks ----")
        Lw = a.newlabel("kvw"); Lj = a.newlabel("kvj")
        a.i(f"s_cmp_lg_u32 {sWR}, 0")
        a.i(f"s_cbranch_scc1 {Lw}")
        a.i("v_lshlrev_b32 v216, 2, v0")
        a.i(f"s_lshl_b32 s63, {sRB}, 8")
        a.i(f"s_add_u32 s63, s63, {WS_FKV}")
        self.glb_poll("v216", "s63", "v217", sleep=2)
        a.i(f"ds_add_u32 {self.A_CW}, {self.A_ONE} offset:{C_KVRDY}")
        a.i(f"s_branch {Lj}")
        a.label(Lw)
        self.lds_spin_ge(C_KVRDY, 1, "v218", self.A_CR, sleep=0)
        a.label(Lj)
        a.lg = []; a.vm = []
        a.i("s_waitcnt lgkmcnt(0)")

    def shift_setup(self):
        a = self.a
        a.c("---- softmax shift ----")
        a.i("v_lshlrev_b32 v216, 2, v0")
        a.i(f"s_mov_b32 s62, {WS_KN}")
        t1 = a.vmem(f"buffer_load_dword v184, v216, {SRD_WS}, s62 offen sc1")
        a.i(f"s_mov_b32 s63, {WS_VN}")
        t2 = a.vmem(f"buffer_load_dword v186, v216, {SRD_WS}, s63 offen sc1")
        self.lds_spin_ge(C_QDONE, 4, "v218", self.A_CR, sleep=0)
        pre = [self.ring_dma(c) for c in range(3)]
        self.lds_count(C_GO, self.A_CW, self.A_ONE)
        a.wait(vm=[t1, t2])
        self.wave_max(["v184", "v186"])
        a.i("v_readlane_b32 s62, v184, 63")
        a.i("v_readlane_b32 s64, v186, 63")
        a.nop(1)
        a.i("v_mov_b32 v184, s62")
        a.i("v_mov_b32 v186, s64")
        a.i("v_max_f32 v186, 1.0, v186")
        a.i("v_log_f32 v186, v186")
        a.i(f"v_mov_b32 v185, {hx(f2u(56.5))}")
        for u in "ab":
            n = self.N2[u]
            a.i(f"v_mul_f32 {n}, {n}, v184")
        a.i("v_fma_f32 v186, v186, -0.5, v185")
        for u in "ab": a.i(f"v_sqrt_f32 {self.N2[u]}, {self.N2[u]}")
        a.nop(1)
        for u in "ab": a.i(f"v_mul_f32 {self.N2[u]}, {hx(f2u(1.02))}, {self.N2[u]}")
        a.i(f"v_cmp_nle_f32 vcc, {self.N2['a']}, v186")
        a.i(f"v_cmp_nle_f32 s[64:65], {self.N2['b']}, v186")
        a.nop(1)
        a.i("s_or_b64 vcc, vcc, s[64:65]")
        if self.o.get('force_fallback'): a.i("s_mov_b64 vcc, -1")
        Lsafe = a.newlabel("safe")
        a.i(f"s_cbranch_vccz {Lsafe}")
        self.true_max_pass()
        a.label(Lsafe)
        for u in "ab":
            for j in range(16): a.i(f"v_mov_b32 v{self.C_[u]+j}, {self.N2[u]}")
        return pre

    def true_max_pass(self):
        a = self.a
        a.c("---- fallback: true row max ----")
        for u in "ab":
            for j in range(16): a.i(f"v_mov_b32 v{self.C_[u]+j}, 0")
            a.i(f"v_mov_b32 {self.N2[u]}, 0xff800000")
        a.i("v_and_b32 v216, 31, v0")
        a.i("v_lshlrev_b32 v216, 4, v216")
        a.i("s_mov_b32 s64, 0")
        L = a.newlabel("tm")
        a.label(L)
        a.i("s_lshr_b32 s62, s64, 2")
        a.i(f"s_mul_i32 s62, s62, {KVCH}")
        a.i(f"s_add_u32 s62, s62, {WS_KV}")
        a.i("s_and_b32 s63, s64, 3")
        a.i("s_lshl_b32 s65, s63, 10")
        a.i("s_add_u32 s65, s65, s62")
        a.i(f"buffer_load_dwordx4 v[{self.KL[0]}:{self.KL[0]+3}], {self.A_L16}, {SRD_WS}, s65 offen sc1")
        a.i("s_lshr_b32 s65, s63, 1")
        a.i("s_lshl_b32 s65, s65, 9")
        a.i("s_and_b32 s63, s63, 1")
        a.i("s_lshl_b32 s63, s63, 3")
        a.i("s_add_u32 s65, s65, s63")
        a.i("s_add_u32 s65, s65, s62")
        a.i("s_add_u32 s65, s65, 4096")
        a.i(f"buffer_load_dwordx2 v[{self.KH[0]}:{self.KH[0]+1}], v216, {SRD_WS}, s65 offen sc1")
        a.i("s_waitcnt vmcnt(0)")
        for u in "ab":
            for m in self.qk(u, self.KL[0], self.KH[0]): a.i(m)
        a.nop(12)
        for u in "ab":
            S = self.S_[u]
            for j in range(8): a.i(f"v_max3_f32 {self.N2[u]}, {self.N2[u]}, v{S+2*j}, v{S+2*j+1}")
        a.i("s_add_u32 s64, s64, 1")
        a.i("s_cmp_lt_u32 s64, 64")
        a.i(f"s_cbranch_scc1 {L}")
        a.i(f"v_mov_b32 v218, {self.N2['a']}")
        a.i(f"v_mov_b32 v219, {self.N2['b']}")
        a.nop(1)
        a.i(f"v_permlane32_swap_b32 {self.N2['a']}, v218")
        a.i(f"v_permlane32_swap_b32 {self.N2['b']}, v219")
        a.nop(1)
        a.i(f"v_max_f32 {self.N2['a']}, {self.N2['a']}, v218")
        a.i(f"v_max_f32 {self.N2['b']}, {self.N2['b']}, v219")
        a.i(f"v_sub_f32 {self.N2['a']}, 0, {self.N2['a']}")
        a.i(f"v_sub_f32 {self.N2['b']}, 0, {self.N2['b']}")

    def attention(self, pre):
        a = self.a
        a.c("---- attention main loop ----")
        a.wait(vm=pre[0])
        a.lds(f"ds_add_u32 {self.A_CW}, {self.A_ONE} offset:{C_ARR}")
        self.lds_spin_ge(C_ARR, 4, self.vCnt, self.A_CR, sleep=0)
        a.i("s_mov_b32 s74, 0")
        a.i("s_mov_b32 s78, 8")
        a.lds(f"ds_read_b128 v[{self.KL[0]}:{self.KL[0]+3}], {self.vKL}")
        a.lds(f"ds_read_b128 v[{self.KH[0]}:{self.KH[0]+3}], {self.vKH}")
        a.wait(lg='all')
        for m in self.qk('a', self.KL[0], self.KH[0]): a.i(m)
        a.nop(9)
        self.stamp(7)
        self.stamp(10, True)
        L = "L_ATT"
        a.raw(".p2align 6")
        a.label(L)
        self.loop_start = len(a.lines)
        def egroup(u, k):
            S = self.S_[u]; P = self.P_[u]
            for e in range(4): a.i(f"v_exp_f32 v{S+4*k+e}, v{S+4*k+e}")
            a.i(f"v_cvt_pk_bf16_f32 v{P+2*k}, v{S+4*k}, v{S+4*k+1}")
            a.i(f"v_cvt_pk_bf16_f32 v{P+2*k+1}, v{S+4*k+2}, v{S+4*k+3}")
        for slot in range(4):
            base = slot * RSLOT; nbase = ((slot + 1) % 4) * RSLOT
            a.vm = []; a.lg = []
            if self.o.get('prof') == 3:
                a.i("s_memtime s[90:91]"); a.i("s_waitcnt lgkmcnt(0)")
            if slot == 2:
                Lw3 = a.newlabel("w3")
                a.i("s_cmp_lg_u32 s74, 3")
                a.i(f"s_cbranch_scc1 {Lw3}")
                a.i("s_waitcnt vmcnt(0)")
                a.label(Lw3)
            a.i("s_waitcnt vmcnt(3)")
            if self.o.get('prof') == 3:
                a.i("s_memtime s[92:93]"); a.i("s_waitcnt lgkmcnt(0)")
                a.i("s_sub_u32 s92, s92, s90"); a.i("s_add_u32 s44, s44, s92")
            a.lds(f"ds_add_u32 {self.A_CW}, {self.A_ONE} offset:{C_ARR}")
            for t in range(4):
                kh = self.KH[(t >> 1) % 2] + 2 * (t & 1)
                q0, q1 = self.qk('b', self.KL[t % 2], kh)
                p0, p1 = self.pv('b', self.VV[(t - 1) % 2])
                rd = []
                kn = self.KL[(t + 1) % 2]
                rd.append(('K', f"ds_read_b128 v[{kn}:{kn+3}], {self.vKL} offset:{base + (t+1)*1024 if t < 3 else nbase}"))
                if t & 1:
                    hn = self.KH[((t + 1) >> 1) % 2]
                    rd.append(('K', f"ds_read_b128 v[{hn}:{hn+3}], {self.vKH} offset:{base + 512 if t < 3 else nbase}"))
                vv = self.VV[t % 2]
                rd.append(('V', f"ds_read_b128 v[{vv}:{vv+3}], {self.vV} offset:{base + (2*t)*VFR}"))
                rd.append(('V', f"ds_read_b128 v[{vv+4}:{vv+7}], {self.vV} offset:{base + (2*t+1)*VFR}"))
                ktok, vtok = [], []
                for k, m in enumerate((q0, q1, p0, p1)):
                    a.i(m)
                    if k < len(rd):
                        tk = a.lds(rd[k][1]); (ktok if rd[k][0] == 'K' else vtok).append(tk)
                    egroup('a', k)
                khn = self.KH[((t + 1) >> 1) % 2] + 2 * ((t + 1) & 1)
                q0, q1 = self.qk('a', self.KL[(t + 1) % 2], khn)
                p0, p1 = self.pv('a', self.VV[t % 2])
                a.wait(lg=ktok)
                for k, m in enumerate((q0, q1, p0, p1)):
                    if k == 2: a.wait(lg=vtok)
                    a.i(m)
                    if t == 0 and k == 3:
                        a.lds(f"ds_read_b32 {self.vCnt}, {self.A_CR} offset:{C_ARR}")
                    if t == 1 and k == 0:
                        Lok = a.newlabel("arr")
                        a.i(f"v_cmp_gt_u32 vcc, s78, {self.vCnt}")
                        a.i(f"s_cbranch_vccz {Lok}")
                        if self.o.get('prof'): a.i("s_add_u32 s52, s52, 1")
                        keep = list(a.lg)
                        self.lds_spin_ge(C_ARR, "s78", self.vCnt, self.A_CR, sleep=0)
                        a.lg = keep
                        a.label(Lok)
                    if t == 1 and k == 1:
                        if self.o.get('prof') == 3:
                            a.i("s_memtime s[90:91]"); a.i("s_waitcnt lgkmcnt(0)")
                        if slot == 0: self.ring_dma(3)
                        else:
                            Lnd = a.newlabel("nd")
                            a.i("s_cmp_eq_u32 s74, 3")
                            a.i(f"s_cbranch_scc1 {Lnd}")
                            self.ring_dma((slot + 3) % 4)
                            a.label(Lnd)
                        if self.o.get('prof') == 3:
                            a.i("s_memtime s[92:93]"); a.i("s_waitcnt lgkmcnt(0)")
                            a.i("s_sub_u32 s92, s92, s90"); a.i("s_add_u32 s45, s45, s92")
                        a.i("s_add_u32 s78, s78, 4")
                    egroup('b', k)
        if self.o.get('prof') == 1:
            a.i("s_memtime s[56:57]" if self.o.get('qcyc') else "s_memrealtime s[56:57]")
            a.i("s_waitcnt lgkmcnt(0)")
            for k in range(3):
                a.i(f"s_cmp_eq_u32 s74, {k}")
                a.i(f"s_cselect_b32 s{53+k if k < 2 else 43}, s56, s{53+k if k < 2 else 43}")
        a.i("s_add_u32 s74, s74, 1")
        a.i("s_cmp_lt_u32 s74, 4")
        self.loop_end = len(a.lines)
        a.i(f"s_cbranch_scc1 {L}")
        for m in self.pv('b', self.VV[1]): a.i(m)
        a.vm = []; a.lg = []

    def o_addr(self):
        a = self.a
        a.i(f"s_lshl_b32 s62, {sRB}, 1")
        a.i("s_mul_i32 s62, s62, 40960")
        a.i(f"s_add_u32 s80, s62, {WS_O}")
        a.i(f"s_mul_i32 s63, {sCG}, 5")
        a.i(f"s_add_u32 s81, s63, {sWR}")
        a.i("s_lshl_b32 s81, s81, 10")
        a.i("s_add_u32 s63, s63, 4")
        a.i("s_lshl_b32 s63, s63, 10")
        a.i(f"s_lshr_b32 s65, {sWR}, 1")
        a.i("s_lshl_b32 s65, s65, 9")
        a.i("s_add_u32 s63, s63, s65")
        a.i(f"s_and_b32 s65, {sWR}, 1")
        a.i("s_lshl_b32 s65, s65, 3")
        a.i("s_add_u32 s82, s63, s65")

    def o_epilogue(self):
        a = self.a
        a.c("---- normalise O, publish ----")
        a.i("v_cmp_gt_u32 vcc, 32, v0")
        a.nop(2)
        for mt, u in enumerate("ab"):
            O = self.O_[u]
            a.i(f"v_cndmask_b32 v216, v{O+8}, v{O+12}, vcc")
            a.i("v_rcp_f32 v216, v216")
            a.nop(1)
            for j in range(12): a.i(f"v_mul_f32 v{O+j}, v216, v{O+j}")
            P = self.P_[u]
            for j in range(6): a.i(f"v_cvt_pk_bf16_f32 v{P+j}, v{O+2*j}, v{O+2*j+1}")
            a.i(f"s_add_u32 s68, s80, {mt*40960}")
            a.i("s_add_u32 s69, s68, s81")
            a.vmem(f"buffer_store_dwordx4 v[{P}:{P+3}], {self.A_L16}, {SRD_WS}, s69 offen sc1")
            a.i("s_add_u32 s69, s68, s82")
            a.i("s_mov_b32 exec_lo, -1"); a.i("s_mov_b32 exec_hi, 0")
            a.vmem(f"buffer_store_dwordx2 v[{P+4}:{P+5}], {self.A_L16}, {SRD_WS}, s69 offen sc1")
            a.i("s_mov_b64 exec, -1")
        a.wait(vm='all')
        a.lds(f"ds_add_rtn_u32 v218, {self.A_CW}, {self.A_ONE} offset:{C_OD}")
        a.wait(lg='all')
        a.i("v_readfirstlane_b32 s62, v218")
        a.nop(1)
        a.i("s_cmp_lg_u32 s62, 3")
        a.i("s_cbranch_scc1 L_AEND")
        a.i(f"s_lshl_b32 s62, {sRB}, 7")
        a.i(f"s_lshl_b32 s63, {sCG}, 2")
        a.i("s_add_u32 s62, s62, s63")
        a.i(f"s_add_u32 s62, s62, {WS_FO}")
        a.i(f"v_mov_b32 v217, {sN}")
        a.i("v_mov_b32 v216, 0")
        a.i("s_mov_b64 exec, 1")
        a.i(f"buffer_store_dword v217, v216, {SRD_WS}, s62 offen sc1")
        a.i("s_mov_b64 exec, -1")
        a.label("L_AEND")
        self.stamp(9)
        self.stamp(9, lvl=3)
        self.stamp_flush()
        a.i("s_branch L_END")

    def role_a(self):
        a = self.a
        a.label("L_ROLE_A")
        a.i(f"s_setprio {self.o.get('prioQ', 2)}")
        dt = None
        if self.o.get('noQ'):
            a.i("s_waitcnt vmcnt(0)")
            self.lds_count(C_XND, self.A_CW, self.A_ONE)
            for r in range(16, 48): a.i(f"v_mov_b32 v{r}, 0")
        else: self.q_proj()
        self.stamp(10, lvl=2)
        self.stamp(4)
        self.q_epilogue()
        if self.o.get('dump') == 'q':
            self.dump_regs(128, 12, 0, self.A_L16)
        self.att_init_regs()
        self.o_addr()
        a.i(f"s_setprio {self.o.get('prioA', 2)}")
        self.kv_wait()
        self.stamp(5)
        pre = self.shift_setup()
        self.stamp(6)
        if not self.o.get('noatt'): self.attention(pre)
        else:
            self.loop_start = self.loop_end = len(a.lines)
            a.i("s_waitcnt vmcnt(0)")
        self.stamp(11, True)
        self.stamp(8)
        if self.o.get('dump') == 'o':
            a.nop(16)
            self.dump_regs(48, 32, 0, self.A_L16)
        self.o_epilogue()

    vD1a, vD1b, vTRa, vTRb = "v230", "v231", "v232", "v233"
    B_XA, B_XB = 234, 238
    B_CW, B_CR, B_ONE, B_L16 = "v242", "v243", "v244", "v245"
    B_TRK = "v252"
    B_JA, B_JB = 112, None
    vWa, vWb, vWc, vMa, vMb, vMc = "v220", "v221", "v222", "v223", "v224", "v225"
    vRa, vRb, vRc, vPW, vPR0, vPR1, vXO, vH0 = "v8", "v9", "v10", "v11", "v12", "v13", "v14", "v15"
    vH1 = "v250"

    def pair_dma_addr(self, va, vb, pitch, col_sgpr, comp_rows=8):
        a = self.a
        a.i("v_lshrrev_b32 v246, 3, v0")
        a.i("v_bfe_u32 v247, v0, 4, 1")
        a.i("v_lshlrev_b32 v247, 2, v247")
        a.i("v_and_b32 v248, 7, v0")
        a.i("v_xor_b32 v247, v247, v248")
        a.i(f"v_mul_u32_u24 v246, {pitch}, v246")
        a.i(f"v_lshl_add_u32 {va}, v247, 4, v246")
        a.i(f"v_add_u32 {va}, {col_sgpr}, {va}")
        a.i(f"v_add_u32 {vb}, {comp_rows*pitch - 1024}, {va}")

    def pair_tr_addr(self, va, vb, hmul, base_sgpr):
        a = self.a
        a.i("v_lshrrev_b32 v246, 5, v0")
        a.i(f"v_mul_u32_u24 v246, {hmul}, v246")
        a.i("v_bfe_u32 v247, v0, 2, 2")
        a.i("v_add_u32 v246, v246, v247")
        a.i("v_lshlrev_b32 v246, 7, v246")
        a.i("v_bfe_u32 v247, v0, 4, 1")
        a.i("v_lshlrev_b32 v247, 1, v247")
        a.i("v_bfe_u32 v248, v0, 1, 1")
        a.i("v_add_u32 v247, v247, v248")
        a.i("v_bfe_u32 v248, v0, 3, 1")
        a.i("v_lshlrev_b32 v248, 2, v248")
        a.i("v_xor_b32 v247, v247, v248")
        a.i("v_lshl_add_u32 v246, v247, 4, v246")
        a.i("v_and_b32 v247, 1, v0")
        a.i("v_lshl_add_u32 v246, v247, 3, v246")
        a.i(f"v_add_u32 {va}, {base_sgpr}, v246")
        a.i(f"v_xor_b32 {vb}, 64, v246")
        a.i(f"v_add_u32 {vb}, {base_sgpr}, {vb}")

    def w1_dma(self, ks, part=None):
        a = self.a
        t = []
        if part in (None, 0):
            a.i(f"s_add_u32 m0, s66, {(ks % NS1) * 2048}")
            if part is None: a.nop(1)
        if part in (None, 1):
            t.append(a.vmem(f"buffer_load_dwordx4 {self.vD1a}, {SRD_W1}, s67 offen lds"))
        if part in (None, 2):
            t.append(a.vmem(f"buffer_load_dwordx4 {self.vD1b}, {SRD_W1}, s67 offen offset:1024 lds"))
            self.rot_next(16 * 3456, "s67", ks)
        return t

    def ffn1(self):
        a = self.a
        a.c("---- FFN1 (transposed): h^T tiles, 2 n-tiles x 2 m-tiles per wave ----")
        acc = lambda t, m: 16 + 32 * t + 16 * m
        W = lambda s, t: 80 + 8 * s + 4 * t
        X = lambda s, m: 96 + 8 * s + 4 * m
        d1 = NS1
        dm = dict(self.w1tok); ta = {}; tb = {}
        def rd_wa(ks):
            a.wait(vm=dm[ks])
            s = ks % 2; sl = (ks % NS1) * 2048
            ta[ks] = [a.lds(f"ds_read_b64_tr_b16 v[{W(s,0)}:{W(s,0)+1}], {self.vTRa} offset:{sl}"),
                      a.lds(f"ds_read_b64_tr_b16 v[{W(s,0)+2}:{W(s,0)+3}], {self.vTRa} offset:{sl+512}")]
        def rd_x(ks):
            s = ks % 2
            self.rot_xn_seg(self.B_XA, self.B_XB, "s69", ks)
            ta[ks].append(a.lds(f"ds_read_b128 v[{X(s,0)}:{X(s,0)+3}], v{self.B_XA + ks % 4} offset:{self.seg_imm(ks)}"))
            ta[ks].append(a.lds(f"ds_read_b128 v[{X(s,1)}:{X(s,1)+3}], v{self.B_XB + ks % 4} offset:{self.seg_imm(ks)}"))
        def rd_wb(ks):
            s = ks % 2; sl = (ks % NS1) * 2048
            tb[ks] = [a.lds(f"ds_read_b64_tr_b16 v[{W(s,1)}:{W(s,1)+1}], {self.vTRb} offset:{sl}"),
                      a.lds(f"ds_read_b64_tr_b16 v[{W(s,1)+2}:{W(s,1)+3}], {self.vTRb} offset:{sl+512}")]
        def mf(ks, t, m):
            s = ks % 2; A = acc(t, m)
            C = "0" if ks == 0 else f"v[{A}:{A+15}]"
            a.i(f"v_mfma_f32_32x32x16_bf16 v[{A}:{A+15}], v[{W(s,t)}:{W(s,t)+3}], v[{X(s,m)}:{X(s,m)+3}], {C}")
        rd_wa(0); rd_x(0); rd_wb(0)
        for ks in range(40):
            nx = ks + 1 < 40; dd = ks + d1 < 40
            if ks in (0, 10, 20, 30): self.stamp(6 + ks // 10, lvl=2)
            a.wait(lg=ta[ks])
            mf(ks, 0, 0)
            if nx: rd_wa(ks + 1)
            mf(ks, 0, 1)
            a.wait(lg=tb[ks])
            if nx: rd_x(ks + 1)
            if dd: self.w1_dma(ks + d1, 0)
            mf(ks, 1, 0)
            if nx: rd_wb(ks + 1)
            if dd: dm[ks + d1] = self.w1_dma(ks + d1, 1)
            mf(ks, 1, 1)
            if dd: dm[ks + d1] += self.w1_dma(ks + d1, 2)
        self.lds_count(C_XND, self.B_CW, self.B_ONE)
        if self.o.get('pf', 0): self.l2_prefetch(SRD_W2, 2211840, 3 if self.o.get('pfstride', 128) == 128 else 5, "v246", "v251", sWR, 4)
        self.stamp(10, lvl=2)
        self.stamp(3)
        a.i(f"s_setprio {self.o.get('prioBv', 3)}")
        a.i(f"s_lshl_b32 s62, {sRB}, 1")
        a.i("s_mul_i32 s62, s62, 110592")
        a.i("s_lshl_b32 s63, s68, 11")
        a.i("s_add_u32 s62, s62, s63")
        a.i(f"s_add_u32 s62, s62, {WS_H}")
        a.nop(6)
        for t in range(2):
            for m in range(2):
                A = acc(t, m); R = 80 + 8 * m + 16 * (t & 1)
                for j in range(8): a.i(f"v_cvt_pk_bf16_f32 v{R+j}, v{A+2*j}, v{A+2*j+1}")
                for j in range(8): a.i(f"v_pk_max_i16 v{R+j}, v{R+j}, 0")
                a.i(f"s_add_u32 s63, s62, {m*110592 + t*2048}")
                a.vmem(f"buffer_store_dwordx4 v[{R}:{R+3}], {self.B_L16}, {SRD_WS}, s63 offen sc1")
                a.vmem(f"buffer_store_dwordx4 v[{R+4}:{R+7}], {self.B_L16}, {SRD_WS}, s63 offen offset:1024 sc1")
        a.i(f"s_setprio {self.o.get('prioB', 0)}")

    def h_publish(self):
        a = self.a
        a.i("s_waitcnt vmcnt(0)")
        a.vm = []
        a.lds(f"ds_add_rtn_u32 v246, {self.B_CW}, {self.B_ONE} offset:{C_HD}")
        a.wait(lg='all')
        a.i("v_readfirstlane_b32 s62, v246")
        Lnf = a.newlabel("hnf")
        a.nop(1)
        a.i("s_cmp_lg_u32 s62, 3")
        a.i(f"s_cbranch_scc1 {Lnf}")
        a.i(f"s_lshl_b32 s62, {sRB}, 7")
        a.i(f"s_lshl_b32 s63, {sCG}, 2")
        a.i("s_add_u32 s62, s62, s63")
        a.i(f"s_add_u32 s62, s62, {WS_FH}")
        a.i(f"v_mov_b32 v247, {sN}")
        a.i("v_mov_b32 v246, 0")
        a.i("s_mov_b64 exec, 1")
        a.i(f"buffer_store_dword v247, v246, {SRD_WS}, s62 offen sc1")
        a.i("s_mov_b64 exec, -1")
        a.label(Lnf)

    def out_tiles_setup(self):
        a = self.a
        a.i(f"s_lshr_b32 s62, {sCG}, 1")
        a.i("s_and_b32 s64, s62, 1")
        a.i("s_mul_i32 s62, s62, 5")
        a.i(f"s_and_b32 s82, {sCG}, 1")
        a.i("s_lshl_b32 s63, s82, 1")
        a.i("s_add_u32 s80, s62, s63")
        a.i("s_add_u32 s80, s80, s64")
        a.i("s_lshl_b32 s80, s80, 6")
        a.i("s_xor_b32 s64, s64, 1")
        a.i("s_lshl_b32 s64, s64, 2")
        a.i("s_add_u32 s81, s62, s64")
        a.i("s_lshl_b32 s81, s81, 6")
        a.i(f"s_mul_i32 s83, {sWR}, {BREG}")
        self.pair_dma_addr(self.vWa, self.vWb, 1280, "s80")
        a.i("v_lshrrev_b32 v246, 2, v0")
        a.i("v_mul_u32_u24 v246, 1280, v246")
        a.i("v_and_b32 v247, 3, v0")
        a.i(f"v_lshl_add_u32 {self.vWc}, v247, 4, v246")
        a.i(f"v_add_u32 {self.vWc}, s81, {self.vWc}")
        self.pair_tr_addr(self.vRa, self.vRb, 4, "s83")
        a.i("v_lshrrev_b32 v246, 5, v0")
        a.i("v_lshlrev_b32 v246, 2, v246")
        a.i("v_bfe_u32 v247, v0, 2, 2")
        a.i("v_add_u32 v246, v246, v247")
        a.i("v_lshlrev_b32 v246, 6, v246")
        a.i("v_bfe_u32 v247, v0, 4, 1")
        a.i("v_lshl_add_u32 v246, v247, 5, v246")
        a.i("v_and_b32 v247, 3, v0")
        a.i("v_lshl_add_u32 v246, v247, 3, v246")
        a.i("s_add_u32 s62, s83, 2048")
        a.i(f"v_add_u32 {self.vRc}, s62, v246")
        a.i(f"v_add_u32 {self.vPW}, s83, {self.B_L16}")
        a.i(f"s_mul_i32 s62, {sWR}, 5120")
        a.i(f"v_add_u32 {self.vPR0}, s62, {self.B_L16}")
        a.i(f"v_add_u32 {self.vPR1}, {2*BREG}, {self.vPR0}")

    def w3_dma(self, srd, slot, soff_sgpr, va, vb, vc):
        a = self.a
        a.i(f"s_add_u32 m0, s83, {slot*3072}")
        a.nop(1)
        t = [a.vmem(f"buffer_load_dwordx4 {va}, {srd}, {soff_sgpr} offen lds"),
             a.vmem(f"buffer_load_dwordx4 {vb}, {srd}, {soff_sgpr} offen offset:1024 lds")]
        a.i(f"s_add_u32 m0, s83, {slot*3072 + 2048}")
        a.nop(1)
        t.append(a.vmem(f"buffer_load_dwordx4 {vc}, {srd}, {soff_sgpr} offen lds"))
        return t

    def w3_reads(self, slot, Wb, part=None):
        a = self.a; t = []
        sl = slot * 3072
        if isinstance(part, tuple):
            p = part[1]
            va, o2 = ((self.vRa, 1024), (self.vRb, 1024), (self.vRc, 512))[p]
            t.append(a.lds(f"ds_read_b64_tr_b16 v[{Wb+4*p}:{Wb+4*p+1}], {va} offset:{sl}"))
            t.append(a.lds(f"ds_read_b64_tr_b16 v[{Wb+4*p+2}:{Wb+4*p+3}], {va} offset:{sl+o2}"))
            return t
        if part in (None, 0):
            t.append(a.lds(f"ds_read_b64_tr_b16 v[{Wb}:{Wb+1}], {self.vRa} offset:{sl}"))
            t.append(a.lds(f"ds_read_b64_tr_b16 v[{Wb+2}:{Wb+3}], {self.vRa} offset:{sl+1024}"))
            t.append(a.lds(f"ds_read_b64_tr_b16 v[{Wb+4}:{Wb+5}], {self.vRb} offset:{sl}"))
        if part in (None, 1):
            t.append(a.lds(f"ds_read_b64_tr_b16 v[{Wb+6}:{Wb+7}], {self.vRb} offset:{sl+1024}"))
            t.append(a.lds(f"ds_read_b64_tr_b16 v[{Wb+8}:{Wb+9}], {self.vRc} offset:{sl}"))
            t.append(a.lds(f"ds_read_b64_tr_b16 v[{Wb+10}:{Wb+11}], {self.vRc} offset:{sl+512}"))
        return t

    def five_mfma(self, Wb, H0, H1, first, fill):
        a = self.a
        spec = [(0, 0, H0), (1, 0, H1), (2, 1, H0), (3, 1, H1), (4, 2, H0)]
        for n, (tau, nt, Hb) in enumerate(spec):
            A = 16 + 16 * tau
            C = "0" if first else f"v[{A}:{A+15}]"
            a.i(f"v_mfma_f32_32x32x16_bf16 v[{A}:{A+15}], v[{Wb+4*nt}:{Wb+4*nt+3}], v[{Hb}:{Hb+3}], {C}")
            if n < len(fill) and fill[n]: fill[n]()

    def reduce80(self, dst, bar_target):
        a = self.a
        a.nop(12)
        for g in range(20):
            if len(a.lg) >= 14: a.wait(lg=a.lg[6])
            a.lds(f"ds_write_b128 {self.vPW}, v[{16+4*g}:{19+4*g}] offset:{g*1024}")
        a.wait(lg='all')
        self.lds_count(C_BBAR, self.B_CW, self.B_ONE)
        self.lds_spin_ge(C_BBAR, bar_target, "v246", self.B_CR)
        tk = {}
        def rd(src):
            va = self.vPR0 if src < 2 else self.vPR1
            tk[src] = [a.lds(f"ds_read_b128 v[{16+20*src+4*e}:{19+20*src+4*e}], {va} offset:{(src&1)*BREG + e*1024}") for e in range(5)]
        rd(0); rd(1); rd(2)
        a.wait(lg=tk[1])
        rd(3)
        for j in range(20): a.i(f"v_add_f32 v{dst+j}, v{16+j}, v{36+j}")
        a.wait(lg='all')
        for j in range(20): a.i(f"v_add_f32 v{56+j}, v{56+j}, v{76+j}")
        for j in range(20): a.i(f"v_add_f32 v{dst+j}, v{dst+j}, v{56+j}")

    def ffn2(self):
        a = self.a
        a.c("---- FFN2 (transposed): 5 output tiles, split-K over the 4 B waves ----")
        if self.o.get('touch', 0):
            a.vmem(f"buffer_load_dword v251, v227, {SRD_W2}, s80 offen")
            a.vmem(f"buffer_load_dword v254, v227, {SRD_W2}, s81 offen")
        self.lds_spin_ge(C_XND, 8, "v246", self.B_CR)
        NS = 9; PF = self.o.get('d2', 4); HD = self.o.get('dh', 3) + 1
        a.i(f"s_mul_i32 s84, {sWR}, {27*20480}")
        a.i(f"s_and_b32 s62, {sRB}, 7")
        a.i("s_mul_i32 s62, s62, 3")
        a.i(f"s_and_b32 s63, {sCG}, 3")
        a.i("s_mul_i32 s63, s63, 7")
        a.i("s_add_u32 s62, s62, s63")
        a.i("s_cmp_ge_u32 s62, 27")
        a.i("s_cselect_b32 s63, 27, 0")
        a.i("s_sub_u32 s87, s62, s63")
        if not self.o.get('rot', 1): a.i("s_mov_b32 s87, 0")
        a.i("s_mul_i32 s95, s87, 20480")
        dm = {}
        a.i("s_add_u32 s95, s95, s84")
        a.i(f"s_add_u32 s93, s84, {27*20480}")
        def dma(kk, part=None):
            slot = kk % NS
            if part in (None, 0):
                a.i(f"s_add_u32 m0, s83, {slot*3072}")
                if part is None: a.nop(1)
            if part in (None, 1):
                dm[kk] = [a.vmem(f"buffer_load_dwordx4 {self.vWa}, {SRD_W2}, s95 offen lds")]
            if part in (None, 2):
                dm[kk].append(a.vmem(f"buffer_load_dwordx4 {self.vWb}, {SRD_W2}, s95 offen offset:1024 lds"))
                a.i(f"s_add_u32 m0, s83, {slot*3072 + 2048}")
                if part is None: a.nop(1)
            if part in (None, 3):
                dm[kk].append(a.vmem(f"buffer_load_dwordx4 {self.vWc}, {SRD_W2}, s95 offen lds"))
                a.i("s_add_u32 s95, s95, 20480")
                a.i("s_cmp_eq_u32 s95, s93")
                a.i("s_cselect_b32 s95, s84, s95")
        for kk in range(PF): dma(kk)
        self.stamp(5)
        self.one_wave_poll(WS_FH, C_HRDY, sleep=8)
        self.stamp(6)
        if self.o.get('pf', 0):
            a.i("v_min_u32 v246, 53, v0")
            a.i("v_lshlrev_b32 v246, 7, v246")
            a.i(f"s_mul_i32 s62, {sRB}, 221184")
            a.i(f"s_lshl_b32 s63, {sCG}, 2")
            a.i(f"s_add_u32 s63, s63, {sWR}")
            a.i(f"s_mul_i32 s63, s63, {54*128}")
            a.i("s_add_u32 s62, s62, s63")
            a.i(f"s_add_u32 s62, s62, {WS_H}")
            a.vmem(f"buffer_load_dword v251, v246, {SRD_WS}, s62 offen sc1")
            self.l2_prefetch(SRD_WO, 819200, 1 if self.o.get('pfstride', 128) == 128 else 2, "v246", "v253", sWR, 4)
        H = lambda kk, s: 120 + 8 * (kk % HD) + 4 * s
        hl = {}
        a.i("s_lshl_b32 s96, s87, 10")
        def hload(kk, part=None):
            if part in (None, 0):
                hl[kk] = [a.vmem(f"buffer_load_dwordx4 v[{H(kk,0)}:{H(kk,0)+3}], {self.vH0}, {SRD_WS}, s96 offen sc1")]
            if part in (None, 1):
                hl[kk].append(a.vmem(f"buffer_load_dwordx4 v[{H(kk,1)}:{H(kk,1)+3}], {self.vH1}, {SRD_WS}, s96 offen sc1"))
                a.i("s_add_u32 s96, s96, 1024")
                a.i(f"s_cmp_eq_u32 s96, {27*1024}")
                a.i("s_cselect_b32 s96, 0, s96")
        for kk in range(HD - 1): hload(kk)
        Wb = lambda kk: 96 + 12 * (kk % 2)
        a.wait(vm=dm[0])
        rt = {0: self.w3_reads(0, Wb(0))}
        for kk in range(27):
            a.wait(lg=rt[kk], vm=hl[kk])
            nx = kk + 1 < 27; dd = kk + PF < 27; hh = kk + HD - 1 < 27
            def rd(p, kk=kk):
                if p == 0:
                    a.wait(vm=dm[kk + 1]); rt[kk + 1] = []
                rt[kk + 1] += self.w3_reads((kk + 1) % NS, Wb(kk + 1), ('t', p))
            def g0(kk=kk):
                if nx: rd(0)
                if hh: hload(kk + HD - 1, 0)
            def g1(kk=kk):
                if nx: rd(1)
                if hh: hload(kk + HD - 1, 1)
                if dd: dma(kk + PF, 0)
            def g2(kk=kk):
                if nx: rd(2)
                if dd: dma(kk + PF, 1)
            def g3(kk=kk):
                if dd: dma(kk + PF, 2)
            def g4(kk=kk):
                if dd: dma(kk + PF, 3)
            self.five_mfma(Wb(kk), H(kk, 0), H(kk, 1), kk == 0, [g0, g1, g2, g3, g4])
        self.stamp(7)
        if self.o.get('touch', 0):
            a.i("s_mov_b32 s62, 0")
            a.vmem(f"buffer_load_dword v251, v228, {SRD_WO}, s62 offen")
        a.i(f"s_setprio {self.o.get('prioBv', 3)}")
        self.reduce80(200, 4)
        for j in range(20): a.i(f"v_mul_f32 v{16+j}, {hx(f2u(-1.4426950408889634))}, v{200+j}")
        for j in range(20): a.i(f"v_exp_f32 v{16+j}, v{16+j}")
        for j in range(20): a.i(f"v_add_f32 v{16+j}, 1.0, v{16+j}")
        for j in range(20): a.i(f"v_rcp_f32 v{16+j}, v{16+j}")
        for j in range(20): a.i(f"v_mul_f32 v{200+j}, v{200+j}, v{16+j}")
        a.i(f"s_setprio {self.o.get('prioB', 0)}")
        self.lds_count(C_BBAR, self.B_CW, self.B_ONE)
        self.lds_spin_ge(C_BBAR, 8, "v246", self.B_CR)

    def out_mixed_addr(self):
        a = self.a
        a.i("v_lshrrev_b32 v246, 3, v0")
        a.i("v_lshrrev_b32 v247, 2, v246")
        a.i("v_mul_u32_u24 v247, 40, v247")
        a.i("v_and_b32 v248, 3, v246")
        a.i("v_add3_u32 v247, v247, v248, 16")
        a.i("v_mul_u32_u24 v247, 1280, v247")
        a.i("v_bfe_u32 v248, v0, 4, 1")
        a.i("v_lshlrev_b32 v248, 2, v248")
        a.i("v_and_b32 v249, 7, v0")
        a.i("v_xor_b32 v248, v248, v249")
        a.i(f"v_lshl_add_u32 {self.vMa}, v248, 4, v247")
        a.i(f"v_add_u32 {self.vMa}, s80, {self.vMa}")
        a.i(f"v_add_u32 {self.vMb}, {20*1280 - 1024}, {self.vMa}")
        a.i("v_lshrrev_b32 v246, 2, v0")
        a.i("v_bfe_u32 v247, v246, 2, 1")
        a.i("v_lshlrev_b32 v247, 1, v247")
        a.i("v_lshrrev_b32 v248, 3, v246")
        a.i("v_add_u32 v247, v247, v248")
        a.i("v_mul_u32_u24 v247, 20, v247")
        a.i("v_and_b32 v248, 3, v246")
        a.i("v_add3_u32 v247, v247, v248, 16")
        a.i("v_mul_u32_u24 v247, 1280, v247")
        a.i("v_and_b32 v248, 3, v0")
        a.i(f"v_lshl_add_u32 {self.vMc}, v248, 4, v247")
        a.i(f"v_add_u32 {self.vMc}, s81, {self.vMc}")
        a.i("v_and_b32 v246, 31, v0")
        a.i("v_mul_u32_u24 v246, 1280, v246")
        a.i("v_lshrrev_b32 v247, 5, v0")
        a.i(f"v_lshl_add_u32 {self.vXO}, v247, 3, v246")

    def ffn2_addr(self):
        a = self.a
        a.i(f"s_lshl_b32 s62, {sRB}, 1")
        a.i("s_add_u32 s63, s62, s82")
        a.i("s_xor_b32 s64, s82, 1")
        a.i("s_add_u32 s64, s62, s64")
        a.i("s_mul_i32 s85, s63, 110592")
        a.i("s_mul_i32 s86, s64, 110592")
        a.i(f"s_mul_i32 s62, {sWR}, {27*1024}")
        a.i(f"s_add_u32 s62, s62, {WS_H}")
        a.i("s_add_u32 s85, s85, s62")
        a.i("s_add_u32 s86, s86, s62")
        a.i(f"v_add_u32 {self.vH0}, s85, {self.B_L16}")
        a.i(f"v_add_u32 {self.vH1}, s86, {self.B_L16}")

    def out_proj(self):
        a = self.a
        a.c("---- output projection + final combine ----")
        dm = {}
        a.i(f"s_lshl_b32 s62, {sWR}, 1")
        a.i("s_add_u32 s93, s62, s82")
        a.i("s_xor_b32 s63, s82, 1")
        a.i("s_add_u32 s94, s62, s63")
        a.i(f"s_mul_i32 s84, s93, {80*1280}")
        a.i(f"s_mul_i32 s87, s94, {80*1280}")
        def wo_dma(e):
            cgo, jj = e // 5, e % 5
            base = "s84" if cgo == 0 else "s87"
            if jj < 4:
                a.i(f"s_add_u32 s67, {base}, {jj*20*1280}")
                dm[e] = self.w3_dma(SRD_WO, e % 9, "s67", self.vWa, self.vWb, self.vWc)
            else:
                dm[e] = self.w3_dma(SRD_WO, e % 9, base, self.vMa, self.vMb, self.vMc)
        for e in range(9):
            wo_dma(e)
            dw = self.o.get('dw', 2)
            if e - dw >= 0: a.wait(vm=dm[e - dw])
        a.wait(vm=dm[8])
        rt0 = self.w3_reads(0, 96)
        a.wait(lg=rt0)
        wo_dma(9)
        a.wait(vm=dm[9])
        xt = []
        for e in range(5):
            so = f"s{88+e}"
            a.i(f"s_mul_i32 s62, {sWR}, 5")
            a.i(f"s_add_u32 s62, s62, {e}")
            a.i("s_lshr_b32 s63, s62, 2")
            a.i("s_and_b32 s64, s62, 3")
            a.i("s_lshl_b32 s64, s64, 4")
            a.i("s_lshr_b32 s65, s63, 1")
            a.i("s_lshl_b32 s69, s65, 6")
            a.i("s_add_u32 s69, s69, s80")
            a.i("s_cmp_eq_u32 s63, 4")
            a.i("s_cselect_b32 s69, s81, s69")
            a.i("s_add_u32 s64, s64, s69")
            a.i("s_and_b32 s65, s63, 1")
            a.i("s_xor_b32 s65, s65, s82")
            a.i(f"s_lshl_b32 s69, {sRB}, 1")
            a.i("s_add_u32 s65, s65, s69")
            a.i("s_mul_i32 s65, s65, 40960")
            a.i(f"s_add_u32 {so}, s64, s65")
            xt.append(a.vmem(f"buffer_load_dwordx2 v[{220+2*e}:{221+2*e}], {self.vXO}, {SRD_X}, {so} offen"))
        self.stamp(9)
        self.one_wave_poll(WS_FO, C_ORDY, pre=lambda: self.lds_spin_ge(C_OD, 4, "v246", self.B_CR, sleep=3), sleep=1)
        self.stamp(10)
        Lnl = a.newlabel("nolead")
        a.i(f"s_lshl_b32 s62, {sCG}, 2")
        a.i(f"s_add_u32 s62, s62, {sWR}")
        a.i("s_cmp_lg_u32 s62, 0")
        a.i(f"s_cbranch_scc1 {Lnl}")
        a.i("v_mov_b32 v246, 0")
        a.i("v_mov_b32 v247, 1")
        a.i("s_mov_b64 exec, 1")
        a.i(f"global_atomic_add v248, v246, v247, {sDBG} sc0 sc1")
        a.i("s_waitcnt vmcnt(0)")
        a.i("v_readfirstlane_b32 s62, v248")
        a.i("s_mov_b64 exec, -1")
        a.nop(1)
        a.i("s_cmp_lg_u32 s62, 31")
        a.i(f"s_cbranch_scc1 {Lnl}")
        a.i(f"v_mov_b32 v247, {sN}")
        a.i(f"v_mov_b32 v246, {WS_X}")
        a.i("s_mov_b32 s62, 0")
        a.i("s_mov_b64 exec, 1")
        a.i(f"buffer_store_dword v247, v246, {SRD_WS}, s62 offen sc1")
        a.i("s_mov_b64 exec, -1")
        a.label(Lnl)
        a.i(f"s_lshl_b32 s62, {sRB}, 1")
        a.i("s_add_u32 s63, s62, s82")
        a.i("s_xor_b32 s64, s82, 1")
        a.i("s_add_u32 s64, s62, s64")
        a.i("s_mul_i32 s85, s63, 40960")
        a.i("s_mul_i32 s86, s64, 40960")
        a.i(f"s_add_u32 s85, s85, {WS_O}")
        a.i(f"s_add_u32 s86, s86, {WS_O}")
        a.i("s_mul_i32 s93, s93, 5120")
        a.i("s_mul_i32 s94, s94, 5120")
        ol = {}
        H = lambda e, s: 120 + 8 * e + 4 * s
        for e in range(10):
            grp = "s93" if e < 5 else "s94"
            a.i(f"s_add_u32 s62, s85, {grp}")
            t0 = a.vmem(f"buffer_load_dwordx4 v[{H(e,0)}:{H(e,0)+3}], {self.B_L16}, {SRD_WS}, s62 offen offset:{(e%5)*1024 if (e%5) < 4 else 0} sc1") if (e % 5) < 4 else None
            if t0 is None:
                a.i("s_add_u32 s62, s62, 4096")
                t0 = a.vmem(f"buffer_load_dwordx4 v[{H(e,0)}:{H(e,0)+3}], {self.B_L16}, {SRD_WS}, s62 offen sc1")
            a.i(f"s_add_u32 s63, s86, {grp}")
            if (e % 5) < 4:
                t1 = a.vmem(f"buffer_load_dwordx4 v[{H(e,1)}:{H(e,1)+3}], {self.B_L16}, {SRD_WS}, s63 offen offset:{(e%5)*1024} sc1")
            else:
                a.i("s_add_u32 s63, s63, 4096")
                t1 = a.vmem(f"buffer_load_dwordx4 v[{H(e,1)}:{H(e,1)+3}], {self.B_L16}, {SRD_WS}, s63 offen sc1")
            ol[e] = [t0, t1]
        Wb = lambda e: 96 + 12 * (e % 2)
        rt = {0: rt0}
        for e in range(10):
            a.wait(lg=rt[e], vm=ol[e])
            def f0(e=e):
                if e + 1 < 10:
                    a.wait(vm=dm[e + 1])
                    rt[e + 1] = self.w3_reads((e + 1) % 9, Wb(e + 1), 0)
            def f1(e=e):
                if e + 1 < 10: rt[e + 1] += self.w3_reads((e + 1) % 9, Wb(e + 1), 1)
            self.five_mfma(Wb(e), H(e, 0), H(e, 1), e == 0, [f0, f1])
        self.stamp(11)
        self.reduce80(96, 12)
        self.stamp(12)
        a.i("s_mov_b32 s62, 0xffff0000")
        for e in range(5):
            x0, x1 = 220 + 2 * e, 221 + 2 * e
            a.i(f"v_lshlrev_b32 v16, 16, v{x0}")
            a.i(f"v_and_b32 v17, s62, v{x0}")
            a.i(f"v_lshlrev_b32 v18, 16, v{x1}")
            a.i(f"v_and_b32 v19, s62, v{x1}")
            for j in range(4): a.i(f"v_fma_f32 v{16+j}, v{96+4*e+j}, v{200+4*e+j}, v{16+j}")
            a.i(f"v_cvt_pk_bf16_f32 v{20+2*e}, v16, v17")
            a.i(f"v_cvt_pk_bf16_f32 v{21+2*e}, v18, v19")
            a.vmem(f"buffer_store_dwordx2 v[{20+2*e}:{21+2*e}], {self.vXO}, {SRD_OUT}, s{88+e} offen")

    def role_b(self):
        a = self.a
        a.label("L_ROLE_B")
        Lf1 = a.newlabel("ffn1"); Lv = a.newlabel("vjob"); Lpf = a.newlabel("w1pf")
        a.i(f"s_and_b32 s62, {sCG}, 3")
        a.i("s_cmp_lg_u32 s62, 0")
        a.i(f"s_cbranch_scc1 {Lf1}")
        Lwait = a.newlabel("kvidle")
        a.i(f"s_cmp_ge_u32 {sWR}, 2")
        a.i(f"s_cbranch_scc1 {Lwait}")
        a.i("s_setprio 3")
        a.i(f"s_cmp_eq_u32 {sCG}, 4")
        a.i(f"s_cbranch_scc1 {Lv}")
        a.vm = []; a.lg = []
        self.kv_job(False)
        a.i(f"s_branch {Lwait}")
        a.label(Lv)
        a.vm = []; a.lg = []
        self.kv_job(True)
        a.label(Lwait)
        self.lds_spin_ge(C_KVD, 2, "v246", self.B_CR)
        a.label(Lpf)
        self.stamp(11, lvl=2)
        self.stamp(14)
        a.label(Lf1)
        a.i(f"s_setprio {self.o.get('prioF', 0)}")
        if self.o.get('noB'):
            a.i("s_waitcnt vmcnt(0)")
            a.i("s_branch L_END")
        a.vm = []; a.lg = []
        Lnop = a.newlabel("nopair"); Lhd = a.newlabel("hdone")
        a.i("s_cmp_eq_u32 s99, 0")
        a.i(f"s_cbranch_scc1 {Lnop}")
        if self.o.get('noF1'): a.i(f"s_branch {Lnop}")
        bs = self.o.get('bstart', 'none')
        if bs == 'ring': self.lds_spin_ge(C_GO, 4, "v246", self.B_CR)
        if bs == 'qiss': self.lds_spin_ge(C_QISS, 4, "v246", self.B_CR)
        self.w1tok = {ks: self.w1_dma(ks) for ks in range(NS1)}
        self.ffn1()
        a.i(f"s_branch {Lhd}")
        a.label(Lnop)
        a.i(f"s_setprio {self.o.get('prioB', 0)}")
        self.lds_count(C_XND, self.B_CW, self.B_ONE)
        a.label(Lhd)
        a.vm = []; a.lg = []
        self.h_publish()
        self.stamp(4)
        self.ffn2()
        self.stamp(8)
        if self.o.get('dump') == 'g':
            self.dump_regs(200, 20, 0, self.B_L16)
        self.out_proj()
        a.i("s_waitcnt vmcnt(0)") if self.o.get('prof') else None
        self.stamp(13)
        self.stamp_flush()
        if self.o.get('span'):
            a.i("s_waitcnt vmcnt(0)")
            a.i("s_memrealtime s[90:91]")
            a.i("s_waitcnt lgkmcnt(0)")
            a.i("s_not_b32 s62, s101")
            a.i("v_mov_b32 v1, 8")
            a.i("v_mov_b32 v2, s62")
            a.i("v_mov_b32 v3, s90")
            a.i("s_mov_b64 exec, 1")
            a.i(f"global_atomic_umax v1, v2, {sDBG} sc1")
            a.i(f"global_atomic_umax v1, v3, {sDBG} offset:4 sc1")
            a.i("s_mov_b64 exec, -1")
        a.i("s_branch L_END")

    def build(self):
        a = self.a
        self.prologue()
        self.role_setup()
        a.i("s_waitcnt lgkmcnt(0)")
        a.i(f"s_add_u32 {sN}, {sN}, 1")
        a.vm = []; a.lg = []
        self.stamp(1)
        self.layernorm()
        self.stamp(2)
        if self.o.get('dump') == 'xn':
            self.dump_lds_xn()
        a.i(f"s_cmp_ge_u32 {sW}, 4")
        a.i("s_cbranch_scc1 L_ROLE_B")
        self.role_a()
        self.role_b()
        a.label("L_END")
        a.i("s_endpgm")

    def dump_lds_xn(self):
        a = self.a
        a.i("v_lshlrev_b32 v72, 4, v0")
        a.i(f"s_mul_i32 s70, {sW}, 10240")
        a.i("v_add_u32 v73, s70, v72")
        a.i("s_mul_i32 s71, s2, 81920")
        a.i("s_add_u32 s71, s71, s70")
        a.i(f"s_add_u32 s71, s71, {WS_DBG}")
        for g in range(10):
            a.i(f"ds_read_b128 v[76:79], v73 offset:{g*1024}")
            a.i("s_waitcnt lgkmcnt(0)")
            a.i(f"s_add_u32 s70, s71, {g*1024}")
            a.i(f"buffer_store_dwordx4 v[76:79], v72, {SRD_WS}, s70 offen")
            a.i("s_waitcnt vmcnt(0)")

    def emit(self):
        self.build()
        body = self.a.text()
        hdr = f"""; Fused LayerNorm + MQA attention + ReLU FFN + gated residual, one persistent workgroup per CU.
; @launch grid=(256,1,1) block=(512,1,1) lds={LDS_TOTAL}
.amdgcn_target "amdgcn-amd-amdhsa--gfx950"
.text
.globl {NAME}_kernel
.p2align 8
.type {NAME}_kernel,@function
{NAME}_kernel:
"""
        ftr = f""".section .rodata,"a"
.p2align 6
.amdhsa_kernel {NAME}_kernel
  .amdhsa_next_free_vgpr 256
  .amdhsa_next_free_sgpr 102
  .amdhsa_accum_offset 256
  .amdhsa_group_segment_fixed_size 0
  .amdhsa_kernarg_size 88
  .amdhsa_user_sgpr_count 2
  .amdhsa_user_sgpr_kernarg_segment_ptr 1
  .amdhsa_system_sgpr_workgroup_id_x 1
  .amdhsa_float_denorm_mode_32 3
.end_amdhsa_kernel
"""
        return hdr + body + ftr

    def hazards(self):
        ins = [t for k, t in self.a.lines if k == 'i']
        probs = check_hazards(ins, "linear")
        body = [t for k, t in self.a.lines[self.loop_start:self.loop_end] if k == 'i']
        probs += check_hazards(body[-40:] + body[:40], "att-backedge")
        return probs

if __name__ == "__main__":
    opt = {}
    out = None
    for arg in sys.argv[1:]:
        if "=" in arg:
            k, v = arg.split("=", 1); opt[k] = int(v) if v.lstrip('-').isdigit() else v
        else: out = arg
    g = Gen(opt)
    txt = g.emit()
    pr = g.hazards()
    for p in pr: print("HAZARD:", p)
    open(out or "k.s", "w").write(txt)
    n = sum(1 for k, t in g.a.lines if k == 'i')
    print(f"wrote {out or 'k.s'}: {n} instructions, {len(pr)} hazards")
```

```python
import sys, struct
from asmlib import Asm, check_hazards

NAME = "recurrent_scan__grouped_kv_mqa__dense_activation_relu__prompt"

XN    = 0
BST   = 81920
BPRIV = 9216
NS1   = 4
WKI   = BST
AREG  = 118784
QST   = AREG
APRIV = 11136
NSQ   = 10
RSLOT = 11136
RSHARE = 2688
KVCH  = 12288
BREG  = 29696
CTRL  = 163328
LDS_TOTAL = 163840
VROW  = 352
VFR   = 2 * VROW
KV_KH = 4096
KV_V  = 5120
C_ARR, C_KVD, C_ABAR, C_QDONE, C_KVRDY, C_XND, C_HD, C_BBAR, C_OD, C_GO, C_HRDY, C_ORDY, C_KVS, C_QISS = [4 * i for i in range(14)]
CDUMMY = 128

WS_X    = 0
WS_FKV  = 0x1000
WS_FH   = 0x4000
WS_FO   = 0x6000
WS_KN   = 0x8000
WS_VN   = 0x8400
WS_KV   = 0x10000
WS_H    = 0x100000
WS_O    = 0x800000
WS_DBG  = 0xB00000
WS_PROF = 0x1300000
WS_END  = 0x1400000

QSCALE = 0.22360679774997896 * 1.4426950408889634

def f2u(x): return struct.unpack("<I", struct.pack("<f", x))[0]
def hx(x): return "0x%08x" % (x & 0xffffffff)

sW, sRB, sCG, sN, sWR = "s3", "s4", "s5", "s6", "s7"
SRD_X, SRD_WQ, SRD_WKV, SRD_WO, SRD_W1, SRD_W2, SRD_OUT, SRD_WS = [f"s[{8+4*i}:{11+4*i}]" for i in range(8)]
sDBG, sWSP = "s[58:59]", "s[60:61]"

SPIN_LDS = 400000
SPIN_GLB = 40000

class Gen:
    def __init__(self, opt):
        self.o = opt
        self.a = Asm()

    def vr(self, base, n): return f"v[{base}:{base+n-1}]"

    def lds_spin_ge(self, cnt_off, target, vtmp, vctlr, stmp="s62", sleep=1):
        a = self.a
        L = a.newlabel("spin"); Ld = a.newlabel("spind")
        a.i(f"s_mov_b32 {stmp}, 0")
        a.label(L)
        a.i(f"ds_read_b32 {vtmp}, {vctlr} offset:{cnt_off}")
        a.i("s_waitcnt lgkmcnt(0)")
        a.i(f"v_cmp_gt_u32 vcc, {target}, {vtmp}")
        a.i(f"s_cbranch_vccz {Ld}")
        a.i(f"s_add_u32 {stmp}, {stmp}, 1")
        a.i(f"s_cmp_lt_u32 {stmp}, {SPIN_LDS}")
        if sleep: a.i(f"s_sleep {sleep}")
        a.i(f"s_cbranch_scc1 {L}")
        a.label(Ld)
        a.lg = []

    def glb_poll(self, voff, soff, vtmp, stmp="s62", sleep=4):
        a = self.a
        L = a.newlabel("poll"); Ld = a.newlabel("polld")
        a.i(f"s_mov_b32 {stmp}, 0")
        a.label(L)
        a.i(f"buffer_load_dword {vtmp}, {voff}, {SRD_WS}, {soff} offen sc1")
        a.i("s_waitcnt vmcnt(0)")
        a.i(f"v_cmp_ne_u32 vcc, {sN}, {vtmp}")
        a.i(f"s_cbranch_vccz {Ld}")
        a.i(f"s_add_u32 {stmp}, {stmp}, 1")
        a.i(f"s_cmp_lt_u32 {stmp}, {SPIN_GLB}")
        a.i(f"s_sleep {sleep}")
        a.i(f"s_cbranch_scc1 {L}")
        a.label(Ld)
        a.vm = []

    def one_wave_poll(self, flag_base, rdy_off, pre=None, sleep=4):
        a = self.a
        Lw = a.newlabel("opw"); Lj = a.newlabel("opj")
        keep = list(a.vm)
        a.i(f"s_cmp_lg_u32 {sWR}, 0")
        a.i(f"s_cbranch_scc1 {Lw}")
        if pre: pre()
        a.i("v_and_b32 v246, 7, v0")
        a.i("v_lshlrev_b32 v246, 2, v246")
        a.i(f"s_lshl_b32 s63, {sRB}, 7")
        a.i(f"s_add_u32 s63, s63, {flag_base}")
        self.glb_poll("v246", "s63", "v247", sleep=sleep)
        a.i(f"ds_add_u32 {self.B_CW}, {self.B_ONE} offset:{rdy_off}")
        a.i(f"s_branch {Lj}")
        a.label(Lw)
        self.lds_spin_ge(rdy_off, 1, "v246", self.B_CR, sleep=2)
        a.label(Lj)
        a.i("s_waitcnt lgkmcnt(0)")
        a.vm = keep; a.lg = []

    def lds_count(self, cnt_off, vctlw, vone):
        return self.a.lds(f"ds_add_u32 {vctlw}, {vone} offset:{cnt_off}")

    def dump_regs(self, base, n, slot, vlane16, cond_wave=None):
        a = self.a
        a.i("s_lshl_b32 s70, s2, 3"); a.i(f"s_add_u32 s70, s70, {sW}")
        a.i("s_mul_i32 s70, s70, 0x4000")
        a.i(f"s_add_u32 s70, s70, {WS_DBG + 0x0}")
        for g in range(n // 4):
            a.i(f"s_add_u32 s71, s70, {(slot + g) * 1024}")
            a.i(f"buffer_store_dwordx4 v[{base+4*g}:{base+4*g+3}], {vlane16}, {SRD_WS}, s71 offen")
        a.i("s_waitcnt vmcnt(0)")
        a.vm = []

    def stamp(self, k, cyc=False, lvl=1):
        if self.o.get('prof') != lvl and not (k <= 2 and self.o.get('prof')): return
        a = self.a
        a.i("s_memtime s[56:57]" if cyc else "s_memrealtime s[56:57]")
        a.i("s_waitcnt lgkmcnt(0)")
        a.i(f"s_mov_b32 s{40+k}, s56")
        a.lg = []

    def stamp_flush(self):
        if not self.o.get('prof'): return
        a = self.a
        a.i("s_mov_b64 exec, 1")
        a.i("s_lshl_b32 s62, s2, 3")
        a.i(f"s_add_u32 s62, s62, {sW}")
        a.i("s_lshl_b32 s62, s62, 6")
        a.i(f"s_add_u32 s62, s62, {WS_PROF}")
        a.i("v_mov_b32 v1, 0")
        for g in range(4):
            for j in range(4): a.i(f"v_mov_b32 v{4+j}, s{40+4*g+j}")
            a.i(f"buffer_store_dwordx4 v[4:7], v1, {SRD_WS}, s62 offen offset:{16*g}")
            a.nop(2)
        a.i("s_mov_b64 exec, -1")

    def l2_prefetch(self, srd, total_bytes, ninstr, vtmp, vdst, sub_sgpr, nsub):
        a = self.a
        st = self.o.get('pfstride', 128)
        lines = total_bytes // st
        per_cu = -(-lines // 32); per_w = -(-per_cu // nsub); per_i = -(-per_w // ninstr)
        assert per_i <= 64, per_i
        a.i(f"s_lshr_b32 s62, {sRB}, 3")
        a.i(f"s_lshl_b32 s63, {sCG}, 2")
        a.i("s_add_u32 s62, s62, s63")
        a.i(f"s_mul_i32 s62, s62, {per_cu}")
        a.i(f"s_mul_i32 s63, {sub_sgpr}, {per_w}")
        a.i("s_add_u32 s62, s62, s63")
        a.i(f"v_min_u32 {vtmp}, {per_i - 1}, v0")
        a.i(f"v_add_u32 {vtmp}, s62, {vtmp}")
        a.i(f"v_mul_u32_u24 {vtmp}, {st}, {vtmp}")
        toks = []
        for i in range(ninstr):
            a.i(f"s_mov_b32 s63, {i * per_i * st}")
            toks.append(a.vmem(f"buffer_load_dword {vdst}, {vtmp}, {srd}, s63 offen"))
        return toks

    def prologue(self):
        a = self.a
        a.i("s_cmp_ge_u32 s2, 256")
        a.i("s_cbranch_scc1 L_END")
        if self.o.get('prof'): a.i("s_memrealtime s[94:95]")
        a.i("s_load_dwordx16 s[40:55], s[0:1], 0")
        a.i("s_load_dwordx4 s[56:59], s[0:1], 64")
        a.i("s_load_dwordx2 s[60:61], s[0:1], 80")
        a.i("v_lshrrev_b32 v1, 6, v0")
        a.i("v_and_b32 v0, 63, v0")
        a.i("s_and_b32 s62, s2, 1")
        a.i("s_lshl_b32 s62, s62, 2")
        a.i("s_lshr_b32 s63, s2, 6")
        a.i(f"s_add_u32 {sCG}, s62, s63")
        a.i(f"v_readfirstlane_b32 {sW}, v1")
        a.i("s_bfe_u32 s62, s2, 0x20001")
        a.i("s_lshl_b32 s62, s62, 3")
        a.i("s_bfe_u32 s63, s2, 0x30003")
        a.i(f"s_add_u32 {sRB}, s62, s63")
        a.i("v_lshrrev_b32 v2, 3, v0")
        a.i("v_and_b32 v3, 7, v0")
        a.i(f"s_and_b32 {sWR}, {sW}, 3")
        a.i(f"s_and_b32 s65, {sCG}, 1")
        a.i("s_lshl_b32 s65, s65, 2")
        a.i(f"s_xor_b32 s97, s65, {sW}")
        a.i("s_lshl_b32 s62, s97, 3")
        a.i(f"s_mul_i32 s98, {sRB}, 81920")
        a.i("v_add_u32 v4, s62, v2")
        a.i("v_mul_u32_u24 v4, 1280, v4")
        a.i("v_lshl_add_u32 v4, v3, 4, v4")
        a.i("s_waitcnt lgkmcnt(0)")
        def srd(base, lo, size):
            a.i(f"s_mov_b32 s{base}, s{lo}")
            a.i(f"s_mov_b32 s{base+1}, s{lo+1}")
            a.i(f"s_mov_b32 s{base+2}, {size}")
            a.i(f"s_mov_b32 s{base+3}, 0x20000")
        srd(8, 40, 2621440)
        Lx = a.newlabel("xa")
        a.i(f"s_cmp_ge_u32 {sW}, 4")
        a.i(f"s_cbranch_scc1 {Lx}")
        self.x_loads()
        a.label(Lx)
        a.i(f"s_load_dword {sN}, {sWSP}, {WS_X}")
        srd(12, 42, 819200)
        a.i(f"s_cmp_eq_u32 {sCG}, 4")
        a.i("s_cselect_b32 s16, s46, s44")
        a.i("s_cselect_b32 s17, s47, s45")
        a.i("s_mov_b32 s18, 25600")
        a.i("s_mov_b32 s19, 0x20000")
        srd(20, 48, 819200)
        srd(24, 52, 2211840)
        srd(28, 54, 2211840)
        srd(32, 56, 2621440)
        srd(36, 60, WS_END)
        for r in (200, 202, 230, 231, 253, 181, 215, 245, 220, 221, 222, 223, 224, 225, 226, 227, 228, 14, 15, 250): a.i(f"v_mov_b32 v{r}, 0")
        if self.o.get('prof'):
            for k in range(16): a.i(f"s_mov_b32 s{40+k}, 0")
            a.i("s_mov_b32 s55, s94")
        self.stamp(0)
        if self.o.get('span'):
            a.i("s_memrealtime s[90:91]")
            a.i("s_waitcnt lgkmcnt(0)")
            a.i("s_mov_b32 s101, s90")

    def layernorm(self):
        a = self.a
        a.i("v_lshrrev_b32 v5, 1, v3")
        a.i("v_lshlrev_b32 v5, 10, v5")
        a.i("v_and_b32 v6, 1, v3")
        a.i("v_lshlrev_b32 v6, 9, v6")
        a.i("v_xor_b32 v7, v2, v3")
        a.i("v_lshlrev_b32 v7, 4, v7")
        a.i("v_add3_u32 v5, v5, v6, v7")
        a.i("s_and_b32 s62, s97, 3")
        a.i("s_lshl_b32 s62, s62, 7")
        a.i("s_lshr_b32 s64, s97, 2")
        a.i("s_mul_i32 s64, s64, 40960")
        a.i("s_add_u32 s62, s62, s64")
        a.i("v_add_u32 v5, s62, v5")
        Lz = a.newlabel("nz")
        a.i(f"s_cmp_lg_u32 {sW}, 0")
        a.i(f"s_cbranch_scc1 {Lz}")
        a.i("v_lshlrev_b32 v6, 2, v0")
        a.i(f"v_add_u32 v6, {CTRL}, v6")
        a.i("v_mov_b32 v7, 0")
        a.i("ds_write_b32 v6, v7")
        a.label(Lz)
        a.i("s_mov_b32 s62, 0x3f803f80")
        a.i("s_mov_b32 s63, 0xffff0000")
        for k in range(4): a.i(f"v_mov_b32 v{64+k}, 0")
        a.nop(1)
        X = lambda j: f"v{16+j}"
        for j in range(40):
            a.i(f"v_dot2_f32_bf16 v{64+(j&1)}, {X(j)}, s62, v{64+(j&1)}")
            a.i(f"v_dot2_f32_bf16 v{66+(j&1)}, {X(j)}, {X(j)}, v{66+(j&1)}")
        a.nop(3)
        a.i("v_add_f32 v64, v64, v65")
        a.i("v_add_f32 v66, v66, v67")
        a.nop(1)
        for dpp in ("quad_perm:[1,0,3,2]", "quad_perm:[2,3,0,1]", "row_half_mirror"):
            a.i(f"v_add_f32_dpp v64, v64, v64 {dpp} row_mask:0xf bank_mask:0xf")
            a.i(f"v_add_f32_dpp v66, v66, v66 {dpp} row_mask:0xf bank_mask:0xf")
            a.nop(1)
        a.i(f"v_mul_f32 v64, {hx(f2u(1.0/640))}, v64")
        a.i(f"v_mul_f32 v66, {hx(f2u(1.0/640))}, v66")
        a.i("v_fma_f32 v66, -v64, v64, v66")
        a.i("v_max_f32 v66, 0, v66")
        a.i(f"v_add_f32 v66, {hx(f2u(1e-5))}, v66")
        a.i("v_rsq_f32 v68, v66")
        a.nop(1)
        a.i("v_mov_b32 v69, v68")
        a.i("v_mul_f32 v70, v64, v68")
        a.i("v_sub_f32 v70, 0, v70")
        a.i("v_mov_b32 v71, v70")
        self.stamp(3, lvl=2)
        self.role_prefetch()
        a.label("L_LN2")
        self.stamp(4, lvl=2)
        a.i("s_mov_b32 s63, 0xffff0000")
        for g in range(10):
            for d in range(4):
                j = 4 * g + d
                t = 56 + 2 * (j & 3)
                a.i(f"v_lshlrev_b32 v{t}, 16, {X(j)}")
                a.i(f"v_and_b32 v{t+1}, s63, {X(j)}")
            for d in range(4):
                j = 4 * g + d
                t = 56 + 2 * (j & 3)
                a.i(f"v_pk_fma_f32 v[{t}:{t+1}], v[{t}:{t+1}], v[68:69], v[70:71]")
            for d in range(4):
                j = 4 * g + d
                t = 56 + 2 * (j & 3)
                a.i(f"v_cvt_pk_bf16_f32 {X(j)}, v{t}, v{t+1}")
            a.i(f"ds_write_b128 v5, v[{16+4*g}:{19+4*g}] offset:{4096*g}")
        a.i("s_waitcnt lgkmcnt(0)")
        self.stamp(5, lvl=2)
        Lnw = a.newlabel("nw")
        a.i(f"s_cmp_lt_u32 {sW}, 4")
        a.i(f"s_cbranch_scc1 {Lnw}")
        a.i(f"s_and_b32 s62, {sCG}, 3")
        a.i("s_cmp_lg_u32 s62, 0")
        a.i(f"s_cbranch_scc1 {Lnw}")
        a.i("s_waitcnt vmcnt(0)")
        a.label(Lnw)
        a.i("s_barrier")
        a.lg = []

    def xn_addr(self, vA, vB, vt0, vt1, phase_sgpr=None, base_sgpr=None, swap_sgpr=None):
        a = self.a
        a.i(f"v_and_b32 {vt0}, 31, v0")
        a.i(f"v_lshrrev_b32 {vt1}, 5, v0")
        for q in range(4):
            r = f"v{vA+q}"
            if phase_sgpr is None:
                a.i(f"v_add_u32 {r}, {2*q}, {vt1}")
            else:
                a.i(f"s_add_u32 s62, {phase_sgpr}, {q}")
                a.i("s_and_b32 s62, s62, 3")
                a.i("s_lshl_b32 s62, s62, 1")
                a.i(f"v_add_u32 {r}, s62, {vt1}")
            a.i(f"v_xor_b32 {r}, {r}, {vt0}")
            a.i(f"v_lshlrev_b32 {r}, 4, {r}")
            a.i(f"v_lshl_add_u32 {r}, {vt1}, 9, {r}")
            if base_sgpr is not None:
                a.i(f"v_add_u32 {r}, {base_sgpr}, {r}")
            if vB is not None: a.i(f"v_add_u32 v{vB+q}, 40960, {r}")

    WRAPS = (8, 12, 16, 20, 28, 32, 36)
    def rot_setup(self, stride, sK, sRot):
        a = self.a
        a.i(f"s_and_b32 s62, {sRB}, 7")
        a.i("s_lshr_b32 s63, s62, 2")
        a.i("s_add_u32 s62, s62, s63")
        a.i(f"s_lshl_b32 {sRot}, s62, 2")
        if not self.o.get('rot', 1): a.i(f"s_mov_b32 {sRot}, 0")
        a.i(f"s_mul_i32 {sK}, {sRot}, {stride}")
    def rot_next(self, stride, sK, ks=None):
        a = self.a
        a.i(f"s_add_u32 {sK}, {sK}, {stride}")
        if ks is None or (ks + 1) in self.WRAPS:
            a.i(f"s_cmp_eq_u32 {sK}, {40*stride}")
            a.i(f"s_cselect_b32 {sK}, 0, {sK}")
    def rot_xn_base(self, vA, vB, sRot):
        a = self.a
        a.i(f"s_lshl_b32 s62, {sRot}, 10")
        for q in range(4):
            a.i(f"v_add_u32 v{vA+q}, s62, v{vA+q}")
            a.i(f"v_add_u32 v{vB+q}, s62, v{vB+q}")
    def rot_xn_seg(self, vA, vB, sRot, ks):
        a = self.a
        if ks not in self.WRAPS: return
        L = a.newlabel("wrap")
        a.i(f"s_cmp_eq_u32 {sRot}, {40 - ks}")
        a.i(f"s_cbranch_scc0 {L}")
        for q in range(4):
            a.i(f"v_subrev_u32 v{vA+q}, 40960, v{vA+q}")
            a.i(f"v_subrev_u32 v{vB+q}, 40960, v{vB+q}")
        a.label(L)
    def seg_imm(self, ks):
        return ks * 1024

    def ctl_regs(self, vW, vR, vOne):
        a = self.a
        a.i(f"v_lshlrev_b32 {vW}, 2, v0")
        a.i(f"v_add_u32 {vW}, {CTRL + CDUMMY}, {vW}")
        a.i(f"v_mov_b32 {vR}, {CTRL}")
        a.i("v_cmp_eq_u32 vcc, 0, v0")
        a.i(f"v_mov_b32 {vOne}, 1")
        a.nop(1)
        a.i(f"v_cndmask_b32 {vW}, {vW}, {vR}, vcc")

    vDq, vTRq, vTRk = "v200", "v201", "v202"
    A_XA, A_XB = 204, 208
    A_CW, A_CR, A_ONE, A_L16 = "v212", "v213", "v214", "v215"
    A_JA, A_JB = 220, 224

    def wq_dma(self, ks):
        a = self.a
        a.i(f"s_add_u32 m0, s66, {(ks % NSQ) * 1024}")
        a.nop(1)
        t = a.vmem(f"buffer_load_dwordx4 {self.vDq}, {SRD_WQ}, s67 offen lds")
        self.rot_next(20480, "s67", ks)
        return t

    def a_setup_private(self):
        a = self.a
        a.i(f"s_mul_i32 s66, {sWR}, {APRIV}")
        a.i(f"s_add_u32 s66, s66, {QST}")

    def a_prefetch_q_addr(self):
        a = self.a
        a.i("v_lshrrev_b32 v216, 2, v0")
        a.i("v_mul_u32_u24 v216, 1280, v216")
        a.i("v_and_b32 v217, 3, v0")
        a.i("v_cmp_eq_u32 vcc, 3, v217")
        a.i(f"v_lshl_add_u32 {self.vDq}, v217, 4, v216")
        a.i("v_mov_b32 v217, 0x40000000")
        a.i(f"v_cndmask_b32 {self.vDq}, {self.vDq}, v217, vcc")
        a.i(f"s_lshl_b32 s62, {sCG}, 2")
        a.i(f"s_add_u32 s62, s62, {sWR}")
        a.i("s_mul_i32 s62, s62, 40")
        a.i(f"s_cmp_eq_u32 {sWR}, 3")
        a.i("s_cselect_b32 s63, 8, 0")
        a.i("s_sub_u32 s62, s62, s63")
        a.i(f"v_add_u32 {self.vDq}, s62, {self.vDq}")

    def x_loads(self):
        a = self.a
        for i in range(10):
            a.i(f"buffer_load_dwordx4 v[{16+4*i}:{19+4*i}], v4, {SRD_X}, s98 offen offset:{128*i}")

    def role_setup(self):
        a = self.a
        a.i(f"s_cmp_ge_u32 {sW}, 4")
        a.i("s_cbranch_scc1 L_SET_B")
        self.a_setup_private()
        self.a_prefetch_q_addr()
        self.rot_setup(20480, "s67", "s69")
        self.ctl_regs(self.A_CW, self.A_CR, self.A_ONE)
        a.i(f"v_lshlrev_b32 {self.A_L16}, 4, v0")
        self.xn_addr(self.A_XA, self.A_XB, "v216", "v217")
        self.rot_xn_base(self.A_XA, self.A_XB, "s69")
        a.i(f"s_cmp_eq_u32 {sWR}, 3")
        a.i("s_cselect_b32 s63, 8, 0")
        a.i("s_add_u32 s63, s63, s66")
        self.tr_addr_nat64(self.vTRq, "s63", 64)
        self.ring_addr()
        a.i(f"s_and_b32 s62, {sRB}, 7")
        a.i("s_mul_i32 s62, s62, 240")
        a.i(f"s_mul_i32 s63, {sWR}, 60")
        a.i("s_add_u32 s62, s62, s63")
        a.i("v_min_u32 v216, 59, v0")
        a.i("v_add_u32 v216, s62, v216")
        a.i("v_mul_u32_u24 v217, 0x5556, v216")
        a.i("v_lshrrev_b32 v217, 16, v217")
        a.i("v_mul_u32_u24 v218, 3, v217")
        a.i("v_sub_u32 v216, v216, v218")
        a.i("v_mul_u32_u24 v217, 1280, v217")
        a.i("v_lshl_add_u32 v202, v216, 7, v217")
        a.i(f"s_mul_i32 s62, {sCG}, 160")
        a.i("s_and_b32 s100, s62, 0xffffff80")
        a.i("s_branch L_SET_J")
        a.label("L_SET_B")
        a.i(f"s_mul_i32 s66, {sWR}, {BPRIV}")
        a.i(f"s_add_u32 s66, s66, {BST}")
        a.i(f"s_lshr_b32 s62, {sCG}, 2")
        a.i(f"s_sub_u32 s63, {sCG}, s62")
        a.i("s_sub_u32 s63, s63, 1")
        a.i("s_lshl_b32 s63, s63, 2")
        a.i(f"s_add_u32 s68, s63, {sWR}")
        a.i("s_mov_b32 s99, 1")
        a.i(f"s_and_b32 s63, {sCG}, 3")
        a.i("s_cmp_lg_u32 s63, 0")
        Lp = a.newlabel("pair")
        a.i(f"s_cbranch_scc1 {Lp}")
        a.i("s_lshl_b32 s62, s62, 1")
        a.i(f"s_add_u32 s68, s62, {sWR}")
        a.i("s_add_u32 s68, s68, 22")
        a.i(f"s_cmp_ge_u32 {sWR}, 2")
        a.i("s_cselect_b32 s99, 1, 0")
        a.i("s_cmp_ge_u32 s68, 27")
        a.i("s_cselect_b32 s99, 0, s99")
        a.i("s_cselect_b32 s68, 0, s68")
        a.label(Lp)
        a.i("s_lshl_b32 s68, s68, 1")
        a.i("s_lshl_b32 s62, s68, 6")
        self.pair_dma_addr(self.vD1a, self.vD1b, 3456, "s62")
        self.ctl_regs(self.B_CW, self.B_CR, self.B_ONE)
        a.i(f"v_lshlrev_b32 {self.B_L16}, 4, v0")
        self.rot_setup(16 * 3456, "s67", "s69")
        self.xn_addr(self.B_XA, self.B_XB, "v246", "v247")
        self.rot_xn_base(self.B_XA, self.B_XB, "s69")
        self.pair_tr_addr(self.vTRa, self.vTRb, 8, "s66")
        self.out_tiles_setup()
        self.out_mixed_addr()
        self.ffn2_addr()
        a.i(f"s_and_b32 s64, {sRB}, 7")
        a.i("s_mul_i32 s62, s64, 80")
        a.i("v_min_u32 v246, 39, v0")
        a.i("v_add_u32 v246, s62, v246")
        a.i("v_mul_u32_u24 v246, 3456, v246")
        a.i("s_lshl_b32 s62, s68, 6")
        a.i("v_add_u32 v226, s62, v246")
        a.i("s_mul_i32 s62, s64, 54")
        a.i(f"s_mul_i32 s63, {sWR}, 432")
        a.i("s_add_u32 s62, s62, s63")
        a.i("v_min_u32 v246, 53, v0")
        a.i("v_add_u32 v246, s62, v246")
        a.i("v_mul_u32_u24 v227, 1280, v246")
        a.i("s_mul_i32 s62, s64, 20")
        a.i(f"s_mul_i32 s63, {sWR}, 160")
        a.i("s_add_u32 s62, s62, s63")
        a.i("v_min_u32 v246, 39, v0")
        a.i("v_cmp_gt_u32 vcc, 20, v246")
        a.i("v_subrev_u32 v247, 20, v246")
        a.i("v_mov_b32 v248, s81")
        a.i("v_mov_b32 v249, s80")
        a.i("v_cndmask_b32 v246, v247, v246, vcc")
        a.i("v_cndmask_b32 v248, v248, v249, vcc")
        a.i("v_add_u32 v246, s62, v246")
        a.i("v_mul_u32_u24 v246, 1280, v246")
        a.i("v_add_u32 v228, v246, v248")
        a.i(f"s_mov_b32 s62, {WKI}")
        self.tr_addr_nat64(self.B_TRK, "s62", 40, "v246", "v247")
        a.i(f"s_and_b32 s64, {sWR}, 1")
        a.i("s_mul_i32 s64, s64, 40960")
        self.xn_addr(self.B_JA, None, "v246", "v247", base_sgpr="s64")
        a.i("v_lshlrev_b32 v253, 4, v0")
        a.i(f"s_mul_i32 s62, {sWR}, 6400")
        a.i("v_add_u32 v253, s62, v253")
        self.x_loads()
        a.i(f"s_and_b32 s64, {sCG}, 3")
        a.i("s_cmp_lg_u32 s64, 0")
        a.i("s_cbranch_scc1 L_SET_J")
        a.i(f"s_add_u32 s63, s62, {WKI}")
        a.i("s_mov_b32 m0, s63")
        a.i("s_mov_b32 s62, 0")
        for j in range(4):
            a.i(f"buffer_load_dwordx4 v253, {SRD_WKV}, s62 offen offset:{1024*j} lds")
        a.i("s_add_u32 m0, s63, 4096")
        a.i("s_mov_b32 s62, 4096")
        for j in range(3):
            a.i(f"buffer_load_dwordx4 v253, {SRD_WKV}, s62 offen offset:{1024*j} lds")
        a.i("s_waitcnt vmcnt(7)")
        a.i("s_branch L_SET_X")
        a.label("L_SET_J")
        a.i("s_waitcnt vmcnt(0)")
        a.label("L_SET_X")

    def role_prefetch(self):
        a = self.a
        Lb = a.newlabel("pfb")
        a.i(f"s_cmp_ge_u32 {sW}, 4")
        a.i(f"s_cbranch_scc1 {Lb}")
        a.vm = []
        self.qtok = [self.wq_dma(ks) for ks in range(NSQ)]
        a.i("s_branch L_LN2")
        a.label(Lb)

    def tr_addr_nat64(self, vdst, base_sgpr, pitch, t0="v216", t1="v217"):
        a = self.a
        a.i(f"v_lshrrev_b32 {t0}, 5, v0")
        a.i(f"v_lshlrev_b32 {t0}, 3, {t0}")
        a.i(f"v_bfe_u32 {t1}, v0, 2, 2")
        a.i(f"v_add_u32 {t0}, {t0}, {t1}")
        a.i(f"v_mul_u32_u24 {t0}, {pitch}, {t0}")
        a.i(f"v_bfe_u32 {t1}, v0, 4, 1")
        a.i(f"v_lshl_add_u32 {t0}, {t1}, 5, {t0}")
        a.i(f"v_and_b32 {t1}, 3, v0")
        a.i(f"v_lshl_add_u32 {t0}, {t1}, 3, {t0}")
        a.i(f"v_add_u32 {vdst}, {base_sgpr}, {t0}")

    def wave_max(self, regs):
        a = self.a
        for dpp in ("row_shr:1 row_mask:0xf", "row_shr:2 row_mask:0xf", "row_shr:4 row_mask:0xf", "row_shr:8 row_mask:0xf",
                    "row_bcast:15 row_mask:0xa", "row_bcast:31 row_mask:0xc"):
            a.nop(2 if len(regs) == 1 else (1 if len(regs) == 2 else 0))
            for r in regs:
                a.i(f"v_max_f32_dpp {r}, {r}, {r} {dpp} bank_mask:0xf")
        a.nop(1)

    def kv_job(self, isV):
        a = self.a
        a.c("---- K/V projection job: B waves 0/1 = m-tile, full K ----")
        D = 16
        def fr(kk): return 48 + 8 * (kk % 4)
        toks = {}
        def reads(kk):
            b = fr(kk); t = []
            t.append(a.lds(f"ds_read_b64_tr_b16 v[{b}:{b+1}], {self.B_TRK} offset:{kk*640}"))
            t.append(a.lds(f"ds_read_b64_tr_b16 v[{b+2}:{b+3}], {self.B_TRK} offset:{kk*640+160}"))
            t.append(a.lds(f"ds_read_b128 v[{b+4}:{b+7}], v{self.B_JA + kk % 4} offset:{kk*1024}"))
            toks[kk] = t
        for kk in range(3): reads(kk)
        for kk in range(40):
            a.wait(lg=toks[kk])
            b = fr(kk)
            W = f"v[{b}:{b+3}]"; X = f"v[{b+4}:{b+7}]"
            C = "0" if kk == 0 else f"v[{D}:{D+15}]"
            if isV: a.i(f"v_mfma_f32_32x32x16_bf16 v[{D}:{D+15}], {X}, {W}, {C}")
            else:   a.i(f"v_mfma_f32_32x32x16_bf16 v[{D}:{D+15}], {W}, {X}, {C}")
            if kk + 3 < 40: reads(kk + 3)
        self.stamp(7, lvl=2)
        a.i(f"s_lshr_b32 s62, {sRB}, 1")
        a.i(f"s_mul_i32 s62, s62, {KVCH}")
        a.i(f"s_add_u32 s62, s62, {WS_KV}")
        a.i(f"s_and_b32 s63, {sRB}, 1")
        a.i("s_lshl_b32 s65, s63, 1")
        a.i(f"s_add_u32 s65, s65, {sWR}")
        a.i("v_and_b32 v93, 31, v0")
        a.i("v_lshrrev_b32 v95, 5, v0")
        if not isV:
            a.i("s_lshl_b32 s64, s65, 10")
            a.i("s_add_u32 s64, s62, s64")
            a.i("s_lshl_b32 s63, s63, 9")
            a.i("s_add_u32 s62, s62, s63")
            a.i(f"s_lshl_b32 s63, {sWR}, 3")
            a.i("s_add_u32 s62, s62, s63")
            a.i(f"s_add_u32 s62, s62, {KV_KH}")
            a.i("v_cmp_gt_u32 vcc, 32, v0")
            a.nop(2)
            for j in range(6): a.i(f"v_cvt_pk_bf16_f32 v{88+j if j < 4 else 96+j-4}, v{D+2*j}, v{D+2*j+1}")
            a.vmem(f"buffer_store_dwordx4 v[88:91], {self.B_L16}, {SRD_WS}, s64 offen sc1")
            a.i("s_mov_b32 exec_lo, -1"); a.i("s_mov_b32 exec_hi, 0")
            a.vmem(f"buffer_store_dwordx2 v[96:97], {self.B_L16}, {SRD_WS}, s62 offen sc1")
            a.i("s_mov_b64 exec, -1")
            a.i(f"v_mul_f32 v92, v{D+8}, v{D+8}")
            for j in range(9, 12): a.i(f"v_fmac_f32 v92, v{D+j}, v{D+j}")
            a.nop(1)
            a.i("v_cndmask_b32 v92, 0, v92, vcc")
            for j in range(8): a.i(f"v_fmac_f32 v92, v{D+j}, v{D+j}")
            a.i("v_mov_b32 v93, v92")
            a.nop(2)
            a.i("v_permlane32_swap_b32 v92, v93")
            a.nop(1)
            a.i("v_add_f32 v92, v92, v93")
            norm_base = WS_KN
        else:
            a.i(f"v_mul_u32_u24 v95, {VROW}, v95")
            a.i("v_lshl_add_u32 v95, v93, 4, v95")
            a.i("s_lshl_b32 s65, s65, 1")
            a.i(f"s_mul_i32 s65, s65, {VFR}")
            a.i("s_add_u32 s62, s62, s65")
            a.i(f"s_add_u32 s62, s62, {KV_V}")
            a.i("v_cmp_eq_u32 vcc, 20, v93")
            a.i("v_cmp_eq_u32 s[64:65], 21, v93")
            a.i("v_mov_b32 v94, 0x3f803f80")
            a.i("v_mov_b32 v98, 0")
            for j in range(8): a.i(f"v_cvt_pk_bf16_f32 v{80+j}, v{D+2*j}, v{D+2*j+1}")
            for j in range(8): a.i(f"v_cndmask_b32 v{80+j}, v{80+j}, v94, vcc")
            for j in range(8): a.i(f"v_cndmask_b32 v{80+j}, v{80+j}, v98, s[64:65]")
            a.i("s_mov_b32 exec_lo, 0x3fffff")
            a.i("s_mov_b32 exec_hi, 0x3fffff")
            a.vmem(f"buffer_store_dwordx4 v[80:83], v95, {SRD_WS}, s62 offen sc1")
            a.vmem(f"buffer_store_dwordx4 v[84:87], v95, {SRD_WS}, s62 offen offset:{VFR} sc1")
            a.i("s_mov_b64 exec, -1")
            a.i(f"v_max3_f32 v92, abs(v{D}), abs(v{D+1}), abs(v{D+2})")
            for j in range(3, 15, 2): a.i(f"v_max3_f32 v92, v92, abs(v{D+j}), abs(v{D+j+1})")
            a.i(f"v_max3_f32 v92, v92, abs(v{D+15}), abs(v{D+15})")
            a.i("v_cmp_gt_u32 vcc, 20, v93")
            a.nop(2)
            a.i("v_cndmask_b32 v92, 0, v92, vcc")
            norm_base = WS_VN
        self.stamp(9, lvl=2)
        self.wave_max(["v92"])
        a.i("v_readlane_b32 s63, v92, 63")
        a.i(f"s_lshl_b32 s62, {sRB}, 1")
        a.i(f"s_add_u32 s62, s62, {sWR}")
        a.i("s_lshl_b32 s62, s62, 2")
        a.i(f"s_add_u32 s62, s62, {norm_base}")
        a.i("v_mov_b32 v92, s63")
        a.i("v_mov_b32 v93, 0")
        a.i("s_mov_b64 exec, 1")
        a.vmem(f"buffer_store_dword v92, v93, {SRD_WS}, s62 offen sc1")
        a.i("s_mov_b64 exec, -1")
        a.wait(vm='all')
        self.stamp(10, lvl=2)
        a.lds(f"ds_add_rtn_u32 v248, {self.B_CW}, {self.B_ONE} offset:{C_KVD}")
        a.wait(lg='all')
        a.i("v_readfirstlane_b32 s62, v248")
        Lnf = a.newlabel("kvnf")
        a.nop(1)
        a.i("s_cmp_lg_u32 s62, 1")
        a.i(f"s_cbranch_scc1 {Lnf}")
        a.i("v_lshlrev_b32 v92, 8, v0")
        a.i(f"v_mov_b32 v93, {sN}")
        a.i(f"s_lshl_b32 s62, {sRB}, 1")
        a.i(f"s_add_u32 s62, s62, {1 if isV else 0}")
        a.i("s_lshl_b32 s62, s62, 2")
        a.i(f"s_add_u32 s62, s62, {WS_FKV}")
        a.i("s_mov_b32 exec_lo, -1"); a.i("s_mov_b32 exec_hi, 0")
        a.i(f"buffer_store_dword v93, v92, {SRD_WS}, s62 offen sc1")
        a.i("s_mov_b64 exec, -1")
        a.label(Lnf)
        a.vm = []

    def q_proj(self):
        a = self.a
        a.c("---- Q projection (transposed): wave = head, both m-tiles ----")
        NS = NSQ
        dt = self.qtok
        if self.o.get('kvgate', 0):
            Lgo = a.newlabel("qgo")
            a.i(f"s_and_b32 s62, {sCG}, 3")
            a.i("s_cmp_lg_u32 s62, 0")
            a.i(f"s_cbranch_scc1 {Lgo}")
            self.lds_spin_ge(C_KVD, 2, "v218", self.A_CR, sleep=1)
            a.label(Lgo)
        a.vm = list(dt); a.lg = []
        B = lambda ks: 48 + 12 * (ks % 3)
        dm = {k: dt[k] for k in range(NS)}
        toks = {}
        def reads(ks):
            a.wait(vm=dm[ks])
            b = B(ks); sl = (ks % NS) * 1024; t = []
            t.append(a.lds(f"ds_read_b64_tr_b16 v[{b}:{b+1}], {self.vTRq} offset:{sl}"))
            t.append(a.lds(f"ds_read_b64_tr_b16 v[{b+2}:{b+3}], {self.vTRq} offset:{sl+256}"))
            self.rot_xn_seg(self.A_XA, self.A_XB, "s69", ks)
            t.append(a.lds(f"ds_read_b128 v[{b+4}:{b+7}], v{self.A_XA + ks % 4} offset:{self.seg_imm(ks)}"))
            t.append(a.lds(f"ds_read_b128 v[{b+8}:{b+11}], v{self.A_XB + ks % 4} offset:{self.seg_imm(ks)}"))
            toks[ks] = t
        reads(0); reads(1)
        for ks in range(40):
            if ks in (0, 10, 20, 30): self.stamp(6 + ks // 10, lvl=2)
            a.wait(lg=toks[ks])
            b = B(ks)
            C = "0" if ks == 0 else "v[16:31]"
            a.i(f"v_mfma_f32_32x32x16_bf16 v[16:31], v[{b}:{b+3}], v[{b+4}:{b+7}], {C}")
            if ks + 2 < 40: reads(ks + 2)
            C = "0" if ks == 0 else "v[32:47]"
            a.i(f"v_mfma_f32_32x32x16_bf16 v[32:47], v[{b}:{b+3}], v[{b+8}:{b+11}], {C}")
            if ks + NS < 40: dm[ks + NS] = self.wq_dma(ks + NS)
            if ks == self.o.get('kvearly', -1):
                a.i("v_lshlrev_b32 v216, 2, v0")
                a.i(f"s_lshl_b32 s63, {sRB}, 8")
                a.i(f"s_add_u32 s101, s63, {WS_FKV}")
                self.kvtok = a.vmem(f"buffer_load_dword v188, v216, {SRD_WS}, s101 offen sc1")
            if ks + NS == 39: self.lds_count(C_QISS, self.A_CW, self.A_ONE)
        self.lds_count(C_XND, self.A_CW, self.A_ONE)
        self.lds_count(C_QDONE, self.A_CW, self.A_ONE)

    S_ = {'a': 16, 'b': 32}; O_ = {'a': 48, 'b': 64}; P_ = {'a': 80, 'b': 88}; C_ = {'a': 96, 'b': 112}
    QL = {'a': 128, 'b': 132}; QH = {'a': 136, 'b': 138}
    KL = [140, 144]; KH = [148, 152]; VV = [156, 164]
    vKL, vKH, vV, vCnt, vDkv = "v172", "v173", "v174", "v180", "v181"
    N2 = {'a': "v182", 'b': "v183"}

    def q_epilogue(self):
        a = self.a
        a.c("---- Q epilogue: scale, pack to bf16 B operands, squared norms ----")
        a.i("v_cmp_gt_u32 vcc, 32, v0")
        a.i(f"v_mov_b32 v216, {hx(f2u(QSCALE))}")
        a.i("v_mov_b32 v217, 0")
        a.nop(7)
        a.i("v_cndmask_b32 v217, v217, v216, vcc")
        for u, D in (('a', 16), ('b', 32)):
            for j in range(8): a.i(f"v_mul_f32 v{D+j}, v216, v{D+j}")
            for j in range(8, 12): a.i(f"v_mul_f32 v{D+j}, v217, v{D+j}")
            for j in range(4): a.i(f"v_cvt_pk_bf16_f32 v{self.QL[u]+j}, v{D+2*j}, v{D+2*j+1}")
            for j in range(2): a.i(f"v_cvt_pk_bf16_f32 v{self.QH[u]+j}, v{D+8+2*j}, v{D+9+2*j}")
            n = self.N2[u]
            a.i(f"v_mul_f32 {n}, v{D}, v{D}")
            for j in range(1, 12): a.i(f"v_fmac_f32 {n}, v{D+j}, v{D+j}")
        for u in "ab":
            a.i(f"v_mov_b32 v{218 if u=='a' else 219}, {self.N2[u]}")
        a.nop(1)
        a.i(f"v_permlane32_swap_b32 {self.N2['a']}, v218")
        a.i(f"v_permlane32_swap_b32 {self.N2['b']}, v219")
        a.nop(1)
        a.i(f"v_add_f32 {self.N2['a']}, {self.N2['a']}, v218")
        a.i(f"v_add_f32 {self.N2['b']}, {self.N2['b']}, v219")

    def qk(self, u, kl, kh, dst=None):
        S = self.S_[u] if dst is None else dst
        C = self.C_[u]
        m0 = f"v_mfma_f32_32x32x16_bf16 v[{S}:{S+15}], v[{kl}:{kl+3}], v[{self.QL[u]}:{self.QL[u]+3}], v[{C}:{C+15}]"
        m1 = f"v_mfma_f32_32x32x8_bf16 v[{S}:{S+15}], v[{kh}:{kh+1}], v[{self.QH[u]}:{self.QH[u]+1}], v[{S}:{S+15}]"
        return m0, m1
    def pv(self, u, vv):
        O = self.O_[u]; P = self.P_[u]
        m0 = f"v_mfma_f32_32x32x16_bf16 v[{O}:{O+15}], v[{vv}:{vv+3}], v[{P}:{P+3}], v[{O}:{O+15}]"
        m1 = f"v_mfma_f32_32x32x16_bf16 v[{O}:{O+15}], v[{vv+4}:{vv+7}], v[{P+4}:{P+7}], v[{O}:{O+15}]"
        return m0, m1

    def ring_addr(self):
        a = self.a
        a.i(f"v_add_u32 {self.vKL}, {AREG}, {self.A_L16}")
        a.i("v_and_b32 v216, 31, v0")
        a.i(f"v_lshlrev_b32 {self.vKH}, 4, v216")
        a.i(f"v_add_u32 {self.vKH}, {AREG + KV_KH}, {self.vKH}")
        a.i("v_min_u32 v217, 21, v216")
        a.i("v_cmp_eq_u32 vcc, 24, v216")
        a.i("v_lshrrev_b32 v219, 5, v0")
        a.i(f"v_mul_u32_u24 v219, {VROW}, v219")
        a.i("v_mov_b32 v218, 20")
        a.i("v_cndmask_b32 v217, v217, v218, vcc")
        a.i("v_lshl_add_u32 v217, v217, 4, v219")
        a.i(f"v_add_u32 {self.vV}, {AREG + KV_V}, v217")
        a.i(f"s_mul_i32 s62, {sWR}, {RSHARE}")
        a.i(f"v_add_u32 {self.vDkv}, s62, {self.A_L16}")
        a.i(f"s_add_u32 s72, s62, {AREG}")
        a.i("s_bfe_u32 s62, s2, 0x40003")
        if not self.o.get('rot', 1): a.i("s_mov_b32 s62, 0")
        a.i(f"s_mul_i32 s79, s62, {KVCH}")
        a.i(f"s_add_u32 s79, s79, {WS_KV}")

    def ring_dma(self, slot):
        a = self.a
        a.i(f"s_add_u32 m0, s72, {slot*RSLOT}")
        a.i(f"s_add_u32 s73, s79, {KVCH}")
        t = [a.vmem(f"buffer_load_dwordx4 {self.vDkv}, {SRD_WS}, s79 offen offset:{1024*j} sc1 lds") for j in range(3)]
        a.i(f"s_cmp_eq_u32 s73, {WS_KV + 16*KVCH}")
        a.i(f"s_cselect_b32 s79, {WS_KV}, s73")
        return t

    def att_init_regs(self):
        a = self.a
        for r in list(range(48, 80)) + list(range(88, 96)) + list(range(self.VV[1], self.VV[1] + 8)):
            a.i(f"v_mov_b32 v{r}, 0")

    def kv_wait(self):
        a = self.a
        a.c("---- wait for K/V of all row blocks ----")
        Lw = a.newlabel("kvw"); Lj = a.newlabel("kvj")
        if self.o.get('kvearly', -1) >= 0:
            a.vm = [self.kvtok]
            a.wait(vm=self.kvtok)
            a.i(f"v_cmp_ne_u32 vcc, {sN}, v188")
            Lslow = a.newlabel("kvslow")
            a.i(f"s_cbranch_vccnz {Lslow}")
            a.i(f"s_cmp_lg_u32 {sWR}, 0")
            a.i(f"s_cbranch_scc1 {Lj}")
            a.i(f"ds_add_u32 {self.A_CW}, {self.A_ONE} offset:{C_KVRDY}")
            a.i(f"s_branch {Lj}")
            a.label(Lslow)
        a.i(f"s_cmp_lg_u32 {sWR}, 0")
        a.i(f"s_cbranch_scc1 {Lw}")
        a.i("v_lshlrev_b32 v216, 2, v0")
        a.i(f"s_lshl_b32 s63, {sRB}, 8")
        a.i(f"s_add_u32 s63, s63, {WS_FKV}")
        self.glb_poll("v216", "s63", "v217", sleep=2)
        a.i(f"ds_add_u32 {self.A_CW}, {self.A_ONE} offset:{C_KVRDY}")
        a.i(f"s_branch {Lj}")
        a.label(Lw)
        self.lds_spin_ge(C_KVRDY, 1, "v218", self.A_CR, sleep=0)
        a.label(Lj)
        a.lg = []; a.vm = []
        a.i("s_waitcnt lgkmcnt(0)")

    def shift_setup(self):
        a = self.a
        a.c("---- softmax shift ----")
        a.i("v_lshlrev_b32 v216, 2, v0")
        a.i(f"s_mov_b32 s62, {WS_KN}")
        t1 = a.vmem(f"buffer_load_dword v184, v216, {SRD_WS}, s62 offen sc1")
        a.i(f"s_mov_b32 s63, {WS_VN}")
        t2 = a.vmem(f"buffer_load_dword v186, v216, {SRD_WS}, s63 offen sc1")
        self.lds_spin_ge(C_QDONE, 4, "v218", self.A_CR, sleep=0)
        pre = [self.ring_dma(c) for c in range(3)]
        self.lds_count(C_GO, self.A_CW, self.A_ONE)
        a.wait(vm=[t1, t2])
        self.wave_max(["v184", "v186"])
        a.i("v_readlane_b32 s62, v184, 63")
        a.i("v_readlane_b32 s64, v186, 63")
        a.nop(1)
        a.i("v_mov_b32 v184, s62")
        a.i("v_mov_b32 v186, s64")
        a.i("v_max_f32 v186, 1.0, v186")
        a.i("v_log_f32 v186, v186")
        a.i(f"v_mov_b32 v185, {hx(f2u(56.5))}")
        for u in "ab":
            n = self.N2[u]
            a.i(f"v_mul_f32 {n}, {n}, v184")
        a.i("v_fma_f32 v186, v186, -0.5, v185")
        for u in "ab": a.i(f"v_sqrt_f32 {self.N2[u]}, {self.N2[u]}")
        a.nop(1)
        for u in "ab": a.i(f"v_mul_f32 {self.N2[u]}, {hx(f2u(1.02))}, {self.N2[u]}")
        a.i(f"v_cmp_nle_f32 vcc, {self.N2['a']}, v186")
        a.i(f"v_cmp_nle_f32 s[64:65], {self.N2['b']}, v186")
        a.nop(1)
        a.i("s_or_b64 vcc, vcc, s[64:65]")
        if self.o.get('force_fallback'): a.i("s_mov_b64 vcc, -1")
        Lsafe = a.newlabel("safe")
        a.i(f"s_cbranch_vccz {Lsafe}")
        self.true_max_pass()
        a.label(Lsafe)
        for u in "ab":
            for j in range(16): a.i(f"v_mov_b32 v{self.C_[u]+j}, {self.N2[u]}")
        return pre

    def true_max_pass(self):
        a = self.a
        a.c("---- fallback: true row max ----")
        for u in "ab":
            for j in range(16): a.i(f"v_mov_b32 v{self.C_[u]+j}, 0")
            a.i(f"v_mov_b32 {self.N2[u]}, 0xff800000")
        a.i("v_and_b32 v216, 31, v0")
        a.i("v_lshlrev_b32 v216, 4, v216")
        a.i("s_mov_b32 s64, 0")
        L = a.newlabel("tm")
        a.label(L)
        a.i("s_lshr_b32 s62, s64, 2")
        a.i(f"s_mul_i32 s62, s62, {KVCH}")
        a.i(f"s_add_u32 s62, s62, {WS_KV}")
        a.i("s_and_b32 s63, s64, 3")
        a.i("s_lshl_b32 s65, s63, 10")
        a.i("s_add_u32 s65, s65, s62")
        a.i(f"buffer_load_dwordx4 v[{self.KL[0]}:{self.KL[0]+3}], {self.A_L16}, {SRD_WS}, s65 offen sc1")
        a.i("s_lshr_b32 s65, s63, 1")
        a.i("s_lshl_b32 s65, s65, 9")
        a.i("s_and_b32 s63, s63, 1")
        a.i("s_lshl_b32 s63, s63, 3")
        a.i("s_add_u32 s65, s65, s63")
        a.i("s_add_u32 s65, s65, s62")
        a.i("s_add_u32 s65, s65, 4096")
        a.i(f"buffer_load_dwordx2 v[{self.KH[0]}:{self.KH[0]+1}], v216, {SRD_WS}, s65 offen sc1")
        a.i("s_waitcnt vmcnt(0)")
        for u in "ab":
            for m in self.qk(u, self.KL[0], self.KH[0]): a.i(m)
        a.nop(12)
        for u in "ab":
            S = self.S_[u]
            for j in range(8): a.i(f"v_max3_f32 {self.N2[u]}, {self.N2[u]}, v{S+2*j}, v{S+2*j+1}")
        a.i("s_add_u32 s64, s64, 1")
        a.i("s_cmp_lt_u32 s64, 64")
        a.i(f"s_cbranch_scc1 {L}")
        a.i(f"v_mov_b32 v218, {self.N2['a']}")
        a.i(f"v_mov_b32 v219, {self.N2['b']}")
        a.nop(1)
        a.i(f"v_permlane32_swap_b32 {self.N2['a']}, v218")
        a.i(f"v_permlane32_swap_b32 {self.N2['b']}, v219")
        a.nop(1)
        a.i(f"v_max_f32 {self.N2['a']}, {self.N2['a']}, v218")
        a.i(f"v_max_f32 {self.N2['b']}, {self.N2['b']}, v219")
        a.i(f"v_sub_f32 {self.N2['a']}, 0, {self.N2['a']}")
        a.i(f"v_sub_f32 {self.N2['b']}, 0, {self.N2['b']}")

    def attention(self, pre):
        a = self.a
        a.c("---- attention main loop ----")
        a.wait(vm=pre[0])
        a.lds(f"ds_add_u32 {self.A_CW}, {self.A_ONE} offset:{C_ARR}")
        self.lds_spin_ge(C_ARR, 4, self.vCnt, self.A_CR, sleep=0)
        a.i("s_mov_b32 s74, 0")
        a.i("s_mov_b32 s78, 8")
        a.lds(f"ds_read_b128 v[{self.KL[0]}:{self.KL[0]+3}], {self.vKL}")
        a.lds(f"ds_read_b128 v[{self.KH[0]}:{self.KH[0]+3}], {self.vKH}")
        a.wait(lg='all')
        for m in self.qk('a', self.KL[0], self.KH[0]): a.i(m)
        a.nop(9)
        self.stamp(7)
        self.stamp(10, True)
        L = "L_ATT"
        a.raw(".p2align 6")
        a.label(L)
        self.loop_start = len(a.lines)
        def egroup(u, k):
            S = self.S_[u]; P = self.P_[u]
            for e in range(4): a.i(f"v_exp_f32 v{S+4*k+e}, v{S+4*k+e}")
            a.i(f"v_cvt_pk_bf16_f32 v{P+2*k}, v{S+4*k}, v{S+4*k+1}")
            a.i(f"v_cvt_pk_bf16_f32 v{P+2*k+1}, v{S+4*k+2}, v{S+4*k+3}")
        for slot in range(4):
            base = slot * RSLOT; nbase = ((slot + 1) % 4) * RSLOT
            a.vm = []; a.lg = []
            if self.o.get('prof') == 3:
                a.i("s_memtime s[90:91]"); a.i("s_waitcnt lgkmcnt(0)")
            if slot == 2:
                Lw3 = a.newlabel("w3")
                a.i("s_cmp_lg_u32 s74, 3")
                a.i(f"s_cbranch_scc1 {Lw3}")
                a.i("s_waitcnt vmcnt(0)")
                a.label(Lw3)
            a.i("s_waitcnt vmcnt(3)")
            if self.o.get('prof') == 3:
                a.i("s_memtime s[92:93]"); a.i("s_waitcnt lgkmcnt(0)")
                a.i("s_sub_u32 s92, s92, s90"); a.i("s_add_u32 s44, s44, s92")
            a.lds(f"ds_add_u32 {self.A_CW}, {self.A_ONE} offset:{C_ARR}")
            for t in range(4):
                kh = self.KH[(t >> 1) % 2] + 2 * (t & 1)
                q0, q1 = self.qk('b', self.KL[t % 2], kh)
                p0, p1 = self.pv('b', self.VV[(t - 1) % 2])
                rd = []
                kn = self.KL[(t + 1) % 2]
                rd.append(('K', f"ds_read_b128 v[{kn}:{kn+3}], {self.vKL} offset:{base + (t+1)*1024 if t < 3 else nbase}"))
                if t & 1:
                    hn = self.KH[((t + 1) >> 1) % 2]
                    rd.append(('K', f"ds_read_b128 v[{hn}:{hn+3}], {self.vKH} offset:{base + 512 if t < 3 else nbase}"))
                vv = self.VV[t % 2]
                rd.append(('V', f"ds_read_b128 v[{vv}:{vv+3}], {self.vV} offset:{base + (2*t)*VFR}"))
                rd.append(('V', f"ds_read_b128 v[{vv+4}:{vv+7}], {self.vV} offset:{base + (2*t+1)*VFR}"))
                ktok, vtok = [], []
                for k, m in enumerate((q0, q1, p0, p1)):
                    a.i(m)
                    if k < len(rd):
                        tk = a.lds(rd[k][1]); (ktok if rd[k][0] == 'K' else vtok).append(tk)
                    egroup('a', k)
                khn = self.KH[((t + 1) >> 1) % 2] + 2 * ((t + 1) & 1)
                q0, q1 = self.qk('a', self.KL[(t + 1) % 2], khn)
                p0, p1 = self.pv('a', self.VV[t % 2])
                a.wait(lg=ktok)
                for k, m in enumerate((q0, q1, p0, p1)):
                    if k == 2: a.wait(lg=vtok)
                    a.i(m)
                    if t == 0 and k == 3:
                        a.lds(f"ds_read_b32 {self.vCnt}, {self.A_CR} offset:{C_ARR}")
                    if t == 1 and k == 0:
                        Lok = a.newlabel("arr")
                        a.i(f"v_cmp_gt_u32 vcc, s78, {self.vCnt}")
                        a.i(f"s_cbranch_vccz {Lok}")
                        if self.o.get('prof'): a.i("s_add_u32 s52, s52, 1")
                        keep = list(a.lg)
                        self.lds_spin_ge(C_ARR, "s78", self.vCnt, self.A_CR, sleep=0)
                        a.lg = keep
                        a.label(Lok)
                    if t == 1 and k == 1:
                        if self.o.get('prof') == 3:
                            a.i("s_memtime s[90:91]"); a.i("s_waitcnt lgkmcnt(0)")
                        if slot == 0: self.ring_dma(3)
                        else:
                            Lnd = a.newlabel("nd")
                            a.i("s_cmp_eq_u32 s74, 3")
                            a.i(f"s_cbranch_scc1 {Lnd}")
                            self.ring_dma((slot + 3) % 4)
                            a.label(Lnd)
                        if self.o.get('prof') == 3:
                            a.i("s_memtime s[92:93]"); a.i("s_waitcnt lgkmcnt(0)")
                            a.i("s_sub_u32 s92, s92, s90"); a.i("s_add_u32 s45, s45, s92")
                        a.i("s_add_u32 s78, s78, 4")
                    egroup('b', k)
        if self.o.get('prof') == 1:
            a.i("s_memtime s[56:57]" if self.o.get('qcyc') else "s_memrealtime s[56:57]")
            a.i("s_waitcnt lgkmcnt(0)")
            for k in range(3):
                a.i(f"s_cmp_eq_u32 s74, {k}")
                a.i(f"s_cselect_b32 s{53+k if k < 2 else 43}, s56, s{53+k if k < 2 else 43}")
        a.i("s_add_u32 s74, s74, 1")
        a.i("s_cmp_lt_u32 s74, 4")
        self.loop_end = len(a.lines)
        a.i(f"s_cbranch_scc1 {L}")
        for m in self.pv('b', self.VV[1]): a.i(m)
        a.vm = []; a.lg = []

    def o_addr(self):
        a = self.a
        a.i(f"s_lshl_b32 s62, {sRB}, 1")
        a.i("s_mul_i32 s62, s62, 40960")
        a.i(f"s_add_u32 s80, s62, {WS_O}")
        a.i(f"s_mul_i32 s63, {sCG}, 5")
        a.i(f"s_add_u32 s81, s63, {sWR}")
        a.i("s_lshl_b32 s81, s81, 10")
        a.i("s_add_u32 s63, s63, 4")
        a.i("s_lshl_b32 s63, s63, 10")
        a.i(f"s_lshr_b32 s65, {sWR}, 1")
        a.i("s_lshl_b32 s65, s65, 9")
        a.i("s_add_u32 s63, s63, s65")
        a.i(f"s_and_b32 s65, {sWR}, 1")
        a.i("s_lshl_b32 s65, s65, 3")
        a.i("s_add_u32 s82, s63, s65")

    def o_epilogue(self):
        a = self.a
        a.c("---- normalise O, publish ----")
        a.i("v_cmp_gt_u32 vcc, 32, v0")
        a.nop(2)
        for mt, u in enumerate("ab"):
            O = self.O_[u]
            a.i(f"v_cndmask_b32 v216, v{O+8}, v{O+12}, vcc")
            a.i("v_rcp_f32 v216, v216")
            a.nop(1)
            for j in range(12): a.i(f"v_mul_f32 v{O+j}, v216, v{O+j}")
            P = self.P_[u]
            for j in range(6): a.i(f"v_cvt_pk_bf16_f32 v{P+j}, v{O+2*j}, v{O+2*j+1}")
            a.i(f"s_add_u32 s68, s80, {mt*40960}")
            a.i("s_add_u32 s69, s68, s81")
            a.vmem(f"buffer_store_dwordx4 v[{P}:{P+3}], {self.A_L16}, {SRD_WS}, s69 offen sc1")
            a.i("s_add_u32 s69, s68, s82")
            a.i("s_mov_b32 exec_lo, -1"); a.i("s_mov_b32 exec_hi, 0")
            a.vmem(f"buffer_store_dwordx2 v[{P+4}:{P+5}], {self.A_L16}, {SRD_WS}, s69 offen sc1")
            a.i("s_mov_b64 exec, -1")
        a.wait(vm='all')
        a.lds(f"ds_add_rtn_u32 v218, {self.A_CW}, {self.A_ONE} offset:{C_OD}")
        a.wait(lg='all')
        a.i("v_readfirstlane_b32 s62, v218")
        a.nop(1)
        a.i("s_cmp_lg_u32 s62, 3")
        a.i("s_cbranch_scc1 L_AEND")
        a.i(f"s_lshl_b32 s62, {sRB}, 7")
        a.i(f"s_lshl_b32 s63, {sCG}, 2")
        a.i("s_add_u32 s62, s62, s63")
        a.i(f"s_add_u32 s62, s62, {WS_FO}")
        a.i(f"v_mov_b32 v217, {sN}")
        a.i("v_mov_b32 v216, 0")
        a.i("s_mov_b64 exec, 1")
        a.i(f"buffer_store_dword v217, v216, {SRD_WS}, s62 offen sc1")
        a.i("s_mov_b64 exec, -1")
        a.label("L_AEND")
        self.stamp(9)
        self.stamp(9, lvl=3)
        self.stamp_flush()
        a.i("s_branch L_END")

    def role_a(self):
        a = self.a
        a.label("L_ROLE_A")
        a.i(f"s_setprio {self.o.get('prioQ', 2)}")
        dt = None
        if self.o.get('noQ'):
            a.i("s_waitcnt vmcnt(0)")
            self.lds_count(C_XND, self.A_CW, self.A_ONE)
            for r in range(16, 48): a.i(f"v_mov_b32 v{r}, 0")
        else: self.q_proj()
        self.stamp(10, lvl=2)
        self.stamp(4)
        self.q_epilogue()
        if self.o.get('dump') == 'q':
            self.dump_regs(128, 12, 0, self.A_L16)
        self.att_init_regs()
        self.o_addr()
        a.i(f"s_setprio {self.o.get('prioA', 2)}")
        self.kv_wait()
        self.stamp(5)
        pre = self.shift_setup()
        self.stamp(6)
        if not self.o.get('noatt'): self.attention(pre)
        else:
            self.loop_start = self.loop_end = len(a.lines)
            a.i("s_waitcnt vmcnt(0)")
        self.stamp(11, True)
        self.stamp(8)
        if self.o.get('dump') == 'o':
            a.nop(16)
            self.dump_regs(48, 32, 0, self.A_L16)
        self.o_epilogue()

    vD1a, vD1b, vTRa, vTRb = "v230", "v231", "v232", "v233"
    B_XA, B_XB = 234, 238
    B_CW, B_CR, B_ONE, B_L16 = "v242", "v243", "v244", "v245"
    B_TRK = "v252"
    B_JA, B_JB = 112, None
    vWa, vWb, vWc, vMa, vMb, vMc = "v220", "v221", "v222", "v223", "v224", "v225"
    vRa, vRb, vRc, vPW, vPR0, vPR1, vXO, vH0 = "v8", "v9", "v10", "v11", "v12", "v13", "v14", "v15"
    vH1 = "v250"

    def pair_dma_addr(self, va, vb, pitch, col_sgpr, comp_rows=8):
        a = self.a
        a.i("v_lshrrev_b32 v246, 3, v0")
        a.i("v_bfe_u32 v247, v0, 4, 1")
        a.i("v_lshlrev_b32 v247, 2, v247")
        a.i("v_and_b32 v248, 7, v0")
        a.i("v_xor_b32 v247, v247, v248")
        a.i(f"v_mul_u32_u24 v246, {pitch}, v246")
        a.i(f"v_lshl_add_u32 {va}, v247, 4, v246")
        a.i(f"v_add_u32 {va}, {col_sgpr}, {va}")
        a.i(f"v_add_u32 {vb}, {comp_rows*pitch - 1024}, {va}")

    def pair_tr_addr(self, va, vb, hmul, base_sgpr):
        a = self.a
        a.i("v_lshrrev_b32 v246, 5, v0")
        a.i(f"v_mul_u32_u24 v246, {hmul}, v246")
        a.i("v_bfe_u32 v247, v0, 2, 2")
        a.i("v_add_u32 v246, v246, v247")
        a.i("v_lshlrev_b32 v246, 7, v246")
        a.i("v_bfe_u32 v247, v0, 4, 1")
        a.i("v_lshlrev_b32 v247, 1, v247")
        a.i("v_bfe_u32 v248, v0, 1, 1")
        a.i("v_add_u32 v247, v247, v248")
        a.i("v_bfe_u32 v248, v0, 3, 1")
        a.i("v_lshlrev_b32 v248, 2, v248")
        a.i("v_xor_b32 v247, v247, v248")
        a.i("v_lshl_add_u32 v246, v247, 4, v246")
        a.i("v_and_b32 v247, 1, v0")
        a.i("v_lshl_add_u32 v246, v247, 3, v246")
        a.i(f"v_add_u32 {va}, {base_sgpr}, v246")
        a.i(f"v_xor_b32 {vb}, 64, v246")
        a.i(f"v_add_u32 {vb}, {base_sgpr}, {vb}")

    def w1_dma(self, ks, part=None):
        a = self.a
        t = []
        if part in (None, 0):
            a.i(f"s_add_u32 m0, s66, {(ks % NS1) * 2048}")
            if part is None: a.nop(1)
        if part in (None, 1):
            t.append(a.vmem(f"buffer_load_dwordx4 {self.vD1a}, {SRD_W1}, s67 offen lds"))
        if part in (None, 2):
            t.append(a.vmem(f"buffer_load_dwordx4 {self.vD1b}, {SRD_W1}, s67 offen offset:1024 lds"))
            self.rot_next(16 * 3456, "s67", ks)
        return t

    def ffn1(self):
        a = self.a
        a.c("---- FFN1 (transposed): h^T tiles, 2 n-tiles x 2 m-tiles per wave ----")
        acc = lambda t, m: 16 + 32 * t + 16 * m
        W = lambda s, t: 80 + 8 * s + 4 * t
        X = lambda s, m: 96 + 8 * s + 4 * m
        d1 = NS1
        dm = dict(self.w1tok); ta = {}; tb = {}
        def rd_wa(ks):
            a.wait(vm=dm[ks])
            s = ks % 2; sl = (ks % NS1) * 2048
            ta[ks] = [a.lds(f"ds_read_b64_tr_b16 v[{W(s,0)}:{W(s,0)+1}], {self.vTRa} offset:{sl}"),
                      a.lds(f"ds_read_b64_tr_b16 v[{W(s,0)+2}:{W(s,0)+3}], {self.vTRa} offset:{sl+512}")]
        def rd_x(ks):
            s = ks % 2
            self.rot_xn_seg(self.B_XA, self.B_XB, "s69", ks)
            ta[ks].append(a.lds(f"ds_read_b128 v[{X(s,0)}:{X(s,0)+3}], v{self.B_XA + ks % 4} offset:{self.seg_imm(ks)}"))
            ta[ks].append(a.lds(f"ds_read_b128 v[{X(s,1)}:{X(s,1)+3}], v{self.B_XB + ks % 4} offset:{self.seg_imm(ks)}"))
        def rd_wb(ks):
            s = ks % 2; sl = (ks % NS1) * 2048
            tb[ks] = [a.lds(f"ds_read_b64_tr_b16 v[{W(s,1)}:{W(s,1)+1}], {self.vTRb} offset:{sl}"),
                      a.lds(f"ds_read_b64_tr_b16 v[{W(s,1)+2}:{W(s,1)+3}], {self.vTRb} offset:{sl+512}")]
        def mf(ks, t, m):
            s = ks % 2; A = acc(t, m)
            C = "0" if ks == 0 else f"v[{A}:{A+15}]"
            a.i(f"v_mfma_f32_32x32x16_bf16 v[{A}:{A+15}], v[{W(s,t)}:{W(s,t)+3}], v[{X(s,m)}:{X(s,m)+3}], {C}")
        rd_wa(0); rd_x(0); rd_wb(0)
        for ks in range(40):
            nx = ks + 1 < 40; dd = ks + d1 < 40
            if ks in (0, 10, 20, 30): self.stamp(6 + ks // 10, lvl=2)
            a.wait(lg=ta[ks])
            mf(ks, 0, 0)
            if nx: rd_wa(ks + 1)
            mf(ks, 0, 1)
            a.wait(lg=tb[ks])
            if nx: rd_x(ks + 1)
            if dd: self.w1_dma(ks + d1, 0)
            mf(ks, 1, 0)
            if nx: rd_wb(ks + 1)
            if dd: dm[ks + d1] = self.w1_dma(ks + d1, 1)
            mf(ks, 1, 1)
            if dd: dm[ks + d1] += self.w1_dma(ks + d1, 2)
        self.lds_count(C_XND, self.B_CW, self.B_ONE)
        if self.o.get('pf', 0): self.l2_prefetch(SRD_W2, 2211840, 3 if self.o.get('pfstride', 128) == 128 else 5, "v246", "v251", sWR, 4)
        self.stamp(10, lvl=2)
        self.stamp(3)
        a.i(f"s_setprio {self.o.get('prioBv', 3)}")
        a.i(f"s_lshl_b32 s62, {sRB}, 1")
        a.i("s_mul_i32 s62, s62, 110592")
        a.i("s_lshl_b32 s63, s68, 11")
        a.i("s_add_u32 s62, s62, s63")
        a.i(f"s_add_u32 s62, s62, {WS_H}")
        a.nop(6)
        for t in range(2):
            for m in range(2):
                A = acc(t, m); R = 80 + 8 * m + 16 * (t & 1)
                for j in range(8): a.i(f"v_cvt_pk_bf16_f32 v{R+j}, v{A+2*j}, v{A+2*j+1}")
                for j in range(8): a.i(f"v_pk_max_i16 v{R+j}, v{R+j}, 0")
                a.i(f"s_add_u32 s63, s62, {m*110592 + t*2048}")
                a.vmem(f"buffer_store_dwordx4 v[{R}:{R+3}], {self.B_L16}, {SRD_WS}, s63 offen sc1")
                a.vmem(f"buffer_store_dwordx4 v[{R+4}:{R+7}], {self.B_L16}, {SRD_WS}, s63 offen offset:1024 sc1")
        a.i(f"s_setprio {self.o.get('prioB', 0)}")

    def h_publish(self):
        a = self.a
        a.i("s_waitcnt vmcnt(0)")
        a.vm = []
        a.lds(f"ds_add_rtn_u32 v246, {self.B_CW}, {self.B_ONE} offset:{C_HD}")
        a.wait(lg='all')
        a.i("v_readfirstlane_b32 s62, v246")
        Lnf = a.newlabel("hnf")
        a.nop(1)
        a.i("s_cmp_lg_u32 s62, 3")
        a.i(f"s_cbranch_scc1 {Lnf}")
        a.i(f"s_lshl_b32 s62, {sRB}, 7")
        a.i(f"s_lshl_b32 s63, {sCG}, 2")
        a.i("s_add_u32 s62, s62, s63")
        a.i(f"s_add_u32 s62, s62, {WS_FH}")
        a.i(f"v_mov_b32 v247, {sN}")
        a.i("v_mov_b32 v246, 0")
        a.i("s_mov_b64 exec, 1")
        a.i(f"buffer_store_dword v247, v246, {SRD_WS}, s62 offen sc1")
        a.i("s_mov_b64 exec, -1")
        a.label(Lnf)

    def out_tiles_setup(self):
        a = self.a
        a.i(f"s_lshr_b32 s62, {sCG}, 1")
        a.i("s_and_b32 s64, s62, 1")
        a.i("s_mul_i32 s62, s62, 5")
        a.i(f"s_and_b32 s82, {sCG}, 1")
        a.i("s_lshl_b32 s63, s82, 1")
        a.i("s_add_u32 s80, s62, s63")
        a.i("s_add_u32 s80, s80, s64")
        a.i("s_lshl_b32 s80, s80, 6")
        a.i("s_xor_b32 s64, s64, 1")
        a.i("s_lshl_b32 s64, s64, 2")
        a.i("s_add_u32 s81, s62, s64")
        a.i("s_lshl_b32 s81, s81, 6")
        a.i(f"s_mul_i32 s83, {sWR}, {BREG}")
        self.pair_dma_addr(self.vWa, self.vWb, 1280, "s80")
        a.i("v_lshrrev_b32 v246, 2, v0")
        a.i("v_mul_u32_u24 v246, 1280, v246")
        a.i("v_and_b32 v247, 3, v0")
        a.i(f"v_lshl_add_u32 {self.vWc}, v247, 4, v246")
        a.i(f"v_add_u32 {self.vWc}, s81, {self.vWc}")
        self.pair_tr_addr(self.vRa, self.vRb, 4, "s83")
        a.i("v_lshrrev_b32 v246, 5, v0")
        a.i("v_lshlrev_b32 v246, 2, v246")
        a.i("v_bfe_u32 v247, v0, 2, 2")
        a.i("v_add_u32 v246, v246, v247")
        a.i("v_lshlrev_b32 v246, 6, v246")
        a.i("v_bfe_u32 v247, v0, 4, 1")
        a.i("v_lshl_add_u32 v246, v247, 5, v246")
        a.i("v_and_b32 v247, 3, v0")
        a.i("v_lshl_add_u32 v246, v247, 3, v246")
        a.i("s_add_u32 s62, s83, 2048")
        a.i(f"v_add_u32 {self.vRc}, s62, v246")
        a.i(f"v_add_u32 {self.vPW}, s83, {self.B_L16}")
        a.i(f"s_mul_i32 s62, {sWR}, 5120")
        a.i(f"v_add_u32 {self.vPR0}, s62, {self.B_L16}")
        a.i(f"v_add_u32 {self.vPR1}, {2*BREG}, {self.vPR0}")

    def w3_dma(self, srd, slot, soff_sgpr, va, vb, vc):
        a = self.a
        a.i(f"s_add_u32 m0, s83, {slot*3072}")
        a.nop(1)
        t = [a.vmem(f"buffer_load_dwordx4 {va}, {srd}, {soff_sgpr} offen lds"),
             a.vmem(f"buffer_load_dwordx4 {vb}, {srd}, {soff_sgpr} offen offset:1024 lds")]
        a.i(f"s_add_u32 m0, s83, {slot*3072 + 2048}")
        a.nop(1)
        t.append(a.vmem(f"buffer_load_dwordx4 {vc}, {srd}, {soff_sgpr} offen lds"))
        return t

    def w3_reads(self, slot, Wb, part=None):
        a = self.a; t = []
        sl = slot * 3072
        if isinstance(part, tuple):
            p = part[1]
            va, o2 = ((self.vRa, 1024), (self.vRb, 1024), (self.vRc, 512))[p]
            t.append(a.lds(f"ds_read_b64_tr_b16 v[{Wb+4*p}:{Wb+4*p+1}], {va} offset:{sl}"))
            t.append(a.lds(f"ds_read_b64_tr_b16 v[{Wb+4*p+2}:{Wb+4*p+3}], {va} offset:{sl+o2}"))
            return t
        if part in (None, 0):
            t.append(a.lds(f"ds_read_b64_tr_b16 v[{Wb}:{Wb+1}], {self.vRa} offset:{sl}"))
            t.append(a.lds(f"ds_read_b64_tr_b16 v[{Wb+2}:{Wb+3}], {self.vRa} offset:{sl+1024}"))
            t.append(a.lds(f"ds_read_b64_tr_b16 v[{Wb+4}:{Wb+5}], {self.vRb} offset:{sl}"))
        if part in (None, 1):
            t.append(a.lds(f"ds_read_b64_tr_b16 v[{Wb+6}:{Wb+7}], {self.vRb} offset:{sl+1024}"))
            t.append(a.lds(f"ds_read_b64_tr_b16 v[{Wb+8}:{Wb+9}], {self.vRc} offset:{sl}"))
            t.append(a.lds(f"ds_read_b64_tr_b16 v[{Wb+10}:{Wb+11}], {self.vRc} offset:{sl+512}"))
        return t

    def five_mfma(self, Wb, H0, H1, first, fill):
        a = self.a
        spec = [(0, 0, H0), (1, 0, H1), (2, 1, H0), (3, 1, H1), (4, 2, H0)]
        for n, (tau, nt, Hb) in enumerate(spec):
            A = 16 + 16 * tau
            C = "0" if first else f"v[{A}:{A+15}]"
            a.i(f"v_mfma_f32_32x32x16_bf16 v[{A}:{A+15}], v[{Wb+4*nt}:{Wb+4*nt+3}], v[{Hb}:{Hb+3}], {C}")
            if n < len(fill) and fill[n]: fill[n]()

    def reduce80(self, dst, bar_target):
        a = self.a
        a.nop(12)
        for g in range(20):
            if len(a.lg) >= 14: a.wait(lg=a.lg[6])
            a.lds(f"ds_write_b128 {self.vPW}, v[{16+4*g}:{19+4*g}] offset:{g*1024}")
        a.wait(lg='all')
        self.lds_count(C_BBAR, self.B_CW, self.B_ONE)
        self.lds_spin_ge(C_BBAR, bar_target, "v246", self.B_CR)
        tk = {}
        def rd(src):
            va = self.vPR0 if src < 2 else self.vPR1
            tk[src] = [a.lds(f"ds_read_b128 v[{16+20*src+4*e}:{19+20*src+4*e}], {va} offset:{(src&1)*BREG + e*1024}") for e in range(5)]
        rd(0); rd(1); rd(2)
        a.wait(lg=tk[1])
        rd(3)
        for j in range(20): a.i(f"v_add_f32 v{dst+j}, v{16+j}, v{36+j}")
        a.wait(lg='all')
        for j in range(20): a.i(f"v_add_f32 v{56+j}, v{56+j}, v{76+j}")
        for j in range(20): a.i(f"v_add_f32 v{dst+j}, v{dst+j}, v{56+j}")

    def ffn2(self):
        a = self.a
        a.c("---- FFN2 (transposed): 5 output tiles, split-K over the 4 B waves ----")
        if self.o.get('touch', 0):
            a.vmem(f"buffer_load_dword v251, v227, {SRD_W2}, s80 offen")
            a.vmem(f"buffer_load_dword v254, v227, {SRD_W2}, s81 offen")
        self.lds_spin_ge(C_XND, 8, "v246", self.B_CR)
        NS = 9; PF = self.o.get('d2', 4); HD = self.o.get('dh', 3) + 1
        a.i(f"s_mul_i32 s84, {sWR}, {27*20480}")
        a.i(f"s_and_b32 s62, {sRB}, 7")
        a.i("s_mul_i32 s62, s62, 3")
        a.i(f"s_and_b32 s63, {sCG}, 3")
        a.i("s_mul_i32 s63, s63, 7")
        a.i("s_add_u32 s62, s62, s63")
        a.i("s_cmp_ge_u32 s62, 27")
        a.i("s_cselect_b32 s63, 27, 0")
        a.i("s_sub_u32 s87, s62, s63")
        if not self.o.get('rot', 1): a.i("s_mov_b32 s87, 0")
        a.i("s_mul_i32 s95, s87, 20480")
        dm = {}
        a.i("s_add_u32 s95, s95, s84")
        a.i(f"s_add_u32 s93, s84, {27*20480}")
        def dma(kk, part=None):
            slot = kk % NS
            if part in (None, 0):
                a.i(f"s_add_u32 m0, s83, {slot*3072}")
                if part is None: a.nop(1)
            if part in (None, 1):
                dm[kk] = [a.vmem(f"buffer_load_dwordx4 {self.vWa}, {SRD_W2}, s95 offen lds")]
            if part in (None, 2):
                dm[kk].append(a.vmem(f"buffer_load_dwordx4 {self.vWb}, {SRD_W2}, s95 offen offset:1024 lds"))
                a.i(f"s_add_u32 m0, s83, {slot*3072 + 2048}")
                if part is None: a.nop(1)
            if part in (None, 3):
                dm[kk].append(a.vmem(f"buffer_load_dwordx4 {self.vWc}, {SRD_W2}, s95 offen lds"))
                a.i("s_add_u32 s95, s95, 20480")
                a.i("s_cmp_eq_u32 s95, s93")
                a.i("s_cselect_b32 s95, s84, s95")
        for kk in range(PF): dma(kk)
        self.stamp(5)
        self.one_wave_poll(WS_FH, C_HRDY, sleep=8)
        Lnl = a.newlabel("nolead")
        a.i(f"s_lshl_b32 s62, {sCG}, 2")
        a.i(f"s_add_u32 s62, s62, {sWR}")
        a.i("s_cmp_lg_u32 s62, 0")
        a.i(f"s_cbranch_scc1 {Lnl}")
        a.i("v_mov_b32 v246, 0")
        a.i("v_mov_b32 v247, 1")
        a.i("s_mov_b64 exec, 1")
        a.i(f"global_atomic_add v248, v246, v247, {sDBG} sc0 sc1")
        a.i("s_waitcnt vmcnt(0)")
        a.i("v_readfirstlane_b32 s62, v248")
        a.i("s_mov_b64 exec, -1")
        a.nop(1)
        a.i("s_cmp_lg_u32 s62, 31")
        a.i(f"s_cbranch_scc1 {Lnl}")
        a.i(f"v_mov_b32 v247, {sN}")
        a.i(f"v_mov_b32 v246, {WS_X}")
        a.i("s_mov_b32 s62, 0")
        a.i("s_mov_b64 exec, 1")
        a.i(f"buffer_store_dword v247, v246, {SRD_WS}, s62 offen sc1")
        a.i("s_mov_b64 exec, -1")
        a.label(Lnl)
        self.stamp(6)
        if self.o.get('pf', 0):
            a.i("v_min_u32 v246, 53, v0")
            a.i("v_lshlrev_b32 v246, 7, v246")
            a.i(f"s_mul_i32 s62, {sRB}, 221184")
            a.i(f"s_lshl_b32 s63, {sCG}, 2")
            a.i(f"s_add_u32 s63, s63, {sWR}")
            a.i(f"s_mul_i32 s63, s63, {54*128}")
            a.i("s_add_u32 s62, s62, s63")
            a.i(f"s_add_u32 s62, s62, {WS_H}")
            a.vmem(f"buffer_load_dword v251, v246, {SRD_WS}, s62 offen sc1")
            self.l2_prefetch(SRD_WO, 819200, 1 if self.o.get('pfstride', 128) == 128 else 2, "v246", "v253", sWR, 4)
        H = lambda kk, s: 120 + 8 * (kk % HD) + 4 * s
        hl = {}
        a.i("s_lshl_b32 s96, s87, 10")
        def hload(kk, part=None):
            if part in (None, 0):
                hl[kk] = [a.vmem(f"buffer_load_dwordx4 v[{H(kk,0)}:{H(kk,0)+3}], {self.vH0}, {SRD_WS}, s96 offen sc1")]
            if part in (None, 1):
                hl[kk].append(a.vmem(f"buffer_load_dwordx4 v[{H(kk,1)}:{H(kk,1)+3}], {self.vH1}, {SRD_WS}, s96 offen sc1"))
                a.i("s_add_u32 s96, s96, 1024")
                a.i(f"s_cmp_eq_u32 s96, {27*1024}")
                a.i("s_cselect_b32 s96, 0, s96")
        for kk in range(HD - 1): hload(kk)
        Wb = lambda kk: 96 + 12 * (kk % 2)
        a.wait(vm=dm[0])
        rt = {0: self.w3_reads(0, Wb(0))}
        for kk in range(27):
            a.wait(lg=rt[kk], vm=hl[kk])
            nx = kk + 1 < 27; dd = kk + PF < 27; hh = kk + HD - 1 < 27
            def rd(p, kk=kk):
                if p == 0:
                    a.wait(vm=dm[kk + 1]); rt[kk + 1] = []
                rt[kk + 1] += self.w3_reads((kk + 1) % NS, Wb(kk + 1), ('t', p))
            def g0(kk=kk):
                if nx: rd(0)
                if hh: hload(kk + HD - 1, 0)
            def g1(kk=kk):
                if nx: rd(1)
                if hh: hload(kk + HD - 1, 1)
                if dd: dma(kk + PF, 0)
            def g2(kk=kk):
                if nx: rd(2)
                if dd: dma(kk + PF, 1)
            def g3(kk=kk):
                if dd: dma(kk + PF, 2)
            def g4(kk=kk):
                if dd: dma(kk + PF, 3)
            self.five_mfma(Wb(kk), H(kk, 0), H(kk, 1), kk == 0, [g0, g1, g2, g3, g4])
        self.stamp(7)
        if self.o.get('touch', 0):
            a.i("s_mov_b32 s62, 0")
            a.vmem(f"buffer_load_dword v251, v228, {SRD_WO}, s62 offen")
        a.i(f"s_setprio {self.o.get('prioBv', 3)}")
        self.reduce80(200, 4)
        for j in range(20): a.i(f"v_mul_f32 v{16+j}, {hx(f2u(-1.4426950408889634))}, v{200+j}")
        for j in range(20): a.i(f"v_exp_f32 v{16+j}, v{16+j}")
        for j in range(20): a.i(f"v_add_f32 v{16+j}, 1.0, v{16+j}")
        for j in range(20): a.i(f"v_rcp_f32 v{16+j}, v{16+j}")
        for j in range(20): a.i(f"v_mul_f32 v{200+j}, v{200+j}, v{16+j}")
        a.i(f"s_setprio {self.o.get('prioB', 0)}")
        self.lds_count(C_BBAR, self.B_CW, self.B_ONE)
        self.lds_spin_ge(C_BBAR, 8, "v246", self.B_CR)

    def out_mixed_addr(self):
        a = self.a
        a.i("v_lshrrev_b32 v246, 3, v0")
        a.i("v_lshrrev_b32 v247, 2, v246")
        a.i("v_mul_u32_u24 v247, 40, v247")
        a.i("v_and_b32 v248, 3, v246")
        a.i("v_add3_u32 v247, v247, v248, 16")
        a.i("v_mul_u32_u24 v247, 1280, v247")
        a.i("v_bfe_u32 v248, v0, 4, 1")
        a.i("v_lshlrev_b32 v248, 2, v248")
        a.i("v_and_b32 v249, 7, v0")
        a.i("v_xor_b32 v248, v248, v249")
        a.i(f"v_lshl_add_u32 {self.vMa}, v248, 4, v247")
        a.i(f"v_add_u32 {self.vMa}, s80, {self.vMa}")
        a.i(f"v_add_u32 {self.vMb}, {20*1280 - 1024}, {self.vMa}")
        a.i("v_lshrrev_b32 v246, 2, v0")
        a.i("v_bfe_u32 v247, v246, 2, 1")
        a.i("v_lshlrev_b32 v247, 1, v247")
        a.i("v_lshrrev_b32 v248, 3, v246")
        a.i("v_add_u32 v247, v247, v248")
        a.i("v_mul_u32_u24 v247, 20, v247")
        a.i("v_and_b32 v248, 3, v246")
        a.i("v_add3_u32 v247, v247, v248, 16")
        a.i("v_mul_u32_u24 v247, 1280, v247")
        a.i("v_and_b32 v248, 3, v0")
        a.i(f"v_lshl_add_u32 {self.vMc}, v248, 4, v247")
        a.i(f"v_add_u32 {self.vMc}, s81, {self.vMc}")
        a.i("v_and_b32 v246, 31, v0")
        a.i("v_mul_u32_u24 v246, 1280, v246")
        a.i("v_lshrrev_b32 v247, 5, v0")
        a.i(f"v_lshl_add_u32 {self.vXO}, v247, 3, v246")

    def ffn2_addr(self):
        a = self.a
        a.i(f"s_lshl_b32 s62, {sRB}, 1")
        a.i("s_add_u32 s63, s62, s82")
        a.i("s_xor_b32 s64, s82, 1")
        a.i("s_add_u32 s64, s62, s64")
        a.i("s_mul_i32 s85, s63, 110592")
        a.i("s_mul_i32 s86, s64, 110592")
        a.i(f"s_mul_i32 s62, {sWR}, {27*1024}")
        a.i(f"s_add_u32 s62, s62, {WS_H}")
        a.i("s_add_u32 s85, s85, s62")
        a.i("s_add_u32 s86, s86, s62")
        a.i(f"v_add_u32 {self.vH0}, s85, {self.B_L16}")
        a.i(f"v_add_u32 {self.vH1}, s86, {self.B_L16}")

    def out_proj(self):
        a = self.a
        a.c("---- output projection + final combine ----")
        dm = {}
        a.i(f"s_lshl_b32 s62, {sWR}, 1")
        a.i("s_add_u32 s93, s62, s82")
        a.i("s_xor_b32 s63, s82, 1")
        a.i("s_add_u32 s94, s62, s63")
        a.i(f"s_mul_i32 s84, s93, {80*1280}")
        a.i(f"s_mul_i32 s87, s94, {80*1280}")
        def wo_dma(e):
            cgo, jj = e // 5, e % 5
            base = "s84" if cgo == 0 else "s87"
            if jj < 4:
                a.i(f"s_add_u32 s67, {base}, {jj*20*1280}")
                dm[e] = self.w3_dma(SRD_WO, e % 9, "s67", self.vWa, self.vWb, self.vWc)
            else:
                dm[e] = self.w3_dma(SRD_WO, e % 9, base, self.vMa, self.vMb, self.vMc)
        for e in range(9):
            wo_dma(e)
            dw = self.o.get('dw', 2)
            if e - dw >= 0: a.wait(vm=dm[e - dw])
        a.wait(vm=dm[8])
        rt0 = self.w3_reads(0, 96)
        a.wait(lg=rt0)
        wo_dma(9)
        a.wait(vm=dm[9])
        xt = []
        for e in range(5):
            so = f"s{88+e}"
            a.i(f"s_mul_i32 s62, {sWR}, 5")
            a.i(f"s_add_u32 s62, s62, {e}")
            a.i("s_lshr_b32 s63, s62, 2")
            a.i("s_and_b32 s64, s62, 3")
            a.i("s_lshl_b32 s64, s64, 4")
            a.i("s_lshr_b32 s65, s63, 1")
            a.i("s_lshl_b32 s69, s65, 6")
            a.i("s_add_u32 s69, s69, s80")
            a.i("s_cmp_eq_u32 s63, 4")
            a.i("s_cselect_b32 s69, s81, s69")
            a.i("s_add_u32 s64, s64, s69")
            a.i("s_and_b32 s65, s63, 1")
            a.i("s_xor_b32 s65, s65, s82")
            a.i(f"s_lshl_b32 s69, {sRB}, 1")
            a.i("s_add_u32 s65, s65, s69")
            a.i("s_mul_i32 s65, s65, 40960")
            a.i(f"s_add_u32 {so}, s64, s65")
            xt.append(a.vmem(f"buffer_load_dwordx2 v[{220+2*e}:{221+2*e}], {self.vXO}, {SRD_X}, {so} offen"))
        self.stamp(9)
        self.one_wave_poll(WS_FO, C_ORDY, pre=lambda: self.lds_spin_ge(C_OD, 4, "v246", self.B_CR, sleep=2), sleep=1)
        self.stamp(10)
        a.i(f"s_lshl_b32 s62, {sRB}, 1")
        a.i("s_add_u32 s63, s62, s82")
        a.i("s_xor_b32 s64, s82, 1")
        a.i("s_add_u32 s64, s62, s64")
        a.i("s_mul_i32 s85, s63, 40960")
        a.i("s_mul_i32 s86, s64, 40960")
        a.i(f"s_add_u32 s85, s85, {WS_O}")
        a.i(f"s_add_u32 s86, s86, {WS_O}")
        a.i("s_mul_i32 s93, s93, 5120")
        a.i("s_mul_i32 s94, s94, 5120")
        ol = {}
        H = lambda e, s: 120 + 8 * e + 4 * s
        for e in range(10):
            grp = "s93" if e < 5 else "s94"
            a.i(f"s_add_u32 s62, s85, {grp}")
            t0 = a.vmem(f"buffer_load_dwordx4 v[{H(e,0)}:{H(e,0)+3}], {self.B_L16}, {SRD_WS}, s62 offen offset:{(e%5)*1024 if (e%5) < 4 else 0} sc1") if (e % 5) < 4 else None
            if t0 is None:
                a.i("s_add_u32 s62, s62, 4096")
                t0 = a.vmem(f"buffer_load_dwordx4 v[{H(e,0)}:{H(e,0)+3}], {self.B_L16}, {SRD_WS}, s62 offen sc1")
            a.i(f"s_add_u32 s63, s86, {grp}")
            if (e % 5) < 4:
                t1 = a.vmem(f"buffer_load_dwordx4 v[{H(e,1)}:{H(e,1)+3}], {self.B_L16}, {SRD_WS}, s63 offen offset:{(e%5)*1024} sc1")
            else:
                a.i("s_add_u32 s63, s63, 4096")
                t1 = a.vmem(f"buffer_load_dwordx4 v[{H(e,1)}:{H(e,1)+3}], {self.B_L16}, {SRD_WS}, s63 offen sc1")
            ol[e] = [t0, t1]
        Wb = lambda e: 96 + 12 * (e % 2)
        rt = {0: rt0}
        for e in range(10):
            a.wait(lg=rt[e], vm=ol[e])
            def f0(e=e):
                if e + 1 < 10:
                    a.wait(vm=dm[e + 1])
                    rt[e + 1] = self.w3_reads((e + 1) % 9, Wb(e + 1), 0)
            def f1(e=e):
                if e + 1 < 10: rt[e + 1] += self.w3_reads((e + 1) % 9, Wb(e + 1), 1)
            self.five_mfma(Wb(e), H(e, 0), H(e, 1), e == 0, [f0, f1])
        self.stamp(11)
        self.reduce80(96, 12)
        self.stamp(12)
        a.i("s_mov_b32 s62, 0xffff0000")
        for e in range(5):
            x0, x1 = 220 + 2 * e, 221 + 2 * e
            a.i(f"v_lshlrev_b32 v16, 16, v{x0}")
            a.i(f"v_and_b32 v17, s62, v{x0}")
            a.i(f"v_lshlrev_b32 v18, 16, v{x1}")
            a.i(f"v_and_b32 v19, s62, v{x1}")
            for j in range(4): a.i(f"v_fma_f32 v{16+j}, v{96+4*e+j}, v{200+4*e+j}, v{16+j}")
            a.i(f"v_cvt_pk_bf16_f32 v{20+2*e}, v16, v17")
            a.i(f"v_cvt_pk_bf16_f32 v{21+2*e}, v18, v19")
            a.vmem(f"buffer_store_dwordx2 v[{20+2*e}:{21+2*e}], {self.vXO}, {SRD_OUT}, s{88+e} offen")

    def role_b(self):
        a = self.a
        a.label("L_ROLE_B")
        Lf1 = a.newlabel("ffn1"); Lv = a.newlabel("vjob"); Lpf = a.newlabel("w1pf")
        a.i(f"s_and_b32 s62, {sCG}, 3")
        a.i("s_cmp_lg_u32 s62, 0")
        a.i(f"s_cbranch_scc1 {Lf1}")
        Lwait = a.newlabel("kvidle")
        a.i(f"s_cmp_ge_u32 {sWR}, 2")
        a.i(f"s_cbranch_scc1 {Lwait}")
        a.i("s_setprio 3")
        a.i(f"s_cmp_eq_u32 {sCG}, 4")
        a.i(f"s_cbranch_scc1 {Lv}")
        a.vm = []; a.lg = []
        self.kv_job(False)
        a.i(f"s_branch {Lwait}")
        a.label(Lv)
        a.vm = []; a.lg = []
        self.kv_job(True)
        a.label(Lwait)
        self.lds_spin_ge(C_KVD, 2, "v246", self.B_CR)
        a.label(Lpf)
        self.stamp(11, lvl=2)
        self.stamp(14)
        a.label(Lf1)
        a.i(f"s_setprio {self.o.get('prioF', 0)}")
        if self.o.get('noB'):
            a.i("s_waitcnt vmcnt(0)")
            a.i("s_branch L_END")
        a.vm = []; a.lg = []
        Lnop = a.newlabel("nopair"); Lhd = a.newlabel("hdone")
        a.i("s_cmp_eq_u32 s99, 0")
        a.i(f"s_cbranch_scc1 {Lnop}")
        if self.o.get('noF1'): a.i(f"s_branch {Lnop}")
        bs = self.o.get('bstart', 'none')
        if bs == 'ring': self.lds_spin_ge(C_GO, 4, "v246", self.B_CR)
        if bs == 'qiss': self.lds_spin_ge(C_QISS, 4, "v246", self.B_CR)
        self.w1tok = {ks: self.w1_dma(ks) for ks in range(NS1)}
        self.ffn1()
        a.i(f"s_branch {Lhd}")
        a.label(Lnop)
        a.i(f"s_setprio {self.o.get('prioB', 0)}")
        self.lds_count(C_XND, self.B_CW, self.B_ONE)
        a.label(Lhd)
        a.vm = []; a.lg = []
        self.h_publish()
        self.stamp(4)
        self.ffn2()
        self.stamp(8)
        if self.o.get('dump') == 'g':
            self.dump_regs(200, 20, 0, self.B_L16)
        self.out_proj()
        a.i("s_waitcnt vmcnt(0)") if self.o.get('prof') else None
        self.stamp(13)
        self.stamp_flush()
        if self.o.get('span'):
            a.i("s_waitcnt vmcnt(0)")
            a.i("s_memrealtime s[90:91]")
            a.i("s_waitcnt lgkmcnt(0)")
            a.i("s_not_b32 s62, s101")
            a.i("v_mov_b32 v1, 8")
            a.i("v_mov_b32 v2, s62")
            a.i("v_mov_b32 v3, s90")
            a.i("s_mov_b64 exec, 1")
            a.i(f"global_atomic_umax v1, v2, {sDBG} sc1")
            a.i(f"global_atomic_umax v1, v3, {sDBG} offset:4 sc1")
            a.i("s_mov_b64 exec, -1")
        a.i("s_branch L_END")

    def build(self):
        a = self.a
        self.prologue()
        self.role_setup()
        a.i("s_waitcnt lgkmcnt(0)")
        a.i(f"s_add_u32 {sN}, {sN}, 1")
        a.vm = []; a.lg = []
        self.stamp(1)
        self.layernorm()
        self.stamp(2)
        if self.o.get('dump') == 'xn':
            self.dump_lds_xn()
        a.i(f"s_cmp_ge_u32 {sW}, 4")
        a.i("s_cbranch_scc1 L_ROLE_B")
        self.role_a()
        self.role_b()
        a.label("L_END")
        a.i("s_endpgm")

    def dump_lds_xn(self):
        a = self.a
        a.i("v_lshlrev_b32 v72, 4, v0")
        a.i(f"s_mul_i32 s70, {sW}, 10240")
        a.i("v_add_u32 v73, s70, v72")
        a.i("s_mul_i32 s71, s2, 81920")
        a.i("s_add_u32 s71, s71, s70")
        a.i(f"s_add_u32 s71, s71, {WS_DBG}")
        for g in range(10):
            a.i(f"ds_read_b128 v[76:79], v73 offset:{g*1024}")
            a.i("s_waitcnt lgkmcnt(0)")
            a.i(f"s_add_u32 s70, s71, {g*1024}")
            a.i(f"buffer_store_dwordx4 v[76:79], v72, {SRD_WS}, s70 offen")
            a.i("s_waitcnt vmcnt(0)")

    def emit(self):
        self.build()
        body = self.a.text()
        hdr = f"""; Fused LayerNorm + MQA attention + ReLU FFN + gated residual, one persistent workgroup per CU.
; @launch grid=(256,1,1) block=(512,1,1) lds={LDS_TOTAL}
.amdgcn_target "amdgcn-amd-amdhsa--gfx950"
.text
.globl {NAME}_kernel
.p2align 8
.type {NAME}_kernel,@function
{NAME}_kernel:
"""
        ftr = f""".section .rodata,"a"
.p2align 6
.amdhsa_kernel {NAME}_kernel
  .amdhsa_next_free_vgpr 256
  .amdhsa_next_free_sgpr 102
  .amdhsa_accum_offset 256
  .amdhsa_group_segment_fixed_size 0
  .amdhsa_kernarg_size 88
  .amdhsa_user_sgpr_count 2
  .amdhsa_user_sgpr_kernarg_segment_ptr 1
  .amdhsa_system_sgpr_workgroup_id_x 1
  .amdhsa_float_denorm_mode_32 3
.end_amdhsa_kernel
"""
        return hdr + body + ftr

    def hazards(self):
        ins = [t for k, t in self.a.lines if k == 'i']
        probs = check_hazards(ins, "linear")
        body = [t for k, t in self.a.lines[self.loop_start:self.loop_end] if k == 'i']
        probs += check_hazards(body[-40:] + body[:40], "att-backedge")
        return probs

if __name__ == "__main__":
    opt = {}
    out = None
    for arg in sys.argv[1:]:
        if "=" in arg:
            k, v = arg.split("=", 1); opt[k] = int(v) if v.lstrip('-').isdigit() else v
        else: out = arg
    g = Gen(opt)
    txt = g.emit()
    pr = g.hazards()
    for p in pr: print("HAZARD:", p)
    open(out or "k.s", "w").write(txt)
    n = sum(1 for k, t in g.a.lines if k == 'i')
    print(f"wrote {out or 'k.s'}: {n} instructions, {len(pr)} hazards")
```

```python
import sys, struct
from asmlib import Asm, check_hazards

NAME = "recurrent_scan__grouped_kv_mqa__dense_activation_relu__prompt"

XN    = 0
BST   = 81920
BPRIV = 9216
NS1   = 4
WKI   = BST
AREG  = 118784
QST   = AREG
APRIV = 11136
NSQ   = 10
RSLOT = 11136
RSHARE = 2688
KVCH  = 12288
BREG  = 29696
CTRL  = 163328
LDS_TOTAL = 163840
VROW  = 352
VFR   = 2 * VROW
KV_KH = 4096
KV_V  = 5120
C_ARR, C_KVD, C_ABAR, C_QDONE, C_KVRDY, C_XND, C_HD, C_BBAR, C_OD, C_GO, C_HRDY, C_ORDY, C_KVS, C_QISS = [4 * i for i in range(14)]
CDUMMY = 128

WS_X    = 0
WS_FKV  = 0x1000
WS_FH   = 0x4000
WS_FO   = 0x6000
WS_KN   = 0x8000
WS_VN   = 0x8400
WS_KV   = 0x10000
WS_H    = 0x100000
WS_O    = 0x800000
WS_DBG  = 0xB00000
WS_PROF = 0x1300000
WS_END  = 0x1400000

QSCALE = 0.22360679774997896 * 1.4426950408889634

def f2u(x): return struct.unpack("<I", struct.pack("<f", x))[0]
def hx(x): return "0x%08x" % (x & 0xffffffff)

sW, sRB, sCG, sN, sWR = "s3", "s4", "s5", "s6", "s7"
SRD_X, SRD_WQ, SRD_WKV, SRD_WO, SRD_W1, SRD_W2, SRD_OUT, SRD_WS = [f"s[{8+4*i}:{11+4*i}]" for i in range(8)]
sDBG, sWSP = "s[58:59]", "s[60:61]"

SPIN_LDS = 400000
SPIN_GLB = 40000

class Gen:
    def __init__(self, opt):
        self.o = opt
        self.a = Asm()

    def vr(self, base, n): return f"v[{base}:{base+n-1}]"

    def lds_spin_ge(self, cnt_off, target, vtmp, vctlr, stmp="s62", sleep=1):
        a = self.a
        L = a.newlabel("spin"); Ld = a.newlabel("spind")
        a.i(f"s_mov_b32 {stmp}, 0")
        a.label(L)
        a.i(f"ds_read_b32 {vtmp}, {vctlr} offset:{cnt_off}")
        a.i("s_waitcnt lgkmcnt(0)")
        a.i(f"v_cmp_gt_u32 vcc, {target}, {vtmp}")
        a.i(f"s_cbranch_vccz {Ld}")
        a.i(f"s_add_u32 {stmp}, {stmp}, 1")
        a.i(f"s_cmp_lt_u32 {stmp}, {SPIN_LDS}")
        if sleep: a.i(f"s_sleep {sleep}")
        a.i(f"s_cbranch_scc1 {L}")
        a.label(Ld)
        a.lg = []

    def glb_poll(self, voff, soff, vtmp, stmp="s62", sleep=4):
        a = self.a
        L = a.newlabel("poll"); Ld = a.newlabel("polld")
        a.i(f"s_mov_b32 {stmp}, 0")
        a.label(L)
        a.i(f"buffer_load_dword {vtmp}, {voff}, {SRD_WS}, {soff} offen sc1")
        a.i("s_waitcnt vmcnt(0)")
        a.i(f"v_cmp_ne_u32 vcc, {sN}, {vtmp}")
        a.i(f"s_cbranch_vccz {Ld}")
        a.i(f"s_add_u32 {stmp}, {stmp}, 1")
        a.i(f"s_cmp_lt_u32 {stmp}, {SPIN_GLB}")
        a.i(f"s_sleep {sleep}")
        a.i(f"s_cbranch_scc1 {L}")
        a.label(Ld)
        a.vm = []

    def one_wave_poll(self, flag_base, rdy_off, pre=None, sleep=4, rsleep=2):
        a = self.a
        Lw = a.newlabel("opw"); Lj = a.newlabel("opj")
        keep = list(a.vm)
        a.i(f"s_cmp_lg_u32 {sWR}, 0")
        a.i(f"s_cbranch_scc1 {Lw}")
        if pre: pre()
        a.i("v_and_b32 v246, 7, v0")
        a.i("v_lshlrev_b32 v246, 2, v246")
        a.i(f"s_lshl_b32 s63, {sRB}, 7")
        a.i(f"s_add_u32 s63, s63, {flag_base}")
        self.glb_poll("v246", "s63", "v247", sleep=sleep)
        a.i(f"ds_add_u32 {self.B_CW}, {self.B_ONE} offset:{rdy_off}")
        a.i(f"s_branch {Lj}")
        a.label(Lw)
        self.lds_spin_ge(rdy_off, 1, "v246", self.B_CR, sleep=rsleep)
        a.label(Lj)
        a.i("s_waitcnt lgkmcnt(0)")
        a.vm = keep; a.lg = []

    def lds_count(self, cnt_off, vctlw, vone):
        return self.a.lds(f"ds_add_u32 {vctlw}, {vone} offset:{cnt_off}")

    def dump_regs(self, base, n, slot, vlane16, cond_wave=None):
        a = self.a
        a.i("s_lshl_b32 s70, s2, 3"); a.i(f"s_add_u32 s70, s70, {sW}")
        a.i("s_mul_i32 s70, s70, 0x4000")
        a.i(f"s_add_u32 s70, s70, {WS_DBG + 0x0}")
        for g in range(n // 4):
            a.i(f"s_add_u32 s71, s70, {(slot + g) * 1024}")
            a.i(f"buffer_store_dwordx4 v[{base+4*g}:{base+4*g+3}], {vlane16}, {SRD_WS}, s71 offen")
        a.i("s_waitcnt vmcnt(0)")
        a.vm = []

    def stamp(self, k, cyc=False, lvl=1):
        if self.o.get('prof') != lvl and not (k <= 2 and self.o.get('prof')): return
        a = self.a
        a.i("s_memtime s[56:57]" if cyc else "s_memrealtime s[56:57]")
        a.i("s_waitcnt lgkmcnt(0)")
        a.i(f"s_mov_b32 s{40+k}, s56")
        a.lg = []

    def stamp_flush(self):
        if not self.o.get('prof'): return
        a = self.a
        a.i("s_mov_b64 exec, 1")
        a.i("s_lshl_b32 s62, s2, 3")
        a.i(f"s_add_u32 s62, s62, {sW}")
        a.i("s_lshl_b32 s62, s62, 6")
        a.i(f"s_add_u32 s62, s62, {WS_PROF}")
        a.i("v_mov_b32 v1, 0")
        for g in range(4):
            for j in range(4): a.i(f"v_mov_b32 v{4+j}, s{40+4*g+j}")
            a.i(f"buffer_store_dwordx4 v[4:7], v1, {SRD_WS}, s62 offen offset:{16*g}")
            a.nop(2)
        a.i("s_mov_b64 exec, -1")

    def l2_prefetch(self, srd, total_bytes, ninstr, vtmp, vdst, sub_sgpr, nsub):
        a = self.a
        st = self.o.get('pfstride', 128)
        lines = total_bytes // st
        per_cu = -(-lines // 32); per_w = -(-per_cu // nsub); per_i = -(-per_w // ninstr)
        assert per_i <= 64, per_i
        a.i(f"s_lshr_b32 s62, {sRB}, 3")
        a.i(f"s_lshl_b32 s63, {sCG}, 2")
        a.i("s_add_u32 s62, s62, s63")
        a.i(f"s_mul_i32 s62, s62, {per_cu}")
        a.i(f"s_mul_i32 s63, {sub_sgpr}, {per_w}")
        a.i("s_add_u32 s62, s62, s63")
        a.i(f"v_min_u32 {vtmp}, {per_i - 1}, v0")
        a.i(f"v_add_u32 {vtmp}, s62, {vtmp}")
        a.i(f"v_mul_u32_u24 {vtmp}, {st}, {vtmp}")
        toks = []
        for i in range(ninstr):
            a.i(f"s_mov_b32 s63, {i * per_i * st}")
            toks.append(a.vmem(f"buffer_load_dword {vdst}, {vtmp}, {srd}, s63 offen"))
        return toks

    def prologue(self):
        a = self.a
        a.i("s_cmp_ge_u32 s2, 256")
        a.i("s_cbranch_scc1 L_END")
        if self.o.get('prof'): a.i("s_memrealtime s[94:95]")
        a.i("s_load_dwordx16 s[40:55], s[0:1], 0")
        a.i("s_load_dwordx4 s[56:59], s[0:1], 64")
        a.i("s_load_dwordx2 s[60:61], s[0:1], 80")
        a.i("v_lshrrev_b32 v1, 6, v0")
        a.i("v_and_b32 v0, 63, v0")
        a.i("s_and_b32 s62, s2, 1")
        a.i("s_lshl_b32 s62, s62, 2")
        a.i("s_lshr_b32 s63, s2, 6")
        a.i(f"s_add_u32 {sCG}, s62, s63")
        a.i(f"v_readfirstlane_b32 {sW}, v1")
        a.i("s_bfe_u32 s62, s2, 0x20001")
        a.i("s_lshl_b32 s62, s62, 3")
        a.i("s_bfe_u32 s63, s2, 0x30003")
        a.i(f"s_add_u32 {sRB}, s62, s63")
        a.i("v_lshrrev_b32 v2, 3, v0")
        a.i("v_and_b32 v3, 7, v0")
        a.i(f"s_and_b32 {sWR}, {sW}, 3")
        a.i(f"s_and_b32 s65, {sCG}, 1")
        a.i("s_lshl_b32 s65, s65, 2")
        a.i(f"s_xor_b32 s97, s65, {sW}")
        a.i("s_lshl_b32 s62, s97, 3")
        a.i(f"s_mul_i32 s98, {sRB}, 81920")
        a.i("v_add_u32 v4, s62, v2")
        a.i("v_mul_u32_u24 v4, 1280, v4")
        a.i("v_lshl_add_u32 v4, v3, 4, v4")
        a.i("s_waitcnt lgkmcnt(0)")
        def srd(base, lo, size):
            a.i(f"s_mov_b32 s{base}, s{lo}")
            a.i(f"s_mov_b32 s{base+1}, s{lo+1}")
            a.i(f"s_mov_b32 s{base+2}, {size}")
            a.i(f"s_mov_b32 s{base+3}, 0x20000")
        srd(8, 40, 2621440)
        Lx = a.newlabel("xa")
        a.i(f"s_cmp_ge_u32 {sW}, 4")
        a.i(f"s_cbranch_scc1 {Lx}")
        self.x_loads()
        a.label(Lx)
        a.i(f"s_load_dword {sN}, {sWSP}, {WS_X}")
        srd(12, 42, 819200)
        a.i(f"s_cmp_eq_u32 {sCG}, 4")
        a.i("s_cselect_b32 s16, s46, s44")
        a.i("s_cselect_b32 s17, s47, s45")
        a.i("s_mov_b32 s18, 25600")
        a.i("s_mov_b32 s19, 0x20000")
        srd(20, 48, 819200)
        srd(24, 52, 2211840)
        srd(28, 54, 2211840)
        srd(32, 56, 2621440)
        srd(36, 60, WS_END)
        for r in (200, 202, 230, 231, 253, 181, 215, 245, 220, 221, 222, 223, 224, 225, 226, 227, 228, 14, 15, 250): a.i(f"v_mov_b32 v{r}, 0")
        if self.o.get('prof'):
            for k in range(16): a.i(f"s_mov_b32 s{40+k}, 0")
            a.i("s_mov_b32 s55, s94")
        self.stamp(0)
        if self.o.get('span'):
            a.i("s_memrealtime s[90:91]")
            a.i("s_waitcnt lgkmcnt(0)")
            a.i("s_mov_b32 s101, s90")

    def layernorm(self):
        a = self.a
        a.i("v_lshrrev_b32 v5, 1, v3")
        a.i("v_lshlrev_b32 v5, 10, v5")
        a.i("v_and_b32 v6, 1, v3")
        a.i("v_lshlrev_b32 v6, 9, v6")
        a.i("v_xor_b32 v7, v2, v3")
        a.i("v_lshlrev_b32 v7, 4, v7")
        a.i("v_add3_u32 v5, v5, v6, v7")
        a.i("s_and_b32 s62, s97, 3")
        a.i("s_lshl_b32 s62, s62, 7")
        a.i("s_lshr_b32 s64, s97, 2")
        a.i("s_mul_i32 s64, s64, 40960")
        a.i("s_add_u32 s62, s62, s64")
        a.i("v_add_u32 v5, s62, v5")
        Lz = a.newlabel("nz")
        a.i(f"s_cmp_lg_u32 {sW}, 0")
        a.i(f"s_cbranch_scc1 {Lz}")
        a.i("v_lshlrev_b32 v6, 2, v0")
        a.i(f"v_add_u32 v6, {CTRL}, v6")
        a.i("v_mov_b32 v7, 0")
        a.i("ds_write_b32 v6, v7")
        a.label(Lz)
        a.i("s_mov_b32 s62, 0x3f803f80")
        a.i("s_mov_b32 s63, 0xffff0000")
        for k in range(4): a.i(f"v_mov_b32 v{64+k}, 0")
        a.nop(1)
        X = lambda j: f"v{16+j}"
        for j in range(40):
            a.i(f"v_dot2_f32_bf16 v{64+(j&1)}, {X(j)}, s62, v{64+(j&1)}")
            a.i(f"v_dot2_f32_bf16 v{66+(j&1)}, {X(j)}, {X(j)}, v{66+(j&1)}")
        a.nop(3)
        a.i("v_add_f32 v64, v64, v65")
        a.i("v_add_f32 v66, v66, v67")
        a.nop(1)
        for dpp in ("quad_perm:[1,0,3,2]", "quad_perm:[2,3,0,1]", "row_half_mirror"):
            a.i(f"v_add_f32_dpp v64, v64, v64 {dpp} row_mask:0xf bank_mask:0xf")
            a.i(f"v_add_f32_dpp v66, v66, v66 {dpp} row_mask:0xf bank_mask:0xf")
            a.nop(1)
        a.i(f"v_mul_f32 v64, {hx(f2u(1.0/640))}, v64")
        a.i(f"v_mul_f32 v66, {hx(f2u(1.0/640))}, v66")
        a.i("v_fma_f32 v66, -v64, v64, v66")
        a.i("v_max_f32 v66, 0, v66")
        a.i(f"v_add_f32 v66, {hx(f2u(1e-5))}, v66")
        a.i("v_rsq_f32 v68, v66")
        a.nop(1)
        a.i("v_mov_b32 v69, v68")
        a.i("v_mul_f32 v70, v64, v68")
        a.i("v_sub_f32 v70, 0, v70")
        a.i("v_mov_b32 v71, v70")
        self.stamp(3, lvl=2)
        self.role_prefetch()
        a.label("L_LN2")
        self.stamp(4, lvl=2)
        a.i("s_mov_b32 s63, 0xffff0000")
        for g in range(10):
            for d in range(4):
                j = 4 * g + d
                t = 56 + 2 * (j & 3)
                a.i(f"v_lshlrev_b32 v{t}, 16, {X(j)}")
                a.i(f"v_and_b32 v{t+1}, s63, {X(j)}")
            for d in range(4):
                j = 4 * g + d
                t = 56 + 2 * (j & 3)
                a.i(f"v_pk_fma_f32 v[{t}:{t+1}], v[{t}:{t+1}], v[68:69], v[70:71]")
            for d in range(4):
                j = 4 * g + d
                t = 56 + 2 * (j & 3)
                a.i(f"v_cvt_pk_bf16_f32 {X(j)}, v{t}, v{t+1}")
            a.i(f"ds_write_b128 v5, v[{16+4*g}:{19+4*g}] offset:{4096*g}")
        a.i("s_waitcnt lgkmcnt(0)")
        self.stamp(5, lvl=2)
        Lnw = a.newlabel("nw")
        a.i(f"s_cmp_lt_u32 {sW}, 4")
        a.i(f"s_cbranch_scc1 {Lnw}")
        a.i(f"s_and_b32 s62, {sCG}, 3")
        a.i("s_cmp_lg_u32 s62, 0")
        a.i(f"s_cbranch_scc1 {Lnw}")
        a.i("s_waitcnt vmcnt(0)")
        a.label(Lnw)
        a.i("s_barrier")
        a.lg = []

    def xn_addr(self, vA, vB, vt0, vt1, phase_sgpr=None, base_sgpr=None, swap_sgpr=None):
        a = self.a
        a.i(f"v_and_b32 {vt0}, 31, v0")
        a.i(f"v_lshrrev_b32 {vt1}, 5, v0")
        for q in range(4):
            r = f"v{vA+q}"
            if phase_sgpr is None:
                a.i(f"v_add_u32 {r}, {2*q}, {vt1}")
            else:
                a.i(f"s_add_u32 s62, {phase_sgpr}, {q}")
                a.i("s_and_b32 s62, s62, 3")
                a.i("s_lshl_b32 s62, s62, 1")
                a.i(f"v_add_u32 {r}, s62, {vt1}")
            a.i(f"v_xor_b32 {r}, {r}, {vt0}")
            a.i(f"v_lshlrev_b32 {r}, 4, {r}")
            a.i(f"v_lshl_add_u32 {r}, {vt1}, 9, {r}")
            if base_sgpr is not None:
                a.i(f"v_add_u32 {r}, {base_sgpr}, {r}")
            if vB is not None: a.i(f"v_add_u32 v{vB+q}, 40960, {r}")

    WRAPS = (8, 12, 16, 20, 28, 32, 36)
    def rot_setup(self, stride, sK, sRot):
        a = self.a
        a.i(f"s_and_b32 s62, {sRB}, 7")
        a.i("s_lshr_b32 s63, s62, 2")
        a.i("s_add_u32 s62, s62, s63")
        a.i(f"s_lshl_b32 {sRot}, s62, 2")
        if not self.o.get('rot', 1): a.i(f"s_mov_b32 {sRot}, 0")
        a.i(f"s_mul_i32 {sK}, {sRot}, {stride}")
    def rot_next(self, stride, sK, ks=None):
        a = self.a
        a.i(f"s_add_u32 {sK}, {sK}, {stride}")
        if ks is None or (ks + 1) in self.WRAPS:
            a.i(f"s_cmp_eq_u32 {sK}, {40*stride}")
            a.i(f"s_cselect_b32 {sK}, 0, {sK}")
    def rot_xn_base(self, vA, vB, sRot):
        a = self.a
        a.i(f"s_lshl_b32 s62, {sRot}, 10")
        for q in range(4):
            a.i(f"v_add_u32 v{vA+q}, s62, v{vA+q}")
            a.i(f"v_add_u32 v{vB+q}, s62, v{vB+q}")
    def rot_xn_seg(self, vA, vB, sRot, ks):
        a = self.a
        if ks not in self.WRAPS: return
        L = a.newlabel("wrap")
        a.i(f"s_cmp_eq_u32 {sRot}, {40 - ks}")
        a.i(f"s_cbranch_scc0 {L}")
        for q in range(4):
            a.i(f"v_subrev_u32 v{vA+q}, 40960, v{vA+q}")
            a.i(f"v_subrev_u32 v{vB+q}, 40960, v{vB+q}")
        a.label(L)
    def seg_imm(self, ks):
        return ks * 1024

    def ctl_regs(self, vW, vR, vOne):
        a = self.a
        a.i(f"v_lshlrev_b32 {vW}, 2, v0")
        a.i(f"v_add_u32 {vW}, {CTRL + CDUMMY}, {vW}")
        a.i(f"v_mov_b32 {vR}, {CTRL}")
        a.i("v_cmp_eq_u32 vcc, 0, v0")
        a.i(f"v_mov_b32 {vOne}, 1")
        a.nop(1)
        a.i(f"v_cndmask_b32 {vW}, {vW}, {vR}, vcc")

    vDq, vTRq, vTRk = "v200", "v201", "v202"
    A_XA, A_XB = 204, 208
    A_CW, A_CR, A_ONE, A_L16 = "v212", "v213", "v214", "v215"
    A_JA, A_JB = 220, 224

    def wq_dma(self, ks):
        a = self.a
        a.i(f"s_add_u32 m0, s66, {(ks % NSQ) * 1024}")
        a.nop(1)
        t = a.vmem(f"buffer_load_dwordx4 {self.vDq}, {SRD_WQ}, s67 offen lds")
        self.rot_next(20480, "s67", ks)
        return t

    def a_setup_private(self):
        a = self.a
        a.i(f"s_mul_i32 s66, {sWR}, {APRIV}")
        a.i(f"s_add_u32 s66, s66, {QST}")

    def a_prefetch_q_addr(self):
        a = self.a
        a.i("v_lshrrev_b32 v216, 2, v0")
        a.i("v_mul_u32_u24 v216, 1280, v216")
        a.i("v_and_b32 v217, 3, v0")
        a.i("v_cmp_eq_u32 vcc, 3, v217")
        a.i(f"v_lshl_add_u32 {self.vDq}, v217, 4, v216")
        a.i("v_mov_b32 v217, 0x40000000")
        a.i(f"v_cndmask_b32 {self.vDq}, {self.vDq}, v217, vcc")
        a.i(f"s_lshl_b32 s62, {sCG}, 2")
        a.i(f"s_add_u32 s62, s62, {sWR}")
        a.i("s_mul_i32 s62, s62, 40")
        a.i(f"s_cmp_eq_u32 {sWR}, 3")
        a.i("s_cselect_b32 s63, 8, 0")
        a.i("s_sub_u32 s62, s62, s63")
        a.i(f"v_add_u32 {self.vDq}, s62, {self.vDq}")

    def x_loads(self):
        a = self.a
        for i in range(10):
            a.i(f"buffer_load_dwordx4 v[{16+4*i}:{19+4*i}], v4, {SRD_X}, s98 offen offset:{128*i}")

    def role_setup(self):
        a = self.a
        a.i(f"s_cmp_ge_u32 {sW}, 4")
        a.i("s_cbranch_scc1 L_SET_B")
        self.a_setup_private()
        self.a_prefetch_q_addr()
        self.rot_setup(20480, "s67", "s69")
        self.ctl_regs(self.A_CW, self.A_CR, self.A_ONE)
        a.i(f"v_lshlrev_b32 {self.A_L16}, 4, v0")
        self.xn_addr(self.A_XA, self.A_XB, "v216", "v217")
        self.rot_xn_base(self.A_XA, self.A_XB, "s69")
        a.i(f"s_cmp_eq_u32 {sWR}, 3")
        a.i("s_cselect_b32 s63, 8, 0")
        a.i("s_add_u32 s63, s63, s66")
        self.tr_addr_nat64(self.vTRq, "s63", 64)
        self.ring_addr()
        a.i(f"s_and_b32 s62, {sRB}, 7")
        a.i("s_mul_i32 s62, s62, 240")
        a.i(f"s_mul_i32 s63, {sWR}, 60")
        a.i("s_add_u32 s62, s62, s63")
        a.i("v_min_u32 v216, 59, v0")
        a.i("v_add_u32 v216, s62, v216")
        a.i("v_mul_u32_u24 v217, 0x5556, v216")
        a.i("v_lshrrev_b32 v217, 16, v217")
        a.i("v_mul_u32_u24 v218, 3, v217")
        a.i("v_sub_u32 v216, v216, v218")
        a.i("v_mul_u32_u24 v217, 1280, v217")
        a.i("v_lshl_add_u32 v202, v216, 7, v217")
        a.i(f"s_mul_i32 s62, {sCG}, 160")
        a.i("s_and_b32 s100, s62, 0xffffff80")
        a.i("s_branch L_SET_J")
        a.label("L_SET_B")
        a.i(f"s_mul_i32 s66, {sWR}, {BPRIV}")
        a.i(f"s_add_u32 s66, s66, {BST}")
        a.i(f"s_lshr_b32 s62, {sCG}, 2")
        a.i(f"s_sub_u32 s63, {sCG}, s62")
        a.i("s_sub_u32 s63, s63, 1")
        a.i("s_lshl_b32 s63, s63, 2")
        a.i(f"s_add_u32 s68, s63, {sWR}")
        a.i("s_mov_b32 s99, 1")
        a.i(f"s_and_b32 s63, {sCG}, 3")
        a.i("s_cmp_lg_u32 s63, 0")
        Lp = a.newlabel("pair")
        a.i(f"s_cbranch_scc1 {Lp}")
        a.i("s_lshl_b32 s62, s62, 1")
        a.i(f"s_add_u32 s68, s62, {sWR}")
        a.i("s_add_u32 s68, s68, 22")
        a.i(f"s_cmp_ge_u32 {sWR}, 2")
        a.i("s_cselect_b32 s99, 1, 0")
        a.i("s_cmp_ge_u32 s68, 27")
        a.i("s_cselect_b32 s99, 0, s99")
        a.i("s_cselect_b32 s68, 0, s68")
        a.label(Lp)
        a.i("s_lshl_b32 s68, s68, 1")
        a.i("s_lshl_b32 s62, s68, 6")
        self.pair_dma_addr(self.vD1a, self.vD1b, 3456, "s62")
        self.ctl_regs(self.B_CW, self.B_CR, self.B_ONE)
        a.i(f"v_lshlrev_b32 {self.B_L16}, 4, v0")
        self.rot_setup(16 * 3456, "s67", "s69")
        self.xn_addr(self.B_XA, self.B_XB, "v246", "v247")
        self.rot_xn_base(self.B_XA, self.B_XB, "s69")
        self.pair_tr_addr(self.vTRa, self.vTRb, 8, "s66")
        self.out_tiles_setup()
        self.out_mixed_addr()
        self.ffn2_addr()
        a.i(f"s_and_b32 s64, {sRB}, 7")
        a.i("s_mul_i32 s62, s64, 80")
        a.i("v_min_u32 v246, 39, v0")
        a.i("v_add_u32 v246, s62, v246")
        a.i("v_mul_u32_u24 v246, 3456, v246")
        a.i("s_lshl_b32 s62, s68, 6")
        a.i("v_add_u32 v226, s62, v246")
        a.i("s_mul_i32 s62, s64, 54")
        a.i(f"s_mul_i32 s63, {sWR}, 432")
        a.i("s_add_u32 s62, s62, s63")
        a.i("v_min_u32 v246, 53, v0")
        a.i("v_add_u32 v246, s62, v246")
        a.i("v_mul_u32_u24 v227, 1280, v246")
        a.i("s_mul_i32 s62, s64, 20")
        a.i(f"s_mul_i32 s63, {sWR}, 160")
        a.i("s_add_u32 s62, s62, s63")
        a.i("v_min_u32 v246, 39, v0")
        a.i("v_cmp_gt_u32 vcc, 20, v246")
        a.i("v_subrev_u32 v247, 20, v246")
        a.i("v_mov_b32 v248, s81")
        a.i("v_mov_b32 v249, s80")
        a.i("v_cndmask_b32 v246, v247, v246, vcc")
        a.i("v_cndmask_b32 v248, v248, v249, vcc")
        a.i("v_add_u32 v246, s62, v246")
        a.i("v_mul_u32_u24 v246, 1280, v246")
        a.i("v_add_u32 v228, v246, v248")
        a.i(f"s_mov_b32 s62, {WKI}")
        self.tr_addr_nat64(self.B_TRK, "s62", 40, "v246", "v247")
        a.i(f"s_and_b32 s64, {sWR}, 1")
        a.i("s_mul_i32 s64, s64, 40960")
        self.xn_addr(self.B_JA, None, "v246", "v247", base_sgpr="s64")
        a.i("v_lshlrev_b32 v253, 4, v0")
        a.i(f"s_mul_i32 s62, {sWR}, 6400")
        a.i("v_add_u32 v253, s62, v253")
        self.x_loads()
        a.i(f"s_and_b32 s64, {sCG}, 3")
        a.i("s_cmp_lg_u32 s64, 0")
        a.i("s_cbranch_scc1 L_SET_J")
        a.i(f"s_add_u32 s63, s62, {WKI}")
        a.i("s_mov_b32 m0, s63")
        a.i("s_mov_b32 s62, 0")
        for j in range(4):
            a.i(f"buffer_load_dwordx4 v253, {SRD_WKV}, s62 offen offset:{1024*j} lds")
        a.i("s_add_u32 m0, s63, 4096")
        a.i("s_mov_b32 s62, 4096")
        for j in range(3):
            a.i(f"buffer_load_dwordx4 v253, {SRD_WKV}, s62 offen offset:{1024*j} lds")
        a.i("s_waitcnt vmcnt(7)")
        a.i("s_branch L_SET_X")
        a.label("L_SET_J")
        a.i("s_waitcnt vmcnt(0)")
        a.label("L_SET_X")

    def role_prefetch(self):
        a = self.a
        Lb = a.newlabel("pfb")
        a.i(f"s_cmp_ge_u32 {sW}, 4")
        a.i(f"s_cbranch_scc1 {Lb}")
        a.vm = []
        self.qtok = [self.wq_dma(ks) for ks in range(NSQ)]
        a.i("s_branch L_LN2")
        a.label(Lb)

    def tr_addr_nat64(self, vdst, base_sgpr, pitch, t0="v216", t1="v217"):
        a = self.a
        a.i(f"v_lshrrev_b32 {t0}, 5, v0")
        a.i(f"v_lshlrev_b32 {t0}, 3, {t0}")
        a.i(f"v_bfe_u32 {t1}, v0, 2, 2")
        a.i(f"v_add_u32 {t0}, {t0}, {t1}")
        a.i(f"v_mul_u32_u24 {t0}, {pitch}, {t0}")
        a.i(f"v_bfe_u32 {t1}, v0, 4, 1")
        a.i(f"v_lshl_add_u32 {t0}, {t1}, 5, {t0}")
        a.i(f"v_and_b32 {t1}, 3, v0")
        a.i(f"v_lshl_add_u32 {t0}, {t1}, 3, {t0}")
        a.i(f"v_add_u32 {vdst}, {base_sgpr}, {t0}")

    def wave_max(self, regs):
        a = self.a
        for dpp in ("row_shr:1 row_mask:0xf", "row_shr:2 row_mask:0xf", "row_shr:4 row_mask:0xf", "row_shr:8 row_mask:0xf",
                    "row_bcast:15 row_mask:0xa", "row_bcast:31 row_mask:0xc"):
            a.nop(2 if len(regs) == 1 else (1 if len(regs) == 2 else 0))
            for r in regs:
                a.i(f"v_max_f32_dpp {r}, {r}, {r} {dpp} bank_mask:0xf")
        a.nop(1)

    def kv_job(self, isV):
        a = self.a
        a.c("---- K/V projection job: B waves 0/1 = m-tile, full K ----")
        D = 16
        def fr(kk): return 48 + 8 * (kk % 4)
        toks = {}
        def reads(kk):
            b = fr(kk); t = []
            t.append(a.lds(f"ds_read_b64_tr_b16 v[{b}:{b+1}], {self.B_TRK} offset:{kk*640}"))
            t.append(a.lds(f"ds_read_b64_tr_b16 v[{b+2}:{b+3}], {self.B_TRK} offset:{kk*640+160}"))
            t.append(a.lds(f"ds_read_b128 v[{b+4}:{b+7}], v{self.B_JA + kk % 4} offset:{kk*1024}"))
            toks[kk] = t
        for kk in range(3): reads(kk)
        for kk in range(40):
            a.wait(lg=toks[kk])
            b = fr(kk)
            W = f"v[{b}:{b+3}]"; X = f"v[{b+4}:{b+7}]"
            C = "0" if kk == 0 else f"v[{D}:{D+15}]"
            if isV: a.i(f"v_mfma_f32_32x32x16_bf16 v[{D}:{D+15}], {X}, {W}, {C}")
            else:   a.i(f"v_mfma_f32_32x32x16_bf16 v[{D}:{D+15}], {W}, {X}, {C}")
            if kk + 3 < 40: reads(kk + 3)
        self.stamp(7, lvl=2)
        a.i(f"s_lshr_b32 s62, {sRB}, 1")
        a.i(f"s_mul_i32 s62, s62, {KVCH}")
        a.i(f"s_add_u32 s62, s62, {WS_KV}")
        a.i(f"s_and_b32 s63, {sRB}, 1")
        a.i("s_lshl_b32 s65, s63, 1")
        a.i(f"s_add_u32 s65, s65, {sWR}")
        a.i("v_and_b32 v93, 31, v0")
        a.i("v_lshrrev_b32 v95, 5, v0")
        if not isV:
            a.i("s_lshl_b32 s64, s65, 10")
            a.i("s_add_u32 s64, s62, s64")
            a.i("s_lshl_b32 s63, s63, 9")
            a.i("s_add_u32 s62, s62, s63")
            a.i(f"s_lshl_b32 s63, {sWR}, 3")
            a.i("s_add_u32 s62, s62, s63")
            a.i(f"s_add_u32 s62, s62, {KV_KH}")
            a.i("v_cmp_gt_u32 vcc, 32, v0")
            a.nop(2)
            for j in range(6): a.i(f"v_cvt_pk_bf16_f32 v{88+j if j < 4 else 96+j-4}, v{D+2*j}, v{D+2*j+1}")
            a.vmem(f"buffer_store_dwordx4 v[88:91], {self.B_L16}, {SRD_WS}, s64 offen sc1")
            a.i("s_mov_b32 exec_lo, -1"); a.i("s_mov_b32 exec_hi, 0")
            a.vmem(f"buffer_store_dwordx2 v[96:97], {self.B_L16}, {SRD_WS}, s62 offen sc1")
            a.i("s_mov_b64 exec, -1")
            a.i(f"v_mul_f32 v92, v{D+8}, v{D+8}")
            for j in range(9, 12): a.i(f"v_fmac_f32 v92, v{D+j}, v{D+j}")
            a.nop(1)
            a.i("v_cndmask_b32 v92, 0, v92, vcc")
            for j in range(8): a.i(f"v_fmac_f32 v92, v{D+j}, v{D+j}")
            a.i("v_mov_b32 v93, v92")
            a.nop(2)
            a.i("v_permlane32_swap_b32 v92, v93")
            a.nop(1)
            a.i("v_add_f32 v92, v92, v93")
            norm_base = WS_KN
        else:
            a.i(f"v_mul_u32_u24 v95, {VROW}, v95")
            a.i("v_lshl_add_u32 v95, v93, 4, v95")
            a.i("s_lshl_b32 s65, s65, 1")
            a.i(f"s_mul_i32 s65, s65, {VFR}")
            a.i("s_add_u32 s62, s62, s65")
            a.i(f"s_add_u32 s62, s62, {KV_V}")
            a.i("v_cmp_eq_u32 vcc, 20, v93")
            a.i("v_cmp_eq_u32 s[64:65], 21, v93")
            a.i("v_mov_b32 v94, 0x3f803f80")
            a.i("v_mov_b32 v98, 0")
            for j in range(8): a.i(f"v_cvt_pk_bf16_f32 v{80+j}, v{D+2*j}, v{D+2*j+1}")
            for j in range(8): a.i(f"v_cndmask_b32 v{80+j}, v{80+j}, v94, vcc")
            for j in range(8): a.i(f"v_cndmask_b32 v{80+j}, v{80+j}, v98, s[64:65]")
            a.i("s_mov_b32 exec_lo, 0x3fffff")
            a.i("s_mov_b32 exec_hi, 0x3fffff")
            a.vmem(f"buffer_store_dwordx4 v[80:83], v95, {SRD_WS}, s62 offen sc1")
            a.vmem(f"buffer_store_dwordx4 v[84:87], v95, {SRD_WS}, s62 offen offset:{VFR} sc1")
            a.i("s_mov_b64 exec, -1")
            a.i(f"v_max3_f32 v92, abs(v{D}), abs(v{D+1}), abs(v{D+2})")
            for j in range(3, 15, 2): a.i(f"v_max3_f32 v92, v92, abs(v{D+j}), abs(v{D+j+1})")
            a.i(f"v_max3_f32 v92, v92, abs(v{D+15}), abs(v{D+15})")
            a.i("v_cmp_gt_u32 vcc, 20, v93")
            a.nop(2)
            a.i("v_cndmask_b32 v92, 0, v92, vcc")
            norm_base = WS_VN
        self.stamp(9, lvl=2)
        self.wave_max(["v92"])
        a.i("v_readlane_b32 s63, v92, 63")
        a.i(f"s_lshl_b32 s62, {sRB}, 1")
        a.i(f"s_add_u32 s62, s62, {sWR}")
        a.i("s_lshl_b32 s62, s62, 2")
        a.i(f"s_add_u32 s62, s62, {norm_base}")
        a.i("v_mov_b32 v92, s63")
        a.i("v_mov_b32 v93, 0")
        a.i("s_mov_b64 exec, 1")
        a.vmem(f"buffer_store_dword v92, v93, {SRD_WS}, s62 offen sc1")
        a.i("s_mov_b64 exec, -1")
        a.wait(vm='all')
        self.stamp(10, lvl=2)
        a.lds(f"ds_add_rtn_u32 v248, {self.B_CW}, {self.B_ONE} offset:{C_KVD}")
        a.wait(lg='all')
        a.i("v_readfirstlane_b32 s62, v248")
        Lnf = a.newlabel("kvnf")
        a.nop(1)
        a.i("s_cmp_lg_u32 s62, 1")
        a.i(f"s_cbranch_scc1 {Lnf}")
        a.i("v_lshlrev_b32 v92, 8, v0")
        a.i(f"v_mov_b32 v93, {sN}")
        a.i(f"s_lshl_b32 s62, {sRB}, 1")
        a.i(f"s_add_u32 s62, s62, {1 if isV else 0}")
        a.i("s_lshl_b32 s62, s62, 2")
        a.i(f"s_add_u32 s62, s62, {WS_FKV}")
        a.i("s_mov_b32 exec_lo, -1"); a.i("s_mov_b32 exec_hi, 0")
        a.i(f"buffer_store_dword v93, v92, {SRD_WS}, s62 offen sc1")
        a.i("s_mov_b64 exec, -1")
        a.label(Lnf)
        a.vm = []

    def q_proj(self):
        a = self.a
        a.c("---- Q projection (transposed): wave = head, both m-tiles ----")
        NS = NSQ
        dt = self.qtok
        if self.o.get('kvgate', 0):
            Lgo = a.newlabel("qgo")
            a.i(f"s_and_b32 s62, {sCG}, 3")
            a.i("s_cmp_lg_u32 s62, 0")
            a.i(f"s_cbranch_scc1 {Lgo}")
            self.lds_spin_ge(C_KVD, 2, "v218", self.A_CR, sleep=1)
            a.label(Lgo)
        a.vm = list(dt); a.lg = []
        B = lambda ks: 48 + 12 * (ks % 3)
        dm = {k: dt[k] for k in range(NS)}
        toks = {}
        def reads(ks):
            a.wait(vm=dm[ks])
            b = B(ks); sl = (ks % NS) * 1024; t = []
            t.append(a.lds(f"ds_read_b64_tr_b16 v[{b}:{b+1}], {self.vTRq} offset:{sl}"))
            t.append(a.lds(f"ds_read_b64_tr_b16 v[{b+2}:{b+3}], {self.vTRq} offset:{sl+256}"))
            self.rot_xn_seg(self.A_XA, self.A_XB, "s69", ks)
            t.append(a.lds(f"ds_read_b128 v[{b+4}:{b+7}], v{self.A_XA + ks % 4} offset:{self.seg_imm(ks)}"))
            t.append(a.lds(f"ds_read_b128 v[{b+8}:{b+11}], v{self.A_XB + ks % 4} offset:{self.seg_imm(ks)}"))
            toks[ks] = t
        reads(0); reads(1)
        for ks in range(40):
            if ks in (0, 10, 20, 30): self.stamp(6 + ks // 10, lvl=2)
            a.wait(lg=toks[ks])
            b = B(ks)
            C = "0" if ks == 0 else "v[16:31]"
            a.i(f"v_mfma_f32_32x32x16_bf16 v[16:31], v[{b}:{b+3}], v[{b+4}:{b+7}], {C}")
            if ks + 2 < 40: reads(ks + 2)
            C = "0" if ks == 0 else "v[32:47]"
            a.i(f"v_mfma_f32_32x32x16_bf16 v[32:47], v[{b}:{b+3}], v[{b+8}:{b+11}], {C}")
            if ks + NS < 40: dm[ks + NS] = self.wq_dma(ks + NS)
            if ks == self.o.get('kvearly', -1):
                a.i("v_lshlrev_b32 v216, 2, v0")
                a.i(f"s_lshl_b32 s63, {sRB}, 8")
                a.i(f"s_add_u32 s101, s63, {WS_FKV}")
                self.kvtok = a.vmem(f"buffer_load_dword v188, v216, {SRD_WS}, s101 offen sc1")
            if ks + NS == 39: self.lds_count(C_QISS, self.A_CW, self.A_ONE)
        self.lds_count(C_XND, self.A_CW, self.A_ONE)
        self.lds_count(C_QDONE, self.A_CW, self.A_ONE)

    S_ = {'a': 16, 'b': 32}; O_ = {'a': 48, 'b': 64}; P_ = {'a': 80, 'b': 88}; C_ = {'a': 96, 'b': 112}
    QL = {'a': 128, 'b': 132}; QH = {'a': 136, 'b': 138}
    KL = [140, 144]; KH = [148, 152]; VV = [156, 164]
    vKL, vKH, vV, vCnt, vDkv = "v172", "v173", "v174", "v180", "v181"
    N2 = {'a': "v182", 'b': "v183"}

    def q_epilogue(self):
        a = self.a
        a.c("---- Q epilogue: scale, pack to bf16 B operands, squared norms ----")
        a.i("v_cmp_gt_u32 vcc, 32, v0")
        a.i(f"v_mov_b32 v216, {hx(f2u(QSCALE))}")
        a.i("v_mov_b32 v217, 0")
        a.nop(7)
        a.i("v_cndmask_b32 v217, v217, v216, vcc")
        for u, D in (('a', 16), ('b', 32)):
            for j in range(8): a.i(f"v_mul_f32 v{D+j}, v216, v{D+j}")
            for j in range(8, 12): a.i(f"v_mul_f32 v{D+j}, v217, v{D+j}")
            for j in range(4): a.i(f"v_cvt_pk_bf16_f32 v{self.QL[u]+j}, v{D+2*j}, v{D+2*j+1}")
            for j in range(2): a.i(f"v_cvt_pk_bf16_f32 v{self.QH[u]+j}, v{D+8+2*j}, v{D+9+2*j}")
            n = self.N2[u]
            a.i(f"v_mul_f32 {n}, v{D}, v{D}")
            for j in range(1, 12): a.i(f"v_fmac_f32 {n}, v{D+j}, v{D+j}")
        for u in "ab":
            a.i(f"v_mov_b32 v{218 if u=='a' else 219}, {self.N2[u]}")
        a.nop(1)
        a.i(f"v_permlane32_swap_b32 {self.N2['a']}, v218")
        a.i(f"v_permlane32_swap_b32 {self.N2['b']}, v219")
        a.nop(1)
        a.i(f"v_add_f32 {self.N2['a']}, {self.N2['a']}, v218")
        a.i(f"v_add_f32 {self.N2['b']}, {self.N2['b']}, v219")

    def qk(self, u, kl, kh, dst=None):
        S = self.S_[u] if dst is None else dst
        C = self.C_[u]
        m0 = f"v_mfma_f32_32x32x16_bf16 v[{S}:{S+15}], v[{kl}:{kl+3}], v[{self.QL[u]}:{self.QL[u]+3}], v[{C}:{C+15}]"
        m1 = f"v_mfma_f32_32x32x8_bf16 v[{S}:{S+15}], v[{kh}:{kh+1}], v[{self.QH[u]}:{self.QH[u]+1}], v[{S}:{S+15}]"
        return m0, m1
    def pv(self, u, vv):
        O = self.O_[u]; P = self.P_[u]
        m0 = f"v_mfma_f32_32x32x16_bf16 v[{O}:{O+15}], v[{vv}:{vv+3}], v[{P}:{P+3}], v[{O}:{O+15}]"
        m1 = f"v_mfma_f32_32x32x16_bf16 v[{O}:{O+15}], v[{vv+4}:{vv+7}], v[{P+4}:{P+7}], v[{O}:{O+15}]"
        return m0, m1

    def ring_addr(self):
        a = self.a
        a.i(f"v_add_u32 {self.vKL}, {AREG}, {self.A_L16}")
        a.i("v_and_b32 v216, 31, v0")
        a.i(f"v_lshlrev_b32 {self.vKH}, 4, v216")
        a.i(f"v_add_u32 {self.vKH}, {AREG + KV_KH}, {self.vKH}")
        a.i("v_min_u32 v217, 21, v216")
        a.i("v_cmp_eq_u32 vcc, 24, v216")
        a.i("v_lshrrev_b32 v219, 5, v0")
        a.i(f"v_mul_u32_u24 v219, {VROW}, v219")
        a.i("v_mov_b32 v218, 20")
        a.i("v_cndmask_b32 v217, v217, v218, vcc")
        a.i("v_lshl_add_u32 v217, v217, 4, v219")
        a.i(f"v_add_u32 {self.vV}, {AREG + KV_V}, v217")
        a.i(f"s_mul_i32 s62, {sWR}, {RSHARE}")
        a.i(f"v_add_u32 {self.vDkv}, s62, {self.A_L16}")
        a.i(f"s_add_u32 s72, s62, {AREG}")
        a.i("s_bfe_u32 s62, s2, 0x40003")
        if not self.o.get('rot', 1): a.i("s_mov_b32 s62, 0")
        a.i(f"s_mul_i32 s79, s62, {KVCH}")
        a.i(f"s_add_u32 s79, s79, {WS_KV}")

    def ring_dma(self, slot):
        a = self.a
        a.i(f"s_add_u32 m0, s72, {slot*RSLOT}")
        a.i(f"s_add_u32 s73, s79, {KVCH}")
        t = [a.vmem(f"buffer_load_dwordx4 {self.vDkv}, {SRD_WS}, s79 offen offset:{1024*j} sc1 lds") for j in range(3)]
        a.i(f"s_cmp_eq_u32 s73, {WS_KV + 16*KVCH}")
        a.i(f"s_cselect_b32 s79, {WS_KV}, s73")
        return t

    def att_init_regs(self):
        a = self.a
        for r in list(range(48, 80)) + list(range(88, 96)) + list(range(self.VV[1], self.VV[1] + 8)):
            a.i(f"v_mov_b32 v{r}, 0")

    def kv_wait(self):
        a = self.a
        a.c("---- wait for K/V of all row blocks ----")
        Lw = a.newlabel("kvw"); Lj = a.newlabel("kvj")
        if self.o.get('kvearly', -1) >= 0:
            a.vm = [self.kvtok]
            a.wait(vm=self.kvtok)
            a.i(f"v_cmp_ne_u32 vcc, {sN}, v188")
            Lslow = a.newlabel("kvslow")
            a.i(f"s_cbranch_vccnz {Lslow}")
            a.i(f"s_cmp_lg_u32 {sWR}, 0")
            a.i(f"s_cbranch_scc1 {Lj}")
            a.i(f"ds_add_u32 {self.A_CW}, {self.A_ONE} offset:{C_KVRDY}")
            a.i(f"s_branch {Lj}")
            a.label(Lslow)
        a.i(f"s_cmp_lg_u32 {sWR}, 0")
        a.i(f"s_cbranch_scc1 {Lw}")
        a.i("v_lshlrev_b32 v216, 2, v0")
        a.i(f"s_lshl_b32 s63, {sRB}, 8")
        a.i(f"s_add_u32 s63, s63, {WS_FKV}")
        self.glb_poll("v216", "s63", "v217", sleep=2)
        a.i(f"ds_add_u32 {self.A_CW}, {self.A_ONE} offset:{C_KVRDY}")
        a.i(f"s_branch {Lj}")
        a.label(Lw)
        self.lds_spin_ge(C_KVRDY, 1, "v218", self.A_CR, sleep=0)
        a.label(Lj)
        a.lg = []; a.vm = []
        a.i("s_waitcnt lgkmcnt(0)")

    def shift_setup(self):
        a = self.a
        a.c("---- softmax shift ----")
        a.i("v_lshlrev_b32 v216, 2, v0")
        a.i(f"s_mov_b32 s62, {WS_KN}")
        t1 = a.vmem(f"buffer_load_dword v184, v216, {SRD_WS}, s62 offen sc1")
        a.i(f"s_mov_b32 s63, {WS_VN}")
        t2 = a.vmem(f"buffer_load_dword v186, v216, {SRD_WS}, s63 offen sc1")
        self.lds_spin_ge(C_QDONE, 4, "v218", self.A_CR, sleep=0)
        pre = [self.ring_dma(c) for c in range(3)]
        self.lds_count(C_GO, self.A_CW, self.A_ONE)
        a.wait(vm=[t1, t2])
        self.wave_max(["v184", "v186"])
        a.i("v_readlane_b32 s62, v184, 63")
        a.i("v_readlane_b32 s64, v186, 63")
        a.nop(1)
        a.i("v_mov_b32 v184, s62")
        a.i("v_mov_b32 v186, s64")
        a.i("v_max_f32 v186, 1.0, v186")
        a.i("v_log_f32 v186, v186")
        a.i(f"v_mov_b32 v185, {hx(f2u(56.5))}")
        for u in "ab":
            n = self.N2[u]
            a.i(f"v_mul_f32 {n}, {n}, v184")
        a.i("v_fma_f32 v186, v186, -0.5, v185")
        for u in "ab": a.i(f"v_sqrt_f32 {self.N2[u]}, {self.N2[u]}")
        a.nop(1)
        for u in "ab": a.i(f"v_mul_f32 {self.N2[u]}, {hx(f2u(1.02))}, {self.N2[u]}")
        a.i(f"v_cmp_nle_f32 vcc, {self.N2['a']}, v186")
        a.i(f"v_cmp_nle_f32 s[64:65], {self.N2['b']}, v186")
        a.nop(1)
        a.i("s_or_b64 vcc, vcc, s[64:65]")
        if self.o.get('force_fallback'): a.i("s_mov_b64 vcc, -1")
        Lsafe = a.newlabel("safe")
        a.i(f"s_cbranch_vccz {Lsafe}")
        self.true_max_pass()
        a.label(Lsafe)
        for u in "ab":
            for j in range(16): a.i(f"v_mov_b32 v{self.C_[u]+j}, {self.N2[u]}")
        return pre

    def true_max_pass(self):
        a = self.a
        a.c("---- fallback: true row max ----")
        for u in "ab":
            for j in range(16): a.i(f"v_mov_b32 v{self.C_[u]+j}, 0")
            a.i(f"v_mov_b32 {self.N2[u]}, 0xff800000")
        a.i("v_and_b32 v216, 31, v0")
        a.i("v_lshlrev_b32 v216, 4, v216")
        a.i("s_mov_b32 s64, 0")
        L = a.newlabel("tm")
        a.label(L)
        a.i("s_lshr_b32 s62, s64, 2")
        a.i(f"s_mul_i32 s62, s62, {KVCH}")
        a.i(f"s_add_u32 s62, s62, {WS_KV}")
        a.i("s_and_b32 s63, s64, 3")
        a.i("s_lshl_b32 s65, s63, 10")
        a.i("s_add_u32 s65, s65, s62")
        a.i(f"buffer_load_dwordx4 v[{self.KL[0]}:{self.KL[0]+3}], {self.A_L16}, {SRD_WS}, s65 offen sc1")
        a.i("s_lshr_b32 s65, s63, 1")
        a.i("s_lshl_b32 s65, s65, 9")
        a.i("s_and_b32 s63, s63, 1")
        a.i("s_lshl_b32 s63, s63, 3")
        a.i("s_add_u32 s65, s65, s63")
        a.i("s_add_u32 s65, s65, s62")
        a.i("s_add_u32 s65, s65, 4096")
        a.i(f"buffer_load_dwordx2 v[{self.KH[0]}:{self.KH[0]+1}], v216, {SRD_WS}, s65 offen sc1")
        a.i("s_waitcnt vmcnt(0)")
        for u in "ab":
            for m in self.qk(u, self.KL[0], self.KH[0]): a.i(m)
        a.nop(12)
        for u in "ab":
            S = self.S_[u]
            for j in range(8): a.i(f"v_max3_f32 {self.N2[u]}, {self.N2[u]}, v{S+2*j}, v{S+2*j+1}")
        a.i("s_add_u32 s64, s64, 1")
        a.i("s_cmp_lt_u32 s64, 64")
        a.i(f"s_cbranch_scc1 {L}")
        a.i(f"v_mov_b32 v218, {self.N2['a']}")
        a.i(f"v_mov_b32 v219, {self.N2['b']}")
        a.nop(1)
        a.i(f"v_permlane32_swap_b32 {self.N2['a']}, v218")
        a.i(f"v_permlane32_swap_b32 {self.N2['b']}, v219")
        a.nop(1)
        a.i(f"v_max_f32 {self.N2['a']}, {self.N2['a']}, v218")
        a.i(f"v_max_f32 {self.N2['b']}, {self.N2['b']}, v219")
        a.i(f"v_sub_f32 {self.N2['a']}, 0, {self.N2['a']}")
        a.i(f"v_sub_f32 {self.N2['b']}, 0, {self.N2['b']}")

    def attention(self, pre):
        a = self.a
        a.c("---- attention main loop ----")
        a.wait(vm=pre[0])
        a.lds(f"ds_add_u32 {self.A_CW}, {self.A_ONE} offset:{C_ARR}")
        self.lds_spin_ge(C_ARR, 4, self.vCnt, self.A_CR, sleep=0)
        a.i("s_mov_b32 s74, 0")
        a.i("s_mov_b32 s78, 8")
        a.lds(f"ds_read_b128 v[{self.KL[0]}:{self.KL[0]+3}], {self.vKL}")
        a.lds(f"ds_read_b128 v[{self.KH[0]}:{self.KH[0]+3}], {self.vKH}")
        a.wait(lg='all')
        for m in self.qk('a', self.KL[0], self.KH[0]): a.i(m)
        a.nop(9)
        self.stamp(7)
        self.stamp(10, True)
        L = "L_ATT"
        a.raw(".p2align 6")
        a.label(L)
        self.loop_start = len(a.lines)
        def egroup(u, k):
            S = self.S_[u]; P = self.P_[u]
            for e in range(4): a.i(f"v_exp_f32 v{S+4*k+e}, v{S+4*k+e}")
            a.i(f"v_cvt_pk_bf16_f32 v{P+2*k}, v{S+4*k}, v{S+4*k+1}")
            a.i(f"v_cvt_pk_bf16_f32 v{P+2*k+1}, v{S+4*k+2}, v{S+4*k+3}")
        for slot in range(4):
            base = slot * RSLOT; nbase = ((slot + 1) % 4) * RSLOT
            a.vm = []; a.lg = []
            if self.o.get('prof') == 3:
                a.i("s_memtime s[90:91]"); a.i("s_waitcnt lgkmcnt(0)")
            if slot == 2:
                Lw3 = a.newlabel("w3")
                a.i("s_cmp_lg_u32 s74, 3")
                a.i(f"s_cbranch_scc1 {Lw3}")
                a.i("s_waitcnt vmcnt(0)")
                a.label(Lw3)
            a.i("s_waitcnt vmcnt(3)")
            if self.o.get('prof') == 3:
                a.i("s_memtime s[92:93]"); a.i("s_waitcnt lgkmcnt(0)")
                a.i("s_sub_u32 s92, s92, s90"); a.i("s_add_u32 s44, s44, s92")
            a.lds(f"ds_add_u32 {self.A_CW}, {self.A_ONE} offset:{C_ARR}")
            for t in range(4):
                kh = self.KH[(t >> 1) % 2] + 2 * (t & 1)
                q0, q1 = self.qk('b', self.KL[t % 2], kh)
                p0, p1 = self.pv('b', self.VV[(t - 1) % 2])
                rd = []
                kn = self.KL[(t + 1) % 2]
                rd.append(('K', f"ds_read_b128 v[{kn}:{kn+3}], {self.vKL} offset:{base + (t+1)*1024 if t < 3 else nbase}"))
                if t & 1:
                    hn = self.KH[((t + 1) >> 1) % 2]
                    rd.append(('K', f"ds_read_b128 v[{hn}:{hn+3}], {self.vKH} offset:{base + 512 if t < 3 else nbase}"))
                vv = self.VV[t % 2]
                rd.append(('V', f"ds_read_b128 v[{vv}:{vv+3}], {self.vV} offset:{base + (2*t)*VFR}"))
                rd.append(('V', f"ds_read_b128 v[{vv+4}:{vv+7}], {self.vV} offset:{base + (2*t+1)*VFR}"))
                ktok, vtok = [], []
                for k, m in enumerate((q0, q1, p0, p1)):
                    a.i(m)
                    if k < len(rd):
                        tk = a.lds(rd[k][1]); (ktok if rd[k][0] == 'K' else vtok).append(tk)
                    egroup('a', k)
                khn = self.KH[((t + 1) >> 1) % 2] + 2 * ((t + 1) & 1)
                q0, q1 = self.qk('a', self.KL[(t + 1) % 2], khn)
                p0, p1 = self.pv('a', self.VV[t % 2])
                a.wait(lg=ktok)
                for k, m in enumerate((q0, q1, p0, p1)):
                    if k == 2: a.wait(lg=vtok)
                    a.i(m)
                    if t == 0 and k == 3:
                        a.lds(f"ds_read_b32 {self.vCnt}, {self.A_CR} offset:{C_ARR}")
                    if t == 1 and k == 0:
                        Lok = a.newlabel("arr")
                        a.i(f"v_cmp_gt_u32 vcc, s78, {self.vCnt}")
                        a.i(f"s_cbranch_vccz {Lok}")
                        if self.o.get('prof'): a.i("s_add_u32 s52, s52, 1")
                        keep = list(a.lg)
                        self.lds_spin_ge(C_ARR, "s78", self.vCnt, self.A_CR, sleep=0)
                        a.lg = keep
                        a.label(Lok)
                    if t == 1 and k == 1:
                        if self.o.get('prof') == 3:
                            a.i("s_memtime s[90:91]"); a.i("s_waitcnt lgkmcnt(0)")
                        if slot == 0: self.ring_dma(3)
                        else:
                            Lnd = a.newlabel("nd")
                            a.i("s_cmp_eq_u32 s74, 3")
                            a.i(f"s_cbranch_scc1 {Lnd}")
                            self.ring_dma((slot + 3) % 4)
                            a.label(Lnd)
                        if self.o.get('prof') == 3:
                            a.i("s_memtime s[92:93]"); a.i("s_waitcnt lgkmcnt(0)")
                            a.i("s_sub_u32 s92, s92, s90"); a.i("s_add_u32 s45, s45, s92")
                        a.i("s_add_u32 s78, s78, 4")
                    egroup('b', k)
        if self.o.get('prof') == 1:
            a.i("s_memtime s[56:57]" if self.o.get('qcyc') else "s_memrealtime s[56:57]")
            a.i("s_waitcnt lgkmcnt(0)")
            for k in range(3):
                a.i(f"s_cmp_eq_u32 s74, {k}")
                a.i(f"s_cselect_b32 s{53+k if k < 2 else 43}, s56, s{53+k if k < 2 else 43}")
        a.i("s_add_u32 s74, s74, 1")
        a.i("s_cmp_lt_u32 s74, 4")
        self.loop_end = len(a.lines)
        a.i(f"s_cbranch_scc1 {L}")
        for m in self.pv('b', self.VV[1]): a.i(m)
        a.vm = []; a.lg = []

    def o_addr(self):
        a = self.a
        a.i(f"s_lshl_b32 s62, {sRB}, 1")
        a.i("s_mul_i32 s62, s62, 40960")
        a.i(f"s_add_u32 s80, s62, {WS_O}")
        a.i(f"s_mul_i32 s63, {sCG}, 5")
        a.i(f"s_add_u32 s81, s63, {sWR}")
        a.i("s_lshl_b32 s81, s81, 10")
        a.i("s_add_u32 s63, s63, 4")
        a.i("s_lshl_b32 s63, s63, 10")
        a.i(f"s_lshr_b32 s65, {sWR}, 1")
        a.i("s_lshl_b32 s65, s65, 9")
        a.i("s_add_u32 s63, s63, s65")
        a.i(f"s_and_b32 s65, {sWR}, 1")
        a.i("s_lshl_b32 s65, s65, 3")
        a.i("s_add_u32 s82, s63, s65")

    def o_epilogue(self):
        a = self.a
        a.c("---- normalise O, publish ----")
        a.i("v_cmp_gt_u32 vcc, 32, v0")
        a.nop(2)
        for mt, u in enumerate("ab"):
            O = self.O_[u]
            a.i(f"v_cndmask_b32 v216, v{O+8}, v{O+12}, vcc")
            a.i("v_rcp_f32 v216, v216")
            a.nop(1)
            a.i("v_mov_b32 v217, v216")
            for j in range(0, 12, 2): a.i(f"v_pk_mul_f32 v[{O+j}:{O+j+1}], v[{O+j}:{O+j+1}], v[216:217]")
            P = self.P_[u]
            for j in range(6): a.i(f"v_cvt_pk_bf16_f32 v{P+j}, v{O+2*j}, v{O+2*j+1}")
            a.i(f"s_add_u32 s68, s80, {mt*40960}")
            a.i("s_add_u32 s69, s68, s81")
            a.vmem(f"buffer_store_dwordx4 v[{P}:{P+3}], {self.A_L16}, {SRD_WS}, s69 offen sc1")
            a.i("s_add_u32 s69, s68, s82")
            a.i("s_mov_b32 exec_lo, -1"); a.i("s_mov_b32 exec_hi, 0")
            a.vmem(f"buffer_store_dwordx2 v[{P+4}:{P+5}], {self.A_L16}, {SRD_WS}, s69 offen sc1")
            a.i("s_mov_b64 exec, -1")
        a.wait(vm='all')
        a.lds(f"ds_add_rtn_u32 v218, {self.A_CW}, {self.A_ONE} offset:{C_OD}")
        a.wait(lg='all')
        a.i("v_readfirstlane_b32 s62, v218")
        a.nop(1)
        a.i("s_cmp_lg_u32 s62, 3")
        a.i("s_cbranch_scc1 L_AEND")
        a.i(f"s_lshl_b32 s62, {sRB}, 7")
        a.i(f"s_lshl_b32 s63, {sCG}, 2")
        a.i("s_add_u32 s62, s62, s63")
        a.i(f"s_add_u32 s62, s62, {WS_FO}")
        a.i(f"v_mov_b32 v217, {sN}")
        a.i("v_mov_b32 v216, 0")
        a.i("s_mov_b64 exec, 1")
        a.i(f"buffer_store_dword v217, v216, {SRD_WS}, s62 offen sc1")
        a.i("s_mov_b64 exec, -1")
        a.label("L_AEND")
        self.stamp(9)
        self.stamp(9, lvl=3)
        self.stamp_flush()
        a.i("s_branch L_END")

    def role_a(self):
        a = self.a
        a.label("L_ROLE_A")
        a.i(f"s_setprio {self.o.get('prioQ', 2)}")
        dt = None
        if self.o.get('noQ'):
            a.i("s_waitcnt vmcnt(0)")
            self.lds_count(C_XND, self.A_CW, self.A_ONE)
            for r in range(16, 48): a.i(f"v_mov_b32 v{r}, 0")
        else: self.q_proj()
        self.stamp(10, lvl=2)
        self.stamp(4)
        self.q_epilogue()
        if self.o.get('dump') == 'q':
            self.dump_regs(128, 12, 0, self.A_L16)
        self.att_init_regs()
        self.o_addr()
        a.i(f"s_setprio {self.o.get('prioA', 2)}")
        self.kv_wait()
        self.stamp(5)
        pre = self.shift_setup()
        self.stamp(6)
        if not self.o.get('noatt'): self.attention(pre)
        else:
            self.loop_start = self.loop_end = len(a.lines)
            a.i("s_waitcnt vmcnt(0)")
        self.stamp(11, True)
        self.stamp(8)
        if self.o.get('dump') == 'o':
            a.nop(16)
            self.dump_regs(48, 32, 0, self.A_L16)
        self.o_epilogue()

    vD1a, vD1b, vTRa, vTRb = "v230", "v231", "v232", "v233"
    B_XA, B_XB = 234, 238
    B_CW, B_CR, B_ONE, B_L16 = "v242", "v243", "v244", "v245"
    B_TRK = "v252"
    B_JA, B_JB = 112, None
    vWa, vWb, vWc, vMa, vMb, vMc = "v220", "v221", "v222", "v223", "v224", "v225"
    vRa, vRb, vRc, vPW, vPR0, vPR1, vXO, vH0 = "v8", "v9", "v10", "v11", "v12", "v13", "v14", "v15"
    vH1 = "v250"

    def pair_dma_addr(self, va, vb, pitch, col_sgpr, comp_rows=8):
        a = self.a
        a.i("v_lshrrev_b32 v246, 3, v0")
        a.i("v_bfe_u32 v247, v0, 4, 1")
        a.i("v_lshlrev_b32 v247, 2, v247")
        a.i("v_and_b32 v248, 7, v0")
        a.i("v_xor_b32 v247, v247, v248")
        a.i(f"v_mul_u32_u24 v246, {pitch}, v246")
        a.i(f"v_lshl_add_u32 {va}, v247, 4, v246")
        a.i(f"v_add_u32 {va}, {col_sgpr}, {va}")
        a.i(f"v_add_u32 {vb}, {comp_rows*pitch - 1024}, {va}")

    def pair_tr_addr(self, va, vb, hmul, base_sgpr):
        a = self.a
        a.i("v_lshrrev_b32 v246, 5, v0")
        a.i(f"v_mul_u32_u24 v246, {hmul}, v246")
        a.i("v_bfe_u32 v247, v0, 2, 2")
        a.i("v_add_u32 v246, v246, v247")
        a.i("v_lshlrev_b32 v246, 7, v246")
        a.i("v_bfe_u32 v247, v0, 4, 1")
        a.i("v_lshlrev_b32 v247, 1, v247")
        a.i("v_bfe_u32 v248, v0, 1, 1")
        a.i("v_add_u32 v247, v247, v248")
        a.i("v_bfe_u32 v248, v0, 3, 1")
        a.i("v_lshlrev_b32 v248, 2, v248")
        a.i("v_xor_b32 v247, v247, v248")
        a.i("v_lshl_add_u32 v246, v247, 4, v246")
        a.i("v_and_b32 v247, 1, v0")
        a.i("v_lshl_add_u32 v246, v247, 3, v246")
        a.i(f"v_add_u32 {va}, {base_sgpr}, v246")
        a.i(f"v_xor_b32 {vb}, 64, v246")
        a.i(f"v_add_u32 {vb}, {base_sgpr}, {vb}")

    def w1_dma(self, ks, part=None):
        a = self.a
        t = []
        if part in (None, 0):
            a.i(f"s_add_u32 m0, s66, {(ks % NS1) * 2048}")
            if part is None: a.nop(1)
        if part in (None, 1):
            t.append(a.vmem(f"buffer_load_dwordx4 {self.vD1a}, {SRD_W1}, s67 offen lds"))
        if part in (None, 2):
            t.append(a.vmem(f"buffer_load_dwordx4 {self.vD1b}, {SRD_W1}, s67 offen offset:1024 lds"))
            self.rot_next(16 * 3456, "s67", ks)
        return t

    def ffn1(self):
        a = self.a
        a.c("---- FFN1 (transposed): h^T tiles, 2 n-tiles x 2 m-tiles per wave ----")
        acc = lambda t, m: 16 + 32 * t + 16 * m
        W = lambda s, t: 80 + 8 * s + 4 * t
        X = lambda s, m: 96 + 8 * s + 4 * m
        d1 = NS1
        dm = dict(self.w1tok); ta = {}; tb = {}
        def rd_wa(ks):
            a.wait(vm=dm[ks])
            s = ks % 2; sl = (ks % NS1) * 2048
            ta[ks] = [a.lds(f"ds_read_b64_tr_b16 v[{W(s,0)}:{W(s,0)+1}], {self.vTRa} offset:{sl}"),
                      a.lds(f"ds_read_b64_tr_b16 v[{W(s,0)+2}:{W(s,0)+3}], {self.vTRa} offset:{sl+512}")]
        def rd_x(ks):
            s = ks % 2
            self.rot_xn_seg(self.B_XA, self.B_XB, "s69", ks)
            ta[ks].append(a.lds(f"ds_read_b128 v[{X(s,0)}:{X(s,0)+3}], v{self.B_XA + ks % 4} offset:{self.seg_imm(ks)}"))
            ta[ks].append(a.lds(f"ds_read_b128 v[{X(s,1)}:{X(s,1)+3}], v{self.B_XB + ks % 4} offset:{self.seg_imm(ks)}"))
        def rd_wb(ks):
            s = ks % 2; sl = (ks % NS1) * 2048
            tb[ks] = [a.lds(f"ds_read_b64_tr_b16 v[{W(s,1)}:{W(s,1)+1}], {self.vTRb} offset:{sl}"),
                      a.lds(f"ds_read_b64_tr_b16 v[{W(s,1)+2}:{W(s,1)+3}], {self.vTRb} offset:{sl+512}")]
        def mf(ks, t, m):
            s = ks % 2; A = acc(t, m)
            C = "0" if ks == 0 else f"v[{A}:{A+15}]"
            a.i(f"v_mfma_f32_32x32x16_bf16 v[{A}:{A+15}], v[{W(s,t)}:{W(s,t)+3}], v[{X(s,m)}:{X(s,m)+3}], {C}")
        rd_wa(0); rd_x(0); rd_wb(0)
        for ks in range(40):
            nx = ks + 1 < 40; dd = ks + d1 < 40
            if ks in (0, 10, 20, 30): self.stamp(6 + ks // 10, lvl=2)
            a.wait(lg=ta[ks])
            mf(ks, 0, 0)
            if nx: rd_wa(ks + 1)
            mf(ks, 0, 1)
            a.wait(lg=tb[ks])
            if nx: rd_x(ks + 1)
            if dd: self.w1_dma(ks + d1, 0)
            mf(ks, 1, 0)
            if nx: rd_wb(ks + 1)
            if dd: dm[ks + d1] = self.w1_dma(ks + d1, 1)
            mf(ks, 1, 1)
            if dd: dm[ks + d1] += self.w1_dma(ks + d1, 2)
        self.lds_count(C_XND, self.B_CW, self.B_ONE)
        if self.o.get('pf', 0): self.l2_prefetch(SRD_W2, 2211840, 3 if self.o.get('pfstride', 128) == 128 else 5, "v246", "v251", sWR, 4)
        self.stamp(10, lvl=2)
        self.stamp(3)
        a.i(f"s_setprio {self.o.get('prioBv', 3)}")
        a.i(f"s_lshl_b32 s62, {sRB}, 1")
        a.i("s_mul_i32 s62, s62, 110592")
        a.i("s_lshl_b32 s63, s68, 11")
        a.i("s_add_u32 s62, s62, s63")
        a.i(f"s_add_u32 s62, s62, {WS_H}")
        a.nop(6)
        for t in range(2):
            for m in range(2):
                A = acc(t, m); R = 80 + 8 * m + 16 * (t & 1)
                for j in range(8): a.i(f"v_cvt_pk_bf16_f32 v{R+j}, v{A+2*j}, v{A+2*j+1}")
                for j in range(8): a.i(f"v_pk_max_i16 v{R+j}, v{R+j}, 0")
                a.i(f"s_add_u32 s63, s62, {m*110592 + t*2048}")
                a.vmem(f"buffer_store_dwordx4 v[{R}:{R+3}], {self.B_L16}, {SRD_WS}, s63 offen sc1")
                a.vmem(f"buffer_store_dwordx4 v[{R+4}:{R+7}], {self.B_L16}, {SRD_WS}, s63 offen offset:1024 sc1")
        a.i(f"s_setprio {self.o.get('prioB', 0)}")

    def h_publish(self):
        a = self.a
        a.i("s_waitcnt vmcnt(0)")
        a.vm = []
        a.lds(f"ds_add_rtn_u32 v246, {self.B_CW}, {self.B_ONE} offset:{C_HD}")
        a.wait(lg='all')
        a.i("v_readfirstlane_b32 s62, v246")
        Lnf = a.newlabel("hnf")
        a.nop(1)
        a.i("s_cmp_lg_u32 s62, 3")
        a.i(f"s_cbranch_scc1 {Lnf}")
        a.i(f"s_lshl_b32 s62, {sRB}, 7")
        a.i(f"s_lshl_b32 s63, {sCG}, 2")
        a.i("s_add_u32 s62, s62, s63")
        a.i(f"s_add_u32 s62, s62, {WS_FH}")
        a.i(f"v_mov_b32 v247, {sN}")
        a.i("v_mov_b32 v246, 0")
        a.i("s_mov_b64 exec, 1")
        a.i(f"buffer_store_dword v247, v246, {SRD_WS}, s62 offen sc1")
        a.i("s_mov_b64 exec, -1")
        a.label(Lnf)

    def out_tiles_setup(self):
        a = self.a
        a.i(f"s_lshr_b32 s62, {sCG}, 1")
        a.i("s_and_b32 s64, s62, 1")
        a.i("s_mul_i32 s62, s62, 5")
        a.i(f"s_and_b32 s82, {sCG}, 1")
        a.i("s_lshl_b32 s63, s82, 1")
        a.i("s_add_u32 s80, s62, s63")
        a.i("s_add_u32 s80, s80, s64")
        a.i("s_lshl_b32 s80, s80, 6")
        a.i("s_xor_b32 s64, s64, 1")
        a.i("s_lshl_b32 s64, s64, 2")
        a.i("s_add_u32 s81, s62, s64")
        a.i("s_lshl_b32 s81, s81, 6")
        a.i(f"s_mul_i32 s83, {sWR}, {BREG}")
        self.pair_dma_addr(self.vWa, self.vWb, 1280, "s80")
        a.i("v_lshrrev_b32 v246, 2, v0")
        a.i("v_mul_u32_u24 v246, 1280, v246")
        a.i("v_and_b32 v247, 3, v0")
        a.i(f"v_lshl_add_u32 {self.vWc}, v247, 4, v246")
        a.i(f"v_add_u32 {self.vWc}, s81, {self.vWc}")
        self.pair_tr_addr(self.vRa, self.vRb, 4, "s83")
        a.i("v_lshrrev_b32 v246, 5, v0")
        a.i("v_lshlrev_b32 v246, 2, v246")
        a.i("v_bfe_u32 v247, v0, 2, 2")
        a.i("v_add_u32 v246, v246, v247")
        a.i("v_lshlrev_b32 v246, 6, v246")
        a.i("v_bfe_u32 v247, v0, 4, 1")
        a.i("v_lshl_add_u32 v246, v247, 5, v246")
        a.i("v_and_b32 v247, 3, v0")
        a.i("v_lshl_add_u32 v246, v247, 3, v246")
        a.i("s_add_u32 s62, s83, 2048")
        a.i(f"v_add_u32 {self.vRc}, s62, v246")
        a.i(f"v_add_u32 {self.vPW}, s83, {self.B_L16}")
        a.i(f"s_mul_i32 s62, {sWR}, 5120")
        a.i(f"v_add_u32 {self.vPR0}, s62, {self.B_L16}")
        a.i(f"v_add_u32 {self.vPR1}, {2*BREG}, {self.vPR0}")

    def w3_dma(self, srd, slot, soff_sgpr, va, vb, vc):
        a = self.a
        a.i(f"s_add_u32 m0, s83, {slot*3072}")
        a.nop(1)
        t = [a.vmem(f"buffer_load_dwordx4 {va}, {srd}, {soff_sgpr} offen lds"),
             a.vmem(f"buffer_load_dwordx4 {vb}, {srd}, {soff_sgpr} offen offset:1024 lds")]
        a.i(f"s_add_u32 m0, s83, {slot*3072 + 2048}")
        a.nop(1)
        t.append(a.vmem(f"buffer_load_dwordx4 {vc}, {srd}, {soff_sgpr} offen lds"))
        return t

    def w3_reads(self, slot, Wb, part=None):
        a = self.a; t = []
        sl = slot * 3072
        if isinstance(part, tuple):
            p = part[1]
            va, o2 = ((self.vRa, 1024), (self.vRb, 1024), (self.vRc, 512))[p]
            t.append(a.lds(f"ds_read_b64_tr_b16 v[{Wb+4*p}:{Wb+4*p+1}], {va} offset:{sl}"))
            t.append(a.lds(f"ds_read_b64_tr_b16 v[{Wb+4*p+2}:{Wb+4*p+3}], {va} offset:{sl+o2}"))
            return t
        if part in (None, 0):
            t.append(a.lds(f"ds_read_b64_tr_b16 v[{Wb}:{Wb+1}], {self.vRa} offset:{sl}"))
            t.append(a.lds(f"ds_read_b64_tr_b16 v[{Wb+2}:{Wb+3}], {self.vRa} offset:{sl+1024}"))
            t.append(a.lds(f"ds_read_b64_tr_b16 v[{Wb+4}:{Wb+5}], {self.vRb} offset:{sl}"))
        if part in (None, 1):
            t.append(a.lds(f"ds_read_b64_tr_b16 v[{Wb+6}:{Wb+7}], {self.vRb} offset:{sl+1024}"))
            t.append(a.lds(f"ds_read_b64_tr_b16 v[{Wb+8}:{Wb+9}], {self.vRc} offset:{sl}"))
            t.append(a.lds(f"ds_read_b64_tr_b16 v[{Wb+10}:{Wb+11}], {self.vRc} offset:{sl+512}"))
        return t

    def five_mfma(self, Wb, H0, H1, first, fill):
        a = self.a
        spec = [(0, 0, H0), (1, 0, H1), (2, 1, H0), (3, 1, H1), (4, 2, H0)]
        for n, (tau, nt, Hb) in enumerate(spec):
            A = 16 + 16 * tau
            C = "0" if first else f"v[{A}:{A+15}]"
            a.i(f"v_mfma_f32_32x32x16_bf16 v[{A}:{A+15}], v[{Wb+4*nt}:{Wb+4*nt+3}], v[{Hb}:{Hb+3}], {C}")
            if n < len(fill) and fill[n]: fill[n]()

    def reduce80(self, dst, bar_target):
        a = self.a
        a.nop(8)
        for g in range(20):
            if len(a.lg) >= 14: a.wait(lg=a.lg[6])
            a.lds(f"ds_write_b128 {self.vPW}, v[{16+4*g}:{19+4*g}] offset:{g*1024}")
        a.wait(lg='all')
        self.lds_count(C_BBAR, self.B_CW, self.B_ONE)
        self.lds_spin_ge(C_BBAR, bar_target, "v246", self.B_CR, sleep=0)
        tk = {}
        def rd(src):
            va = self.vPR0 if src < 2 else self.vPR1
            tk[src] = [a.lds(f"ds_read_b128 v[{16+20*src+4*e}:{19+20*src+4*e}], {va} offset:{(src&1)*BREG + e*1024}") for e in range(5)]
        rd(0); rd(1); rd(2)
        a.wait(lg=tk[1])
        rd(3)
        pk = lambda d, x, y: a.i(f"v_pk_add_f32 v[{d}:{d+1}], v[{x}:{x+1}], v[{y}:{y+1}]")
        for j in range(0, 20, 2): pk(dst + j, 16 + j, 36 + j)
        a.wait(lg=tk[2])
        for j in range(0, 20, 2): pk(dst + j, dst + j, 56 + j)
        a.wait(lg='all')
        for j in range(0, 20, 2): pk(dst + j, dst + j, 76 + j)

    def ffn2(self):
        a = self.a
        a.c("---- FFN2 (transposed): 5 output tiles, split-K over the 4 B waves ----")
        if self.o.get('touch', 0):
            a.vmem(f"buffer_load_dword v251, v227, {SRD_W2}, s80 offen")
            a.vmem(f"buffer_load_dword v254, v227, {SRD_W2}, s81 offen")
        self.lds_spin_ge(C_XND, 8, "v246", self.B_CR)
        NS = 9; PF = self.o.get('d2', 4); HD = self.o.get('dh', 3) + 1
        a.i(f"s_mul_i32 s84, {sWR}, {27*20480}")
        a.i(f"s_and_b32 s62, {sRB}, 7")
        a.i("s_mul_i32 s62, s62, 3")
        a.i(f"s_and_b32 s63, {sCG}, 3")
        a.i("s_mul_i32 s63, s63, 7")
        a.i("s_add_u32 s62, s62, s63")
        a.i("s_cmp_ge_u32 s62, 27")
        a.i("s_cselect_b32 s63, 27, 0")
        a.i("s_sub_u32 s87, s62, s63")
        if not self.o.get('rot', 1): a.i("s_mov_b32 s87, 0")
        a.i("s_mul_i32 s95, s87, 20480")
        dm = {}
        a.i("s_add_u32 s95, s95, s84")
        a.i(f"s_add_u32 s93, s84, {27*20480}")
        def dma(kk, part=None):
            slot = kk % NS
            if part in (None, 0):
                a.i(f"s_add_u32 m0, s83, {slot*3072}")
                if part is None: a.nop(1)
            if part in (None, 1):
                dm[kk] = [a.vmem(f"buffer_load_dwordx4 {self.vWa}, {SRD_W2}, s95 offen lds")]
            if part in (None, 2):
                dm[kk].append(a.vmem(f"buffer_load_dwordx4 {self.vWb}, {SRD_W2}, s95 offen offset:1024 lds"))
                a.i(f"s_add_u32 m0, s83, {slot*3072 + 2048}")
                if part is None: a.nop(1)
            if part in (None, 3):
                dm[kk].append(a.vmem(f"buffer_load_dwordx4 {self.vWc}, {SRD_W2}, s95 offen lds"))
                a.i("s_add_u32 s95, s95, 20480")
                a.i("s_cmp_eq_u32 s95, s93")
                a.i("s_cselect_b32 s95, s84, s95")
        for kk in range(PF): dma(kk)
        self.stamp(5)
        self.one_wave_poll(WS_FH, C_HRDY, sleep=8)
        Lnl = a.newlabel("nolead")
        a.i(f"s_lshl_b32 s62, {sCG}, 2")
        a.i(f"s_add_u32 s62, s62, {sWR}")
        a.i("s_cmp_lg_u32 s62, 0")
        a.i(f"s_cbranch_scc1 {Lnl}")
        a.i("v_mov_b32 v246, 0")
        a.i("v_mov_b32 v247, 1")
        a.i("s_mov_b64 exec, 1")
        a.i(f"global_atomic_add v248, v246, v247, {sDBG} sc0 sc1")
        a.i("s_waitcnt vmcnt(0)")
        a.i("v_readfirstlane_b32 s62, v248")
        a.i("s_mov_b64 exec, -1")
        a.nop(1)
        a.i("s_cmp_lg_u32 s62, 31")
        a.i(f"s_cbranch_scc1 {Lnl}")
        a.i(f"v_mov_b32 v247, {sN}")
        a.i(f"v_mov_b32 v246, {WS_X}")
        a.i("s_mov_b32 s62, 0")
        a.i("s_mov_b64 exec, 1")
        a.i(f"buffer_store_dword v247, v246, {SRD_WS}, s62 offen sc1")
        a.i("s_mov_b64 exec, -1")
        a.label(Lnl)
        self.stamp(6)
        if self.o.get('pf', 0):
            a.i("v_min_u32 v246, 53, v0")
            a.i("v_lshlrev_b32 v246, 7, v246")
            a.i(f"s_mul_i32 s62, {sRB}, 221184")
            a.i(f"s_lshl_b32 s63, {sCG}, 2")
            a.i(f"s_add_u32 s63, s63, {sWR}")
            a.i(f"s_mul_i32 s63, s63, {54*128}")
            a.i("s_add_u32 s62, s62, s63")
            a.i(f"s_add_u32 s62, s62, {WS_H}")
            a.vmem(f"buffer_load_dword v251, v246, {SRD_WS}, s62 offen sc1")
            self.l2_prefetch(SRD_WO, 819200, 1 if self.o.get('pfstride', 128) == 128 else 2, "v246", "v253", sWR, 4)
        H = lambda kk, s: 120 + 8 * (kk % HD) + 4 * s
        hl = {}
        a.i("s_lshl_b32 s96, s87, 10")
        def hload(kk, part=None):
            if part in (None, 0):
                hl[kk] = [a.vmem(f"buffer_load_dwordx4 v[{H(kk,0)}:{H(kk,0)+3}], {self.vH0}, {SRD_WS}, s96 offen sc1")]
            if part in (None, 1):
                hl[kk].append(a.vmem(f"buffer_load_dwordx4 v[{H(kk,1)}:{H(kk,1)+3}], {self.vH1}, {SRD_WS}, s96 offen sc1"))
                a.i("s_add_u32 s96, s96, 1024")
                a.i(f"s_cmp_eq_u32 s96, {27*1024}")
                a.i("s_cselect_b32 s96, 0, s96")
        for kk in range(HD - 1): hload(kk)
        Wb = lambda kk: 96 + 12 * (kk % 2)
        a.wait(vm=dm[0])
        rt = {0: self.w3_reads(0, Wb(0))}
        for kk in range(27):
            a.wait(lg=rt[kk], vm=hl[kk])
            nx = kk + 1 < 27; dd = kk + PF < 27; hh = kk + HD - 1 < 27
            def rd(p, kk=kk):
                if p == 0:
                    a.wait(vm=dm[kk + 1]); rt[kk + 1] = []
                rt[kk + 1] += self.w3_reads((kk + 1) % NS, Wb(kk + 1), ('t', p))
            def g0(kk=kk):
                if nx: rd(0)
                if hh: hload(kk + HD - 1, 0)
            def g1(kk=kk):
                if nx: rd(1)
                if hh: hload(kk + HD - 1, 1)
                if dd: dma(kk + PF, 0)
            def g2(kk=kk):
                if nx: rd(2)
                if dd: dma(kk + PF, 1)
            def g3(kk=kk):
                if dd: dma(kk + PF, 2)
            def g4(kk=kk):
                if dd: dma(kk + PF, 3)
            self.five_mfma(Wb(kk), H(kk, 0), H(kk, 1), kk == 0, [g0, g1, g2, g3, g4])
        self.stamp(7)
        if self.o.get('touch', 0):
            a.i("s_mov_b32 s62, 0")
            a.vmem(f"buffer_load_dword v251, v228, {SRD_WO}, s62 offen")
        a.i(f"s_setprio {self.o.get('prioBv', 3)}")
        self.reduce80(200, 4)
        a.i(f"v_mov_b32 v40, {hx(f2u(-1.4426950408889634))}")
        a.i("v_mov_b32 v41, v40")
        a.i("v_mov_b32 v42, 1.0")
        a.i("v_mov_b32 v43, 1.0")
        for j in range(0, 20, 2): a.i(f"v_pk_mul_f32 v[{16+j}:{17+j}], v[{200+j}:{201+j}], v[40:41]")
        for j in range(20): a.i(f"v_exp_f32 v{16+j}, v{16+j}")
        for j in range(0, 20, 2): a.i(f"v_pk_add_f32 v[{16+j}:{17+j}], v[{16+j}:{17+j}], v[42:43]")
        for j in range(20): a.i(f"v_rcp_f32 v{16+j}, v{16+j}")
        for j in range(0, 20, 2): a.i(f"v_pk_mul_f32 v[{200+j}:{201+j}], v[{200+j}:{201+j}], v[{16+j}:{17+j}]")
        a.i(f"s_setprio {self.o.get('prioB', 0)}")
        self.lds_count(C_BBAR, self.B_CW, self.B_ONE)
        self.lds_spin_ge(C_BBAR, 8, "v246", self.B_CR)

    def out_mixed_addr(self):
        a = self.a
        a.i("v_lshrrev_b32 v246, 3, v0")
        a.i("v_lshrrev_b32 v247, 2, v246")
        a.i("v_mul_u32_u24 v247, 40, v247")
        a.i("v_and_b32 v248, 3, v246")
        a.i("v_add3_u32 v247, v247, v248, 16")
        a.i("v_mul_u32_u24 v247, 1280, v247")
        a.i("v_bfe_u32 v248, v0, 4, 1")
        a.i("v_lshlrev_b32 v248, 2, v248")
        a.i("v_and_b32 v249, 7, v0")
        a.i("v_xor_b32 v248, v248, v249")
        a.i(f"v_lshl_add_u32 {self.vMa}, v248, 4, v247")
        a.i(f"v_add_u32 {self.vMa}, s80, {self.vMa}")
        a.i(f"v_add_u32 {self.vMb}, {20*1280 - 1024}, {self.vMa}")
        a.i("v_lshrrev_b32 v246, 2, v0")
        a.i("v_bfe_u32 v247, v246, 2, 1")
        a.i("v_lshlrev_b32 v247, 1, v247")
        a.i("v_lshrrev_b32 v248, 3, v246")
        a.i("v_add_u32 v247, v247, v248")
        a.i("v_mul_u32_u24 v247, 20, v247")
        a.i("v_and_b32 v248, 3, v246")
        a.i("v_add3_u32 v247, v247, v248, 16")
        a.i("v_mul_u32_u24 v247, 1280, v247")
        a.i("v_and_b32 v248, 3, v0")
        a.i(f"v_lshl_add_u32 {self.vMc}, v248, 4, v247")
        a.i(f"v_add_u32 {self.vMc}, s81, {self.vMc}")
        a.i("v_and_b32 v246, 31, v0")
        a.i("v_mul_u32_u24 v246, 1280, v246")
        a.i("v_lshrrev_b32 v247, 5, v0")
        a.i(f"v_lshl_add_u32 {self.vXO}, v247, 3, v246")

    def ffn2_addr(self):
        a = self.a
        a.i(f"s_lshl_b32 s62, {sRB}, 1")
        a.i("s_add_u32 s63, s62, s82")
        a.i("s_xor_b32 s64, s82, 1")
        a.i("s_add_u32 s64, s62, s64")
        a.i("s_mul_i32 s85, s63, 110592")
        a.i("s_mul_i32 s86, s64, 110592")
        a.i(f"s_mul_i32 s62, {sWR}, {27*1024}")
        a.i(f"s_add_u32 s62, s62, {WS_H}")
        a.i("s_add_u32 s85, s85, s62")
        a.i("s_add_u32 s86, s86, s62")
        a.i(f"v_add_u32 {self.vH0}, s85, {self.B_L16}")
        a.i(f"v_add_u32 {self.vH1}, s86, {self.B_L16}")

    def out_proj(self):
        a = self.a
        a.c("---- output projection + final combine ----")
        dm = {}
        a.i(f"s_lshl_b32 s62, {sWR}, 1")
        a.i("s_add_u32 s93, s62, s82")
        a.i("s_xor_b32 s63, s82, 1")
        a.i("s_add_u32 s94, s62, s63")
        a.i(f"s_mul_i32 s84, s93, {80*1280}")
        a.i(f"s_mul_i32 s87, s94, {80*1280}")
        def wo_dma(e):
            cgo, jj = e // 5, e % 5
            base = "s84" if cgo == 0 else "s87"
            if jj < 4:
                a.i(f"s_add_u32 s67, {base}, {jj*20*1280}")
                dm[e] = self.w3_dma(SRD_WO, e % 9, "s67", self.vWa, self.vWb, self.vWc)
            else:
                dm[e] = self.w3_dma(SRD_WO, e % 9, base, self.vMa, self.vMb, self.vMc)
        for e in range(9):
            wo_dma(e)
            dw = self.o.get('dw', 2)
            if e - dw >= 0: a.wait(vm=dm[e - dw])
        a.wait(vm=dm[8])
        rt0 = self.w3_reads(0, 96)
        a.wait(lg=rt0)
        wo_dma(9)
        a.wait(vm=dm[9])
        xt = []
        for e in range(5):
            so = f"s{88+e}"
            a.i(f"s_mul_i32 s62, {sWR}, 5")
            a.i(f"s_add_u32 s62, s62, {e}")
            a.i("s_lshr_b32 s63, s62, 2")
            a.i("s_and_b32 s64, s62, 3")
            a.i("s_lshl_b32 s64, s64, 4")
            a.i("s_lshr_b32 s65, s63, 1")
            a.i("s_lshl_b32 s69, s65, 6")
            a.i("s_add_u32 s69, s69, s80")
            a.i("s_cmp_eq_u32 s63, 4")
            a.i("s_cselect_b32 s69, s81, s69")
            a.i("s_add_u32 s64, s64, s69")
            a.i("s_and_b32 s65, s63, 1")
            a.i("s_xor_b32 s65, s65, s82")
            a.i(f"s_lshl_b32 s69, {sRB}, 1")
            a.i("s_add_u32 s65, s65, s69")
            a.i("s_mul_i32 s65, s65, 40960")
            a.i(f"s_add_u32 {so}, s64, s65")
            xt.append(a.vmem(f"buffer_load_dwordx2 v[{220+2*e}:{221+2*e}], {self.vXO}, {SRD_X}, {so} offen"))
        self.stamp(9)
        self.one_wave_poll(WS_FO, C_ORDY, pre=lambda: (self.lds_spin_ge(C_ARR, 68, "v246", self.B_CR, sleep=8), self.lds_spin_ge(C_OD, 4, "v246", self.B_CR, sleep=1)), sleep=1, rsleep=self.o.get('rs', 3))
        self.stamp(10)
        a.i(f"s_lshl_b32 s62, {sRB}, 1")
        a.i("s_add_u32 s63, s62, s82")
        a.i("s_xor_b32 s64, s82, 1")
        a.i("s_add_u32 s64, s62, s64")
        a.i("s_mul_i32 s85, s63, 40960")
        a.i("s_mul_i32 s86, s64, 40960")
        a.i(f"s_add_u32 s85, s85, {WS_O}")
        a.i(f"s_add_u32 s86, s86, {WS_O}")
        a.i("s_mul_i32 s93, s93, 5120")
        a.i("s_mul_i32 s94, s94, 5120")
        ol = {}
        H = lambda e, s: 120 + 8 * e + 4 * s
        for e in range(10):
            grp = "s93" if e < 5 else "s94"
            a.i(f"s_add_u32 s62, s85, {grp}")
            t0 = a.vmem(f"buffer_load_dwordx4 v[{H(e,0)}:{H(e,0)+3}], {self.B_L16}, {SRD_WS}, s62 offen offset:{(e%5)*1024 if (e%5) < 4 else 0} sc1") if (e % 5) < 4 else None
            if t0 is None:
                a.i("s_add_u32 s62, s62, 4096")
                t0 = a.vmem(f"buffer_load_dwordx4 v[{H(e,0)}:{H(e,0)+3}], {self.B_L16}, {SRD_WS}, s62 offen sc1")
            a.i(f"s_add_u32 s63, s86, {grp}")
            if (e % 5) < 4:
                t1 = a.vmem(f"buffer_load_dwordx4 v[{H(e,1)}:{H(e,1)+3}], {self.B_L16}, {SRD_WS}, s63 offen offset:{(e%5)*1024} sc1")
            else:
                a.i("s_add_u32 s63, s63, 4096")
                t1 = a.vmem(f"buffer_load_dwordx4 v[{H(e,1)}:{H(e,1)+3}], {self.B_L16}, {SRD_WS}, s63 offen sc1")
            ol[e] = [t0, t1]
        Wb = lambda e: 96 + 12 * (e % 2)
        rt = {0: rt0}
        for e in range(10):
            a.wait(lg=rt[e], vm=ol[e])
            def f0(e=e):
                if e + 1 < 10:
                    a.wait(vm=dm[e + 1])
                    rt[e + 1] = self.w3_reads((e + 1) % 9, Wb(e + 1), 0)
            def f1(e=e):
                if e + 1 < 10: rt[e + 1] += self.w3_reads((e + 1) % 9, Wb(e + 1), 1)
            self.five_mfma(Wb(e), H(e, 0), H(e, 1), e == 0, [f0, f1])
        self.stamp(11)
        self.reduce80(96, 12)
        self.stamp(12)
        a.i("s_mov_b32 s62, 0xffff0000")
        for e in range(5):
            x0, x1 = 220 + 2 * e, 221 + 2 * e
            t = 16 + 4 * (e & 1)
            a.i(f"v_lshlrev_b32 v{t}, 16, v{x0}")
            a.i(f"v_and_b32 v{t+1}, s62, v{x0}")
            a.i(f"v_lshlrev_b32 v{t+2}, 16, v{x1}")
            a.i(f"v_and_b32 v{t+3}, s62, v{x1}")
            for j in (0, 2): a.i(f"v_pk_fma_f32 v[{t+j}:{t+j+1}], v[{96+4*e+j}:{97+4*e+j}], v[{200+4*e+j}:{201+4*e+j}], v[{t+j}:{t+j+1}]")
            a.i(f"v_cvt_pk_bf16_f32 v{24+2*e}, v{t}, v{t+1}")
            a.i(f"v_cvt_pk_bf16_f32 v{25+2*e}, v{t+2}, v{t+3}")
            a.vmem(f"buffer_store_dwordx2 v[{24+2*e}:{25+2*e}], {self.vXO}, {SRD_OUT}, s{88+e} offen {self.o.get('ostore', '')}".rstrip())

    def role_b(self):
        a = self.a
        a.label("L_ROLE_B")
        Lf1 = a.newlabel("ffn1"); Lv = a.newlabel("vjob"); Lpf = a.newlabel("w1pf")
        a.i(f"s_and_b32 s62, {sCG}, 3")
        a.i("s_cmp_lg_u32 s62, 0")
        a.i(f"s_cbranch_scc1 {Lf1}")
        Lwait = a.newlabel("kvidle")
        a.i(f"s_cmp_ge_u32 {sWR}, 2")
        a.i(f"s_cbranch_scc1 {Lwait}")
        a.i("s_setprio 3")
        a.i(f"s_cmp_eq_u32 {sCG}, 4")
        a.i(f"s_cbranch_scc1 {Lv}")
        a.vm = []; a.lg = []
        self.kv_job(False)
        a.i(f"s_branch {Lwait}")
        a.label(Lv)
        a.vm = []; a.lg = []
        self.kv_job(True)
        a.label(Lwait)
        self.lds_spin_ge(C_KVD, 2, "v246", self.B_CR)
        a.label(Lpf)
        self.stamp(11, lvl=2)
        self.stamp(14)
        a.label(Lf1)
        a.i(f"s_setprio {self.o.get('prioF', 0)}")
        if self.o.get('noB'):
            a.i("s_waitcnt vmcnt(0)")
            a.i("s_branch L_END")
        a.vm = []; a.lg = []
        Lnop = a.newlabel("nopair"); Lhd = a.newlabel("hdone")
        a.i("s_cmp_eq_u32 s99, 0")
        a.i(f"s_cbranch_scc1 {Lnop}")
        if self.o.get('noF1'): a.i(f"s_branch {Lnop}")
        bs = self.o.get('bstart', 'none')
        if bs == 'ring': self.lds_spin_ge(C_GO, 4, "v246", self.B_CR)
        if bs == 'qiss': self.lds_spin_ge(C_QISS, 4, "v246", self.B_CR)
        self.w1tok = {ks: self.w1_dma(ks) for ks in range(NS1)}
        self.ffn1()
        a.i(f"s_branch {Lhd}")
        a.label(Lnop)
        a.i(f"s_setprio {self.o.get('prioB', 0)}")
        self.lds_count(C_XND, self.B_CW, self.B_ONE)
        a.label(Lhd)
        a.vm = []; a.lg = []
        self.h_publish()
        self.stamp(4)
        self.ffn2()
        self.stamp(8)
        if self.o.get('dump') == 'g':
            self.dump_regs(200, 20, 0, self.B_L16)
        self.out_proj()
        a.i("s_waitcnt vmcnt(0)") if self.o.get('prof') else None
        self.stamp(13)
        self.stamp_flush()
        if self.o.get('span'):
            a.i("s_waitcnt vmcnt(0)")
            a.i("s_memrealtime s[90:91]")
            a.i("s_waitcnt lgkmcnt(0)")
            a.i("s_not_b32 s62, s101")
            a.i("v_mov_b32 v1, 8")
            a.i("v_mov_b32 v2, s62")
            a.i("v_mov_b32 v3, s90")
            a.i("s_mov_b64 exec, 1")
            a.i(f"global_atomic_umax v1, v2, {sDBG} sc1")
            a.i(f"global_atomic_umax v1, v3, {sDBG} offset:4 sc1")
            a.i("s_mov_b64 exec, -1")
        a.i("s_branch L_END")

    def build(self):
        a = self.a
        self.prologue()
        self.role_setup()
        a.i("s_waitcnt lgkmcnt(0)")
        a.i(f"s_add_u32 {sN}, {sN}, 1")
        a.vm = []; a.lg = []
        self.stamp(1)
        self.layernorm()
        self.stamp(2)
        if self.o.get('dump') == 'xn':
            self.dump_lds_xn()
        a.i(f"s_cmp_ge_u32 {sW}, 4")
        a.i("s_cbranch_scc1 L_ROLE_B")
        self.role_a()
        self.role_b()
        a.label("L_END")
        a.i("s_endpgm")

    def dump_lds_xn(self):
        a = self.a
        a.i("v_lshlrev_b32 v72, 4, v0")
        a.i(f"s_mul_i32 s70, {sW}, 10240")
        a.i("v_add_u32 v73, s70, v72")
        a.i("s_mul_i32 s71, s2, 81920")
        a.i("s_add_u32 s71, s71, s70")
        a.i(f"s_add_u32 s71, s71, {WS_DBG}")
        for g in range(10):
            a.i(f"ds_read_b128 v[76:79], v73 offset:{g*1024}")
            a.i("s_waitcnt lgkmcnt(0)")
            a.i(f"s_add_u32 s70, s71, {g*1024}")
            a.i(f"buffer_store_dwordx4 v[76:79], v72, {SRD_WS}, s70 offen")
            a.i("s_waitcnt vmcnt(0)")

    def emit(self):
        self.build()
        body = self.a.text()
        hdr = f"""; Fused LayerNorm + multi-query attention + ReLU FFN + gated residual: out = x + (attn(xn) Wo) * silu(relu(xn W1) W2).
;   waves 0-3 : Q projection (one head each), attention over all 2048 keys (K/V fragments streamed through an LDS ring), publish o
; @launch grid=(256,1,1) block=(512,1,1) lds={LDS_TOTAL}
.amdgcn_target "amdgcn-amd-amdhsa--gfx950"
.text
.globl {NAME}_kernel
.p2align 8
.type {NAME}_kernel,@function
{NAME}_kernel:
"""
        ftr = f""".section .rodata,"a"
.p2align 6
.amdhsa_kernel {NAME}_kernel
  .amdhsa_next_free_vgpr 256
  .amdhsa_next_free_sgpr 102
  .amdhsa_accum_offset 256
  .amdhsa_group_segment_fixed_size 0
  .amdhsa_kernarg_size 88
  .amdhsa_user_sgpr_count 2
  .amdhsa_user_sgpr_kernarg_segment_ptr 1
  .amdhsa_system_sgpr_workgroup_id_x 1
  .amdhsa_float_denorm_mode_32 3
.end_amdhsa_kernel
"""
        return hdr + body + ftr

    def hazards(self):
        ins = [t for k, t in self.a.lines if k == 'i']
        probs = check_hazards(ins, "linear")
        body = [t for k, t in self.a.lines[self.loop_start:self.loop_end] if k == 'i']
        probs += check_hazards(body[-40:] + body[:40], "att-backedge")
        return probs

if __name__ == "__main__":
    opt = {}
    out = None
    for arg in sys.argv[1:]:
        if "=" in arg:
            k, v = arg.split("=", 1); opt[k] = int(v) if v.lstrip('-').isdigit() else v
        else: out = arg
    g = Gen(opt)
    txt = g.emit()
    pr = g.hazards()
    for p in pr: print("HAZARD:", p)
    open(out or "k.s", "w").write(txt)
    n = sum(1 for k, t in g.a.lines if k == 'i')
    print(f"wrote {out or 'k.s'}: {n} instructions, {len(pr)} hazards")
```

```python
import sys, struct
from asmlib import Asm, check_hazards

NAME = "recurrent_scan__grouped_kv_mqa__dense_activation_relu__prompt"

XN    = 0
BST   = 81920
BPRIV = 9216
NS1   = 4
WKI   = BST
AREG  = 118784
QST   = AREG
APRIV = 11136
NSQ   = 10
RSLOT = 11136
RSHARE = 2688
KVCH  = 12288
BREG  = 29696
CTRL  = 163328
LDS_TOTAL = 163840
VROW  = 352
VFR   = 2 * VROW
KV_KH = 4096
KV_V  = 5120
C_ARR, C_KVD, C_ABAR, C_QDONE, C_KVRDY, C_XND, C_HD, C_BBAR, C_OD, C_GO, C_HRDY, C_ORDY, C_KVS, C_QISS = [4 * i for i in range(14)]
CDUMMY = 128

WS_X    = 0
WS_FKV  = 0x1000
WS_FH   = 0x4000
WS_FO   = 0x6000
WS_KN   = 0x8000
WS_VN   = 0x8400
WS_KV   = 0x10000
WS_H    = 0x100000
WS_O    = 0x800000
WS_DBG  = 0xB00000
WS_PROF = 0x1300000
WS_END  = 0x1400000

QSCALE = 0.22360679774997896 * 1.4426950408889634

def f2u(x): return struct.unpack("<I", struct.pack("<f", x))[0]
def hx(x): return "0x%08x" % (x & 0xffffffff)

sW, sRB, sCG, sN, sWR = "s3", "s4", "s5", "s6", "s7"
SRD_X, SRD_WQ, SRD_WKV, SRD_WO, SRD_W1, SRD_W2, SRD_OUT, SRD_WS = [f"s[{8+4*i}:{11+4*i}]" for i in range(8)]
sDBG, sWSP = "s[58:59]", "s[60:61]"

SPIN_LDS = 400000
SPIN_GLB = 40000

class Gen:
    def __init__(self, opt):
        self.o = opt
        self.a = Asm()

    def vr(self, base, n): return f"v[{base}:{base+n-1}]"

    def lds_spin_ge(self, cnt_off, target, vtmp, vctlr, stmp="s62", sleep=1):
        a = self.a
        L = a.newlabel("spin"); Ld = a.newlabel("spind")
        a.i(f"s_mov_b32 {stmp}, 0")
        a.label(L)
        a.i(f"ds_read_b32 {vtmp}, {vctlr} offset:{cnt_off}")
        a.i("s_waitcnt lgkmcnt(0)")
        a.i(f"v_cmp_gt_u32 vcc, {target}, {vtmp}")
        a.i(f"s_cbranch_vccz {Ld}")
        a.i(f"s_add_u32 {stmp}, {stmp}, 1")
        a.i(f"s_cmp_lt_u32 {stmp}, {SPIN_LDS}")
        if sleep: a.i(f"s_sleep {sleep}")
        a.i(f"s_cbranch_scc1 {L}")
        a.label(Ld)
        a.lg = []

    def glb_poll(self, voff, soff, vtmp, stmp="s62", sleep=4):
        a = self.a
        L = a.newlabel("poll"); Ld = a.newlabel("polld")
        a.i(f"s_mov_b32 {stmp}, 0")
        a.label(L)
        a.i(f"buffer_load_dword {vtmp}, {voff}, {SRD_WS}, {soff} offen sc1")
        a.i("s_waitcnt vmcnt(0)")
        a.i(f"v_cmp_ne_u32 vcc, {sN}, {vtmp}")
        a.i(f"s_cbranch_vccz {Ld}")
        a.i(f"s_add_u32 {stmp}, {stmp}, 1")
        a.i(f"s_cmp_lt_u32 {stmp}, {SPIN_GLB}")
        a.i(f"s_sleep {sleep}")
        a.i(f"s_cbranch_scc1 {L}")
        a.label(Ld)
        a.vm = []

    def one_wave_poll(self, flag_base, rdy_off, pre=None, sleep=4, rsleep=2):
        a = self.a
        Lw = a.newlabel("opw"); Lj = a.newlabel("opj")
        keep = list(a.vm)
        a.i(f"s_cmp_lg_u32 {sWR}, 0")
        a.i(f"s_cbranch_scc1 {Lw}")
        if pre: pre()
        a.i("v_and_b32 v246, 7, v0")
        a.i("v_lshlrev_b32 v246, 2, v246")
        a.i(f"s_lshl_b32 s63, {sRB}, 7")
        a.i(f"s_add_u32 s63, s63, {flag_base}")
        self.glb_poll("v246", "s63", "v247", sleep=sleep)
        a.i(f"ds_add_u32 {self.B_CW}, {self.B_ONE} offset:{rdy_off}")
        a.i(f"s_branch {Lj}")
        a.label(Lw)
        self.lds_spin_ge(rdy_off, 1, "v246", self.B_CR, sleep=rsleep)
        a.label(Lj)
        a.i("s_waitcnt lgkmcnt(0)")
        a.vm = keep; a.lg = []

    def lds_count(self, cnt_off, vctlw, vone):
        return self.a.lds(f"ds_add_u32 {vctlw}, {vone} offset:{cnt_off}")

    def dump_regs(self, base, n, slot, vlane16, cond_wave=None):
        a = self.a
        a.i("s_lshl_b32 s70, s2, 3"); a.i(f"s_add_u32 s70, s70, {sW}")
        a.i("s_mul_i32 s70, s70, 0x4000")
        a.i(f"s_add_u32 s70, s70, {WS_DBG + 0x0}")
        for g in range(n // 4):
            a.i(f"s_add_u32 s71, s70, {(slot + g) * 1024}")
            a.i(f"buffer_store_dwordx4 v[{base+4*g}:{base+4*g+3}], {vlane16}, {SRD_WS}, s71 offen")
        a.i("s_waitcnt vmcnt(0)")
        a.vm = []

    def stamp(self, k, cyc=False, lvl=1):
        if self.o.get('prof') != lvl and not (k <= 2 and self.o.get('prof')): return
        a = self.a
        a.i("s_memtime s[56:57]" if cyc else "s_memrealtime s[56:57]")
        a.i("s_waitcnt lgkmcnt(0)")
        a.i(f"s_mov_b32 s{40+k}, s56")
        a.lg = []

    def stamp_flush(self):
        if not self.o.get('prof'): return
        a = self.a
        a.i("s_mov_b64 exec, 1")
        a.i("s_lshl_b32 s62, s2, 3")
        a.i(f"s_add_u32 s62, s62, {sW}")
        a.i("s_lshl_b32 s62, s62, 6")
        a.i(f"s_add_u32 s62, s62, {WS_PROF}")
        a.i("v_mov_b32 v1, 0")
        for g in range(4):
            for j in range(4): a.i(f"v_mov_b32 v{4+j}, s{40+4*g+j}")
            a.i(f"buffer_store_dwordx4 v[4:7], v1, {SRD_WS}, s62 offen offset:{16*g}")
            a.nop(2)
        a.i("s_mov_b64 exec, -1")

    def l2_prefetch(self, srd, total_bytes, ninstr, vtmp, vdst, sub_sgpr, nsub):
        a = self.a
        st = self.o.get('pfstride', 128)
        lines = total_bytes // st
        per_cu = -(-lines // 32); per_w = -(-per_cu // nsub); per_i = -(-per_w // ninstr)
        assert per_i <= 64, per_i
        a.i(f"s_lshr_b32 s62, {sRB}, 3")
        a.i(f"s_lshl_b32 s63, {sCG}, 2")
        a.i("s_add_u32 s62, s62, s63")
        a.i(f"s_mul_i32 s62, s62, {per_cu}")
        a.i(f"s_mul_i32 s63, {sub_sgpr}, {per_w}")
        a.i("s_add_u32 s62, s62, s63")
        a.i(f"v_min_u32 {vtmp}, {per_i - 1}, v0")
        a.i(f"v_add_u32 {vtmp}, s62, {vtmp}")
        a.i(f"v_mul_u32_u24 {vtmp}, {st}, {vtmp}")
        toks = []
        for i in range(ninstr):
            a.i(f"s_mov_b32 s63, {i * per_i * st}")
            toks.append(a.vmem(f"buffer_load_dword {vdst}, {vtmp}, {srd}, s63 offen"))
        return toks

    def prologue(self):
        a = self.a
        a.i("s_cmp_ge_u32 s2, 256")
        a.i("s_cbranch_scc1 L_END")
        if self.o.get('prof'): a.i("s_memrealtime s[94:95]")
        a.i("s_load_dwordx16 s[40:55], s[0:1], 0")
        a.i("s_load_dwordx4 s[56:59], s[0:1], 64")
        a.i("s_load_dwordx2 s[60:61], s[0:1], 80")
        a.i("v_lshrrev_b32 v1, 6, v0")
        a.i("v_and_b32 v0, 63, v0")
        a.i("s_and_b32 s62, s2, 1")
        a.i("s_lshl_b32 s62, s62, 2")
        a.i("s_lshr_b32 s63, s2, 6")
        a.i(f"s_add_u32 {sCG}, s62, s63")
        a.i(f"v_readfirstlane_b32 {sW}, v1")
        a.i("s_bfe_u32 s62, s2, 0x20001")
        a.i("s_lshl_b32 s62, s62, 3")
        a.i("s_bfe_u32 s63, s2, 0x30003")
        a.i(f"s_add_u32 {sRB}, s62, s63")
        a.i("v_lshrrev_b32 v2, 3, v0")
        a.i("v_and_b32 v3, 7, v0")
        a.i(f"s_and_b32 {sWR}, {sW}, 3")
        a.i(f"s_and_b32 s65, {sCG}, 1")
        a.i("s_lshl_b32 s65, s65, 2")
        a.i(f"s_xor_b32 s97, s65, {sW}")
        a.i("s_lshl_b32 s62, s97, 3")
        a.i(f"s_mul_i32 s98, {sRB}, 81920")
        a.i("v_add_u32 v4, s62, v2")
        a.i("v_mul_u32_u24 v4, 1280, v4")
        a.i("v_lshl_add_u32 v4, v3, 4, v4")
        a.i("s_waitcnt lgkmcnt(0)")
        def srd(base, lo, size):
            a.i(f"s_mov_b32 s{base}, s{lo}")
            a.i(f"s_mov_b32 s{base+1}, s{lo+1}")
            a.i(f"s_mov_b32 s{base+2}, {size}")
            a.i(f"s_mov_b32 s{base+3}, 0x20000")
        srd(8, 40, 2621440)
        Lx = a.newlabel("xa")
        a.i(f"s_cmp_ge_u32 {sW}, 4")
        a.i(f"s_cbranch_scc1 {Lx}")
        self.x_loads()
        a.label(Lx)
        a.i(f"s_load_dword {sN}, {sWSP}, {WS_X}")
        srd(12, 42, 819200)
        a.i(f"s_cmp_eq_u32 {sCG}, 4")
        a.i("s_cselect_b32 s16, s46, s44")
        a.i("s_cselect_b32 s17, s47, s45")
        a.i("s_mov_b32 s18, 25600")
        a.i("s_mov_b32 s19, 0x20000")
        srd(20, 48, 819200)
        srd(24, 52, 2211840)
        srd(28, 54, 2211840)
        srd(32, 56, 2621440)
        srd(36, 60, WS_END)
        for r in (200, 202, 230, 231, 253, 181, 215, 245, 220, 221, 222, 223, 224, 225, 226, 227, 228, 14, 15, 250): a.i(f"v_mov_b32 v{r}, 0")
        if self.o.get('prof'):
            for k in range(16): a.i(f"s_mov_b32 s{40+k}, 0")
            a.i("s_mov_b32 s55, s94")
        self.stamp(0)
        if self.o.get('span'):
            a.i("s_memrealtime s[90:91]")
            a.i("s_waitcnt lgkmcnt(0)")
            a.i("s_mov_b32 s101, s90")

    def layernorm(self):
        a = self.a
        a.i("v_lshrrev_b32 v5, 1, v3")
        a.i("v_lshlrev_b32 v5, 10, v5")
        a.i("v_and_b32 v6, 1, v3")
        a.i("v_lshlrev_b32 v6, 9, v6")
        a.i("v_xor_b32 v7, v2, v3")
        a.i("v_lshlrev_b32 v7, 4, v7")
        a.i("v_add3_u32 v5, v5, v6, v7")
        a.i("s_and_b32 s62, s97, 3")
        a.i("s_lshl_b32 s62, s62, 7")
        a.i("s_lshr_b32 s64, s97, 2")
        a.i("s_mul_i32 s64, s64, 40960")
        a.i("s_add_u32 s62, s62, s64")
        a.i("v_add_u32 v5, s62, v5")
        Lz = a.newlabel("nz")
        a.i(f"s_cmp_lg_u32 {sW}, 0")
        a.i(f"s_cbranch_scc1 {Lz}")
        a.i("v_lshlrev_b32 v6, 2, v0")
        a.i(f"v_add_u32 v6, {CTRL}, v6")
        a.i("v_mov_b32 v7, 0")
        a.i("ds_write_b32 v6, v7")
        a.label(Lz)
        a.i("s_mov_b32 s62, 0x3f803f80")
        a.i("s_mov_b32 s63, 0xffff0000")
        for k in range(4): a.i(f"v_mov_b32 v{64+k}, 0")
        a.nop(1)
        X = lambda j: f"v{16+j}"
        for j in range(40):
            a.i(f"v_dot2_f32_bf16 v{64+(j&1)}, {X(j)}, s62, v{64+(j&1)}")
            a.i(f"v_dot2_f32_bf16 v{66+(j&1)}, {X(j)}, {X(j)}, v{66+(j&1)}")
        a.nop(3)
        a.i("v_add_f32 v64, v64, v65")
        a.i("v_add_f32 v66, v66, v67")
        a.nop(1)
        for dpp in ("quad_perm:[1,0,3,2]", "quad_perm:[2,3,0,1]", "row_half_mirror"):
            a.i(f"v_add_f32_dpp v64, v64, v64 {dpp} row_mask:0xf bank_mask:0xf")
            a.i(f"v_add_f32_dpp v66, v66, v66 {dpp} row_mask:0xf bank_mask:0xf")
            a.nop(1)
        a.i(f"v_mul_f32 v64, {hx(f2u(1.0/640))}, v64")
        a.i(f"v_mul_f32 v66, {hx(f2u(1.0/640))}, v66")
        a.i("v_fma_f32 v66, -v64, v64, v66")
        a.i("v_max_f32 v66, 0, v66")
        a.i(f"v_add_f32 v66, {hx(f2u(1e-5))}, v66")
        a.i("v_rsq_f32 v68, v66")
        a.nop(1)
        a.i("v_mov_b32 v69, v68")
        a.i("v_mul_f32 v70, v64, v68")
        a.i("v_sub_f32 v70, 0, v70")
        a.i("v_mov_b32 v71, v70")
        self.stamp(3, lvl=2)
        self.role_prefetch()
        a.label("L_LN2")
        self.stamp(4, lvl=2)
        a.i("s_mov_b32 s63, 0xffff0000")
        for g in range(10):
            for d in range(4):
                j = 4 * g + d
                t = 56 + 2 * (j & 3)
                a.i(f"v_lshlrev_b32 v{t}, 16, {X(j)}")
                a.i(f"v_and_b32 v{t+1}, s63, {X(j)}")
            for d in range(4):
                j = 4 * g + d
                t = 56 + 2 * (j & 3)
                a.i(f"v_pk_fma_f32 v[{t}:{t+1}], v[{t}:{t+1}], v[68:69], v[70:71]")
            for d in range(4):
                j = 4 * g + d
                t = 56 + 2 * (j & 3)
                a.i(f"v_cvt_pk_bf16_f32 {X(j)}, v{t}, v{t+1}")
            a.i(f"ds_write_b128 v5, v[{16+4*g}:{19+4*g}] offset:{4096*g}")
        a.i("s_waitcnt lgkmcnt(0)")
        self.stamp(5, lvl=2)
        Lnw = a.newlabel("nw")
        a.i(f"s_cmp_lt_u32 {sW}, 4")
        a.i(f"s_cbranch_scc1 {Lnw}")
        a.i(f"s_and_b32 s62, {sCG}, 3")
        a.i("s_cmp_lg_u32 s62, 0")
        a.i(f"s_cbranch_scc1 {Lnw}")
        a.i("s_waitcnt vmcnt(0)")
        a.label(Lnw)
        a.i("s_barrier")
        a.lg = []

    def xn_addr(self, vA, vB, vt0, vt1, phase_sgpr=None, base_sgpr=None, swap_sgpr=None):
        a = self.a
        a.i(f"v_and_b32 {vt0}, 31, v0")
        a.i(f"v_lshrrev_b32 {vt1}, 5, v0")
        for q in range(4):
            r = f"v{vA+q}"
            if phase_sgpr is None:
                a.i(f"v_add_u32 {r}, {2*q}, {vt1}")
            else:
                a.i(f"s_add_u32 s62, {phase_sgpr}, {q}")
                a.i("s_and_b32 s62, s62, 3")
                a.i("s_lshl_b32 s62, s62, 1")
                a.i(f"v_add_u32 {r}, s62, {vt1}")
            a.i(f"v_xor_b32 {r}, {r}, {vt0}")
            a.i(f"v_lshlrev_b32 {r}, 4, {r}")
            a.i(f"v_lshl_add_u32 {r}, {vt1}, 9, {r}")
            if base_sgpr is not None:
                a.i(f"v_add_u32 {r}, {base_sgpr}, {r}")
            if vB is not None: a.i(f"v_add_u32 v{vB+q}, 40960, {r}")

    WRAPS = (8, 12, 16, 20, 28, 32, 36)
    def rot_setup(self, stride, sK, sRot):
        a = self.a
        a.i(f"s_and_b32 s62, {sRB}, 7")
        a.i("s_lshr_b32 s63, s62, 2")
        a.i("s_add_u32 s62, s62, s63")
        a.i(f"s_lshl_b32 {sRot}, s62, 2")
        if not self.o.get('rot', 1): a.i(f"s_mov_b32 {sRot}, 0")
        a.i(f"s_mul_i32 {sK}, {sRot}, {stride}")
    def rot_next(self, stride, sK, ks=None):
        a = self.a
        a.i(f"s_add_u32 {sK}, {sK}, {stride}")
        if ks is None or (ks + 1) in self.WRAPS:
            a.i(f"s_cmp_eq_u32 {sK}, {40*stride}")
            a.i(f"s_cselect_b32 {sK}, 0, {sK}")
    def rot_xn_base(self, vA, vB, sRot):
        a = self.a
        a.i(f"s_lshl_b32 s62, {sRot}, 10")
        for q in range(4):
            a.i(f"v_add_u32 v{vA+q}, s62, v{vA+q}")
            a.i(f"v_add_u32 v{vB+q}, s62, v{vB+q}")
    def rot_xn_seg(self, vA, vB, sRot, ks):
        a = self.a
        if ks not in self.WRAPS: return
        L = a.newlabel("wrap")
        a.i(f"s_cmp_eq_u32 {sRot}, {40 - ks}")
        a.i(f"s_cbranch_scc0 {L}")
        for q in range(4):
            a.i(f"v_subrev_u32 v{vA+q}, 40960, v{vA+q}")
            a.i(f"v_subrev_u32 v{vB+q}, 40960, v{vB+q}")
        a.label(L)
    def seg_imm(self, ks):
        return ks * 1024

    def ctl_regs(self, vW, vR, vOne):
        a = self.a
        a.i(f"v_lshlrev_b32 {vW}, 2, v0")
        a.i(f"v_add_u32 {vW}, {CTRL + CDUMMY}, {vW}")
        a.i(f"v_mov_b32 {vR}, {CTRL}")
        a.i("v_cmp_eq_u32 vcc, 0, v0")
        a.i(f"v_mov_b32 {vOne}, 1")
        a.nop(1)
        a.i(f"v_cndmask_b32 {vW}, {vW}, {vR}, vcc")

    vDq, vTRq, vTRk = "v200", "v201", "v202"
    A_XA, A_XB = 204, 208
    A_CW, A_CR, A_ONE, A_L16 = "v212", "v213", "v214", "v215"
    A_JA, A_JB = 220, 224

    def wq_dma(self, ks):
        a = self.a
        a.i(f"s_add_u32 m0, s66, {(ks % NSQ) * 1024}")
        a.nop(1)
        t = a.vmem(f"buffer_load_dwordx4 {self.vDq}, {SRD_WQ}, s67 offen lds")
        self.rot_next(20480, "s67", ks)
        return t

    def a_setup_private(self):
        a = self.a
        a.i(f"s_mul_i32 s66, {sWR}, {APRIV}")
        a.i(f"s_add_u32 s66, s66, {QST}")

    def a_prefetch_q_addr(self):
        a = self.a
        a.i("v_lshrrev_b32 v216, 2, v0")
        a.i("v_mul_u32_u24 v216, 1280, v216")
        a.i("v_and_b32 v217, 3, v0")
        a.i("v_cmp_eq_u32 vcc, 3, v217")
        a.i(f"v_lshl_add_u32 {self.vDq}, v217, 4, v216")
        a.i("v_mov_b32 v217, 0x40000000")
        a.i(f"v_cndmask_b32 {self.vDq}, {self.vDq}, v217, vcc")
        a.i(f"s_lshl_b32 s62, {sCG}, 2")
        a.i(f"s_add_u32 s62, s62, {sWR}")
        a.i("s_mul_i32 s62, s62, 40")
        a.i(f"s_cmp_eq_u32 {sWR}, 3")
        a.i("s_cselect_b32 s63, 8, 0")
        a.i("s_sub_u32 s62, s62, s63")
        a.i(f"v_add_u32 {self.vDq}, s62, {self.vDq}")

    def x_loads(self):
        a = self.a
        for i in range(10):
            a.i(f"buffer_load_dwordx4 v[{16+4*i}:{19+4*i}], v4, {SRD_X}, s98 offen offset:{128*i}")

    def role_setup(self):
        a = self.a
        a.i(f"s_cmp_ge_u32 {sW}, 4")
        a.i("s_cbranch_scc1 L_SET_B")
        self.a_setup_private()
        self.a_prefetch_q_addr()
        self.rot_setup(20480, "s67", "s69")
        self.ctl_regs(self.A_CW, self.A_CR, self.A_ONE)
        a.i(f"v_lshlrev_b32 {self.A_L16}, 4, v0")
        self.xn_addr(self.A_XA, self.A_XB, "v216", "v217")
        self.rot_xn_base(self.A_XA, self.A_XB, "s69")
        a.i(f"s_cmp_eq_u32 {sWR}, 3")
        a.i("s_cselect_b32 s63, 8, 0")
        a.i("s_add_u32 s63, s63, s66")
        self.tr_addr_nat64(self.vTRq, "s63", 64)
        self.ring_addr()
        a.i(f"s_and_b32 s62, {sRB}, 7")
        a.i("s_mul_i32 s62, s62, 240")
        a.i(f"s_mul_i32 s63, {sWR}, 60")
        a.i("s_add_u32 s62, s62, s63")
        a.i("v_min_u32 v216, 59, v0")
        a.i("v_add_u32 v216, s62, v216")
        a.i("v_mul_u32_u24 v217, 0x5556, v216")
        a.i("v_lshrrev_b32 v217, 16, v217")
        a.i("v_mul_u32_u24 v218, 3, v217")
        a.i("v_sub_u32 v216, v216, v218")
        a.i("v_mul_u32_u24 v217, 1280, v217")
        a.i("v_lshl_add_u32 v202, v216, 7, v217")
        a.i(f"s_mul_i32 s62, {sCG}, 160")
        a.i("s_and_b32 s100, s62, 0xffffff80")
        a.i("s_branch L_SET_J")
        a.label("L_SET_B")
        a.i(f"s_mul_i32 s66, {sWR}, {BPRIV}")
        a.i(f"s_add_u32 s66, s66, {BST}")
        a.i(f"s_lshr_b32 s62, {sCG}, 2")
        a.i(f"s_sub_u32 s63, {sCG}, s62")
        a.i("s_sub_u32 s63, s63, 1")
        a.i("s_lshl_b32 s63, s63, 2")
        a.i(f"s_add_u32 s68, s63, {sWR}")
        a.i("s_mov_b32 s99, 1")
        a.i(f"s_and_b32 s63, {sCG}, 3")
        a.i("s_cmp_lg_u32 s63, 0")
        Lp = a.newlabel("pair")
        a.i(f"s_cbranch_scc1 {Lp}")
        a.i("s_lshl_b32 s62, s62, 1")
        a.i(f"s_add_u32 s68, s62, {sWR}")
        a.i("s_add_u32 s68, s68, 22")
        a.i(f"s_cmp_ge_u32 {sWR}, 2")
        a.i("s_cselect_b32 s99, 1, 0")
        a.i("s_cmp_ge_u32 s68, 27")
        a.i("s_cselect_b32 s99, 0, s99")
        a.i("s_cselect_b32 s68, 0, s68")
        a.label(Lp)
        a.i("s_lshl_b32 s68, s68, 1")
        a.i("s_lshl_b32 s62, s68, 6")
        self.pair_dma_addr(self.vD1a, self.vD1b, 3456, "s62")
        self.ctl_regs(self.B_CW, self.B_CR, self.B_ONE)
        a.i(f"v_lshlrev_b32 {self.B_L16}, 4, v0")
        self.rot_setup(16 * 3456, "s67", "s69")
        self.xn_addr(self.B_XA, self.B_XB, "v246", "v247")
        self.rot_xn_base(self.B_XA, self.B_XB, "s69")
        self.pair_tr_addr(self.vTRa, self.vTRb, 8, "s66")
        self.out_tiles_setup()
        self.out_mixed_addr()
        self.ffn2_addr()
        a.i(f"s_and_b32 s64, {sRB}, 7")
        a.i("s_mul_i32 s62, s64, 80")
        a.i("v_min_u32 v246, 39, v0")
        a.i("v_add_u32 v246, s62, v246")
        a.i("v_mul_u32_u24 v246, 3456, v246")
        a.i("s_lshl_b32 s62, s68, 6")
        a.i("v_add_u32 v226, s62, v246")
        a.i("s_mul_i32 s62, s64, 54")
        a.i(f"s_mul_i32 s63, {sWR}, 432")
        a.i("s_add_u32 s62, s62, s63")
        a.i("v_min_u32 v246, 53, v0")
        a.i("v_add_u32 v246, s62, v246")
        a.i("v_mul_u32_u24 v227, 1280, v246")
        a.i("s_mul_i32 s62, s64, 20")
        a.i(f"s_mul_i32 s63, {sWR}, 160")
        a.i("s_add_u32 s62, s62, s63")
        a.i("v_min_u32 v246, 39, v0")
        a.i("v_cmp_gt_u32 vcc, 20, v246")
        a.i("v_subrev_u32 v247, 20, v246")
        a.i("v_mov_b32 v248, s81")
        a.i("v_mov_b32 v249, s80")
        a.i("v_cndmask_b32 v246, v247, v246, vcc")
        a.i("v_cndmask_b32 v248, v248, v249, vcc")
        a.i("v_add_u32 v246, s62, v246")
        a.i("v_mul_u32_u24 v246, 1280, v246")
        a.i("v_add_u32 v228, v246, v248")
        a.i(f"s_mov_b32 s62, {WKI}")
        self.tr_addr_nat64(self.B_TRK, "s62", 40, "v246", "v247")
        a.i(f"s_and_b32 s64, {sWR}, 1")
        a.i("s_mul_i32 s64, s64, 40960")
        self.xn_addr(self.B_JA, None, "v246", "v247", base_sgpr="s64")
        a.i("v_lshlrev_b32 v253, 4, v0")
        a.i(f"s_mul_i32 s62, {sWR}, 6400")
        a.i("v_add_u32 v253, s62, v253")
        self.x_loads()
        a.i(f"s_and_b32 s64, {sCG}, 3")
        a.i("s_cmp_lg_u32 s64, 0")
        a.i("s_cbranch_scc1 L_SET_J")
        a.i(f"s_add_u32 s63, s62, {WKI}")
        a.i("s_mov_b32 m0, s63")
        a.i("s_mov_b32 s62, 0")
        for j in range(4):
            a.i(f"buffer_load_dwordx4 v253, {SRD_WKV}, s62 offen offset:{1024*j} lds")
        a.i("s_add_u32 m0, s63, 4096")
        a.i("s_mov_b32 s62, 4096")
        for j in range(3):
            a.i(f"buffer_load_dwordx4 v253, {SRD_WKV}, s62 offen offset:{1024*j} lds")
        a.i("s_waitcnt vmcnt(7)")
        a.i("s_branch L_SET_X")
        a.label("L_SET_J")
        a.i("s_waitcnt vmcnt(0)")
        a.label("L_SET_X")

    def role_prefetch(self):
        a = self.a
        Lb = a.newlabel("pfb")
        a.i(f"s_cmp_ge_u32 {sW}, 4")
        a.i(f"s_cbranch_scc1 {Lb}")
        a.vm = []
        self.qtok = [self.wq_dma(ks) for ks in range(NSQ)]
        a.i("s_branch L_LN2")
        a.label(Lb)

    def tr_addr_nat64(self, vdst, base_sgpr, pitch, t0="v216", t1="v217"):
        a = self.a
        a.i(f"v_lshrrev_b32 {t0}, 5, v0")
        a.i(f"v_lshlrev_b32 {t0}, 3, {t0}")
        a.i(f"v_bfe_u32 {t1}, v0, 2, 2")
        a.i(f"v_add_u32 {t0}, {t0}, {t1}")
        a.i(f"v_mul_u32_u24 {t0}, {pitch}, {t0}")
        a.i(f"v_bfe_u32 {t1}, v0, 4, 1")
        a.i(f"v_lshl_add_u32 {t0}, {t1}, 5, {t0}")
        a.i(f"v_and_b32 {t1}, 3, v0")
        a.i(f"v_lshl_add_u32 {t0}, {t1}, 3, {t0}")
        a.i(f"v_add_u32 {vdst}, {base_sgpr}, {t0}")

    def wave_max(self, regs):
        a = self.a
        for dpp in ("row_shr:1 row_mask:0xf", "row_shr:2 row_mask:0xf", "row_shr:4 row_mask:0xf", "row_shr:8 row_mask:0xf",
                    "row_bcast:15 row_mask:0xa", "row_bcast:31 row_mask:0xc"):
            a.nop(2 if len(regs) == 1 else (1 if len(regs) == 2 else 0))
            for r in regs:
                a.i(f"v_max_f32_dpp {r}, {r}, {r} {dpp} bank_mask:0xf")
        a.nop(1)

    def kv_job(self, isV):
        a = self.a
        a.c("---- K/V projection job: B waves 0/1 = m-tile, full K ----")
        D = 16
        def fr(kk): return 48 + 8 * (kk % 4)
        toks = {}
        def reads(kk):
            b = fr(kk); t = []
            t.append(a.lds(f"ds_read_b64_tr_b16 v[{b}:{b+1}], {self.B_TRK} offset:{kk*640}"))
            t.append(a.lds(f"ds_read_b64_tr_b16 v[{b+2}:{b+3}], {self.B_TRK} offset:{kk*640+160}"))
            t.append(a.lds(f"ds_read_b128 v[{b+4}:{b+7}], v{self.B_JA + kk % 4} offset:{kk*1024}"))
            toks[kk] = t
        for kk in range(3): reads(kk)
        for kk in range(40):
            a.wait(lg=toks[kk])
            b = fr(kk)
            W = f"v[{b}:{b+3}]"; X = f"v[{b+4}:{b+7}]"
            C = "0" if kk == 0 else f"v[{D}:{D+15}]"
            if isV: a.i(f"v_mfma_f32_32x32x16_bf16 v[{D}:{D+15}], {X}, {W}, {C}")
            else:   a.i(f"v_mfma_f32_32x32x16_bf16 v[{D}:{D+15}], {W}, {X}, {C}")
            if kk + 3 < 40: reads(kk + 3)
        self.stamp(7, lvl=2)
        a.i(f"s_lshr_b32 s62, {sRB}, 1")
        a.i(f"s_mul_i32 s62, s62, {KVCH}")
        a.i(f"s_add_u32 s62, s62, {WS_KV}")
        a.i(f"s_and_b32 s63, {sRB}, 1")
        a.i("s_lshl_b32 s65, s63, 1")
        a.i(f"s_add_u32 s65, s65, {sWR}")
        a.i("v_and_b32 v93, 31, v0")
        a.i("v_lshrrev_b32 v95, 5, v0")
        if not isV:
            a.i("s_lshl_b32 s64, s65, 10")
            a.i("s_add_u32 s64, s62, s64")
            a.i("s_lshl_b32 s63, s63, 9")
            a.i("s_add_u32 s62, s62, s63")
            a.i(f"s_lshl_b32 s63, {sWR}, 3")
            a.i("s_add_u32 s62, s62, s63")
            a.i(f"s_add_u32 s62, s62, {KV_KH}")
            a.i("v_cmp_gt_u32 vcc, 32, v0")
            a.nop(2)
            for j in range(6): a.i(f"v_cvt_pk_bf16_f32 v{88+j if j < 4 else 96+j-4}, v{D+2*j}, v{D+2*j+1}")
            a.vmem(f"buffer_store_dwordx4 v[88:91], {self.B_L16}, {SRD_WS}, s64 offen sc1")
            a.i("s_mov_b32 exec_lo, -1"); a.i("s_mov_b32 exec_hi, 0")
            a.vmem(f"buffer_store_dwordx2 v[96:97], {self.B_L16}, {SRD_WS}, s62 offen sc1")
            a.i("s_mov_b64 exec, -1")
            a.i(f"v_mul_f32 v92, v{D+8}, v{D+8}")
            for j in range(9, 12): a.i(f"v_fmac_f32 v92, v{D+j}, v{D+j}")
            a.nop(1)
            a.i("v_cndmask_b32 v92, 0, v92, vcc")
            for j in range(8): a.i(f"v_fmac_f32 v92, v{D+j}, v{D+j}")
            a.i("v_mov_b32 v93, v92")
            a.nop(2)
            a.i("v_permlane32_swap_b32 v92, v93")
            a.nop(1)
            a.i("v_add_f32 v92, v92, v93")
            norm_base = WS_KN
        else:
            a.i(f"v_mul_u32_u24 v95, {VROW}, v95")
            a.i("v_lshl_add_u32 v95, v93, 4, v95")
            a.i("s_lshl_b32 s65, s65, 1")
            a.i(f"s_mul_i32 s65, s65, {VFR}")
            a.i("s_add_u32 s62, s62, s65")
            a.i(f"s_add_u32 s62, s62, {KV_V}")
            a.i("v_cmp_eq_u32 vcc, 20, v93")
            a.i("v_cmp_eq_u32 s[64:65], 21, v93")
            a.i("v_mov_b32 v94, 0x3f803f80")
            a.i("v_mov_b32 v98, 0")
            for j in range(8): a.i(f"v_cvt_pk_bf16_f32 v{80+j}, v{D+2*j}, v{D+2*j+1}")
            for j in range(8): a.i(f"v_cndmask_b32 v{80+j}, v{80+j}, v94, vcc")
            for j in range(8): a.i(f"v_cndmask_b32 v{80+j}, v{80+j}, v98, s[64:65]")
            a.i("s_mov_b32 exec_lo, 0x3fffff")
            a.i("s_mov_b32 exec_hi, 0x3fffff")
            a.vmem(f"buffer_store_dwordx4 v[80:83], v95, {SRD_WS}, s62 offen sc1")
            a.vmem(f"buffer_store_dwordx4 v[84:87], v95, {SRD_WS}, s62 offen offset:{VFR} sc1")
            a.i("s_mov_b64 exec, -1")
            a.i(f"v_max3_f32 v92, abs(v{D}), abs(v{D+1}), abs(v{D+2})")
            for j in range(3, 15, 2): a.i(f"v_max3_f32 v92, v92, abs(v{D+j}), abs(v{D+j+1})")
            a.i(f"v_max3_f32 v92, v92, abs(v{D+15}), abs(v{D+15})")
            a.i("v_cmp_gt_u32 vcc, 20, v93")
            a.nop(2)
            a.i("v_cndmask_b32 v92, 0, v92, vcc")
            norm_base = WS_VN
        self.stamp(9, lvl=2)
        self.wave_max(["v92"])
        a.i("v_readlane_b32 s63, v92, 63")
        a.i(f"s_lshl_b32 s62, {sRB}, 1")
        a.i(f"s_add_u32 s62, s62, {sWR}")
        a.i("s_lshl_b32 s62, s62, 2")
        a.i(f"s_add_u32 s62, s62, {norm_base}")
        a.i("v_mov_b32 v92, s63")
        a.i("v_mov_b32 v93, 0")
        a.i("s_mov_b64 exec, 1")
        a.vmem(f"buffer_store_dword v92, v93, {SRD_WS}, s62 offen sc1")
        a.i("s_mov_b64 exec, -1")
        a.wait(vm='all')
        self.stamp(10, lvl=2)
        a.lds(f"ds_add_rtn_u32 v248, {self.B_CW}, {self.B_ONE} offset:{C_KVD}")
        a.wait(lg='all')
        a.i("v_readfirstlane_b32 s62, v248")
        Lnf = a.newlabel("kvnf")
        a.nop(1)
        a.i("s_cmp_lg_u32 s62, 1")
        a.i(f"s_cbranch_scc1 {Lnf}")
        a.i("v_lshlrev_b32 v92, 8, v0")
        a.i(f"v_mov_b32 v93, {sN}")
        a.i(f"s_lshl_b32 s62, {sRB}, 1")
        a.i(f"s_add_u32 s62, s62, {1 if isV else 0}")
        a.i("s_lshl_b32 s62, s62, 2")
        a.i(f"s_add_u32 s62, s62, {WS_FKV}")
        a.i("s_mov_b32 exec_lo, -1"); a.i("s_mov_b32 exec_hi, 0")
        a.i(f"buffer_store_dword v93, v92, {SRD_WS}, s62 offen sc1")
        a.i("s_mov_b64 exec, -1")
        a.label(Lnf)
        a.vm = []

    def q_proj(self):
        a = self.a
        a.c("---- Q projection (transposed): wave = head, both m-tiles ----")
        NS = NSQ
        dt = self.qtok
        if self.o.get('kvgate', 0):
            Lgo = a.newlabel("qgo")
            a.i(f"s_and_b32 s62, {sCG}, 3")
            a.i("s_cmp_lg_u32 s62, 0")
            a.i(f"s_cbranch_scc1 {Lgo}")
            self.lds_spin_ge(C_KVD, 2, "v218", self.A_CR, sleep=1)
            a.label(Lgo)
        a.vm = list(dt); a.lg = []
        B = lambda ks: 48 + 12 * (ks % 3)
        dm = {k: dt[k] for k in range(NS)}
        toks = {}
        def reads(ks):
            a.wait(vm=dm[ks])
            b = B(ks); sl = (ks % NS) * 1024; t = []
            t.append(a.lds(f"ds_read_b64_tr_b16 v[{b}:{b+1}], {self.vTRq} offset:{sl}"))
            t.append(a.lds(f"ds_read_b64_tr_b16 v[{b+2}:{b+3}], {self.vTRq} offset:{sl+256}"))
            self.rot_xn_seg(self.A_XA, self.A_XB, "s69", ks)
            t.append(a.lds(f"ds_read_b128 v[{b+4}:{b+7}], v{self.A_XA + ks % 4} offset:{self.seg_imm(ks)}"))
            t.append(a.lds(f"ds_read_b128 v[{b+8}:{b+11}], v{self.A_XB + ks % 4} offset:{self.seg_imm(ks)}"))
            toks[ks] = t
        reads(0); reads(1)
        for ks in range(40):
            if ks in (0, 10, 20, 30): self.stamp(6 + ks // 10, lvl=2)
            a.wait(lg=toks[ks])
            b = B(ks)
            C = "0" if ks == 0 else "v[16:31]"
            a.i(f"v_mfma_f32_32x32x16_bf16 v[16:31], v[{b}:{b+3}], v[{b+4}:{b+7}], {C}")
            if ks + 2 < 40: reads(ks + 2)
            C = "0" if ks == 0 else "v[32:47]"
            a.i(f"v_mfma_f32_32x32x16_bf16 v[32:47], v[{b}:{b+3}], v[{b+8}:{b+11}], {C}")
            if ks + NS < 40: dm[ks + NS] = self.wq_dma(ks + NS)
            if ks == self.o.get('kvearly', -1):
                a.i("v_lshlrev_b32 v216, 2, v0")
                a.i(f"s_lshl_b32 s63, {sRB}, 8")
                a.i(f"s_add_u32 s101, s63, {WS_FKV}")
                self.kvtok = a.vmem(f"buffer_load_dword v188, v216, {SRD_WS}, s101 offen sc1")
            if ks + NS == 39: self.lds_count(C_QISS, self.A_CW, self.A_ONE)
        self.lds_count(C_XND, self.A_CW, self.A_ONE)
        self.lds_count(C_QDONE, self.A_CW, self.A_ONE)

    S_ = {'a': 16, 'b': 32}; O_ = {'a': 48, 'b': 64}; P_ = {'a': 80, 'b': 88}; C_ = {'a': 96, 'b': 112}
    QL = {'a': 128, 'b': 132}; QH = {'a': 136, 'b': 138}
    KL = [140, 144]; KH = [148, 152]; VV = [156, 164]
    vKL, vKH, vV, vCnt, vDkv = "v172", "v173", "v174", "v180", "v181"
    N2 = {'a': "v182", 'b': "v183"}

    def q_epilogue(self):
        a = self.a
        a.c("---- Q epilogue: scale, pack to bf16 B operands, squared norms ----")
        a.i("v_cmp_gt_u32 vcc, 32, v0")
        a.i(f"v_mov_b32 v216, {hx(f2u(QSCALE))}")
        a.i("v_mov_b32 v217, 0")
        a.nop(7)
        a.i("v_cndmask_b32 v217, v217, v216, vcc")
        for u, D in (('a', 16), ('b', 32)):
            for j in range(8): a.i(f"v_mul_f32 v{D+j}, v216, v{D+j}")
            for j in range(8, 12): a.i(f"v_mul_f32 v{D+j}, v217, v{D+j}")
            for j in range(4): a.i(f"v_cvt_pk_bf16_f32 v{self.QL[u]+j}, v{D+2*j}, v{D+2*j+1}")
            for j in range(2): a.i(f"v_cvt_pk_bf16_f32 v{self.QH[u]+j}, v{D+8+2*j}, v{D+9+2*j}")
            n = self.N2[u]
            a.i(f"v_mul_f32 {n}, v{D}, v{D}")
            for j in range(1, 12): a.i(f"v_fmac_f32 {n}, v{D+j}, v{D+j}")
        for u in "ab":
            a.i(f"v_mov_b32 v{218 if u=='a' else 219}, {self.N2[u]}")
        a.nop(1)
        a.i(f"v_permlane32_swap_b32 {self.N2['a']}, v218")
        a.i(f"v_permlane32_swap_b32 {self.N2['b']}, v219")
        a.nop(1)
        a.i(f"v_add_f32 {self.N2['a']}, {self.N2['a']}, v218")
        a.i(f"v_add_f32 {self.N2['b']}, {self.N2['b']}, v219")

    def qk(self, u, kl, kh, dst=None):
        S = self.S_[u] if dst is None else dst
        C = self.C_[u]
        m0 = f"v_mfma_f32_32x32x16_bf16 v[{S}:{S+15}], v[{kl}:{kl+3}], v[{self.QL[u]}:{self.QL[u]+3}], v[{C}:{C+15}]"
        m1 = f"v_mfma_f32_32x32x8_bf16 v[{S}:{S+15}], v[{kh}:{kh+1}], v[{self.QH[u]}:{self.QH[u]+1}], v[{S}:{S+15}]"
        return m0, m1
    def pv(self, u, vv):
        O = self.O_[u]; P = self.P_[u]
        m0 = f"v_mfma_f32_32x32x16_bf16 v[{O}:{O+15}], v[{vv}:{vv+3}], v[{P}:{P+3}], v[{O}:{O+15}]"
        m1 = f"v_mfma_f32_32x32x16_bf16 v[{O}:{O+15}], v[{vv+4}:{vv+7}], v[{P+4}:{P+7}], v[{O}:{O+15}]"
        return m0, m1

    def ring_addr(self):
        a = self.a
        a.i(f"v_add_u32 {self.vKL}, {AREG}, {self.A_L16}")
        a.i("v_and_b32 v216, 31, v0")
        a.i(f"v_lshlrev_b32 {self.vKH}, 4, v216")
        a.i(f"v_add_u32 {self.vKH}, {AREG + KV_KH}, {self.vKH}")
        a.i("v_min_u32 v217, 21, v216")
        a.i("v_cmp_eq_u32 vcc, 24, v216")
        a.i("v_lshrrev_b32 v219, 5, v0")
        a.i(f"v_mul_u32_u24 v219, {VROW}, v219")
        a.i("v_mov_b32 v218, 20")
        a.i("v_cndmask_b32 v217, v217, v218, vcc")
        a.i("v_lshl_add_u32 v217, v217, 4, v219")
        a.i(f"v_add_u32 {self.vV}, {AREG + KV_V}, v217")
        a.i(f"s_mul_i32 s62, {sWR}, {RSHARE}")
        a.i(f"v_add_u32 {self.vDkv}, s62, {self.A_L16}")
        a.i(f"s_add_u32 s72, s62, {AREG}")
        a.i("s_bfe_u32 s62, s2, 0x40003")
        if not self.o.get('rot', 1): a.i("s_mov_b32 s62, 0")
        a.i(f"s_mul_i32 s79, s62, {KVCH}")
        a.i(f"s_add_u32 s79, s79, {WS_KV}")

    def ring_dma(self, slot):
        a = self.a
        a.i(f"s_add_u32 m0, s72, {slot*RSLOT}")
        a.i(f"s_add_u32 s73, s79, {KVCH}")
        t = [a.vmem(f"buffer_load_dwordx4 {self.vDkv}, {SRD_WS}, s79 offen offset:{1024*j} sc1 lds") for j in range(3)]
        a.i(f"s_cmp_eq_u32 s73, {WS_KV + 16*KVCH}")
        a.i(f"s_cselect_b32 s79, {WS_KV}, s73")
        return t

    def att_init_regs(self):
        a = self.a
        for r in list(range(48, 80)) + list(range(88, 96)) + list(range(self.VV[1], self.VV[1] + 8)):
            a.i(f"v_mov_b32 v{r}, 0")

    def kv_wait(self):
        a = self.a
        a.c("---- wait for K/V of all row blocks ----")
        Lw = a.newlabel("kvw"); Lj = a.newlabel("kvj")
        if self.o.get('kvearly', -1) >= 0:
            a.vm = [self.kvtok]
            a.wait(vm=self.kvtok)
            a.i(f"v_cmp_ne_u32 vcc, {sN}, v188")
            Lslow = a.newlabel("kvslow")
            a.i(f"s_cbranch_vccnz {Lslow}")
            a.i(f"s_cmp_lg_u32 {sWR}, 0")
            a.i(f"s_cbranch_scc1 {Lj}")
            a.i(f"ds_add_u32 {self.A_CW}, {self.A_ONE} offset:{C_KVRDY}")
            a.i(f"s_branch {Lj}")
            a.label(Lslow)
        a.i(f"s_cmp_lg_u32 {sWR}, 0")
        a.i(f"s_cbranch_scc1 {Lw}")
        a.i("v_lshlrev_b32 v216, 2, v0")
        a.i(f"s_lshl_b32 s63, {sRB}, 8")
        a.i(f"s_add_u32 s63, s63, {WS_FKV}")
        self.glb_poll("v216", "s63", "v217", sleep=2)
        a.i(f"ds_add_u32 {self.A_CW}, {self.A_ONE} offset:{C_KVRDY}")
        a.i(f"s_branch {Lj}")
        a.label(Lw)
        self.lds_spin_ge(C_KVRDY, 1, "v218", self.A_CR, sleep=0)
        a.label(Lj)
        a.lg = []; a.vm = []
        a.i("s_waitcnt lgkmcnt(0)")

    def shift_setup(self):
        a = self.a
        a.c("---- softmax shift ----")
        a.i("v_lshlrev_b32 v216, 2, v0")
        a.i(f"s_mov_b32 s62, {WS_KN}")
        t1 = a.vmem(f"buffer_load_dword v184, v216, {SRD_WS}, s62 offen sc1")
        a.i(f"s_mov_b32 s63, {WS_VN}")
        t2 = a.vmem(f"buffer_load_dword v186, v216, {SRD_WS}, s63 offen sc1")
        self.lds_spin_ge(C_QDONE, 4, "v218", self.A_CR, sleep=0)
        pre = [self.ring_dma(c) for c in range(3)]
        self.lds_count(C_GO, self.A_CW, self.A_ONE)
        a.wait(vm=[t1, t2])
        self.wave_max(["v184", "v186"])
        a.i("v_readlane_b32 s62, v184, 63")
        a.i("v_readlane_b32 s64, v186, 63")
        a.nop(1)
        a.i("v_mov_b32 v184, s62")
        a.i("v_mov_b32 v186, s64")
        a.i("v_max_f32 v186, 1.0, v186")
        a.i("v_log_f32 v186, v186")
        a.i(f"v_mov_b32 v185, {hx(f2u(56.5))}")
        for u in "ab":
            n = self.N2[u]
            a.i(f"v_mul_f32 {n}, {n}, v184")
        a.i("v_fma_f32 v186, v186, -0.5, v185")
        for u in "ab": a.i(f"v_sqrt_f32 {self.N2[u]}, {self.N2[u]}")
        a.nop(1)
        for u in "ab": a.i(f"v_mul_f32 {self.N2[u]}, {hx(f2u(1.02))}, {self.N2[u]}")
        a.i(f"v_cmp_nle_f32 vcc, {self.N2['a']}, v186")
        a.i(f"v_cmp_nle_f32 s[64:65], {self.N2['b']}, v186")
        a.nop(1)
        a.i("s_or_b64 vcc, vcc, s[64:65]")
        if self.o.get('force_fallback'): a.i("s_mov_b64 vcc, -1")
        Lsafe = a.newlabel("safe")
        a.i(f"s_cbranch_vccz {Lsafe}")
        self.true_max_pass()
        a.label(Lsafe)
        for u in "ab":
            for j in range(16): a.i(f"v_mov_b32 v{self.C_[u]+j}, {self.N2[u]}")
        return pre

    def true_max_pass(self):
        a = self.a
        a.c("---- fallback: true row max ----")
        for u in "ab":
            for j in range(16): a.i(f"v_mov_b32 v{self.C_[u]+j}, 0")
            a.i(f"v_mov_b32 {self.N2[u]}, 0xff800000")
        a.i("v_and_b32 v216, 31, v0")
        a.i("v_lshlrev_b32 v216, 4, v216")
        a.i("s_mov_b32 s64, 0")
        L = a.newlabel("tm")
        a.label(L)
        a.i("s_lshr_b32 s62, s64, 2")
        a.i(f"s_mul_i32 s62, s62, {KVCH}")
        a.i(f"s_add_u32 s62, s62, {WS_KV}")
        a.i("s_and_b32 s63, s64, 3")
        a.i("s_lshl_b32 s65, s63, 10")
        a.i("s_add_u32 s65, s65, s62")
        a.i(f"buffer_load_dwordx4 v[{self.KL[0]}:{self.KL[0]+3}], {self.A_L16}, {SRD_WS}, s65 offen sc1")
        a.i("s_lshr_b32 s65, s63, 1")
        a.i("s_lshl_b32 s65, s65, 9")
        a.i("s_and_b32 s63, s63, 1")
        a.i("s_lshl_b32 s63, s63, 3")
        a.i("s_add_u32 s65, s65, s63")
        a.i("s_add_u32 s65, s65, s62")
        a.i("s_add_u32 s65, s65, 4096")
        a.i(f"buffer_load_dwordx2 v[{self.KH[0]}:{self.KH[0]+1}], v216, {SRD_WS}, s65 offen sc1")
        a.i("s_waitcnt vmcnt(0)")
        for u in "ab":
            for m in self.qk(u, self.KL[0], self.KH[0]): a.i(m)
        a.nop(12)
        for u in "ab":
            S = self.S_[u]
            for j in range(8): a.i(f"v_max3_f32 {self.N2[u]}, {self.N2[u]}, v{S+2*j}, v{S+2*j+1}")
        a.i("s_add_u32 s64, s64, 1")
        a.i("s_cmp_lt_u32 s64, 64")
        a.i(f"s_cbranch_scc1 {L}")
        a.i(f"v_mov_b32 v218, {self.N2['a']}")
        a.i(f"v_mov_b32 v219, {self.N2['b']}")
        a.nop(1)
        a.i(f"v_permlane32_swap_b32 {self.N2['a']}, v218")
        a.i(f"v_permlane32_swap_b32 {self.N2['b']}, v219")
        a.nop(1)
        a.i(f"v_max_f32 {self.N2['a']}, {self.N2['a']}, v218")
        a.i(f"v_max_f32 {self.N2['b']}, {self.N2['b']}, v219")
        a.i(f"v_sub_f32 {self.N2['a']}, 0, {self.N2['a']}")
        a.i(f"v_sub_f32 {self.N2['b']}, 0, {self.N2['b']}")

    def attention(self, pre):
        a = self.a
        a.c("---- attention main loop ----")
        a.wait(vm=pre[0])
        a.lds(f"ds_add_u32 {self.A_CW}, {self.A_ONE} offset:{C_ARR}")
        self.lds_spin_ge(C_ARR, 4, self.vCnt, self.A_CR, sleep=0)
        a.i("s_mov_b32 s74, 0")
        a.i("s_mov_b32 s78, 8")
        a.lds(f"ds_read_b128 v[{self.KL[0]}:{self.KL[0]+3}], {self.vKL}")
        a.lds(f"ds_read_b128 v[{self.KH[0]}:{self.KH[0]+3}], {self.vKH}")
        a.wait(lg='all')
        for m in self.qk('a', self.KL[0], self.KH[0]): a.i(m)
        a.nop(9)
        self.stamp(7)
        self.stamp(10, True)
        L = "L_ATT"
        a.raw(".p2align 6")
        a.label(L)
        self.loop_start = len(a.lines)
        def egroup(u, k):
            S = self.S_[u]; P = self.P_[u]
            for e in range(4): a.i(f"v_exp_f32 v{S+4*k+e}, v{S+4*k+e}")
            a.i(f"v_cvt_pk_bf16_f32 v{P+2*k}, v{S+4*k}, v{S+4*k+1}")
            a.i(f"v_cvt_pk_bf16_f32 v{P+2*k+1}, v{S+4*k+2}, v{S+4*k+3}")
        for slot in range(4):
            base = slot * RSLOT; nbase = ((slot + 1) % 4) * RSLOT
            a.vm = []; a.lg = []
            if self.o.get('prof') == 3:
                a.i("s_memtime s[90:91]"); a.i("s_waitcnt lgkmcnt(0)")
            if slot == 2:
                Lw3 = a.newlabel("w3")
                a.i("s_cmp_lg_u32 s74, 3")
                a.i(f"s_cbranch_scc1 {Lw3}")
                a.i("s_waitcnt vmcnt(0)")
                a.label(Lw3)
            a.i("s_waitcnt vmcnt(3)")
            if self.o.get('prof') == 3:
                a.i("s_memtime s[92:93]"); a.i("s_waitcnt lgkmcnt(0)")
                a.i("s_sub_u32 s92, s92, s90"); a.i("s_add_u32 s44, s44, s92")
            a.lds(f"ds_add_u32 {self.A_CW}, {self.A_ONE} offset:{C_ARR}")
            for t in range(4):
                kh = self.KH[(t >> 1) % 2] + 2 * (t & 1)
                q0, q1 = self.qk('b', self.KL[t % 2], kh)
                p0, p1 = self.pv('b', self.VV[(t - 1) % 2])
                rd = []
                kn = self.KL[(t + 1) % 2]
                rd.append(('K', f"ds_read_b128 v[{kn}:{kn+3}], {self.vKL} offset:{base + (t+1)*1024 if t < 3 else nbase}"))
                if t & 1:
                    hn = self.KH[((t + 1) >> 1) % 2]
                    rd.append(('K', f"ds_read_b128 v[{hn}:{hn+3}], {self.vKH} offset:{base + 512 if t < 3 else nbase}"))
                vv = self.VV[t % 2]
                rd.append(('V', f"ds_read_b128 v[{vv}:{vv+3}], {self.vV} offset:{base + (2*t)*VFR}"))
                rd.append(('V', f"ds_read_b128 v[{vv+4}:{vv+7}], {self.vV} offset:{base + (2*t+1)*VFR}"))
                ktok, vtok = [], []
                for k, m in enumerate((q0, q1, p0, p1)):
                    a.i(m)
                    if k < len(rd):
                        tk = a.lds(rd[k][1]); (ktok if rd[k][0] == 'K' else vtok).append(tk)
                    egroup('a', k)
                khn = self.KH[((t + 1) >> 1) % 2] + 2 * ((t + 1) & 1)
                q0, q1 = self.qk('a', self.KL[(t + 1) % 2], khn)
                p0, p1 = self.pv('a', self.VV[t % 2])
                a.wait(lg=ktok)
                for k, m in enumerate((q0, q1, p0, p1)):
                    if k == 2: a.wait(lg=vtok)
                    a.i(m)
                    if t == 0 and k == 3:
                        a.lds(f"ds_read_b32 {self.vCnt}, {self.A_CR} offset:{C_ARR}")
                    if t == 1 and k == 0:
                        Lok = a.newlabel("arr")
                        a.i(f"v_cmp_gt_u32 vcc, s78, {self.vCnt}")
                        a.i(f"s_cbranch_vccz {Lok}")
                        if self.o.get('prof'): a.i("s_add_u32 s52, s52, 1")
                        keep = list(a.lg)
                        self.lds_spin_ge(C_ARR, "s78", self.vCnt, self.A_CR, sleep=0)
                        a.lg = keep
                        a.label(Lok)
                    if t == 1 and k == 1:
                        if self.o.get('prof') == 3:
                            a.i("s_memtime s[90:91]"); a.i("s_waitcnt lgkmcnt(0)")
                        if slot == 0: self.ring_dma(3)
                        else:
                            Lnd = a.newlabel("nd")
                            a.i("s_cmp_eq_u32 s74, 3")
                            a.i(f"s_cbranch_scc1 {Lnd}")
                            self.ring_dma((slot + 3) % 4)
                            a.label(Lnd)
                        if self.o.get('prof') == 3:
                            a.i("s_memtime s[92:93]"); a.i("s_waitcnt lgkmcnt(0)")
                            a.i("s_sub_u32 s92, s92, s90"); a.i("s_add_u32 s45, s45, s92")
                        a.i("s_add_u32 s78, s78, 4")
                    egroup('b', k)
        if self.o.get('prof') == 1:
            a.i("s_memtime s[56:57]" if self.o.get('qcyc') else "s_memrealtime s[56:57]")
            a.i("s_waitcnt lgkmcnt(0)")
            for k in range(3):
                a.i(f"s_cmp_eq_u32 s74, {k}")
                a.i(f"s_cselect_b32 s{53+k if k < 2 else 43}, s56, s{53+k if k < 2 else 43}")
        a.i("s_add_u32 s74, s74, 1")
        a.i("s_cmp_lt_u32 s74, 4")
        self.loop_end = len(a.lines)
        a.i(f"s_cbranch_scc1 {L}")
        for m in self.pv('b', self.VV[1]): a.i(m)
        a.vm = []; a.lg = []

    def o_addr(self):
        a = self.a
        a.i(f"s_lshl_b32 s62, {sRB}, 1")
        a.i("s_mul_i32 s62, s62, 40960")
        a.i(f"s_add_u32 s80, s62, {WS_O}")
        a.i(f"s_mul_i32 s63, {sCG}, 5")
        a.i(f"s_add_u32 s81, s63, {sWR}")
        a.i("s_lshl_b32 s81, s81, 10")
        a.i("s_add_u32 s63, s63, 4")
        a.i("s_lshl_b32 s63, s63, 10")
        a.i(f"s_lshr_b32 s65, {sWR}, 1")
        a.i("s_lshl_b32 s65, s65, 9")
        a.i("s_add_u32 s63, s63, s65")
        a.i(f"s_and_b32 s65, {sWR}, 1")
        a.i("s_lshl_b32 s65, s65, 3")
        a.i("s_add_u32 s82, s63, s65")

    def o_epilogue(self):
        a = self.a
        a.c("---- normalise O, publish ----")
        a.i("v_cmp_gt_u32 vcc, 32, v0")
        a.nop(2)
        for mt, u in enumerate("ab"):
            O = self.O_[u]
            a.i(f"v_cndmask_b32 v216, v{O+8}, v{O+12}, vcc")
            a.i("v_rcp_f32 v216, v216")
            a.nop(1)
            a.i("v_mov_b32 v217, v216")
            for j in range(0, 12, 2): a.i(f"v_pk_mul_f32 v[{O+j}:{O+j+1}], v[{O+j}:{O+j+1}], v[216:217]")
            P = self.P_[u]
            for j in range(6): a.i(f"v_cvt_pk_bf16_f32 v{P+j}, v{O+2*j}, v{O+2*j+1}")
            a.i(f"s_add_u32 s68, s80, {mt*40960}")
            a.i("s_add_u32 s69, s68, s81")
            a.vmem(f"buffer_store_dwordx4 v[{P}:{P+3}], {self.A_L16}, {SRD_WS}, s69 offen sc1")
            a.i("s_add_u32 s69, s68, s82")
            a.i("s_mov_b32 exec_lo, -1"); a.i("s_mov_b32 exec_hi, 0")
            a.vmem(f"buffer_store_dwordx2 v[{P+4}:{P+5}], {self.A_L16}, {SRD_WS}, s69 offen sc1")
            a.i("s_mov_b64 exec, -1")
        a.wait(vm='all')
        a.lds(f"ds_add_rtn_u32 v218, {self.A_CW}, {self.A_ONE} offset:{C_OD}")
        a.wait(lg='all')
        a.i("v_readfirstlane_b32 s62, v218")
        a.nop(1)
        a.i("s_cmp_lg_u32 s62, 3")
        a.i("s_cbranch_scc1 L_AEND")
        a.i(f"s_lshl_b32 s62, {sRB}, 7")
        a.i(f"s_lshl_b32 s63, {sCG}, 2")
        a.i("s_add_u32 s62, s62, s63")
        a.i(f"s_add_u32 s62, s62, {WS_FO}")
        a.i(f"v_mov_b32 v217, {sN}")
        a.i("v_mov_b32 v216, 0")
        a.i("s_mov_b64 exec, 1")
        a.i(f"buffer_store_dword v217, v216, {SRD_WS}, s62 offen sc1")
        a.i("s_mov_b64 exec, -1")
        a.label("L_AEND")
        self.stamp(9)
        self.stamp(9, lvl=3)
        self.stamp_flush()
        a.i("s_branch L_END")

    def role_a(self):
        a = self.a
        a.label("L_ROLE_A")
        a.i(f"s_setprio {self.o.get('prioQ', 2)}")
        dt = None
        if self.o.get('noQ'):
            a.i("s_waitcnt vmcnt(0)")
            self.lds_count(C_XND, self.A_CW, self.A_ONE)
            for r in range(16, 48): a.i(f"v_mov_b32 v{r}, 0")
        else: self.q_proj()
        self.stamp(10, lvl=2)
        self.stamp(4)
        self.q_epilogue()
        if self.o.get('dump') == 'q':
            self.dump_regs(128, 12, 0, self.A_L16)
        self.att_init_regs()
        self.o_addr()
        a.i(f"s_setprio {self.o.get('prioA', 2)}")
        self.kv_wait()
        self.stamp(5)
        pre = self.shift_setup()
        self.stamp(6)
        if not self.o.get('noatt'): self.attention(pre)
        else:
            self.loop_start = self.loop_end = len(a.lines)
            a.i("s_waitcnt vmcnt(0)")
        self.stamp(11, True)
        self.stamp(8)
        if self.o.get('dump') == 'o':
            a.nop(16)
            self.dump_regs(48, 32, 0, self.A_L16)
        self.o_epilogue()

    vD1a, vD1b, vTRa, vTRb = "v230", "v231", "v232", "v233"
    B_XA, B_XB = 234, 238
    B_CW, B_CR, B_ONE, B_L16 = "v242", "v243", "v244", "v245"
    B_TRK = "v252"
    B_JA, B_JB = 112, None
    vWa, vWb, vWc, vMa, vMb, vMc = "v220", "v221", "v222", "v223", "v224", "v225"
    vRa, vRb, vRc, vPW, vPR0, vPR1, vXO, vH0 = "v8", "v9", "v10", "v11", "v12", "v13", "v14", "v15"
    vH1 = "v250"
    vPR2, vPR3 = "v254", "v255"

    def pair_dma_addr(self, va, vb, pitch, col_sgpr, comp_rows=8):
        a = self.a
        a.i("v_lshrrev_b32 v246, 3, v0")
        a.i("v_bfe_u32 v247, v0, 4, 1")
        a.i("v_lshlrev_b32 v247, 2, v247")
        a.i("v_and_b32 v248, 7, v0")
        a.i("v_xor_b32 v247, v247, v248")
        a.i(f"v_mul_u32_u24 v246, {pitch}, v246")
        a.i(f"v_lshl_add_u32 {va}, v247, 4, v246")
        a.i(f"v_add_u32 {va}, {col_sgpr}, {va}")
        a.i(f"v_add_u32 {vb}, {comp_rows*pitch - 1024}, {va}")

    def pair_tr_addr(self, va, vb, hmul, base_sgpr):
        a = self.a
        a.i("v_lshrrev_b32 v246, 5, v0")
        a.i(f"v_mul_u32_u24 v246, {hmul}, v246")
        a.i("v_bfe_u32 v247, v0, 2, 2")
        a.i("v_add_u32 v246, v246, v247")
        a.i("v_lshlrev_b32 v246, 7, v246")
        a.i("v_bfe_u32 v247, v0, 4, 1")
        a.i("v_lshlrev_b32 v247, 1, v247")
        a.i("v_bfe_u32 v248, v0, 1, 1")
        a.i("v_add_u32 v247, v247, v248")
        a.i("v_bfe_u32 v248, v0, 3, 1")
        a.i("v_lshlrev_b32 v248, 2, v248")
        a.i("v_xor_b32 v247, v247, v248")
        a.i("v_lshl_add_u32 v246, v247, 4, v246")
        a.i("v_and_b32 v247, 1, v0")
        a.i("v_lshl_add_u32 v246, v247, 3, v246")
        a.i(f"v_add_u32 {va}, {base_sgpr}, v246")
        a.i(f"v_xor_b32 {vb}, 64, v246")
        a.i(f"v_add_u32 {vb}, {base_sgpr}, {vb}")

    def w1_dma(self, ks, part=None):
        a = self.a
        t = []
        if part in (None, 0):
            a.i(f"s_add_u32 m0, s66, {(ks % NS1) * 2048}")
            if part is None: a.nop(1)
        if part in (None, 1):
            t.append(a.vmem(f"buffer_load_dwordx4 {self.vD1a}, {SRD_W1}, s67 offen lds"))
        if part in (None, 2):
            t.append(a.vmem(f"buffer_load_dwordx4 {self.vD1b}, {SRD_W1}, s67 offen offset:1024 lds"))
            self.rot_next(16 * 3456, "s67", ks)
        return t

    def ffn1(self):
        a = self.a
        a.c("---- FFN1 (transposed): h^T tiles, 2 n-tiles x 2 m-tiles per wave ----")
        acc = lambda t, m: 16 + 32 * t + 16 * m
        W = lambda s, t: 80 + 8 * s + 4 * t
        X = lambda s, m: 96 + 8 * s + 4 * m
        d1 = NS1
        dm = dict(self.w1tok); ta = {}; tb = {}
        def rd_wa(ks):
            a.wait(vm=dm[ks])
            s = ks % 2; sl = (ks % NS1) * 2048
            ta[ks] = [a.lds(f"ds_read_b64_tr_b16 v[{W(s,0)}:{W(s,0)+1}], {self.vTRa} offset:{sl}"),
                      a.lds(f"ds_read_b64_tr_b16 v[{W(s,0)+2}:{W(s,0)+3}], {self.vTRa} offset:{sl+512}")]
        def rd_x(ks):
            s = ks % 2
            self.rot_xn_seg(self.B_XA, self.B_XB, "s69", ks)
            ta[ks].append(a.lds(f"ds_read_b128 v[{X(s,0)}:{X(s,0)+3}], v{self.B_XA + ks % 4} offset:{self.seg_imm(ks)}"))
            ta[ks].append(a.lds(f"ds_read_b128 v[{X(s,1)}:{X(s,1)+3}], v{self.B_XB + ks % 4} offset:{self.seg_imm(ks)}"))
        def rd_wb(ks):
            s = ks % 2; sl = (ks % NS1) * 2048
            tb[ks] = [a.lds(f"ds_read_b64_tr_b16 v[{W(s,1)}:{W(s,1)+1}], {self.vTRb} offset:{sl}"),
                      a.lds(f"ds_read_b64_tr_b16 v[{W(s,1)+2}:{W(s,1)+3}], {self.vTRb} offset:{sl+512}")]
        def mf(ks, t, m):
            s = ks % 2; A = acc(t, m)
            C = "0" if ks == 0 else f"v[{A}:{A+15}]"
            a.i(f"v_mfma_f32_32x32x16_bf16 v[{A}:{A+15}], v[{W(s,t)}:{W(s,t)+3}], v[{X(s,m)}:{X(s,m)+3}], {C}")
        rd_wa(0); rd_x(0); rd_wb(0)
        for ks in range(40):
            nx = ks + 1 < 40; dd = ks + d1 < 40
            if ks in (0, 10, 20, 30): self.stamp(6 + ks // 10, lvl=2)
            a.wait(lg=ta[ks])
            mf(ks, 0, 0)
            if nx: rd_wa(ks + 1)
            mf(ks, 0, 1)
            a.wait(lg=tb[ks])
            if nx: rd_x(ks + 1)
            if dd: self.w1_dma(ks + d1, 0)
            mf(ks, 1, 0)
            if nx: rd_wb(ks + 1)
            if dd: dm[ks + d1] = self.w1_dma(ks + d1, 1)
            mf(ks, 1, 1)
            if dd: dm[ks + d1] += self.w1_dma(ks + d1, 2)
        self.lds_count(C_XND, self.B_CW, self.B_ONE)
        if self.o.get('pf', 0): self.l2_prefetch(SRD_W2, 2211840, 3 if self.o.get('pfstride', 128) == 128 else 5, "v246", "v251", sWR, 4)
        self.stamp(10, lvl=2)
        self.stamp(3)
        a.i(f"s_setprio {self.o.get('prioBv', 3)}")
        a.i(f"s_lshl_b32 s62, {sRB}, 1")
        a.i("s_mul_i32 s62, s62, 110592")
        a.i("s_lshl_b32 s63, s68, 11")
        a.i("s_add_u32 s62, s62, s63")
        a.i(f"s_add_u32 s62, s62, {WS_H}")
        a.nop(6)
        for t in range(2):
            for m in range(2):
                A = acc(t, m); R = 80 + 8 * m + 16 * (t & 1)
                for j in range(8): a.i(f"v_cvt_pk_bf16_f32 v{R+j}, v{A+2*j}, v{A+2*j+1}")
                for j in range(8): a.i(f"v_pk_max_i16 v{R+j}, v{R+j}, 0")
                a.i(f"s_add_u32 s63, s62, {m*110592 + t*2048}")
                a.vmem(f"buffer_store_dwordx4 v[{R}:{R+3}], {self.B_L16}, {SRD_WS}, s63 offen sc1")
                a.vmem(f"buffer_store_dwordx4 v[{R+4}:{R+7}], {self.B_L16}, {SRD_WS}, s63 offen offset:1024 sc1")
        a.i(f"s_setprio {self.o.get('prioB', 0)}")

    def h_publish(self):
        a = self.a
        a.i("s_waitcnt vmcnt(0)")
        a.vm = []
        a.lds(f"ds_add_rtn_u32 v246, {self.B_CW}, {self.B_ONE} offset:{C_HD}")
        a.wait(lg='all')
        a.i("v_readfirstlane_b32 s62, v246")
        Lnf = a.newlabel("hnf")
        a.nop(1)
        a.i("s_cmp_lg_u32 s62, 3")
        a.i(f"s_cbranch_scc1 {Lnf}")
        a.i(f"s_lshl_b32 s62, {sRB}, 7")
        a.i(f"s_lshl_b32 s63, {sCG}, 2")
        a.i("s_add_u32 s62, s62, s63")
        a.i(f"s_add_u32 s62, s62, {WS_FH}")
        a.i(f"v_mov_b32 v247, {sN}")
        a.i("v_mov_b32 v246, 0")
        a.i("s_mov_b64 exec, 1")
        a.i(f"buffer_store_dword v247, v246, {SRD_WS}, s62 offen sc1")
        a.i("s_mov_b64 exec, -1")
        a.label(Lnf)

    def out_tiles_setup(self):
        a = self.a
        a.i(f"s_lshr_b32 s62, {sCG}, 1")
        a.i("s_and_b32 s64, s62, 1")
        a.i("s_mul_i32 s62, s62, 5")
        a.i(f"s_and_b32 s82, {sCG}, 1")
        a.i("s_lshl_b32 s63, s82, 1")
        a.i("s_add_u32 s80, s62, s63")
        a.i("s_add_u32 s80, s80, s64")
        a.i("s_lshl_b32 s80, s80, 6")
        a.i("s_xor_b32 s64, s64, 1")
        a.i("s_lshl_b32 s64, s64, 2")
        a.i("s_add_u32 s81, s62, s64")
        a.i("s_lshl_b32 s81, s81, 6")
        a.i(f"s_mul_i32 s83, {sWR}, {BREG}")
        self.pair_dma_addr(self.vWa, self.vWb, 1280, "s80")
        a.i("v_lshrrev_b32 v246, 2, v0")
        a.i("v_mul_u32_u24 v246, 1280, v246")
        a.i("v_and_b32 v247, 3, v0")
        a.i(f"v_lshl_add_u32 {self.vWc}, v247, 4, v246")
        a.i(f"v_add_u32 {self.vWc}, s81, {self.vWc}")
        self.pair_tr_addr(self.vRa, self.vRb, 4, "s83")
        a.i("v_lshrrev_b32 v246, 5, v0")
        a.i("v_lshlrev_b32 v246, 2, v246")
        a.i("v_bfe_u32 v247, v0, 2, 2")
        a.i("v_add_u32 v246, v246, v247")
        a.i("v_lshlrev_b32 v246, 6, v246")
        a.i("v_bfe_u32 v247, v0, 4, 1")
        a.i("v_lshl_add_u32 v246, v247, 5, v246")
        a.i("v_and_b32 v247, 3, v0")
        a.i("v_lshl_add_u32 v246, v247, 3, v246")
        a.i("s_add_u32 s62, s83, 2048")
        a.i(f"v_add_u32 {self.vRc}, s62, v246")
        a.i(f"v_add_u32 {self.vPW}, s83, {self.B_L16}")
        a.i(f"s_lshl_b32 s62, {sWR}, 12")
        a.i(f"v_add_u32 {self.vPR0}, s62, {self.B_L16}")
        a.i(f"v_add_u32 {self.vPR1}, {2*BREG}, {self.vPR0}")
        a.i(f"s_lshl_b32 s62, {sWR}, 10")
        a.i("s_add_u32 s62, s62, 16384")
        a.i(f"v_add_u32 {self.vPR2}, s62, {self.B_L16}")
        a.i(f"v_add_u32 {self.vPR3}, {2*BREG}, {self.vPR2}")

    def w3_dma(self, srd, slot, soff_sgpr, va, vb, vc):
        a = self.a
        a.i(f"s_add_u32 m0, s83, {slot*3072}")
        a.nop(1)
        t = [a.vmem(f"buffer_load_dwordx4 {va}, {srd}, {soff_sgpr} offen lds"),
             a.vmem(f"buffer_load_dwordx4 {vb}, {srd}, {soff_sgpr} offen offset:1024 lds")]
        a.i(f"s_add_u32 m0, s83, {slot*3072 + 2048}")
        a.nop(1)
        t.append(a.vmem(f"buffer_load_dwordx4 {vc}, {srd}, {soff_sgpr} offen lds"))
        return t

    def w3_reads(self, slot, Wb, part=None):
        a = self.a; t = []
        sl = slot * 3072
        if isinstance(part, tuple):
            p = part[1]
            va, o2 = ((self.vRa, 1024), (self.vRb, 1024), (self.vRc, 512))[p]
            t.append(a.lds(f"ds_read_b64_tr_b16 v[{Wb+4*p}:{Wb+4*p+1}], {va} offset:{sl}"))
            t.append(a.lds(f"ds_read_b64_tr_b16 v[{Wb+4*p+2}:{Wb+4*p+3}], {va} offset:{sl+o2}"))
            return t
        if part in (None, 0):
            t.append(a.lds(f"ds_read_b64_tr_b16 v[{Wb}:{Wb+1}], {self.vRa} offset:{sl}"))
            t.append(a.lds(f"ds_read_b64_tr_b16 v[{Wb+2}:{Wb+3}], {self.vRa} offset:{sl+1024}"))
            t.append(a.lds(f"ds_read_b64_tr_b16 v[{Wb+4}:{Wb+5}], {self.vRb} offset:{sl}"))
        if part in (None, 1):
            t.append(a.lds(f"ds_read_b64_tr_b16 v[{Wb+6}:{Wb+7}], {self.vRb} offset:{sl+1024}"))
            t.append(a.lds(f"ds_read_b64_tr_b16 v[{Wb+8}:{Wb+9}], {self.vRc} offset:{sl}"))
            t.append(a.lds(f"ds_read_b64_tr_b16 v[{Wb+10}:{Wb+11}], {self.vRc} offset:{sl+512}"))
        return t

    def five_mfma(self, Wb, H0, H1, first, fill):
        a = self.a
        spec = [(0, 0, H0), (1, 0, H1), (2, 1, H0), (3, 1, H1), (4, 2, H0)]
        for n, (tau, nt, Hb) in enumerate(spec):
            A = 16 + 16 * tau
            C = "0" if first else f"v[{A}:{A+15}]"
            a.i(f"v_mfma_f32_32x32x16_bf16 v[{A}:{A+15}], v[{Wb+4*nt}:{Wb+4*nt+3}], v[{Hb}:{Hb+3}], {C}")
            if n < len(fill) and fill[n]: fill[n]()

    def reduce80(self, dst, bar_target):
        a = self.a
        a.nop(8)
        for g in range(20):
            if len(a.lg) >= 14: a.wait(lg=a.lg[6])
            a.lds(f"ds_write_b128 {self.vPW}, v[{16+4*g}:{19+4*g}] offset:{g*1024}")
        a.wait(lg='all')
        self.lds_count(C_BBAR, self.B_CW, self.B_ONE)
        self.lds_spin_ge(C_BBAR, bar_target, "v246", self.B_CR, sleep=0)
        tk = {}
        def rd(src):
            va = self.vPR0 if src < 2 else self.vPR1
            vb = self.vPR2 if src < 2 else self.vPR3
            tk[src] = [a.lds(f"ds_read_b128 v[{16+20*src+4*e}:{19+20*src+4*e}], {va} offset:{(src&1)*BREG + e*1024}") for e in range(4)]
            tk[src].append(a.lds(f"ds_read_b128 v[{32+20*src}:{35+20*src}], {vb} offset:{(src&1)*BREG}"))
        rd(0); rd(1); rd(2)
        a.wait(lg=tk[1])
        rd(3)
        pk = lambda d, x, y: a.i(f"v_pk_add_f32 v[{d}:{d+1}], v[{x}:{x+1}], v[{y}:{y+1}]")
        for j in range(0, 20, 2): pk(dst + j, 16 + j, 36 + j)
        a.wait(lg=tk[2])
        for j in range(0, 20, 2): pk(dst + j, dst + j, 56 + j)
        a.wait(lg='all')
        for j in range(0, 20, 2): pk(dst + j, dst + j, 76 + j)

    def ffn2(self):
        a = self.a
        a.c("---- FFN2 (transposed): 5 output tiles, split-K over the 4 B waves ----")
        if self.o.get('touch', 0):
            a.vmem(f"buffer_load_dword v251, v227, {SRD_W2}, s80 offen")
            a.vmem(f"buffer_load_dword v254, v227, {SRD_W2}, s81 offen")
        self.lds_spin_ge(C_XND, 8, "v246", self.B_CR)
        NS = 9; PF = self.o.get('d2', 4); HD = self.o.get('dh', 3) + 1
        a.i(f"s_mul_i32 s84, {sWR}, {27*20480}")
        a.i(f"s_and_b32 s62, {sRB}, 7")
        a.i("s_mul_i32 s62, s62, 3")
        a.i(f"s_and_b32 s63, {sCG}, 3")
        a.i("s_mul_i32 s63, s63, 7")
        a.i("s_add_u32 s62, s62, s63")
        a.i("s_cmp_ge_u32 s62, 27")
        a.i("s_cselect_b32 s63, 27, 0")
        a.i("s_sub_u32 s87, s62, s63")
        if not self.o.get('rot', 1): a.i("s_mov_b32 s87, 0")
        a.i("s_mul_i32 s95, s87, 20480")
        dm = {}
        a.i("s_add_u32 s95, s95, s84")
        a.i(f"s_add_u32 s93, s84, {27*20480}")
        def dma(kk, part=None):
            slot = kk % NS
            if part in (None, 0):
                a.i(f"s_add_u32 m0, s83, {slot*3072}")
                if part is None: a.nop(1)
            if part in (None, 1):
                dm[kk] = [a.vmem(f"buffer_load_dwordx4 {self.vWa}, {SRD_W2}, s95 offen lds")]
            if part in (None, 2):
                dm[kk].append(a.vmem(f"buffer_load_dwordx4 {self.vWb}, {SRD_W2}, s95 offen offset:1024 lds"))
                a.i(f"s_add_u32 m0, s83, {slot*3072 + 2048}")
                if part is None: a.nop(1)
            if part in (None, 3):
                dm[kk].append(a.vmem(f"buffer_load_dwordx4 {self.vWc}, {SRD_W2}, s95 offen lds"))
                a.i("s_add_u32 s95, s95, 20480")
                a.i("s_cmp_eq_u32 s95, s93")
                a.i("s_cselect_b32 s95, s84, s95")
        for kk in range(PF): dma(kk)
        self.stamp(5)
        self.one_wave_poll(WS_FH, C_HRDY, sleep=8)
        Lnl = a.newlabel("nolead")
        a.i(f"s_lshl_b32 s62, {sCG}, 2")
        a.i(f"s_add_u32 s62, s62, {sWR}")
        a.i("s_cmp_lg_u32 s62, 0")
        a.i(f"s_cbranch_scc1 {Lnl}")
        a.i("v_mov_b32 v246, 0")
        a.i("v_mov_b32 v247, 1")
        a.i("s_mov_b64 exec, 1")
        a.i(f"global_atomic_add v248, v246, v247, {sDBG} sc0 sc1")
        a.i("s_waitcnt vmcnt(0)")
        a.i("v_readfirstlane_b32 s62, v248")
        a.i("s_mov_b64 exec, -1")
        a.nop(1)
        a.i("s_cmp_lg_u32 s62, 31")
        a.i(f"s_cbranch_scc1 {Lnl}")
        a.i(f"v_mov_b32 v247, {sN}")
        a.i(f"v_mov_b32 v246, {WS_X}")
        a.i("s_mov_b32 s62, 0")
        a.i("s_mov_b64 exec, 1")
        a.i(f"buffer_store_dword v247, v246, {SRD_WS}, s62 offen sc1")
        a.i("s_mov_b64 exec, -1")
        a.label(Lnl)
        self.stamp(6)
        if self.o.get('pf', 0):
            a.i("v_min_u32 v246, 53, v0")
            a.i("v_lshlrev_b32 v246, 7, v246")
            a.i(f"s_mul_i32 s62, {sRB}, 221184")
            a.i(f"s_lshl_b32 s63, {sCG}, 2")
            a.i(f"s_add_u32 s63, s63, {sWR}")
            a.i(f"s_mul_i32 s63, s63, {54*128}")
            a.i("s_add_u32 s62, s62, s63")
            a.i(f"s_add_u32 s62, s62, {WS_H}")
            a.vmem(f"buffer_load_dword v251, v246, {SRD_WS}, s62 offen sc1")
            self.l2_prefetch(SRD_WO, 819200, 1 if self.o.get('pfstride', 128) == 128 else 2, "v246", "v253", sWR, 4)
        H = lambda kk, s: 120 + 8 * (kk % HD) + 4 * s
        hl = {}
        a.i("s_lshl_b32 s96, s87, 10")
        def hload(kk, part=None):
            if part in (None, 0):
                hl[kk] = [a.vmem(f"buffer_load_dwordx4 v[{H(kk,0)}:{H(kk,0)+3}], {self.vH0}, {SRD_WS}, s96 offen sc1")]
            if part in (None, 1):
                hl[kk].append(a.vmem(f"buffer_load_dwordx4 v[{H(kk,1)}:{H(kk,1)+3}], {self.vH1}, {SRD_WS}, s96 offen sc1"))
                a.i("s_add_u32 s96, s96, 1024")
                a.i(f"s_cmp_eq_u32 s96, {27*1024}")
                a.i("s_cselect_b32 s96, 0, s96")
        for kk in range(HD - 1): hload(kk)
        Wb = lambda kk: 96 + 12 * (kk % 2)
        a.wait(vm=dm[0])
        rt = {0: self.w3_reads(0, Wb(0))}
        for kk in range(27):
            a.wait(lg=rt[kk], vm=hl[kk])
            nx = kk + 1 < 27; dd = kk + PF < 27; hh = kk + HD - 1 < 27
            def rd(p, kk=kk):
                if p == 0:
                    a.wait(vm=dm[kk + 1]); rt[kk + 1] = []
                rt[kk + 1] += self.w3_reads((kk + 1) % NS, Wb(kk + 1), ('t', p))
            def g0(kk=kk):
                if nx: rd(0)
                if hh: hload(kk + HD - 1, 0)
            def g1(kk=kk):
                if nx: rd(1)
                if hh: hload(kk + HD - 1, 1)
                if dd: dma(kk + PF, 0)
            def g2(kk=kk):
                if nx: rd(2)
                if dd: dma(kk + PF, 1)
            def g3(kk=kk):
                if dd: dma(kk + PF, 2)
            def g4(kk=kk):
                if dd: dma(kk + PF, 3)
            self.five_mfma(Wb(kk), H(kk, 0), H(kk, 1), kk == 0, [g0, g1, g2, g3, g4])
        self.stamp(7)
        if self.o.get('touch', 0):
            a.i("s_mov_b32 s62, 0")
            a.vmem(f"buffer_load_dword v251, v228, {SRD_WO}, s62 offen")
        a.i(f"s_setprio {self.o.get('prioBv', 3)}")
        self.reduce80(200, 4)
        a.i(f"v_mov_b32 v40, {hx(f2u(-1.4426950408889634))}")
        a.i("v_mov_b32 v41, v40")
        a.i("v_mov_b32 v42, 1.0")
        a.i("v_mov_b32 v43, 1.0")
        for j in range(0, 20, 2): a.i(f"v_pk_mul_f32 v[{16+j}:{17+j}], v[{200+j}:{201+j}], v[40:41]")
        for j in range(20): a.i(f"v_exp_f32 v{16+j}, v{16+j}")
        for j in range(0, 20, 2): a.i(f"v_pk_add_f32 v[{16+j}:{17+j}], v[{16+j}:{17+j}], v[42:43]")
        for j in range(20): a.i(f"v_rcp_f32 v{16+j}, v{16+j}")
        for j in range(0, 20, 2): a.i(f"v_pk_mul_f32 v[{200+j}:{201+j}], v[{200+j}:{201+j}], v[{16+j}:{17+j}]")
        a.i(f"s_setprio {self.o.get('prioB', 0)}")
        self.lds_count(C_BBAR, self.B_CW, self.B_ONE)
        self.lds_spin_ge(C_BBAR, 8, "v246", self.B_CR)

    def out_mixed_addr(self):
        a = self.a
        a.i("v_lshrrev_b32 v246, 3, v0")
        a.i("v_lshrrev_b32 v247, 2, v246")
        a.i("v_mul_u32_u24 v247, 40, v247")
        a.i("v_and_b32 v248, 3, v246")
        a.i("v_add3_u32 v247, v247, v248, 16")
        a.i("v_mul_u32_u24 v247, 1280, v247")
        a.i("v_bfe_u32 v248, v0, 4, 1")
        a.i("v_lshlrev_b32 v248, 2, v248")
        a.i("v_and_b32 v249, 7, v0")
        a.i("v_xor_b32 v248, v248, v249")
        a.i(f"v_lshl_add_u32 {self.vMa}, v248, 4, v247")
        a.i(f"v_add_u32 {self.vMa}, s80, {self.vMa}")
        a.i(f"v_add_u32 {self.vMb}, {20*1280 - 1024}, {self.vMa}")
        a.i("v_lshrrev_b32 v246, 2, v0")
        a.i("v_bfe_u32 v247, v246, 2, 1")
        a.i("v_lshlrev_b32 v247, 1, v247")
        a.i("v_lshrrev_b32 v248, 3, v246")
        a.i("v_add_u32 v247, v247, v248")
        a.i("v_mul_u32_u24 v247, 20, v247")
        a.i("v_and_b32 v248, 3, v246")
        a.i("v_add3_u32 v247, v247, v248, 16")
        a.i("v_mul_u32_u24 v247, 1280, v247")
        a.i("v_and_b32 v248, 3, v0")
        a.i(f"v_lshl_add_u32 {self.vMc}, v248, 4, v247")
        a.i(f"v_add_u32 {self.vMc}, s81, {self.vMc}")
        a.i("v_and_b32 v246, 31, v0")
        a.i("v_mul_u32_u24 v246, 1280, v246")
        a.i("v_lshrrev_b32 v247, 5, v0")
        a.i(f"v_lshl_add_u32 {self.vXO}, v247, 3, v246")

    def ffn2_addr(self):
        a = self.a
        a.i(f"s_lshl_b32 s62, {sRB}, 1")
        a.i("s_add_u32 s63, s62, s82")
        a.i("s_xor_b32 s64, s82, 1")
        a.i("s_add_u32 s64, s62, s64")
        a.i("s_mul_i32 s85, s63, 110592")
        a.i("s_mul_i32 s86, s64, 110592")
        a.i(f"s_mul_i32 s62, {sWR}, {27*1024}")
        a.i(f"s_add_u32 s62, s62, {WS_H}")
        a.i("s_add_u32 s85, s85, s62")
        a.i("s_add_u32 s86, s86, s62")
        a.i(f"v_add_u32 {self.vH0}, s85, {self.B_L16}")
        a.i(f"v_add_u32 {self.vH1}, s86, {self.B_L16}")

    def out_proj(self):
        a = self.a
        a.c("---- output projection + final combine ----")
        dm = {}
        a.i(f"s_lshl_b32 s62, {sWR}, 1")
        a.i("s_add_u32 s93, s62, s82")
        a.i("s_xor_b32 s63, s82, 1")
        a.i("s_add_u32 s94, s62, s63")
        a.i(f"s_mul_i32 s84, s93, {80*1280}")
        a.i(f"s_mul_i32 s87, s94, {80*1280}")
        def wo_dma(e):
            cgo, jj = e // 5, e % 5
            base = "s84" if cgo == 0 else "s87"
            if jj < 4:
                a.i(f"s_add_u32 s67, {base}, {jj*20*1280}")
                dm[e] = self.w3_dma(SRD_WO, e % 9, "s67", self.vWa, self.vWb, self.vWc)
            else:
                dm[e] = self.w3_dma(SRD_WO, e % 9, base, self.vMa, self.vMb, self.vMc)
        for e in range(9):
            wo_dma(e)
            dw = self.o.get('dw', 2)
            if e - dw >= 0: a.wait(vm=dm[e - dw])
        a.wait(vm=dm[8])
        rt0 = self.w3_reads(0, 96)
        a.wait(lg=rt0)
        wo_dma(9)
        a.wait(vm=dm[9])
        xt = []
        a.i(f"s_lshr_b32 s62, {sWR}, 1")
        a.i("s_lshl_b32 s62, s62, 6")
        a.i("s_add_u32 s62, s62, s80")
        a.i(f"s_and_b32 s63, {sWR}, 1")
        a.i("s_xor_b32 s63, s63, s82")
        a.i(f"s_lshl_b32 s64, {sRB}, 1")
        a.i("s_add_u32 s63, s63, s64")
        a.i("s_mul_i32 s63, s63, 40960")
        a.i("s_add_u32 s88, s62, s63")
        a.i("s_add_u32 s64, s64, s82")
        a.i("s_mul_i32 s64, s64, 40960")
        a.i(f"s_lshl_b32 s62, {sWR}, 4")
        a.i("s_add_u32 s64, s64, s62")
        a.i("s_add_u32 s89, s64, s81")
        for e in range(4):
            xt.append(a.vmem(f"buffer_load_dwordx2 v[{220+2*e}:{221+2*e}], {self.vXO}, {SRD_X}, s88 offen offset:{16*e}"))
        xt.append(a.vmem(f"buffer_load_dwordx2 v[228:229], {self.vXO}, {SRD_X}, s89 offen"))
        self.stamp(9)
        self.one_wave_poll(WS_FO, C_ORDY, pre=lambda: (self.lds_spin_ge(C_ARR, 68, "v246", self.B_CR, sleep=8), self.lds_spin_ge(C_OD, 4, "v246", self.B_CR, sleep=1)), sleep=1, rsleep=self.o.get('rs', 3))
        self.stamp(10)
        a.i(f"s_lshl_b32 s62, {sRB}, 1")
        a.i("s_add_u32 s63, s62, s82")
        a.i("s_xor_b32 s64, s82, 1")
        a.i("s_add_u32 s64, s62, s64")
        a.i("s_mul_i32 s85, s63, 40960")
        a.i("s_mul_i32 s86, s64, 40960")
        a.i(f"s_add_u32 s85, s85, {WS_O}")
        a.i(f"s_add_u32 s86, s86, {WS_O}")
        a.i("s_mul_i32 s93, s93, 5120")
        a.i("s_mul_i32 s94, s94, 5120")
        ol = {}
        H = lambda e, s: 120 + 8 * e + 4 * s
        for e in range(10):
            grp = "s93" if e < 5 else "s94"
            a.i(f"s_add_u32 s62, s85, {grp}")
            t0 = a.vmem(f"buffer_load_dwordx4 v[{H(e,0)}:{H(e,0)+3}], {self.B_L16}, {SRD_WS}, s62 offen offset:{(e%5)*1024 if (e%5) < 4 else 0} sc1") if (e % 5) < 4 else None
            if t0 is None:
                a.i("s_add_u32 s62, s62, 4096")
                t0 = a.vmem(f"buffer_load_dwordx4 v[{H(e,0)}:{H(e,0)+3}], {self.B_L16}, {SRD_WS}, s62 offen sc1")
            a.i(f"s_add_u32 s63, s86, {grp}")
            if (e % 5) < 4:
                t1 = a.vmem(f"buffer_load_dwordx4 v[{H(e,1)}:{H(e,1)+3}], {self.B_L16}, {SRD_WS}, s63 offen offset:{(e%5)*1024} sc1")
            else:
                a.i("s_add_u32 s63, s63, 4096")
                t1 = a.vmem(f"buffer_load_dwordx4 v[{H(e,1)}:{H(e,1)+3}], {self.B_L16}, {SRD_WS}, s63 offen sc1")
            ol[e] = [t0, t1]
        Wb = lambda e: 96 + 12 * (e % 2)
        rt = {0: rt0}
        for e in range(10):
            a.wait(lg=rt[e], vm=ol[e])
            def f0(e=e):
                if e + 1 < 10:
                    a.wait(vm=dm[e + 1])
                    rt[e + 1] = self.w3_reads((e + 1) % 9, Wb(e + 1), 0)
            def f1(e=e):
                if e + 1 < 10: rt[e + 1] += self.w3_reads((e + 1) % 9, Wb(e + 1), 1)
            self.five_mfma(Wb(e), H(e, 0), H(e, 1), e == 0, [f0, f1])
        self.stamp(11)
        self.reduce80(96, 12)
        self.stamp(12)
        a.i("s_mov_b32 s62, 0xffff0000")
        a.i("v_lshrrev_b32 v44, 5, v0")
        a.i(f"v_lshl_add_u32 v44, v44, 3, {self.vXO}")
        ost = self.o.get('ostore', '')
        for e in range(5):
            x0, x1 = 220 + 2 * e, 221 + 2 * e
            t = 16 + 4 * (e & 1)
            a.i(f"v_lshlrev_b32 v{t}, 16, v{x0}")
            a.i(f"v_and_b32 v{t+1}, s62, v{x0}")
            a.i(f"v_lshlrev_b32 v{t+2}, 16, v{x1}")
            a.i(f"v_and_b32 v{t+3}, s62, v{x1}")
            for j in (0, 2): a.i(f"v_pk_fma_f32 v[{t+j}:{t+j+1}], v[{96+4*e+j}:{97+4*e+j}], v[{200+4*e+j}:{201+4*e+j}], v[{t+j}:{t+j+1}]")
            a.i(f"v_cvt_pk_bf16_f32 v{24+2*e}, v{t}, v{t+1}")
            a.i(f"v_cvt_pk_bf16_f32 v{25+2*e}, v{t+2}, v{t+3}")
            if e in (1, 3):
                r = 24 + 2 * (e - 1)
                a.nop(2)
                a.i(f"v_permlane32_swap_b32 v{r}, v{r+2}")
                a.i(f"v_permlane32_swap_b32 v{r+1}, v{r+3}")
                a.vmem(f"buffer_store_dwordx4 v[{r}:{r+3}], v44, {SRD_OUT}, s88 offen offset:{16*(e-1)} {ost}".rstrip())
            if e == 4:
                a.vmem(f"buffer_store_dwordx2 v[32:33], {self.vXO}, {SRD_OUT}, s89 offen {ost}".rstrip())

    def role_b(self):
        a = self.a
        a.label("L_ROLE_B")
        Lf1 = a.newlabel("ffn1"); Lv = a.newlabel("vjob"); Lpf = a.newlabel("w1pf")
        a.i(f"s_and_b32 s62, {sCG}, 3")
        a.i("s_cmp_lg_u32 s62, 0")
        a.i(f"s_cbranch_scc1 {Lf1}")
        Lwait = a.newlabel("kvidle")
        a.i(f"s_cmp_ge_u32 {sWR}, 2")
        a.i(f"s_cbranch_scc1 {Lwait}")
        a.i("s_setprio 3")
        a.i(f"s_cmp_eq_u32 {sCG}, 4")
        a.i(f"s_cbranch_scc1 {Lv}")
        a.vm = []; a.lg = []
        self.kv_job(False)
        a.i(f"s_branch {Lwait}")
        a.label(Lv)
        a.vm = []; a.lg = []
        self.kv_job(True)
        a.label(Lwait)
        self.lds_spin_ge(C_KVD, 2, "v246", self.B_CR)
        a.label(Lpf)
        self.stamp(11, lvl=2)
        self.stamp(14)
        a.label(Lf1)
        a.i(f"s_setprio {self.o.get('prioF', 0)}")
        if self.o.get('noB'):
            a.i("s_waitcnt vmcnt(0)")
            a.i("s_branch L_END")
        a.vm = []; a.lg = []
        Lnop = a.newlabel("nopair"); Lhd = a.newlabel("hdone")
        a.i("s_cmp_eq_u32 s99, 0")
        a.i(f"s_cbranch_scc1 {Lnop}")
        if self.o.get('noF1'): a.i(f"s_branch {Lnop}")
        bs = self.o.get('bstart', 'none')
        if bs == 'ring': self.lds_spin_ge(C_GO, 4, "v246", self.B_CR)
        if bs == 'qiss': self.lds_spin_ge(C_QISS, 4, "v246", self.B_CR)
        self.w1tok = {ks: self.w1_dma(ks) for ks in range(NS1)}
        self.ffn1()
        a.i(f"s_branch {Lhd}")
        a.label(Lnop)
        a.i(f"s_setprio {self.o.get('prioB', 0)}")
        self.lds_count(C_XND, self.B_CW, self.B_ONE)
        a.label(Lhd)
        a.vm = []; a.lg = []
        self.h_publish()
        self.stamp(4)
        self.ffn2()
        self.stamp(8)
        if self.o.get('dump') == 'g':
            self.dump_regs(200, 20, 0, self.B_L16)
        self.out_proj()
        a.i("s_waitcnt vmcnt(0)") if self.o.get('prof') else None
        self.stamp(13)
        self.stamp_flush()
        if self.o.get('span'):
            a.i("s_waitcnt vmcnt(0)")
            a.i("s_memrealtime s[90:91]")
            a.i("s_waitcnt lgkmcnt(0)")
            a.i("s_not_b32 s62, s101")
            a.i("v_mov_b32 v1, 8")
            a.i("v_mov_b32 v2, s62")
            a.i("v_mov_b32 v3, s90")
            a.i("s_mov_b64 exec, 1")
            a.i(f"global_atomic_umax v1, v2, {sDBG} sc1")
            a.i(f"global_atomic_umax v1, v3, {sDBG} offset:4 sc1")
            a.i("s_mov_b64 exec, -1")
        a.i("s_branch L_END")

    def build(self):
        a = self.a
        self.prologue()
        self.role_setup()
        a.i("s_waitcnt lgkmcnt(0)")
        a.i(f"s_add_u32 {sN}, {sN}, 1")
        a.vm = []; a.lg = []
        self.stamp(1)
        self.layernorm()
        self.stamp(2)
        if self.o.get('dump') == 'xn':
            self.dump_lds_xn()
        a.i(f"s_cmp_ge_u32 {sW}, 4")
        a.i("s_cbranch_scc1 L_ROLE_B")
        self.role_a()
        self.role_b()
        a.label("L_END")
        a.i("s_endpgm")

    def dump_lds_xn(self):
        a = self.a
        a.i("v_lshlrev_b32 v72, 4, v0")
        a.i(f"s_mul_i32 s70, {sW}, 10240")
        a.i("v_add_u32 v73, s70, v72")
        a.i("s_mul_i32 s71, s2, 81920")
        a.i("s_add_u32 s71, s71, s70")
        a.i(f"s_add_u32 s71, s71, {WS_DBG}")
        for g in range(10):
            a.i(f"ds_read_b128 v[76:79], v73 offset:{g*1024}")
            a.i("s_waitcnt lgkmcnt(0)")
            a.i(f"s_add_u32 s70, s71, {g*1024}")
            a.i(f"buffer_store_dwordx4 v[76:79], v72, {SRD_WS}, s70 offen")
            a.i("s_waitcnt vmcnt(0)")

    def emit(self):
        self.build()
        body = self.a.text()
        hdr = f"""; Fused LayerNorm + multi-query attention + ReLU FFN + gated residual: out = x + (attn(xn) Wo) * silu(relu(xn W1) W2).
;   waves 0-3 : Q projection (one head each), attention over all 2048 keys (K/V fragments streamed through an LDS ring), publish o
; @launch grid=(256,1,1) block=(512,1,1) lds={LDS_TOTAL}
.amdgcn_target "amdgcn-amd-amdhsa--gfx950"
.text
.globl {NAME}_kernel
.p2align 8
.type {NAME}_kernel,@function
{NAME}_kernel:
"""
        ftr = f""".section .rodata,"a"
.p2align 6
.amdhsa_kernel {NAME}_kernel
  .amdhsa_next_free_vgpr 256
  .amdhsa_next_free_sgpr 102
  .amdhsa_accum_offset 256
  .amdhsa_group_segment_fixed_size 0
  .amdhsa_kernarg_size 88
  .amdhsa_user_sgpr_count 2
  .amdhsa_user_sgpr_kernarg_segment_ptr 1
  .amdhsa_system_sgpr_workgroup_id_x 1
  .amdhsa_float_denorm_mode_32 3
.end_amdhsa_kernel
"""
        return hdr + body + ftr

    def hazards(self):
        ins = [t for k, t in self.a.lines if k == 'i']
        probs = check_hazards(ins, "linear")
        body = [t for k, t in self.a.lines[self.loop_start:self.loop_end] if k == 'i']
        probs += check_hazards(body[-40:] + body[:40], "att-backedge")
        return probs

if __name__ == "__main__":
    opt = {}
    out = None
    for arg in sys.argv[1:]:
        if "=" in arg:
            k, v = arg.split("=", 1); opt[k] = int(v) if v.lstrip('-').isdigit() else v
        else: out = arg
    g = Gen(opt)
    txt = g.emit()
    pr = g.hazards()
    for p in pr: print("HAZARD:", p)
    open(out or "k.s", "w").write(txt)
    n = sum(1 for k, t in g.a.lines if k == 'i')
    print(f"wrote {out or 'k.s'}: {n} instructions, {len(pr)} hazards")
```

```python
import re

class Asm:
    def __init__(self):
        self.lines = []
        self.vm = []
        self.lg = []
        self._id = 0
        self.uid = 0
    def i(self, text):
        self.lines.append(('i', text))
    def c(self, text):
        self.lines.append(('c', "; " + text))
    def label(self, name):
        self.lines.append(('l', name))
    def newlabel(self, base):
        self.uid += 1
        return f"L_{base}_{self.uid}"
    def raw(self, text):
        self.lines.append(('c', text))
    def vmem(self, text):
        self.i(text); self._id += 1; self.vm.append(self._id); assert len(self.vm) <= 63, "vmcnt overflow"; return self._id
    def lds(self, text):
        self.i(text); self._id += 1; self.lg.append(self._id); assert len(self.lg) <= 15, "lgkmcnt overflow: " + text; return self._id
    def _cnt(self, lst, tok):
        if tok not in lst: return None
        k = lst.index(tok)
        return len(lst) - 1 - k
    def wait(self, vm=None, lg=None):
        parts = []
        if vm is not None:
            if vm == 'all':
                if True: parts.append("vmcnt(0)"); self.vm = []
            else:
                toks = vm if isinstance(vm, (list, tuple)) else [vm]
                ns = [self._cnt(self.vm, t) for t in toks]; ns = [n for n in ns if n is not None]
                if ns:
                    n = min(ns); parts.append(f"vmcnt({n})"); self.vm = self.vm[len(self.vm) - n:] if n else []
        if lg is not None:
            if lg == 'all':
                parts.append("lgkmcnt(0)"); self.lg = []
            else:
                toks = lg if isinstance(lg, (list, tuple)) else [lg]
                ns = [self._cnt(self.lg, t) for t in toks]; ns = [n for n in ns if n is not None]
                if ns:
                    n = min(ns); parts.append(f"lgkmcnt({n})"); self.lg = self.lg[len(self.lg) - n:] if n else []
        if parts: self.i("s_waitcnt " + " ".join(parts))
    def reset_counters(self):
        self.vm = []; self.lg = []
    def nop(self, n):
        while n > 0:
            k = min(n, 16); self.i(f"s_nop {k-1}"); n -= k
    def text(self):
        out = []
        for k, t in self.lines:
            if k == 'i': out.append("    " + t)
            elif k == 'l': out.append(t + ":")
            else: out.append(t if not t.startswith(";") else "    " + t)
        return "\n".join(out) + "\n"

_reg = re.compile(r"^(-|abs\(|\|)?([vsa])(?:(\d+)|\[(\d+):(\d+)\])\)?\|?$")
def regs_of(op):
    op = op.strip()
    if op in ("vcc",): return [('s', 106), ('s', 107)]
    if op == "vcc_lo": return [('s', 106)]
    if op == "exec": return [('s', 126), ('s', 127)]
    if op == "m0": return [('s', 124)]
    m = _reg.match(op)
    if not m: return []
    k = m.group(2)
    if m.group(3) is not None: return [(k, int(m.group(3)))]
    return [(k, r) for r in range(int(m.group(4)), int(m.group(5)) + 1)]

TRANS = ("v_exp_f32", "v_log_f32", "v_rcp_f32", "v_rsq_f32", "v_sqrt_f32", "v_sin_f32", "v_cos_f32")
def parse(text):
    text = text.split(";")[0].strip()
    sp = text.split(None, 1)
    opc = sp[0]
    rest = sp[1] if len(sp) > 1 else ""
    ops = []; depth = 0; cur = ""
    for ch in rest:
        if ch == '[': depth += 1
        if ch == ']': depth -= 1
        if ch == ',' and depth == 0: ops.append(cur.strip()); cur = ""
        else: cur += ch
    if cur.strip(): ops.append(cur.strip())
    mods = ""
    if ops:
        last = ops[-1].split()
        if last:
            ops[-1] = last[0]; mods = " ".join(last[1:])
    d = dict(opc=opc, ops=ops, mods=mods, w=[], r=[], kind=None, text=text)
    R = lambda idx: sum((regs_of(ops[j]) for j in idx if j < len(ops)), [])
    n = len(ops)
    if opc.startswith("v_mfma"):
        d['kind'] = 'mfma'; d['w'] = R([0]); d['ab'] = R([1, 2]); d['cc'] = R([3]); d['r'] = d['ab'] + d['cc']
        d['passes'] = 4 if "16x16" in opc else (16 if "_2b" in opc else 8)
    elif opc.startswith("v_cmp"):
        d['kind'] = 'valu'; d['w'] = R([0]); d['r'] = R(range(1, n))
    elif opc.startswith("v_readfirstlane") or opc.startswith("v_readlane"):
        d['kind'] = 'valu'; d['w'] = R([0]); d['r'] = R(range(1, n)); d['rl'] = True
    elif opc.startswith("v_permlane32_swap") or opc.startswith("v_permlane16_swap"):
        d['kind'] = 'valu'; d['w'] = R([0, 1]); d['r'] = R([0, 1]); d['perm'] = True
    elif opc.startswith("v_"):
        d['kind'] = 'valu'; d['w'] = R([0]); d['r'] = R(range(1, n))
        if opc.startswith(("v_fmac", "v_dot2c", "v_pk_fmac")): d['r'] += d['w']
        if opc.startswith("v_cndmask") and n == 3: d['r'] += regs_of("vcc")
        if opc.startswith(("v_add_co", "v_addc_co")): d['w'] = R([0, 1]); d['r'] = R(range(2, n))
        if "quad_perm" in text or "row_" in text or "wave_" in text: d['dpp'] = True
        if opc.replace("_e32", "").replace("_e64", "") in TRANS: d['trans'] = True
        if opc.startswith("v_dot2"): d['dot'] = True
    elif opc.startswith("ds_read") :
        d['kind'] = 'ds'; d['w'] = R([0]); d['r'] = R([1])
    elif opc.startswith("ds_add_rtn"):
        d['kind'] = 'ds'; d['w'] = R([0]); d['r'] = R([1, 2])
    elif opc.startswith("ds_"):
        d['kind'] = 'ds'; d['r'] = R(range(0, n))
    elif opc.startswith("buffer_load"):
        d['kind'] = 'vmem'
        if " lds" in " " + text:
            d['r'] = R(range(0, n)) + regs_of("m0"); d['dma'] = True
        else:
            d['w'] = R([0]); d['r'] = R(range(1, n))
    elif opc.startswith("buffer_store"):
        d['kind'] = 'vmem'; d['r'] = R(range(0, n)); d['sdata'] = R([0]); d['wide'] = ("x3" in opc or "x4" in opc)
    elif opc.startswith("buffer_atomic") :
        d['kind'] = 'vmem'; d['r'] = R(range(0, n))
        if "sc0" in text: d['w'] = R([0])
    elif opc.startswith("global_load"):
        d['kind'] = 'vmem'; d['w'] = R([0]); d['r'] = R(range(1, n))
    elif opc.startswith("global_store"):
        d['kind'] = 'vmem'; d['r'] = R(range(0, n)); d['sdata'] = R([1]); d['wide'] = ("x3" in opc or "x4" in opc)
    elif opc.startswith("global_atomic"):
        d['kind'] = 'vmem'
        if "sc0" in text: d['w'] = R([0]); d['r'] = R(range(1, n))
        else: d['r'] = R(range(0, n))
    elif opc == "s_nop":
        d['kind'] = 'nop'; d['n'] = int(ops[0]) + 1
    elif opc.startswith("s_"):
        d['kind'] = 'salu'
        if opc.startswith(("s_cmp", "s_cbranch", "s_branch", "s_waitcnt", "s_barrier", "s_endpgm", "s_sleep", "s_setprio", "s_bitcmp")):
            d['r'] = R(range(0, n))
        else:
            d['w'] = R([0]); d['r'] = R(range(1, n))
    else:
        raise ValueError("unknown opcode " + text)
    return d

def check_hazards(instrs, name=""):
    P = [parse(t) for t in instrs]
    probs = []
    pos = []; s = 0
    for d in P:
        pos.append(s); s += d.get('n', 1)
    def dist(i, j):
        return pos[j] - pos[i] - 1 if P[i]['kind'] != 'nop' else 0
    N = len(P)
    for j, d in enumerate(P):
        if d['kind'] == 'nop': continue
        rs, ws = set(d['r']), set(d['w'])
        for i in range(j - 1, max(-1, j - 24), -1):
            p = P[i]
            if p['kind'] == 'nop': continue
            ds = pos[j] - pos[i] - 1
            if ds > 20: break
            pw = set(p['w'])
            def bad(need, why):
                if ds < need: probs.append(f"{name}: [{i}] {p['text']}  ->  [{j}] {d['text']} : {why} needs {need}, has {ds}")
            pv = {r for r in pw if r[0] == 'v'}; ps = {r for r in pw if r[0] == 's'}
            if p['kind'] == 'valu':
                if d['kind'] == 'mfma' and pv & rs: bad(2, "VALU write -> MFMA read")
                if p.get('trans') and d['kind'] == 'valu' and not d.get('trans') and pv & rs: bad(1, "trans -> VALU")
                if p.get('trans') and d['kind']=='valu' and d.get('trans') and pv & rs: pass
                if d.get('rl') and pv & rs: bad(1, "VALU write -> readlane")
                if d.get('dpp') and pv & rs: bad(2, "VALU write -> DPP")
                if d.get('perm') and pv & rs: bad(2, "VALU write -> permlane")
                if ps & rs:
                    if d['kind'] == 'valu': bad(2, "VALU write SGPR -> VALU read")
                    if d['kind'] in ('vmem',): bad(5, "VALU write SGPR -> VMEM read")
                    if d['kind'] == 'salu' and not d['opc'].startswith('s_cbranch'): bad(1, "VALU write SGPR -> SALU read (pad)")
                if p.get('dot') and d['kind'] == 'valu' and pv & (rs | ws):
                    same = d.get('dot') and d['opc'] == p['opc']
                    if same:
                        csrc = set(regs_of(d['ops'][3])) if len(d['ops']) > 3 else set()
                        ab = set(regs_of(d['ops'][1])) | set(regs_of(d['ops'][2]))
                        if pv & ab: bad(3, "dot -> dot A/B")
                    else: bad(3, "dot -> other")
                if p.get('dot') and d['kind'] in ('ds', 'vmem', 'mfma') and pv & rs: bad(3, "dot -> mem/mfma read")
            if p['kind'] == 'mfma':
                n = p['passes']
                far = {2: 5, 4: 8, 8: 12, 16: 20}[n]
                ovl = {2: 4, 4: 6, 8: 10, 16: 18}[n]
                war = {2: 1, 4: 3, 8: 7, 16: 15}[n]
                if d['kind'] == 'mfma':
                    if pv & set(d['ab']): bad(far, "MFMA D -> MFMA A/B")
                    cc = set(d['cc'])
                    if pv & cc and not (cc == pv and d['passes'] == n): bad(ovl, "MFMA D -> MFMA C overlapped")
                    if pv & cc and cc == pv and n == 2: bad(2, "2 pass chain")
                    if pv & set(d['w']) and not (set(d['w']) == pv and cc == pv) : bad(ovl, "MFMA D -> MFMA D (WAW) ")
                elif d['kind'] == 'valu':
                    if pv & (rs | ws): bad(far, "MFMA D -> VALU")
                    if set(p['cc']) & ws: bad(war, "MFMA C read -> VALU write")
                elif d['kind'] in ('ds', 'vmem'):
                    if pv & (rs | ws): bad(far, "MFMA D -> mem")
            if p['kind'] == 'salu' and ('s', 124) in pw and d.get('dma'): bad(1, "m0 write -> DMA")
            if p['kind'] == 'vmem' and p.get('wide') and set(p['sdata']) & ws:
                bad(2 if d['kind'] in ('valu',) else 1, "wide store data WAR")
    return probs


def check_outstanding(lines):
    import re
    probs = []
    vm, lg = [], []
    pending = {}
    seen = set()
    dead = False
    for n, (k, t) in enumerate(lines):
        if k == 'l':
            seen.add(t)
            if t in pending:
                pv, pl = pending.pop(t)
                if dead: vm, lg = pv, pl
                else:
                    if len(pv) > len(vm): vm = pv
                    if len(pl) > len(lg): lg = pl
            elif dead:
                vm, lg = [], []
            dead = False
            continue
        if k != 'i' or dead: continue
        d = parse(t)
        opc = d['opc']
        if opc == 's_waitcnt':
            m = re.search(r"vmcnt\((\d+)\)", t)
            if m:
                N = int(m.group(1)); vm = vm[len(vm) - N:] if N and len(vm) > N else ([] if not N else vm)
            m = re.search(r"lgkmcnt\((\d+)\)", t)
            if m:
                N = int(m.group(1)); lg = lg[len(lg) - N:] if N and len(lg) > N else ([] if not N else lg)
            continue
        if opc.startswith('s_cbranch') or opc == 's_branch':
            L = d['ops'][0]
            if L not in seen:
                if L in pending:
                    pv, pl = pending[L]
                    pending[L] = (pv if len(pv) > len(vm) else list(vm), pl if len(pl) > len(lg) else list(lg))
                else: pending[L] = (list(vm), list(lg))
            if opc == 's_branch': dead = True
            continue
        if opc == 's_endpgm': dead = True; continue
        used = {r for r in d['r'] + d['w'] if r[0] == 'v'}
        for lst, nm in ((vm, 'vmem'), (lg, 'lds')):
            for regs, txt in lst:
                hit = used & regs
                if hit:
                    if (nm == 'vmem' and d['kind'] == 'vmem' and not (set(d['r']) & regs)) or (nm == 'lds' and d['kind'] == 'ds' and not (set(d['r']) & regs)): continue
                    probs.append(f"line {n}: '{t}' touches {sorted(hit)[:4]} while '{txt}' is outstanding")
        if d['kind'] == 'vmem': vm.append(({r for r in d['w'] if r[0] == 'v'}, t))
        elif d['kind'] == 'ds': lg.append(({r for r in d['w'] if r[0] == 'v'}, t))
        elif opc.startswith(('s_load', 's_memtime', 's_memrealtime')): lg.append((set(), t))
    return probs
```

```python
import sys, struct
from asmlib import Asm, check_hazards, check_outstanding

NAME = "recurrent_scan__grouped_kv_mqa__dense_activation_relu__prompt"

XN    = 0
BST   = 81920
BPRIV = 9216
NS1   = 4
WKI   = BST
AREG  = 118784
QST   = AREG
APRIV = 11136
NSQ   = 10
RSLOT = 11136
RSHARE = 2688
KVCH  = 12288
BREG  = 29696
CTRL  = 163328
LDS_TOTAL = 163840
VROW  = 352
VFR   = 2 * VROW
KV_KH = 4096
KV_V  = 5120
C_ARR, C_KVD, C_ABAR, C_QDONE, C_KVRDY, C_XND, C_HD, C_BBAR, C_OD, C_GO, C_HRDY, C_ORDY, C_KVS, C_QISS = [4 * i for i in range(14)]
CDUMMY = 128

WS_X    = 0
WS_FKV  = 0x1000
WS_FH   = 0x4000
WS_FO   = 0x6000
WS_KN   = 0x8000
WS_VN   = 0x8400
WS_KV   = 0x10000
WS_H    = 0x100000
WS_O    = 0x800000
WS_DBG  = 0xB00000
WS_PROF = 0x1300000
WS_END  = 0x1400000

QSCALE = 0.22360679774997896 * 1.4426950408889634

def f2u(x): return struct.unpack("<I", struct.pack("<f", x))[0]
def hx(x): return "0x%08x" % (x & 0xffffffff)

sW, sRB, sCG, sN, sWR = "s3", "s4", "s5", "s6", "s7"
SRD_X, SRD_WQ, SRD_WKV, SRD_WO, SRD_W1, SRD_W2, SRD_OUT, SRD_WS = [f"s[{8+4*i}:{11+4*i}]" for i in range(8)]
sDBG, sWSP = "s[58:59]", "s[60:61]"

SPIN_LDS = 400000
SPIN_GLB = 40000

class Gen:
    def __init__(self, opt):
        self.o = opt
        self.a = Asm()

    def vr(self, base, n): return f"v[{base}:{base+n-1}]"

    def lds_spin_ge(self, cnt_off, target, vtmp, vctlr, stmp="s62", sleep=1):
        a = self.a
        L = a.newlabel("spin"); Ld = a.newlabel("spind")
        a.i(f"s_mov_b32 {stmp}, 0")
        a.label(L)
        a.i(f"ds_read_b32 {vtmp}, {vctlr} offset:{cnt_off}")
        a.i("s_waitcnt lgkmcnt(0)")
        a.i(f"v_cmp_gt_u32 vcc, {target}, {vtmp}")
        a.i(f"s_cbranch_vccz {Ld}")
        a.i(f"s_add_u32 {stmp}, {stmp}, 1")
        a.i(f"s_cmp_lt_u32 {stmp}, {SPIN_LDS}")
        if sleep: a.i(f"s_sleep {sleep}")
        a.i(f"s_cbranch_scc1 {L}")
        a.label(Ld)
        a.lg = []

    def glb_poll(self, voff, soff, vtmp, stmp="s62", sleep=4):
        a = self.a
        L = a.newlabel("poll"); Ld = a.newlabel("polld")
        a.i(f"s_mov_b32 {stmp}, 0")
        a.label(L)
        a.i(f"buffer_load_dword {vtmp}, {voff}, {SRD_WS}, {soff} offen sc1")
        a.i("s_waitcnt vmcnt(0)")
        a.i(f"v_cmp_ne_u32 vcc, {sN}, {vtmp}")
        a.i(f"s_cbranch_vccz {Ld}")
        a.i(f"s_add_u32 {stmp}, {stmp}, 1")
        a.i(f"s_cmp_lt_u32 {stmp}, {SPIN_GLB}")
        a.i(f"s_sleep {sleep}")
        a.i(f"s_cbranch_scc1 {L}")
        a.label(Ld)
        a.vm = []

    def one_wave_poll(self, flag_base, rdy_off, pre=None, sleep=4, rsleep=2):
        a = self.a
        Lw = a.newlabel("opw"); Lj = a.newlabel("opj")
        keep = list(a.vm)
        a.i(f"s_cmp_lg_u32 {sWR}, 0")
        a.i(f"s_cbranch_scc1 {Lw}")
        if pre: pre()
        a.i("v_and_b32 v246, 7, v0")
        a.i("v_lshlrev_b32 v246, 2, v246")
        a.i(f"s_lshl_b32 s63, {sRB}, 7")
        a.i(f"s_add_u32 s63, s63, {flag_base}")
        self.glb_poll("v246", "s63", "v247", sleep=sleep)
        a.i(f"ds_add_u32 {self.B_CW}, {self.B_ONE} offset:{rdy_off}")
        a.i(f"s_branch {Lj}")
        a.label(Lw)
        self.lds_spin_ge(rdy_off, 1, "v246", self.B_CR, sleep=rsleep)
        a.label(Lj)
        a.i("s_waitcnt lgkmcnt(0)")
        a.vm = keep; a.lg = []

    def lds_count(self, cnt_off, vctlw, vone):
        return self.a.lds(f"ds_add_u32 {vctlw}, {vone} offset:{cnt_off}")

    def dump_regs(self, base, n, slot, vlane16, cond_wave=None):
        a = self.a
        a.i("s_lshl_b32 s70, s2, 3"); a.i(f"s_add_u32 s70, s70, {sW}")
        a.i("s_mul_i32 s70, s70, 0x4000")
        a.i(f"s_add_u32 s70, s70, {WS_DBG + 0x0}")
        for g in range(n // 4):
            a.i(f"s_add_u32 s71, s70, {(slot + g) * 1024}")
            a.i(f"buffer_store_dwordx4 v[{base+4*g}:{base+4*g+3}], {vlane16}, {SRD_WS}, s71 offen")
        a.i("s_waitcnt vmcnt(0)")
        a.vm = []

    def stamp(self, k, cyc=False, lvl=1):
        if self.o.get('prof') != lvl and not (k <= 2 and self.o.get('prof')): return
        a = self.a
        a.i("s_memtime s[56:57]" if cyc else "s_memrealtime s[56:57]")
        a.i("s_waitcnt lgkmcnt(0)")
        a.i(f"s_mov_b32 s{40+k}, s56")
        a.lg = []

    def stamp_flush(self):
        if not self.o.get('prof'): return
        a = self.a
        a.i("s_mov_b64 exec, 1")
        a.i("s_lshl_b32 s62, s2, 3")
        a.i(f"s_add_u32 s62, s62, {sW}")
        a.i("s_lshl_b32 s62, s62, 6")
        a.i(f"s_add_u32 s62, s62, {WS_PROF}")
        a.i("v_mov_b32 v1, 0")
        for g in range(4):
            for j in range(4): a.i(f"v_mov_b32 v{4+j}, s{40+4*g+j}")
            a.i(f"buffer_store_dwordx4 v[4:7], v1, {SRD_WS}, s62 offen offset:{16*g}")
            a.nop(2)
        a.i("s_mov_b64 exec, -1")

    def l2_prefetch(self, srd, total_bytes, ninstr, vtmp, vdst, sub_sgpr, nsub):
        a = self.a
        st = self.o.get('pfstride', 128)
        lines = total_bytes // st
        per_cu = -(-lines // 32); per_w = -(-per_cu // nsub); per_i = -(-per_w // ninstr)
        assert per_i <= 64, per_i
        a.i(f"s_lshr_b32 s62, {sRB}, 3")
        a.i(f"s_lshl_b32 s63, {sCG}, 2")
        a.i("s_add_u32 s62, s62, s63")
        a.i(f"s_mul_i32 s62, s62, {per_cu}")
        a.i(f"s_mul_i32 s63, {sub_sgpr}, {per_w}")
        a.i("s_add_u32 s62, s62, s63")
        a.i(f"v_min_u32 {vtmp}, {per_i - 1}, v0")
        a.i(f"v_add_u32 {vtmp}, s62, {vtmp}")
        a.i(f"v_mul_u32_u24 {vtmp}, {st}, {vtmp}")
        toks = []
        for i in range(ninstr):
            a.i(f"s_mov_b32 s63, {i * per_i * st}")
            toks.append(a.vmem(f"buffer_load_dword {vdst}, {vtmp}, {srd}, s63 offen"))
        return toks

    def prologue(self):
        a = self.a
        a.i("s_cmp_ge_u32 s2, 256")
        a.i("s_cbranch_scc1 L_END")
        if self.o.get('prof'): a.i("s_memrealtime s[94:95]")
        a.i("s_load_dwordx16 s[40:55], s[0:1], 0")
        a.i("s_load_dwordx4 s[56:59], s[0:1], 64")
        a.i("s_load_dwordx2 s[60:61], s[0:1], 80")
        a.i("v_lshrrev_b32 v1, 6, v0")
        a.i("v_and_b32 v0, 63, v0")
        a.i("s_and_b32 s62, s2, 1")
        a.i("s_lshl_b32 s62, s62, 2")
        a.i("s_lshr_b32 s63, s2, 6")
        a.i(f"s_add_u32 {sCG}, s62, s63")
        a.i(f"v_readfirstlane_b32 {sW}, v1")
        a.i("s_bfe_u32 s62, s2, 0x20001")
        a.i("s_lshl_b32 s62, s62, 3")
        a.i("s_bfe_u32 s63, s2, 0x30003")
        a.i(f"s_add_u32 {sRB}, s62, s63")
        a.i("v_lshrrev_b32 v2, 3, v0")
        a.i("v_and_b32 v3, 7, v0")
        a.i(f"s_and_b32 {sWR}, {sW}, 3")
        a.i(f"s_and_b32 s65, {sCG}, 1")
        a.i("s_lshl_b32 s65, s65, 2")
        a.i(f"s_xor_b32 s97, s65, {sW}")
        a.i("s_lshl_b32 s62, s97, 3")
        a.i(f"s_mul_i32 s98, {sRB}, 81920")
        a.i("v_add_u32 v4, s62, v2")
        a.i("v_mul_u32_u24 v4, 1280, v4")
        a.i("v_lshl_add_u32 v4, v3, 4, v4")
        a.i("s_waitcnt lgkmcnt(0)")
        def srd(base, lo, size):
            a.i(f"s_mov_b32 s{base}, s{lo}")
            a.i(f"s_mov_b32 s{base+1}, s{lo+1}")
            a.i(f"s_mov_b32 s{base+2}, {size}")
            a.i(f"s_mov_b32 s{base+3}, 0x20000")
        srd(8, 40, 2621440)
        Lx = a.newlabel("xa")
        a.i(f"s_cmp_ge_u32 {sW}, 4")
        a.i(f"s_cbranch_scc1 {Lx}")
        self.x_loads()
        a.label(Lx)
        a.i(f"s_load_dword {sN}, {sWSP}, {WS_X}")
        srd(12, 42, 819200)
        a.i(f"s_cmp_eq_u32 {sCG}, 4")
        a.i("s_cselect_b32 s16, s46, s44")
        a.i("s_cselect_b32 s17, s47, s45")
        a.i("s_mov_b32 s18, 25600")
        a.i("s_mov_b32 s19, 0x20000")
        srd(20, 48, 819200)
        srd(24, 52, 2211840)
        srd(28, 54, 2211840)
        srd(32, 56, 2621440)
        srd(36, 60, WS_END)
        for r in (200, 202, 230, 231, 253, 181, 215, 245, 220, 221, 222, 223, 224, 225, 226, 227, 228, 14, 15, 250): a.i(f"v_mov_b32 v{r}, 0")
        if self.o.get('prof'):
            for k in range(16): a.i(f"s_mov_b32 s{40+k}, 0")
            a.i("s_mov_b32 s55, s94")
        self.stamp(0)
        if self.o.get('span'):
            a.i("s_memrealtime s[90:91]")
            a.i("s_waitcnt lgkmcnt(0)")
            a.i("s_mov_b32 s101, s90")

    def layernorm(self):
        a = self.a
        a.i("v_lshrrev_b32 v5, 1, v3")
        a.i("v_lshlrev_b32 v5, 10, v5")
        a.i("v_and_b32 v6, 1, v3")
        a.i("v_lshlrev_b32 v6, 9, v6")
        a.i("v_xor_b32 v7, v2, v3")
        a.i("v_lshlrev_b32 v7, 4, v7")
        a.i("v_add3_u32 v5, v5, v6, v7")
        a.i("s_and_b32 s62, s97, 3")
        a.i("s_lshl_b32 s62, s62, 7")
        a.i("s_lshr_b32 s64, s97, 2")
        a.i("s_mul_i32 s64, s64, 40960")
        a.i("s_add_u32 s62, s62, s64")
        a.i("v_add_u32 v5, s62, v5")
        Lz = a.newlabel("nz")
        a.i(f"s_cmp_lg_u32 {sW}, 0")
        a.i(f"s_cbranch_scc1 {Lz}")
        a.i("v_lshlrev_b32 v6, 2, v0")
        a.i(f"v_add_u32 v6, {CTRL}, v6")
        a.i("v_mov_b32 v7, 0")
        a.i("ds_write_b32 v6, v7")
        a.label(Lz)
        a.i("s_mov_b32 s62, 0x3f803f80")
        a.i("s_mov_b32 s63, 0xffff0000")
        for k in range(4): a.i(f"v_mov_b32 v{64+k}, 0")
        a.nop(1)
        X = lambda j: f"v{16+j}"
        for j in range(40):
            a.i(f"v_dot2_f32_bf16 v{64+(j&1)}, {X(j)}, s62, v{64+(j&1)}")
            a.i(f"v_dot2_f32_bf16 v{66+(j&1)}, {X(j)}, {X(j)}, v{66+(j&1)}")
        a.nop(3)
        a.i("v_add_f32 v64, v64, v65")
        a.i("v_add_f32 v66, v66, v67")
        a.nop(1)
        for dpp in ("quad_perm:[1,0,3,2]", "quad_perm:[2,3,0,1]", "row_half_mirror"):
            a.i(f"v_add_f32_dpp v64, v64, v64 {dpp} row_mask:0xf bank_mask:0xf")
            a.i(f"v_add_f32_dpp v66, v66, v66 {dpp} row_mask:0xf bank_mask:0xf")
            a.nop(1)
        a.i(f"v_mul_f32 v64, {hx(f2u(1.0/640))}, v64")
        a.i(f"v_mul_f32 v66, {hx(f2u(1.0/640))}, v66")
        a.i("v_fma_f32 v66, -v64, v64, v66")
        a.i("v_max_f32 v66, 0, v66")
        a.i(f"v_add_f32 v66, {hx(f2u(1e-5))}, v66")
        a.i("v_rsq_f32 v68, v66")
        a.nop(1)
        a.i("v_mov_b32 v69, v68")
        a.i("v_mul_f32 v70, v64, v68")
        a.i("v_sub_f32 v70, 0, v70")
        a.i("v_mov_b32 v71, v70")
        self.stamp(3, lvl=2)
        if not self.o.get('pflate', 1):
            self.role_prefetch()
            a.label("L_LN2")
        self.stamp(4, lvl=2)
        a.i("s_mov_b32 s63, 0xffff0000")
        for g in range(10):
            for d in range(4):
                j = 4 * g + d
                t = 56 + 2 * (j & 3)
                a.i(f"v_lshlrev_b32 v{t}, 16, {X(j)}")
                a.i(f"v_and_b32 v{t+1}, s63, {X(j)}")
            for d in range(4):
                j = 4 * g + d
                t = 56 + 2 * (j & 3)
                a.i(f"v_pk_fma_f32 v[{t}:{t+1}], v[{t}:{t+1}], v[68:69], v[70:71]")
            for d in range(4):
                j = 4 * g + d
                t = 56 + 2 * (j & 3)
                a.i(f"v_cvt_pk_bf16_f32 {X(j)}, v{t}, v{t+1}")
            a.i(f"ds_write_b128 v5, v[{16+4*g}:{19+4*g}] offset:{4096*g}")
        if self.o.get('pflate', 1):
            self.role_prefetch()
            a.label("L_LN2")
        a.i("s_waitcnt lgkmcnt(0)")
        self.stamp(5, lvl=2)
        Lnw = a.newlabel("nw")
        a.i(f"s_cmp_lt_u32 {sW}, 4")
        a.i(f"s_cbranch_scc1 {Lnw}")
        a.i(f"s_and_b32 s62, {sCG}, 3")
        a.i("s_cmp_lg_u32 s62, 0")
        a.i(f"s_cbranch_scc1 {Lnw}")
        a.i("s_waitcnt vmcnt(0)")
        a.label(Lnw)
        a.i("s_barrier")
        a.lg = []

    def xn_addr(self, vA, vB, vt0, vt1, phase_sgpr=None, base_sgpr=None, swap_sgpr=None):
        a = self.a
        a.i(f"v_and_b32 {vt0}, 31, v0")
        a.i(f"v_lshrrev_b32 {vt1}, 5, v0")
        for q in range(4):
            r = f"v{vA+q}"
            if phase_sgpr is None:
                a.i(f"v_add_u32 {r}, {2*q}, {vt1}")
            else:
                a.i(f"s_add_u32 s62, {phase_sgpr}, {q}")
                a.i("s_and_b32 s62, s62, 3")
                a.i("s_lshl_b32 s62, s62, 1")
                a.i(f"v_add_u32 {r}, s62, {vt1}")
            a.i(f"v_xor_b32 {r}, {r}, {vt0}")
            a.i(f"v_lshlrev_b32 {r}, 4, {r}")
            a.i(f"v_lshl_add_u32 {r}, {vt1}, 9, {r}")
            if base_sgpr is not None:
                a.i(f"v_add_u32 {r}, {base_sgpr}, {r}")
            if vB is not None: a.i(f"v_add_u32 v{vB+q}, 40960, {r}")

    WRAPS = (8, 12, 16, 20, 28, 32, 36)
    def rot_setup(self, stride, sK, sRot):
        a = self.a
        a.i(f"s_and_b32 s62, {sRB}, 7")
        a.i("s_lshr_b32 s63, s62, 2")
        a.i("s_add_u32 s62, s62, s63")
        a.i(f"s_lshl_b32 {sRot}, s62, 2")
        if not self.o.get('rot', 1): a.i(f"s_mov_b32 {sRot}, 0")
        a.i(f"s_mul_i32 {sK}, {sRot}, {stride}")
    def rot_next(self, stride, sK, ks=None):
        a = self.a
        a.i(f"s_add_u32 {sK}, {sK}, {stride}")
        if ks is None or (ks + 1) in self.WRAPS:
            a.i(f"s_cmp_eq_u32 {sK}, {40*stride}")
            a.i(f"s_cselect_b32 {sK}, 0, {sK}")
    def rot_xn_base(self, vA, vB, sRot):
        a = self.a
        a.i(f"s_lshl_b32 s62, {sRot}, 10")
        for q in range(4):
            a.i(f"v_add_u32 v{vA+q}, s62, v{vA+q}")
            a.i(f"v_add_u32 v{vB+q}, s62, v{vB+q}")
    def rot_xn_seg(self, vA, vB, sRot, ks):
        a = self.a
        if ks not in self.WRAPS: return
        L = a.newlabel("wrap")
        a.i(f"s_cmp_eq_u32 {sRot}, {40 - ks}")
        a.i(f"s_cbranch_scc0 {L}")
        for q in range(4):
            a.i(f"v_subrev_u32 v{vA+q}, 40960, v{vA+q}")
            a.i(f"v_subrev_u32 v{vB+q}, 40960, v{vB+q}")
        a.label(L)
    def seg_imm(self, ks):
        return ks * 1024

    def ctl_regs(self, vW, vR, vOne):
        a = self.a
        a.i(f"v_lshlrev_b32 {vW}, 2, v0")
        a.i(f"v_add_u32 {vW}, {CTRL + CDUMMY}, {vW}")
        a.i(f"v_mov_b32 {vR}, {CTRL}")
        a.i("v_cmp_eq_u32 vcc, 0, v0")
        a.i(f"v_mov_b32 {vOne}, 1")
        a.nop(1)
        a.i(f"v_cndmask_b32 {vW}, {vW}, {vR}, vcc")

    vDq, vTRq, vTRk = "v200", "v201", "v202"
    A_XA, A_XB = 204, 208
    A_CW, A_CR, A_ONE, A_L16 = "v212", "v213", "v214", "v215"
    A_JA, A_JB = 220, 224

    def wq_dma(self, ks):
        a = self.a
        a.i(f"s_add_u32 m0, s66, {(ks % NSQ) * 1024}")
        a.nop(1)
        t = a.vmem(f"buffer_load_dwordx4 {self.vDq}, {SRD_WQ}, s67 offen lds")
        self.rot_next(20480, "s67", ks)
        return t

    def a_setup_private(self):
        a = self.a
        a.i(f"s_mul_i32 s66, {sWR}, {APRIV}")
        a.i(f"s_add_u32 s66, s66, {QST}")

    def a_prefetch_q_addr(self):
        a = self.a
        a.i("v_lshrrev_b32 v216, 2, v0")
        a.i("v_mul_u32_u24 v216, 1280, v216")
        a.i("v_and_b32 v217, 3, v0")
        a.i("v_cmp_eq_u32 vcc, 3, v217")
        a.i(f"v_lshl_add_u32 {self.vDq}, v217, 4, v216")
        a.i("v_mov_b32 v217, 0x40000000")
        a.i(f"v_cndmask_b32 {self.vDq}, {self.vDq}, v217, vcc")
        a.i(f"s_lshl_b32 s62, {sCG}, 2")
        a.i(f"s_add_u32 s62, s62, {sWR}")
        a.i("s_mul_i32 s62, s62, 40")
        a.i(f"s_cmp_eq_u32 {sWR}, 3")
        a.i("s_cselect_b32 s63, 8, 0")
        a.i("s_sub_u32 s62, s62, s63")
        a.i(f"v_add_u32 {self.vDq}, s62, {self.vDq}")

    def x_loads(self):
        a = self.a
        for i in range(10):
            a.i(f"buffer_load_dwordx4 v[{16+4*i}:{19+4*i}], v4, {SRD_X}, s98 offen offset:{128*i}")

    def role_setup(self):
        a = self.a
        a.i(f"s_cmp_ge_u32 {sW}, 4")
        a.i("s_cbranch_scc1 L_SET_B")
        self.a_setup_private()
        self.a_prefetch_q_addr()
        self.rot_setup(20480, "s67", "s69")
        self.ctl_regs(self.A_CW, self.A_CR, self.A_ONE)
        a.i(f"v_lshlrev_b32 {self.A_L16}, 4, v0")
        self.xn_addr(self.A_XA, self.A_XB, "v216", "v217")
        self.rot_xn_base(self.A_XA, self.A_XB, "s69")
        a.i(f"s_cmp_eq_u32 {sWR}, 3")
        a.i("s_cselect_b32 s63, 8, 0")
        a.i("s_add_u32 s63, s63, s66")
        self.tr_addr_nat64(self.vTRq, "s63", 64)
        self.ring_addr()
        a.i("s_branch L_SET_J")
        a.label("L_SET_B")
        a.i(f"s_mul_i32 s66, {sWR}, {BPRIV}")
        a.i(f"s_add_u32 s66, s66, {BST}")
        a.i(f"s_lshr_b32 s62, {sCG}, 2")
        a.i(f"s_sub_u32 s63, {sCG}, s62")
        a.i("s_sub_u32 s63, s63, 1")
        a.i("s_lshl_b32 s63, s63, 2")
        a.i(f"s_add_u32 s68, s63, {sWR}")
        a.i("s_mov_b32 s99, 1")
        a.i(f"s_and_b32 s63, {sCG}, 3")
        a.i("s_cmp_lg_u32 s63, 0")
        Lp = a.newlabel("pair")
        a.i(f"s_cbranch_scc1 {Lp}")
        a.i("s_lshl_b32 s62, s62, 1")
        a.i(f"s_add_u32 s68, s62, {sWR}")
        a.i("s_add_u32 s68, s68, 22")
        a.i(f"s_cmp_ge_u32 {sWR}, 2")
        a.i("s_cselect_b32 s99, 1, 0")
        a.i("s_cmp_ge_u32 s68, 27")
        a.i("s_cselect_b32 s99, 0, s99")
        a.i("s_cselect_b32 s68, 0, s68")
        a.label(Lp)
        a.i("s_lshl_b32 s68, s68, 1")
        a.i("s_lshl_b32 s62, s68, 6")
        self.pair_dma_addr(self.vD1a, self.vD1b, 3456, "s62")
        self.ctl_regs(self.B_CW, self.B_CR, self.B_ONE)
        a.i(f"v_lshlrev_b32 {self.B_L16}, 4, v0")
        self.rot_setup(16 * 3456, "s67", "s69")
        self.xn_addr(self.B_XA, self.B_XB, "v246", "v247")
        self.rot_xn_base(self.B_XA, self.B_XB, "s69")
        self.pair_tr_addr(self.vTRa, self.vTRb, 8, "s66")
        a.i(f"s_mov_b32 s62, {WKI}")
        self.tr_addr_nat64(self.B_TRK, "s62", 40, "v246", "v247")
        a.i(f"s_and_b32 s64, {sWR}, 1")
        a.i("s_mul_i32 s64, s64, 40960")
        self.xn_addr(self.B_JA, None, "v246", "v247", base_sgpr="s64")
        a.i("v_lshlrev_b32 v253, 4, v0")
        a.i(f"s_mul_i32 s62, {sWR}, 6400")
        a.i("v_add_u32 v253, s62, v253")
        self.x_loads()
        a.i(f"s_and_b32 s64, {sCG}, 3")
        a.i("s_cmp_lg_u32 s64, 0")
        a.i("s_cbranch_scc1 L_SET_NK")
        a.i(f"s_add_u32 s63, s62, {WKI}")
        a.i("s_mov_b32 m0, s63")
        a.i("s_mov_b32 s62, 0")
        for j in range(4):
            a.i(f"buffer_load_dwordx4 v253, {SRD_WKV}, s62 offen offset:{1024*j} lds")
        a.i("s_add_u32 m0, s63, 4096")
        a.i("s_mov_b32 s62, 4096")
        for j in range(3):
            a.i(f"buffer_load_dwordx4 v253, {SRD_WKV}, s62 offen offset:{1024*j} lds")
        a.label("L_SET_NK")
        self.out_tiles_setup()
        self.out_mixed_addr()
        self.ffn2_addr()
        a.i(f"s_and_b32 s64, {sCG}, 3")
        a.i("s_cmp_lg_u32 s64, 0")
        a.i("s_cbranch_scc1 L_SET_J")
        a.i("s_waitcnt vmcnt(7)")
        a.i("s_branch L_SET_X")
        a.label("L_SET_J")
        a.i("s_waitcnt vmcnt(0)")
        a.label("L_SET_X")

    def role_prefetch(self):
        a = self.a
        Lb = a.newlabel("pfb")
        a.i(f"s_cmp_ge_u32 {sW}, 4")
        a.i(f"s_cbranch_scc1 {Lb}")
        a.vm = []
        self.qtok = [self.wq_dma(ks) for ks in range(NSQ)]
        a.i("s_branch L_LN2")
        a.label(Lb)

    def tr_addr_nat64(self, vdst, base_sgpr, pitch, t0="v216", t1="v217"):
        a = self.a
        a.i(f"v_lshrrev_b32 {t0}, 5, v0")
        a.i(f"v_lshlrev_b32 {t0}, 3, {t0}")
        a.i(f"v_bfe_u32 {t1}, v0, 2, 2")
        a.i(f"v_add_u32 {t0}, {t0}, {t1}")
        a.i(f"v_mul_u32_u24 {t0}, {pitch}, {t0}")
        a.i(f"v_bfe_u32 {t1}, v0, 4, 1")
        a.i(f"v_lshl_add_u32 {t0}, {t1}, 5, {t0}")
        a.i(f"v_and_b32 {t1}, 3, v0")
        a.i(f"v_lshl_add_u32 {t0}, {t1}, 3, {t0}")
        a.i(f"v_add_u32 {vdst}, {base_sgpr}, {t0}")

    def wave_max(self, regs):
        a = self.a
        for dpp in ("row_shr:1 row_mask:0xf", "row_shr:2 row_mask:0xf", "row_shr:4 row_mask:0xf", "row_shr:8 row_mask:0xf",
                    "row_bcast:15 row_mask:0xa", "row_bcast:31 row_mask:0xc"):
            a.nop(2 if len(regs) == 1 else (1 if len(regs) == 2 else 0))
            for r in regs:
                a.i(f"v_max_f32_dpp {r}, {r}, {r} {dpp} bank_mask:0xf")
        a.nop(1)

    def kv_job(self, isV):
        a = self.a
        a.c("---- K/V projection job: B waves 0/1 = m-tile, full K ----")
        D = 16
        def fr(kk): return 48 + 8 * (kk % 4)
        toks = {}
        def reads(kk):
            b = fr(kk); t = []
            t.append(a.lds(f"ds_read_b64_tr_b16 v[{b}:{b+1}], {self.B_TRK} offset:{kk*640}"))
            t.append(a.lds(f"ds_read_b64_tr_b16 v[{b+2}:{b+3}], {self.B_TRK} offset:{kk*640+160}"))
            t.append(a.lds(f"ds_read_b128 v[{b+4}:{b+7}], v{self.B_JA + kk % 4} offset:{kk*1024}"))
            toks[kk] = t
        for kk in range(3): reads(kk)
        for kk in range(40):
            a.wait(lg=toks[kk])
            b = fr(kk)
            W = f"v[{b}:{b+3}]"; X = f"v[{b+4}:{b+7}]"
            C = "0" if kk == 0 else f"v[{D}:{D+15}]"
            if isV: a.i(f"v_mfma_f32_32x32x16_bf16 v[{D}:{D+15}], {X}, {W}, {C}")
            else:   a.i(f"v_mfma_f32_32x32x16_bf16 v[{D}:{D+15}], {W}, {X}, {C}")
            if kk + 3 < 40: reads(kk + 3)
        self.stamp(7, lvl=2)
        a.i(f"s_lshr_b32 s62, {sRB}, 1")
        a.i(f"s_mul_i32 s62, s62, {KVCH}")
        a.i(f"s_add_u32 s62, s62, {WS_KV}")
        a.i(f"s_and_b32 s63, {sRB}, 1")
        a.i("s_lshl_b32 s65, s63, 1")
        a.i(f"s_add_u32 s65, s65, {sWR}")
        a.i("v_and_b32 v93, 31, v0")
        a.i("v_lshrrev_b32 v95, 5, v0")
        if not isV:
            a.i("s_lshl_b32 s64, s65, 10")
            a.i("s_add_u32 s64, s62, s64")
            a.i("s_lshl_b32 s63, s63, 9")
            a.i("s_add_u32 s62, s62, s63")
            a.i(f"s_lshl_b32 s63, {sWR}, 3")
            a.i("s_add_u32 s62, s62, s63")
            a.i(f"s_add_u32 s62, s62, {KV_KH}")
            a.i("v_cmp_gt_u32 vcc, 32, v0")
            a.nop(2)
            for j in range(6): a.i(f"v_cvt_pk_bf16_f32 v{88+j if j < 4 else 96+j-4}, v{D+2*j}, v{D+2*j+1}")
            a.vmem(f"buffer_store_dwordx4 v[88:91], {self.B_L16}, {SRD_WS}, s64 offen sc1")
            a.i("s_mov_b32 exec_lo, -1"); a.i("s_mov_b32 exec_hi, 0")
            a.vmem(f"buffer_store_dwordx2 v[96:97], {self.B_L16}, {SRD_WS}, s62 offen sc1")
            a.i("s_mov_b64 exec, -1")
            a.i(f"v_mul_f32 v92, v{D+8}, v{D+8}")
            for j in range(9, 12): a.i(f"v_fmac_f32 v92, v{D+j}, v{D+j}")
            a.nop(1)
            a.i("v_cndmask_b32 v92, 0, v92, vcc")
            for j in range(8): a.i(f"v_fmac_f32 v92, v{D+j}, v{D+j}")
            a.i("v_mov_b32 v93, v92")
            a.nop(2)
            a.i("v_permlane32_swap_b32 v92, v93")
            a.nop(1)
            a.i("v_add_f32 v92, v92, v93")
            norm_base = WS_KN
        else:
            a.i(f"v_mul_u32_u24 v95, {VROW}, v95")
            a.i("v_lshl_add_u32 v95, v93, 4, v95")
            a.i("s_lshl_b32 s65, s65, 1")
            a.i(f"s_mul_i32 s65, s65, {VFR}")
            a.i("s_add_u32 s62, s62, s65")
            a.i(f"s_add_u32 s62, s62, {KV_V}")
            a.i("v_cmp_eq_u32 vcc, 20, v93")
            a.i("v_cmp_eq_u32 s[64:65], 21, v93")
            a.i("v_mov_b32 v94, 0x3f803f80")
            a.i("v_mov_b32 v98, 0")
            for j in range(8): a.i(f"v_cvt_pk_bf16_f32 v{80+j}, v{D+2*j}, v{D+2*j+1}")
            for j in range(8): a.i(f"v_cndmask_b32 v{80+j}, v{80+j}, v94, vcc")
            for j in range(8): a.i(f"v_cndmask_b32 v{80+j}, v{80+j}, v98, s[64:65]")
            a.i("s_mov_b32 exec_lo, 0x3fffff")
            a.i("s_mov_b32 exec_hi, 0x3fffff")
            a.vmem(f"buffer_store_dwordx4 v[80:83], v95, {SRD_WS}, s62 offen sc1")
            a.vmem(f"buffer_store_dwordx4 v[84:87], v95, {SRD_WS}, s62 offen offset:{VFR} sc1")
            a.i("s_mov_b64 exec, -1")
            a.i(f"v_max3_f32 v92, abs(v{D}), abs(v{D+1}), abs(v{D+2})")
            for j in range(3, 15, 2): a.i(f"v_max3_f32 v92, v92, abs(v{D+j}), abs(v{D+j+1})")
            a.i(f"v_max3_f32 v92, v92, abs(v{D+15}), abs(v{D+15})")
            a.i("v_cmp_gt_u32 vcc, 20, v93")
            a.nop(2)
            a.i("v_cndmask_b32 v92, 0, v92, vcc")
            norm_base = WS_VN
        self.stamp(9, lvl=2)
        self.wave_max(["v92"])
        a.i("v_readlane_b32 s63, v92, 63")
        a.i(f"s_lshl_b32 s62, {sRB}, 1")
        a.i(f"s_add_u32 s62, s62, {sWR}")
        a.i("s_lshl_b32 s62, s62, 2")
        a.i(f"s_add_u32 s62, s62, {norm_base}")
        a.i("v_mov_b32 v92, s63")
        a.i("v_mov_b32 v93, 0")
        a.i("s_mov_b64 exec, 1")
        a.vmem(f"buffer_store_dword v92, v93, {SRD_WS}, s62 offen sc1")
        a.i("s_mov_b64 exec, -1")
        a.wait(vm='all')
        self.stamp(10, lvl=2)
        a.lds(f"ds_add_rtn_u32 v248, {self.B_CW}, {self.B_ONE} offset:{C_KVD}")
        a.wait(lg='all')
        a.i("v_readfirstlane_b32 s62, v248")
        Lnf = a.newlabel("kvnf")
        a.nop(1)
        a.i("s_cmp_lg_u32 s62, 1")
        a.i(f"s_cbranch_scc1 {Lnf}")
        a.i("v_lshlrev_b32 v92, 8, v0")
        a.i(f"v_mov_b32 v93, {sN}")
        a.i(f"s_lshl_b32 s62, {sRB}, 1")
        a.i(f"s_add_u32 s62, s62, {1 if isV else 0}")
        a.i("s_lshl_b32 s62, s62, 2")
        a.i(f"s_add_u32 s62, s62, {WS_FKV}")
        a.i("s_mov_b32 exec_lo, -1"); a.i("s_mov_b32 exec_hi, 0")
        a.i(f"buffer_store_dword v93, v92, {SRD_WS}, s62 offen sc1")
        a.i("s_mov_b64 exec, -1")
        a.label(Lnf)
        a.vm = []

    def q_proj(self):
        a = self.a
        a.c("---- Q projection (transposed): wave = head, both m-tiles ----")
        NS = NSQ
        dt = self.qtok
        if self.o.get('kvgate', 0):
            Lgo = a.newlabel("qgo")
            a.i(f"s_and_b32 s62, {sCG}, 3")
            a.i("s_cmp_lg_u32 s62, 0")
            a.i(f"s_cbranch_scc1 {Lgo}")
            self.lds_spin_ge(C_KVD, 2, "v218", self.A_CR, sleep=1)
            a.label(Lgo)
        a.vm = list(dt); a.lg = []
        B = lambda ks: 48 + 12 * (ks % 3)
        dm = {k: dt[k] for k in range(NS)}
        toks = {}
        def reads(ks):
            a.wait(vm=dm[ks])
            b = B(ks); sl = (ks % NS) * 1024; t = []
            t.append(a.lds(f"ds_read_b64_tr_b16 v[{b}:{b+1}], {self.vTRq} offset:{sl}"))
            t.append(a.lds(f"ds_read_b64_tr_b16 v[{b+2}:{b+3}], {self.vTRq} offset:{sl+256}"))
            self.rot_xn_seg(self.A_XA, self.A_XB, "s69", ks)
            t.append(a.lds(f"ds_read_b128 v[{b+4}:{b+7}], v{self.A_XA + ks % 4} offset:{self.seg_imm(ks)}"))
            t.append(a.lds(f"ds_read_b128 v[{b+8}:{b+11}], v{self.A_XB + ks % 4} offset:{self.seg_imm(ks)}"))
            toks[ks] = t
        reads(0); reads(1)
        for ks in range(40):
            if ks in (0, 10, 20, 30): self.stamp(6 + ks // 10, lvl=2)
            a.wait(lg=toks[ks])
            b = B(ks)
            C = "0" if ks == 0 else "v[16:31]"
            a.i(f"v_mfma_f32_32x32x16_bf16 v[16:31], v[{b}:{b+3}], v[{b+4}:{b+7}], {C}")
            if ks + 2 < 40: reads(ks + 2)
            C = "0" if ks == 0 else "v[32:47]"
            a.i(f"v_mfma_f32_32x32x16_bf16 v[32:47], v[{b}:{b+3}], v[{b+8}:{b+11}], {C}")
            if ks + NS < 40: dm[ks + NS] = self.wq_dma(ks + NS)
            if ks == self.o.get('kvearly', -1):
                a.i("v_lshlrev_b32 v216, 2, v0")
                a.i(f"s_lshl_b32 s63, {sRB}, 8")
                a.i(f"s_add_u32 s101, s63, {WS_FKV}")
                self.kvtok = a.vmem(f"buffer_load_dword v188, v216, {SRD_WS}, s101 offen sc1")
            if ks + NS == 39: self.lds_count(C_QISS, self.A_CW, self.A_ONE)
        self.lds_count(C_XND, self.A_CW, self.A_ONE)
        self.lds_count(C_QDONE, self.A_CW, self.A_ONE)

    S_ = {'a': 16, 'b': 32}; O_ = {'a': 48, 'b': 64}; P_ = {'a': 80, 'b': 88}; C_ = {'a': 96, 'b': 112}
    QL = {'a': 128, 'b': 132}; QH = {'a': 136, 'b': 138}
    KL = [140, 144]; KH = [148, 152]; VV = [156, 164]
    vKL, vKH, vV, vCnt, vDkv = "v172", "v173", "v174", "v180", "v181"
    N2 = {'a': "v182", 'b': "v183"}

    def q_epilogue(self):
        a = self.a
        a.c("---- Q epilogue: scale, pack to bf16 B operands, squared norms ----")
        a.i("v_cmp_gt_u32 vcc, 32, v0")
        a.i(f"v_mov_b32 v216, {hx(f2u(QSCALE))}")
        a.i("v_mov_b32 v217, 0")
        a.nop(7)
        a.i("v_cndmask_b32 v217, v217, v216, vcc")
        for u, D in (('a', 16), ('b', 32)):
            for j in range(8): a.i(f"v_mul_f32 v{D+j}, v216, v{D+j}")
            for j in range(8, 12): a.i(f"v_mul_f32 v{D+j}, v217, v{D+j}")
            for j in range(4): a.i(f"v_cvt_pk_bf16_f32 v{self.QL[u]+j}, v{D+2*j}, v{D+2*j+1}")
            for j in range(2): a.i(f"v_cvt_pk_bf16_f32 v{self.QH[u]+j}, v{D+8+2*j}, v{D+9+2*j}")
            n = self.N2[u]
            a.i(f"v_mul_f32 {n}, v{D}, v{D}")
            for j in range(1, 12): a.i(f"v_fmac_f32 {n}, v{D+j}, v{D+j}")
        for u in "ab":
            a.i(f"v_mov_b32 v{218 if u=='a' else 219}, {self.N2[u]}")
        a.nop(1)
        a.i(f"v_permlane32_swap_b32 {self.N2['a']}, v218")
        a.i(f"v_permlane32_swap_b32 {self.N2['b']}, v219")
        a.nop(1)
        a.i(f"v_add_f32 {self.N2['a']}, {self.N2['a']}, v218")
        a.i(f"v_add_f32 {self.N2['b']}, {self.N2['b']}, v219")

    def qk(self, u, kl, kh, dst=None):
        S = self.S_[u] if dst is None else dst
        C = self.C_[u]
        m0 = f"v_mfma_f32_32x32x16_bf16 v[{S}:{S+15}], v[{kl}:{kl+3}], v[{self.QL[u]}:{self.QL[u]+3}], v[{C}:{C+15}]"
        m1 = f"v_mfma_f32_32x32x8_bf16 v[{S}:{S+15}], v[{kh}:{kh+1}], v[{self.QH[u]}:{self.QH[u]+1}], v[{S}:{S+15}]"
        return m0, m1
    def pv(self, u, vv):
        O = self.O_[u]; P = self.P_[u]
        m0 = f"v_mfma_f32_32x32x16_bf16 v[{O}:{O+15}], v[{vv}:{vv+3}], v[{P}:{P+3}], v[{O}:{O+15}]"
        m1 = f"v_mfma_f32_32x32x16_bf16 v[{O}:{O+15}], v[{vv+4}:{vv+7}], v[{P+4}:{P+7}], v[{O}:{O+15}]"
        return m0, m1

    def ring_addr(self):
        a = self.a
        a.i(f"v_add_u32 {self.vKL}, {AREG}, {self.A_L16}")
        a.i("v_and_b32 v216, 31, v0")
        a.i(f"v_lshlrev_b32 {self.vKH}, 4, v216")
        a.i(f"v_add_u32 {self.vKH}, {AREG + KV_KH}, {self.vKH}")
        a.i("v_min_u32 v217, 21, v216")
        a.i("v_cmp_eq_u32 vcc, 24, v216")
        a.i("v_lshrrev_b32 v219, 5, v0")
        a.i(f"v_mul_u32_u24 v219, {VROW}, v219")
        a.i("v_mov_b32 v218, 20")
        a.i("v_cndmask_b32 v217, v217, v218, vcc")
        a.i("v_lshl_add_u32 v217, v217, 4, v219")
        a.i(f"v_add_u32 {self.vV}, {AREG + KV_V}, v217")
        a.i(f"s_mul_i32 s62, {sWR}, {RSHARE}")
        a.i(f"v_add_u32 {self.vDkv}, s62, {self.A_L16}")
        a.i(f"s_add_u32 s72, s62, {AREG}")
        a.i("s_bfe_u32 s62, s2, 0x40003")
        if not self.o.get('rot', 1): a.i("s_mov_b32 s62, 0")
        a.i(f"s_mul_i32 s79, s62, {KVCH}")
        a.i(f"s_add_u32 s79, s79, {WS_KV}")

    def ring_dma(self, slot):
        a = self.a
        a.i(f"s_add_u32 m0, s72, {slot*RSLOT}")
        a.i(f"s_add_u32 s73, s79, {KVCH}")
        t = [a.vmem(f"buffer_load_dwordx4 {self.vDkv}, {SRD_WS}, s79 offen offset:{1024*j} sc1 lds") for j in range(3)]
        a.i(f"s_cmp_eq_u32 s73, {WS_KV + 16*KVCH}")
        a.i(f"s_cselect_b32 s79, {WS_KV}, s73")
        return t

    def att_init_regs(self):
        a = self.a
        for r in list(range(48, 80)) + list(range(88, 96)) + list(range(self.VV[1], self.VV[1] + 8)):
            a.i(f"v_mov_b32 v{r}, 0")

    def kv_wait(self):
        a = self.a
        a.c("---- wait for K/V of all row blocks ----")
        Lw = a.newlabel("kvw"); Lj = a.newlabel("kvj")
        if self.o.get('kvearly', -1) >= 0:
            a.vm = [self.kvtok]
            a.wait(vm=self.kvtok)
            a.i(f"v_cmp_ne_u32 vcc, {sN}, v188")
            Lslow = a.newlabel("kvslow")
            a.i(f"s_cbranch_vccnz {Lslow}")
            a.i(f"s_cmp_lg_u32 {sWR}, 0")
            a.i(f"s_cbranch_scc1 {Lj}")
            a.i(f"ds_add_u32 {self.A_CW}, {self.A_ONE} offset:{C_KVRDY}")
            a.i(f"s_branch {Lj}")
            a.label(Lslow)
        a.i(f"s_cmp_lg_u32 {sWR}, 0")
        a.i(f"s_cbranch_scc1 {Lw}")
        a.i("v_lshlrev_b32 v216, 2, v0")
        a.i(f"s_lshl_b32 s63, {sRB}, 8")
        a.i(f"s_add_u32 s63, s63, {WS_FKV}")
        self.glb_poll("v216", "s63", "v217", sleep=2)
        a.i(f"ds_add_u32 {self.A_CW}, {self.A_ONE} offset:{C_KVRDY}")
        a.i(f"s_branch {Lj}")
        a.label(Lw)
        self.lds_spin_ge(C_KVRDY, 1, "v218", self.A_CR, sleep=0)
        a.label(Lj)
        a.lg = []; a.vm = []
        a.i("s_waitcnt lgkmcnt(0)")

    def shift_setup(self):
        a = self.a
        a.c("---- softmax shift ----")
        a.i("v_lshlrev_b32 v216, 2, v0")
        a.i(f"s_mov_b32 s62, {WS_KN}")
        t1 = a.vmem(f"buffer_load_dword v184, v216, {SRD_WS}, s62 offen sc1")
        a.i(f"s_mov_b32 s63, {WS_VN}")
        t2 = a.vmem(f"buffer_load_dword v186, v216, {SRD_WS}, s63 offen sc1")
        self.lds_spin_ge(C_QDONE, 4, "v218", self.A_CR, sleep=0)
        pre = [self.ring_dma(c) for c in range(3)]
        self.lds_count(C_GO, self.A_CW, self.A_ONE)
        a.wait(vm=[t1, t2])
        self.wave_max(["v184", "v186"])
        a.i("v_readlane_b32 s62, v184, 63")
        a.i("v_readlane_b32 s64, v186, 63")
        a.nop(1)
        a.i("v_mov_b32 v184, s62")
        a.i("v_mov_b32 v186, s64")
        a.i("v_max_f32 v186, 1.0, v186")
        a.i("v_log_f32 v186, v186")
        a.i(f"v_mov_b32 v185, {hx(f2u(56.5))}")
        for u in "ab":
            n = self.N2[u]
            a.i(f"v_mul_f32 {n}, {n}, v184")
        a.i("v_fma_f32 v186, v186, -0.5, v185")
        for u in "ab": a.i(f"v_sqrt_f32 {self.N2[u]}, {self.N2[u]}")
        a.nop(1)
        for u in "ab": a.i(f"v_mul_f32 {self.N2[u]}, {hx(f2u(1.02))}, {self.N2[u]}")
        a.i(f"v_cmp_nle_f32 vcc, {self.N2['a']}, v186")
        a.i(f"v_cmp_nle_f32 s[64:65], {self.N2['b']}, v186")
        a.nop(1)
        a.i("s_or_b64 vcc, vcc, s[64:65]")
        if self.o.get('force_fallback'): a.i("s_mov_b64 vcc, -1")
        Lsafe = a.newlabel("safe")
        a.i(f"s_cbranch_vccz {Lsafe}")
        self.true_max_pass()
        a.label(Lsafe)
        for u in "ab":
            for j in range(16): a.i(f"v_mov_b32 v{self.C_[u]+j}, {self.N2[u]}")
        return pre

    def true_max_pass(self):
        a = self.a
        a.c("---- fallback: true row max ----")
        for u in "ab":
            for j in range(16): a.i(f"v_mov_b32 v{self.C_[u]+j}, 0")
            a.i(f"v_mov_b32 {self.N2[u]}, 0xff800000")
        a.i("v_and_b32 v216, 31, v0")
        a.i("v_lshlrev_b32 v216, 4, v216")
        a.i("s_mov_b32 s64, 0")
        L = a.newlabel("tm")
        a.label(L)
        a.i("s_lshr_b32 s62, s64, 2")
        a.i(f"s_mul_i32 s62, s62, {KVCH}")
        a.i(f"s_add_u32 s62, s62, {WS_KV}")
        a.i("s_and_b32 s63, s64, 3")
        a.i("s_lshl_b32 s65, s63, 10")
        a.i("s_add_u32 s65, s65, s62")
        a.i(f"buffer_load_dwordx4 v[{self.KL[0]}:{self.KL[0]+3}], {self.A_L16}, {SRD_WS}, s65 offen sc1")
        a.i("s_lshr_b32 s65, s63, 1")
        a.i("s_lshl_b32 s65, s65, 9")
        a.i("s_and_b32 s63, s63, 1")
        a.i("s_lshl_b32 s63, s63, 3")
        a.i("s_add_u32 s65, s65, s63")
        a.i("s_add_u32 s65, s65, s62")
        a.i("s_add_u32 s65, s65, 4096")
        a.i(f"buffer_load_dwordx2 v[{self.KH[0]}:{self.KH[0]+1}], v216, {SRD_WS}, s65 offen sc1")
        a.i("s_waitcnt vmcnt(0)")
        for u in "ab":
            for m in self.qk(u, self.KL[0], self.KH[0]): a.i(m)
        a.nop(12)
        for u in "ab":
            S = self.S_[u]
            for j in range(8): a.i(f"v_max3_f32 {self.N2[u]}, {self.N2[u]}, v{S+2*j}, v{S+2*j+1}")
        a.i("s_add_u32 s64, s64, 1")
        a.i("s_cmp_lt_u32 s64, 64")
        a.i(f"s_cbranch_scc1 {L}")
        a.i(f"v_mov_b32 v218, {self.N2['a']}")
        a.i(f"v_mov_b32 v219, {self.N2['b']}")
        a.nop(1)
        a.i(f"v_permlane32_swap_b32 {self.N2['a']}, v218")
        a.i(f"v_permlane32_swap_b32 {self.N2['b']}, v219")
        a.nop(1)
        a.i(f"v_max_f32 {self.N2['a']}, {self.N2['a']}, v218")
        a.i(f"v_max_f32 {self.N2['b']}, {self.N2['b']}, v219")
        a.i(f"v_sub_f32 {self.N2['a']}, 0, {self.N2['a']}")
        a.i(f"v_sub_f32 {self.N2['b']}, 0, {self.N2['b']}")

    def attention(self, pre):
        a = self.a
        a.c("---- attention main loop ----")
        a.wait(vm=pre[0])
        a.lds(f"ds_add_u32 {self.A_CW}, {self.A_ONE} offset:{C_ARR}")
        self.lds_spin_ge(C_ARR, 4, self.vCnt, self.A_CR, sleep=0)
        a.i("s_mov_b32 s74, 0")
        a.i("s_mov_b32 s78, 8")
        a.lds(f"ds_read_b128 v[{self.KL[0]}:{self.KL[0]+3}], {self.vKL}")
        a.lds(f"ds_read_b128 v[{self.KH[0]}:{self.KH[0]+3}], {self.vKH}")
        a.wait(lg='all')
        for m in self.qk('a', self.KL[0], self.KH[0]): a.i(m)
        a.nop(9)
        self.stamp(7)
        self.stamp(10, True)
        L = "L_ATT"
        a.raw(".p2align 6")
        a.label(L)
        self.loop_start = len(a.lines)
        def egroup(u, k):
            S = self.S_[u]; P = self.P_[u]
            for e in range(4): a.i(f"v_exp_f32 v{S+4*k+e}, v{S+4*k+e}")
            a.i(f"v_cvt_pk_bf16_f32 v{P+2*k}, v{S+4*k}, v{S+4*k+1}")
            a.i(f"v_cvt_pk_bf16_f32 v{P+2*k+1}, v{S+4*k+2}, v{S+4*k+3}")
        for slot in range(4):
            base = slot * RSLOT; nbase = ((slot + 1) % 4) * RSLOT
            a.vm = []; a.lg = []
            if self.o.get('prof') == 3:
                a.i("s_memtime s[90:91]"); a.i("s_waitcnt lgkmcnt(0)")
            if slot == 2:
                Lw3 = a.newlabel("w3")
                a.i("s_cmp_lg_u32 s74, 3")
                a.i(f"s_cbranch_scc1 {Lw3}")
                a.i("s_waitcnt vmcnt(0)")
                a.label(Lw3)
            a.i("s_waitcnt vmcnt(3)")
            if self.o.get('prof') == 3:
                a.i("s_memtime s[92:93]"); a.i("s_waitcnt lgkmcnt(0)")
                a.i("s_sub_u32 s92, s92, s90"); a.i("s_add_u32 s44, s44, s92")
            a.lds(f"ds_add_u32 {self.A_CW}, {self.A_ONE} offset:{C_ARR}")
            for t in range(4):
                kh = self.KH[(t >> 1) % 2] + 2 * (t & 1)
                q0, q1 = self.qk('b', self.KL[t % 2], kh)
                p0, p1 = self.pv('b', self.VV[(t - 1) % 2])
                rd = []
                kn = self.KL[(t + 1) % 2]
                rd.append(('K', f"ds_read_b128 v[{kn}:{kn+3}], {self.vKL} offset:{base + (t+1)*1024 if t < 3 else nbase}"))
                if t & 1:
                    hn = self.KH[((t + 1) >> 1) % 2]
                    rd.append(('K', f"ds_read_b128 v[{hn}:{hn+3}], {self.vKH} offset:{base + 512 if t < 3 else nbase}"))
                vv = self.VV[t % 2]
                rd.append(('V', f"ds_read_b128 v[{vv}:{vv+3}], {self.vV} offset:{base + (2*t)*VFR}"))
                rd.append(('V', f"ds_read_b128 v[{vv+4}:{vv+7}], {self.vV} offset:{base + (2*t+1)*VFR}"))
                ktok, vtok = [], []
                for k, m in enumerate((q0, q1, p0, p1)):
                    a.i(m)
                    if k < len(rd):
                        tk = a.lds(rd[k][1]); (ktok if rd[k][0] == 'K' else vtok).append(tk)
                    egroup('a', k)
                khn = self.KH[((t + 1) >> 1) % 2] + 2 * ((t + 1) & 1)
                q0, q1 = self.qk('a', self.KL[(t + 1) % 2], khn)
                p0, p1 = self.pv('a', self.VV[t % 2])
                a.wait(lg=ktok)
                for k, m in enumerate((q0, q1, p0, p1)):
                    if k == 2: a.wait(lg=vtok)
                    a.i(m)
                    if t == 0 and k == 3:
                        a.lds(f"ds_read_b32 {self.vCnt}, {self.A_CR} offset:{C_ARR}")
                    if t == 1 and k == 0:
                        Lok = a.newlabel("arr")
                        a.i(f"v_cmp_gt_u32 vcc, s78, {self.vCnt}")
                        a.i(f"s_cbranch_vccz {Lok}")
                        if self.o.get('prof'): a.i("s_add_u32 s52, s52, 1")
                        keep = list(a.lg)
                        self.lds_spin_ge(C_ARR, "s78", self.vCnt, self.A_CR, sleep=0)
                        a.lg = keep
                        a.label(Lok)
                    if t == 1 and k == 1:
                        if self.o.get('prof') == 3:
                            a.i("s_memtime s[90:91]"); a.i("s_waitcnt lgkmcnt(0)")
                        if slot == 0: self.ring_dma(3)
                        else:
                            Lnd = a.newlabel("nd")
                            a.i("s_cmp_eq_u32 s74, 3")
                            a.i(f"s_cbranch_scc1 {Lnd}")
                            self.ring_dma((slot + 3) % 4)
                            a.label(Lnd)
                        if self.o.get('prof') == 3:
                            a.i("s_memtime s[92:93]"); a.i("s_waitcnt lgkmcnt(0)")
                            a.i("s_sub_u32 s92, s92, s90"); a.i("s_add_u32 s45, s45, s92")
                        a.i("s_add_u32 s78, s78, 4")
                    egroup('b', k)
        if self.o.get('prof') == 1:
            a.i("s_memtime s[56:57]" if self.o.get('qcyc') else "s_memrealtime s[56:57]")
            a.i("s_waitcnt lgkmcnt(0)")
            for k in range(3):
                a.i(f"s_cmp_eq_u32 s74, {k}")
                a.i(f"s_cselect_b32 s{53+k if k < 2 else 43}, s56, s{53+k if k < 2 else 43}")
        a.i("s_add_u32 s74, s74, 1")
        a.i("s_cmp_lt_u32 s74, 4")
        self.loop_end = len(a.lines)
        a.i(f"s_cbranch_scc1 {L}")
        for m in self.pv('b', self.VV[1]): a.i(m)
        a.vm = []; a.lg = []

    def o_addr(self):
        a = self.a
        a.i(f"s_lshl_b32 s62, {sRB}, 1")
        a.i("s_mul_i32 s62, s62, 40960")
        a.i(f"s_add_u32 s80, s62, {WS_O}")
        a.i(f"s_mul_i32 s63, {sCG}, 5")
        a.i(f"s_add_u32 s81, s63, {sWR}")
        a.i("s_lshl_b32 s81, s81, 10")
        a.i("s_add_u32 s63, s63, 4")
        a.i("s_lshl_b32 s63, s63, 10")
        a.i(f"s_lshr_b32 s65, {sWR}, 1")
        a.i("s_lshl_b32 s65, s65, 9")
        a.i("s_add_u32 s63, s63, s65")
        a.i(f"s_and_b32 s65, {sWR}, 1")
        a.i("s_lshl_b32 s65, s65, 3")
        a.i("s_add_u32 s82, s63, s65")

    def o_epilogue(self):
        a = self.a
        a.c("---- normalise O, publish ----")
        a.i("v_cmp_gt_u32 vcc, 32, v0")
        a.nop(2)
        for mt, u in enumerate("ab"):
            O = self.O_[u]
            a.i(f"v_cndmask_b32 v216, v{O+8}, v{O+12}, vcc")
            a.i("v_rcp_f32 v216, v216")
            a.nop(1)
            a.i("v_mov_b32 v217, v216")
            for j in range(0, 12, 2): a.i(f"v_pk_mul_f32 v[{O+j}:{O+j+1}], v[{O+j}:{O+j+1}], v[216:217]")
            P = self.P_[u]
            for j in range(6): a.i(f"v_cvt_pk_bf16_f32 v{P+j}, v{O+2*j}, v{O+2*j+1}")
            a.i(f"s_add_u32 s68, s80, {mt*40960}")
            a.i("s_add_u32 s69, s68, s81")
            a.vmem(f"buffer_store_dwordx4 v[{P}:{P+3}], {self.A_L16}, {SRD_WS}, s69 offen sc1")
            a.i("s_add_u32 s69, s68, s82")
            a.i("s_mov_b32 exec_lo, -1"); a.i("s_mov_b32 exec_hi, 0")
            a.vmem(f"buffer_store_dwordx2 v[{P+4}:{P+5}], {self.A_L16}, {SRD_WS}, s69 offen sc1")
            a.i("s_mov_b64 exec, -1")
        a.wait(vm='all')
        a.lds(f"ds_add_rtn_u32 v218, {self.A_CW}, {self.A_ONE} offset:{C_OD}")
        a.wait(lg='all')
        a.i("v_readfirstlane_b32 s62, v218")
        a.nop(1)
        a.i("s_cmp_lg_u32 s62, 3")
        a.i("s_cbranch_scc1 L_AEND")
        a.i(f"s_lshl_b32 s62, {sRB}, 7")
        a.i(f"s_lshl_b32 s63, {sCG}, 2")
        a.i("s_add_u32 s62, s62, s63")
        a.i(f"s_add_u32 s62, s62, {WS_FO}")
        a.i(f"v_mov_b32 v217, {sN}")
        a.i("v_mov_b32 v216, 0")
        a.i("s_mov_b64 exec, 1")
        a.i(f"buffer_store_dword v217, v216, {SRD_WS}, s62 offen sc1")
        a.i("s_mov_b64 exec, -1")
        a.label("L_AEND")
        self.stamp(9)
        self.stamp(9, lvl=3)
        self.stamp_flush()
        a.i("s_branch L_END")

    def role_a(self):
        a = self.a
        a.label("L_ROLE_A")
        a.i(f"s_setprio {self.o.get('prioQ', 2)}")
        dt = None
        if self.o.get('noQ'):
            a.i("s_waitcnt vmcnt(0)")
            self.lds_count(C_XND, self.A_CW, self.A_ONE)
            for r in range(16, 48): a.i(f"v_mov_b32 v{r}, 0")
        else: self.q_proj()
        self.stamp(10, lvl=2)
        self.stamp(4)
        self.q_epilogue()
        if self.o.get('dump') == 'q':
            self.dump_regs(128, 12, 0, self.A_L16)
        self.att_init_regs()
        self.o_addr()
        a.i(f"s_setprio {self.o.get('prioA', 2)}")
        self.kv_wait()
        self.stamp(5)
        pre = self.shift_setup()
        self.stamp(6)
        if not self.o.get('noatt'): self.attention(pre)
        else:
            self.loop_start = self.loop_end = len(a.lines)
            a.i("s_waitcnt vmcnt(0)")
        self.stamp(11, True)
        self.stamp(8)
        if self.o.get('dump') == 'o':
            a.nop(16)
            self.dump_regs(48, 32, 0, self.A_L16)
        self.o_epilogue()

    vD1a, vD1b, vTRa, vTRb = "v230", "v231", "v232", "v233"
    B_XA, B_XB = 234, 238
    B_CW, B_CR, B_ONE, B_L16 = "v242", "v243", "v244", "v245"
    B_TRK = "v252"
    B_JA, B_JB = 112, None
    vWa, vWb, vWc, vMa, vMb, vMc = "v220", "v221", "v222", "v223", "v224", "v225"
    vRa, vRb, vRc, vPW, vPR0, vPR1, vXO, vH0 = "v8", "v9", "v10", "v11", "v12", "v13", "v14", "v15"
    vH1 = "v250"
    vPR2, vPR3 = "v254", "v255"

    def pair_dma_addr(self, va, vb, pitch, col_sgpr, comp_rows=8):
        a = self.a
        a.i("v_lshrrev_b32 v246, 3, v0")
        a.i("v_bfe_u32 v247, v0, 4, 1")
        a.i("v_lshlrev_b32 v247, 2, v247")
        a.i("v_and_b32 v248, 7, v0")
        a.i("v_xor_b32 v247, v247, v248")
        a.i(f"v_mul_u32_u24 v246, {pitch}, v246")
        a.i(f"v_lshl_add_u32 {va}, v247, 4, v246")
        a.i(f"v_add_u32 {va}, {col_sgpr}, {va}")
        a.i(f"v_add_u32 {vb}, {comp_rows*pitch - 1024}, {va}")

    def pair_tr_addr(self, va, vb, hmul, base_sgpr):
        a = self.a
        a.i("v_lshrrev_b32 v246, 5, v0")
        a.i(f"v_mul_u32_u24 v246, {hmul}, v246")
        a.i("v_bfe_u32 v247, v0, 2, 2")
        a.i("v_add_u32 v246, v246, v247")
        a.i("v_lshlrev_b32 v246, 7, v246")
        a.i("v_bfe_u32 v247, v0, 4, 1")
        a.i("v_lshlrev_b32 v247, 1, v247")
        a.i("v_bfe_u32 v248, v0, 1, 1")
        a.i("v_add_u32 v247, v247, v248")
        a.i("v_bfe_u32 v248, v0, 3, 1")
        a.i("v_lshlrev_b32 v248, 2, v248")
        a.i("v_xor_b32 v247, v247, v248")
        a.i("v_lshl_add_u32 v246, v247, 4, v246")
        a.i("v_and_b32 v247, 1, v0")
        a.i("v_lshl_add_u32 v246, v247, 3, v246")
        a.i(f"v_add_u32 {va}, {base_sgpr}, v246")
        a.i(f"v_xor_b32 {vb}, 64, v246")
        a.i(f"v_add_u32 {vb}, {base_sgpr}, {vb}")

    def w1_dma(self, ks, part=None):
        a = self.a
        t = []
        if part in (None, 0):
            a.i(f"s_add_u32 m0, s66, {(ks % NS1) * 2048}")
            if part is None: a.nop(1)
        if part in (None, 1):
            t.append(a.vmem(f"buffer_load_dwordx4 {self.vD1a}, {SRD_W1}, s67 offen lds"))
        if part in (None, 2):
            t.append(a.vmem(f"buffer_load_dwordx4 {self.vD1b}, {SRD_W1}, s67 offen offset:1024 lds"))
            self.rot_next(16 * 3456, "s67", ks)
        return t

    def ffn1(self):
        a = self.a
        a.c("---- FFN1 (transposed): h^T tiles, 2 n-tiles x 2 m-tiles per wave ----")
        acc = lambda t, m: 16 + 32 * t + 16 * m
        W = lambda s, t: 80 + 8 * s + 4 * t
        X = lambda s, m: 96 + 8 * s + 4 * m
        d1 = NS1
        dm = dict(self.w1tok); ta = {}; tb = {}
        def rd_wa(ks):
            a.wait(vm=dm[ks])
            s = ks % 2; sl = (ks % NS1) * 2048
            ta[ks] = [a.lds(f"ds_read_b64_tr_b16 v[{W(s,0)}:{W(s,0)+1}], {self.vTRa} offset:{sl}"),
                      a.lds(f"ds_read_b64_tr_b16 v[{W(s,0)+2}:{W(s,0)+3}], {self.vTRa} offset:{sl+512}")]
        def rd_x(ks):
            s = ks % 2
            self.rot_xn_seg(self.B_XA, self.B_XB, "s69", ks)
            ta[ks].append(a.lds(f"ds_read_b128 v[{X(s,0)}:{X(s,0)+3}], v{self.B_XA + ks % 4} offset:{self.seg_imm(ks)}"))
            ta[ks].append(a.lds(f"ds_read_b128 v[{X(s,1)}:{X(s,1)+3}], v{self.B_XB + ks % 4} offset:{self.seg_imm(ks)}"))
        def rd_wb(ks):
            s = ks % 2; sl = (ks % NS1) * 2048
            tb[ks] = [a.lds(f"ds_read_b64_tr_b16 v[{W(s,1)}:{W(s,1)+1}], {self.vTRb} offset:{sl}"),
                      a.lds(f"ds_read_b64_tr_b16 v[{W(s,1)+2}:{W(s,1)+3}], {self.vTRb} offset:{sl+512}")]
        def mf(ks, t, m):
            s = ks % 2; A = acc(t, m)
            C = "0" if ks == 0 else f"v[{A}:{A+15}]"
            a.i(f"v_mfma_f32_32x32x16_bf16 v[{A}:{A+15}], v[{W(s,t)}:{W(s,t)+3}], v[{X(s,m)}:{X(s,m)+3}], {C}")
        rd_wa(0); rd_x(0); rd_wb(0)
        for ks in range(40):
            nx = ks + 1 < 40; dd = ks + d1 < 40
            if ks in (0, 10, 20, 30): self.stamp(6 + ks // 10, lvl=2)
            a.wait(lg=ta[ks])
            mf(ks, 0, 0)
            if nx: rd_wa(ks + 1)
            mf(ks, 0, 1)
            a.wait(lg=tb[ks])
            if nx: rd_x(ks + 1)
            if dd: self.w1_dma(ks + d1, 0)
            mf(ks, 1, 0)
            if nx: rd_wb(ks + 1)
            if dd: dm[ks + d1] = self.w1_dma(ks + d1, 1)
            mf(ks, 1, 1)
            if dd: dm[ks + d1] += self.w1_dma(ks + d1, 2)
        self.lds_count(C_XND, self.B_CW, self.B_ONE)
        if self.o.get('pf', 0): self.l2_prefetch(SRD_W2, 2211840, 3 if self.o.get('pfstride', 128) == 128 else 5, "v246", "v251", sWR, 4)
        self.stamp(10, lvl=2)
        self.stamp(3)
        a.i(f"s_setprio {self.o.get('prioBv', 3)}")
        a.i(f"s_lshl_b32 s62, {sRB}, 1")
        a.i("s_mul_i32 s62, s62, 110592")
        a.i("s_lshl_b32 s63, s68, 11")
        a.i("s_add_u32 s62, s62, s63")
        a.i(f"s_add_u32 s62, s62, {WS_H}")
        a.nop(6)
        for t in range(2):
            for m in range(2):
                A = acc(t, m); R = 80 + 8 * m + 16 * (t & 1)
                for j in range(8): a.i(f"v_cvt_pk_bf16_f32 v{R+j}, v{A+2*j}, v{A+2*j+1}")
                for j in range(8): a.i(f"v_pk_max_i16 v{R+j}, v{R+j}, 0")
                a.i(f"s_add_u32 s63, s62, {m*110592 + t*2048}")
                a.vmem(f"buffer_store_dwordx4 v[{R}:{R+3}], {self.B_L16}, {SRD_WS}, s63 offen sc1")
                a.vmem(f"buffer_store_dwordx4 v[{R+4}:{R+7}], {self.B_L16}, {SRD_WS}, s63 offen offset:1024 sc1")
        a.i(f"s_setprio {self.o.get('prioB', 0)}")

    def h_publish(self):
        a = self.a
        a.i("s_waitcnt vmcnt(0)")
        a.vm = []
        a.lds(f"ds_add_rtn_u32 v246, {self.B_CW}, {self.B_ONE} offset:{C_HD}")
        a.wait(lg='all')
        a.i("v_readfirstlane_b32 s62, v246")
        Lnf = a.newlabel("hnf")
        a.nop(1)
        a.i("s_cmp_lg_u32 s62, 3")
        a.i(f"s_cbranch_scc1 {Lnf}")
        a.i(f"s_lshl_b32 s62, {sRB}, 7")
        a.i(f"s_lshl_b32 s63, {sCG}, 2")
        a.i("s_add_u32 s62, s62, s63")
        a.i(f"s_add_u32 s62, s62, {WS_FH}")
        a.i(f"v_mov_b32 v247, {sN}")
        a.i("v_mov_b32 v246, 0")
        a.i("s_mov_b64 exec, 1")
        a.i(f"buffer_store_dword v247, v246, {SRD_WS}, s62 offen sc1")
        a.i("s_mov_b64 exec, -1")
        a.label(Lnf)

    def out_tiles_setup(self):
        a = self.a
        a.i(f"s_lshr_b32 s62, {sCG}, 1")
        a.i("s_and_b32 s64, s62, 1")
        a.i("s_mul_i32 s62, s62, 5")
        a.i(f"s_and_b32 s82, {sCG}, 1")
        a.i("s_lshl_b32 s63, s82, 1")
        a.i("s_add_u32 s80, s62, s63")
        a.i("s_add_u32 s80, s80, s64")
        a.i("s_lshl_b32 s80, s80, 6")
        a.i("s_xor_b32 s64, s64, 1")
        a.i("s_lshl_b32 s64, s64, 2")
        a.i("s_add_u32 s81, s62, s64")
        a.i("s_lshl_b32 s81, s81, 6")
        a.i(f"s_mul_i32 s83, {sWR}, {BREG}")
        self.pair_dma_addr(self.vWa, self.vWb, 1280, "s80")
        a.i("v_lshrrev_b32 v246, 2, v0")
        a.i("v_mul_u32_u24 v246, 1280, v246")
        a.i("v_and_b32 v247, 3, v0")
        a.i(f"v_lshl_add_u32 {self.vWc}, v247, 4, v246")
        a.i(f"v_add_u32 {self.vWc}, s81, {self.vWc}")
        self.pair_tr_addr(self.vRa, self.vRb, 4, "s83")
        a.i("v_lshrrev_b32 v246, 5, v0")
        a.i("v_lshlrev_b32 v246, 2, v246")
        a.i("v_bfe_u32 v247, v0, 2, 2")
        a.i("v_add_u32 v246, v246, v247")
        a.i("v_lshlrev_b32 v246, 6, v246")
        a.i("v_bfe_u32 v247, v0, 4, 1")
        a.i("v_lshl_add_u32 v246, v247, 5, v246")
        a.i("v_and_b32 v247, 3, v0")
        a.i("v_lshl_add_u32 v246, v247, 3, v246")
        a.i("s_add_u32 s62, s83, 2048")
        a.i(f"v_add_u32 {self.vRc}, s62, v246")
        a.i(f"v_add_u32 {self.vPW}, s83, {self.B_L16}")
        a.i(f"s_lshl_b32 s62, {sWR}, 12")
        a.i(f"v_add_u32 {self.vPR0}, s62, {self.B_L16}")
        a.i(f"v_add_u32 {self.vPR1}, {2*BREG}, {self.vPR0}")
        a.i(f"s_lshl_b32 s62, {sWR}, 10")
        a.i("s_add_u32 s62, s62, 16384")
        a.i(f"v_add_u32 {self.vPR2}, s62, {self.B_L16}")
        a.i(f"v_add_u32 {self.vPR3}, {2*BREG}, {self.vPR2}")

    def w3_dma(self, srd, slot, soff_sgpr, va, vb, vc):
        a = self.a
        a.i(f"s_add_u32 m0, s83, {slot*3072}")
        a.nop(1)
        t = [a.vmem(f"buffer_load_dwordx4 {va}, {srd}, {soff_sgpr} offen lds"),
             a.vmem(f"buffer_load_dwordx4 {vb}, {srd}, {soff_sgpr} offen offset:1024 lds")]
        a.i(f"s_add_u32 m0, s83, {slot*3072 + 2048}")
        a.nop(1)
        t.append(a.vmem(f"buffer_load_dwordx4 {vc}, {srd}, {soff_sgpr} offen lds"))
        return t

    def w3_reads(self, slot, Wb, part=None):
        a = self.a; t = []
        sl = slot * 3072
        if isinstance(part, tuple):
            p = part[1]
            va, o2 = ((self.vRa, 1024), (self.vRb, 1024), (self.vRc, 512))[p]
            t.append(a.lds(f"ds_read_b64_tr_b16 v[{Wb+4*p}:{Wb+4*p+1}], {va} offset:{sl}"))
            t.append(a.lds(f"ds_read_b64_tr_b16 v[{Wb+4*p+2}:{Wb+4*p+3}], {va} offset:{sl+o2}"))
            return t
        if part in (None, 0):
            t.append(a.lds(f"ds_read_b64_tr_b16 v[{Wb}:{Wb+1}], {self.vRa} offset:{sl}"))
            t.append(a.lds(f"ds_read_b64_tr_b16 v[{Wb+2}:{Wb+3}], {self.vRa} offset:{sl+1024}"))
            t.append(a.lds(f"ds_read_b64_tr_b16 v[{Wb+4}:{Wb+5}], {self.vRb} offset:{sl}"))
        if part in (None, 1):
            t.append(a.lds(f"ds_read_b64_tr_b16 v[{Wb+6}:{Wb+7}], {self.vRb} offset:{sl+1024}"))
            t.append(a.lds(f"ds_read_b64_tr_b16 v[{Wb+8}:{Wb+9}], {self.vRc} offset:{sl}"))
            t.append(a.lds(f"ds_read_b64_tr_b16 v[{Wb+10}:{Wb+11}], {self.vRc} offset:{sl+512}"))
        return t

    def five_mfma(self, Wb, H0, H1, first, fill):
        a = self.a
        spec = [(0, 0, H0), (1, 0, H1), (2, 1, H0), (3, 1, H1), (4, 2, H0)]
        for n, (tau, nt, Hb) in enumerate(spec):
            A = 16 + 16 * tau
            C = "0" if first else f"v[{A}:{A+15}]"
            a.i(f"v_mfma_f32_32x32x16_bf16 v[{A}:{A+15}], v[{Wb+4*nt}:{Wb+4*nt+3}], v[{Hb}:{Hb+3}], {C}")
            if n < len(fill) and fill[n]: fill[n]()

    def reduce80(self, dst, bar_target):
        a = self.a
        a.nop(8)
        for g in range(20):
            if len(a.lg) >= 14: a.wait(lg=a.lg[6])
            a.lds(f"ds_write_b128 {self.vPW}, v[{16+4*g}:{19+4*g}] offset:{g*1024}")
        a.wait(lg='all')
        self.lds_count(C_BBAR, self.B_CW, self.B_ONE)
        self.lds_spin_ge(C_BBAR, bar_target, "v246", self.B_CR, sleep=0)
        tk = {}
        def rd(src):
            va = self.vPR0 if src < 2 else self.vPR1
            vb = self.vPR2 if src < 2 else self.vPR3
            tk[src] = [a.lds(f"ds_read_b128 v[{16+20*src+4*e}:{19+20*src+4*e}], {va} offset:{(src&1)*BREG + e*1024}") for e in range(4)]
            tk[src].append(a.lds(f"ds_read_b128 v[{32+20*src}:{35+20*src}], {vb} offset:{(src&1)*BREG}"))
        rd(0); rd(1); rd(2)
        a.wait(lg=tk[1])
        rd(3)
        pk = lambda d, x, y: a.i(f"v_pk_add_f32 v[{d}:{d+1}], v[{x}:{x+1}], v[{y}:{y+1}]")
        for j in range(0, 20, 2): pk(dst + j, 16 + j, 36 + j)
        a.wait(lg=tk[2])
        for j in range(0, 20, 2): pk(dst + j, dst + j, 56 + j)
        a.wait(lg='all')
        for j in range(0, 20, 2): pk(dst + j, dst + j, 76 + j)

    def ffn2(self):
        a = self.a
        a.c("---- FFN2 (transposed): 5 output tiles, split-K over the 4 B waves ----")
        if self.o.get('touch', 0):
            a.vmem(f"buffer_load_dword v251, v227, {SRD_W2}, s80 offen")
            a.vmem(f"buffer_load_dword v254, v227, {SRD_W2}, s81 offen")
        self.lds_spin_ge(C_XND, 8, "v246", self.B_CR)
        NS = 9; PF = self.o.get('d2', 4); HD = self.o.get('dh', 3) + 1
        a.i(f"s_mul_i32 s84, {sWR}, {27*20480}")
        a.i(f"s_and_b32 s62, {sRB}, 7")
        a.i("s_mul_i32 s62, s62, 3")
        a.i(f"s_and_b32 s63, {sCG}, 3")
        a.i("s_mul_i32 s63, s63, 7")
        a.i("s_add_u32 s62, s62, s63")
        a.i("s_cmp_ge_u32 s62, 27")
        a.i("s_cselect_b32 s63, 27, 0")
        a.i("s_sub_u32 s87, s62, s63")
        if not self.o.get('rot', 1): a.i("s_mov_b32 s87, 0")
        a.i("s_mul_i32 s95, s87, 20480")
        dm = {}
        a.i("s_add_u32 s95, s95, s84")
        a.i(f"s_add_u32 s93, s84, {27*20480}")
        def dma(kk, part=None):
            slot = kk % NS
            if part in (None, 0):
                a.i(f"s_add_u32 m0, s83, {slot*3072}")
                if part is None: a.nop(1)
            if part in (None, 1):
                dm[kk] = [a.vmem(f"buffer_load_dwordx4 {self.vWa}, {SRD_W2}, s95 offen lds")]
            if part in (None, 2):
                dm[kk].append(a.vmem(f"buffer_load_dwordx4 {self.vWb}, {SRD_W2}, s95 offen offset:1024 lds"))
                a.i(f"s_add_u32 m0, s83, {slot*3072 + 2048}")
                if part is None: a.nop(1)
            if part in (None, 3):
                dm[kk].append(a.vmem(f"buffer_load_dwordx4 {self.vWc}, {SRD_W2}, s95 offen lds"))
                a.i("s_add_u32 s95, s95, 20480")
                a.i("s_cmp_eq_u32 s95, s93")
                a.i("s_cselect_b32 s95, s84, s95")
        for kk in range(PF): dma(kk)
        self.stamp(5)
        self.one_wave_poll(WS_FH, C_HRDY, sleep=8)
        Lnl = a.newlabel("nolead")
        a.i(f"s_lshl_b32 s62, {sCG}, 2")
        a.i(f"s_add_u32 s62, s62, {sWR}")
        a.i("s_cmp_lg_u32 s62, 0")
        a.i(f"s_cbranch_scc1 {Lnl}")
        a.i("v_mov_b32 v246, 0")
        a.i("v_mov_b32 v247, 1")
        a.i("s_mov_b64 exec, 1")
        a.i(f"global_atomic_add v248, v246, v247, {sDBG} sc0 sc1")
        a.i("s_waitcnt vmcnt(0)")
        a.i("v_readfirstlane_b32 s62, v248")
        a.i("s_mov_b64 exec, -1")
        a.nop(1)
        a.i("s_cmp_lg_u32 s62, 31")
        a.i(f"s_cbranch_scc1 {Lnl}")
        a.i(f"v_mov_b32 v247, {sN}")
        a.i(f"v_mov_b32 v246, {WS_X}")
        a.i("s_mov_b32 s62, 0")
        a.i("s_mov_b64 exec, 1")
        a.i(f"buffer_store_dword v247, v246, {SRD_WS}, s62 offen sc1")
        a.i("s_mov_b64 exec, -1")
        a.label(Lnl)
        self.stamp(6)
        if self.o.get('pf', 0):
            a.i("v_min_u32 v246, 53, v0")
            a.i("v_lshlrev_b32 v246, 7, v246")
            a.i(f"s_mul_i32 s62, {sRB}, 221184")
            a.i(f"s_lshl_b32 s63, {sCG}, 2")
            a.i(f"s_add_u32 s63, s63, {sWR}")
            a.i(f"s_mul_i32 s63, s63, {54*128}")
            a.i("s_add_u32 s62, s62, s63")
            a.i(f"s_add_u32 s62, s62, {WS_H}")
            a.vmem(f"buffer_load_dword v251, v246, {SRD_WS}, s62 offen sc1")
            self.l2_prefetch(SRD_WO, 819200, 1 if self.o.get('pfstride', 128) == 128 else 2, "v246", "v253", sWR, 4)
        H = lambda kk, s: 120 + 8 * (kk % HD) + 4 * s
        hl = {}
        a.i("s_lshl_b32 s96, s87, 10")
        def hload(kk, part=None):
            if part in (None, 0):
                hl[kk] = [a.vmem(f"buffer_load_dwordx4 v[{H(kk,0)}:{H(kk,0)+3}], {self.vH0}, {SRD_WS}, s96 offen sc1")]
            if part in (None, 1):
                hl[kk].append(a.vmem(f"buffer_load_dwordx4 v[{H(kk,1)}:{H(kk,1)+3}], {self.vH1}, {SRD_WS}, s96 offen sc1"))
                a.i("s_add_u32 s96, s96, 1024")
                a.i(f"s_cmp_eq_u32 s96, {27*1024}")
                a.i("s_cselect_b32 s96, 0, s96")
        for kk in range(HD - 1): hload(kk)
        Wb = lambda kk: 96 + 12 * (kk % 2)
        a.wait(vm=dm[0])
        rt = {0: self.w3_reads(0, Wb(0))}
        for kk in range(27):
            a.wait(lg=rt[kk], vm=hl[kk])
            nx = kk + 1 < 27; dd = kk + PF < 27; hh = kk + HD - 1 < 27
            def rd(p, kk=kk):
                if p == 0:
                    a.wait(vm=dm[kk + 1]); rt[kk + 1] = []
                rt[kk + 1] += self.w3_reads((kk + 1) % NS, Wb(kk + 1), ('t', p))
            def g0(kk=kk):
                if nx: rd(0)
                if hh: hload(kk + HD - 1, 0)
            def g1(kk=kk):
                if nx: rd(1)
                if hh: hload(kk + HD - 1, 1)
                if dd: dma(kk + PF, 0)
            def g2(kk=kk):
                if nx: rd(2)
                if dd: dma(kk + PF, 1)
            def g3(kk=kk):
                if dd: dma(kk + PF, 2)
            def g4(kk=kk):
                if dd: dma(kk + PF, 3)
            self.five_mfma(Wb(kk), H(kk, 0), H(kk, 1), kk == 0, [g0, g1, g2, g3, g4])
        self.stamp(7)
        if self.o.get('touch', 0):
            a.i("s_mov_b32 s62, 0")
            a.vmem(f"buffer_load_dword v251, v228, {SRD_WO}, s62 offen")
        a.i(f"s_setprio {self.o.get('prioBv', 3)}")
        self.reduce80(200, 4)
        a.i(f"v_mov_b32 v40, {hx(f2u(-1.4426950408889634))}")
        a.i("v_mov_b32 v41, v40")
        a.i("v_mov_b32 v42, 1.0")
        a.i("v_mov_b32 v43, 1.0")
        for j in range(0, 20, 2): a.i(f"v_pk_mul_f32 v[{16+j}:{17+j}], v[{200+j}:{201+j}], v[40:41]")
        for j in range(20): a.i(f"v_exp_f32 v{16+j}, v{16+j}")
        for j in range(0, 20, 2): a.i(f"v_pk_add_f32 v[{16+j}:{17+j}], v[{16+j}:{17+j}], v[42:43]")
        for j in range(20): a.i(f"v_rcp_f32 v{16+j}, v{16+j}")
        for j in range(0, 20, 2): a.i(f"v_pk_mul_f32 v[{200+j}:{201+j}], v[{200+j}:{201+j}], v[{16+j}:{17+j}]")
        a.i(f"s_setprio {self.o.get('prioB', 0)}")
        self.lds_count(C_BBAR, self.B_CW, self.B_ONE)
        self.lds_spin_ge(C_BBAR, 8, "v246", self.B_CR)

    def out_mixed_addr(self):
        a = self.a
        a.i("v_lshrrev_b32 v246, 3, v0")
        a.i("v_lshrrev_b32 v247, 2, v246")
        a.i("v_mul_u32_u24 v247, 40, v247")
        a.i("v_and_b32 v248, 3, v246")
        a.i("v_add3_u32 v247, v247, v248, 16")
        a.i("v_mul_u32_u24 v247, 1280, v247")
        a.i("v_bfe_u32 v248, v0, 4, 1")
        a.i("v_lshlrev_b32 v248, 2, v248")
        a.i("v_and_b32 v249, 7, v0")
        a.i("v_xor_b32 v248, v248, v249")
        a.i(f"v_lshl_add_u32 {self.vMa}, v248, 4, v247")
        a.i(f"v_add_u32 {self.vMa}, s80, {self.vMa}")
        a.i(f"v_add_u32 {self.vMb}, {20*1280 - 1024}, {self.vMa}")
        a.i("v_lshrrev_b32 v246, 2, v0")
        a.i("v_bfe_u32 v247, v246, 2, 1")
        a.i("v_lshlrev_b32 v247, 1, v247")
        a.i("v_lshrrev_b32 v248, 3, v246")
        a.i("v_add_u32 v247, v247, v248")
        a.i("v_mul_u32_u24 v247, 20, v247")
        a.i("v_and_b32 v248, 3, v246")
        a.i("v_add3_u32 v247, v247, v248, 16")
        a.i("v_mul_u32_u24 v247, 1280, v247")
        a.i("v_and_b32 v248, 3, v0")
        a.i(f"v_lshl_add_u32 {self.vMc}, v248, 4, v247")
        a.i(f"v_add_u32 {self.vMc}, s81, {self.vMc}")
        a.i("v_and_b32 v246, 31, v0")
        a.i("v_mul_u32_u24 v246, 1280, v246")
        a.i("v_lshrrev_b32 v247, 5, v0")
        a.i(f"v_lshl_add_u32 {self.vXO}, v247, 3, v246")

    def ffn2_addr(self):
        a = self.a
        a.i(f"s_lshl_b32 s62, {sRB}, 1")
        a.i("s_add_u32 s63, s62, s82")
        a.i("s_xor_b32 s64, s82, 1")
        a.i("s_add_u32 s64, s62, s64")
        a.i("s_mul_i32 s85, s63, 110592")
        a.i("s_mul_i32 s86, s64, 110592")
        a.i(f"s_mul_i32 s62, {sWR}, {27*1024}")
        a.i(f"s_add_u32 s62, s62, {WS_H}")
        a.i("s_add_u32 s85, s85, s62")
        a.i("s_add_u32 s86, s86, s62")
        a.i(f"v_add_u32 {self.vH0}, s85, {self.B_L16}")
        a.i(f"v_add_u32 {self.vH1}, s86, {self.B_L16}")

    def out_proj(self):
        a = self.a
        a.c("---- output projection + final combine ----")
        dm = {}
        a.i(f"s_lshl_b32 s62, {sWR}, 1")
        a.i("s_add_u32 s93, s62, s82")
        a.i("s_xor_b32 s63, s82, 1")
        a.i("s_add_u32 s94, s62, s63")
        a.i(f"s_mul_i32 s84, s93, {80*1280}")
        a.i(f"s_mul_i32 s87, s94, {80*1280}")
        def wo_dma(e):
            cgo, jj = e // 5, e % 5
            base = "s84" if cgo == 0 else "s87"
            if jj < 4:
                a.i(f"s_add_u32 s67, {base}, {jj*20*1280}")
                dm[e] = self.w3_dma(SRD_WO, e % 9, "s67", self.vWa, self.vWb, self.vWc)
            else:
                dm[e] = self.w3_dma(SRD_WO, e % 9, base, self.vMa, self.vMb, self.vMc)
        for e in range(9):
            wo_dma(e)
            dw = self.o.get('dw', 2)
            if e - dw >= 0: a.wait(vm=dm[e - dw])
        a.wait(vm=dm[8])
        rt0 = self.w3_reads(0, 96)
        a.wait(lg=rt0)
        wo_dma(9)
        a.wait(vm=dm[9])
        xt = []
        a.i(f"s_lshr_b32 s62, {sWR}, 1")
        a.i("s_lshl_b32 s62, s62, 6")
        a.i("s_add_u32 s62, s62, s80")
        a.i(f"s_and_b32 s63, {sWR}, 1")
        a.i("s_xor_b32 s63, s63, s82")
        a.i(f"s_lshl_b32 s64, {sRB}, 1")
        a.i("s_add_u32 s63, s63, s64")
        a.i("s_mul_i32 s63, s63, 40960")
        a.i("s_add_u32 s88, s62, s63")
        a.i("s_add_u32 s64, s64, s82")
        a.i("s_mul_i32 s64, s64, 40960")
        a.i(f"s_lshl_b32 s62, {sWR}, 4")
        a.i("s_add_u32 s64, s64, s62")
        a.i("s_add_u32 s89, s64, s81")
        for e in range(4):
            xt.append(a.vmem(f"buffer_load_dwordx2 v[{220+2*e}:{221+2*e}], {self.vXO}, {SRD_X}, s88 offen offset:{16*e}"))
        xt.append(a.vmem(f"buffer_load_dwordx2 v[228:229], {self.vXO}, {SRD_X}, s89 offen"))
        self.stamp(9)
        self.one_wave_poll(WS_FO, C_ORDY, pre=lambda: (self.lds_spin_ge(C_ARR, 68, "v246", self.B_CR, sleep=8), self.lds_spin_ge(C_OD, 4, "v246", self.B_CR, sleep=1)), sleep=1, rsleep=self.o.get('rs', 3))
        self.stamp(10)
        a.i(f"s_lshl_b32 s62, {sRB}, 1")
        a.i("s_add_u32 s63, s62, s82")
        a.i("s_xor_b32 s64, s82, 1")
        a.i("s_add_u32 s64, s62, s64")
        a.i("s_mul_i32 s85, s63, 40960")
        a.i("s_mul_i32 s86, s64, 40960")
        a.i(f"s_add_u32 s85, s85, {WS_O}")
        a.i(f"s_add_u32 s86, s86, {WS_O}")
        a.i("s_mul_i32 s93, s93, 5120")
        a.i("s_mul_i32 s94, s94, 5120")
        ol = {}
        H = lambda e, s: 120 + 8 * e + 4 * s
        for e in range(10):
            grp = "s93" if e < 5 else "s94"
            a.i(f"s_add_u32 s62, s85, {grp}")
            t0 = a.vmem(f"buffer_load_dwordx4 v[{H(e,0)}:{H(e,0)+3}], {self.B_L16}, {SRD_WS}, s62 offen offset:{(e%5)*1024 if (e%5) < 4 else 0} sc1") if (e % 5) < 4 else None
            if t0 is None:
                a.i("s_add_u32 s62, s62, 4096")
                t0 = a.vmem(f"buffer_load_dwordx4 v[{H(e,0)}:{H(e,0)+3}], {self.B_L16}, {SRD_WS}, s62 offen sc1")
            a.i(f"s_add_u32 s63, s86, {grp}")
            if (e % 5) < 4:
                t1 = a.vmem(f"buffer_load_dwordx4 v[{H(e,1)}:{H(e,1)+3}], {self.B_L16}, {SRD_WS}, s63 offen offset:{(e%5)*1024} sc1")
            else:
                a.i("s_add_u32 s63, s63, 4096")
                t1 = a.vmem(f"buffer_load_dwordx4 v[{H(e,1)}:{H(e,1)+3}], {self.B_L16}, {SRD_WS}, s63 offen sc1")
            ol[e] = [t0, t1]
        Wb = lambda e: 96 + 12 * (e % 2)
        rt = {0: rt0}
        for e in range(10):
            a.wait(lg=rt[e], vm=ol[e])
            def f0(e=e):
                if e + 1 < 10:
                    a.wait(vm=dm[e + 1])
                    rt[e + 1] = self.w3_reads((e + 1) % 9, Wb(e + 1), 0)
            def f1(e=e):
                if e + 1 < 10: rt[e + 1] += self.w3_reads((e + 1) % 9, Wb(e + 1), 1)
            self.five_mfma(Wb(e), H(e, 0), H(e, 1), e == 0, [f0, f1])
        self.stamp(11)
        self.reduce80(96, 12)
        self.stamp(12)
        a.i("s_mov_b32 s62, 0xffff0000")
        a.i("v_lshrrev_b32 v44, 5, v0")
        a.i(f"v_lshl_add_u32 v44, v44, 3, {self.vXO}")
        ost = self.o.get('ostore', '')
        for e in range(5):
            x0, x1 = 220 + 2 * e, 221 + 2 * e
            t = 16 + 4 * (e & 1)
            a.i(f"v_lshlrev_b32 v{t}, 16, v{x0}")
            a.i(f"v_and_b32 v{t+1}, s62, v{x0}")
            a.i(f"v_lshlrev_b32 v{t+2}, 16, v{x1}")
            a.i(f"v_and_b32 v{t+3}, s62, v{x1}")
            for j in (0, 2): a.i(f"v_pk_fma_f32 v[{t+j}:{t+j+1}], v[{96+4*e+j}:{97+4*e+j}], v[{200+4*e+j}:{201+4*e+j}], v[{t+j}:{t+j+1}]")
            a.i(f"v_cvt_pk_bf16_f32 v{24+2*e}, v{t}, v{t+1}")
            a.i(f"v_cvt_pk_bf16_f32 v{25+2*e}, v{t+2}, v{t+3}")
            if e in (1, 3):
                r = 24 + 2 * (e - 1)
                a.nop(2)
                a.i(f"v_permlane32_swap_b32 v{r}, v{r+2}")
                a.i(f"v_permlane32_swap_b32 v{r+1}, v{r+3}")
                a.vmem(f"buffer_store_dwordx4 v[{r}:{r+3}], v44, {SRD_OUT}, s88 offen offset:{16*(e-1)} {ost}".rstrip())
            if e == 4:
                a.vmem(f"buffer_store_dwordx2 v[32:33], {self.vXO}, {SRD_OUT}, s89 offen {ost}".rstrip())

    def role_b(self):
        a = self.a
        a.label("L_ROLE_B")
        Lf1 = a.newlabel("ffn1"); Lv = a.newlabel("vjob"); Lpf = a.newlabel("w1pf")
        a.i(f"s_and_b32 s62, {sCG}, 3")
        a.i("s_cmp_lg_u32 s62, 0")
        a.i(f"s_cbranch_scc1 {Lf1}")
        Lwait = a.newlabel("kvidle")
        a.i(f"s_cmp_ge_u32 {sWR}, 2")
        a.i(f"s_cbranch_scc1 {Lwait}")
        a.i("s_setprio 3")
        a.i(f"s_cmp_eq_u32 {sCG}, 4")
        a.i(f"s_cbranch_scc1 {Lv}")
        a.vm = []; a.lg = []
        self.kv_job(False)
        a.i(f"s_branch {Lwait}")
        a.label(Lv)
        a.vm = []; a.lg = []
        self.kv_job(True)
        a.label(Lwait)
        self.lds_spin_ge(C_KVD, 2, "v246", self.B_CR)
        a.label(Lpf)
        self.stamp(11, lvl=2)
        self.stamp(14)
        a.label(Lf1)
        a.i(f"s_setprio {self.o.get('prioF', 0)}")
        if self.o.get('noB'):
            a.i("s_waitcnt vmcnt(0)")
            a.i("s_branch L_END")
        a.vm = []; a.lg = []
        Lnop = a.newlabel("nopair"); Lhd = a.newlabel("hdone")
        a.i("s_cmp_eq_u32 s99, 0")
        a.i(f"s_cbranch_scc1 {Lnop}")
        if self.o.get('noF1'): a.i(f"s_branch {Lnop}")
        bs = self.o.get('bstart', 'none')
        if bs == 'ring': self.lds_spin_ge(C_GO, 4, "v246", self.B_CR)
        if bs == 'qiss': self.lds_spin_ge(C_QISS, 4, "v246", self.B_CR)
        self.w1tok = {ks: self.w1_dma(ks) for ks in range(NS1)}
        self.ffn1()
        a.i(f"s_branch {Lhd}")
        a.label(Lnop)
        a.i(f"s_setprio {self.o.get('prioB', 0)}")
        self.lds_count(C_XND, self.B_CW, self.B_ONE)
        a.label(Lhd)
        a.vm = []; a.lg = []
        self.h_publish()
        self.stamp(4)
        self.ffn2()
        self.stamp(8)
        if self.o.get('dump') == 'g':
            self.dump_regs(200, 20, 0, self.B_L16)
        self.out_proj()
        a.i("s_waitcnt vmcnt(0)") if self.o.get('prof') else None
        self.stamp(13)
        self.stamp_flush()
        if self.o.get('span'):
            a.i("s_waitcnt vmcnt(0)")
            a.i("s_memrealtime s[90:91]")
            a.i("s_waitcnt lgkmcnt(0)")
            a.i("s_not_b32 s62, s101")
            a.i("v_mov_b32 v1, 8")
            a.i("v_mov_b32 v2, s62")
            a.i("v_mov_b32 v3, s90")
            a.i("s_mov_b64 exec, 1")
            a.i(f"global_atomic_umax v1, v2, {sDBG} sc1")
            a.i(f"global_atomic_umax v1, v3, {sDBG} offset:4 sc1")
            a.i("s_mov_b64 exec, -1")
        a.i("s_branch L_END")

    def build(self):
        a = self.a
        self.prologue()
        self.role_setup()
        a.i("s_waitcnt lgkmcnt(0)")
        a.i(f"s_add_u32 {sN}, {sN}, 1")
        a.vm = []; a.lg = []
        self.stamp(1)
        self.layernorm()
        self.stamp(2)
        if self.o.get('dump') == 'xn':
            self.dump_lds_xn()
        a.i(f"s_cmp_ge_u32 {sW}, 4")
        a.i("s_cbranch_scc1 L_ROLE_B")
        self.role_a()
        self.role_b()
        a.label("L_END")
        a.i("s_endpgm")

    def dump_lds_xn(self):
        a = self.a
        a.i("v_lshlrev_b32 v72, 4, v0")
        a.i(f"s_mul_i32 s70, {sW}, 10240")
        a.i("v_add_u32 v73, s70, v72")
        a.i("s_mul_i32 s71, s2, 81920")
        a.i("s_add_u32 s71, s71, s70")
        a.i(f"s_add_u32 s71, s71, {WS_DBG}")
        for g in range(10):
            a.i(f"ds_read_b128 v[76:79], v73 offset:{g*1024}")
            a.i("s_waitcnt lgkmcnt(0)")
            a.i(f"s_add_u32 s70, s71, {g*1024}")
            a.i(f"buffer_store_dwordx4 v[76:79], v72, {SRD_WS}, s70 offen")
            a.i("s_waitcnt vmcnt(0)")

    def emit(self):
        self.build()
        body = self.a.text()
        hdr = f"""; Fused LayerNorm + multi-query attention + ReLU FFN + gated residual: out = x + (attn(xn) Wo) * silu(relu(xn W1) W2).
;   waves 0-3 : Q projection (one head each), attention over all 2048 keys (K/V fragments streamed through an LDS ring), publish o
; @launch grid=(256,1,1) block=(512,1,1) lds={LDS_TOTAL}
.amdgcn_target "amdgcn-amd-amdhsa--gfx950"
.text
.globl {NAME}_kernel
.p2align 8
.type {NAME}_kernel,@function
{NAME}_kernel:
"""
        ftr = f""".section .rodata,"a"
.p2align 6
.amdhsa_kernel {NAME}_kernel
  .amdhsa_next_free_vgpr 256
  .amdhsa_next_free_sgpr 102
  .amdhsa_accum_offset 256
  .amdhsa_group_segment_fixed_size 0
  .amdhsa_kernarg_size 88
  .amdhsa_user_sgpr_count 2
  .amdhsa_user_sgpr_kernarg_segment_ptr 1
  .amdhsa_system_sgpr_workgroup_id_x 1
  .amdhsa_float_denorm_mode_32 3
.end_amdhsa_kernel
"""
        return hdr + body + ftr

    def hazards(self):
        ins = [t for k, t in self.a.lines if k == 'i']
        probs = check_hazards(ins, "linear")
        body = [t for k, t in self.a.lines[self.loop_start:self.loop_end] if k == 'i']
        probs += check_hazards(body[-40:] + body[:40], "att-backedge")
        probs += check_outstanding(self.a.lines)
        return probs

if __name__ == "__main__":
    opt = {}
    out = None
    for arg in sys.argv[1:]:
        if "=" in arg:
            k, v = arg.split("=", 1); opt[k] = int(v) if v.lstrip('-').isdigit() else v
        else: out = arg
    g = Gen(opt)
    txt = g.emit()
    pr = g.hazards()
    for p in pr: print("HAZARD:", p)
    open(out or "k.s", "w").write(txt)
    n = sum(1 for k, t in g.a.lines if k == 'i')
    print(f"wrote {out or 'k.s'}: {n} instructions, {len(pr)} hazards")
```

```python
import sys, struct
from asmlib import Asm, check_hazards, check_outstanding

NAME = "recurrent_scan__grouped_kv_mqa__dense_activation_relu__prompt"

XN    = 0
BST   = 81920
BPRIV = 9216
NS1   = 4
WKI   = BST
AREG  = 118784
QST   = AREG
APRIV = 11136
NSQ   = 10
RSLOT = 11136
RSHARE = 2688
KVCH  = 12288
BREG  = 29696
CTRL  = 163328
LDS_TOTAL = 163840
VROW  = 352
VFR   = 2 * VROW
KV_KH = 4096
KV_V  = 5120
C_ARR, C_KVD, C_ABAR, C_QDONE, C_KVRDY, C_XND, C_HD, C_BBAR, C_OD, C_GO, C_HRDY, C_ORDY, C_KVS, C_QISS = [4 * i for i in range(14)]
CDUMMY = 128

WS_X    = 0
WS_FKV  = 0x1000
WS_FH   = 0x4000
WS_FO   = 0x6000
WS_KN   = 0x8000
WS_VN   = 0x8400
WS_KV   = 0x10000
WS_H    = 0x100000
WS_O    = 0x800000
WS_DBG  = 0xB00000
WS_PROF = 0x1300000
WS_END  = 0x1400000

QSCALE = 0.22360679774997896 * 1.4426950408889634

def f2u(x): return struct.unpack("<I", struct.pack("<f", x))[0]
def hx(x): return "0x%08x" % (x & 0xffffffff)

sW, sRB, sCG, sN, sWR = "s3", "s4", "s5", "s6", "s7"
SRD_X, SRD_WQ, SRD_WKV, SRD_WO, SRD_W1, SRD_W2, SRD_OUT, SRD_WS = [f"s[{8+4*i}:{11+4*i}]" for i in range(8)]
sDBG, sWSP = "s[58:59]", "s[60:61]"

SPIN_LDS = 400000
SPIN_GLB = 40000

class Gen:
    def __init__(self, opt):
        self.o = opt
        self.a = Asm()

    def vr(self, base, n): return f"v[{base}:{base+n-1}]"

    def lds_spin_ge(self, cnt_off, target, vtmp, vctlr, stmp="s62", sleep=1):
        a = self.a
        L = a.newlabel("spin"); Ld = a.newlabel("spind")
        a.i(f"s_mov_b32 {stmp}, 0")
        a.label(L)
        a.i(f"ds_read_b32 {vtmp}, {vctlr} offset:{cnt_off}")
        a.i("s_waitcnt lgkmcnt(0)")
        a.i(f"v_cmp_gt_u32 vcc, {target}, {vtmp}")
        a.i(f"s_cbranch_vccz {Ld}")
        a.i(f"s_add_u32 {stmp}, {stmp}, 1")
        a.i(f"s_cmp_lt_u32 {stmp}, {SPIN_LDS}")
        if sleep: a.i(f"s_sleep {sleep}")
        a.i(f"s_cbranch_scc1 {L}")
        a.label(Ld)
        a.lg = []

    def glb_poll(self, voff, soff, vtmp, stmp="s62", sleep=4):
        a = self.a
        L = a.newlabel("poll"); Ld = a.newlabel("polld")
        a.i(f"s_mov_b32 {stmp}, 0")
        a.label(L)
        a.i(f"buffer_load_dword {vtmp}, {voff}, {SRD_WS}, {soff} offen sc1")
        a.i("s_waitcnt vmcnt(0)")
        a.i(f"v_cmp_ne_u32 vcc, {sN}, {vtmp}")
        a.i(f"s_cbranch_vccz {Ld}")
        a.i(f"s_add_u32 {stmp}, {stmp}, 1")
        a.i(f"s_cmp_lt_u32 {stmp}, {SPIN_GLB}")
        a.i(f"s_sleep {sleep}")
        a.i(f"s_cbranch_scc1 {L}")
        a.label(Ld)
        a.vm = []

    def one_wave_poll(self, flag_base, rdy_off, pre=None, sleep=4, rsleep=2):
        a = self.a
        Lw = a.newlabel("opw"); Lj = a.newlabel("opj")
        keep = list(a.vm)
        a.i(f"s_cmp_lg_u32 {sWR}, 0")
        a.i(f"s_cbranch_scc1 {Lw}")
        if pre: pre()
        a.i("v_and_b32 v246, 7, v0")
        a.i("v_lshlrev_b32 v246, 2, v246")
        a.i(f"s_lshl_b32 s63, {sRB}, 7")
        a.i(f"s_add_u32 s63, s63, {flag_base}")
        self.glb_poll("v246", "s63", "v247", sleep=sleep)
        a.i(f"ds_add_u32 {self.B_CW}, {self.B_ONE} offset:{rdy_off}")
        a.i(f"s_branch {Lj}")
        a.label(Lw)
        self.lds_spin_ge(rdy_off, 1, "v246", self.B_CR, sleep=rsleep)
        a.label(Lj)
        a.i("s_waitcnt lgkmcnt(0)")
        a.vm = keep; a.lg = []

    def lds_count(self, cnt_off, vctlw, vone):
        return self.a.lds(f"ds_add_u32 {vctlw}, {vone} offset:{cnt_off}")

    def dump_regs(self, base, n, slot, vlane16, cond_wave=None):
        a = self.a
        a.i("s_lshl_b32 s70, s2, 3"); a.i(f"s_add_u32 s70, s70, {sW}")
        a.i("s_mul_i32 s70, s70, 0x4000")
        a.i(f"s_add_u32 s70, s70, {WS_DBG + 0x0}")
        for g in range(n // 4):
            a.i(f"s_add_u32 s71, s70, {(slot + g) * 1024}")
            a.i(f"buffer_store_dwordx4 v[{base+4*g}:{base+4*g+3}], {vlane16}, {SRD_WS}, s71 offen")
        a.i("s_waitcnt vmcnt(0)")
        a.vm = []

    def stamp(self, k, cyc=False, lvl=1):
        if self.o.get('prof') != lvl and not (k <= 2 and self.o.get('prof')): return
        a = self.a
        a.i("s_memtime s[56:57]" if cyc else "s_memrealtime s[56:57]")
        a.i("s_waitcnt lgkmcnt(0)")
        a.i(f"s_mov_b32 s{40+k}, s56")
        a.lg = []

    def stamp_flush(self):
        if not self.o.get('prof'): return
        a = self.a
        a.i("s_mov_b64 exec, 1")
        a.i("s_lshl_b32 s62, s2, 3")
        a.i(f"s_add_u32 s62, s62, {sW}")
        a.i("s_lshl_b32 s62, s62, 6")
        a.i(f"s_add_u32 s62, s62, {WS_PROF}")
        a.i("v_mov_b32 v1, 0")
        for g in range(4):
            for j in range(4): a.i(f"v_mov_b32 v{4+j}, s{40+4*g+j}")
            a.i(f"buffer_store_dwordx4 v[4:7], v1, {SRD_WS}, s62 offen offset:{16*g}")
            a.nop(2)
        a.i("s_mov_b64 exec, -1")

    def l2_prefetch(self, srd, total_bytes, ninstr, vtmp, vdst, sub_sgpr, nsub):
        a = self.a
        st = self.o.get('pfstride', 128)
        lines = total_bytes // st
        per_cu = -(-lines // 32); per_w = -(-per_cu // nsub); per_i = -(-per_w // ninstr)
        assert per_i <= 64, per_i
        a.i(f"s_lshr_b32 s62, {sRB}, 3")
        a.i(f"s_lshl_b32 s63, {sCG}, 2")
        a.i("s_add_u32 s62, s62, s63")
        a.i(f"s_mul_i32 s62, s62, {per_cu}")
        a.i(f"s_mul_i32 s63, {sub_sgpr}, {per_w}")
        a.i("s_add_u32 s62, s62, s63")
        a.i(f"v_min_u32 {vtmp}, {per_i - 1}, v0")
        a.i(f"v_add_u32 {vtmp}, s62, {vtmp}")
        a.i(f"v_mul_u32_u24 {vtmp}, {st}, {vtmp}")
        toks = []
        for i in range(ninstr):
            a.i(f"s_mov_b32 s63, {i * per_i * st}")
            toks.append(a.vmem(f"buffer_load_dword {vdst}, {vtmp}, {srd}, s63 offen"))
        return toks

    def prologue(self):
        a = self.a
        a.i("s_cmp_ge_u32 s2, 256")
        a.i("s_cbranch_scc1 L_END")
        if self.o.get('prof'): a.i("s_memrealtime s[94:95]")
        a.i("s_load_dwordx16 s[40:55], s[0:1], 0")
        a.i("s_load_dwordx4 s[56:59], s[0:1], 64")
        a.i("s_load_dwordx2 s[60:61], s[0:1], 80")
        a.i("v_lshrrev_b32 v1, 6, v0")
        a.i("v_and_b32 v0, 63, v0")
        a.i("s_and_b32 s62, s2, 1")
        a.i("s_lshl_b32 s62, s62, 2")
        a.i("s_lshr_b32 s63, s2, 6")
        a.i(f"s_add_u32 {sCG}, s62, s63")
        a.i(f"v_readfirstlane_b32 {sW}, v1")
        a.i("s_bfe_u32 s62, s2, 0x20001")
        a.i("s_lshl_b32 s62, s62, 3")
        a.i("s_bfe_u32 s63, s2, 0x30003")
        a.i(f"s_add_u32 {sRB}, s62, s63")
        a.i("v_lshrrev_b32 v2, 3, v0")
        a.i("v_and_b32 v3, 7, v0")
        a.i(f"s_and_b32 {sWR}, {sW}, 3")
        a.i(f"s_and_b32 s65, {sCG}, 1")
        a.i("s_lshl_b32 s65, s65, 2")
        a.i(f"s_xor_b32 s97, s65, {sW}")
        a.i("s_lshl_b32 s62, s97, 3")
        a.i(f"s_mul_i32 s98, {sRB}, 81920")
        a.i("v_add_u32 v4, s62, v2")
        a.i("v_mul_u32_u24 v4, 1280, v4")
        a.i("v_lshl_add_u32 v4, v3, 4, v4")
        a.i("s_waitcnt lgkmcnt(0)")
        def srd(base, lo, size):
            a.i(f"s_mov_b32 s{base}, s{lo}")
            a.i(f"s_mov_b32 s{base+1}, s{lo+1}")
            a.i(f"s_mov_b32 s{base+2}, {size}")
            a.i(f"s_mov_b32 s{base+3}, 0x20000")
        srd(8, 40, 2621440)
        Lx = a.newlabel("xa")
        a.i(f"s_cmp_ge_u32 {sW}, 4")
        a.i(f"s_cbranch_scc1 {Lx}")
        self.x_loads()
        a.label(Lx)
        a.i(f"s_load_dword {sN}, {sWSP}, {WS_X}")
        srd(12, 42, 819200)
        a.i(f"s_cmp_eq_u32 {sCG}, 4")
        a.i("s_cselect_b32 s16, s46, s44")
        a.i("s_cselect_b32 s17, s47, s45")
        a.i("s_mov_b32 s18, 25600")
        a.i("s_mov_b32 s19, 0x20000")
        srd(20, 48, 819200)
        srd(24, 52, 2211840)
        srd(28, 54, 2211840)
        srd(32, 56, 2621440)
        srd(36, 60, WS_END)
        for r in (200, 202, 230, 231, 253, 181, 215, 245, 220, 221, 222, 223, 224, 225, 226, 227, 228, 14, 15, 250): a.i(f"v_mov_b32 v{r}, 0")
        if self.o.get('prof'):
            for k in range(16): a.i(f"s_mov_b32 s{40+k}, 0")
            a.i("s_mov_b32 s55, s94")
        self.stamp(0)
        if self.o.get('span'):
            a.i("s_memrealtime s[90:91]")
            a.i("s_waitcnt lgkmcnt(0)")
            a.i("s_mov_b32 s101, s90")

    def layernorm(self):
        a = self.a
        a.i("v_lshrrev_b32 v5, 1, v3")
        a.i("v_lshlrev_b32 v5, 10, v5")
        a.i("v_and_b32 v6, 1, v3")
        a.i("v_lshlrev_b32 v6, 9, v6")
        a.i("v_xor_b32 v7, v2, v3")
        a.i("v_lshlrev_b32 v7, 4, v7")
        a.i("v_add3_u32 v5, v5, v6, v7")
        a.i("s_and_b32 s62, s97, 3")
        a.i("s_lshl_b32 s62, s62, 7")
        a.i("s_lshr_b32 s64, s97, 2")
        a.i("s_mul_i32 s64, s64, 40960")
        a.i("s_add_u32 s62, s62, s64")
        a.i("v_add_u32 v5, s62, v5")
        Lz = a.newlabel("nz")
        a.i(f"s_cmp_lg_u32 {sW}, 0")
        a.i(f"s_cbranch_scc1 {Lz}")
        a.i("v_lshlrev_b32 v6, 2, v0")
        a.i(f"v_add_u32 v6, {CTRL}, v6")
        a.i("v_mov_b32 v7, 0")
        a.i("ds_write_b32 v6, v7")
        a.label(Lz)
        a.i("s_mov_b32 s62, 0x3f803f80")
        a.i("s_mov_b32 s63, 0xffff0000")
        for k in range(4): a.i(f"v_mov_b32 v{64+k}, 0")
        a.nop(1)
        X = lambda j: f"v{16+j}"
        for j in range(40):
            a.i(f"v_dot2_f32_bf16 v{64+(j&1)}, {X(j)}, s62, v{64+(j&1)}")
            a.i(f"v_dot2_f32_bf16 v{66+(j&1)}, {X(j)}, {X(j)}, v{66+(j&1)}")
        a.nop(3)
        a.i("v_add_f32 v64, v64, v65")
        a.i("v_add_f32 v66, v66, v67")
        a.nop(1)
        for dpp in ("quad_perm:[1,0,3,2]", "quad_perm:[2,3,0,1]", "row_half_mirror"):
            a.i(f"v_add_f32_dpp v64, v64, v64 {dpp} row_mask:0xf bank_mask:0xf")
            a.i(f"v_add_f32_dpp v66, v66, v66 {dpp} row_mask:0xf bank_mask:0xf")
            a.nop(1)
        a.i(f"v_mul_f32 v64, {hx(f2u(1.0/640))}, v64")
        a.i(f"v_mul_f32 v66, {hx(f2u(1.0/640))}, v66")
        a.i("v_fma_f32 v66, -v64, v64, v66")
        a.i("v_max_f32 v66, 0, v66")
        a.i(f"v_add_f32 v66, {hx(f2u(1e-5))}, v66")
        a.i("v_rsq_f32 v68, v66")
        a.nop(1)
        a.i("v_mov_b32 v69, v68")
        a.i("v_mul_f32 v70, v64, v68")
        a.i("v_sub_f32 v70, 0, v70")
        a.i("v_mov_b32 v71, v70")
        self.stamp(3, lvl=2)
        if not self.o.get('pflate', 0):
            self.role_prefetch()
            a.label("L_LN2")
        self.stamp(4, lvl=2)
        a.i("s_mov_b32 s63, 0xffff0000")
        for g in range(10):
            for d in range(4):
                j = 4 * g + d
                t = 56 + 2 * (j & 3)
                a.i(f"v_lshlrev_b32 v{t}, 16, {X(j)}")
                a.i(f"v_and_b32 v{t+1}, s63, {X(j)}")
            for d in range(4):
                j = 4 * g + d
                t = 56 + 2 * (j & 3)
                a.i(f"v_pk_fma_f32 v[{t}:{t+1}], v[{t}:{t+1}], v[68:69], v[70:71]")
            for d in range(4):
                j = 4 * g + d
                t = 56 + 2 * (j & 3)
                a.i(f"v_cvt_pk_bf16_f32 {X(j)}, v{t}, v{t+1}")
            a.i(f"ds_write_b128 v5, v[{16+4*g}:{19+4*g}] offset:{4096*g}")
        if self.o.get('pflate', 0):
            self.role_prefetch()
            a.label("L_LN2")
        a.i("s_waitcnt lgkmcnt(0)")
        self.stamp(5, lvl=2)
        Lnw = a.newlabel("nw")
        a.i(f"s_cmp_lt_u32 {sW}, 4")
        a.i(f"s_cbranch_scc1 {Lnw}")
        a.i(f"s_and_b32 s62, {sCG}, 3")
        a.i("s_cmp_lg_u32 s62, 0")
        a.i(f"s_cbranch_scc1 {Lnw}")
        a.i("s_waitcnt vmcnt(0)")
        a.label(Lnw)
        a.i("s_barrier")
        a.lg = []

    def xn_addr(self, vA, vB, vt0, vt1, phase_sgpr=None, base_sgpr=None, swap_sgpr=None):
        a = self.a
        a.i(f"v_and_b32 {vt0}, 31, v0")
        a.i(f"v_lshrrev_b32 {vt1}, 5, v0")
        for q in range(4):
            r = f"v{vA+q}"
            if phase_sgpr is None:
                a.i(f"v_add_u32 {r}, {2*q}, {vt1}")
            else:
                a.i(f"s_add_u32 s62, {phase_sgpr}, {q}")
                a.i("s_and_b32 s62, s62, 3")
                a.i("s_lshl_b32 s62, s62, 1")
                a.i(f"v_add_u32 {r}, s62, {vt1}")
            a.i(f"v_xor_b32 {r}, {r}, {vt0}")
            a.i(f"v_lshlrev_b32 {r}, 4, {r}")
            a.i(f"v_lshl_add_u32 {r}, {vt1}, 9, {r}")
            if base_sgpr is not None:
                a.i(f"v_add_u32 {r}, {base_sgpr}, {r}")
            if vB is not None: a.i(f"v_add_u32 v{vB+q}, 40960, {r}")

    WRAPS = (8, 12, 16, 20, 28, 32, 36)
    def rot_setup(self, stride, sK, sRot):
        a = self.a
        a.i(f"s_and_b32 s62, {sRB}, 7")
        a.i("s_lshr_b32 s63, s62, 2")
        a.i("s_add_u32 s62, s62, s63")
        a.i(f"s_lshl_b32 {sRot}, s62, 2")
        if not self.o.get('rot', 1): a.i(f"s_mov_b32 {sRot}, 0")
        a.i(f"s_mul_i32 {sK}, {sRot}, {stride}")
    def rot_next(self, stride, sK, ks=None):
        a = self.a
        a.i(f"s_add_u32 {sK}, {sK}, {stride}")
        if ks is None or (ks + 1) in self.WRAPS:
            a.i(f"s_cmp_eq_u32 {sK}, {40*stride}")
            a.i(f"s_cselect_b32 {sK}, 0, {sK}")
    def rot_xn_base(self, vA, vB, sRot):
        a = self.a
        a.i(f"s_lshl_b32 s62, {sRot}, 10")
        for q in range(4):
            a.i(f"v_add_u32 v{vA+q}, s62, v{vA+q}")
            a.i(f"v_add_u32 v{vB+q}, s62, v{vB+q}")
    def rot_xn_seg(self, vA, vB, sRot, ks):
        a = self.a
        if ks not in self.WRAPS: return
        L = a.newlabel("wrap")
        a.i(f"s_cmp_eq_u32 {sRot}, {40 - ks}")
        a.i(f"s_cbranch_scc0 {L}")
        for q in range(4):
            a.i(f"v_subrev_u32 v{vA+q}, 40960, v{vA+q}")
            a.i(f"v_subrev_u32 v{vB+q}, 40960, v{vB+q}")
        a.label(L)
    def seg_imm(self, ks):
        return ks * 1024

    def ctl_regs(self, vW, vR, vOne):
        a = self.a
        a.i(f"v_lshlrev_b32 {vW}, 2, v0")
        a.i(f"v_add_u32 {vW}, {CTRL + CDUMMY}, {vW}")
        a.i(f"v_mov_b32 {vR}, {CTRL}")
        a.i("v_cmp_eq_u32 vcc, 0, v0")
        a.i(f"v_mov_b32 {vOne}, 1")
        a.nop(1)
        a.i(f"v_cndmask_b32 {vW}, {vW}, {vR}, vcc")

    vDq, vTRq, vTRk = "v200", "v201", "v202"
    A_XA, A_XB = 204, 208
    A_CW, A_CR, A_ONE, A_L16 = "v212", "v213", "v214", "v215"
    A_JA, A_JB = 220, 224

    def wq_dma(self, ks):
        a = self.a
        a.i(f"s_add_u32 m0, s66, {(ks % NSQ) * 1024}")
        a.nop(1)
        t = a.vmem(f"buffer_load_dwordx4 {self.vDq}, {SRD_WQ}, s67 offen lds")
        self.rot_next(20480, "s67", ks)
        return t

    def a_setup_private(self):
        a = self.a
        a.i(f"s_mul_i32 s66, {sWR}, {APRIV}")
        a.i(f"s_add_u32 s66, s66, {QST}")

    def a_prefetch_q_addr(self):
        a = self.a
        a.i("v_lshrrev_b32 v216, 2, v0")
        a.i("v_mul_u32_u24 v216, 1280, v216")
        a.i("v_and_b32 v217, 3, v0")
        a.i("v_cmp_eq_u32 vcc, 3, v217")
        a.i(f"v_lshl_add_u32 {self.vDq}, v217, 4, v216")
        a.i("v_mov_b32 v217, 0x40000000")
        a.i(f"v_cndmask_b32 {self.vDq}, {self.vDq}, v217, vcc")
        a.i(f"s_lshl_b32 s62, {sCG}, 2")
        a.i(f"s_add_u32 s62, s62, {sWR}")
        a.i("s_mul_i32 s62, s62, 40")
        a.i(f"s_cmp_eq_u32 {sWR}, 3")
        a.i("s_cselect_b32 s63, 8, 0")
        a.i("s_sub_u32 s62, s62, s63")
        a.i(f"v_add_u32 {self.vDq}, s62, {self.vDq}")

    def x_loads(self):
        a = self.a
        for i in range(10):
            a.i(f"buffer_load_dwordx4 v[{16+4*i}:{19+4*i}], v4, {SRD_X}, s98 offen offset:{128*i}")

    def role_setup(self):
        a = self.a
        a.i(f"s_cmp_ge_u32 {sW}, 4")
        a.i("s_cbranch_scc1 L_SET_B")
        self.a_setup_private()
        self.a_prefetch_q_addr()
        self.rot_setup(20480, "s67", "s69")
        self.ctl_regs(self.A_CW, self.A_CR, self.A_ONE)
        a.i(f"v_lshlrev_b32 {self.A_L16}, 4, v0")
        self.xn_addr(self.A_XA, self.A_XB, "v216", "v217")
        self.rot_xn_base(self.A_XA, self.A_XB, "s69")
        a.i(f"s_cmp_eq_u32 {sWR}, 3")
        a.i("s_cselect_b32 s63, 8, 0")
        a.i("s_add_u32 s63, s63, s66")
        self.tr_addr_nat64(self.vTRq, "s63", 64)
        self.ring_addr()
        a.i("s_branch L_SET_J")
        a.label("L_SET_B")
        a.i(f"s_mul_i32 s66, {sWR}, {BPRIV}")
        a.i(f"s_add_u32 s66, s66, {BST}")
        a.i(f"s_lshr_b32 s62, {sCG}, 2")
        a.i(f"s_sub_u32 s63, {sCG}, s62")
        a.i("s_sub_u32 s63, s63, 1")
        a.i("s_lshl_b32 s63, s63, 2")
        a.i(f"s_add_u32 s68, s63, {sWR}")
        a.i("s_mov_b32 s99, 1")
        a.i(f"s_and_b32 s63, {sCG}, 3")
        a.i("s_cmp_lg_u32 s63, 0")
        Lp = a.newlabel("pair")
        a.i(f"s_cbranch_scc1 {Lp}")
        a.i("s_lshl_b32 s62, s62, 1")
        a.i(f"s_add_u32 s68, s62, {sWR}")
        a.i("s_add_u32 s68, s68, 22")
        a.i(f"s_cmp_ge_u32 {sWR}, 2")
        a.i("s_cselect_b32 s99, 1, 0")
        a.i("s_cmp_ge_u32 s68, 27")
        a.i("s_cselect_b32 s99, 0, s99")
        a.i("s_cselect_b32 s68, 0, s68")
        a.label(Lp)
        a.i("s_lshl_b32 s68, s68, 1")
        a.i("s_lshl_b32 s62, s68, 6")
        self.pair_dma_addr(self.vD1a, self.vD1b, 3456, "s62")
        self.ctl_regs(self.B_CW, self.B_CR, self.B_ONE)
        a.i(f"v_lshlrev_b32 {self.B_L16}, 4, v0")
        self.rot_setup(16 * 3456, "s67", "s69")
        self.xn_addr(self.B_XA, self.B_XB, "v246", "v247")
        self.rot_xn_base(self.B_XA, self.B_XB, "s69")
        self.pair_tr_addr(self.vTRa, self.vTRb, 8, "s66")
        a.i(f"s_mov_b32 s62, {WKI}")
        self.tr_addr_nat64(self.B_TRK, "s62", 40, "v246", "v247")
        a.i(f"s_and_b32 s64, {sWR}, 1")
        a.i("s_mul_i32 s64, s64, 40960")
        self.xn_addr(self.B_JA, None, "v246", "v247", base_sgpr="s64")
        a.i("v_lshlrev_b32 v253, 4, v0")
        a.i(f"s_mul_i32 s62, {sWR}, 6400")
        a.i("v_add_u32 v253, s62, v253")
        self.x_loads()
        a.i(f"s_and_b32 s64, {sCG}, 3")
        a.i("s_cmp_lg_u32 s64, 0")
        a.i("s_cbranch_scc1 L_SET_NK")
        a.i(f"s_add_u32 s63, s62, {WKI}")
        a.i("s_mov_b32 m0, s63")
        a.i("s_mov_b32 s62, 0")
        for j in range(4):
            a.i(f"buffer_load_dwordx4 v253, {SRD_WKV}, s62 offen offset:{1024*j} lds")
        a.i("s_add_u32 m0, s63, 4096")
        a.i("s_mov_b32 s62, 4096")
        for j in range(3):
            a.i(f"buffer_load_dwordx4 v253, {SRD_WKV}, s62 offen offset:{1024*j} lds")
        a.label("L_SET_NK")
        self.out_tiles_setup()
        self.out_mixed_addr()
        self.ffn2_addr()
        a.i(f"s_and_b32 s64, {sCG}, 3")
        a.i("s_cmp_lg_u32 s64, 0")
        a.i("s_cbranch_scc1 L_SET_J")
        a.i("s_waitcnt vmcnt(7)")
        a.i("s_branch L_SET_X")
        a.label("L_SET_J")
        a.i("s_waitcnt vmcnt(0)")
        a.label("L_SET_X")

    def role_prefetch(self):
        a = self.a
        Lb = a.newlabel("pfb")
        a.i(f"s_cmp_ge_u32 {sW}, 4")
        a.i(f"s_cbranch_scc1 {Lb}")
        a.vm = []
        self.qtok = [self.wq_dma(ks) for ks in range(NSQ)]
        a.i("s_branch L_LN2")
        a.label(Lb)

    def tr_addr_nat64(self, vdst, base_sgpr, pitch, t0="v216", t1="v217"):
        a = self.a
        a.i(f"v_lshrrev_b32 {t0}, 5, v0")
        a.i(f"v_lshlrev_b32 {t0}, 3, {t0}")
        a.i(f"v_bfe_u32 {t1}, v0, 2, 2")
        a.i(f"v_add_u32 {t0}, {t0}, {t1}")
        a.i(f"v_mul_u32_u24 {t0}, {pitch}, {t0}")
        a.i(f"v_bfe_u32 {t1}, v0, 4, 1")
        a.i(f"v_lshl_add_u32 {t0}, {t1}, 5, {t0}")
        a.i(f"v_and_b32 {t1}, 3, v0")
        a.i(f"v_lshl_add_u32 {t0}, {t1}, 3, {t0}")
        a.i(f"v_add_u32 {vdst}, {base_sgpr}, {t0}")

    def wave_max(self, regs):
        a = self.a
        for dpp in ("row_shr:1 row_mask:0xf", "row_shr:2 row_mask:0xf", "row_shr:4 row_mask:0xf", "row_shr:8 row_mask:0xf",
                    "row_bcast:15 row_mask:0xa", "row_bcast:31 row_mask:0xc"):
            a.nop(2 if len(regs) == 1 else (1 if len(regs) == 2 else 0))
            for r in regs:
                a.i(f"v_max_f32_dpp {r}, {r}, {r} {dpp} bank_mask:0xf")
        a.nop(1)

    def kv_job(self, isV):
        a = self.a
        a.c("---- K/V projection job: B waves 0/1 = m-tile, full K ----")
        D = 16
        def fr(kk): return 48 + 8 * (kk % 4)
        toks = {}
        def reads(kk):
            b = fr(kk); t = []
            t.append(a.lds(f"ds_read_b64_tr_b16 v[{b}:{b+1}], {self.B_TRK} offset:{kk*640}"))
            t.append(a.lds(f"ds_read_b64_tr_b16 v[{b+2}:{b+3}], {self.B_TRK} offset:{kk*640+160}"))
            t.append(a.lds(f"ds_read_b128 v[{b+4}:{b+7}], v{self.B_JA + kk % 4} offset:{kk*1024}"))
            toks[kk] = t
        for kk in range(3): reads(kk)
        for kk in range(40):
            a.wait(lg=toks[kk])
            b = fr(kk)
            W = f"v[{b}:{b+3}]"; X = f"v[{b+4}:{b+7}]"
            C = "0" if kk == 0 else f"v[{D}:{D+15}]"
            if isV: a.i(f"v_mfma_f32_32x32x16_bf16 v[{D}:{D+15}], {X}, {W}, {C}")
            else:   a.i(f"v_mfma_f32_32x32x16_bf16 v[{D}:{D+15}], {W}, {X}, {C}")
            if kk + 3 < 40: reads(kk + 3)
        self.stamp(7, lvl=2)
        a.i(f"s_lshr_b32 s62, {sRB}, 1")
        a.i(f"s_mul_i32 s62, s62, {KVCH}")
        a.i(f"s_add_u32 s62, s62, {WS_KV}")
        a.i(f"s_and_b32 s63, {sRB}, 1")
        a.i("s_lshl_b32 s65, s63, 1")
        a.i(f"s_add_u32 s65, s65, {sWR}")
        a.i("v_and_b32 v93, 31, v0")
        a.i("v_lshrrev_b32 v95, 5, v0")
        if not isV:
            a.i("s_lshl_b32 s64, s65, 10")
            a.i("s_add_u32 s64, s62, s64")
            a.i("s_lshl_b32 s63, s63, 9")
            a.i("s_add_u32 s62, s62, s63")
            a.i(f"s_lshl_b32 s63, {sWR}, 3")
            a.i("s_add_u32 s62, s62, s63")
            a.i(f"s_add_u32 s62, s62, {KV_KH}")
            a.i("v_cmp_gt_u32 vcc, 32, v0")
            a.nop(2)
            for j in range(6): a.i(f"v_cvt_pk_bf16_f32 v{88+j if j < 4 else 96+j-4}, v{D+2*j}, v{D+2*j+1}")
            a.vmem(f"buffer_store_dwordx4 v[88:91], {self.B_L16}, {SRD_WS}, s64 offen sc1")
            a.i("s_mov_b32 exec_lo, -1"); a.i("s_mov_b32 exec_hi, 0")
            a.vmem(f"buffer_store_dwordx2 v[96:97], {self.B_L16}, {SRD_WS}, s62 offen sc1")
            a.i("s_mov_b64 exec, -1")
            a.i(f"v_mul_f32 v92, v{D+8}, v{D+8}")
            for j in range(9, 12): a.i(f"v_fmac_f32 v92, v{D+j}, v{D+j}")
            a.nop(1)
            a.i("v_cndmask_b32 v92, 0, v92, vcc")
            for j in range(8): a.i(f"v_fmac_f32 v92, v{D+j}, v{D+j}")
            a.i("v_mov_b32 v93, v92")
            a.nop(2)
            a.i("v_permlane32_swap_b32 v92, v93")
            a.nop(1)
            a.i("v_add_f32 v92, v92, v93")
            norm_base = WS_KN
        else:
            a.i(f"v_mul_u32_u24 v95, {VROW}, v95")
            a.i("v_lshl_add_u32 v95, v93, 4, v95")
            a.i("s_lshl_b32 s65, s65, 1")
            a.i(f"s_mul_i32 s65, s65, {VFR}")
            a.i("s_add_u32 s62, s62, s65")
            a.i(f"s_add_u32 s62, s62, {KV_V}")
            a.i("v_cmp_eq_u32 vcc, 20, v93")
            a.i("v_cmp_eq_u32 s[64:65], 21, v93")
            a.i("v_mov_b32 v94, 0x3f803f80")
            a.i("v_mov_b32 v98, 0")
            for j in range(8): a.i(f"v_cvt_pk_bf16_f32 v{80+j}, v{D+2*j}, v{D+2*j+1}")
            for j in range(8): a.i(f"v_cndmask_b32 v{80+j}, v{80+j}, v94, vcc")
            for j in range(8): a.i(f"v_cndmask_b32 v{80+j}, v{80+j}, v98, s[64:65]")
            a.i("s_mov_b32 exec_lo, 0x3fffff")
            a.i("s_mov_b32 exec_hi, 0x3fffff")
            a.vmem(f"buffer_store_dwordx4 v[80:83], v95, {SRD_WS}, s62 offen sc1")
            a.vmem(f"buffer_store_dwordx4 v[84:87], v95, {SRD_WS}, s62 offen offset:{VFR} sc1")
            a.i("s_mov_b64 exec, -1")
            a.i(f"v_max3_f32 v92, abs(v{D}), abs(v{D+1}), abs(v{D+2})")
            for j in range(3, 15, 2): a.i(f"v_max3_f32 v92, v92, abs(v{D+j}), abs(v{D+j+1})")
            a.i(f"v_max3_f32 v92, v92, abs(v{D+15}), abs(v{D+15})")
            a.i("v_cmp_gt_u32 vcc, 20, v93")
            a.nop(2)
            a.i("v_cndmask_b32 v92, 0, v92, vcc")
            norm_base = WS_VN
        self.stamp(9, lvl=2)
        self.wave_max(["v92"])
        a.i("v_readlane_b32 s63, v92, 63")
        a.i(f"s_lshl_b32 s62, {sRB}, 1")
        a.i(f"s_add_u32 s62, s62, {sWR}")
        a.i("s_lshl_b32 s62, s62, 2")
        a.i(f"s_add_u32 s62, s62, {norm_base}")
        a.i("v_mov_b32 v92, s63")
        a.i("v_mov_b32 v93, 0")
        a.i("s_mov_b64 exec, 1")
        a.vmem(f"buffer_store_dword v92, v93, {SRD_WS}, s62 offen sc1")
        a.i("s_mov_b64 exec, -1")
        a.wait(vm='all')
        self.stamp(10, lvl=2)
        a.lds(f"ds_add_rtn_u32 v248, {self.B_CW}, {self.B_ONE} offset:{C_KVD}")
        a.wait(lg='all')
        a.i("v_readfirstlane_b32 s62, v248")
        Lnf = a.newlabel("kvnf")
        a.nop(1)
        a.i("s_cmp_lg_u32 s62, 1")
        a.i(f"s_cbranch_scc1 {Lnf}")
        a.i("v_lshlrev_b32 v92, 8, v0")
        a.i(f"v_mov_b32 v93, {sN}")
        a.i(f"s_lshl_b32 s62, {sRB}, 1")
        a.i(f"s_add_u32 s62, s62, {1 if isV else 0}")
        a.i("s_lshl_b32 s62, s62, 2")
        a.i(f"s_add_u32 s62, s62, {WS_FKV}")
        a.i("s_mov_b32 exec_lo, -1"); a.i("s_mov_b32 exec_hi, 0")
        a.i(f"buffer_store_dword v93, v92, {SRD_WS}, s62 offen sc1")
        a.i("s_mov_b64 exec, -1")
        a.label(Lnf)
        a.vm = []

    def q_proj(self):
        a = self.a
        a.c("---- Q projection (transposed): wave = head, both m-tiles ----")
        NS = NSQ
        dt = self.qtok
        if self.o.get('kvgate', 0):
            Lgo = a.newlabel("qgo")
            a.i(f"s_and_b32 s62, {sCG}, 3")
            a.i("s_cmp_lg_u32 s62, 0")
            a.i(f"s_cbranch_scc1 {Lgo}")
            self.lds_spin_ge(C_KVD, 2, "v218", self.A_CR, sleep=1)
            a.label(Lgo)
        a.vm = list(dt); a.lg = []
        B = lambda ks: 48 + 12 * (ks % 3)
        dm = {k: dt[k] for k in range(NS)}
        toks = {}
        def reads(ks):
            a.wait(vm=dm[ks])
            b = B(ks); sl = (ks % NS) * 1024; t = []
            t.append(a.lds(f"ds_read_b64_tr_b16 v[{b}:{b+1}], {self.vTRq} offset:{sl}"))
            t.append(a.lds(f"ds_read_b64_tr_b16 v[{b+2}:{b+3}], {self.vTRq} offset:{sl+256}"))
            self.rot_xn_seg(self.A_XA, self.A_XB, "s69", ks)
            t.append(a.lds(f"ds_read_b128 v[{b+4}:{b+7}], v{self.A_XA + ks % 4} offset:{self.seg_imm(ks)}"))
            t.append(a.lds(f"ds_read_b128 v[{b+8}:{b+11}], v{self.A_XB + ks % 4} offset:{self.seg_imm(ks)}"))
            toks[ks] = t
        reads(0); reads(1)
        for ks in range(40):
            if ks in (0, 10, 20, 30): self.stamp(6 + ks // 10, lvl=2)
            a.wait(lg=toks[ks])
            b = B(ks)
            C = "0" if ks == 0 else "v[16:31]"
            a.i(f"v_mfma_f32_32x32x16_bf16 v[16:31], v[{b}:{b+3}], v[{b+4}:{b+7}], {C}")
            if ks + 2 < 40: reads(ks + 2)
            C = "0" if ks == 0 else "v[32:47]"
            a.i(f"v_mfma_f32_32x32x16_bf16 v[32:47], v[{b}:{b+3}], v[{b+8}:{b+11}], {C}")
            if ks + NS < 40: dm[ks + NS] = self.wq_dma(ks + NS)
            if ks == self.o.get('kvearly', -1):
                a.i("v_lshlrev_b32 v216, 2, v0")
                a.i(f"s_lshl_b32 s63, {sRB}, 8")
                a.i(f"s_add_u32 s101, s63, {WS_FKV}")
                self.kvtok = a.vmem(f"buffer_load_dword v188, v216, {SRD_WS}, s101 offen sc1")
            if ks + NS == 39: self.lds_count(C_QISS, self.A_CW, self.A_ONE)
        self.lds_count(C_XND, self.A_CW, self.A_ONE)
        self.lds_count(C_QDONE, self.A_CW, self.A_ONE)

    S_ = {'a': 16, 'b': 32}; O_ = {'a': 48, 'b': 64}; P_ = {'a': 80, 'b': 88}; C_ = {'a': 96, 'b': 112}
    QL = {'a': 128, 'b': 132}; QH = {'a': 136, 'b': 138}
    KL = [140, 144]; KH = [148, 152]; VV = [156, 164]
    vKL, vKH, vV, vCnt, vDkv = "v172", "v173", "v174", "v180", "v181"
    N2 = {'a': "v182", 'b': "v183"}

    def q_epilogue(self):
        a = self.a
        a.c("---- Q epilogue: scale, pack to bf16 B operands, squared norms ----")
        a.i("v_cmp_gt_u32 vcc, 32, v0")
        a.i(f"v_mov_b32 v216, {hx(f2u(QSCALE))}")
        a.i("v_mov_b32 v217, 0")
        a.nop(7)
        a.i("v_cndmask_b32 v217, v217, v216, vcc")
        for u, D in (('a', 16), ('b', 32)):
            for j in range(8): a.i(f"v_mul_f32 v{D+j}, v216, v{D+j}")
            for j in range(8, 12): a.i(f"v_mul_f32 v{D+j}, v217, v{D+j}")
            for j in range(4): a.i(f"v_cvt_pk_bf16_f32 v{self.QL[u]+j}, v{D+2*j}, v{D+2*j+1}")
            for j in range(2): a.i(f"v_cvt_pk_bf16_f32 v{self.QH[u]+j}, v{D+8+2*j}, v{D+9+2*j}")
            n = self.N2[u]
            a.i(f"v_mul_f32 {n}, v{D}, v{D}")
            for j in range(1, 12): a.i(f"v_fmac_f32 {n}, v{D+j}, v{D+j}")
        for u in "ab":
            a.i(f"v_mov_b32 v{218 if u=='a' else 219}, {self.N2[u]}")
        a.nop(1)
        a.i(f"v_permlane32_swap_b32 {self.N2['a']}, v218")
        a.i(f"v_permlane32_swap_b32 {self.N2['b']}, v219")
        a.nop(1)
        a.i(f"v_add_f32 {self.N2['a']}, {self.N2['a']}, v218")
        a.i(f"v_add_f32 {self.N2['b']}, {self.N2['b']}, v219")

    def qk(self, u, kl, kh, dst=None):
        S = self.S_[u] if dst is None else dst
        C = self.C_[u]
        m0 = f"v_mfma_f32_32x32x16_bf16 v[{S}:{S+15}], v[{kl}:{kl+3}], v[{self.QL[u]}:{self.QL[u]+3}], v[{C}:{C+15}]"
        m1 = f"v_mfma_f32_32x32x8_bf16 v[{S}:{S+15}], v[{kh}:{kh+1}], v[{self.QH[u]}:{self.QH[u]+1}], v[{S}:{S+15}]"
        return m0, m1
    def pv(self, u, vv):
        O = self.O_[u]; P = self.P_[u]
        m0 = f"v_mfma_f32_32x32x16_bf16 v[{O}:{O+15}], v[{vv}:{vv+3}], v[{P}:{P+3}], v[{O}:{O+15}]"
        m1 = f"v_mfma_f32_32x32x16_bf16 v[{O}:{O+15}], v[{vv+4}:{vv+7}], v[{P+4}:{P+7}], v[{O}:{O+15}]"
        return m0, m1

    def ring_addr(self):
        a = self.a
        a.i(f"v_add_u32 {self.vKL}, {AREG}, {self.A_L16}")
        a.i("v_and_b32 v216, 31, v0")
        a.i(f"v_lshlrev_b32 {self.vKH}, 4, v216")
        a.i(f"v_add_u32 {self.vKH}, {AREG + KV_KH}, {self.vKH}")
        a.i("v_min_u32 v217, 21, v216")
        a.i("v_cmp_eq_u32 vcc, 24, v216")
        a.i("v_lshrrev_b32 v219, 5, v0")
        a.i(f"v_mul_u32_u24 v219, {VROW}, v219")
        a.i("v_mov_b32 v218, 20")
        a.i("v_cndmask_b32 v217, v217, v218, vcc")
        a.i("v_lshl_add_u32 v217, v217, 4, v219")
        a.i(f"v_add_u32 {self.vV}, {AREG + KV_V}, v217")
        a.i(f"s_mul_i32 s62, {sWR}, {RSHARE}")
        a.i(f"v_add_u32 {self.vDkv}, s62, {self.A_L16}")
        a.i(f"s_add_u32 s72, s62, {AREG}")
        a.i("s_bfe_u32 s62, s2, 0x40003")
        if not self.o.get('rot', 1): a.i("s_mov_b32 s62, 0")
        a.i(f"s_mul_i32 s79, s62, {KVCH}")
        a.i(f"s_add_u32 s79, s79, {WS_KV}")

    def ring_dma(self, slot):
        a = self.a
        a.i(f"s_add_u32 m0, s72, {slot*RSLOT}")
        a.i(f"s_add_u32 s73, s79, {KVCH}")
        t = [a.vmem(f"buffer_load_dwordx4 {self.vDkv}, {SRD_WS}, s79 offen offset:{1024*j} sc1 lds") for j in range(3)]
        a.i(f"s_cmp_eq_u32 s73, {WS_KV + 16*KVCH}")
        a.i(f"s_cselect_b32 s79, {WS_KV}, s73")
        return t

    def att_init_regs(self):
        a = self.a
        for r in list(range(48, 80)) + list(range(88, 96)) + list(range(self.VV[1], self.VV[1] + 8)):
            a.i(f"v_mov_b32 v{r}, 0")

    def kv_wait(self):
        a = self.a
        a.c("---- wait for K/V of all row blocks ----")
        Lw = a.newlabel("kvw"); Lj = a.newlabel("kvj")
        if self.o.get('kvearly', -1) >= 0:
            a.vm = [self.kvtok]
            a.wait(vm=self.kvtok)
            a.i(f"v_cmp_ne_u32 vcc, {sN}, v188")
            Lslow = a.newlabel("kvslow")
            a.i(f"s_cbranch_vccnz {Lslow}")
            a.i(f"s_cmp_lg_u32 {sWR}, 0")
            a.i(f"s_cbranch_scc1 {Lj}")
            a.i(f"ds_add_u32 {self.A_CW}, {self.A_ONE} offset:{C_KVRDY}")
            a.i(f"s_branch {Lj}")
            a.label(Lslow)
        a.i(f"s_cmp_lg_u32 {sWR}, 0")
        a.i(f"s_cbranch_scc1 {Lw}")
        a.i("v_lshlrev_b32 v216, 2, v0")
        a.i(f"s_lshl_b32 s63, {sRB}, 8")
        a.i(f"s_add_u32 s63, s63, {WS_FKV}")
        self.glb_poll("v216", "s63", "v217", sleep=2)
        a.i(f"ds_add_u32 {self.A_CW}, {self.A_ONE} offset:{C_KVRDY}")
        a.i(f"s_branch {Lj}")
        a.label(Lw)
        self.lds_spin_ge(C_KVRDY, 1, "v218", self.A_CR, sleep=0)
        a.label(Lj)
        a.lg = []; a.vm = []
        a.i("s_waitcnt lgkmcnt(0)")

    def shift_setup(self):
        a = self.a
        a.c("---- softmax shift ----")
        a.i("v_lshlrev_b32 v216, 2, v0")
        a.i(f"s_mov_b32 s62, {WS_KN}")
        t1 = a.vmem(f"buffer_load_dword v184, v216, {SRD_WS}, s62 offen sc1")
        a.i(f"s_mov_b32 s63, {WS_VN}")
        t2 = a.vmem(f"buffer_load_dword v186, v216, {SRD_WS}, s63 offen sc1")
        self.lds_spin_ge(C_QDONE, 4, "v218", self.A_CR, sleep=0)
        pre = [self.ring_dma(c) for c in range(3)]
        self.lds_count(C_GO, self.A_CW, self.A_ONE)
        a.wait(vm=[t1, t2])
        self.wave_max(["v184", "v186"])
        a.i("v_readlane_b32 s62, v184, 63")
        a.i("v_readlane_b32 s64, v186, 63")
        a.nop(1)
        a.i("v_mov_b32 v184, s62")
        a.i("v_mov_b32 v186, s64")
        a.i("v_max_f32 v186, 1.0, v186")
        a.i("v_log_f32 v186, v186")
        a.i(f"v_mov_b32 v185, {hx(f2u(56.5))}")
        for u in "ab":
            n = self.N2[u]
            a.i(f"v_mul_f32 {n}, {n}, v184")
        a.i("v_fma_f32 v186, v186, -0.5, v185")
        for u in "ab": a.i(f"v_sqrt_f32 {self.N2[u]}, {self.N2[u]}")
        a.nop(1)
        for u in "ab": a.i(f"v_mul_f32 {self.N2[u]}, {hx(f2u(1.02))}, {self.N2[u]}")
        a.i(f"v_cmp_nle_f32 vcc, {self.N2['a']}, v186")
        a.i(f"v_cmp_nle_f32 s[64:65], {self.N2['b']}, v186")
        a.nop(1)
        a.i("s_or_b64 vcc, vcc, s[64:65]")
        if self.o.get('force_fallback'): a.i("s_mov_b64 vcc, -1")
        Lsafe = a.newlabel("safe")
        a.i(f"s_cbranch_vccz {Lsafe}")
        self.true_max_pass()
        a.label(Lsafe)
        for u in "ab":
            for j in range(16): a.i(f"v_mov_b32 v{self.C_[u]+j}, {self.N2[u]}")
        return pre

    def true_max_pass(self):
        a = self.a
        a.c("---- fallback: true row max ----")
        for u in "ab":
            for j in range(16): a.i(f"v_mov_b32 v{self.C_[u]+j}, 0")
            a.i(f"v_mov_b32 {self.N2[u]}, 0xff800000")
        a.i("v_and_b32 v216, 31, v0")
        a.i("v_lshlrev_b32 v216, 4, v216")
        a.i("s_mov_b32 s64, 0")
        L = a.newlabel("tm")
        a.label(L)
        a.i("s_lshr_b32 s62, s64, 2")
        a.i(f"s_mul_i32 s62, s62, {KVCH}")
        a.i(f"s_add_u32 s62, s62, {WS_KV}")
        a.i("s_and_b32 s63, s64, 3")
        a.i("s_lshl_b32 s65, s63, 10")
        a.i("s_add_u32 s65, s65, s62")
        a.i(f"buffer_load_dwordx4 v[{self.KL[0]}:{self.KL[0]+3}], {self.A_L16}, {SRD_WS}, s65 offen sc1")
        a.i("s_lshr_b32 s65, s63, 1")
        a.i("s_lshl_b32 s65, s65, 9")
        a.i("s_and_b32 s63, s63, 1")
        a.i("s_lshl_b32 s63, s63, 3")
        a.i("s_add_u32 s65, s65, s63")
        a.i("s_add_u32 s65, s65, s62")
        a.i("s_add_u32 s65, s65, 4096")
        a.i(f"buffer_load_dwordx2 v[{self.KH[0]}:{self.KH[0]+1}], v216, {SRD_WS}, s65 offen sc1")
        a.i("s_waitcnt vmcnt(0)")
        for u in "ab":
            for m in self.qk(u, self.KL[0], self.KH[0]): a.i(m)
        a.nop(12)
        for u in "ab":
            S = self.S_[u]
            for j in range(8): a.i(f"v_max3_f32 {self.N2[u]}, {self.N2[u]}, v{S+2*j}, v{S+2*j+1}")
        a.i("s_add_u32 s64, s64, 1")
        a.i("s_cmp_lt_u32 s64, 64")
        a.i(f"s_cbranch_scc1 {L}")
        a.i(f"v_mov_b32 v218, {self.N2['a']}")
        a.i(f"v_mov_b32 v219, {self.N2['b']}")
        a.nop(1)
        a.i(f"v_permlane32_swap_b32 {self.N2['a']}, v218")
        a.i(f"v_permlane32_swap_b32 {self.N2['b']}, v219")
        a.nop(1)
        a.i(f"v_max_f32 {self.N2['a']}, {self.N2['a']}, v218")
        a.i(f"v_max_f32 {self.N2['b']}, {self.N2['b']}, v219")
        a.i(f"v_sub_f32 {self.N2['a']}, 0, {self.N2['a']}")
        a.i(f"v_sub_f32 {self.N2['b']}, 0, {self.N2['b']}")

    def attention(self, pre):
        a = self.a
        a.c("---- attention main loop ----")
        a.wait(vm=pre[0])
        a.lds(f"ds_add_u32 {self.A_CW}, {self.A_ONE} offset:{C_ARR}")
        self.lds_spin_ge(C_ARR, 4, self.vCnt, self.A_CR, sleep=0)
        a.i("s_mov_b32 s74, 0")
        a.i("s_mov_b32 s78, 8")
        a.lds(f"ds_read_b128 v[{self.KL[0]}:{self.KL[0]+3}], {self.vKL}")
        a.lds(f"ds_read_b128 v[{self.KH[0]}:{self.KH[0]+3}], {self.vKH}")
        a.wait(lg='all')
        for m in self.qk('a', self.KL[0], self.KH[0]): a.i(m)
        a.nop(9)
        self.stamp(7)
        self.stamp(10, True)
        L = "L_ATT"
        a.raw(".p2align 6")
        a.label(L)
        self.loop_start = len(a.lines)
        def egroup(u, k):
            S = self.S_[u]; P = self.P_[u]
            for e in range(4): a.i(f"v_exp_f32 v{S+4*k+e}, v{S+4*k+e}")
            a.i(f"v_cvt_pk_bf16_f32 v{P+2*k}, v{S+4*k}, v{S+4*k+1}")
            a.i(f"v_cvt_pk_bf16_f32 v{P+2*k+1}, v{S+4*k+2}, v{S+4*k+3}")
        for slot in range(4):
            base = slot * RSLOT; nbase = ((slot + 1) % 4) * RSLOT
            a.vm = []; a.lg = []
            if self.o.get('prof') == 3:
                a.i("s_memtime s[90:91]"); a.i("s_waitcnt lgkmcnt(0)")
            if slot == 2:
                Lw3 = a.newlabel("w3")
                a.i("s_cmp_lg_u32 s74, 3")
                a.i(f"s_cbranch_scc1 {Lw3}")
                a.i("s_waitcnt vmcnt(0)")
                a.label(Lw3)
            a.i("s_waitcnt vmcnt(3)")
            if self.o.get('prof') == 3:
                a.i("s_memtime s[92:93]"); a.i("s_waitcnt lgkmcnt(0)")
                a.i("s_sub_u32 s92, s92, s90"); a.i("s_add_u32 s44, s44, s92")
            a.lds(f"ds_add_u32 {self.A_CW}, {self.A_ONE} offset:{C_ARR}")
            for t in range(4):
                kh = self.KH[(t >> 1) % 2] + 2 * (t & 1)
                q0, q1 = self.qk('b', self.KL[t % 2], kh)
                p0, p1 = self.pv('b', self.VV[(t - 1) % 2])
                rd = []
                kn = self.KL[(t + 1) % 2]
                rd.append(('K', f"ds_read_b128 v[{kn}:{kn+3}], {self.vKL} offset:{base + (t+1)*1024 if t < 3 else nbase}"))
                if t & 1:
                    hn = self.KH[((t + 1) >> 1) % 2]
                    rd.append(('K', f"ds_read_b128 v[{hn}:{hn+3}], {self.vKH} offset:{base + 512 if t < 3 else nbase}"))
                vv = self.VV[t % 2]
                rd.append(('V', f"ds_read_b128 v[{vv}:{vv+3}], {self.vV} offset:{base + (2*t)*VFR}"))
                rd.append(('V', f"ds_read_b128 v[{vv+4}:{vv+7}], {self.vV} offset:{base + (2*t+1)*VFR}"))
                ktok, vtok = [], []
                for k, m in enumerate((q0, q1, p0, p1)):
                    a.i(m)
                    if k < len(rd):
                        tk = a.lds(rd[k][1]); (ktok if rd[k][0] == 'K' else vtok).append(tk)
                    egroup('a', k)
                khn = self.KH[((t + 1) >> 1) % 2] + 2 * ((t + 1) & 1)
                q0, q1 = self.qk('a', self.KL[(t + 1) % 2], khn)
                p0, p1 = self.pv('a', self.VV[t % 2])
                a.wait(lg=ktok)
                for k, m in enumerate((q0, q1, p0, p1)):
                    if k == 2: a.wait(lg=vtok)
                    a.i(m)
                    if t == 0 and k == 3:
                        a.lds(f"ds_read_b32 {self.vCnt}, {self.A_CR} offset:{C_ARR}")
                    if t == 1 and k == 0:
                        Lok = a.newlabel("arr")
                        a.i(f"v_cmp_gt_u32 vcc, s78, {self.vCnt}")
                        a.i(f"s_cbranch_vccz {Lok}")
                        if self.o.get('prof'): a.i("s_add_u32 s52, s52, 1")
                        keep = list(a.lg)
                        self.lds_spin_ge(C_ARR, "s78", self.vCnt, self.A_CR, sleep=0)
                        a.lg = keep
                        a.label(Lok)
                    if t == 1 and k == 1:
                        if self.o.get('prof') == 3:
                            a.i("s_memtime s[90:91]"); a.i("s_waitcnt lgkmcnt(0)")
                        if slot == 0: self.ring_dma(3)
                        else:
                            Lnd = a.newlabel("nd")
                            a.i("s_cmp_eq_u32 s74, 3")
                            a.i(f"s_cbranch_scc1 {Lnd}")
                            self.ring_dma((slot + 3) % 4)
                            a.label(Lnd)
                        if self.o.get('prof') == 3:
                            a.i("s_memtime s[92:93]"); a.i("s_waitcnt lgkmcnt(0)")
                            a.i("s_sub_u32 s92, s92, s90"); a.i("s_add_u32 s45, s45, s92")
                        a.i("s_add_u32 s78, s78, 4")
                    egroup('b', k)
        if self.o.get('prof') == 1:
            a.i("s_memtime s[56:57]" if self.o.get('qcyc') else "s_memrealtime s[56:57]")
            a.i("s_waitcnt lgkmcnt(0)")
            for k in range(3):
                a.i(f"s_cmp_eq_u32 s74, {k}")
                a.i(f"s_cselect_b32 s{53+k if k < 2 else 43}, s56, s{53+k if k < 2 else 43}")
        a.i("s_add_u32 s74, s74, 1")
        a.i("s_cmp_lt_u32 s74, 4")
        self.loop_end = len(a.lines)
        a.i(f"s_cbranch_scc1 {L}")
        for m in self.pv('b', self.VV[1]): a.i(m)
        a.vm = []; a.lg = []

    def o_addr(self):
        a = self.a
        a.i(f"s_lshl_b32 s62, {sRB}, 1")
        a.i("s_mul_i32 s62, s62, 40960")
        a.i(f"s_add_u32 s80, s62, {WS_O}")
        a.i(f"s_mul_i32 s63, {sCG}, 5")
        a.i(f"s_add_u32 s81, s63, {sWR}")
        a.i("s_lshl_b32 s81, s81, 10")
        a.i("s_add_u32 s63, s63, 4")
        a.i("s_lshl_b32 s63, s63, 10")
        a.i(f"s_lshr_b32 s65, {sWR}, 1")
        a.i("s_lshl_b32 s65, s65, 9")
        a.i("s_add_u32 s63, s63, s65")
        a.i(f"s_and_b32 s65, {sWR}, 1")
        a.i("s_lshl_b32 s65, s65, 3")
        a.i("s_add_u32 s82, s63, s65")

    def o_epilogue(self):
        a = self.a
        a.c("---- normalise O, publish ----")
        a.i("v_cmp_gt_u32 vcc, 32, v0")
        a.nop(2)
        for mt, u in enumerate("ab"):
            O = self.O_[u]
            a.i(f"v_cndmask_b32 v216, v{O+8}, v{O+12}, vcc")
            a.i("v_rcp_f32 v216, v216")
            a.nop(1)
            a.i("v_mov_b32 v217, v216")
            for j in range(0, 12, 2): a.i(f"v_pk_mul_f32 v[{O+j}:{O+j+1}], v[{O+j}:{O+j+1}], v[216:217]")
            P = self.P_[u]
            for j in range(6): a.i(f"v_cvt_pk_bf16_f32 v{P+j}, v{O+2*j}, v{O+2*j+1}")
            a.i(f"s_add_u32 s68, s80, {mt*40960}")
            a.i("s_add_u32 s69, s68, s81")
            a.vmem(f"buffer_store_dwordx4 v[{P}:{P+3}], {self.A_L16}, {SRD_WS}, s69 offen sc1")
            a.i("s_add_u32 s69, s68, s82")
            a.i("s_mov_b32 exec_lo, -1"); a.i("s_mov_b32 exec_hi, 0")
            a.vmem(f"buffer_store_dwordx2 v[{P+4}:{P+5}], {self.A_L16}, {SRD_WS}, s69 offen sc1")
            a.i("s_mov_b64 exec, -1")
        a.wait(vm='all')
        a.lds(f"ds_add_rtn_u32 v218, {self.A_CW}, {self.A_ONE} offset:{C_OD}")
        a.wait(lg='all')
        a.i("v_readfirstlane_b32 s62, v218")
        a.nop(1)
        a.i("s_cmp_lg_u32 s62, 3")
        a.i("s_cbranch_scc1 L_AEND")
        a.i(f"s_lshl_b32 s62, {sRB}, 7")
        a.i(f"s_lshl_b32 s63, {sCG}, 2")
        a.i("s_add_u32 s62, s62, s63")
        a.i(f"s_add_u32 s62, s62, {WS_FO}")
        a.i(f"v_mov_b32 v217, {sN}")
        a.i("v_mov_b32 v216, 0")
        a.i("s_mov_b64 exec, 1")
        a.i(f"buffer_store_dword v217, v216, {SRD_WS}, s62 offen sc1")
        a.i("s_mov_b64 exec, -1")
        a.label("L_AEND")
        self.stamp(9)
        self.stamp(9, lvl=3)
        self.stamp_flush()
        a.i("s_branch L_END")

    def role_a(self):
        a = self.a
        a.label("L_ROLE_A")
        a.i(f"s_setprio {self.o.get('prioQ', 2)}")
        dt = None
        if self.o.get('noQ'):
            a.i("s_waitcnt vmcnt(0)")
            self.lds_count(C_XND, self.A_CW, self.A_ONE)
            for r in range(16, 48): a.i(f"v_mov_b32 v{r}, 0")
        else: self.q_proj()
        self.stamp(10, lvl=2)
        self.stamp(4)
        self.q_epilogue()
        if self.o.get('dump') == 'q':
            self.dump_regs(128, 12, 0, self.A_L16)
        self.att_init_regs()
        self.o_addr()
        a.i(f"s_setprio {self.o.get('prioA', 2)}")
        self.kv_wait()
        self.stamp(5)
        pre = self.shift_setup()
        self.stamp(6)
        if not self.o.get('noatt'): self.attention(pre)
        else:
            self.loop_start = self.loop_end = len(a.lines)
            a.i("s_waitcnt vmcnt(0)")
        self.stamp(11, True)
        self.stamp(8)
        if self.o.get('dump') == 'o':
            a.nop(16)
            self.dump_regs(48, 32, 0, self.A_L16)
        self.o_epilogue()

    vD1a, vD1b, vTRa, vTRb = "v230", "v231", "v232", "v233"
    B_XA, B_XB = 234, 238
    B_CW, B_CR, B_ONE, B_L16 = "v242", "v243", "v244", "v245"
    B_TRK = "v252"
    B_JA, B_JB = 112, None
    vWa, vWb, vWc, vMa, vMb, vMc = "v220", "v221", "v222", "v223", "v224", "v225"
    vRa, vRb, vRc, vPW, vPR0, vPR1, vXO, vH0 = "v8", "v9", "v10", "v11", "v12", "v13", "v14", "v15"
    vH1 = "v250"
    vPR2, vPR3 = "v254", "v255"

    def pair_dma_addr(self, va, vb, pitch, col_sgpr, comp_rows=8):
        a = self.a
        a.i("v_lshrrev_b32 v246, 3, v0")
        a.i("v_bfe_u32 v247, v0, 4, 1")
        a.i("v_lshlrev_b32 v247, 2, v247")
        a.i("v_and_b32 v248, 7, v0")
        a.i("v_xor_b32 v247, v247, v248")
        a.i(f"v_mul_u32_u24 v246, {pitch}, v246")
        a.i(f"v_lshl_add_u32 {va}, v247, 4, v246")
        a.i(f"v_add_u32 {va}, {col_sgpr}, {va}")
        a.i(f"v_add_u32 {vb}, {comp_rows*pitch - 1024}, {va}")

    def pair_tr_addr(self, va, vb, hmul, base_sgpr):
        a = self.a
        a.i("v_lshrrev_b32 v246, 5, v0")
        a.i(f"v_mul_u32_u24 v246, {hmul}, v246")
        a.i("v_bfe_u32 v247, v0, 2, 2")
        a.i("v_add_u32 v246, v246, v247")
        a.i("v_lshlrev_b32 v246, 7, v246")
        a.i("v_bfe_u32 v247, v0, 4, 1")
        a.i("v_lshlrev_b32 v247, 1, v247")
        a.i("v_bfe_u32 v248, v0, 1, 1")
        a.i("v_add_u32 v247, v247, v248")
        a.i("v_bfe_u32 v248, v0, 3, 1")
        a.i("v_lshlrev_b32 v248, 2, v248")
        a.i("v_xor_b32 v247, v247, v248")
        a.i("v_lshl_add_u32 v246, v247, 4, v246")
        a.i("v_and_b32 v247, 1, v0")
        a.i("v_lshl_add_u32 v246, v247, 3, v246")
        a.i(f"v_add_u32 {va}, {base_sgpr}, v246")
        a.i(f"v_xor_b32 {vb}, 64, v246")
        a.i(f"v_add_u32 {vb}, {base_sgpr}, {vb}")

    def w1_dma(self, ks, part=None):
        a = self.a
        t = []
        if part in (None, 0):
            a.i(f"s_add_u32 m0, s66, {(ks % NS1) * 2048}")
            if part is None: a.nop(1)
        if part in (None, 1):
            t.append(a.vmem(f"buffer_load_dwordx4 {self.vD1a}, {SRD_W1}, s67 offen lds"))
        if part in (None, 2):
            t.append(a.vmem(f"buffer_load_dwordx4 {self.vD1b}, {SRD_W1}, s67 offen offset:1024 lds"))
            self.rot_next(16 * 3456, "s67", ks)
        return t

    def ffn1(self):
        a = self.a
        a.c("---- FFN1 (transposed): h^T tiles, 2 n-tiles x 2 m-tiles per wave ----")
        acc = lambda t, m: 16 + 32 * t + 16 * m
        W = lambda s, t: 80 + 8 * s + 4 * t
        X = lambda s, m: 96 + 8 * s + 4 * m
        d1 = NS1
        dm = dict(self.w1tok); ta = {}; tb = {}
        def rd_wa(ks):
            a.wait(vm=dm[ks])
            s = ks % 2; sl = (ks % NS1) * 2048
            ta[ks] = [a.lds(f"ds_read_b64_tr_b16 v[{W(s,0)}:{W(s,0)+1}], {self.vTRa} offset:{sl}"),
                      a.lds(f"ds_read_b64_tr_b16 v[{W(s,0)+2}:{W(s,0)+3}], {self.vTRa} offset:{sl+512}")]
        def rd_x(ks):
            s = ks % 2
            self.rot_xn_seg(self.B_XA, self.B_XB, "s69", ks)
            ta[ks].append(a.lds(f"ds_read_b128 v[{X(s,0)}:{X(s,0)+3}], v{self.B_XA + ks % 4} offset:{self.seg_imm(ks)}"))
            ta[ks].append(a.lds(f"ds_read_b128 v[{X(s,1)}:{X(s,1)+3}], v{self.B_XB + ks % 4} offset:{self.seg_imm(ks)}"))
        def rd_wb(ks):
            s = ks % 2; sl = (ks % NS1) * 2048
            tb[ks] = [a.lds(f"ds_read_b64_tr_b16 v[{W(s,1)}:{W(s,1)+1}], {self.vTRb} offset:{sl}"),
                      a.lds(f"ds_read_b64_tr_b16 v[{W(s,1)+2}:{W(s,1)+3}], {self.vTRb} offset:{sl+512}")]
        def mf(ks, t, m):
            s = ks % 2; A = acc(t, m)
            C = "0" if ks == 0 else f"v[{A}:{A+15}]"
            a.i(f"v_mfma_f32_32x32x16_bf16 v[{A}:{A+15}], v[{W(s,t)}:{W(s,t)+3}], v[{X(s,m)}:{X(s,m)+3}], {C}")
        rd_wa(0); rd_x(0); rd_wb(0)
        for ks in range(40):
            nx = ks + 1 < 40; dd = ks + d1 < 40
            if ks in (0, 10, 20, 30): self.stamp(6 + ks // 10, lvl=2)
            a.wait(lg=ta[ks])
            mf(ks, 0, 0)
            if nx: rd_wa(ks + 1)
            mf(ks, 0, 1)
            a.wait(lg=tb[ks])
            if nx: rd_x(ks + 1)
            if dd: self.w1_dma(ks + d1, 0)
            mf(ks, 1, 0)
            if nx: rd_wb(ks + 1)
            if dd: dm[ks + d1] = self.w1_dma(ks + d1, 1)
            mf(ks, 1, 1)
            if dd: dm[ks + d1] += self.w1_dma(ks + d1, 2)
        self.lds_count(C_XND, self.B_CW, self.B_ONE)
        if self.o.get('pf', 0): self.l2_prefetch(SRD_W2, 2211840, 3 if self.o.get('pfstride', 128) == 128 else 5, "v246", "v251", sWR, 4)
        self.stamp(10, lvl=2)
        self.stamp(3)
        a.i(f"s_setprio {self.o.get('prioBv', 3)}")
        a.i(f"s_lshl_b32 s62, {sRB}, 1")
        a.i("s_mul_i32 s62, s62, 110592")
        a.i("s_lshl_b32 s63, s68, 11")
        a.i("s_add_u32 s62, s62, s63")
        a.i(f"s_add_u32 s62, s62, {WS_H}")
        a.nop(6)
        for t in range(2):
            for m in range(2):
                A = acc(t, m); R = 80 + 8 * m + 16 * (t & 1)
                for j in range(8): a.i(f"v_cvt_pk_bf16_f32 v{R+j}, v{A+2*j}, v{A+2*j+1}")
                for j in range(8): a.i(f"v_pk_max_i16 v{R+j}, v{R+j}, 0")
                a.i(f"s_add_u32 s63, s62, {m*110592 + t*2048}")
                a.vmem(f"buffer_store_dwordx4 v[{R}:{R+3}], {self.B_L16}, {SRD_WS}, s63 offen sc1")
                a.vmem(f"buffer_store_dwordx4 v[{R+4}:{R+7}], {self.B_L16}, {SRD_WS}, s63 offen offset:1024 sc1")
        a.i(f"s_setprio {self.o.get('prioB', 0)}")

    def h_publish(self):
        a = self.a
        a.i("s_waitcnt vmcnt(0)")
        a.vm = []
        a.lds(f"ds_add_rtn_u32 v246, {self.B_CW}, {self.B_ONE} offset:{C_HD}")
        a.wait(lg='all')
        a.i("v_readfirstlane_b32 s62, v246")
        Lnf = a.newlabel("hnf")
        a.nop(1)
        a.i("s_cmp_lg_u32 s62, 3")
        a.i(f"s_cbranch_scc1 {Lnf}")
        a.i(f"s_lshl_b32 s62, {sRB}, 7")
        a.i(f"s_lshl_b32 s63, {sCG}, 2")
        a.i("s_add_u32 s62, s62, s63")
        a.i(f"s_add_u32 s62, s62, {WS_FH}")
        a.i(f"v_mov_b32 v247, {sN}")
        a.i("v_mov_b32 v246, 0")
        a.i("s_mov_b64 exec, 1")
        a.i(f"buffer_store_dword v247, v246, {SRD_WS}, s62 offen sc1")
        a.i("s_mov_b64 exec, -1")
        a.label(Lnf)

    def out_tiles_setup(self):
        a = self.a
        a.i(f"s_lshr_b32 s62, {sCG}, 1")
        a.i("s_and_b32 s64, s62, 1")
        a.i("s_mul_i32 s62, s62, 5")
        a.i(f"s_and_b32 s82, {sCG}, 1")
        a.i("s_lshl_b32 s63, s82, 1")
        a.i("s_add_u32 s80, s62, s63")
        a.i("s_add_u32 s80, s80, s64")
        a.i("s_lshl_b32 s80, s80, 6")
        a.i("s_xor_b32 s64, s64, 1")
        a.i("s_lshl_b32 s64, s64, 2")
        a.i("s_add_u32 s81, s62, s64")
        a.i("s_lshl_b32 s81, s81, 6")
        a.i(f"s_mul_i32 s83, {sWR}, {BREG}")
        self.pair_dma_addr(self.vWa, self.vWb, 1280, "s80")
        a.i("v_lshrrev_b32 v246, 2, v0")
        a.i("v_mul_u32_u24 v246, 1280, v246")
        a.i("v_and_b32 v247, 3, v0")
        a.i(f"v_lshl_add_u32 {self.vWc}, v247, 4, v246")
        a.i(f"v_add_u32 {self.vWc}, s81, {self.vWc}")
        self.pair_tr_addr(self.vRa, self.vRb, 4, "s83")
        a.i("v_lshrrev_b32 v246, 5, v0")
        a.i("v_lshlrev_b32 v246, 2, v246")
        a.i("v_bfe_u32 v247, v0, 2, 2")
        a.i("v_add_u32 v246, v246, v247")
        a.i("v_lshlrev_b32 v246, 6, v246")
        a.i("v_bfe_u32 v247, v0, 4, 1")
        a.i("v_lshl_add_u32 v246, v247, 5, v246")
        a.i("v_and_b32 v247, 3, v0")
        a.i("v_lshl_add_u32 v246, v247, 3, v246")
        a.i("s_add_u32 s62, s83, 2048")
        a.i(f"v_add_u32 {self.vRc}, s62, v246")
        a.i(f"v_add_u32 {self.vPW}, s83, {self.B_L16}")
        a.i(f"s_lshl_b32 s62, {sWR}, 12")
        a.i(f"v_add_u32 {self.vPR0}, s62, {self.B_L16}")
        a.i(f"v_add_u32 {self.vPR1}, {2*BREG}, {self.vPR0}")
        a.i(f"s_lshl_b32 s62, {sWR}, 10")
        a.i("s_add_u32 s62, s62, 16384")
        a.i(f"v_add_u32 {self.vPR2}, s62, {self.B_L16}")
        a.i(f"v_add_u32 {self.vPR3}, {2*BREG}, {self.vPR2}")

    def w3_dma(self, srd, slot, soff_sgpr, va, vb, vc):
        a = self.a
        a.i(f"s_add_u32 m0, s83, {slot*3072}")
        a.nop(1)
        t = [a.vmem(f"buffer_load_dwordx4 {va}, {srd}, {soff_sgpr} offen lds"),
             a.vmem(f"buffer_load_dwordx4 {vb}, {srd}, {soff_sgpr} offen offset:1024 lds")]
        a.i(f"s_add_u32 m0, s83, {slot*3072 + 2048}")
        a.nop(1)
        t.append(a.vmem(f"buffer_load_dwordx4 {vc}, {srd}, {soff_sgpr} offen lds"))
        return t

    def w3_reads(self, slot, Wb, part=None):
        a = self.a; t = []
        sl = slot * 3072
        if isinstance(part, tuple):
            p = part[1]
            va, o2 = ((self.vRa, 1024), (self.vRb, 1024), (self.vRc, 512))[p]
            t.append(a.lds(f"ds_read_b64_tr_b16 v[{Wb+4*p}:{Wb+4*p+1}], {va} offset:{sl}"))
            t.append(a.lds(f"ds_read_b64_tr_b16 v[{Wb+4*p+2}:{Wb+4*p+3}], {va} offset:{sl+o2}"))
            return t
        if part in (None, 0):
            t.append(a.lds(f"ds_read_b64_tr_b16 v[{Wb}:{Wb+1}], {self.vRa} offset:{sl}"))
            t.append(a.lds(f"ds_read_b64_tr_b16 v[{Wb+2}:{Wb+3}], {self.vRa} offset:{sl+1024}"))
            t.append(a.lds(f"ds_read_b64_tr_b16 v[{Wb+4}:{Wb+5}], {self.vRb} offset:{sl}"))
        if part in (None, 1):
            t.append(a.lds(f"ds_read_b64_tr_b16 v[{Wb+6}:{Wb+7}], {self.vRb} offset:{sl+1024}"))
            t.append(a.lds(f"ds_read_b64_tr_b16 v[{Wb+8}:{Wb+9}], {self.vRc} offset:{sl}"))
            t.append(a.lds(f"ds_read_b64_tr_b16 v[{Wb+10}:{Wb+11}], {self.vRc} offset:{sl+512}"))
        return t

    def five_mfma(self, Wb, H0, H1, first, fill):
        a = self.a
        spec = [(0, 0, H0), (1, 0, H1), (2, 1, H0), (3, 1, H1), (4, 2, H0)]
        for n, (tau, nt, Hb) in enumerate(spec):
            A = 16 + 16 * tau
            C = "0" if first else f"v[{A}:{A+15}]"
            a.i(f"v_mfma_f32_32x32x16_bf16 v[{A}:{A+15}], v[{Wb+4*nt}:{Wb+4*nt+3}], v[{Hb}:{Hb+3}], {C}")
            if n < len(fill) and fill[n]: fill[n]()

    def reduce80(self, dst, bar_target):
        a = self.a
        a.nop(8)
        for g in range(20):
            if len(a.lg) >= 14: a.wait(lg=a.lg[6])
            a.lds(f"ds_write_b128 {self.vPW}, v[{16+4*g}:{19+4*g}] offset:{g*1024}")
        a.wait(lg='all')
        self.lds_count(C_BBAR, self.B_CW, self.B_ONE)
        self.lds_spin_ge(C_BBAR, bar_target, "v246", self.B_CR, sleep=0)
        tk = {}
        def rd(src):
            va = self.vPR0 if src < 2 else self.vPR1
            vb = self.vPR2 if src < 2 else self.vPR3
            tk[src] = [a.lds(f"ds_read_b128 v[{16+20*src+4*e}:{19+20*src+4*e}], {va} offset:{(src&1)*BREG + e*1024}") for e in range(4)]
            tk[src].append(a.lds(f"ds_read_b128 v[{32+20*src}:{35+20*src}], {vb} offset:{(src&1)*BREG}"))
        rd(0); rd(1); rd(2)
        a.wait(lg=tk[1])
        rd(3)
        pk = lambda d, x, y: a.i(f"v_pk_add_f32 v[{d}:{d+1}], v[{x}:{x+1}], v[{y}:{y+1}]")
        for j in range(0, 20, 2): pk(dst + j, 16 + j, 36 + j)
        a.wait(lg=tk[2])
        for j in range(0, 20, 2): pk(dst + j, dst + j, 56 + j)
        a.wait(lg='all')
        for j in range(0, 20, 2): pk(dst + j, dst + j, 76 + j)

    def ffn2(self):
        a = self.a
        a.c("---- FFN2 (transposed): 5 output tiles, split-K over the 4 B waves ----")
        if self.o.get('touch', 0):
            a.vmem(f"buffer_load_dword v251, v227, {SRD_W2}, s80 offen")
            a.vmem(f"buffer_load_dword v254, v227, {SRD_W2}, s81 offen")
        self.lds_spin_ge(C_XND, 8, "v246", self.B_CR)
        NS = 9; PF = self.o.get('d2', 4); HD = self.o.get('dh', 3) + 1
        a.i(f"s_mul_i32 s84, {sWR}, {27*20480}")
        a.i(f"s_and_b32 s62, {sRB}, 7")
        a.i("s_mul_i32 s62, s62, 3")
        a.i(f"s_and_b32 s63, {sCG}, 3")
        a.i("s_mul_i32 s63, s63, 7")
        a.i("s_add_u32 s62, s62, s63")
        a.i("s_cmp_ge_u32 s62, 27")
        a.i("s_cselect_b32 s63, 27, 0")
        a.i("s_sub_u32 s87, s62, s63")
        if not self.o.get('rot', 1): a.i("s_mov_b32 s87, 0")
        a.i("s_mul_i32 s95, s87, 20480")
        dm = {}
        a.i("s_add_u32 s95, s95, s84")
        a.i(f"s_add_u32 s93, s84, {27*20480}")
        def dma(kk, part=None):
            slot = kk % NS
            if part in (None, 0):
                a.i(f"s_add_u32 m0, s83, {slot*3072}")
                if part is None: a.nop(1)
            if part in (None, 1):
                dm[kk] = [a.vmem(f"buffer_load_dwordx4 {self.vWa}, {SRD_W2}, s95 offen lds")]
            if part in (None, 2):
                dm[kk].append(a.vmem(f"buffer_load_dwordx4 {self.vWb}, {SRD_W2}, s95 offen offset:1024 lds"))
                a.i(f"s_add_u32 m0, s83, {slot*3072 + 2048}")
                if part is None: a.nop(1)
            if part in (None, 3):
                dm[kk].append(a.vmem(f"buffer_load_dwordx4 {self.vWc}, {SRD_W2}, s95 offen lds"))
                a.i("s_add_u32 s95, s95, 20480")
                a.i("s_cmp_eq_u32 s95, s93")
                a.i("s_cselect_b32 s95, s84, s95")
        for kk in range(PF): dma(kk)
        self.stamp(5)
        self.one_wave_poll(WS_FH, C_HRDY, sleep=8)
        Lnl = a.newlabel("nolead")
        a.i(f"s_lshl_b32 s62, {sCG}, 2")
        a.i(f"s_add_u32 s62, s62, {sWR}")
        a.i("s_cmp_lg_u32 s62, 0")
        a.i(f"s_cbranch_scc1 {Lnl}")
        a.i("v_mov_b32 v246, 0")
        a.i("v_mov_b32 v247, 1")
        a.i("s_mov_b64 exec, 1")
        a.i(f"global_atomic_add v248, v246, v247, {sDBG} sc0 sc1")
        a.i("s_waitcnt vmcnt(0)")
        a.i("v_readfirstlane_b32 s62, v248")
        a.i("s_mov_b64 exec, -1")
        a.nop(1)
        a.i("s_cmp_lg_u32 s62, 31")
        a.i(f"s_cbranch_scc1 {Lnl}")
        a.i(f"v_mov_b32 v247, {sN}")
        a.i(f"v_mov_b32 v246, {WS_X}")
        a.i("s_mov_b32 s62, 0")
        a.i("s_mov_b64 exec, 1")
        a.i(f"buffer_store_dword v247, v246, {SRD_WS}, s62 offen sc1")
        a.i("s_mov_b64 exec, -1")
        a.label(Lnl)
        self.stamp(6)
        if self.o.get('pf', 0):
            a.i("v_min_u32 v246, 53, v0")
            a.i("v_lshlrev_b32 v246, 7, v246")
            a.i(f"s_mul_i32 s62, {sRB}, 221184")
            a.i(f"s_lshl_b32 s63, {sCG}, 2")
            a.i(f"s_add_u32 s63, s63, {sWR}")
            a.i(f"s_mul_i32 s63, s63, {54*128}")
            a.i("s_add_u32 s62, s62, s63")
            a.i(f"s_add_u32 s62, s62, {WS_H}")
            a.vmem(f"buffer_load_dword v251, v246, {SRD_WS}, s62 offen sc1")
            self.l2_prefetch(SRD_WO, 819200, 1 if self.o.get('pfstride', 128) == 128 else 2, "v246", "v253", sWR, 4)
        H = lambda kk, s: 120 + 8 * (kk % HD) + 4 * s
        hl = {}
        a.i("s_lshl_b32 s96, s87, 10")
        def hload(kk, part=None):
            if part in (None, 0):
                hl[kk] = [a.vmem(f"buffer_load_dwordx4 v[{H(kk,0)}:{H(kk,0)+3}], {self.vH0}, {SRD_WS}, s96 offen sc1")]
            if part in (None, 1):
                hl[kk].append(a.vmem(f"buffer_load_dwordx4 v[{H(kk,1)}:{H(kk,1)+3}], {self.vH1}, {SRD_WS}, s96 offen sc1"))
                a.i("s_add_u32 s96, s96, 1024")
                a.i(f"s_cmp_eq_u32 s96, {27*1024}")
                a.i("s_cselect_b32 s96, 0, s96")
        for kk in range(HD - 1): hload(kk)
        Wb = lambda kk: 96 + 12 * (kk % 2)
        a.wait(vm=dm[0])
        rt = {0: self.w3_reads(0, Wb(0))}
        for kk in range(27):
            a.wait(lg=rt[kk], vm=hl[kk])
            nx = kk + 1 < 27; dd = kk + PF < 27; hh = kk + HD - 1 < 27
            def rd(p, kk=kk):
                if p == 0:
                    a.wait(vm=dm[kk + 1]); rt[kk + 1] = []
                rt[kk + 1] += self.w3_reads((kk + 1) % NS, Wb(kk + 1), ('t', p))
            def g0(kk=kk):
                if nx: rd(0)
                if hh: hload(kk + HD - 1, 0)
            def g1(kk=kk):
                if nx: rd(1)
                if hh: hload(kk + HD - 1, 1)
                if dd: dma(kk + PF, 0)
            def g2(kk=kk):
                if nx: rd(2)
                if dd: dma(kk + PF, 1)
            def g3(kk=kk):
                if dd: dma(kk + PF, 2)
            def g4(kk=kk):
                if dd: dma(kk + PF, 3)
            self.five_mfma(Wb(kk), H(kk, 0), H(kk, 1), kk == 0, [g0, g1, g2, g3, g4])
        self.stamp(7)
        if self.o.get('touch', 0):
            a.i("s_mov_b32 s62, 0")
            a.vmem(f"buffer_load_dword v251, v228, {SRD_WO}, s62 offen")
        a.i(f"s_setprio {self.o.get('prioBv', 3)}")
        self.reduce80(200, 4)
        a.i(f"v_mov_b32 v40, {hx(f2u(-1.4426950408889634))}")
        a.i("v_mov_b32 v41, v40")
        a.i("v_mov_b32 v42, 1.0")
        a.i("v_mov_b32 v43, 1.0")
        for j in range(0, 20, 2): a.i(f"v_pk_mul_f32 v[{16+j}:{17+j}], v[{200+j}:{201+j}], v[40:41]")
        for j in range(20): a.i(f"v_exp_f32 v{16+j}, v{16+j}")
        for j in range(0, 20, 2): a.i(f"v_pk_add_f32 v[{16+j}:{17+j}], v[{16+j}:{17+j}], v[42:43]")
        for j in range(20): a.i(f"v_rcp_f32 v{16+j}, v{16+j}")
        for j in range(0, 20, 2): a.i(f"v_pk_mul_f32 v[{200+j}:{201+j}], v[{200+j}:{201+j}], v[{16+j}:{17+j}]")
        a.i(f"s_setprio {self.o.get('prioB', 0)}")
        self.lds_count(C_BBAR, self.B_CW, self.B_ONE)
        self.lds_spin_ge(C_BBAR, 8, "v246", self.B_CR)

    def out_mixed_addr(self):
        a = self.a
        a.i("v_lshrrev_b32 v246, 3, v0")
        a.i("v_lshrrev_b32 v247, 2, v246")
        a.i("v_mul_u32_u24 v247, 40, v247")
        a.i("v_and_b32 v248, 3, v246")
        a.i("v_add3_u32 v247, v247, v248, 16")
        a.i("v_mul_u32_u24 v247, 1280, v247")
        a.i("v_bfe_u32 v248, v0, 4, 1")
        a.i("v_lshlrev_b32 v248, 2, v248")
        a.i("v_and_b32 v249, 7, v0")
        a.i("v_xor_b32 v248, v248, v249")
        a.i(f"v_lshl_add_u32 {self.vMa}, v248, 4, v247")
        a.i(f"v_add_u32 {self.vMa}, s80, {self.vMa}")
        a.i(f"v_add_u32 {self.vMb}, {20*1280 - 1024}, {self.vMa}")
        a.i("v_lshrrev_b32 v246, 2, v0")
        a.i("v_bfe_u32 v247, v246, 2, 1")
        a.i("v_lshlrev_b32 v247, 1, v247")
        a.i("v_lshrrev_b32 v248, 3, v246")
        a.i("v_add_u32 v247, v247, v248")
        a.i("v_mul_u32_u24 v247, 20, v247")
        a.i("v_and_b32 v248, 3, v246")
        a.i("v_add3_u32 v247, v247, v248, 16")
        a.i("v_mul_u32_u24 v247, 1280, v247")
        a.i("v_and_b32 v248, 3, v0")
        a.i(f"v_lshl_add_u32 {self.vMc}, v248, 4, v247")
        a.i(f"v_add_u32 {self.vMc}, s81, {self.vMc}")
        a.i("v_and_b32 v246, 31, v0")
        a.i("v_mul_u32_u24 v246, 1280, v246")
        a.i("v_lshrrev_b32 v247, 5, v0")
        a.i(f"v_lshl_add_u32 {self.vXO}, v247, 3, v246")

    def ffn2_addr(self):
        a = self.a
        a.i(f"s_lshl_b32 s62, {sRB}, 1")
        a.i("s_add_u32 s63, s62, s82")
        a.i("s_xor_b32 s64, s82, 1")
        a.i("s_add_u32 s64, s62, s64")
        a.i("s_mul_i32 s85, s63, 110592")
        a.i("s_mul_i32 s86, s64, 110592")
        a.i(f"s_mul_i32 s62, {sWR}, {27*1024}")
        a.i(f"s_add_u32 s62, s62, {WS_H}")
        a.i("s_add_u32 s85, s85, s62")
        a.i("s_add_u32 s86, s86, s62")
        a.i(f"v_add_u32 {self.vH0}, s85, {self.B_L16}")
        a.i(f"v_add_u32 {self.vH1}, s86, {self.B_L16}")

    def out_proj(self):
        a = self.a
        a.c("---- output projection + final combine ----")
        dm = {}
        a.i(f"s_lshl_b32 s62, {sWR}, 1")
        a.i("s_add_u32 s93, s62, s82")
        a.i("s_xor_b32 s63, s82, 1")
        a.i("s_add_u32 s94, s62, s63")
        a.i(f"s_mul_i32 s84, s93, {80*1280}")
        a.i(f"s_mul_i32 s87, s94, {80*1280}")
        def wo_dma(e):
            cgo, jj = e // 5, e % 5
            base = "s84" if cgo == 0 else "s87"
            if jj < 4:
                a.i(f"s_add_u32 s67, {base}, {jj*20*1280}")
                dm[e] = self.w3_dma(SRD_WO, e % 9, "s67", self.vWa, self.vWb, self.vWc)
            else:
                dm[e] = self.w3_dma(SRD_WO, e % 9, base, self.vMa, self.vMb, self.vMc)
        for e in range(9):
            wo_dma(e)
            dw = self.o.get('dw', 2)
            if e - dw >= 0: a.wait(vm=dm[e - dw])
        a.wait(vm=dm[8])
        rt0 = self.w3_reads(0, 96)
        a.wait(lg=rt0)
        wo_dma(9)
        a.wait(vm=dm[9])
        xt = []
        a.i(f"s_lshr_b32 s62, {sWR}, 1")
        a.i("s_lshl_b32 s62, s62, 6")
        a.i("s_add_u32 s62, s62, s80")
        a.i(f"s_and_b32 s63, {sWR}, 1")
        a.i("s_xor_b32 s63, s63, s82")
        a.i(f"s_lshl_b32 s64, {sRB}, 1")
        a.i("s_add_u32 s63, s63, s64")
        a.i("s_mul_i32 s63, s63, 40960")
        a.i("s_add_u32 s88, s62, s63")
        a.i("s_add_u32 s64, s64, s82")
        a.i("s_mul_i32 s64, s64, 40960")
        a.i(f"s_lshl_b32 s62, {sWR}, 4")
        a.i("s_add_u32 s64, s64, s62")
        a.i("s_add_u32 s89, s64, s81")
        for e in range(4):
            xt.append(a.vmem(f"buffer_load_dwordx2 v[{220+2*e}:{221+2*e}], {self.vXO}, {SRD_X}, s88 offen offset:{16*e}"))
        xt.append(a.vmem(f"buffer_load_dwordx2 v[228:229], {self.vXO}, {SRD_X}, s89 offen"))
        if self.o.get('tlb', 0):
            a.i(f"s_mul_i32 s62, {sRB}, 81920")
            a.i(f"s_mul_i32 s63, {sWR}, 20480")
            a.i("s_add_u32 s62, s62, s63")
            a.i(f"s_add_u32 s62, s62, {WS_O}")
            a.i("v_mov_b32 v246, 0")
            a.vmem(f"buffer_load_dword v251, v246, {SRD_WS}, s62 offen sc1")
            if self.o.get('tlb') == 2:
                a.vmem(f"buffer_load_dword v252, v246, {SRD_OUT}, s88 offen")
        self.stamp(9)
        self.one_wave_poll(WS_FO, C_ORDY, pre=lambda: (self.lds_spin_ge(C_ARR, 68, "v246", self.B_CR, sleep=8), self.lds_spin_ge(C_OD, 4, "v246", self.B_CR, sleep=1)), sleep=1, rsleep=self.o.get('rs', 3))
        self.stamp(10)
        a.i(f"s_lshl_b32 s62, {sRB}, 1")
        a.i("s_add_u32 s63, s62, s82")
        a.i("s_xor_b32 s64, s82, 1")
        a.i("s_add_u32 s64, s62, s64")
        a.i("s_mul_i32 s85, s63, 40960")
        a.i("s_mul_i32 s86, s64, 40960")
        a.i(f"s_add_u32 s85, s85, {WS_O}")
        a.i(f"s_add_u32 s86, s86, {WS_O}")
        a.i("s_mul_i32 s93, s93, 5120")
        a.i("s_mul_i32 s94, s94, 5120")
        ol = {}
        H = lambda e, s: 120 + 8 * e + 4 * s
        for e in range(10):
            grp = "s93" if e < 5 else "s94"
            a.i(f"s_add_u32 s62, s85, {grp}")
            t0 = a.vmem(f"buffer_load_dwordx4 v[{H(e,0)}:{H(e,0)+3}], {self.B_L16}, {SRD_WS}, s62 offen offset:{(e%5)*1024 if (e%5) < 4 else 0} sc1") if (e % 5) < 4 else None
            if t0 is None:
                a.i("s_add_u32 s62, s62, 4096")
                t0 = a.vmem(f"buffer_load_dwordx4 v[{H(e,0)}:{H(e,0)+3}], {self.B_L16}, {SRD_WS}, s62 offen sc1")
            a.i(f"s_add_u32 s63, s86, {grp}")
            if (e % 5) < 4:
                t1 = a.vmem(f"buffer_load_dwordx4 v[{H(e,1)}:{H(e,1)+3}], {self.B_L16}, {SRD_WS}, s63 offen offset:{(e%5)*1024} sc1")
            else:
                a.i("s_add_u32 s63, s63, 4096")
                t1 = a.vmem(f"buffer_load_dwordx4 v[{H(e,1)}:{H(e,1)+3}], {self.B_L16}, {SRD_WS}, s63 offen sc1")
            ol[e] = [t0, t1]
        Wb = lambda e: 96 + 12 * (e % 2)
        rt = {0: rt0}
        for e in range(10):
            a.wait(lg=rt[e], vm=ol[e])
            def f0(e=e):
                if e + 1 < 10:
                    a.wait(vm=dm[e + 1])
                    rt[e + 1] = self.w3_reads((e + 1) % 9, Wb(e + 1), 0)
            def f1(e=e):
                if e + 1 < 10: rt[e + 1] += self.w3_reads((e + 1) % 9, Wb(e + 1), 1)
            self.five_mfma(Wb(e), H(e, 0), H(e, 1), e == 0, [f0, f1])
        self.stamp(11)
        self.reduce80(96, 12)
        self.stamp(12)
        a.i("s_mov_b32 s62, 0xffff0000")
        a.i("v_lshrrev_b32 v44, 5, v0")
        a.i(f"v_lshl_add_u32 v44, v44, 3, {self.vXO}")
        ost = self.o.get('ostore', '')
        for e in range(5):
            x0, x1 = 220 + 2 * e, 221 + 2 * e
            t = 16 + 4 * (e & 1)
            a.i(f"v_lshlrev_b32 v{t}, 16, v{x0}")
            a.i(f"v_and_b32 v{t+1}, s62, v{x0}")
            a.i(f"v_lshlrev_b32 v{t+2}, 16, v{x1}")
            a.i(f"v_and_b32 v{t+3}, s62, v{x1}")
            for j in (0, 2): a.i(f"v_pk_fma_f32 v[{t+j}:{t+j+1}], v[{96+4*e+j}:{97+4*e+j}], v[{200+4*e+j}:{201+4*e+j}], v[{t+j}:{t+j+1}]")
            a.i(f"v_cvt_pk_bf16_f32 v{24+2*e}, v{t}, v{t+1}")
            a.i(f"v_cvt_pk_bf16_f32 v{25+2*e}, v{t+2}, v{t+3}")
            if e in (1, 3):
                r = 24 + 2 * (e - 1)
                a.nop(2)
                a.i(f"v_permlane32_swap_b32 v{r}, v{r+2}")
                a.i(f"v_permlane32_swap_b32 v{r+1}, v{r+3}")
                a.vmem(f"buffer_store_dwordx4 v[{r}:{r+3}], v44, {SRD_OUT}, s88 offen offset:{16*(e-1)} {ost}".rstrip())
            if e == 4:
                a.vmem(f"buffer_store_dwordx2 v[32:33], {self.vXO}, {SRD_OUT}, s89 offen {ost}".rstrip())

    def role_b(self):
        a = self.a
        a.label("L_ROLE_B")
        Lf1 = a.newlabel("ffn1"); Lv = a.newlabel("vjob"); Lpf = a.newlabel("w1pf")
        a.i(f"s_and_b32 s62, {sCG}, 3")
        a.i("s_cmp_lg_u32 s62, 0")
        a.i(f"s_cbranch_scc1 {Lf1}")
        Lwait = a.newlabel("kvidle")
        a.i(f"s_cmp_ge_u32 {sWR}, 2")
        a.i(f"s_cbranch_scc1 {Lwait}")
        a.i("s_setprio 3")
        a.i(f"s_cmp_eq_u32 {sCG}, 4")
        a.i(f"s_cbranch_scc1 {Lv}")
        a.vm = []; a.lg = []
        self.kv_job(False)
        a.i(f"s_branch {Lwait}")
        a.label(Lv)
        a.vm = []; a.lg = []
        self.kv_job(True)
        a.label(Lwait)
        self.lds_spin_ge(C_KVD, 2, "v246", self.B_CR)
        a.label(Lpf)
        self.stamp(11, lvl=2)
        self.stamp(14)
        a.label(Lf1)
        a.i(f"s_setprio {self.o.get('prioF', 0)}")
        if self.o.get('noB'):
            a.i("s_waitcnt vmcnt(0)")
            a.i("s_branch L_END")
        a.vm = []; a.lg = []
        Lnop = a.newlabel("nopair"); Lhd = a.newlabel("hdone")
        a.i("s_cmp_eq_u32 s99, 0")
        a.i(f"s_cbranch_scc1 {Lnop}")
        if self.o.get('noF1'): a.i(f"s_branch {Lnop}")
        bs = self.o.get('bstart', 'none')
        if bs == 'ring': self.lds_spin_ge(C_GO, 4, "v246", self.B_CR)
        if bs == 'qiss': self.lds_spin_ge(C_QISS, 4, "v246", self.B_CR)
        self.w1tok = {ks: self.w1_dma(ks) for ks in range(NS1)}
        self.ffn1()
        a.i(f"s_branch {Lhd}")
        a.label(Lnop)
        a.i(f"s_setprio {self.o.get('prioB', 0)}")
        self.lds_count(C_XND, self.B_CW, self.B_ONE)
        a.label(Lhd)
        a.vm = []; a.lg = []
        self.h_publish()
        self.stamp(4)
        self.ffn2()
        self.stamp(8)
        if self.o.get('dump') == 'g':
            self.dump_regs(200, 20, 0, self.B_L16)
        self.out_proj()
        a.i("s_waitcnt vmcnt(0)") if self.o.get('prof') else None
        self.stamp(13)
        self.stamp_flush()
        if self.o.get('span'):
            a.i("s_waitcnt vmcnt(0)")
            a.i("s_memrealtime s[90:91]")
            a.i("s_waitcnt lgkmcnt(0)")
            a.i("s_not_b32 s62, s101")
            a.i("v_mov_b32 v1, 8")
            a.i("v_mov_b32 v2, s62")
            a.i("v_mov_b32 v3, s90")
            a.i("s_mov_b64 exec, 1")
            a.i(f"global_atomic_umax v1, v2, {sDBG} sc1")
            a.i(f"global_atomic_umax v1, v3, {sDBG} offset:4 sc1")
            a.i("s_mov_b64 exec, -1")
        a.i("s_branch L_END")

    def build(self):
        a = self.a
        self.prologue()
        self.role_setup()
        a.i("s_waitcnt lgkmcnt(0)")
        a.i(f"s_add_u32 {sN}, {sN}, 1")
        a.vm = []; a.lg = []
        self.stamp(1)
        self.layernorm()
        self.stamp(2)
        if self.o.get('dump') == 'xn':
            self.dump_lds_xn()
        a.i(f"s_cmp_ge_u32 {sW}, 4")
        a.i("s_cbranch_scc1 L_ROLE_B")
        self.role_a()
        self.role_b()
        a.label("L_END")
        a.i("s_endpgm")

    def dump_lds_xn(self):
        a = self.a
        a.i("v_lshlrev_b32 v72, 4, v0")
        a.i(f"s_mul_i32 s70, {sW}, 10240")
        a.i("v_add_u32 v73, s70, v72")
        a.i("s_mul_i32 s71, s2, 81920")
        a.i("s_add_u32 s71, s71, s70")
        a.i(f"s_add_u32 s71, s71, {WS_DBG}")
        for g in range(10):
            a.i(f"ds_read_b128 v[76:79], v73 offset:{g*1024}")
            a.i("s_waitcnt lgkmcnt(0)")
            a.i(f"s_add_u32 s70, s71, {g*1024}")
            a.i(f"buffer_store_dwordx4 v[76:79], v72, {SRD_WS}, s70 offen")
            a.i("s_waitcnt vmcnt(0)")

    def emit(self):
        self.build()
        body = self.a.text()
        hdr = f"""; Fused LayerNorm + multi-query attention + ReLU FFN + gated residual: out = x + (attn(xn) Wo) * silu(relu(xn W1) W2).
;   waves 0-3 : Q projection (one head each), attention over all 2048 keys (K/V fragments streamed through an LDS ring), publish o
; @launch grid=(256,1,1) block=(512,1,1) lds={LDS_TOTAL}
.amdgcn_target "amdgcn-amd-amdhsa--gfx950"
.text
.globl {NAME}_kernel
.p2align 8
.type {NAME}_kernel,@function
{NAME}_kernel:
"""
        ftr = f""".section .rodata,"a"
.p2align 6
.amdhsa_kernel {NAME}_kernel
  .amdhsa_next_free_vgpr 256
  .amdhsa_next_free_sgpr 102
  .amdhsa_accum_offset 256
  .amdhsa_group_segment_fixed_size 0
  .amdhsa_kernarg_size 88
  .amdhsa_user_sgpr_count 2
  .amdhsa_user_sgpr_kernarg_segment_ptr 1
  .amdhsa_system_sgpr_workgroup_id_x 1
  .amdhsa_float_denorm_mode_32 3
.end_amdhsa_kernel
"""
        return hdr + body + ftr

    def hazards(self):
        ins = [t for k, t in self.a.lines if k == 'i']
        probs = check_hazards(ins, "linear")
        body = [t for k, t in self.a.lines[self.loop_start:self.loop_end] if k == 'i']
        probs += check_hazards(body[-40:] + body[:40], "att-backedge")
        probs += check_outstanding(self.a.lines)
        return probs

if __name__ == "__main__":
    opt = {}
    out = None
    for arg in sys.argv[1:]:
        if "=" in arg:
            k, v = arg.split("=", 1); opt[k] = int(v) if v.lstrip('-').isdigit() else v
        else: out = arg
    g = Gen(opt)
    txt = g.emit()
    pr = g.hazards()
    for p in pr: print("HAZARD:", p)
    open(out or "k.s", "w").write(txt)
    n = sum(1 for k, t in g.a.lines if k == 'i')
    print(f"wrote {out or 'k.s'}: {n} instructions, {len(pr)} hazards")
```

```python
import sys, struct
from asmlib import Asm, check_hazards, check_outstanding

NAME = "recurrent_scan__grouped_kv_mqa__dense_activation_relu__prompt"

XN    = 0
BST   = 81920
BPRIV = 9216
NS1   = 4
WKI   = BST
AREG  = 118784
QST   = AREG
APRIV = 11136
NSQ   = 10
RSLOT = 11136
RSHARE = 2688
KVCH  = 12288
BREG  = 29696
CTRL  = 163328
LDS_TOTAL = 163840
VROW  = 352
VFR   = 2 * VROW
KV_KH = 4096
KV_V  = 5120
C_ARR, C_KVD, C_ABAR, C_QDONE, C_KVRDY, C_XND, C_HD, C_BBAR, C_OD, C_GO, C_HRDY, C_ORDY, C_KVS, C_QISS = [4 * i for i in range(14)]
CDUMMY = 128

WS_X    = 0
WS_FKV  = 0x1000
WS_FH   = 0x4000
WS_FO   = 0x6000
WS_KN   = 0x8000
WS_VN   = 0x8400
WS_KV   = 0x10000
WS_H    = 0x100000
WS_O    = 0x800000
WS_DBG  = 0xB00000
WS_PROF = 0x1300000
WS_END  = 0x1400000

QSCALE = 0.22360679774997896 * 1.4426950408889634

def f2u(x): return struct.unpack("<I", struct.pack("<f", x))[0]
def hx(x): return "0x%08x" % (x & 0xffffffff)

sW, sRB, sCG, sN, sWR = "s3", "s4", "s5", "s6", "s7"
SRD_X, SRD_WQ, SRD_WKV, SRD_WO, SRD_W1, SRD_W2, SRD_OUT, SRD_WS = [f"s[{8+4*i}:{11+4*i}]" for i in range(8)]
sDBG, sWSP = "s[58:59]", "s[60:61]"

SPIN_LDS = 400000
SPIN_GLB = 40000

class Gen:
    def __init__(self, opt):
        self.o = opt
        self.a = Asm()

    def vr(self, base, n): return f"v[{base}:{base+n-1}]"

    def lds_spin_ge(self, cnt_off, target, vtmp, vctlr, stmp="s62", sleep=1):
        a = self.a
        L = a.newlabel("spin"); Ld = a.newlabel("spind")
        a.i(f"s_mov_b32 {stmp}, 0")
        a.label(L)
        a.i(f"ds_read_b32 {vtmp}, {vctlr} offset:{cnt_off}")
        a.i("s_waitcnt lgkmcnt(0)")
        a.i(f"v_cmp_gt_u32 vcc, {target}, {vtmp}")
        a.i(f"s_cbranch_vccz {Ld}")
        a.i(f"s_add_u32 {stmp}, {stmp}, 1")
        a.i(f"s_cmp_lt_u32 {stmp}, {SPIN_LDS}")
        if sleep: a.i(f"s_sleep {sleep}")
        a.i(f"s_cbranch_scc1 {L}")
        a.label(Ld)
        a.lg = []

    def glb_poll(self, voff, soff, vtmp, stmp="s62", sleep=4):
        a = self.a
        L = a.newlabel("poll"); Ld = a.newlabel("polld")
        a.i(f"s_mov_b32 {stmp}, 0")
        a.label(L)
        a.i(f"buffer_load_dword {vtmp}, {voff}, {SRD_WS}, {soff} offen sc1")
        a.i("s_waitcnt vmcnt(0)")
        a.i(f"v_cmp_ne_u32 vcc, {sN}, {vtmp}")
        a.i(f"s_cbranch_vccz {Ld}")
        a.i(f"s_add_u32 {stmp}, {stmp}, 1")
        a.i(f"s_cmp_lt_u32 {stmp}, {SPIN_GLB}")
        a.i(f"s_sleep {sleep}")
        a.i(f"s_cbranch_scc1 {L}")
        a.label(Ld)
        a.vm = []

    def one_wave_poll(self, flag_base, rdy_off, pre=None, sleep=4, rsleep=2):
        a = self.a
        Lw = a.newlabel("opw"); Lj = a.newlabel("opj")
        keep = list(a.vm)
        a.i(f"s_cmp_lg_u32 {sWR}, 0")
        a.i(f"s_cbranch_scc1 {Lw}")
        if pre: pre()
        a.i("v_and_b32 v246, 7, v0")
        a.i("v_lshlrev_b32 v246, 2, v246")
        a.i(f"s_lshl_b32 s63, {sRB}, 7")
        a.i(f"s_add_u32 s63, s63, {flag_base}")
        self.glb_poll("v246", "s63", "v247", sleep=sleep)
        a.i(f"ds_add_u32 {self.B_CW}, {self.B_ONE} offset:{rdy_off}")
        a.i(f"s_branch {Lj}")
        a.label(Lw)
        self.lds_spin_ge(rdy_off, 1, "v246", self.B_CR, sleep=rsleep)
        a.label(Lj)
        a.i("s_waitcnt lgkmcnt(0)")
        a.vm = keep; a.lg = []

    def lds_count(self, cnt_off, vctlw, vone):
        return self.a.lds(f"ds_add_u32 {vctlw}, {vone} offset:{cnt_off}")

    def dump_regs(self, base, n, slot, vlane16, cond_wave=None):
        a = self.a
        a.i("s_lshl_b32 s70, s2, 3"); a.i(f"s_add_u32 s70, s70, {sW}")
        a.i("s_mul_i32 s70, s70, 0x4000")
        a.i(f"s_add_u32 s70, s70, {WS_DBG + 0x0}")
        for g in range(n // 4):
            a.i(f"s_add_u32 s71, s70, {(slot + g) * 1024}")
            a.i(f"buffer_store_dwordx4 v[{base+4*g}:{base+4*g+3}], {vlane16}, {SRD_WS}, s71 offen")
        a.i("s_waitcnt vmcnt(0)")
        a.vm = []

    def stamp(self, k, cyc=False, lvl=1):
        if self.o.get('prof') != lvl and not (k <= 2 and self.o.get('prof')): return
        a = self.a
        a.i("s_memtime s[56:57]" if cyc else "s_memrealtime s[56:57]")
        a.i("s_waitcnt lgkmcnt(0)")
        a.i(f"s_mov_b32 s{40+k}, s56")
        a.lg = []

    def stamp_flush(self):
        if not self.o.get('prof'): return
        a = self.a
        a.i("s_mov_b64 exec, 1")
        a.i("s_lshl_b32 s62, s2, 3")
        a.i(f"s_add_u32 s62, s62, {sW}")
        a.i("s_lshl_b32 s62, s62, 6")
        a.i(f"s_add_u32 s62, s62, {WS_PROF}")
        a.i("v_mov_b32 v1, 0")
        for g in range(4):
            for j in range(4): a.i(f"v_mov_b32 v{4+j}, s{40+4*g+j}")
            a.i(f"buffer_store_dwordx4 v[4:7], v1, {SRD_WS}, s62 offen offset:{16*g}")
            a.nop(2)
        a.i("s_mov_b64 exec, -1")

    def l2_prefetch(self, srd, total_bytes, ninstr, vtmp, vdst, sub_sgpr, nsub):
        a = self.a
        st = self.o.get('pfstride', 128)
        lines = total_bytes // st
        per_cu = -(-lines // 32); per_w = -(-per_cu // nsub); per_i = -(-per_w // ninstr)
        assert per_i <= 64, per_i
        a.i(f"s_lshr_b32 s62, {sRB}, 3")
        a.i(f"s_lshl_b32 s63, {sCG}, 2")
        a.i("s_add_u32 s62, s62, s63")
        a.i(f"s_mul_i32 s62, s62, {per_cu}")
        a.i(f"s_mul_i32 s63, {sub_sgpr}, {per_w}")
        a.i("s_add_u32 s62, s62, s63")
        a.i(f"v_min_u32 {vtmp}, {per_i - 1}, v0")
        a.i(f"v_add_u32 {vtmp}, s62, {vtmp}")
        a.i(f"v_mul_u32_u24 {vtmp}, {st}, {vtmp}")
        toks = []
        for i in range(ninstr):
            a.i(f"s_mov_b32 s63, {i * per_i * st}")
            toks.append(a.vmem(f"buffer_load_dword {vdst}, {vtmp}, {srd}, s63 offen"))
        return toks

    def prologue(self):
        a = self.a
        a.i("s_cmp_ge_u32 s2, 256")
        a.i("s_cbranch_scc1 L_END")
        if self.o.get('prof'): a.i("s_memrealtime s[94:95]")
        a.i("s_load_dwordx16 s[40:55], s[0:1], 0")
        a.i("s_load_dwordx4 s[56:59], s[0:1], 64")
        a.i("s_load_dwordx2 s[60:61], s[0:1], 80")
        a.i("v_lshrrev_b32 v1, 6, v0")
        a.i("v_and_b32 v0, 63, v0")
        a.i("s_and_b32 s62, s2, 1")
        a.i("s_lshl_b32 s62, s62, 2")
        a.i("s_lshr_b32 s63, s2, 6")
        a.i(f"s_add_u32 {sCG}, s62, s63")
        a.i(f"v_readfirstlane_b32 {sW}, v1")
        a.i("s_bfe_u32 s62, s2, 0x20001")
        a.i("s_lshl_b32 s62, s62, 3")
        a.i("s_bfe_u32 s63, s2, 0x30003")
        a.i(f"s_add_u32 {sRB}, s62, s63")
        a.i("v_lshrrev_b32 v2, 3, v0")
        a.i("v_and_b32 v3, 7, v0")
        a.i(f"s_and_b32 {sWR}, {sW}, 3")
        a.i(f"s_and_b32 s65, {sCG}, 1")
        a.i("s_lshl_b32 s65, s65, 2")
        a.i(f"s_xor_b32 s97, s65, {sW}")
        a.i("s_lshl_b32 s62, s97, 3")
        a.i(f"s_mul_i32 s98, {sRB}, 81920")
        a.i("v_add_u32 v4, s62, v2")
        a.i("v_mul_u32_u24 v4, 1280, v4")
        a.i("v_lshl_add_u32 v4, v3, 4, v4")
        a.i("s_waitcnt lgkmcnt(0)")
        def srd(base, lo, size):
            a.i(f"s_mov_b32 s{base}, s{lo}")
            a.i(f"s_mov_b32 s{base+1}, s{lo+1}")
            a.i(f"s_mov_b32 s{base+2}, {size}")
            a.i(f"s_mov_b32 s{base+3}, 0x20000")
        srd(8, 40, 2621440)
        Lx = a.newlabel("xa")
        a.i(f"s_cmp_ge_u32 {sW}, 4")
        a.i(f"s_cbranch_scc1 {Lx}")
        self.x_loads()
        if self.o.get('cpf', 0):
            Lc = a.newlabel("cpf")
            a.i(f"s_cmp_lg_u32 {sW}, 0")
            a.i(f"s_cbranch_scc1 {Lc}")
            a.i("s_getpc_b64 s[90:91]")
            a.label("L_PCREF")
            a.i("s_and_b32 s91, s91, 0xffff")
            a.i("s_mov_b32 s92, L_END-L_PCREF")
            a.i("s_mov_b32 s93, 0x20000")
            a.i("s_mov_b32 s88, s90")
            a.i("s_mov_b32 s89, s91")
            a.i("s_mov_b32 s90, s92")
            a.i("s_mov_b32 s91, 0x20000")
            n = self.o.get('cpfn', 12)
            a.i("s_lshr_b32 s62, s2, 3")
            a.i(f"s_mul_i32 s62, s62, {n}")
            a.i(f"v_min_u32 v1, {n-1}, v0")
            a.i("v_add_u32 v1, s62, v1")
            a.i("v_lshlrev_b32 v1, 7, v1")
            a.i("s_mov_b32 s62, 0")
            a.i("buffer_load_dword v56, v1, s[88:91], s62 offen")
            a.label(Lc)
        a.label(Lx)
        a.i(f"s_load_dword {sN}, {sWSP}, {WS_X}")
        srd(12, 42, 819200)
        a.i(f"s_cmp_eq_u32 {sCG}, 4")
        a.i("s_cselect_b32 s16, s46, s44")
        a.i("s_cselect_b32 s17, s47, s45")
        a.i("s_mov_b32 s18, 25600")
        a.i("s_mov_b32 s19, 0x20000")
        srd(20, 48, 819200)
        srd(24, 52, 2211840)
        srd(28, 54, 2211840)
        srd(32, 56, 2621440)
        srd(36, 60, WS_END)
        for r in (200, 202, 230, 231, 253, 181, 215, 245, 220, 221, 222, 223, 224, 225, 226, 227, 228, 14, 15, 250): a.i(f"v_mov_b32 v{r}, 0")
        if self.o.get('prof'):
            for k in range(16): a.i(f"s_mov_b32 s{40+k}, 0")
            a.i("s_mov_b32 s55, s94")
        self.stamp(0)
        if self.o.get('span'):
            a.i("s_memrealtime s[90:91]")
            a.i("s_waitcnt lgkmcnt(0)")
            a.i("s_mov_b32 s101, s90")

    def layernorm(self):
        a = self.a
        a.i("v_lshrrev_b32 v5, 1, v3")
        a.i("v_lshlrev_b32 v5, 10, v5")
        a.i("v_and_b32 v6, 1, v3")
        a.i("v_lshlrev_b32 v6, 9, v6")
        a.i("v_xor_b32 v7, v2, v3")
        a.i("v_lshlrev_b32 v7, 4, v7")
        a.i("v_add3_u32 v5, v5, v6, v7")
        a.i("s_and_b32 s62, s97, 3")
        a.i("s_lshl_b32 s62, s62, 7")
        a.i("s_lshr_b32 s64, s97, 2")
        a.i("s_mul_i32 s64, s64, 40960")
        a.i("s_add_u32 s62, s62, s64")
        a.i("v_add_u32 v5, s62, v5")
        Lz = a.newlabel("nz")
        a.i(f"s_cmp_lg_u32 {sW}, 0")
        a.i(f"s_cbranch_scc1 {Lz}")
        a.i("v_lshlrev_b32 v6, 2, v0")
        a.i(f"v_add_u32 v6, {CTRL}, v6")
        a.i("v_mov_b32 v7, 0")
        a.i("ds_write_b32 v6, v7")
        a.label(Lz)
        a.i("s_mov_b32 s62, 0x3f803f80")
        a.i("s_mov_b32 s63, 0xffff0000")
        for k in range(4): a.i(f"v_mov_b32 v{64+k}, 0")
        a.nop(1)
        X = lambda j: f"v{16+j}"
        for j in range(40):
            a.i(f"v_dot2_f32_bf16 v{64+(j&1)}, {X(j)}, s62, v{64+(j&1)}")
            a.i(f"v_dot2_f32_bf16 v{66+(j&1)}, {X(j)}, {X(j)}, v{66+(j&1)}")
        a.nop(3)
        a.i("v_add_f32 v64, v64, v65")
        a.i("v_add_f32 v66, v66, v67")
        a.nop(1)
        for dpp in ("quad_perm:[1,0,3,2]", "quad_perm:[2,3,0,1]", "row_half_mirror"):
            a.i(f"v_add_f32_dpp v64, v64, v64 {dpp} row_mask:0xf bank_mask:0xf")
            a.i(f"v_add_f32_dpp v66, v66, v66 {dpp} row_mask:0xf bank_mask:0xf")
            a.nop(1)
        a.i(f"v_mul_f32 v64, {hx(f2u(1.0/640))}, v64")
        a.i(f"v_mul_f32 v66, {hx(f2u(1.0/640))}, v66")
        a.i("v_fma_f32 v66, -v64, v64, v66")
        a.i("v_max_f32 v66, 0, v66")
        a.i(f"v_add_f32 v66, {hx(f2u(1e-5))}, v66")
        a.i("v_rsq_f32 v68, v66")
        a.nop(1)
        a.i("v_mov_b32 v69, v68")
        a.i("v_mul_f32 v70, v64, v68")
        a.i("v_sub_f32 v70, 0, v70")
        a.i("v_mov_b32 v71, v70")
        self.stamp(3, lvl=2)
        if not self.o.get('pflate', 0):
            self.role_prefetch()
            a.label("L_LN2")
        self.stamp(4, lvl=2)
        a.i("s_mov_b32 s63, 0xffff0000")
        for g in range(10):
            for d in range(4):
                j = 4 * g + d
                t = 56 + 2 * (j & 3)
                a.i(f"v_lshlrev_b32 v{t}, 16, {X(j)}")
                a.i(f"v_and_b32 v{t+1}, s63, {X(j)}")
            for d in range(4):
                j = 4 * g + d
                t = 56 + 2 * (j & 3)
                a.i(f"v_pk_fma_f32 v[{t}:{t+1}], v[{t}:{t+1}], v[68:69], v[70:71]")
            for d in range(4):
                j = 4 * g + d
                t = 56 + 2 * (j & 3)
                a.i(f"v_cvt_pk_bf16_f32 {X(j)}, v{t}, v{t+1}")
            a.i(f"ds_write_b128 v5, v[{16+4*g}:{19+4*g}] offset:{4096*g}")
        if self.o.get('pflate', 0):
            self.role_prefetch()
            a.label("L_LN2")
        a.i("s_waitcnt lgkmcnt(0)")
        self.stamp(5, lvl=2)
        Lnw = a.newlabel("nw")
        a.i(f"s_cmp_lt_u32 {sW}, 4")
        a.i(f"s_cbranch_scc1 {Lnw}")
        a.i(f"s_and_b32 s62, {sCG}, 3")
        a.i("s_cmp_lg_u32 s62, 0")
        a.i(f"s_cbranch_scc1 {Lnw}")
        a.i("s_waitcnt vmcnt(0)")
        a.label(Lnw)
        a.i("s_barrier")
        a.lg = []

    def xn_addr(self, vA, vB, vt0, vt1, phase_sgpr=None, base_sgpr=None, swap_sgpr=None):
        a = self.a
        a.i(f"v_and_b32 {vt0}, 31, v0")
        a.i(f"v_lshrrev_b32 {vt1}, 5, v0")
        for q in range(4):
            r = f"v{vA+q}"
            if phase_sgpr is None:
                a.i(f"v_add_u32 {r}, {2*q}, {vt1}")
            else:
                a.i(f"s_add_u32 s62, {phase_sgpr}, {q}")
                a.i("s_and_b32 s62, s62, 3")
                a.i("s_lshl_b32 s62, s62, 1")
                a.i(f"v_add_u32 {r}, s62, {vt1}")
            a.i(f"v_xor_b32 {r}, {r}, {vt0}")
            a.i(f"v_lshlrev_b32 {r}, 4, {r}")
            a.i(f"v_lshl_add_u32 {r}, {vt1}, 9, {r}")
            if base_sgpr is not None:
                a.i(f"v_add_u32 {r}, {base_sgpr}, {r}")
            if vB is not None: a.i(f"v_add_u32 v{vB+q}, 40960, {r}")

    WRAPS = (8, 12, 16, 20, 28, 32, 36)
    def rot_setup(self, stride, sK, sRot):
        a = self.a
        if self.o.get('xrot', 0):
            a.i(f"s_lshr_b32 s62, {sRB}, 3")
            a.i("s_lshl_b32 s62, s62, 1")
            a.i(f"s_add_u32 s62, s62, {sRB}")
            a.i("s_and_b32 s62, s62, 7")
        else:
            a.i(f"s_and_b32 s62, {sRB}, 7")
        a.i("s_lshr_b32 s63, s62, 2")
        a.i("s_add_u32 s62, s62, s63")
        a.i(f"s_lshl_b32 {sRot}, s62, 2")
        if not self.o.get('rot', 1): a.i(f"s_mov_b32 {sRot}, 0")
        a.i(f"s_mul_i32 {sK}, {sRot}, {stride}")
    def rot_next(self, stride, sK, ks=None):
        a = self.a
        a.i(f"s_add_u32 {sK}, {sK}, {stride}")
        if ks is None or (ks + 1) in self.WRAPS:
            a.i(f"s_cmp_eq_u32 {sK}, {40*stride}")
            a.i(f"s_cselect_b32 {sK}, 0, {sK}")
    def rot_xn_base(self, vA, vB, sRot):
        a = self.a
        a.i(f"s_lshl_b32 s62, {sRot}, 10")
        for q in range(4):
            a.i(f"v_add_u32 v{vA+q}, s62, v{vA+q}")
            a.i(f"v_add_u32 v{vB+q}, s62, v{vB+q}")
    def rot_xn_seg(self, vA, vB, sRot, ks):
        a = self.a
        if ks not in self.WRAPS: return
        L = a.newlabel("wrap")
        a.i(f"s_cmp_eq_u32 {sRot}, {40 - ks}")
        a.i(f"s_cbranch_scc0 {L}")
        for q in range(4):
            a.i(f"v_subrev_u32 v{vA+q}, 40960, v{vA+q}")
            a.i(f"v_subrev_u32 v{vB+q}, 40960, v{vB+q}")
        a.label(L)
    def seg_imm(self, ks):
        return ks * 1024

    def ctl_regs(self, vW, vR, vOne):
        a = self.a
        a.i(f"v_lshlrev_b32 {vW}, 2, v0")
        a.i(f"v_add_u32 {vW}, {CTRL + CDUMMY}, {vW}")
        a.i(f"v_mov_b32 {vR}, {CTRL}")
        a.i("v_cmp_eq_u32 vcc, 0, v0")
        a.i(f"v_mov_b32 {vOne}, 1")
        a.nop(1)
        a.i(f"v_cndmask_b32 {vW}, {vW}, {vR}, vcc")

    vDq, vTRq, vTRk = "v200", "v201", "v202"
    A_XA, A_XB = 204, 208
    A_CW, A_CR, A_ONE, A_L16 = "v212", "v213", "v214", "v215"
    A_JA, A_JB = 220, 224

    def wq_dma(self, ks):
        a = self.a
        a.i(f"s_add_u32 m0, s66, {(ks % NSQ) * 1024}")
        a.nop(1)
        t = a.vmem(f"buffer_load_dwordx4 {self.vDq}, {SRD_WQ}, s67 offen lds")
        self.rot_next(20480, "s67", ks)
        return t

    def a_setup_private(self):
        a = self.a
        a.i(f"s_mul_i32 s66, {sWR}, {APRIV}")
        a.i(f"s_add_u32 s66, s66, {QST}")

    def a_prefetch_q_addr(self):
        a = self.a
        a.i("v_lshrrev_b32 v216, 2, v0")
        a.i("v_mul_u32_u24 v216, 1280, v216")
        a.i("v_and_b32 v217, 3, v0")
        a.i("v_cmp_eq_u32 vcc, 3, v217")
        a.i(f"v_lshl_add_u32 {self.vDq}, v217, 4, v216")
        a.i("v_mov_b32 v217, 0x40000000")
        a.i(f"v_cndmask_b32 {self.vDq}, {self.vDq}, v217, vcc")
        a.i(f"s_lshl_b32 s62, {sCG}, 2")
        a.i(f"s_add_u32 s62, s62, {sWR}")
        a.i("s_mul_i32 s62, s62, 40")
        a.i(f"s_cmp_eq_u32 {sWR}, 3")
        a.i("s_cselect_b32 s63, 8, 0")
        a.i("s_sub_u32 s62, s62, s63")
        a.i(f"v_add_u32 {self.vDq}, s62, {self.vDq}")

    def x_loads(self):
        a = self.a
        for i in range(10):
            a.i(f"buffer_load_dwordx4 v[{16+4*i}:{19+4*i}], v4, {SRD_X}, s98 offen offset:{128*i}")

    def role_setup(self):
        a = self.a
        a.i(f"s_cmp_ge_u32 {sW}, 4")
        a.i("s_cbranch_scc1 L_SET_B")
        self.a_setup_private()
        self.a_prefetch_q_addr()
        self.rot_setup(20480, "s67", "s69")
        self.ctl_regs(self.A_CW, self.A_CR, self.A_ONE)
        a.i(f"v_lshlrev_b32 {self.A_L16}, 4, v0")
        self.xn_addr(self.A_XA, self.A_XB, "v216", "v217")
        self.rot_xn_base(self.A_XA, self.A_XB, "s69")
        a.i(f"s_cmp_eq_u32 {sWR}, 3")
        a.i("s_cselect_b32 s63, 8, 0")
        a.i("s_add_u32 s63, s63, s66")
        self.tr_addr_nat64(self.vTRq, "s63", 64)
        self.ring_addr()
        a.i("s_branch L_SET_J")
        a.label("L_SET_B")
        a.i(f"s_mul_i32 s66, {sWR}, {BPRIV}")
        a.i(f"s_add_u32 s66, s66, {BST}")
        a.i(f"s_lshr_b32 s62, {sCG}, 2")
        a.i(f"s_sub_u32 s63, {sCG}, s62")
        a.i("s_sub_u32 s63, s63, 1")
        a.i("s_lshl_b32 s63, s63, 2")
        a.i(f"s_add_u32 s68, s63, {sWR}")
        a.i("s_mov_b32 s99, 1")
        a.i(f"s_and_b32 s63, {sCG}, 3")
        a.i("s_cmp_lg_u32 s63, 0")
        Lp = a.newlabel("pair")
        a.i(f"s_cbranch_scc1 {Lp}")
        a.i("s_lshl_b32 s62, s62, 1")
        a.i(f"s_add_u32 s68, s62, {sWR}")
        a.i("s_add_u32 s68, s68, 22")
        a.i(f"s_cmp_ge_u32 {sWR}, 2")
        a.i("s_cselect_b32 s99, 1, 0")
        a.i("s_cmp_ge_u32 s68, 27")
        a.i("s_cselect_b32 s99, 0, s99")
        a.i("s_cselect_b32 s68, 0, s68")
        a.label(Lp)
        a.i("s_lshl_b32 s68, s68, 1")
        a.i("s_lshl_b32 s62, s68, 6")
        self.pair_dma_addr(self.vD1a, self.vD1b, 3456, "s62")
        self.ctl_regs(self.B_CW, self.B_CR, self.B_ONE)
        a.i(f"v_lshlrev_b32 {self.B_L16}, 4, v0")
        self.rot_setup(16 * 3456, "s67", "s69")
        self.xn_addr(self.B_XA, self.B_XB, "v246", "v247")
        self.rot_xn_base(self.B_XA, self.B_XB, "s69")
        self.pair_tr_addr(self.vTRa, self.vTRb, 8, "s66")
        a.i(f"s_mov_b32 s62, {WKI}")
        self.tr_addr_nat64(self.B_TRK, "s62", 40, "v246", "v247")
        a.i(f"s_and_b32 s64, {sWR}, 1")
        a.i("s_mul_i32 s64, s64, 40960")
        self.xn_addr(self.B_JA, None, "v246", "v247", base_sgpr="s64")
        a.i("v_lshlrev_b32 v253, 4, v0")
        a.i(f"s_mul_i32 s62, {sWR}, 6400")
        a.i("v_add_u32 v253, s62, v253")
        self.x_loads()
        a.i(f"s_and_b32 s64, {sCG}, 3")
        a.i("s_cmp_lg_u32 s64, 0")
        a.i("s_cbranch_scc1 L_SET_NK")
        a.i(f"s_add_u32 s63, s62, {WKI}")
        a.i("s_mov_b32 m0, s63")
        a.i("s_mov_b32 s62, 0")
        for j in range(4):
            a.i(f"buffer_load_dwordx4 v253, {SRD_WKV}, s62 offen offset:{1024*j} lds")
        a.i("s_add_u32 m0, s63, 4096")
        a.i("s_mov_b32 s62, 4096")
        for j in range(3):
            a.i(f"buffer_load_dwordx4 v253, {SRD_WKV}, s62 offen offset:{1024*j} lds")
        a.label("L_SET_NK")
        self.out_tiles_setup()
        self.out_mixed_addr()
        self.ffn2_addr()
        a.i(f"s_and_b32 s64, {sCG}, 3")
        a.i("s_cmp_lg_u32 s64, 0")
        a.i("s_cbranch_scc1 L_SET_J")
        a.i("s_waitcnt vmcnt(7)")
        a.i("s_branch L_SET_X")
        a.label("L_SET_J")
        a.i("s_waitcnt vmcnt(0)")
        a.label("L_SET_X")

    def role_prefetch(self):
        a = self.a
        Lb = a.newlabel("pfb")
        a.i(f"s_cmp_ge_u32 {sW}, 4")
        a.i(f"s_cbranch_scc1 {Lb}")
        a.vm = []
        self.qtok = [self.wq_dma(ks) for ks in range(NSQ)]
        a.i("s_branch L_LN2")
        a.label(Lb)

    def tr_addr_nat64(self, vdst, base_sgpr, pitch, t0="v216", t1="v217"):
        a = self.a
        a.i(f"v_lshrrev_b32 {t0}, 5, v0")
        a.i(f"v_lshlrev_b32 {t0}, 3, {t0}")
        a.i(f"v_bfe_u32 {t1}, v0, 2, 2")
        a.i(f"v_add_u32 {t0}, {t0}, {t1}")
        a.i(f"v_mul_u32_u24 {t0}, {pitch}, {t0}")
        a.i(f"v_bfe_u32 {t1}, v0, 4, 1")
        a.i(f"v_lshl_add_u32 {t0}, {t1}, 5, {t0}")
        a.i(f"v_and_b32 {t1}, 3, v0")
        a.i(f"v_lshl_add_u32 {t0}, {t1}, 3, {t0}")
        a.i(f"v_add_u32 {vdst}, {base_sgpr}, {t0}")

    def wave_max(self, regs):
        a = self.a
        for dpp in ("row_shr:1 row_mask:0xf", "row_shr:2 row_mask:0xf", "row_shr:4 row_mask:0xf", "row_shr:8 row_mask:0xf",
                    "row_bcast:15 row_mask:0xa", "row_bcast:31 row_mask:0xc"):
            a.nop(2 if len(regs) == 1 else (1 if len(regs) == 2 else 0))
            for r in regs:
                a.i(f"v_max_f32_dpp {r}, {r}, {r} {dpp} bank_mask:0xf")
        a.nop(1)

    def kv_job(self, isV):
        a = self.a
        a.c("---- K/V projection job: B waves 0/1 = m-tile, full K ----")
        D = 16
        def fr(kk): return 48 + 8 * (kk % 4)
        toks = {}
        def reads(kk):
            b = fr(kk); t = []
            t.append(a.lds(f"ds_read_b64_tr_b16 v[{b}:{b+1}], {self.B_TRK} offset:{kk*640}"))
            t.append(a.lds(f"ds_read_b64_tr_b16 v[{b+2}:{b+3}], {self.B_TRK} offset:{kk*640+160}"))
            t.append(a.lds(f"ds_read_b128 v[{b+4}:{b+7}], v{self.B_JA + kk % 4} offset:{kk*1024}"))
            toks[kk] = t
        for kk in range(3): reads(kk)
        for kk in range(40):
            a.wait(lg=toks[kk])
            b = fr(kk)
            W = f"v[{b}:{b+3}]"; X = f"v[{b+4}:{b+7}]"
            C = "0" if kk == 0 else f"v[{D}:{D+15}]"
            if isV: a.i(f"v_mfma_f32_32x32x16_bf16 v[{D}:{D+15}], {X}, {W}, {C}")
            else:   a.i(f"v_mfma_f32_32x32x16_bf16 v[{D}:{D+15}], {W}, {X}, {C}")
            if kk + 3 < 40: reads(kk + 3)
        self.stamp(7, lvl=2)
        a.i(f"s_lshr_b32 s62, {sRB}, 1")
        a.i(f"s_mul_i32 s62, s62, {KVCH}")
        a.i(f"s_add_u32 s62, s62, {WS_KV}")
        a.i(f"s_and_b32 s63, {sRB}, 1")
        a.i("s_lshl_b32 s65, s63, 1")
        a.i(f"s_add_u32 s65, s65, {sWR}")
        a.i("v_and_b32 v93, 31, v0")
        a.i("v_lshrrev_b32 v95, 5, v0")
        if not isV:
            a.i("s_lshl_b32 s64, s65, 10")
            a.i("s_add_u32 s64, s62, s64")
            a.i("s_lshl_b32 s63, s63, 9")
            a.i("s_add_u32 s62, s62, s63")
            a.i(f"s_lshl_b32 s63, {sWR}, 3")
            a.i("s_add_u32 s62, s62, s63")
            a.i(f"s_add_u32 s62, s62, {KV_KH}")
            a.i("v_cmp_gt_u32 vcc, 32, v0")
            a.nop(2)
            for j in range(6): a.i(f"v_cvt_pk_bf16_f32 v{88+j if j < 4 else 96+j-4}, v{D+2*j}, v{D+2*j+1}")
            a.vmem(f"buffer_store_dwordx4 v[88:91], {self.B_L16}, {SRD_WS}, s64 offen sc1")
            a.i("s_mov_b32 exec_lo, -1"); a.i("s_mov_b32 exec_hi, 0")
            a.vmem(f"buffer_store_dwordx2 v[96:97], {self.B_L16}, {SRD_WS}, s62 offen sc1")
            a.i("s_mov_b64 exec, -1")
            a.i(f"v_mul_f32 v92, v{D+8}, v{D+8}")
            for j in range(9, 12): a.i(f"v_fmac_f32 v92, v{D+j}, v{D+j}")
            a.nop(1)
            a.i("v_cndmask_b32 v92, 0, v92, vcc")
            for j in range(8): a.i(f"v_fmac_f32 v92, v{D+j}, v{D+j}")
            a.i("v_mov_b32 v93, v92")
            a.nop(2)
            a.i("v_permlane32_swap_b32 v92, v93")
            a.nop(1)
            a.i("v_add_f32 v92, v92, v93")
            norm_base = WS_KN
        else:
            a.i(f"v_mul_u32_u24 v95, {VROW}, v95")
            a.i("v_lshl_add_u32 v95, v93, 4, v95")
            a.i("s_lshl_b32 s65, s65, 1")
            a.i(f"s_mul_i32 s65, s65, {VFR}")
            a.i("s_add_u32 s62, s62, s65")
            a.i(f"s_add_u32 s62, s62, {KV_V}")
            a.i("v_cmp_eq_u32 vcc, 20, v93")
            a.i("v_cmp_eq_u32 s[64:65], 21, v93")
            a.i("v_mov_b32 v94, 0x3f803f80")
            a.i("v_mov_b32 v98, 0")
            for j in range(8): a.i(f"v_cvt_pk_bf16_f32 v{80+j}, v{D+2*j}, v{D+2*j+1}")
            for j in range(8): a.i(f"v_cndmask_b32 v{80+j}, v{80+j}, v94, vcc")
            for j in range(8): a.i(f"v_cndmask_b32 v{80+j}, v{80+j}, v98, s[64:65]")
            a.i("s_mov_b32 exec_lo, 0x3fffff")
            a.i("s_mov_b32 exec_hi, 0x3fffff")
            a.vmem(f"buffer_store_dwordx4 v[80:83], v95, {SRD_WS}, s62 offen sc1")
            a.vmem(f"buffer_store_dwordx4 v[84:87], v95, {SRD_WS}, s62 offen offset:{VFR} sc1")
            a.i("s_mov_b64 exec, -1")
            a.i(f"v_max3_f32 v92, abs(v{D}), abs(v{D+1}), abs(v{D+2})")
            for j in range(3, 15, 2): a.i(f"v_max3_f32 v92, v92, abs(v{D+j}), abs(v{D+j+1})")
            a.i(f"v_max3_f32 v92, v92, abs(v{D+15}), abs(v{D+15})")
            a.i("v_cmp_gt_u32 vcc, 20, v93")
            a.nop(2)
            a.i("v_cndmask_b32 v92, 0, v92, vcc")
            norm_base = WS_VN
        self.stamp(9, lvl=2)
        self.wave_max(["v92"])
        a.i("v_readlane_b32 s63, v92, 63")
        a.i(f"s_lshl_b32 s62, {sRB}, 1")
        a.i(f"s_add_u32 s62, s62, {sWR}")
        a.i("s_lshl_b32 s62, s62, 2")
        a.i(f"s_add_u32 s62, s62, {norm_base}")
        a.i("v_mov_b32 v92, s63")
        a.i("v_mov_b32 v93, 0")
        a.i("s_mov_b64 exec, 1")
        a.vmem(f"buffer_store_dword v92, v93, {SRD_WS}, s62 offen sc1")
        a.i("s_mov_b64 exec, -1")
        a.wait(vm='all')
        self.stamp(10, lvl=2)
        a.lds(f"ds_add_rtn_u32 v248, {self.B_CW}, {self.B_ONE} offset:{C_KVD}")
        a.wait(lg='all')
        a.i("v_readfirstlane_b32 s62, v248")
        Lnf = a.newlabel("kvnf")
        a.nop(1)
        a.i("s_cmp_lg_u32 s62, 1")
        a.i(f"s_cbranch_scc1 {Lnf}")
        a.i("v_lshlrev_b32 v92, 8, v0")
        a.i(f"v_mov_b32 v93, {sN}")
        a.i(f"s_lshl_b32 s62, {sRB}, 1")
        a.i(f"s_add_u32 s62, s62, {1 if isV else 0}")
        a.i("s_lshl_b32 s62, s62, 2")
        a.i(f"s_add_u32 s62, s62, {WS_FKV}")
        a.i("s_mov_b32 exec_lo, -1"); a.i("s_mov_b32 exec_hi, 0")
        a.i(f"buffer_store_dword v93, v92, {SRD_WS}, s62 offen sc1")
        a.i("s_mov_b64 exec, -1")
        a.label(Lnf)
        a.vm = []

    def q_proj(self):
        a = self.a
        a.c("---- Q projection (transposed): wave = head, both m-tiles ----")
        NS = NSQ
        dt = self.qtok
        if self.o.get('kvgate', 0):
            Lgo = a.newlabel("qgo")
            a.i(f"s_and_b32 s62, {sCG}, 3")
            a.i("s_cmp_lg_u32 s62, 0")
            a.i(f"s_cbranch_scc1 {Lgo}")
            self.lds_spin_ge(C_KVD, 2, "v218", self.A_CR, sleep=1)
            a.label(Lgo)
        a.vm = list(dt); a.lg = []
        B = lambda ks: 48 + 12 * (ks % 3)
        dm = {k: dt[k] for k in range(NS)}
        toks = {}
        def reads(ks):
            a.wait(vm=dm[ks])
            b = B(ks); sl = (ks % NS) * 1024; t = []
            t.append(a.lds(f"ds_read_b64_tr_b16 v[{b}:{b+1}], {self.vTRq} offset:{sl}"))
            t.append(a.lds(f"ds_read_b64_tr_b16 v[{b+2}:{b+3}], {self.vTRq} offset:{sl+256}"))
            self.rot_xn_seg(self.A_XA, self.A_XB, "s69", ks)
            t.append(a.lds(f"ds_read_b128 v[{b+4}:{b+7}], v{self.A_XA + ks % 4} offset:{self.seg_imm(ks)}"))
            t.append(a.lds(f"ds_read_b128 v[{b+8}:{b+11}], v{self.A_XB + ks % 4} offset:{self.seg_imm(ks)}"))
            toks[ks] = t
        reads(0); reads(1)
        for ks in range(40):
            if ks in (0, 10, 20, 30): self.stamp(6 + ks // 10, lvl=2)
            a.wait(lg=toks[ks])
            b = B(ks)
            C = "0" if ks == 0 else "v[16:31]"
            a.i(f"v_mfma_f32_32x32x16_bf16 v[16:31], v[{b}:{b+3}], v[{b+4}:{b+7}], {C}")
            if ks + 2 < 40: reads(ks + 2)
            C = "0" if ks == 0 else "v[32:47]"
            a.i(f"v_mfma_f32_32x32x16_bf16 v[32:47], v[{b}:{b+3}], v[{b+8}:{b+11}], {C}")
            if ks + NS < 40: dm[ks + NS] = self.wq_dma(ks + NS)
            if ks == self.o.get('kvearly', -1):
                a.i("v_lshlrev_b32 v216, 2, v0")
                a.i(f"s_lshl_b32 s63, {sRB}, 8")
                a.i(f"s_add_u32 s101, s63, {WS_FKV}")
                self.kvtok = a.vmem(f"buffer_load_dword v188, v216, {SRD_WS}, s101 offen sc1")
            if ks + NS == 39: self.lds_count(C_QISS, self.A_CW, self.A_ONE)
        self.lds_count(C_XND, self.A_CW, self.A_ONE)
        self.lds_count(C_QDONE, self.A_CW, self.A_ONE)

    S_ = {'a': 16, 'b': 32}; O_ = {'a': 48, 'b': 64}; P_ = {'a': 80, 'b': 88}; C_ = {'a': 96, 'b': 112}
    QL = {'a': 128, 'b': 132}; QH = {'a': 136, 'b': 138}
    KL = [140, 144]; KH = [148, 152]; VV = [156, 164]
    vKL, vKH, vV, vCnt, vDkv = "v172", "v173", "v174", "v180", "v181"
    N2 = {'a': "v182", 'b': "v183"}

    def q_epilogue(self):
        a = self.a
        a.c("---- Q epilogue: scale, pack to bf16 B operands, squared norms ----")
        a.i("v_cmp_gt_u32 vcc, 32, v0")
        a.i(f"v_mov_b32 v216, {hx(f2u(QSCALE))}")
        a.i("v_mov_b32 v217, 0")
        a.nop(7)
        a.i("v_cndmask_b32 v217, v217, v216, vcc")
        for u, D in (('a', 16), ('b', 32)):
            for j in range(8): a.i(f"v_mul_f32 v{D+j}, v216, v{D+j}")
            for j in range(8, 12): a.i(f"v_mul_f32 v{D+j}, v217, v{D+j}")
            for j in range(4): a.i(f"v_cvt_pk_bf16_f32 v{self.QL[u]+j}, v{D+2*j}, v{D+2*j+1}")
            for j in range(2): a.i(f"v_cvt_pk_bf16_f32 v{self.QH[u]+j}, v{D+8+2*j}, v{D+9+2*j}")
            n = self.N2[u]
            a.i(f"v_mul_f32 {n}, v{D}, v{D}")
            for j in range(1, 12): a.i(f"v_fmac_f32 {n}, v{D+j}, v{D+j}")
        for u in "ab":
            a.i(f"v_mov_b32 v{218 if u=='a' else 219}, {self.N2[u]}")
        a.nop(1)
        a.i(f"v_permlane32_swap_b32 {self.N2['a']}, v218")
        a.i(f"v_permlane32_swap_b32 {self.N2['b']}, v219")
        a.nop(1)
        a.i(f"v_add_f32 {self.N2['a']}, {self.N2['a']}, v218")
        a.i(f"v_add_f32 {self.N2['b']}, {self.N2['b']}, v219")

    def qk(self, u, kl, kh, dst=None):
        S = self.S_[u] if dst is None else dst
        C = self.C_[u]
        m0 = f"v_mfma_f32_32x32x16_bf16 v[{S}:{S+15}], v[{kl}:{kl+3}], v[{self.QL[u]}:{self.QL[u]+3}], v[{C}:{C+15}]"
        m1 = f"v_mfma_f32_32x32x8_bf16 v[{S}:{S+15}], v[{kh}:{kh+1}], v[{self.QH[u]}:{self.QH[u]+1}], v[{S}:{S+15}]"
        return m0, m1
    def pv(self, u, vv):
        O = self.O_[u]; P = self.P_[u]
        m0 = f"v_mfma_f32_32x32x16_bf16 v[{O}:{O+15}], v[{vv}:{vv+3}], v[{P}:{P+3}], v[{O}:{O+15}]"
        m1 = f"v_mfma_f32_32x32x16_bf16 v[{O}:{O+15}], v[{vv+4}:{vv+7}], v[{P+4}:{P+7}], v[{O}:{O+15}]"
        return m0, m1

    def ring_addr(self):
        a = self.a
        a.i(f"v_add_u32 {self.vKL}, {AREG}, {self.A_L16}")
        a.i("v_and_b32 v216, 31, v0")
        a.i(f"v_lshlrev_b32 {self.vKH}, 4, v216")
        a.i(f"v_add_u32 {self.vKH}, {AREG + KV_KH}, {self.vKH}")
        a.i("v_min_u32 v217, 21, v216")
        a.i("v_cmp_eq_u32 vcc, 24, v216")
        a.i("v_lshrrev_b32 v219, 5, v0")
        a.i(f"v_mul_u32_u24 v219, {VROW}, v219")
        a.i("v_mov_b32 v218, 20")
        a.i("v_cndmask_b32 v217, v217, v218, vcc")
        a.i("v_lshl_add_u32 v217, v217, 4, v219")
        a.i(f"v_add_u32 {self.vV}, {AREG + KV_V}, v217")
        a.i(f"s_mul_i32 s62, {sWR}, {RSHARE}")
        a.i(f"v_add_u32 {self.vDkv}, s62, {self.A_L16}")
        a.i(f"s_add_u32 s72, s62, {AREG}")
        a.i("s_bfe_u32 s62, s2, 0x40003")
        if self.o.get('xrot', 0) == 2:
            a.i("s_and_b32 s63, s2, 7")
            a.i("s_lshl_b32 s63, s63, 1")
            a.i("s_add_u32 s62, s62, s63")
            a.i("s_and_b32 s62, s62, 15")
        if not self.o.get('rot', 1): a.i("s_mov_b32 s62, 0")
        a.i(f"s_mul_i32 s79, s62, {KVCH}")
        a.i(f"s_add_u32 s79, s79, {WS_KV}")

    def ring_dma(self, slot):
        a = self.a
        a.i(f"s_add_u32 m0, s72, {slot*RSLOT}")
        a.i(f"s_add_u32 s73, s79, {KVCH}")
        t = [a.vmem(f"buffer_load_dwordx4 {self.vDkv}, {SRD_WS}, s79 offen offset:{1024*j} sc1 lds") for j in range(3)]
        a.i(f"s_cmp_eq_u32 s73, {WS_KV + 16*KVCH}")
        a.i(f"s_cselect_b32 s79, {WS_KV}, s73")
        return t

    def att_init_regs(self):
        a = self.a
        for r in list(range(48, 80)) + list(range(88, 96)) + list(range(self.VV[1], self.VV[1] + 8)):
            a.i(f"v_mov_b32 v{r}, 0")

    def kv_wait(self):
        a = self.a
        a.c("---- wait for K/V of all row blocks ----")
        Lw = a.newlabel("kvw"); Lj = a.newlabel("kvj")
        if self.o.get('kvearly', -1) >= 0:
            a.vm = [self.kvtok]
            a.wait(vm=self.kvtok)
            a.i(f"v_cmp_ne_u32 vcc, {sN}, v188")
            Lslow = a.newlabel("kvslow")
            a.i(f"s_cbranch_vccnz {Lslow}")
            a.i(f"s_cmp_lg_u32 {sWR}, 0")
            a.i(f"s_cbranch_scc1 {Lj}")
            a.i(f"ds_add_u32 {self.A_CW}, {self.A_ONE} offset:{C_KVRDY}")
            a.i(f"s_branch {Lj}")
            a.label(Lslow)
        a.i(f"s_cmp_lg_u32 {sWR}, 0")
        a.i(f"s_cbranch_scc1 {Lw}")
        a.i("v_lshlrev_b32 v216, 2, v0")
        a.i(f"s_lshl_b32 s63, {sRB}, 8")
        a.i(f"s_add_u32 s63, s63, {WS_FKV}")
        self.glb_poll("v216", "s63", "v217", sleep=2)
        a.i(f"ds_add_u32 {self.A_CW}, {self.A_ONE} offset:{C_KVRDY}")
        a.i(f"s_branch {Lj}")
        a.label(Lw)
        self.lds_spin_ge(C_KVRDY, 1, "v218", self.A_CR, sleep=0)
        a.label(Lj)
        a.lg = []; a.vm = []
        a.i("s_waitcnt lgkmcnt(0)")

    def shift_setup(self):
        a = self.a
        a.c("---- softmax shift ----")
        a.i("v_lshlrev_b32 v216, 2, v0")
        a.i(f"s_mov_b32 s62, {WS_KN}")
        t1 = a.vmem(f"buffer_load_dword v184, v216, {SRD_WS}, s62 offen sc1")
        a.i(f"s_mov_b32 s63, {WS_VN}")
        t2 = a.vmem(f"buffer_load_dword v186, v216, {SRD_WS}, s63 offen sc1")
        self.lds_spin_ge(C_QDONE, 4, "v218", self.A_CR, sleep=0)
        pre = [self.ring_dma(c) for c in range(3)]
        self.lds_count(C_GO, self.A_CW, self.A_ONE)
        a.wait(vm=[t1, t2])
        self.wave_max(["v184", "v186"])
        a.i("v_readlane_b32 s62, v184, 63")
        a.i("v_readlane_b32 s64, v186, 63")
        a.nop(1)
        a.i("v_mov_b32 v184, s62")
        a.i("v_mov_b32 v186, s64")
        a.i("v_max_f32 v186, 1.0, v186")
        a.i("v_log_f32 v186, v186")
        a.i(f"v_mov_b32 v185, {hx(f2u(56.5))}")
        for u in "ab":
            n = self.N2[u]
            a.i(f"v_mul_f32 {n}, {n}, v184")
        a.i("v_fma_f32 v186, v186, -0.5, v185")
        for u in "ab": a.i(f"v_sqrt_f32 {self.N2[u]}, {self.N2[u]}")
        a.nop(1)
        for u in "ab": a.i(f"v_mul_f32 {self.N2[u]}, {hx(f2u(1.02))}, {self.N2[u]}")
        a.i(f"v_cmp_nle_f32 vcc, {self.N2['a']}, v186")
        a.i(f"v_cmp_nle_f32 s[64:65], {self.N2['b']}, v186")
        a.nop(1)
        a.i("s_or_b64 vcc, vcc, s[64:65]")
        if self.o.get('force_fallback'): a.i("s_mov_b64 vcc, -1")
        Lsafe = a.newlabel("safe")
        a.i(f"s_cbranch_vccz {Lsafe}")
        self.true_max_pass()
        a.label(Lsafe)
        for u in "ab":
            for j in range(16): a.i(f"v_mov_b32 v{self.C_[u]+j}, {self.N2[u]}")
        return pre

    def true_max_pass(self):
        a = self.a
        a.c("---- fallback: true row max ----")
        for u in "ab":
            for j in range(16): a.i(f"v_mov_b32 v{self.C_[u]+j}, 0")
            a.i(f"v_mov_b32 {self.N2[u]}, 0xff800000")
        a.i("v_and_b32 v216, 31, v0")
        a.i("v_lshlrev_b32 v216, 4, v216")
        a.i("s_mov_b32 s64, 0")
        L = a.newlabel("tm")
        a.label(L)
        a.i("s_lshr_b32 s62, s64, 2")
        a.i(f"s_mul_i32 s62, s62, {KVCH}")
        a.i(f"s_add_u32 s62, s62, {WS_KV}")
        a.i("s_and_b32 s63, s64, 3")
        a.i("s_lshl_b32 s65, s63, 10")
        a.i("s_add_u32 s65, s65, s62")
        a.i(f"buffer_load_dwordx4 v[{self.KL[0]}:{self.KL[0]+3}], {self.A_L16}, {SRD_WS}, s65 offen sc1")
        a.i("s_lshr_b32 s65, s63, 1")
        a.i("s_lshl_b32 s65, s65, 9")
        a.i("s_and_b32 s63, s63, 1")
        a.i("s_lshl_b32 s63, s63, 3")
        a.i("s_add_u32 s65, s65, s63")
        a.i("s_add_u32 s65, s65, s62")
        a.i("s_add_u32 s65, s65, 4096")
        a.i(f"buffer_load_dwordx2 v[{self.KH[0]}:{self.KH[0]+1}], v216, {SRD_WS}, s65 offen sc1")
        a.i("s_waitcnt vmcnt(0)")
        for u in "ab":
            for m in self.qk(u, self.KL[0], self.KH[0]): a.i(m)
        a.nop(12)
        for u in "ab":
            S = self.S_[u]
            for j in range(8): a.i(f"v_max3_f32 {self.N2[u]}, {self.N2[u]}, v{S+2*j}, v{S+2*j+1}")
        a.i("s_add_u32 s64, s64, 1")
        a.i("s_cmp_lt_u32 s64, 64")
        a.i(f"s_cbranch_scc1 {L}")
        a.i(f"v_mov_b32 v218, {self.N2['a']}")
        a.i(f"v_mov_b32 v219, {self.N2['b']}")
        a.nop(1)
        a.i(f"v_permlane32_swap_b32 {self.N2['a']}, v218")
        a.i(f"v_permlane32_swap_b32 {self.N2['b']}, v219")
        a.nop(1)
        a.i(f"v_max_f32 {self.N2['a']}, {self.N2['a']}, v218")
        a.i(f"v_max_f32 {self.N2['b']}, {self.N2['b']}, v219")
        a.i(f"v_sub_f32 {self.N2['a']}, 0, {self.N2['a']}")
        a.i(f"v_sub_f32 {self.N2['b']}, 0, {self.N2['b']}")

    def attention(self, pre):
        a = self.a
        a.c("---- attention main loop ----")
        a.wait(vm=pre[0])
        a.lds(f"ds_add_u32 {self.A_CW}, {self.A_ONE} offset:{C_ARR}")
        self.lds_spin_ge(C_ARR, 4, self.vCnt, self.A_CR, sleep=0)
        a.i("s_mov_b32 s74, 0")
        a.i("s_mov_b32 s78, 8")
        a.lds(f"ds_read_b128 v[{self.KL[0]}:{self.KL[0]+3}], {self.vKL}")
        a.lds(f"ds_read_b128 v[{self.KH[0]}:{self.KH[0]+3}], {self.vKH}")
        a.wait(lg='all')
        for m in self.qk('a', self.KL[0], self.KH[0]): a.i(m)
        a.nop(9)
        self.stamp(7)
        self.stamp(10, True)
        L = "L_ATT"
        a.raw(".p2align 6")
        a.label(L)
        self.loop_start = len(a.lines)
        def egroup(u, k):
            S = self.S_[u]; P = self.P_[u]
            for e in range(4): a.i(f"v_exp_f32 v{S+4*k+e}, v{S+4*k+e}")
            a.i(f"v_cvt_pk_bf16_f32 v{P+2*k}, v{S+4*k}, v{S+4*k+1}")
            a.i(f"v_cvt_pk_bf16_f32 v{P+2*k+1}, v{S+4*k+2}, v{S+4*k+3}")
        for slot in range(4):
            base = slot * RSLOT; nbase = ((slot + 1) % 4) * RSLOT
            a.vm = []; a.lg = []
            if self.o.get('prof') == 3:
                a.i("s_memtime s[90:91]"); a.i("s_waitcnt lgkmcnt(0)")
            if slot == 2:
                Lw3 = a.newlabel("w3")
                a.i("s_cmp_lg_u32 s74, 3")
                a.i(f"s_cbranch_scc1 {Lw3}")
                a.i("s_waitcnt vmcnt(0)")
                a.label(Lw3)
            a.i("s_waitcnt vmcnt(3)")
            if self.o.get('prof') == 3:
                a.i("s_memtime s[92:93]"); a.i("s_waitcnt lgkmcnt(0)")
                a.i("s_sub_u32 s92, s92, s90"); a.i("s_add_u32 s44, s44, s92")
            a.lds(f"ds_add_u32 {self.A_CW}, {self.A_ONE} offset:{C_ARR}")
            for t in range(4):
                kh = self.KH[(t >> 1) % 2] + 2 * (t & 1)
                q0, q1 = self.qk('b', self.KL[t % 2], kh)
                p0, p1 = self.pv('b', self.VV[(t - 1) % 2])
                rd = []
                kn = self.KL[(t + 1) % 2]
                rd.append(('K', f"ds_read_b128 v[{kn}:{kn+3}], {self.vKL} offset:{base + (t+1)*1024 if t < 3 else nbase}"))
                if t & 1:
                    hn = self.KH[((t + 1) >> 1) % 2]
                    rd.append(('K', f"ds_read_b128 v[{hn}:{hn+3}], {self.vKH} offset:{base + 512 if t < 3 else nbase}"))
                vv = self.VV[t % 2]
                rd.append(('V', f"ds_read_b128 v[{vv}:{vv+3}], {self.vV} offset:{base + (2*t)*VFR}"))
                rd.append(('V', f"ds_read_b128 v[{vv+4}:{vv+7}], {self.vV} offset:{base + (2*t+1)*VFR}"))
                ktok, vtok = [], []
                for k, m in enumerate((q0, q1, p0, p1)):
                    a.i(m)
                    if k < len(rd):
                        tk = a.lds(rd[k][1]); (ktok if rd[k][0] == 'K' else vtok).append(tk)
                    egroup('a', k)
                khn = self.KH[((t + 1) >> 1) % 2] + 2 * ((t + 1) & 1)
                q0, q1 = self.qk('a', self.KL[(t + 1) % 2], khn)
                p0, p1 = self.pv('a', self.VV[t % 2])
                a.wait(lg=ktok)
                for k, m in enumerate((q0, q1, p0, p1)):
                    if k == 2: a.wait(lg=vtok)
                    a.i(m)
                    if t == 0 and k == 3:
                        a.lds(f"ds_read_b32 {self.vCnt}, {self.A_CR} offset:{C_ARR}")
                    if t == 1 and k == 0:
                        Lok = a.newlabel("arr")
                        a.i(f"v_cmp_gt_u32 vcc, s78, {self.vCnt}")
                        a.i(f"s_cbranch_vccz {Lok}")
                        if self.o.get('prof'): a.i("s_add_u32 s52, s52, 1")
                        keep = list(a.lg)
                        self.lds_spin_ge(C_ARR, "s78", self.vCnt, self.A_CR, sleep=0)
                        a.lg = keep
                        a.label(Lok)
                    if t == 1 and k == 1:
                        if self.o.get('prof') == 3:
                            a.i("s_memtime s[90:91]"); a.i("s_waitcnt lgkmcnt(0)")
                        if slot == 0: self.ring_dma(3)
                        else:
                            Lnd = a.newlabel("nd")
                            a.i("s_cmp_eq_u32 s74, 3")
                            a.i(f"s_cbranch_scc1 {Lnd}")
                            self.ring_dma((slot + 3) % 4)
                            a.label(Lnd)
                        if self.o.get('prof') == 3:
                            a.i("s_memtime s[92:93]"); a.i("s_waitcnt lgkmcnt(0)")
                            a.i("s_sub_u32 s92, s92, s90"); a.i("s_add_u32 s45, s45, s92")
                        a.i("s_add_u32 s78, s78, 4")
                    egroup('b', k)
        if self.o.get('prof') == 1:
            a.i("s_memtime s[56:57]" if self.o.get('qcyc') else "s_memrealtime s[56:57]")
            a.i("s_waitcnt lgkmcnt(0)")
            for k in range(3):
                a.i(f"s_cmp_eq_u32 s74, {k}")
                a.i(f"s_cselect_b32 s{53+k if k < 2 else 43}, s56, s{53+k if k < 2 else 43}")
        a.i("s_add_u32 s74, s74, 1")
        a.i("s_cmp_lt_u32 s74, 4")
        self.loop_end = len(a.lines)
        a.i(f"s_cbranch_scc1 {L}")
        for m in self.pv('b', self.VV[1]): a.i(m)
        a.vm = []; a.lg = []

    def o_addr(self):
        a = self.a
        a.i(f"s_lshl_b32 s62, {sRB}, 1")
        a.i("s_mul_i32 s62, s62, 40960")
        a.i(f"s_add_u32 s80, s62, {WS_O}")
        a.i(f"s_mul_i32 s63, {sCG}, 5")
        a.i(f"s_add_u32 s81, s63, {sWR}")
        a.i("s_lshl_b32 s81, s81, 10")
        a.i("s_add_u32 s63, s63, 4")
        a.i("s_lshl_b32 s63, s63, 10")
        a.i(f"s_lshr_b32 s65, {sWR}, 1")
        a.i("s_lshl_b32 s65, s65, 9")
        a.i("s_add_u32 s63, s63, s65")
        a.i(f"s_and_b32 s65, {sWR}, 1")
        a.i("s_lshl_b32 s65, s65, 3")
        a.i("s_add_u32 s82, s63, s65")

    def o_epilogue(self):
        a = self.a
        a.c("---- normalise O, publish ----")
        a.i("v_cmp_gt_u32 vcc, 32, v0")
        a.nop(2)
        for mt, u in enumerate("ab"):
            O = self.O_[u]
            a.i(f"v_cndmask_b32 v216, v{O+8}, v{O+12}, vcc")
            a.i("v_rcp_f32 v216, v216")
            a.nop(1)
            a.i("v_mov_b32 v217, v216")
            for j in range(0, 12, 2): a.i(f"v_pk_mul_f32 v[{O+j}:{O+j+1}], v[{O+j}:{O+j+1}], v[216:217]")
            P = self.P_[u]
            for j in range(6): a.i(f"v_cvt_pk_bf16_f32 v{P+j}, v{O+2*j}, v{O+2*j+1}")
            a.i(f"s_add_u32 s68, s80, {mt*40960}")
            a.i("s_add_u32 s69, s68, s81")
            a.vmem(f"buffer_store_dwordx4 v[{P}:{P+3}], {self.A_L16}, {SRD_WS}, s69 offen sc1")
            a.i("s_add_u32 s69, s68, s82")
            a.i("s_mov_b32 exec_lo, -1"); a.i("s_mov_b32 exec_hi, 0")
            a.vmem(f"buffer_store_dwordx2 v[{P+4}:{P+5}], {self.A_L16}, {SRD_WS}, s69 offen sc1")
            a.i("s_mov_b64 exec, -1")
        a.wait(vm='all')
        a.lds(f"ds_add_rtn_u32 v218, {self.A_CW}, {self.A_ONE} offset:{C_OD}")
        a.wait(lg='all')
        a.i("v_readfirstlane_b32 s62, v218")
        a.nop(1)
        a.i("s_cmp_lg_u32 s62, 3")
        a.i("s_cbranch_scc1 L_AEND")
        a.i(f"s_lshl_b32 s62, {sRB}, 7")
        a.i(f"s_lshl_b32 s63, {sCG}, 2")
        a.i("s_add_u32 s62, s62, s63")
        a.i(f"s_add_u32 s62, s62, {WS_FO}")
        a.i(f"v_mov_b32 v217, {sN}")
        a.i("v_mov_b32 v216, 0")
        a.i("s_mov_b64 exec, 1")
        a.i(f"buffer_store_dword v217, v216, {SRD_WS}, s62 offen sc1")
        a.i("s_mov_b64 exec, -1")
        a.label("L_AEND")
        self.stamp(9)
        self.stamp(9, lvl=3)
        self.stamp_flush()
        a.i("s_branch L_END")

    def role_a(self):
        a = self.a
        a.label("L_ROLE_A")
        a.i(f"s_setprio {self.o.get('prioQ', 2)}")
        dt = None
        if self.o.get('noQ'):
            a.i("s_waitcnt vmcnt(0)")
            self.lds_count(C_XND, self.A_CW, self.A_ONE)
            for r in range(16, 48): a.i(f"v_mov_b32 v{r}, 0")
        else: self.q_proj()
        self.stamp(10, lvl=2)
        self.stamp(4)
        self.q_epilogue()
        if self.o.get('dump') == 'q':
            self.dump_regs(128, 12, 0, self.A_L16)
        self.att_init_regs()
        self.o_addr()
        a.i(f"s_setprio {self.o.get('prioA', 2)}")
        self.kv_wait()
        self.stamp(5)
        pre = self.shift_setup()
        self.stamp(6)
        if not self.o.get('noatt'): self.attention(pre)
        else:
            self.loop_start = self.loop_end = len(a.lines)
            a.i("s_waitcnt vmcnt(0)")
        self.stamp(11, True)
        self.stamp(8)
        if self.o.get('dump') == 'o':
            a.nop(16)
            self.dump_regs(48, 32, 0, self.A_L16)
        self.o_epilogue()

    vD1a, vD1b, vTRa, vTRb = "v230", "v231", "v232", "v233"
    B_XA, B_XB = 234, 238
    B_CW, B_CR, B_ONE, B_L16 = "v242", "v243", "v244", "v245"
    B_TRK = "v252"
    B_JA, B_JB = 112, None
    vWa, vWb, vWc, vMa, vMb, vMc = "v220", "v221", "v222", "v223", "v224", "v225"
    vRa, vRb, vRc, vPW, vPR0, vPR1, vXO, vH0 = "v8", "v9", "v10", "v11", "v12", "v13", "v14", "v15"
    vH1 = "v250"
    vPR2, vPR3 = "v254", "v255"

    def pair_dma_addr(self, va, vb, pitch, col_sgpr, comp_rows=8):
        a = self.a
        a.i("v_lshrrev_b32 v246, 3, v0")
        a.i("v_bfe_u32 v247, v0, 4, 1")
        a.i("v_lshlrev_b32 v247, 2, v247")
        a.i("v_and_b32 v248, 7, v0")
        a.i("v_xor_b32 v247, v247, v248")
        a.i(f"v_mul_u32_u24 v246, {pitch}, v246")
        a.i(f"v_lshl_add_u32 {va}, v247, 4, v246")
        a.i(f"v_add_u32 {va}, {col_sgpr}, {va}")
        a.i(f"v_add_u32 {vb}, {comp_rows*pitch - 1024}, {va}")

    def pair_tr_addr(self, va, vb, hmul, base_sgpr):
        a = self.a
        a.i("v_lshrrev_b32 v246, 5, v0")
        a.i(f"v_mul_u32_u24 v246, {hmul}, v246")
        a.i("v_bfe_u32 v247, v0, 2, 2")
        a.i("v_add_u32 v246, v246, v247")
        a.i("v_lshlrev_b32 v246, 7, v246")
        a.i("v_bfe_u32 v247, v0, 4, 1")
        a.i("v_lshlrev_b32 v247, 1, v247")
        a.i("v_bfe_u32 v248, v0, 1, 1")
        a.i("v_add_u32 v247, v247, v248")
        a.i("v_bfe_u32 v248, v0, 3, 1")
        a.i("v_lshlrev_b32 v248, 2, v248")
        a.i("v_xor_b32 v247, v247, v248")
        a.i("v_lshl_add_u32 v246, v247, 4, v246")
        a.i("v_and_b32 v247, 1, v0")
        a.i("v_lshl_add_u32 v246, v247, 3, v246")
        a.i(f"v_add_u32 {va}, {base_sgpr}, v246")
        a.i(f"v_xor_b32 {vb}, 64, v246")
        a.i(f"v_add_u32 {vb}, {base_sgpr}, {vb}")

    def w1_dma(self, ks, part=None):
        a = self.a
        t = []
        if part in (None, 0):
            a.i(f"s_add_u32 m0, s66, {(ks % NS1) * 2048}")
            if part is None: a.nop(1)
        if part in (None, 1):
            t.append(a.vmem(f"buffer_load_dwordx4 {self.vD1a}, {SRD_W1}, s67 offen lds"))
        if part in (None, 2):
            t.append(a.vmem(f"buffer_load_dwordx4 {self.vD1b}, {SRD_W1}, s67 offen offset:1024 lds"))
            self.rot_next(16 * 3456, "s67", ks)
        return t

    def ffn1(self):
        a = self.a
        a.c("---- FFN1 (transposed): h^T tiles, 2 n-tiles x 2 m-tiles per wave ----")
        acc = lambda t, m: 16 + 32 * t + 16 * m
        W = lambda s, t: 80 + 8 * s + 4 * t
        X = lambda s, m: 96 + 8 * s + 4 * m
        d1 = NS1
        dm = dict(self.w1tok); ta = {}; tb = {}
        def rd_wa(ks):
            a.wait(vm=dm[ks])
            s = ks % 2; sl = (ks % NS1) * 2048
            ta[ks] = [a.lds(f"ds_read_b64_tr_b16 v[{W(s,0)}:{W(s,0)+1}], {self.vTRa} offset:{sl}"),
                      a.lds(f"ds_read_b64_tr_b16 v[{W(s,0)+2}:{W(s,0)+3}], {self.vTRa} offset:{sl+512}")]
        def rd_x(ks):
            s = ks % 2
            self.rot_xn_seg(self.B_XA, self.B_XB, "s69", ks)
            ta[ks].append(a.lds(f"ds_read_b128 v[{X(s,0)}:{X(s,0)+3}], v{self.B_XA + ks % 4} offset:{self.seg_imm(ks)}"))
            ta[ks].append(a.lds(f"ds_read_b128 v[{X(s,1)}:{X(s,1)+3}], v{self.B_XB + ks % 4} offset:{self.seg_imm(ks)}"))
        def rd_wb(ks):
            s = ks % 2; sl = (ks % NS1) * 2048
            tb[ks] = [a.lds(f"ds_read_b64_tr_b16 v[{W(s,1)}:{W(s,1)+1}], {self.vTRb} offset:{sl}"),
                      a.lds(f"ds_read_b64_tr_b16 v[{W(s,1)+2}:{W(s,1)+3}], {self.vTRb} offset:{sl+512}")]
        def mf(ks, t, m):
            if self.o.get('abl') == 'nomf1': return
            s = ks % 2; A = acc(t, m)
            C = "0" if ks == 0 else f"v[{A}:{A+15}]"
            a.i(f"v_mfma_f32_32x32x16_bf16 v[{A}:{A+15}], v[{W(s,t)}:{W(s,t)+3}], v[{X(s,m)}:{X(s,m)+3}], {C}")
        rd_wa(0); rd_x(0); rd_wb(0)
        for ks in range(40):
            nx = ks + 1 < 40; dd = ks + d1 < 40
            if ks in (0, 10, 20, 30): self.stamp(6 + ks // 10, lvl=2)
            a.wait(lg=ta[ks])
            mf(ks, 0, 0)
            if nx: rd_wa(ks + 1)
            mf(ks, 0, 1)
            a.wait(lg=tb[ks])
            if nx: rd_x(ks + 1)
            if dd: self.w1_dma(ks + d1, 0)
            mf(ks, 1, 0)
            if nx: rd_wb(ks + 1)
            if dd: dm[ks + d1] = self.w1_dma(ks + d1, 1)
            mf(ks, 1, 1)
            if dd: dm[ks + d1] += self.w1_dma(ks + d1, 2)
        self.lds_count(C_XND, self.B_CW, self.B_ONE)
        if self.o.get('pf', 0): self.l2_prefetch(SRD_W2, 2211840, 3 if self.o.get('pfstride', 128) == 128 else 5, "v246", "v251", sWR, 4)
        self.stamp(10, lvl=2)
        self.stamp(3)
        a.i(f"s_setprio {self.o.get('prioBv', 3)}")
        a.i(f"s_lshl_b32 s62, {sRB}, 1")
        a.i("s_mul_i32 s62, s62, 110592")
        a.i("s_lshl_b32 s63, s68, 11")
        a.i("s_add_u32 s62, s62, s63")
        a.i(f"s_add_u32 s62, s62, {WS_H}")
        a.nop(6)
        for t in range(2):
            for m in range(2):
                A = acc(t, m); R = 80 + 8 * m + 16 * (t & 1)
                for j in range(8): a.i(f"v_cvt_pk_bf16_f32 v{R+j}, v{A+2*j}, v{A+2*j+1}")
                for j in range(8): a.i(f"v_pk_max_i16 v{R+j}, v{R+j}, 0")
                a.i(f"s_add_u32 s63, s62, {m*110592 + t*2048}")
                a.vmem(f"buffer_store_dwordx4 v[{R}:{R+3}], {self.B_L16}, {SRD_WS}, s63 offen sc1")
                a.vmem(f"buffer_store_dwordx4 v[{R+4}:{R+7}], {self.B_L16}, {SRD_WS}, s63 offen offset:1024 sc1")
        a.i(f"s_setprio {self.o.get('prioB', 0)}")

    def h_publish(self):
        a = self.a
        a.i("s_waitcnt vmcnt(0)")
        a.vm = []
        a.lds(f"ds_add_rtn_u32 v246, {self.B_CW}, {self.B_ONE} offset:{C_HD}")
        a.wait(lg='all')
        a.i("v_readfirstlane_b32 s62, v246")
        Lnf = a.newlabel("hnf")
        a.nop(1)
        a.i("s_cmp_lg_u32 s62, 3")
        a.i(f"s_cbranch_scc1 {Lnf}")
        a.i(f"s_lshl_b32 s62, {sRB}, 7")
        a.i(f"s_lshl_b32 s63, {sCG}, 2")
        a.i("s_add_u32 s62, s62, s63")
        a.i(f"s_add_u32 s62, s62, {WS_FH}")
        a.i(f"v_mov_b32 v247, {sN}")
        a.i("v_mov_b32 v246, 0")
        a.i("s_mov_b64 exec, 1")
        a.i(f"buffer_store_dword v247, v246, {SRD_WS}, s62 offen sc1")
        a.i("s_mov_b64 exec, -1")
        a.label(Lnf)

    def out_tiles_setup(self):
        a = self.a
        a.i(f"s_lshr_b32 s62, {sCG}, 1")
        a.i("s_and_b32 s64, s62, 1")
        a.i("s_mul_i32 s62, s62, 5")
        a.i(f"s_and_b32 s82, {sCG}, 1")
        a.i("s_lshl_b32 s63, s82, 1")
        a.i("s_add_u32 s80, s62, s63")
        a.i("s_add_u32 s80, s80, s64")
        a.i("s_lshl_b32 s80, s80, 6")
        a.i("s_xor_b32 s64, s64, 1")
        a.i("s_lshl_b32 s64, s64, 2")
        a.i("s_add_u32 s81, s62, s64")
        a.i("s_lshl_b32 s81, s81, 6")
        a.i(f"s_mul_i32 s83, {sWR}, {BREG}")
        self.pair_dma_addr(self.vWa, self.vWb, 1280, "s80")
        a.i("v_lshrrev_b32 v246, 2, v0")
        a.i("v_mul_u32_u24 v246, 1280, v246")
        a.i("v_and_b32 v247, 3, v0")
        a.i(f"v_lshl_add_u32 {self.vWc}, v247, 4, v246")
        a.i(f"v_add_u32 {self.vWc}, s81, {self.vWc}")
        self.pair_tr_addr(self.vRa, self.vRb, 4, "s83")
        a.i("v_lshrrev_b32 v246, 5, v0")
        a.i("v_lshlrev_b32 v246, 2, v246")
        a.i("v_bfe_u32 v247, v0, 2, 2")
        a.i("v_add_u32 v246, v246, v247")
        a.i("v_lshlrev_b32 v246, 6, v246")
        a.i("v_bfe_u32 v247, v0, 4, 1")
        a.i("v_lshl_add_u32 v246, v247, 5, v246")
        a.i("v_and_b32 v247, 3, v0")
        a.i("v_lshl_add_u32 v246, v247, 3, v246")
        a.i("s_add_u32 s62, s83, 2048")
        a.i(f"v_add_u32 {self.vRc}, s62, v246")
        a.i(f"v_add_u32 {self.vPW}, s83, {self.B_L16}")
        a.i(f"s_lshl_b32 s62, {sWR}, 12")
        a.i(f"v_add_u32 {self.vPR0}, s62, {self.B_L16}")
        a.i(f"v_add_u32 {self.vPR1}, {2*BREG}, {self.vPR0}")
        a.i(f"s_lshl_b32 s62, {sWR}, 10")
        a.i("s_add_u32 s62, s62, 16384")
        a.i(f"v_add_u32 {self.vPR2}, s62, {self.B_L16}")
        a.i(f"v_add_u32 {self.vPR3}, {2*BREG}, {self.vPR2}")

    def w3_dma(self, srd, slot, soff_sgpr, va, vb, vc):
        a = self.a
        a.i(f"s_add_u32 m0, s83, {slot*3072}")
        a.nop(1)
        t = [a.vmem(f"buffer_load_dwordx4 {va}, {srd}, {soff_sgpr} offen lds"),
             a.vmem(f"buffer_load_dwordx4 {vb}, {srd}, {soff_sgpr} offen offset:1024 lds")]
        a.i(f"s_add_u32 m0, s83, {slot*3072 + 2048}")
        a.nop(1)
        t.append(a.vmem(f"buffer_load_dwordx4 {vc}, {srd}, {soff_sgpr} offen lds"))
        return t

    def w3_reads(self, slot, Wb, part=None):
        a = self.a; t = []
        sl = slot * 3072
        if isinstance(part, tuple):
            p = part[1]
            va, o2 = ((self.vRa, 1024), (self.vRb, 1024), (self.vRc, 512))[p]
            t.append(a.lds(f"ds_read_b64_tr_b16 v[{Wb+4*p}:{Wb+4*p+1}], {va} offset:{sl}"))
            t.append(a.lds(f"ds_read_b64_tr_b16 v[{Wb+4*p+2}:{Wb+4*p+3}], {va} offset:{sl+o2}"))
            return t
        if part in (None, 0):
            t.append(a.lds(f"ds_read_b64_tr_b16 v[{Wb}:{Wb+1}], {self.vRa} offset:{sl}"))
            t.append(a.lds(f"ds_read_b64_tr_b16 v[{Wb+2}:{Wb+3}], {self.vRa} offset:{sl+1024}"))
            t.append(a.lds(f"ds_read_b64_tr_b16 v[{Wb+4}:{Wb+5}], {self.vRb} offset:{sl}"))
        if part in (None, 1):
            t.append(a.lds(f"ds_read_b64_tr_b16 v[{Wb+6}:{Wb+7}], {self.vRb} offset:{sl+1024}"))
            t.append(a.lds(f"ds_read_b64_tr_b16 v[{Wb+8}:{Wb+9}], {self.vRc} offset:{sl}"))
            t.append(a.lds(f"ds_read_b64_tr_b16 v[{Wb+10}:{Wb+11}], {self.vRc} offset:{sl+512}"))
        return t

    def five_mfma(self, Wb, H0, H1, first, fill):
        a = self.a
        spec = [(0, 0, H0), (1, 0, H1), (2, 1, H0), (3, 1, H1), (4, 2, H0)]
        for n, (tau, nt, Hb) in enumerate(spec):
            A = 16 + 16 * tau
            C = "0" if first else f"v[{A}:{A+15}]"
            if not (self.o.get('abl') == 'nomf2' and getattr(self, 'in_ffn2', False)):
                a.i(f"v_mfma_f32_32x32x16_bf16 v[{A}:{A+15}], v[{Wb+4*nt}:{Wb+4*nt+3}], v[{Hb}:{Hb+3}], {C}")
            if n < len(fill) and fill[n]: fill[n]()

    def reduce80(self, dst, bar_target):
        a = self.a
        a.nop(8)
        for g in range(20):
            if len(a.lg) >= 14: a.wait(lg=a.lg[6])
            a.lds(f"ds_write_b128 {self.vPW}, v[{16+4*g}:{19+4*g}] offset:{g*1024}")
        a.wait(lg='all')
        self.lds_count(C_BBAR, self.B_CW, self.B_ONE)
        self.lds_spin_ge(C_BBAR, bar_target, "v246", self.B_CR, sleep=0)
        tk = {}
        def rd(src):
            va = self.vPR0 if src < 2 else self.vPR1
            vb = self.vPR2 if src < 2 else self.vPR3
            tk[src] = [a.lds(f"ds_read_b128 v[{16+20*src+4*e}:{19+20*src+4*e}], {va} offset:{(src&1)*BREG + e*1024}") for e in range(4)]
            tk[src].append(a.lds(f"ds_read_b128 v[{32+20*src}:{35+20*src}], {vb} offset:{(src&1)*BREG}"))
        rd(0); rd(1); rd(2)
        a.wait(lg=tk[1])
        rd(3)
        pk = lambda d, x, y: a.i(f"v_pk_add_f32 v[{d}:{d+1}], v[{x}:{x+1}], v[{y}:{y+1}]")
        for j in range(0, 20, 2): pk(dst + j, 16 + j, 36 + j)
        a.wait(lg=tk[2])
        for j in range(0, 20, 2): pk(dst + j, dst + j, 56 + j)
        a.wait(lg='all')
        for j in range(0, 20, 2): pk(dst + j, dst + j, 76 + j)

    def ffn2(self):
        a = self.a
        a.c("---- FFN2 (transposed): 5 output tiles, split-K over the 4 B waves ----")
        if self.o.get('touch', 0):
            a.vmem(f"buffer_load_dword v251, v227, {SRD_W2}, s80 offen")
            a.vmem(f"buffer_load_dword v254, v227, {SRD_W2}, s81 offen")
        self.lds_spin_ge(C_XND, 8, "v246", self.B_CR)
        NS = 9; PF = self.o.get('d2', 4); HD = self.o.get('dh', 3) + 1
        a.i(f"s_mul_i32 s84, {sWR}, {27*20480}")
        if self.o.get('xrot', 0):
            a.i(f"s_lshr_b32 s62, {sRB}, 3")
            a.i("s_lshl_b32 s62, s62, 1")
            a.i(f"s_add_u32 s62, s62, {sRB}")
            a.i("s_and_b32 s62, s62, 7")
        else:
            a.i(f"s_and_b32 s62, {sRB}, 7")
        a.i("s_mul_i32 s62, s62, 3")
        a.i(f"s_and_b32 s63, {sCG}, 3")
        a.i("s_mul_i32 s63, s63, 7")
        a.i("s_add_u32 s62, s62, s63")
        a.i("s_cmp_ge_u32 s62, 27")
        a.i("s_cselect_b32 s63, 27, 0")
        a.i("s_sub_u32 s87, s62, s63")
        if not self.o.get('rot', 1): a.i("s_mov_b32 s87, 0")
        a.i("s_mul_i32 s95, s87, 20480")
        dm = {}
        a.i("s_add_u32 s95, s95, s84")
        a.i(f"s_add_u32 s93, s84, {27*20480}")
        def dma(kk, part=None):
            slot = kk % NS
            if part in (None, 0):
                a.i(f"s_add_u32 m0, s83, {slot*3072}")
                if part is None: a.nop(1)
            if part in (None, 1):
                dm[kk] = [a.vmem(f"buffer_load_dwordx4 {self.vWa}, {SRD_W2}, s95 offen lds")]
            if part in (None, 2):
                dm[kk].append(a.vmem(f"buffer_load_dwordx4 {self.vWb}, {SRD_W2}, s95 offen offset:1024 lds"))
                a.i(f"s_add_u32 m0, s83, {slot*3072 + 2048}")
                if part is None: a.nop(1)
            if part in (None, 3):
                dm[kk].append(a.vmem(f"buffer_load_dwordx4 {self.vWc}, {SRD_W2}, s95 offen lds"))
                a.i("s_add_u32 s95, s95, 20480")
                a.i("s_cmp_eq_u32 s95, s93")
                a.i("s_cselect_b32 s95, s84, s95")
        for kk in range(PF): dma(kk)
        self.stamp(5)
        self.one_wave_poll(WS_FH, C_HRDY, sleep=8)
        Lnl = a.newlabel("nolead")
        a.i(f"s_lshl_b32 s62, {sCG}, 2")
        a.i(f"s_add_u32 s62, s62, {sWR}")
        a.i("s_cmp_lg_u32 s62, 0")
        a.i(f"s_cbranch_scc1 {Lnl}")
        a.i("v_mov_b32 v246, 0")
        a.i("v_mov_b32 v247, 1")
        a.i("s_mov_b64 exec, 1")
        a.i(f"global_atomic_add v248, v246, v247, {sDBG} sc0 sc1")
        a.i("s_waitcnt vmcnt(0)")
        a.i("v_readfirstlane_b32 s62, v248")
        a.i("s_mov_b64 exec, -1")
        a.nop(1)
        a.i("s_cmp_lg_u32 s62, 31")
        a.i(f"s_cbranch_scc1 {Lnl}")
        a.i(f"v_mov_b32 v247, {sN}")
        a.i(f"v_mov_b32 v246, {WS_X}")
        a.i("s_mov_b32 s62, 0")
        a.i("s_mov_b64 exec, 1")
        a.i(f"buffer_store_dword v247, v246, {SRD_WS}, s62 offen sc1")
        a.i("s_mov_b64 exec, -1")
        a.label(Lnl)
        self.stamp(6)
        if self.o.get('pf', 0):
            a.i("v_min_u32 v246, 53, v0")
            a.i("v_lshlrev_b32 v246, 7, v246")
            a.i(f"s_mul_i32 s62, {sRB}, 221184")
            a.i(f"s_lshl_b32 s63, {sCG}, 2")
            a.i(f"s_add_u32 s63, s63, {sWR}")
            a.i(f"s_mul_i32 s63, s63, {54*128}")
            a.i("s_add_u32 s62, s62, s63")
            a.i(f"s_add_u32 s62, s62, {WS_H}")
            a.vmem(f"buffer_load_dword v251, v246, {SRD_WS}, s62 offen sc1")
            self.l2_prefetch(SRD_WO, 819200, 1 if self.o.get('pfstride', 128) == 128 else 2, "v246", "v253", sWR, 4)
        H = lambda kk, s: 120 + 8 * (kk % HD) + 4 * s
        hl = {}
        a.i("s_lshl_b32 s96, s87, 10")
        def hload(kk, part=None):
            if part in (None, 0):
                hl[kk] = [a.vmem(f"buffer_load_dwordx4 v[{H(kk,0)}:{H(kk,0)+3}], {self.vH0}, {SRD_WS}, s96 offen sc1")]
            if part in (None, 1):
                hl[kk].append(a.vmem(f"buffer_load_dwordx4 v[{H(kk,1)}:{H(kk,1)+3}], {self.vH1}, {SRD_WS}, s96 offen sc1"))
                a.i("s_add_u32 s96, s96, 1024")
                a.i(f"s_cmp_eq_u32 s96, {27*1024}")
                a.i("s_cselect_b32 s96, 0, s96")
        for kk in range(HD - 1): hload(kk)
        Wb = lambda kk: 96 + 12 * (kk % 2)
        a.wait(vm=dm[0])
        rt = {0: self.w3_reads(0, Wb(0))}
        self.in_ffn2 = True
        for kk in range(27):
            a.wait(lg=rt[kk], vm=hl[kk])
            nx = kk + 1 < 27; dd = kk + PF < 27; hh = kk + HD - 1 < 27
            def rd(p, kk=kk):
                if p == 0:
                    a.wait(vm=dm[kk + 1]); rt[kk + 1] = []
                rt[kk + 1] += self.w3_reads((kk + 1) % NS, Wb(kk + 1), ('t', p))
            def g0(kk=kk):
                if nx: rd(0)
                if hh: hload(kk + HD - 1, 0)
            def g1(kk=kk):
                if nx: rd(1)
                if hh: hload(kk + HD - 1, 1)
                if dd: dma(kk + PF, 0)
            def g2(kk=kk):
                if nx: rd(2)
                if dd: dma(kk + PF, 1)
            def g3(kk=kk):
                if dd: dma(kk + PF, 2)
            def g4(kk=kk):
                if dd: dma(kk + PF, 3)
            self.five_mfma(Wb(kk), H(kk, 0), H(kk, 1), kk == 0, [g0, g1, g2, g3, g4])
        self.in_ffn2 = False
        self.stamp(7)
        if self.o.get('touch', 0):
            a.i("s_mov_b32 s62, 0")
            a.vmem(f"buffer_load_dword v251, v228, {SRD_WO}, s62 offen")
        a.i(f"s_setprio {self.o.get('prioBv', 3)}")
        self.reduce80(200, 4)
        a.i(f"v_mov_b32 v40, {hx(f2u(-1.4426950408889634))}")
        a.i("v_mov_b32 v41, v40")
        a.i("v_mov_b32 v42, 1.0")
        a.i("v_mov_b32 v43, 1.0")
        for j in range(0, 20, 2): a.i(f"v_pk_mul_f32 v[{16+j}:{17+j}], v[{200+j}:{201+j}], v[40:41]")
        for j in range(20): a.i(f"v_exp_f32 v{16+j}, v{16+j}")
        for j in range(0, 20, 2): a.i(f"v_pk_add_f32 v[{16+j}:{17+j}], v[{16+j}:{17+j}], v[42:43]")
        for j in range(20): a.i(f"v_rcp_f32 v{16+j}, v{16+j}")
        for j in range(0, 20, 2): a.i(f"v_pk_mul_f32 v[{200+j}:{201+j}], v[{200+j}:{201+j}], v[{16+j}:{17+j}]")
        a.i(f"s_setprio {self.o.get('prioB', 0)}")
        self.lds_count(C_BBAR, self.B_CW, self.B_ONE)
        self.lds_spin_ge(C_BBAR, 8, "v246", self.B_CR)

    def out_mixed_addr(self):
        a = self.a
        a.i("v_lshrrev_b32 v246, 3, v0")
        a.i("v_lshrrev_b32 v247, 2, v246")
        a.i("v_mul_u32_u24 v247, 40, v247")
        a.i("v_and_b32 v248, 3, v246")
        a.i("v_add3_u32 v247, v247, v248, 16")
        a.i("v_mul_u32_u24 v247, 1280, v247")
        a.i("v_bfe_u32 v248, v0, 4, 1")
        a.i("v_lshlrev_b32 v248, 2, v248")
        a.i("v_and_b32 v249, 7, v0")
        a.i("v_xor_b32 v248, v248, v249")
        a.i(f"v_lshl_add_u32 {self.vMa}, v248, 4, v247")
        a.i(f"v_add_u32 {self.vMa}, s80, {self.vMa}")
        a.i(f"v_add_u32 {self.vMb}, {20*1280 - 1024}, {self.vMa}")
        a.i("v_lshrrev_b32 v246, 2, v0")
        a.i("v_bfe_u32 v247, v246, 2, 1")
        a.i("v_lshlrev_b32 v247, 1, v247")
        a.i("v_lshrrev_b32 v248, 3, v246")
        a.i("v_add_u32 v247, v247, v248")
        a.i("v_mul_u32_u24 v247, 20, v247")
        a.i("v_and_b32 v248, 3, v246")
        a.i("v_add3_u32 v247, v247, v248, 16")
        a.i("v_mul_u32_u24 v247, 1280, v247")
        a.i("v_and_b32 v248, 3, v0")
        a.i(f"v_lshl_add_u32 {self.vMc}, v248, 4, v247")
        a.i(f"v_add_u32 {self.vMc}, s81, {self.vMc}")
        a.i("v_and_b32 v246, 31, v0")
        a.i("v_mul_u32_u24 v246, 1280, v246")
        a.i("v_lshrrev_b32 v247, 5, v0")
        a.i(f"v_lshl_add_u32 {self.vXO}, v247, 3, v246")

    def ffn2_addr(self):
        a = self.a
        a.i(f"s_lshl_b32 s62, {sRB}, 1")
        a.i("s_add_u32 s63, s62, s82")
        a.i("s_xor_b32 s64, s82, 1")
        a.i("s_add_u32 s64, s62, s64")
        a.i("s_mul_i32 s85, s63, 110592")
        a.i("s_mul_i32 s86, s64, 110592")
        a.i(f"s_mul_i32 s62, {sWR}, {27*1024}")
        a.i(f"s_add_u32 s62, s62, {WS_H}")
        a.i("s_add_u32 s85, s85, s62")
        a.i("s_add_u32 s86, s86, s62")
        a.i(f"v_add_u32 {self.vH0}, s85, {self.B_L16}")
        a.i(f"v_add_u32 {self.vH1}, s86, {self.B_L16}")

    def out_proj(self):
        a = self.a
        a.c("---- output projection + final combine ----")
        dm = {}
        a.i(f"s_lshl_b32 s62, {sWR}, 1")
        a.i("s_add_u32 s93, s62, s82")
        a.i("s_xor_b32 s63, s82, 1")
        a.i("s_add_u32 s94, s62, s63")
        a.i(f"s_mul_i32 s84, s93, {80*1280}")
        a.i(f"s_mul_i32 s87, s94, {80*1280}")
        def wo_dma(e):
            cgo, jj = e // 5, e % 5
            base = "s84" if cgo == 0 else "s87"
            if jj < 4:
                a.i(f"s_add_u32 s67, {base}, {jj*20*1280}")
                dm[e] = self.w3_dma(SRD_WO, e % 9, "s67", self.vWa, self.vWb, self.vWc)
            else:
                dm[e] = self.w3_dma(SRD_WO, e % 9, base, self.vMa, self.vMb, self.vMc)
        for e in range(9):
            wo_dma(e)
            dw = self.o.get('dw', 2)
            if e - dw >= 0: a.wait(vm=dm[e - dw])
        a.wait(vm=dm[8])
        rt0 = self.w3_reads(0, 96)
        a.wait(lg=rt0)
        wo_dma(9)
        a.wait(vm=dm[9])
        xt = []
        a.i(f"s_lshr_b32 s62, {sWR}, 1")
        a.i("s_lshl_b32 s62, s62, 6")
        a.i("s_add_u32 s62, s62, s80")
        a.i(f"s_and_b32 s63, {sWR}, 1")
        a.i("s_xor_b32 s63, s63, s82")
        a.i(f"s_lshl_b32 s64, {sRB}, 1")
        a.i("s_add_u32 s63, s63, s64")
        a.i("s_mul_i32 s63, s63, 40960")
        a.i("s_add_u32 s88, s62, s63")
        a.i("s_add_u32 s64, s64, s82")
        a.i("s_mul_i32 s64, s64, 40960")
        a.i(f"s_lshl_b32 s62, {sWR}, 4")
        a.i("s_add_u32 s64, s64, s62")
        a.i("s_add_u32 s89, s64, s81")
        for e in range(4):
            xt.append(a.vmem(f"buffer_load_dwordx2 v[{220+2*e}:{221+2*e}], {self.vXO}, {SRD_X}, s88 offen offset:{16*e}"))
        xt.append(a.vmem(f"buffer_load_dwordx2 v[228:229], {self.vXO}, {SRD_X}, s89 offen"))
        if self.o.get('tlb', 0):
            a.i(f"s_mul_i32 s62, {sRB}, 81920")
            a.i(f"s_mul_i32 s63, {sWR}, 20480")
            a.i("s_add_u32 s62, s62, s63")
            a.i(f"s_add_u32 s62, s62, {WS_O}")
            a.i("v_mov_b32 v246, 0")
            a.vmem(f"buffer_load_dword v251, v246, {SRD_WS}, s62 offen sc1")
            if self.o.get('tlb') == 2:
                a.vmem(f"buffer_load_dword v252, v246, {SRD_OUT}, s88 offen")
        self.stamp(9)
        self.one_wave_poll(WS_FO, C_ORDY, pre=lambda: (self.lds_spin_ge(C_ARR, 68, "v246", self.B_CR, sleep=8), self.lds_spin_ge(C_OD, 4, "v246", self.B_CR, sleep=1)), sleep=1, rsleep=self.o.get('rs', 3))
        self.stamp(10)
        a.i(f"s_lshl_b32 s62, {sRB}, 1")
        a.i("s_add_u32 s63, s62, s82")
        a.i("s_xor_b32 s64, s82, 1")
        a.i("s_add_u32 s64, s62, s64")
        a.i("s_mul_i32 s85, s63, 40960")
        a.i("s_mul_i32 s86, s64, 40960")
        a.i(f"s_add_u32 s85, s85, {WS_O}")
        a.i(f"s_add_u32 s86, s86, {WS_O}")
        a.i("s_mul_i32 s93, s93, 5120")
        a.i("s_mul_i32 s94, s94, 5120")
        ol = {}
        H = lambda e, s: 120 + 8 * e + 4 * s
        for e in range(10):
            grp = "s93" if e < 5 else "s94"
            a.i(f"s_add_u32 s62, s85, {grp}")
            t0 = a.vmem(f"buffer_load_dwordx4 v[{H(e,0)}:{H(e,0)+3}], {self.B_L16}, {SRD_WS}, s62 offen offset:{(e%5)*1024 if (e%5) < 4 else 0} sc1") if (e % 5) < 4 else None
            if t0 is None:
                a.i("s_add_u32 s62, s62, 4096")
                t0 = a.vmem(f"buffer_load_dwordx4 v[{H(e,0)}:{H(e,0)+3}], {self.B_L16}, {SRD_WS}, s62 offen sc1")
            a.i(f"s_add_u32 s63, s86, {grp}")
            if (e % 5) < 4:
                t1 = a.vmem(f"buffer_load_dwordx4 v[{H(e,1)}:{H(e,1)+3}], {self.B_L16}, {SRD_WS}, s63 offen offset:{(e%5)*1024} sc1")
            else:
                a.i("s_add_u32 s63, s63, 4096")
                t1 = a.vmem(f"buffer_load_dwordx4 v[{H(e,1)}:{H(e,1)+3}], {self.B_L16}, {SRD_WS}, s63 offen sc1")
            ol[e] = [t0, t1]
        Wb = lambda e: 96 + 12 * (e % 2)
        rt = {0: rt0}
        for e in range(10):
            a.wait(lg=rt[e], vm=ol[e])
            def f0(e=e):
                if e + 1 < 10:
                    a.wait(vm=dm[e + 1])
                    rt[e + 1] = self.w3_reads((e + 1) % 9, Wb(e + 1), 0)
            def f1(e=e):
                if e + 1 < 10: rt[e + 1] += self.w3_reads((e + 1) % 9, Wb(e + 1), 1)
            self.five_mfma(Wb(e), H(e, 0), H(e, 1), e == 0, [f0, f1])
        self.stamp(11)
        self.reduce80(96, 12)
        self.stamp(12)
        a.i("s_mov_b32 s62, 0xffff0000")
        a.i("v_lshrrev_b32 v44, 5, v0")
        a.i(f"v_lshl_add_u32 v44, v44, 3, {self.vXO}")
        ost = self.o.get('ostore', '')
        for e in range(5):
            x0, x1 = 220 + 2 * e, 221 + 2 * e
            t = 16 + 4 * (e & 1)
            a.i(f"v_lshlrev_b32 v{t}, 16, v{x0}")
            a.i(f"v_and_b32 v{t+1}, s62, v{x0}")
            a.i(f"v_lshlrev_b32 v{t+2}, 16, v{x1}")
            a.i(f"v_and_b32 v{t+3}, s62, v{x1}")
            for j in (0, 2): a.i(f"v_pk_fma_f32 v[{t+j}:{t+j+1}], v[{96+4*e+j}:{97+4*e+j}], v[{200+4*e+j}:{201+4*e+j}], v[{t+j}:{t+j+1}]")
            a.i(f"v_cvt_pk_bf16_f32 v{24+2*e}, v{t}, v{t+1}")
            a.i(f"v_cvt_pk_bf16_f32 v{25+2*e}, v{t+2}, v{t+3}")
            if e in (1, 3):
                r = 24 + 2 * (e - 1)
                a.nop(2)
                a.i(f"v_permlane32_swap_b32 v{r}, v{r+2}")
                a.i(f"v_permlane32_swap_b32 v{r+1}, v{r+3}")
                a.vmem(f"buffer_store_dwordx4 v[{r}:{r+3}], v44, {SRD_OUT}, s88 offen offset:{16*(e-1)} {ost}".rstrip())
            if e == 4:
                a.vmem(f"buffer_store_dwordx2 v[32:33], {self.vXO}, {SRD_OUT}, s89 offen {ost}".rstrip())

    def role_b(self):
        a = self.a
        a.label("L_ROLE_B")
        Lf1 = a.newlabel("ffn1"); Lv = a.newlabel("vjob"); Lpf = a.newlabel("w1pf")
        a.i(f"s_and_b32 s62, {sCG}, 3")
        a.i("s_cmp_lg_u32 s62, 0")
        a.i(f"s_cbranch_scc1 {Lf1}")
        Lwait = a.newlabel("kvidle")
        a.i(f"s_cmp_ge_u32 {sWR}, 2")
        a.i(f"s_cbranch_scc1 {Lwait}")
        a.i("s_setprio 3")
        a.i(f"s_cmp_eq_u32 {sCG}, 4")
        a.i(f"s_cbranch_scc1 {Lv}")
        a.vm = []; a.lg = []
        self.kv_job(False)
        a.i(f"s_branch {Lwait}")
        a.label(Lv)
        a.vm = []; a.lg = []
        self.kv_job(True)
        a.label(Lwait)
        self.lds_spin_ge(C_KVD, 2, "v246", self.B_CR)
        a.label(Lpf)
        self.stamp(11, lvl=2)
        self.stamp(14)
        a.label(Lf1)
        a.i(f"s_setprio {self.o.get('prioF', 0)}")
        if self.o.get('noB'):
            a.i("s_waitcnt vmcnt(0)")
            a.i("s_branch L_END")
        a.vm = []; a.lg = []
        Lnop = a.newlabel("nopair"); Lhd = a.newlabel("hdone")
        a.i("s_cmp_eq_u32 s99, 0")
        a.i(f"s_cbranch_scc1 {Lnop}")
        if self.o.get('noF1'): a.i(f"s_branch {Lnop}")
        bs = self.o.get('bstart', 'none')
        if bs == 'ring': self.lds_spin_ge(C_GO, 4, "v246", self.B_CR)
        if bs == 'qiss': self.lds_spin_ge(C_QISS, 4, "v246", self.B_CR)
        self.w1tok = {ks: self.w1_dma(ks) for ks in range(NS1)}
        self.ffn1()
        a.i(f"s_branch {Lhd}")
        a.label(Lnop)
        a.i(f"s_setprio {self.o.get('prioB', 0)}")
        self.lds_count(C_XND, self.B_CW, self.B_ONE)
        a.label(Lhd)
        a.vm = []; a.lg = []
        self.h_publish()
        self.stamp(4)
        self.ffn2()
        self.stamp(8)
        if self.o.get('dump') == 'g':
            self.dump_regs(200, 20, 0, self.B_L16)
        self.out_proj()
        a.i("s_waitcnt vmcnt(0)") if self.o.get('prof') else None
        self.stamp(13)
        self.stamp_flush()
        if self.o.get('span'):
            a.i("s_waitcnt vmcnt(0)")
            a.i("s_memrealtime s[90:91]")
            a.i("s_waitcnt lgkmcnt(0)")
            a.i("s_not_b32 s62, s101")
            a.i("v_mov_b32 v1, 8")
            a.i("v_mov_b32 v2, s62")
            a.i("v_mov_b32 v3, s90")
            a.i("s_mov_b64 exec, 1")
            a.i(f"global_atomic_umax v1, v2, {sDBG} sc1")
            a.i(f"global_atomic_umax v1, v3, {sDBG} offset:4 sc1")
            a.i("s_mov_b64 exec, -1")
        a.i("s_branch L_END")

    def build(self):
        a = self.a
        self.prologue()
        self.role_setup()
        a.i("s_waitcnt lgkmcnt(0)")
        a.i(f"s_add_u32 {sN}, {sN}, 1")
        a.vm = []; a.lg = []
        self.stamp(1)
        self.layernorm()
        self.stamp(2)
        if self.o.get('dump') == 'xn':
            self.dump_lds_xn()
        a.i(f"s_cmp_ge_u32 {sW}, 4")
        a.i("s_cbranch_scc1 L_ROLE_B")
        self.role_a()
        self.role_b()
        a.label("L_END")
        a.i("s_endpgm")

    def dump_lds_xn(self):
        a = self.a
        a.i("v_lshlrev_b32 v72, 4, v0")
        a.i(f"s_mul_i32 s70, {sW}, 10240")
        a.i("v_add_u32 v73, s70, v72")
        a.i("s_mul_i32 s71, s2, 81920")
        a.i("s_add_u32 s71, s71, s70")
        a.i(f"s_add_u32 s71, s71, {WS_DBG}")
        for g in range(10):
            a.i(f"ds_read_b128 v[76:79], v73 offset:{g*1024}")
            a.i("s_waitcnt lgkmcnt(0)")
            a.i(f"s_add_u32 s70, s71, {g*1024}")
            a.i(f"buffer_store_dwordx4 v[76:79], v72, {SRD_WS}, s70 offen")
            a.i("s_waitcnt vmcnt(0)")

    def emit(self):
        self.build()
        body = self.a.text()
        hdr = f"""; Fused LayerNorm + multi-query attention + ReLU FFN + gated residual: out = x + (attn(xn) Wo) * silu(relu(xn W1) W2).
;   waves 0-3 : Q projection (one head each), attention over all 2048 keys (K/V fragments streamed through an LDS ring), publish o
; @launch grid=(256,1,1) block=(512,1,1) lds={LDS_TOTAL}
.amdgcn_target "amdgcn-amd-amdhsa--gfx950"
.text
.globl {NAME}_kernel
.p2align 8
.type {NAME}_kernel,@function
{NAME}_kernel:
"""
        ftr = f""".section .rodata,"a"
.p2align 6
.amdhsa_kernel {NAME}_kernel
  .amdhsa_next_free_vgpr 256
  .amdhsa_next_free_sgpr 102
  .amdhsa_accum_offset 256
  .amdhsa_group_segment_fixed_size 0
  .amdhsa_kernarg_size 88
  .amdhsa_user_sgpr_count 2
  .amdhsa_user_sgpr_kernarg_segment_ptr 1
  .amdhsa_system_sgpr_workgroup_id_x 1
  .amdhsa_float_denorm_mode_32 3
.end_amdhsa_kernel
"""
        return hdr + body + ftr

    def hazards(self):
        ins = [t for k, t in self.a.lines if k == 'i']
        probs = check_hazards(ins, "linear")
        body = [t for k, t in self.a.lines[self.loop_start:self.loop_end] if k == 'i']
        probs += check_hazards(body[-40:] + body[:40], "att-backedge")
        probs += check_outstanding(self.a.lines)
        return probs

if __name__ == "__main__":
    opt = {}
    out = None
    for arg in sys.argv[1:]:
        if "=" in arg:
            k, v = arg.split("=", 1); opt[k] = int(v) if v.lstrip('-').isdigit() else v
        else: out = arg
    g = Gen(opt)
    txt = g.emit()
    pr = g.hazards()
    for p in pr: print("HAZARD:", p)
    open(out or "k.s", "w").write(txt)
    n = sum(1 for k, t in g.a.lines if k == 'i')
    print(f"wrote {out or 'k.s'}: {n} instructions, {len(pr)} hazards")
```

```python
import sys, struct
from asmlib import Asm, check_hazards, check_outstanding

NAME = "recurrent_scan__grouped_kv_mqa__dense_activation_relu__prompt"

XN    = 0
BST   = 81920
BPRIV = 9216
NS1   = 4
WKI   = BST
AREG  = 118784
QST   = AREG
APRIV = 11136
NSQ   = 10
RSLOT = 11136
RSHARE = 2688
KVCH  = 12288
BREG  = 29696
CTRL  = 163328
LDS_TOTAL = 163840
VROW  = 352
VFR   = 2 * VROW
KV_KH = 4096
KV_V  = 5120
C_ARR, C_KVD, C_ABAR, C_QDONE, C_KVRDY, C_XND, C_HD, C_BBAR, C_OD, C_GO, C_HRDY, C_ORDY, C_KVS, C_QISS = [4 * i for i in range(14)]
CDUMMY = 128

WS_X    = 0
WS_FKV  = 0x1000
WS_FH   = 0x4000
WS_FO   = 0x6000
WS_KN   = 0x8000
WS_VN   = 0x8400
WS_KV   = 0x10000
WS_H    = 0x100000
WS_O    = 0x800000
WS_DBG  = 0xB00000
WS_PROF = 0x1300000
WS_END  = 0x1400000

QSCALE = 0.22360679774997896 * 1.4426950408889634

def f2u(x): return struct.unpack("<I", struct.pack("<f", x))[0]
def hx(x): return "0x%08x" % (x & 0xffffffff)

sW, sRB, sCG, sN, sWR = "s3", "s4", "s5", "s6", "s7"
SRD_X, SRD_WQ, SRD_WKV, SRD_WO, SRD_W1, SRD_W2, SRD_OUT, SRD_WS = [f"s[{8+4*i}:{11+4*i}]" for i in range(8)]
sDBG, sWSP = "s[58:59]", "s[60:61]"

SPIN_LDS = 400000
SPIN_GLB = 40000

class Gen:
    def __init__(self, opt):
        self.o = opt
        self.a = Asm()

    def vr(self, base, n): return f"v[{base}:{base+n-1}]"

    def lds_spin_ge(self, cnt_off, target, vtmp, vctlr, stmp="s62", sleep=1):
        a = self.a
        L = a.newlabel("spin"); Ld = a.newlabel("spind")
        a.i(f"s_mov_b32 {stmp}, 0")
        a.label(L)
        a.i(f"ds_read_b32 {vtmp}, {vctlr} offset:{cnt_off}")
        a.i("s_waitcnt lgkmcnt(0)")
        a.i(f"v_cmp_gt_u32 vcc, {target}, {vtmp}")
        a.i(f"s_cbranch_vccz {Ld}")
        a.i(f"s_add_u32 {stmp}, {stmp}, 1")
        a.i(f"s_cmp_lt_u32 {stmp}, {SPIN_LDS}")
        if sleep: a.i(f"s_sleep {sleep}")
        a.i(f"s_cbranch_scc1 {L}")
        a.label(Ld)
        a.lg = []

    def glb_poll(self, voff, soff, vtmp, stmp="s62", sleep=4):
        a = self.a
        L = a.newlabel("poll"); Ld = a.newlabel("polld")
        a.i(f"s_mov_b32 {stmp}, 0")
        a.label(L)
        a.i(f"buffer_load_dword {vtmp}, {voff}, {SRD_WS}, {soff} offen sc1")
        a.i("s_waitcnt vmcnt(0)")
        a.i(f"v_cmp_ne_u32 vcc, {sN}, {vtmp}")
        a.i(f"s_cbranch_vccz {Ld}")
        a.i(f"s_add_u32 {stmp}, {stmp}, 1")
        a.i(f"s_cmp_lt_u32 {stmp}, {SPIN_GLB}")
        a.i(f"s_sleep {sleep}")
        a.i(f"s_cbranch_scc1 {L}")
        a.label(Ld)
        a.vm = []

    def one_wave_poll(self, flag_base, rdy_off, pre=None, sleep=4, rsleep=2):
        a = self.a
        Lw = a.newlabel("opw"); Lj = a.newlabel("opj")
        keep = list(a.vm)
        a.i(f"s_cmp_lg_u32 {sWR}, 0")
        a.i(f"s_cbranch_scc1 {Lw}")
        if pre: pre()
        a.i("v_and_b32 v246, 7, v0")
        a.i("v_lshlrev_b32 v246, 2, v246")
        a.i(f"s_lshl_b32 s63, {sRB}, 7")
        a.i(f"s_add_u32 s63, s63, {flag_base}")
        self.glb_poll("v246", "s63", "v247", sleep=sleep)
        a.i(f"ds_add_u32 {self.B_CW}, {self.B_ONE} offset:{rdy_off}")
        a.i(f"s_branch {Lj}")
        a.label(Lw)
        self.lds_spin_ge(rdy_off, 1, "v246", self.B_CR, sleep=rsleep)
        a.label(Lj)
        a.i("s_waitcnt lgkmcnt(0)")
        a.vm = keep; a.lg = []

    def lds_count(self, cnt_off, vctlw, vone):
        return self.a.lds(f"ds_add_u32 {vctlw}, {vone} offset:{cnt_off}")

    def dump_regs(self, base, n, slot, vlane16, cond_wave=None):
        a = self.a
        a.i("s_lshl_b32 s70, s2, 3"); a.i(f"s_add_u32 s70, s70, {sW}")
        a.i("s_mul_i32 s70, s70, 0x4000")
        a.i(f"s_add_u32 s70, s70, {WS_DBG + 0x0}")
        for g in range(n // 4):
            a.i(f"s_add_u32 s71, s70, {(slot + g) * 1024}")
            a.i(f"buffer_store_dwordx4 v[{base+4*g}:{base+4*g+3}], {vlane16}, {SRD_WS}, s71 offen")
        a.i("s_waitcnt vmcnt(0)")
        a.vm = []

    def stamp(self, k, cyc=False, lvl=1):
        if self.o.get('prof') != lvl and not (k <= 2 and self.o.get('prof')): return
        a = self.a
        a.i("s_memtime s[56:57]" if cyc else "s_memrealtime s[56:57]")
        a.i("s_waitcnt lgkmcnt(0)")
        a.i(f"s_mov_b32 s{40+k}, s56")
        a.lg = []

    def stamp_flush(self):
        if not self.o.get('prof'): return
        a = self.a
        a.i("s_mov_b64 exec, 1")
        a.i("s_lshl_b32 s62, s2, 3")
        a.i(f"s_add_u32 s62, s62, {sW}")
        a.i("s_lshl_b32 s62, s62, 6")
        a.i(f"s_add_u32 s62, s62, {WS_PROF}")
        a.i("v_mov_b32 v1, 0")
        for g in range(4):
            for j in range(4): a.i(f"v_mov_b32 v{4+j}, s{40+4*g+j}")
            a.i(f"buffer_store_dwordx4 v[4:7], v1, {SRD_WS}, s62 offen offset:{16*g}")
            a.nop(2)
        a.i("s_mov_b64 exec, -1")

    def l2_prefetch(self, srd, total_bytes, ninstr, vtmp, vdst, sub_sgpr, nsub):
        a = self.a
        st = self.o.get('pfstride', 128)
        lines = total_bytes // st
        per_cu = -(-lines // 32); per_w = -(-per_cu // nsub); per_i = -(-per_w // ninstr)
        assert per_i <= 64, per_i
        a.i(f"s_lshr_b32 s62, {sRB}, 3")
        a.i(f"s_lshl_b32 s63, {sCG}, 2")
        a.i("s_add_u32 s62, s62, s63")
        a.i(f"s_mul_i32 s62, s62, {per_cu}")
        a.i(f"s_mul_i32 s63, {sub_sgpr}, {per_w}")
        a.i("s_add_u32 s62, s62, s63")
        a.i(f"v_min_u32 {vtmp}, {per_i - 1}, v0")
        a.i(f"v_add_u32 {vtmp}, s62, {vtmp}")
        a.i(f"v_mul_u32_u24 {vtmp}, {st}, {vtmp}")
        toks = []
        for i in range(ninstr):
            a.i(f"s_mov_b32 s63, {i * per_i * st}")
            toks.append(a.vmem(f"buffer_load_dword {vdst}, {vtmp}, {srd}, s63 offen"))
        return toks

    def prologue(self):
        a = self.a
        a.i("s_cmp_ge_u32 s2, 256")
        a.i("s_cbranch_scc1 L_END")
        if self.o.get('prof'): a.i("s_memrealtime s[94:95]")
        a.i("s_load_dwordx16 s[40:55], s[0:1], 0")
        a.i("s_load_dwordx4 s[56:59], s[0:1], 64")
        a.i("s_load_dwordx2 s[60:61], s[0:1], 80")
        a.i("v_lshrrev_b32 v1, 6, v0")
        a.i("v_and_b32 v0, 63, v0")
        a.i("s_and_b32 s62, s2, 1")
        a.i("s_lshl_b32 s62, s62, 2")
        a.i("s_lshr_b32 s63, s2, 6")
        a.i(f"s_add_u32 {sCG}, s62, s63")
        a.i(f"v_readfirstlane_b32 {sW}, v1")
        a.i("s_bfe_u32 s62, s2, 0x20001")
        a.i("s_lshl_b32 s62, s62, 3")
        a.i("s_bfe_u32 s63, s2, 0x30003")
        a.i(f"s_add_u32 {sRB}, s62, s63")
        a.i("v_lshrrev_b32 v2, 3, v0")
        a.i("v_and_b32 v3, 7, v0")
        a.i(f"s_and_b32 {sWR}, {sW}, 3")
        a.i(f"s_and_b32 s65, {sCG}, 1")
        a.i("s_lshl_b32 s65, s65, 2")
        a.i(f"s_xor_b32 s97, s65, {sW}")
        a.i("s_lshl_b32 s62, s97, 3")
        a.i(f"s_mul_i32 s98, {sRB}, 81920")
        a.i("v_add_u32 v4, s62, v2")
        a.i("v_mul_u32_u24 v4, 1280, v4")
        a.i("v_lshl_add_u32 v4, v3, 4, v4")
        a.i("s_waitcnt lgkmcnt(0)")
        def srd(base, lo, size):
            a.i(f"s_mov_b32 s{base}, s{lo}")
            a.i(f"s_mov_b32 s{base+1}, s{lo+1}")
            a.i(f"s_mov_b32 s{base+2}, {size}")
            a.i(f"s_mov_b32 s{base+3}, 0x20000")
        srd(8, 40, 2621440)
        Lx = a.newlabel("xa")
        a.i(f"s_cmp_ge_u32 {sW}, 4")
        a.i(f"s_cbranch_scc1 {Lx}")
        self.x_loads()
        if self.o.get('cpf', 0):
            Lc = a.newlabel("cpf")
            a.i(f"s_cmp_lg_u32 {sW}, 0")
            a.i(f"s_cbranch_scc1 {Lc}")
            a.i("s_getpc_b64 s[90:91]")
            a.label("L_PCREF")
            a.i("s_and_b32 s91, s91, 0xffff")
            a.i("s_mov_b32 s92, L_END-L_PCREF")
            a.i("s_mov_b32 s93, 0x20000")
            a.i("s_mov_b32 s88, s90")
            a.i("s_mov_b32 s89, s91")
            a.i("s_mov_b32 s90, s92")
            a.i("s_mov_b32 s91, 0x20000")
            n = self.o.get('cpfn', 12)
            a.i("s_lshr_b32 s62, s2, 3")
            a.i(f"s_mul_i32 s62, s62, {n}")
            a.i(f"v_min_u32 v1, {n-1}, v0")
            a.i("v_add_u32 v1, s62, v1")
            a.i("v_lshlrev_b32 v1, 7, v1")
            a.i("s_mov_b32 s62, 0")
            a.i("buffer_load_dword v56, v1, s[88:91], s62 offen")
            a.label(Lc)
        a.label(Lx)
        a.i(f"s_load_dword {sN}, {sWSP}, {WS_X}")
        srd(12, 42, 819200)
        a.i(f"s_cmp_eq_u32 {sCG}, 4")
        a.i("s_cselect_b32 s16, s46, s44")
        a.i("s_cselect_b32 s17, s47, s45")
        a.i("s_mov_b32 s18, 25600")
        a.i("s_mov_b32 s19, 0x20000")
        srd(20, 48, 819200)
        srd(24, 52, 2211840)
        srd(28, 54, 2211840)
        srd(32, 56, 2621440)
        srd(36, 60, WS_END)
        for r in (200, 202, 230, 231, 253, 181, 215, 245, 220, 221, 222, 223, 224, 225, 226, 227, 228, 14, 15, 250): a.i(f"v_mov_b32 v{r}, 0")
        if self.o.get('prof'):
            for k in range(16): a.i(f"s_mov_b32 s{40+k}, 0")
            a.i("s_mov_b32 s55, s94")
        self.stamp(0)
        if self.o.get('span'):
            a.i("s_memrealtime s[90:91]")
            a.i("s_waitcnt lgkmcnt(0)")
            a.i("s_mov_b32 s101, s90")

    def layernorm(self):
        a = self.a
        a.i("v_lshrrev_b32 v5, 1, v3")
        a.i("v_lshlrev_b32 v5, 10, v5")
        a.i("v_and_b32 v6, 1, v3")
        a.i("v_lshlrev_b32 v6, 9, v6")
        a.i("v_xor_b32 v7, v2, v3")
        a.i("v_lshlrev_b32 v7, 4, v7")
        a.i("v_add3_u32 v5, v5, v6, v7")
        a.i("s_and_b32 s62, s97, 3")
        a.i("s_lshl_b32 s62, s62, 7")
        a.i("s_lshr_b32 s64, s97, 2")
        a.i("s_mul_i32 s64, s64, 40960")
        a.i("s_add_u32 s62, s62, s64")
        a.i("v_add_u32 v5, s62, v5")
        Lz = a.newlabel("nz")
        a.i(f"s_cmp_lg_u32 {sW}, 0")
        a.i(f"s_cbranch_scc1 {Lz}")
        a.i("v_lshlrev_b32 v6, 2, v0")
        a.i(f"v_add_u32 v6, {CTRL}, v6")
        a.i("v_mov_b32 v7, 0")
        a.i("ds_write_b32 v6, v7")
        a.label(Lz)
        a.i("s_mov_b32 s62, 0x3f803f80")
        a.i("s_mov_b32 s63, 0xffff0000")
        for k in range(4): a.i(f"v_mov_b32 v{64+k}, 0")
        a.nop(1)
        X = lambda j: f"v{16+j}"
        for j in range(40):
            a.i(f"v_dot2_f32_bf16 v{64+(j&1)}, {X(j)}, s62, v{64+(j&1)}")
            a.i(f"v_dot2_f32_bf16 v{66+(j&1)}, {X(j)}, {X(j)}, v{66+(j&1)}")
        a.nop(3)
        a.i("v_add_f32 v64, v64, v65")
        a.i("v_add_f32 v66, v66, v67")
        a.nop(1)
        for dpp in ("quad_perm:[1,0,3,2]", "quad_perm:[2,3,0,1]", "row_half_mirror"):
            a.i(f"v_add_f32_dpp v64, v64, v64 {dpp} row_mask:0xf bank_mask:0xf")
            a.i(f"v_add_f32_dpp v66, v66, v66 {dpp} row_mask:0xf bank_mask:0xf")
            a.nop(1)
        a.i(f"v_mul_f32 v64, {hx(f2u(1.0/640))}, v64")
        a.i(f"v_mul_f32 v66, {hx(f2u(1.0/640))}, v66")
        a.i("v_fma_f32 v66, -v64, v64, v66")
        a.i("v_max_f32 v66, 0, v66")
        a.i(f"v_add_f32 v66, {hx(f2u(1e-5))}, v66")
        a.i("v_rsq_f32 v68, v66")
        a.nop(1)
        a.i("v_mov_b32 v69, v68")
        a.i("v_mul_f32 v70, v64, v68")
        a.i("v_sub_f32 v70, 0, v70")
        a.i("v_mov_b32 v71, v70")
        self.stamp(3, lvl=2)
        if not self.o.get('pflate', 0):
            self.role_prefetch()
            a.label("L_LN2")
        self.stamp(4, lvl=2)
        a.i("s_mov_b32 s63, 0xffff0000")
        for g in range(10):
            for d in range(4):
                j = 4 * g + d
                t = 56 + 2 * (j & 3)
                a.i(f"v_lshlrev_b32 v{t}, 16, {X(j)}")
                a.i(f"v_and_b32 v{t+1}, s63, {X(j)}")
            for d in range(4):
                j = 4 * g + d
                t = 56 + 2 * (j & 3)
                a.i(f"v_pk_fma_f32 v[{t}:{t+1}], v[{t}:{t+1}], v[68:69], v[70:71]")
            for d in range(4):
                j = 4 * g + d
                t = 56 + 2 * (j & 3)
                a.i(f"v_cvt_pk_bf16_f32 {X(j)}, v{t}, v{t+1}")
            a.i(f"ds_write_b128 v5, v[{16+4*g}:{19+4*g}] offset:{4096*g}")
        if self.o.get('pflate', 0):
            self.role_prefetch()
            a.label("L_LN2")
        a.i("s_waitcnt lgkmcnt(0)")
        self.stamp(5, lvl=2)
        Lnw = a.newlabel("nw")
        a.i(f"s_cmp_lt_u32 {sW}, 4")
        a.i(f"s_cbranch_scc1 {Lnw}")
        a.i(f"s_and_b32 s62, {sCG}, 3")
        a.i("s_cmp_lg_u32 s62, 0")
        a.i(f"s_cbranch_scc1 {Lnw}")
        a.i("s_waitcnt vmcnt(0)")
        a.label(Lnw)
        a.i("s_barrier")
        a.lg = []

    def xn_addr(self, vA, vB, vt0, vt1, phase_sgpr=None, base_sgpr=None, swap_sgpr=None):
        a = self.a
        a.i(f"v_and_b32 {vt0}, 31, v0")
        a.i(f"v_lshrrev_b32 {vt1}, 5, v0")
        for q in range(4):
            r = f"v{vA+q}"
            if phase_sgpr is None:
                a.i(f"v_add_u32 {r}, {2*q}, {vt1}")
            else:
                a.i(f"s_add_u32 s62, {phase_sgpr}, {q}")
                a.i("s_and_b32 s62, s62, 3")
                a.i("s_lshl_b32 s62, s62, 1")
                a.i(f"v_add_u32 {r}, s62, {vt1}")
            a.i(f"v_xor_b32 {r}, {r}, {vt0}")
            a.i(f"v_lshlrev_b32 {r}, 4, {r}")
            a.i(f"v_lshl_add_u32 {r}, {vt1}, 9, {r}")
            if base_sgpr is not None:
                a.i(f"v_add_u32 {r}, {base_sgpr}, {r}")
            if vB is not None: a.i(f"v_add_u32 v{vB+q}, 40960, {r}")

    WRAPS = (8, 12, 16, 20, 28, 32, 36)
    def rot_setup(self, stride, sK, sRot):
        a = self.a
        if self.o.get('xrot', 0):
            a.i(f"s_lshr_b32 s62, {sRB}, 3")
            a.i("s_lshl_b32 s62, s62, 1")
            a.i(f"s_add_u32 s62, s62, {sRB}")
            a.i("s_and_b32 s62, s62, 7")
        else:
            a.i(f"s_and_b32 s62, {sRB}, 7")
        a.i("s_lshr_b32 s63, s62, 2")
        a.i("s_add_u32 s62, s62, s63")
        a.i(f"s_lshl_b32 {sRot}, s62, 2")
        if not self.o.get('rot', 1): a.i(f"s_mov_b32 {sRot}, 0")
        a.i(f"s_mul_i32 {sK}, {sRot}, {stride}")
    def rot_next(self, stride, sK, ks=None):
        a = self.a
        a.i(f"s_add_u32 {sK}, {sK}, {stride}")
        if ks is None or (ks + 1) in self.WRAPS:
            a.i(f"s_cmp_eq_u32 {sK}, {40*stride}")
            a.i(f"s_cselect_b32 {sK}, 0, {sK}")
    def rot_xn_base(self, vA, vB, sRot):
        a = self.a
        a.i(f"s_lshl_b32 s62, {sRot}, 10")
        for q in range(4):
            a.i(f"v_add_u32 v{vA+q}, s62, v{vA+q}")
            a.i(f"v_add_u32 v{vB+q}, s62, v{vB+q}")
    def rot_xn_seg(self, vA, vB, sRot, ks):
        a = self.a
        if ks not in self.WRAPS: return
        L = a.newlabel("wrap")
        a.i(f"s_cmp_eq_u32 {sRot}, {40 - ks}")
        a.i(f"s_cbranch_scc0 {L}")
        for q in range(4):
            a.i(f"v_subrev_u32 v{vA+q}, 40960, v{vA+q}")
            a.i(f"v_subrev_u32 v{vB+q}, 40960, v{vB+q}")
        a.label(L)
    def seg_imm(self, ks):
        return ks * 1024

    def ctl_regs(self, vW, vR, vOne):
        a = self.a
        a.i(f"v_lshlrev_b32 {vW}, 2, v0")
        a.i(f"v_add_u32 {vW}, {CTRL + CDUMMY}, {vW}")
        a.i(f"v_mov_b32 {vR}, {CTRL}")
        a.i("v_cmp_eq_u32 vcc, 0, v0")
        a.i(f"v_mov_b32 {vOne}, 1")
        a.nop(1)
        a.i(f"v_cndmask_b32 {vW}, {vW}, {vR}, vcc")

    vDq, vTRq, vTRk = "v200", "v201", "v202"
    A_XA, A_XB = 204, 208
    A_CW, A_CR, A_ONE, A_L16 = "v212", "v213", "v214", "v215"
    A_JA, A_JB = 220, 224

    def wq_dma(self, ks):
        a = self.a
        a.i(f"s_add_u32 m0, s66, {(ks % NSQ) * 1024}")
        a.nop(1)
        t = a.vmem(f"buffer_load_dwordx4 {self.vDq}, {SRD_WQ}, s67 offen lds")
        self.rot_next(20480, "s67", ks)
        return t

    def a_setup_private(self):
        a = self.a
        a.i(f"s_mul_i32 s66, {sWR}, {APRIV}")
        a.i(f"s_add_u32 s66, s66, {QST}")

    def a_prefetch_q_addr(self):
        a = self.a
        a.i("v_lshrrev_b32 v216, 2, v0")
        a.i("v_mul_u32_u24 v216, 1280, v216")
        a.i("v_and_b32 v217, 3, v0")
        a.i("v_cmp_eq_u32 vcc, 3, v217")
        a.i(f"v_lshl_add_u32 {self.vDq}, v217, 4, v216")
        a.i("v_mov_b32 v217, 0x40000000")
        a.i(f"v_cndmask_b32 {self.vDq}, {self.vDq}, v217, vcc")
        a.i(f"s_lshl_b32 s62, {sCG}, 2")
        a.i(f"s_add_u32 s62, s62, {sWR}")
        a.i("s_mul_i32 s62, s62, 40")
        a.i(f"s_cmp_eq_u32 {sWR}, 3")
        a.i("s_cselect_b32 s63, 8, 0")
        a.i("s_sub_u32 s62, s62, s63")
        a.i(f"v_add_u32 {self.vDq}, s62, {self.vDq}")
        if self.o.get('abl') == 'qlin':
            a.i(f"v_lshlrev_b32 {self.vDq}, 4, v0")
            a.i(f"s_mul_i32 s62, {sWR}, 1024")
            a.i(f"v_add_u32 {self.vDq}, s62, {self.vDq}")

    def x_loads(self):
        a = self.a
        for i in range(10):
            a.i(f"buffer_load_dwordx4 v[{16+4*i}:{19+4*i}], v4, {SRD_X}, s98 offen offset:{128*i}")

    def role_setup(self):
        a = self.a
        a.i(f"s_cmp_ge_u32 {sW}, 4")
        a.i("s_cbranch_scc1 L_SET_B")
        self.a_setup_private()
        self.a_prefetch_q_addr()
        self.rot_setup(20480, "s67", "s69")
        self.ctl_regs(self.A_CW, self.A_CR, self.A_ONE)
        a.i(f"v_lshlrev_b32 {self.A_L16}, 4, v0")
        self.xn_addr(self.A_XA, self.A_XB, "v216", "v217")
        self.rot_xn_base(self.A_XA, self.A_XB, "s69")
        a.i(f"s_cmp_eq_u32 {sWR}, 3")
        a.i("s_cselect_b32 s63, 8, 0")
        a.i("s_add_u32 s63, s63, s66")
        self.tr_addr_nat64(self.vTRq, "s63", 64)
        self.ring_addr()
        a.i("s_branch L_SET_J")
        a.label("L_SET_B")
        a.i(f"s_mul_i32 s66, {sWR}, {BPRIV}")
        a.i(f"s_add_u32 s66, s66, {BST}")
        a.i(f"s_lshr_b32 s62, {sCG}, 2")
        a.i(f"s_sub_u32 s63, {sCG}, s62")
        a.i("s_sub_u32 s63, s63, 1")
        a.i("s_lshl_b32 s63, s63, 2")
        a.i(f"s_add_u32 s68, s63, {sWR}")
        a.i("s_mov_b32 s99, 1")
        a.i(f"s_and_b32 s63, {sCG}, 3")
        a.i("s_cmp_lg_u32 s63, 0")
        Lp = a.newlabel("pair")
        a.i(f"s_cbranch_scc1 {Lp}")
        a.i("s_lshl_b32 s62, s62, 1")
        a.i(f"s_add_u32 s68, s62, {sWR}")
        a.i("s_add_u32 s68, s68, 22")
        a.i(f"s_cmp_ge_u32 {sWR}, 2")
        a.i("s_cselect_b32 s99, 1, 0")
        a.i("s_cmp_ge_u32 s68, 27")
        a.i("s_cselect_b32 s99, 0, s99")
        a.i("s_cselect_b32 s68, 0, s68")
        a.label(Lp)
        a.i("s_lshl_b32 s68, s68, 1")
        a.i("s_lshl_b32 s62, s68, 6")
        self.pair_dma_addr(self.vD1a, self.vD1b, 3456, "s62")
        self.ctl_regs(self.B_CW, self.B_CR, self.B_ONE)
        a.i(f"v_lshlrev_b32 {self.B_L16}, 4, v0")
        self.rot_setup(16 * 3456, "s67", "s69")
        self.xn_addr(self.B_XA, self.B_XB, "v246", "v247")
        self.rot_xn_base(self.B_XA, self.B_XB, "s69")
        self.pair_tr_addr(self.vTRa, self.vTRb, 8, "s66")
        a.i(f"s_mov_b32 s62, {WKI}")
        self.tr_addr_nat64(self.B_TRK, "s62", 40, "v246", "v247")
        a.i(f"s_and_b32 s64, {sWR}, 1")
        a.i("s_mul_i32 s64, s64, 40960")
        self.xn_addr(self.B_JA, None, "v246", "v247", base_sgpr="s64")
        a.i("v_lshlrev_b32 v253, 4, v0")
        a.i(f"s_mul_i32 s62, {sWR}, 6400")
        a.i("v_add_u32 v253, s62, v253")
        self.x_loads()
        a.i(f"s_and_b32 s64, {sCG}, 3")
        a.i("s_cmp_lg_u32 s64, 0")
        a.i("s_cbranch_scc1 L_SET_NK")
        a.i(f"s_add_u32 s63, s62, {WKI}")
        a.i("s_mov_b32 m0, s63")
        a.i("s_mov_b32 s62, 0")
        for j in range(4):
            a.i(f"buffer_load_dwordx4 v253, {SRD_WKV}, s62 offen offset:{1024*j} lds")
        a.i("s_add_u32 m0, s63, 4096")
        a.i("s_mov_b32 s62, 4096")
        for j in range(3):
            a.i(f"buffer_load_dwordx4 v253, {SRD_WKV}, s62 offen offset:{1024*j} lds")
        a.label("L_SET_NK")
        self.out_tiles_setup()
        self.out_mixed_addr()
        self.ffn2_addr()
        a.i(f"s_and_b32 s64, {sCG}, 3")
        a.i("s_cmp_lg_u32 s64, 0")
        a.i("s_cbranch_scc1 L_SET_J")
        a.i("s_waitcnt vmcnt(7)")
        a.i("s_branch L_SET_X")
        a.label("L_SET_J")
        a.i("s_waitcnt vmcnt(0)")
        a.label("L_SET_X")

    def role_prefetch(self):
        a = self.a
        Lb = a.newlabel("pfb")
        a.i(f"s_cmp_ge_u32 {sW}, 4")
        a.i(f"s_cbranch_scc1 {Lb}")
        a.vm = []
        self.qtok = [self.wq_dma(ks) for ks in range(NSQ)]
        a.i("s_branch L_LN2")
        a.label(Lb)

    def tr_addr_nat64(self, vdst, base_sgpr, pitch, t0="v216", t1="v217"):
        a = self.a
        a.i(f"v_lshrrev_b32 {t0}, 5, v0")
        a.i(f"v_lshlrev_b32 {t0}, 3, {t0}")
        a.i(f"v_bfe_u32 {t1}, v0, 2, 2")
        a.i(f"v_add_u32 {t0}, {t0}, {t1}")
        a.i(f"v_mul_u32_u24 {t0}, {pitch}, {t0}")
        a.i(f"v_bfe_u32 {t1}, v0, 4, 1")
        a.i(f"v_lshl_add_u32 {t0}, {t1}, 5, {t0}")
        a.i(f"v_and_b32 {t1}, 3, v0")
        a.i(f"v_lshl_add_u32 {t0}, {t1}, 3, {t0}")
        a.i(f"v_add_u32 {vdst}, {base_sgpr}, {t0}")

    def wave_max(self, regs):
        a = self.a
        for dpp in ("row_shr:1 row_mask:0xf", "row_shr:2 row_mask:0xf", "row_shr:4 row_mask:0xf", "row_shr:8 row_mask:0xf",
                    "row_bcast:15 row_mask:0xa", "row_bcast:31 row_mask:0xc"):
            a.nop(2 if len(regs) == 1 else (1 if len(regs) == 2 else 0))
            for r in regs:
                a.i(f"v_max_f32_dpp {r}, {r}, {r} {dpp} bank_mask:0xf")
        a.nop(1)

    def kv_job(self, isV):
        a = self.a
        a.c("---- K/V projection job: B waves 0/1 = m-tile, full K ----")
        D = 16
        def fr(kk): return 48 + 8 * (kk % 4)
        toks = {}
        def reads(kk):
            b = fr(kk); t = []
            t.append(a.lds(f"ds_read_b64_tr_b16 v[{b}:{b+1}], {self.B_TRK} offset:{kk*640}"))
            t.append(a.lds(f"ds_read_b64_tr_b16 v[{b+2}:{b+3}], {self.B_TRK} offset:{kk*640+160}"))
            t.append(a.lds(f"ds_read_b128 v[{b+4}:{b+7}], v{self.B_JA + kk % 4} offset:{kk*1024}"))
            toks[kk] = t
        for kk in range(3): reads(kk)
        for kk in range(40):
            a.wait(lg=toks[kk])
            b = fr(kk)
            W = f"v[{b}:{b+3}]"; X = f"v[{b+4}:{b+7}]"
            C = "0" if kk == 0 else f"v[{D}:{D+15}]"
            if isV: a.i(f"v_mfma_f32_32x32x16_bf16 v[{D}:{D+15}], {X}, {W}, {C}")
            else:   a.i(f"v_mfma_f32_32x32x16_bf16 v[{D}:{D+15}], {W}, {X}, {C}")
            if kk + 3 < 40: reads(kk + 3)
        self.stamp(7, lvl=2)
        a.i(f"s_lshr_b32 s62, {sRB}, 1")
        a.i(f"s_mul_i32 s62, s62, {KVCH}")
        a.i(f"s_add_u32 s62, s62, {WS_KV}")
        a.i(f"s_and_b32 s63, {sRB}, 1")
        a.i("s_lshl_b32 s65, s63, 1")
        a.i(f"s_add_u32 s65, s65, {sWR}")
        a.i("v_and_b32 v93, 31, v0")
        a.i("v_lshrrev_b32 v95, 5, v0")
        if not isV:
            a.i("s_lshl_b32 s64, s65, 10")
            a.i("s_add_u32 s64, s62, s64")
            a.i("s_lshl_b32 s63, s63, 9")
            a.i("s_add_u32 s62, s62, s63")
            a.i(f"s_lshl_b32 s63, {sWR}, 3")
            a.i("s_add_u32 s62, s62, s63")
            a.i(f"s_add_u32 s62, s62, {KV_KH}")
            a.i("v_cmp_gt_u32 vcc, 32, v0")
            a.nop(2)
            for j in range(6): a.i(f"v_cvt_pk_bf16_f32 v{88+j if j < 4 else 96+j-4}, v{D+2*j}, v{D+2*j+1}")
            a.vmem(f"buffer_store_dwordx4 v[88:91], {self.B_L16}, {SRD_WS}, s64 offen sc1")
            a.i("s_mov_b32 exec_lo, -1"); a.i("s_mov_b32 exec_hi, 0")
            a.vmem(f"buffer_store_dwordx2 v[96:97], {self.B_L16}, {SRD_WS}, s62 offen sc1")
            a.i("s_mov_b64 exec, -1")
            a.i(f"v_mul_f32 v92, v{D+8}, v{D+8}")
            for j in range(9, 12): a.i(f"v_fmac_f32 v92, v{D+j}, v{D+j}")
            a.nop(1)
            a.i("v_cndmask_b32 v92, 0, v92, vcc")
            for j in range(8): a.i(f"v_fmac_f32 v92, v{D+j}, v{D+j}")
            a.i("v_mov_b32 v93, v92")
            a.nop(2)
            a.i("v_permlane32_swap_b32 v92, v93")
            a.nop(1)
            a.i("v_add_f32 v92, v92, v93")
            norm_base = WS_KN
        else:
            a.i(f"v_mul_u32_u24 v95, {VROW}, v95")
            a.i("v_lshl_add_u32 v95, v93, 4, v95")
            a.i("s_lshl_b32 s65, s65, 1")
            a.i(f"s_mul_i32 s65, s65, {VFR}")
            a.i("s_add_u32 s62, s62, s65")
            a.i(f"s_add_u32 s62, s62, {KV_V}")
            a.i("v_cmp_eq_u32 vcc, 20, v93")
            a.i("v_cmp_eq_u32 s[64:65], 21, v93")
            a.i("v_mov_b32 v94, 0x3f803f80")
            a.i("v_mov_b32 v98, 0")
            for j in range(8): a.i(f"v_cvt_pk_bf16_f32 v{80+j}, v{D+2*j}, v{D+2*j+1}")
            for j in range(8): a.i(f"v_cndmask_b32 v{80+j}, v{80+j}, v94, vcc")
            for j in range(8): a.i(f"v_cndmask_b32 v{80+j}, v{80+j}, v98, s[64:65]")
            a.i("s_mov_b32 exec_lo, 0x3fffff")
            a.i("s_mov_b32 exec_hi, 0x3fffff")
            a.vmem(f"buffer_store_dwordx4 v[80:83], v95, {SRD_WS}, s62 offen sc1")
            a.vmem(f"buffer_store_dwordx4 v[84:87], v95, {SRD_WS}, s62 offen offset:{VFR} sc1")
            a.i("s_mov_b64 exec, -1")
            a.i(f"v_max3_f32 v92, abs(v{D}), abs(v{D+1}), abs(v{D+2})")
            for j in range(3, 15, 2): a.i(f"v_max3_f32 v92, v92, abs(v{D+j}), abs(v{D+j+1})")
            a.i(f"v_max3_f32 v92, v92, abs(v{D+15}), abs(v{D+15})")
            a.i("v_cmp_gt_u32 vcc, 20, v93")
            a.nop(2)
            a.i("v_cndmask_b32 v92, 0, v92, vcc")
            norm_base = WS_VN
        self.stamp(9, lvl=2)
        self.wave_max(["v92"])
        a.i("v_readlane_b32 s63, v92, 63")
        a.i(f"s_lshl_b32 s62, {sRB}, 1")
        a.i(f"s_add_u32 s62, s62, {sWR}")
        a.i("s_lshl_b32 s62, s62, 2")
        a.i(f"s_add_u32 s62, s62, {norm_base}")
        a.i("v_mov_b32 v92, s63")
        a.i("v_mov_b32 v93, 0")
        a.i("s_mov_b64 exec, 1")
        a.vmem(f"buffer_store_dword v92, v93, {SRD_WS}, s62 offen sc1")
        a.i("s_mov_b64 exec, -1")
        a.wait(vm='all')
        self.stamp(10, lvl=2)
        a.lds(f"ds_add_rtn_u32 v248, {self.B_CW}, {self.B_ONE} offset:{C_KVD}")
        a.wait(lg='all')
        a.i("v_readfirstlane_b32 s62, v248")
        Lnf = a.newlabel("kvnf")
        a.nop(1)
        a.i("s_cmp_lg_u32 s62, 1")
        a.i(f"s_cbranch_scc1 {Lnf}")
        a.i("v_lshlrev_b32 v92, 8, v0")
        a.i(f"v_mov_b32 v93, {sN}")
        a.i(f"s_lshl_b32 s62, {sRB}, 1")
        a.i(f"s_add_u32 s62, s62, {1 if isV else 0}")
        a.i("s_lshl_b32 s62, s62, 2")
        a.i(f"s_add_u32 s62, s62, {WS_FKV}")
        a.i("s_mov_b32 exec_lo, -1"); a.i("s_mov_b32 exec_hi, 0")
        a.i(f"buffer_store_dword v93, v92, {SRD_WS}, s62 offen sc1")
        a.i("s_mov_b64 exec, -1")
        a.label(Lnf)
        a.vm = []

    def q_proj(self):
        a = self.a
        a.c("---- Q projection (transposed): wave = head, both m-tiles ----")
        NS = NSQ
        dt = self.qtok
        if self.o.get('kvgate', 0):
            Lgo = a.newlabel("qgo")
            a.i(f"s_and_b32 s62, {sCG}, 3")
            a.i("s_cmp_lg_u32 s62, 0")
            a.i(f"s_cbranch_scc1 {Lgo}")
            self.lds_spin_ge(C_KVD, 2, "v218", self.A_CR, sleep=1)
            a.label(Lgo)
        a.vm = list(dt); a.lg = []
        B = lambda ks: 48 + 12 * (ks % 3)
        dm = {k: dt[k] for k in range(NS)}
        toks = {}
        def reads(ks):
            a.wait(vm=dm[ks])
            b = B(ks); sl = (ks % NS) * 1024; t = []
            t.append(a.lds(f"ds_read_b64_tr_b16 v[{b}:{b+1}], {self.vTRq} offset:{sl}"))
            t.append(a.lds(f"ds_read_b64_tr_b16 v[{b+2}:{b+3}], {self.vTRq} offset:{sl+256}"))
            self.rot_xn_seg(self.A_XA, self.A_XB, "s69", ks)
            t.append(a.lds(f"ds_read_b128 v[{b+4}:{b+7}], v{self.A_XA + ks % 4} offset:{self.seg_imm(ks)}"))
            t.append(a.lds(f"ds_read_b128 v[{b+8}:{b+11}], v{self.A_XB + ks % 4} offset:{self.seg_imm(ks)}"))
            toks[ks] = t
        reads(0); reads(1)
        for ks in range(40):
            if ks in (0, 10, 20, 30): self.stamp(6 + ks // 10, lvl=2)
            a.wait(lg=toks[ks])
            b = B(ks)
            C = "0" if ks == 0 else "v[16:31]"
            a.i(f"v_mfma_f32_32x32x16_bf16 v[16:31], v[{b}:{b+3}], v[{b+4}:{b+7}], {C}")
            if ks + 2 < 40: reads(ks + 2)
            C = "0" if ks == 0 else "v[32:47]"
            a.i(f"v_mfma_f32_32x32x16_bf16 v[32:47], v[{b}:{b+3}], v[{b+8}:{b+11}], {C}")
            if ks + NS < 40: dm[ks + NS] = self.wq_dma(ks + NS)
            if ks == self.o.get('kvearly', -1):
                a.i("v_lshlrev_b32 v216, 2, v0")
                a.i(f"s_lshl_b32 s63, {sRB}, 8")
                a.i(f"s_add_u32 s101, s63, {WS_FKV}")
                self.kvtok = a.vmem(f"buffer_load_dword v188, v216, {SRD_WS}, s101 offen sc1")
            if ks + NS == 39: self.lds_count(C_QISS, self.A_CW, self.A_ONE)
        self.lds_count(C_XND, self.A_CW, self.A_ONE)
        self.lds_count(C_QDONE, self.A_CW, self.A_ONE)

    S_ = {'a': 16, 'b': 32}; O_ = {'a': 48, 'b': 64}; P_ = {'a': 80, 'b': 88}; C_ = {'a': 96, 'b': 112}
    QL = {'a': 128, 'b': 132}; QH = {'a': 136, 'b': 138}
    KL = [140, 144]; KH = [148, 152]; VV = [156, 164]
    vKL, vKH, vV, vCnt, vDkv = "v172", "v173", "v174", "v180", "v181"
    N2 = {'a': "v182", 'b': "v183"}

    def q_epilogue(self):
        a = self.a
        a.c("---- Q epilogue: scale, pack to bf16 B operands, squared norms ----")
        a.i("v_cmp_gt_u32 vcc, 32, v0")
        a.i(f"v_mov_b32 v216, {hx(f2u(QSCALE))}")
        a.i("v_mov_b32 v217, 0")
        a.nop(7)
        a.i("v_cndmask_b32 v217, v217, v216, vcc")
        for u, D in (('a', 16), ('b', 32)):
            for j in range(8): a.i(f"v_mul_f32 v{D+j}, v216, v{D+j}")
            for j in range(8, 12): a.i(f"v_mul_f32 v{D+j}, v217, v{D+j}")
            for j in range(4): a.i(f"v_cvt_pk_bf16_f32 v{self.QL[u]+j}, v{D+2*j}, v{D+2*j+1}")
            for j in range(2): a.i(f"v_cvt_pk_bf16_f32 v{self.QH[u]+j}, v{D+8+2*j}, v{D+9+2*j}")
            n = self.N2[u]
            a.i(f"v_mul_f32 {n}, v{D}, v{D}")
            for j in range(1, 12): a.i(f"v_fmac_f32 {n}, v{D+j}, v{D+j}")
        for u in "ab":
            a.i(f"v_mov_b32 v{218 if u=='a' else 219}, {self.N2[u]}")
        a.nop(1)
        a.i(f"v_permlane32_swap_b32 {self.N2['a']}, v218")
        a.i(f"v_permlane32_swap_b32 {self.N2['b']}, v219")
        a.nop(1)
        a.i(f"v_add_f32 {self.N2['a']}, {self.N2['a']}, v218")
        a.i(f"v_add_f32 {self.N2['b']}, {self.N2['b']}, v219")

    def qk(self, u, kl, kh, dst=None):
        S = self.S_[u] if dst is None else dst
        C = self.C_[u]
        m0 = f"v_mfma_f32_32x32x16_bf16 v[{S}:{S+15}], v[{kl}:{kl+3}], v[{self.QL[u]}:{self.QL[u]+3}], v[{C}:{C+15}]"
        m1 = f"v_mfma_f32_32x32x8_bf16 v[{S}:{S+15}], v[{kh}:{kh+1}], v[{self.QH[u]}:{self.QH[u]+1}], v[{S}:{S+15}]"
        return m0, m1
    def pv(self, u, vv):
        O = self.O_[u]; P = self.P_[u]
        m0 = f"v_mfma_f32_32x32x16_bf16 v[{O}:{O+15}], v[{vv}:{vv+3}], v[{P}:{P+3}], v[{O}:{O+15}]"
        m1 = f"v_mfma_f32_32x32x16_bf16 v[{O}:{O+15}], v[{vv+4}:{vv+7}], v[{P+4}:{P+7}], v[{O}:{O+15}]"
        return m0, m1

    def ring_addr(self):
        a = self.a
        a.i(f"v_add_u32 {self.vKL}, {AREG}, {self.A_L16}")
        a.i("v_and_b32 v216, 31, v0")
        a.i(f"v_lshlrev_b32 {self.vKH}, 4, v216")
        a.i(f"v_add_u32 {self.vKH}, {AREG + KV_KH}, {self.vKH}")
        a.i("v_min_u32 v217, 21, v216")
        a.i("v_cmp_eq_u32 vcc, 24, v216")
        a.i("v_lshrrev_b32 v219, 5, v0")
        a.i(f"v_mul_u32_u24 v219, {VROW}, v219")
        a.i("v_mov_b32 v218, 20")
        a.i("v_cndmask_b32 v217, v217, v218, vcc")
        a.i("v_lshl_add_u32 v217, v217, 4, v219")
        a.i(f"v_add_u32 {self.vV}, {AREG + KV_V}, v217")
        a.i(f"s_mul_i32 s62, {sWR}, {RSHARE}")
        a.i(f"v_add_u32 {self.vDkv}, s62, {self.A_L16}")
        a.i(f"s_add_u32 s72, s62, {AREG}")
        a.i("s_bfe_u32 s62, s2, 0x40003")
        if self.o.get('xrot', 0) == 2:
            a.i("s_and_b32 s63, s2, 7")
            a.i("s_lshl_b32 s63, s63, 1")
            a.i("s_add_u32 s62, s62, s63")
            a.i("s_and_b32 s62, s62, 15")
        if not self.o.get('rot', 1): a.i("s_mov_b32 s62, 0")
        a.i(f"s_mul_i32 s79, s62, {KVCH}")
        a.i(f"s_add_u32 s79, s79, {WS_KV}")

    def ring_dma(self, slot):
        a = self.a
        a.i(f"s_add_u32 m0, s72, {slot*RSLOT}")
        a.i(f"s_add_u32 s73, s79, {KVCH}")
        t = [a.vmem(f"buffer_load_dwordx4 {self.vDkv}, {SRD_WS}, s79 offen offset:{1024*j} sc1 lds") for j in range(3)]
        a.i(f"s_cmp_eq_u32 s73, {WS_KV + 16*KVCH}")
        a.i(f"s_cselect_b32 s79, {WS_KV}, s73")
        return t

    def att_init_regs(self):
        a = self.a
        for r in list(range(48, 80)) + list(range(88, 96)) + list(range(self.VV[1], self.VV[1] + 8)):
            a.i(f"v_mov_b32 v{r}, 0")

    def kv_wait(self):
        a = self.a
        a.c("---- wait for K/V of all row blocks ----")
        Lw = a.newlabel("kvw"); Lj = a.newlabel("kvj")
        if self.o.get('kvearly', -1) >= 0:
            a.vm = [self.kvtok]
            a.wait(vm=self.kvtok)
            a.i(f"v_cmp_ne_u32 vcc, {sN}, v188")
            Lslow = a.newlabel("kvslow")
            a.i(f"s_cbranch_vccnz {Lslow}")
            a.i(f"s_cmp_lg_u32 {sWR}, 0")
            a.i(f"s_cbranch_scc1 {Lj}")
            a.i(f"ds_add_u32 {self.A_CW}, {self.A_ONE} offset:{C_KVRDY}")
            a.i(f"s_branch {Lj}")
            a.label(Lslow)
        a.i(f"s_cmp_lg_u32 {sWR}, 0")
        a.i(f"s_cbranch_scc1 {Lw}")
        a.i("v_lshlrev_b32 v216, 2, v0")
        a.i(f"s_lshl_b32 s63, {sRB}, 8")
        a.i(f"s_add_u32 s63, s63, {WS_FKV}")
        self.glb_poll("v216", "s63", "v217", sleep=2)
        a.i(f"ds_add_u32 {self.A_CW}, {self.A_ONE} offset:{C_KVRDY}")
        a.i(f"s_branch {Lj}")
        a.label(Lw)
        self.lds_spin_ge(C_KVRDY, 1, "v218", self.A_CR, sleep=0)
        a.label(Lj)
        a.lg = []; a.vm = []
        a.i("s_waitcnt lgkmcnt(0)")

    def shift_setup(self):
        a = self.a
        a.c("---- softmax shift ----")
        a.i("v_lshlrev_b32 v216, 2, v0")
        a.i(f"s_mov_b32 s62, {WS_KN}")
        t1 = a.vmem(f"buffer_load_dword v184, v216, {SRD_WS}, s62 offen sc1")
        a.i(f"s_mov_b32 s63, {WS_VN}")
        t2 = a.vmem(f"buffer_load_dword v186, v216, {SRD_WS}, s63 offen sc1")
        self.lds_spin_ge(C_QDONE, 4, "v218", self.A_CR, sleep=0)
        pre = [self.ring_dma(c) for c in range(3)]
        self.lds_count(C_GO, self.A_CW, self.A_ONE)
        a.wait(vm=[t1, t2])
        self.wave_max(["v184", "v186"])
        a.i("v_readlane_b32 s62, v184, 63")
        a.i("v_readlane_b32 s64, v186, 63")
        a.nop(1)
        a.i("v_mov_b32 v184, s62")
        a.i("v_mov_b32 v186, s64")
        a.i("v_max_f32 v186, 1.0, v186")
        a.i("v_log_f32 v186, v186")
        a.i(f"v_mov_b32 v185, {hx(f2u(56.5))}")
        for u in "ab":
            n = self.N2[u]
            a.i(f"v_mul_f32 {n}, {n}, v184")
        a.i("v_fma_f32 v186, v186, -0.5, v185")
        for u in "ab": a.i(f"v_sqrt_f32 {self.N2[u]}, {self.N2[u]}")
        a.nop(1)
        for u in "ab": a.i(f"v_mul_f32 {self.N2[u]}, {hx(f2u(1.02))}, {self.N2[u]}")
        a.i(f"v_cmp_nle_f32 vcc, {self.N2['a']}, v186")
        a.i(f"v_cmp_nle_f32 s[64:65], {self.N2['b']}, v186")
        a.nop(1)
        a.i("s_or_b64 vcc, vcc, s[64:65]")
        if self.o.get('force_fallback'): a.i("s_mov_b64 vcc, -1")
        Lsafe = a.newlabel("safe")
        a.i(f"s_cbranch_vccz {Lsafe}")
        self.true_max_pass()
        a.label(Lsafe)
        for u in "ab":
            for j in range(16): a.i(f"v_mov_b32 v{self.C_[u]+j}, {self.N2[u]}")
        return pre

    def true_max_pass(self):
        a = self.a
        a.c("---- fallback: true row max ----")
        for u in "ab":
            for j in range(16): a.i(f"v_mov_b32 v{self.C_[u]+j}, 0")
            a.i(f"v_mov_b32 {self.N2[u]}, 0xff800000")
        a.i("v_and_b32 v216, 31, v0")
        a.i("v_lshlrev_b32 v216, 4, v216")
        a.i("s_mov_b32 s64, 0")
        L = a.newlabel("tm")
        a.label(L)
        a.i("s_lshr_b32 s62, s64, 2")
        a.i(f"s_mul_i32 s62, s62, {KVCH}")
        a.i(f"s_add_u32 s62, s62, {WS_KV}")
        a.i("s_and_b32 s63, s64, 3")
        a.i("s_lshl_b32 s65, s63, 10")
        a.i("s_add_u32 s65, s65, s62")
        a.i(f"buffer_load_dwordx4 v[{self.KL[0]}:{self.KL[0]+3}], {self.A_L16}, {SRD_WS}, s65 offen sc1")
        a.i("s_lshr_b32 s65, s63, 1")
        a.i("s_lshl_b32 s65, s65, 9")
        a.i("s_and_b32 s63, s63, 1")
        a.i("s_lshl_b32 s63, s63, 3")
        a.i("s_add_u32 s65, s65, s63")
        a.i("s_add_u32 s65, s65, s62")
        a.i("s_add_u32 s65, s65, 4096")
        a.i(f"buffer_load_dwordx2 v[{self.KH[0]}:{self.KH[0]+1}], v216, {SRD_WS}, s65 offen sc1")
        a.i("s_waitcnt vmcnt(0)")
        for u in "ab":
            for m in self.qk(u, self.KL[0], self.KH[0]): a.i(m)
        a.nop(12)
        for u in "ab":
            S = self.S_[u]
            for j in range(8): a.i(f"v_max3_f32 {self.N2[u]}, {self.N2[u]}, v{S+2*j}, v{S+2*j+1}")
        a.i("s_add_u32 s64, s64, 1")
        a.i("s_cmp_lt_u32 s64, 64")
        a.i(f"s_cbranch_scc1 {L}")
        a.i(f"v_mov_b32 v218, {self.N2['a']}")
        a.i(f"v_mov_b32 v219, {self.N2['b']}")
        a.nop(1)
        a.i(f"v_permlane32_swap_b32 {self.N2['a']}, v218")
        a.i(f"v_permlane32_swap_b32 {self.N2['b']}, v219")
        a.nop(1)
        a.i(f"v_max_f32 {self.N2['a']}, {self.N2['a']}, v218")
        a.i(f"v_max_f32 {self.N2['b']}, {self.N2['b']}, v219")
        a.i(f"v_sub_f32 {self.N2['a']}, 0, {self.N2['a']}")
        a.i(f"v_sub_f32 {self.N2['b']}, 0, {self.N2['b']}")

    def attention(self, pre):
        a = self.a
        a.c("---- attention main loop ----")
        a.wait(vm=pre[0])
        a.lds(f"ds_add_u32 {self.A_CW}, {self.A_ONE} offset:{C_ARR}")
        self.lds_spin_ge(C_ARR, 4, self.vCnt, self.A_CR, sleep=0)
        a.i("s_mov_b32 s74, 0")
        a.i("s_mov_b32 s78, 8")
        a.lds(f"ds_read_b128 v[{self.KL[0]}:{self.KL[0]+3}], {self.vKL}")
        a.lds(f"ds_read_b128 v[{self.KH[0]}:{self.KH[0]+3}], {self.vKH}")
        a.wait(lg='all')
        for m in self.qk('a', self.KL[0], self.KH[0]): a.i(m)
        a.nop(9)
        self.stamp(7)
        self.stamp(10, True)
        L = "L_ATT"
        a.raw(".p2align 6")
        a.label(L)
        self.loop_start = len(a.lines)
        pp = self.o.get('pairpat', 0)
        def egroup(u, k):
            S = self.S_[u]; P = self.P_[u]
            if pp:
                h = k >> 1
                lo, hi = (8*h, 8*h + pp) if not (k & 1) else (8*h + pp, 8*h + 8)
                for e in range(lo, hi): a.i(f"v_exp_f32 v{S+e}, v{S+e}")
                if k & 1:
                    for c in range(4): a.i(f"v_cvt_pk_bf16_f32 v{P+4*h+c}, v{S+8*h+2*c}, v{S+8*h+2*c+1}")
                return
            for e in range(4): a.i(f"v_exp_f32 v{S+4*k+e}, v{S+4*k+e}")
            a.i(f"v_cvt_pk_bf16_f32 v{P+2*k}, v{S+4*k}, v{S+4*k+1}")
            a.i(f"v_cvt_pk_bf16_f32 v{P+2*k+1}, v{S+4*k+2}, v{S+4*k+3}")
        for slot in range(4):
            base = slot * RSLOT; nbase = ((slot + 1) % 4) * RSLOT
            a.vm = []; a.lg = []
            if self.o.get('prof') == 3:
                a.i("s_memtime s[90:91]"); a.i("s_waitcnt lgkmcnt(0)")
            if slot == 2:
                Lw3 = a.newlabel("w3")
                a.i("s_cmp_lg_u32 s74, 3")
                a.i(f"s_cbranch_scc1 {Lw3}")
                a.i("s_waitcnt vmcnt(0)")
                a.label(Lw3)
            a.i("s_waitcnt vmcnt(3)")
            if self.o.get('prof') == 3:
                a.i("s_memtime s[92:93]"); a.i("s_waitcnt lgkmcnt(0)")
                a.i("s_sub_u32 s92, s92, s90"); a.i("s_add_u32 s44, s44, s92")
            a.lds(f"ds_add_u32 {self.A_CW}, {self.A_ONE} offset:{C_ARR}")
            for t in range(4):
                kh = self.KH[(t >> 1) % 2] + 2 * (t & 1)
                q0, q1 = self.qk('b', self.KL[t % 2], kh)
                p0, p1 = self.pv('b', self.VV[(t - 1) % 2])
                rd = []
                kn = self.KL[(t + 1) % 2]
                rd.append(('K', f"ds_read_b128 v[{kn}:{kn+3}], {self.vKL} offset:{base + (t+1)*1024 if t < 3 else nbase}"))
                if t & 1:
                    hn = self.KH[((t + 1) >> 1) % 2]
                    rd.append(('K', f"ds_read_b128 v[{hn}:{hn+3}], {self.vKH} offset:{base + 512 if t < 3 else nbase}"))
                vv = self.VV[t % 2]
                rd.append(('V', f"ds_read_b128 v[{vv}:{vv+3}], {self.vV} offset:{base + (2*t)*VFR}"))
                rd.append(('V', f"ds_read_b128 v[{vv+4}:{vv+7}], {self.vV} offset:{base + (2*t+1)*VFR}"))
                ktok, vtok = [], []
                for k, m in enumerate((q0, q1, p0, p1)):
                    a.i(m)
                    if k < len(rd):
                        tk = a.lds(rd[k][1]); (ktok if rd[k][0] == 'K' else vtok).append(tk)
                    egroup('a', k)
                khn = self.KH[((t + 1) >> 1) % 2] + 2 * ((t + 1) & 1)
                q0, q1 = self.qk('a', self.KL[(t + 1) % 2], khn)
                p0, p1 = self.pv('a', self.VV[t % 2])
                a.wait(lg=ktok)
                for k, m in enumerate((q0, q1, p0, p1)):
                    if k == 2: a.wait(lg=vtok)
                    a.i(m)
                    if t == 0 and k == 3:
                        a.lds(f"ds_read_b32 {self.vCnt}, {self.A_CR} offset:{C_ARR}")
                    if t == 1 and k == 0:
                        Lok = a.newlabel("arr")
                        a.i(f"v_cmp_gt_u32 vcc, s78, {self.vCnt}")
                        a.i(f"s_cbranch_vccz {Lok}")
                        if self.o.get('prof'): a.i("s_add_u32 s52, s52, 1")
                        keep = list(a.lg)
                        self.lds_spin_ge(C_ARR, "s78", self.vCnt, self.A_CR, sleep=0)
                        a.lg = keep
                        a.label(Lok)
                    if t == 1 and k == 1:
                        if self.o.get('prof') == 3:
                            a.i("s_memtime s[90:91]"); a.i("s_waitcnt lgkmcnt(0)")
                        if slot == 0: self.ring_dma(3)
                        else:
                            Lnd = a.newlabel("nd")
                            a.i("s_cmp_eq_u32 s74, 3")
                            a.i(f"s_cbranch_scc1 {Lnd}")
                            self.ring_dma((slot + 3) % 4)
                            a.label(Lnd)
                        if self.o.get('prof') == 3:
                            a.i("s_memtime s[92:93]"); a.i("s_waitcnt lgkmcnt(0)")
                            a.i("s_sub_u32 s92, s92, s90"); a.i("s_add_u32 s45, s45, s92")
                        a.i("s_add_u32 s78, s78, 4")
                    egroup('b', k)
        if self.o.get('prof') == 1:
            a.i("s_memtime s[56:57]" if self.o.get('qcyc') else "s_memrealtime s[56:57]")
            a.i("s_waitcnt lgkmcnt(0)")
            for k in range(3):
                a.i(f"s_cmp_eq_u32 s74, {k}")
                a.i(f"s_cselect_b32 s{53+k if k < 2 else 43}, s56, s{53+k if k < 2 else 43}")
        a.i("s_add_u32 s74, s74, 1")
        a.i("s_cmp_lt_u32 s74, 4")
        self.loop_end = len(a.lines)
        a.i(f"s_cbranch_scc1 {L}")
        for m in self.pv('b', self.VV[1]): a.i(m)
        a.vm = []; a.lg = []

    def o_addr(self):
        a = self.a
        a.i(f"s_lshl_b32 s62, {sRB}, 1")
        a.i("s_mul_i32 s62, s62, 40960")
        a.i(f"s_add_u32 s80, s62, {WS_O}")
        a.i(f"s_mul_i32 s63, {sCG}, 5")
        a.i(f"s_add_u32 s81, s63, {sWR}")
        a.i("s_lshl_b32 s81, s81, 10")
        a.i("s_add_u32 s63, s63, 4")
        a.i("s_lshl_b32 s63, s63, 10")
        a.i(f"s_lshr_b32 s65, {sWR}, 1")
        a.i("s_lshl_b32 s65, s65, 9")
        a.i("s_add_u32 s63, s63, s65")
        a.i(f"s_and_b32 s65, {sWR}, 1")
        a.i("s_lshl_b32 s65, s65, 3")
        a.i("s_add_u32 s82, s63, s65")

    def o_epilogue(self):
        a = self.a
        a.c("---- normalise O, publish ----")
        a.i("v_cmp_gt_u32 vcc, 32, v0")
        a.nop(2)
        for mt, u in enumerate("ab"):
            O = self.O_[u]
            a.i(f"v_cndmask_b32 v216, v{O+8}, v{O+12}, vcc")
            a.i("v_rcp_f32 v216, v216")
            a.nop(1)
            a.i("v_mov_b32 v217, v216")
            for j in range(0, 12, 2): a.i(f"v_pk_mul_f32 v[{O+j}:{O+j+1}], v[{O+j}:{O+j+1}], v[216:217]")
            P = self.P_[u]
            for j in range(6): a.i(f"v_cvt_pk_bf16_f32 v{P+j}, v{O+2*j}, v{O+2*j+1}")
            a.i(f"s_add_u32 s68, s80, {mt*40960}")
            a.i("s_add_u32 s69, s68, s81")
            a.vmem(f"buffer_store_dwordx4 v[{P}:{P+3}], {self.A_L16}, {SRD_WS}, s69 offen sc1")
            a.i("s_add_u32 s69, s68, s82")
            a.i("s_mov_b32 exec_lo, -1"); a.i("s_mov_b32 exec_hi, 0")
            a.vmem(f"buffer_store_dwordx2 v[{P+4}:{P+5}], {self.A_L16}, {SRD_WS}, s69 offen sc1")
            a.i("s_mov_b64 exec, -1")
        a.wait(vm='all')
        a.lds(f"ds_add_rtn_u32 v218, {self.A_CW}, {self.A_ONE} offset:{C_OD}")
        a.wait(lg='all')
        a.i("v_readfirstlane_b32 s62, v218")
        a.nop(1)
        a.i("s_cmp_lg_u32 s62, 3")
        a.i("s_cbranch_scc1 L_AEND")
        a.i(f"s_lshl_b32 s62, {sRB}, 7")
        a.i(f"s_lshl_b32 s63, {sCG}, 2")
        a.i("s_add_u32 s62, s62, s63")
        a.i(f"s_add_u32 s62, s62, {WS_FO}")
        a.i(f"v_mov_b32 v217, {sN}")
        a.i("v_mov_b32 v216, 0")
        a.i("s_mov_b64 exec, 1")
        a.i(f"buffer_store_dword v217, v216, {SRD_WS}, s62 offen sc1")
        a.i("s_mov_b64 exec, -1")
        a.label("L_AEND")
        self.stamp(9)
        self.stamp(9, lvl=3)
        self.stamp_flush()
        a.i("s_branch L_END")

    def role_a(self):
        a = self.a
        a.label("L_ROLE_A")
        a.i(f"s_setprio {self.o.get('prioQ', 2)}")
        dt = None
        if self.o.get('noQ'):
            a.i("s_waitcnt vmcnt(0)")
            self.lds_count(C_XND, self.A_CW, self.A_ONE)
            for r in range(16, 48): a.i(f"v_mov_b32 v{r}, 0")
        else: self.q_proj()
        self.stamp(10, lvl=2)
        self.stamp(4)
        self.q_epilogue()
        if self.o.get('dump') == 'q':
            self.dump_regs(128, 12, 0, self.A_L16)
        self.att_init_regs()
        self.o_addr()
        a.i(f"s_setprio {self.o.get('prioA', 2)}")
        self.kv_wait()
        self.stamp(5)
        pre = self.shift_setup()
        self.stamp(6)
        if not self.o.get('noatt'): self.attention(pre)
        else:
            self.loop_start = self.loop_end = len(a.lines)
            a.i("s_waitcnt vmcnt(0)")
        self.stamp(11, True)
        self.stamp(8)
        if self.o.get('dump') == 'o':
            a.nop(16)
            self.dump_regs(48, 32, 0, self.A_L16)
        self.o_epilogue()

    vD1a, vD1b, vTRa, vTRb = "v230", "v231", "v232", "v233"
    B_XA, B_XB = 234, 238
    B_CW, B_CR, B_ONE, B_L16 = "v242", "v243", "v244", "v245"
    B_TRK = "v252"
    B_JA, B_JB = 112, None
    vWa, vWb, vWc, vMa, vMb, vMc = "v220", "v221", "v222", "v223", "v224", "v225"
    vRa, vRb, vRc, vPW, vPR0, vPR1, vXO, vH0 = "v8", "v9", "v10", "v11", "v12", "v13", "v14", "v15"
    vH1 = "v250"
    vPR2, vPR3 = "v254", "v255"

    def pair_dma_addr(self, va, vb, pitch, col_sgpr, comp_rows=8):
        a = self.a
        a.i("v_lshrrev_b32 v246, 3, v0")
        a.i("v_bfe_u32 v247, v0, 4, 1")
        a.i("v_lshlrev_b32 v247, 2, v247")
        a.i("v_and_b32 v248, 7, v0")
        a.i("v_xor_b32 v247, v247, v248")
        a.i(f"v_mul_u32_u24 v246, {pitch}, v246")
        a.i(f"v_lshl_add_u32 {va}, v247, 4, v246")
        a.i(f"v_add_u32 {va}, {col_sgpr}, {va}")
        a.i(f"v_add_u32 {vb}, {comp_rows*pitch - 1024}, {va}")

    def pair_tr_addr(self, va, vb, hmul, base_sgpr):
        a = self.a
        a.i("v_lshrrev_b32 v246, 5, v0")
        a.i(f"v_mul_u32_u24 v246, {hmul}, v246")
        a.i("v_bfe_u32 v247, v0, 2, 2")
        a.i("v_add_u32 v246, v246, v247")
        a.i("v_lshlrev_b32 v246, 7, v246")
        a.i("v_bfe_u32 v247, v0, 4, 1")
        a.i("v_lshlrev_b32 v247, 1, v247")
        a.i("v_bfe_u32 v248, v0, 1, 1")
        a.i("v_add_u32 v247, v247, v248")
        a.i("v_bfe_u32 v248, v0, 3, 1")
        a.i("v_lshlrev_b32 v248, 2, v248")
        a.i("v_xor_b32 v247, v247, v248")
        a.i("v_lshl_add_u32 v246, v247, 4, v246")
        a.i("v_and_b32 v247, 1, v0")
        a.i("v_lshl_add_u32 v246, v247, 3, v246")
        a.i(f"v_add_u32 {va}, {base_sgpr}, v246")
        a.i(f"v_xor_b32 {vb}, 64, v246")
        a.i(f"v_add_u32 {vb}, {base_sgpr}, {vb}")

    def w1_dma(self, ks, part=None):
        a = self.a
        t = []
        if part in (None, 0):
            a.i(f"s_add_u32 m0, s66, {(ks % NS1) * 2048}")
            if part is None: a.nop(1)
        if part in (None, 1):
            t.append(a.vmem(f"buffer_load_dwordx4 {self.vD1a}, {SRD_W1}, s67 offen lds"))
        if part in (None, 2):
            t.append(a.vmem(f"buffer_load_dwordx4 {self.vD1b}, {SRD_W1}, s67 offen offset:1024 lds"))
            self.rot_next(16 * 3456, "s67", ks)
        return t

    def ffn1(self):
        a = self.a
        a.c("---- FFN1 (transposed): h^T tiles, 2 n-tiles x 2 m-tiles per wave ----")
        acc = lambda t, m: 16 + 32 * t + 16 * m
        W = lambda s, t: 80 + 8 * s + 4 * t
        X = lambda s, m: 96 + 8 * s + 4 * m
        d1 = NS1
        dm = dict(self.w1tok); ta = {}; tb = {}
        def rd_wa(ks):
            a.wait(vm=dm[ks])
            s = ks % 2; sl = (ks % NS1) * 2048
            ta[ks] = [a.lds(f"ds_read_b64_tr_b16 v[{W(s,0)}:{W(s,0)+1}], {self.vTRa} offset:{sl}"),
                      a.lds(f"ds_read_b64_tr_b16 v[{W(s,0)+2}:{W(s,0)+3}], {self.vTRa} offset:{sl+512}")]
        def rd_x(ks):
            s = ks % 2
            self.rot_xn_seg(self.B_XA, self.B_XB, "s69", ks)
            ta[ks].append(a.lds(f"ds_read_b128 v[{X(s,0)}:{X(s,0)+3}], v{self.B_XA + ks % 4} offset:{self.seg_imm(ks)}"))
            ta[ks].append(a.lds(f"ds_read_b128 v[{X(s,1)}:{X(s,1)+3}], v{self.B_XB + ks % 4} offset:{self.seg_imm(ks)}"))
        def rd_wb(ks):
            s = ks % 2; sl = (ks % NS1) * 2048
            tb[ks] = [a.lds(f"ds_read_b64_tr_b16 v[{W(s,1)}:{W(s,1)+1}], {self.vTRb} offset:{sl}"),
                      a.lds(f"ds_read_b64_tr_b16 v[{W(s,1)+2}:{W(s,1)+3}], {self.vTRb} offset:{sl+512}")]
        def mf(ks, t, m):
            if self.o.get('abl') == 'nomf1': return
            s = ks % 2; A = acc(t, m)
            C = "0" if ks == 0 else f"v[{A}:{A+15}]"
            a.i(f"v_mfma_f32_32x32x16_bf16 v[{A}:{A+15}], v[{W(s,t)}:{W(s,t)+3}], v[{X(s,m)}:{X(s,m)+3}], {C}")
        rd_wa(0); rd_x(0); rd_wb(0)
        for ks in range(40):
            nx = ks + 1 < 40; dd = ks + d1 < 40
            if ks in (0, 10, 20, 30): self.stamp(6 + ks // 10, lvl=2)
            a.wait(lg=ta[ks])
            mf(ks, 0, 0)
            if nx: rd_wa(ks + 1)
            mf(ks, 0, 1)
            a.wait(lg=tb[ks])
            if nx: rd_x(ks + 1)
            if dd: self.w1_dma(ks + d1, 0)
            mf(ks, 1, 0)
            if nx: rd_wb(ks + 1)
            if dd: dm[ks + d1] = self.w1_dma(ks + d1, 1)
            mf(ks, 1, 1)
            if dd: dm[ks + d1] += self.w1_dma(ks + d1, 2)
        self.lds_count(C_XND, self.B_CW, self.B_ONE)
        if self.o.get('pf', 0): self.l2_prefetch(SRD_W2, 2211840, 3 if self.o.get('pfstride', 128) == 128 else 5, "v246", "v251", sWR, 4)
        self.stamp(10, lvl=2)
        self.stamp(3)
        a.i(f"s_setprio {self.o.get('prioBv', 3)}")
        a.i(f"s_lshl_b32 s62, {sRB}, 1")
        a.i("s_mul_i32 s62, s62, 110592")
        a.i("s_lshl_b32 s63, s68, 11")
        a.i("s_add_u32 s62, s62, s63")
        a.i(f"s_add_u32 s62, s62, {WS_H}")
        a.nop(6)
        for t in range(2):
            for m in range(2):
                A = acc(t, m); R = 80 + 8 * m + 16 * (t & 1)
                for j in range(8): a.i(f"v_cvt_pk_bf16_f32 v{R+j}, v{A+2*j}, v{A+2*j+1}")
                for j in range(8): a.i(f"v_pk_max_i16 v{R+j}, v{R+j}, 0")
                a.i(f"s_add_u32 s63, s62, {m*110592 + t*2048}")
                a.vmem(f"buffer_store_dwordx4 v[{R}:{R+3}], {self.B_L16}, {SRD_WS}, s63 offen sc1")
                a.vmem(f"buffer_store_dwordx4 v[{R+4}:{R+7}], {self.B_L16}, {SRD_WS}, s63 offen offset:1024 sc1")
        a.i(f"s_setprio {self.o.get('prioB', 0)}")

    def h_publish(self):
        a = self.a
        a.i("s_waitcnt vmcnt(0)")
        a.vm = []
        a.lds(f"ds_add_rtn_u32 v246, {self.B_CW}, {self.B_ONE} offset:{C_HD}")
        a.wait(lg='all')
        a.i("v_readfirstlane_b32 s62, v246")
        Lnf = a.newlabel("hnf")
        a.nop(1)
        a.i("s_cmp_lg_u32 s62, 3")
        a.i(f"s_cbranch_scc1 {Lnf}")
        a.i(f"s_lshl_b32 s62, {sRB}, 7")
        a.i(f"s_lshl_b32 s63, {sCG}, 2")
        a.i("s_add_u32 s62, s62, s63")
        a.i(f"s_add_u32 s62, s62, {WS_FH}")
        a.i(f"v_mov_b32 v247, {sN}")
        a.i("v_mov_b32 v246, 0")
        a.i("s_mov_b64 exec, 1")
        a.i(f"buffer_store_dword v247, v246, {SRD_WS}, s62 offen sc1")
        a.i("s_mov_b64 exec, -1")
        a.label(Lnf)

    def out_tiles_setup(self):
        a = self.a
        a.i(f"s_lshr_b32 s62, {sCG}, 1")
        a.i("s_and_b32 s64, s62, 1")
        a.i("s_mul_i32 s62, s62, 5")
        a.i(f"s_and_b32 s82, {sCG}, 1")
        a.i("s_lshl_b32 s63, s82, 1")
        a.i("s_add_u32 s80, s62, s63")
        a.i("s_add_u32 s80, s80, s64")
        a.i("s_lshl_b32 s80, s80, 6")
        a.i("s_xor_b32 s64, s64, 1")
        a.i("s_lshl_b32 s64, s64, 2")
        a.i("s_add_u32 s81, s62, s64")
        a.i("s_lshl_b32 s81, s81, 6")
        a.i(f"s_mul_i32 s83, {sWR}, {BREG}")
        self.pair_dma_addr(self.vWa, self.vWb, 1280, "s80")
        a.i("v_lshrrev_b32 v246, 2, v0")
        a.i("v_mul_u32_u24 v246, 1280, v246")
        a.i("v_and_b32 v247, 3, v0")
        a.i(f"v_lshl_add_u32 {self.vWc}, v247, 4, v246")
        a.i(f"v_add_u32 {self.vWc}, s81, {self.vWc}")
        self.pair_tr_addr(self.vRa, self.vRb, 4, "s83")
        a.i("v_lshrrev_b32 v246, 5, v0")
        a.i("v_lshlrev_b32 v246, 2, v246")
        a.i("v_bfe_u32 v247, v0, 2, 2")
        a.i("v_add_u32 v246, v246, v247")
        a.i("v_lshlrev_b32 v246, 6, v246")
        a.i("v_bfe_u32 v247, v0, 4, 1")
        a.i("v_lshl_add_u32 v246, v247, 5, v246")
        a.i("v_and_b32 v247, 3, v0")
        a.i("v_lshl_add_u32 v246, v247, 3, v246")
        a.i("s_add_u32 s62, s83, 2048")
        a.i(f"v_add_u32 {self.vRc}, s62, v246")
        a.i(f"v_add_u32 {self.vPW}, s83, {self.B_L16}")
        a.i(f"s_lshl_b32 s62, {sWR}, 12")
        a.i(f"v_add_u32 {self.vPR0}, s62, {self.B_L16}")
        a.i(f"v_add_u32 {self.vPR1}, {2*BREG}, {self.vPR0}")
        a.i(f"s_lshl_b32 s62, {sWR}, 10")
        a.i("s_add_u32 s62, s62, 16384")
        a.i(f"v_add_u32 {self.vPR2}, s62, {self.B_L16}")
        a.i(f"v_add_u32 {self.vPR3}, {2*BREG}, {self.vPR2}")

    def w3_dma(self, srd, slot, soff_sgpr, va, vb, vc):
        a = self.a
        a.i(f"s_add_u32 m0, s83, {slot*3072}")
        a.nop(1)
        t = [a.vmem(f"buffer_load_dwordx4 {va}, {srd}, {soff_sgpr} offen lds"),
             a.vmem(f"buffer_load_dwordx4 {vb}, {srd}, {soff_sgpr} offen offset:1024 lds")]
        a.i(f"s_add_u32 m0, s83, {slot*3072 + 2048}")
        a.nop(1)
        t.append(a.vmem(f"buffer_load_dwordx4 {vc}, {srd}, {soff_sgpr} offen lds"))
        return t

    def w3_reads(self, slot, Wb, part=None):
        a = self.a; t = []
        sl = slot * 3072
        if isinstance(part, tuple):
            p = part[1]
            va, o2 = ((self.vRa, 1024), (self.vRb, 1024), (self.vRc, 512))[p]
            t.append(a.lds(f"ds_read_b64_tr_b16 v[{Wb+4*p}:{Wb+4*p+1}], {va} offset:{sl}"))
            t.append(a.lds(f"ds_read_b64_tr_b16 v[{Wb+4*p+2}:{Wb+4*p+3}], {va} offset:{sl+o2}"))
            return t
        if part in (None, 0):
            t.append(a.lds(f"ds_read_b64_tr_b16 v[{Wb}:{Wb+1}], {self.vRa} offset:{sl}"))
            t.append(a.lds(f"ds_read_b64_tr_b16 v[{Wb+2}:{Wb+3}], {self.vRa} offset:{sl+1024}"))
            t.append(a.lds(f"ds_read_b64_tr_b16 v[{Wb+4}:{Wb+5}], {self.vRb} offset:{sl}"))
        if part in (None, 1):
            t.append(a.lds(f"ds_read_b64_tr_b16 v[{Wb+6}:{Wb+7}], {self.vRb} offset:{sl+1024}"))
            t.append(a.lds(f"ds_read_b64_tr_b16 v[{Wb+8}:{Wb+9}], {self.vRc} offset:{sl}"))
            t.append(a.lds(f"ds_read_b64_tr_b16 v[{Wb+10}:{Wb+11}], {self.vRc} offset:{sl+512}"))
        return t

    def five_mfma(self, Wb, H0, H1, first, fill):
        a = self.a
        spec = [(0, 0, H0), (1, 0, H1), (2, 1, H0), (3, 1, H1), (4, 2, H0)]
        for n, (tau, nt, Hb) in enumerate(spec):
            A = 16 + 16 * tau
            C = "0" if first else f"v[{A}:{A+15}]"
            if not (self.o.get('abl') == 'nomf2' and getattr(self, 'in_ffn2', False)):
                a.i(f"v_mfma_f32_32x32x16_bf16 v[{A}:{A+15}], v[{Wb+4*nt}:{Wb+4*nt+3}], v[{Hb}:{Hb+3}], {C}")
            if n < len(fill) and fill[n]: fill[n]()

    def reduce80(self, dst, bar_target):
        a = self.a
        a.nop(8)
        for g in range(20):
            if len(a.lg) >= 14: a.wait(lg=a.lg[6])
            a.lds(f"ds_write_b128 {self.vPW}, v[{16+4*g}:{19+4*g}] offset:{g*1024}")
        a.wait(lg='all')
        self.lds_count(C_BBAR, self.B_CW, self.B_ONE)
        self.lds_spin_ge(C_BBAR, bar_target, "v246", self.B_CR, sleep=0)
        tk = {}
        def rd(src):
            va = self.vPR0 if src < 2 else self.vPR1
            vb = self.vPR2 if src < 2 else self.vPR3
            tk[src] = [a.lds(f"ds_read_b128 v[{16+20*src+4*e}:{19+20*src+4*e}], {va} offset:{(src&1)*BREG + e*1024}") for e in range(4)]
            tk[src].append(a.lds(f"ds_read_b128 v[{32+20*src}:{35+20*src}], {vb} offset:{(src&1)*BREG}"))
        rd(0); rd(1); rd(2)
        a.wait(lg=tk[1])
        rd(3)
        pk = lambda d, x, y: a.i(f"v_pk_add_f32 v[{d}:{d+1}], v[{x}:{x+1}], v[{y}:{y+1}]")
        for j in range(0, 20, 2): pk(dst + j, 16 + j, 36 + j)
        a.wait(lg=tk[2])
        for j in range(0, 20, 2): pk(dst + j, dst + j, 56 + j)
        a.wait(lg='all')
        for j in range(0, 20, 2): pk(dst + j, dst + j, 76 + j)

    def ffn2(self):
        a = self.a
        a.c("---- FFN2 (transposed): 5 output tiles, split-K over the 4 B waves ----")
        if self.o.get('touch', 0):
            a.vmem(f"buffer_load_dword v251, v227, {SRD_W2}, s80 offen")
            a.vmem(f"buffer_load_dword v254, v227, {SRD_W2}, s81 offen")
        self.lds_spin_ge(C_XND, 8, "v246", self.B_CR)
        NS = 9; PF = self.o.get('d2', 4); HD = self.o.get('dh', 3) + 1
        a.i(f"s_mul_i32 s84, {sWR}, {27*20480}")
        if self.o.get('xrot', 0):
            a.i(f"s_lshr_b32 s62, {sRB}, 3")
            a.i("s_lshl_b32 s62, s62, 1")
            a.i(f"s_add_u32 s62, s62, {sRB}")
            a.i("s_and_b32 s62, s62, 7")
        else:
            a.i(f"s_and_b32 s62, {sRB}, 7")
        a.i("s_mul_i32 s62, s62, 3")
        a.i(f"s_and_b32 s63, {sCG}, 3")
        a.i("s_mul_i32 s63, s63, 7")
        a.i("s_add_u32 s62, s62, s63")
        a.i("s_cmp_ge_u32 s62, 27")
        a.i("s_cselect_b32 s63, 27, 0")
        a.i("s_sub_u32 s87, s62, s63")
        if not self.o.get('rot', 1): a.i("s_mov_b32 s87, 0")
        a.i("s_mul_i32 s95, s87, 20480")
        dm = {}
        a.i("s_add_u32 s95, s95, s84")
        a.i(f"s_add_u32 s93, s84, {27*20480}")
        def dma(kk, part=None):
            slot = kk % NS
            if part in (None, 0):
                a.i(f"s_add_u32 m0, s83, {slot*3072}")
                if part is None: a.nop(1)
            if part in (None, 1):
                dm[kk] = [a.vmem(f"buffer_load_dwordx4 {self.vWa}, {SRD_W2}, s95 offen lds")]
            if part in (None, 2):
                dm[kk].append(a.vmem(f"buffer_load_dwordx4 {self.vWb}, {SRD_W2}, s95 offen offset:1024 lds"))
                a.i(f"s_add_u32 m0, s83, {slot*3072 + 2048}")
                if part is None: a.nop(1)
            if part in (None, 3):
                dm[kk].append(a.vmem(f"buffer_load_dwordx4 {self.vWc}, {SRD_W2}, s95 offen lds"))
                a.i("s_add_u32 s95, s95, 20480")
                a.i("s_cmp_eq_u32 s95, s93")
                a.i("s_cselect_b32 s95, s84, s95")
        for kk in range(PF): dma(kk)
        self.stamp(5)
        self.one_wave_poll(WS_FH, C_HRDY, sleep=8)
        Lnl = a.newlabel("nolead")
        a.i(f"s_lshl_b32 s62, {sCG}, 2")
        a.i(f"s_add_u32 s62, s62, {sWR}")
        a.i("s_cmp_lg_u32 s62, 0")
        a.i(f"s_cbranch_scc1 {Lnl}")
        a.i("v_mov_b32 v246, 0")
        a.i("v_mov_b32 v247, 1")
        a.i("s_mov_b64 exec, 1")
        a.i(f"global_atomic_add v248, v246, v247, {sDBG} sc0 sc1")
        a.i("s_waitcnt vmcnt(0)")
        a.i("v_readfirstlane_b32 s62, v248")
        a.i("s_mov_b64 exec, -1")
        a.nop(1)
        a.i("s_cmp_lg_u32 s62, 31")
        a.i(f"s_cbranch_scc1 {Lnl}")
        a.i(f"v_mov_b32 v247, {sN}")
        a.i(f"v_mov_b32 v246, {WS_X}")
        a.i("s_mov_b32 s62, 0")
        a.i("s_mov_b64 exec, 1")
        a.i(f"buffer_store_dword v247, v246, {SRD_WS}, s62 offen sc1")
        a.i("s_mov_b64 exec, -1")
        a.label(Lnl)
        self.stamp(6)
        if self.o.get('pf', 0):
            a.i("v_min_u32 v246, 53, v0")
            a.i("v_lshlrev_b32 v246, 7, v246")
            a.i(f"s_mul_i32 s62, {sRB}, 221184")
            a.i(f"s_lshl_b32 s63, {sCG}, 2")
            a.i(f"s_add_u32 s63, s63, {sWR}")
            a.i(f"s_mul_i32 s63, s63, {54*128}")
            a.i("s_add_u32 s62, s62, s63")
            a.i(f"s_add_u32 s62, s62, {WS_H}")
            a.vmem(f"buffer_load_dword v251, v246, {SRD_WS}, s62 offen sc1")
            self.l2_prefetch(SRD_WO, 819200, 1 if self.o.get('pfstride', 128) == 128 else 2, "v246", "v253", sWR, 4)
        H = lambda kk, s: 120 + 8 * (kk % HD) + 4 * s
        hl = {}
        a.i("s_lshl_b32 s96, s87, 10")
        def hload(kk, part=None):
            if part in (None, 0):
                hl[kk] = [a.vmem(f"buffer_load_dwordx4 v[{H(kk,0)}:{H(kk,0)+3}], {self.vH0}, {SRD_WS}, s96 offen sc1")]
            if part in (None, 1):
                hl[kk].append(a.vmem(f"buffer_load_dwordx4 v[{H(kk,1)}:{H(kk,1)+3}], {self.vH1}, {SRD_WS}, s96 offen sc1"))
                a.i("s_add_u32 s96, s96, 1024")
                a.i(f"s_cmp_eq_u32 s96, {27*1024}")
                a.i("s_cselect_b32 s96, 0, s96")
        for kk in range(HD - 1): hload(kk)
        Wb = lambda kk: 96 + 12 * (kk % 2)
        a.wait(vm=dm[0])
        rt = {0: self.w3_reads(0, Wb(0))}
        self.in_ffn2 = True
        for kk in range(27):
            a.wait(lg=rt[kk], vm=hl[kk])
            nx = kk + 1 < 27; dd = kk + PF < 27; hh = kk + HD - 1 < 27
            def rd(p, kk=kk):
                if p == 0:
                    a.wait(vm=dm[kk + 1]); rt[kk + 1] = []
                rt[kk + 1] += self.w3_reads((kk + 1) % NS, Wb(kk + 1), ('t', p))
            def g0(kk=kk):
                if nx: rd(0)
                if hh: hload(kk + HD - 1, 0)
            def g1(kk=kk):
                if nx: rd(1)
                if hh: hload(kk + HD - 1, 1)
                if dd: dma(kk + PF, 0)
            def g2(kk=kk):
                if nx: rd(2)
                if dd: dma(kk + PF, 1)
            def g3(kk=kk):
                if dd: dma(kk + PF, 2)
            def g4(kk=kk):
                if dd: dma(kk + PF, 3)
            self.five_mfma(Wb(kk), H(kk, 0), H(kk, 1), kk == 0, [g0, g1, g2, g3, g4])
        self.in_ffn2 = False
        self.stamp(7)
        if self.o.get('touch', 0):
            a.i("s_mov_b32 s62, 0")
            a.vmem(f"buffer_load_dword v251, v228, {SRD_WO}, s62 offen")
        a.i(f"s_setprio {self.o.get('prioBv', 3)}")
        self.reduce80(200, 4)
        a.i(f"v_mov_b32 v40, {hx(f2u(-1.4426950408889634))}")
        a.i("v_mov_b32 v41, v40")
        a.i("v_mov_b32 v42, 1.0")
        a.i("v_mov_b32 v43, 1.0")
        for j in range(0, 20, 2): a.i(f"v_pk_mul_f32 v[{16+j}:{17+j}], v[{200+j}:{201+j}], v[40:41]")
        for j in range(20): a.i(f"v_exp_f32 v{16+j}, v{16+j}")
        for j in range(0, 20, 2): a.i(f"v_pk_add_f32 v[{16+j}:{17+j}], v[{16+j}:{17+j}], v[42:43]")
        for j in range(20): a.i(f"v_rcp_f32 v{16+j}, v{16+j}")
        for j in range(0, 20, 2): a.i(f"v_pk_mul_f32 v[{200+j}:{201+j}], v[{200+j}:{201+j}], v[{16+j}:{17+j}]")
        a.i(f"s_setprio {self.o.get('prioB', 0)}")
        self.lds_count(C_BBAR, self.B_CW, self.B_ONE)
        self.lds_spin_ge(C_BBAR, 8, "v246", self.B_CR)

    def out_mixed_addr(self):
        a = self.a
        a.i("v_lshrrev_b32 v246, 3, v0")
        a.i("v_lshrrev_b32 v247, 2, v246")
        a.i("v_mul_u32_u24 v247, 40, v247")
        a.i("v_and_b32 v248, 3, v246")
        a.i("v_add3_u32 v247, v247, v248, 16")
        a.i("v_mul_u32_u24 v247, 1280, v247")
        a.i("v_bfe_u32 v248, v0, 4, 1")
        a.i("v_lshlrev_b32 v248, 2, v248")
        a.i("v_and_b32 v249, 7, v0")
        a.i("v_xor_b32 v248, v248, v249")
        a.i(f"v_lshl_add_u32 {self.vMa}, v248, 4, v247")
        a.i(f"v_add_u32 {self.vMa}, s80, {self.vMa}")
        a.i(f"v_add_u32 {self.vMb}, {20*1280 - 1024}, {self.vMa}")
        a.i("v_lshrrev_b32 v246, 2, v0")
        a.i("v_bfe_u32 v247, v246, 2, 1")
        a.i("v_lshlrev_b32 v247, 1, v247")
        a.i("v_lshrrev_b32 v248, 3, v246")
        a.i("v_add_u32 v247, v247, v248")
        a.i("v_mul_u32_u24 v247, 20, v247")
        a.i("v_and_b32 v248, 3, v246")
        a.i("v_add3_u32 v247, v247, v248, 16")
        a.i("v_mul_u32_u24 v247, 1280, v247")
        a.i("v_and_b32 v248, 3, v0")
        a.i(f"v_lshl_add_u32 {self.vMc}, v248, 4, v247")
        a.i(f"v_add_u32 {self.vMc}, s81, {self.vMc}")
        a.i("v_and_b32 v246, 31, v0")
        a.i("v_mul_u32_u24 v246, 1280, v246")
        a.i("v_lshrrev_b32 v247, 5, v0")
        a.i(f"v_lshl_add_u32 {self.vXO}, v247, 3, v246")

    def ffn2_addr(self):
        a = self.a
        a.i(f"s_lshl_b32 s62, {sRB}, 1")
        a.i("s_add_u32 s63, s62, s82")
        a.i("s_xor_b32 s64, s82, 1")
        a.i("s_add_u32 s64, s62, s64")
        a.i("s_mul_i32 s85, s63, 110592")
        a.i("s_mul_i32 s86, s64, 110592")
        a.i(f"s_mul_i32 s62, {sWR}, {27*1024}")
        a.i(f"s_add_u32 s62, s62, {WS_H}")
        a.i("s_add_u32 s85, s85, s62")
        a.i("s_add_u32 s86, s86, s62")
        a.i(f"v_add_u32 {self.vH0}, s85, {self.B_L16}")
        a.i(f"v_add_u32 {self.vH1}, s86, {self.B_L16}")

    def out_proj(self):
        a = self.a
        a.c("---- output projection + final combine ----")
        dm = {}
        a.i(f"s_lshl_b32 s62, {sWR}, 1")
        a.i("s_add_u32 s93, s62, s82")
        a.i("s_xor_b32 s63, s82, 1")
        a.i("s_add_u32 s94, s62, s63")
        a.i(f"s_mul_i32 s84, s93, {80*1280}")
        a.i(f"s_mul_i32 s87, s94, {80*1280}")
        def wo_dma(e):
            cgo, jj = e // 5, e % 5
            base = "s84" if cgo == 0 else "s87"
            if jj < 4:
                a.i(f"s_add_u32 s67, {base}, {jj*20*1280}")
                dm[e] = self.w3_dma(SRD_WO, e % 9, "s67", self.vWa, self.vWb, self.vWc)
            else:
                dm[e] = self.w3_dma(SRD_WO, e % 9, base, self.vMa, self.vMb, self.vMc)
        for e in range(9):
            wo_dma(e)
            dw = self.o.get('dw', 2)
            if e - dw >= 0: a.wait(vm=dm[e - dw])
        a.wait(vm=dm[8])
        rt0 = self.w3_reads(0, 96)
        a.wait(lg=rt0)
        wo_dma(9)
        a.wait(vm=dm[9])
        xt = []
        a.i(f"s_lshr_b32 s62, {sWR}, 1")
        a.i("s_lshl_b32 s62, s62, 6")
        a.i("s_add_u32 s62, s62, s80")
        a.i(f"s_and_b32 s63, {sWR}, 1")
        a.i("s_xor_b32 s63, s63, s82")
        a.i(f"s_lshl_b32 s64, {sRB}, 1")
        a.i("s_add_u32 s63, s63, s64")
        a.i("s_mul_i32 s63, s63, 40960")
        a.i("s_add_u32 s88, s62, s63")
        a.i("s_add_u32 s64, s64, s82")
        a.i("s_mul_i32 s64, s64, 40960")
        a.i(f"s_lshl_b32 s62, {sWR}, 4")
        a.i("s_add_u32 s64, s64, s62")
        a.i("s_add_u32 s89, s64, s81")
        for e in range(4):
            xt.append(a.vmem(f"buffer_load_dwordx2 v[{220+2*e}:{221+2*e}], {self.vXO}, {SRD_X}, s88 offen offset:{16*e}"))
        xt.append(a.vmem(f"buffer_load_dwordx2 v[228:229], {self.vXO}, {SRD_X}, s89 offen"))
        if self.o.get('tlb', 0):
            a.i(f"s_mul_i32 s62, {sRB}, 81920")
            a.i(f"s_mul_i32 s63, {sWR}, 20480")
            a.i("s_add_u32 s62, s62, s63")
            a.i(f"s_add_u32 s62, s62, {WS_O}")
            a.i("v_mov_b32 v246, 0")
            a.vmem(f"buffer_load_dword v251, v246, {SRD_WS}, s62 offen sc1")
            if self.o.get('tlb') == 2:
                a.vmem(f"buffer_load_dword v252, v246, {SRD_OUT}, s88 offen")
        self.stamp(9)
        self.one_wave_poll(WS_FO, C_ORDY, pre=lambda: (self.lds_spin_ge(C_ARR, 68, "v246", self.B_CR, sleep=8), self.lds_spin_ge(C_OD, 4, "v246", self.B_CR, sleep=1)), sleep=1, rsleep=self.o.get('rs', 3))
        self.stamp(10)
        a.i(f"s_lshl_b32 s62, {sRB}, 1")
        a.i("s_add_u32 s63, s62, s82")
        a.i("s_xor_b32 s64, s82, 1")
        a.i("s_add_u32 s64, s62, s64")
        a.i("s_mul_i32 s85, s63, 40960")
        a.i("s_mul_i32 s86, s64, 40960")
        a.i(f"s_add_u32 s85, s85, {WS_O}")
        a.i(f"s_add_u32 s86, s86, {WS_O}")
        a.i("s_mul_i32 s93, s93, 5120")
        a.i("s_mul_i32 s94, s94, 5120")
        ol = {}
        H = lambda e, s: 120 + 8 * e + 4 * s
        for e in range(10):
            grp = "s93" if e < 5 else "s94"
            a.i(f"s_add_u32 s62, s85, {grp}")
            t0 = a.vmem(f"buffer_load_dwordx4 v[{H(e,0)}:{H(e,0)+3}], {self.B_L16}, {SRD_WS}, s62 offen offset:{(e%5)*1024 if (e%5) < 4 else 0} sc1") if (e % 5) < 4 else None
            if t0 is None:
                a.i("s_add_u32 s62, s62, 4096")
                t0 = a.vmem(f"buffer_load_dwordx4 v[{H(e,0)}:{H(e,0)+3}], {self.B_L16}, {SRD_WS}, s62 offen sc1")
            a.i(f"s_add_u32 s63, s86, {grp}")
            if (e % 5) < 4:
                t1 = a.vmem(f"buffer_load_dwordx4 v[{H(e,1)}:{H(e,1)+3}], {self.B_L16}, {SRD_WS}, s63 offen offset:{(e%5)*1024} sc1")
            else:
                a.i("s_add_u32 s63, s63, 4096")
                t1 = a.vmem(f"buffer_load_dwordx4 v[{H(e,1)}:{H(e,1)+3}], {self.B_L16}, {SRD_WS}, s63 offen sc1")
            ol[e] = [t0, t1]
        Wb = lambda e: 96 + 12 * (e % 2)
        rt = {0: rt0}
        for e in range(10):
            a.wait(lg=rt[e], vm=ol[e])
            def f0(e=e):
                if e + 1 < 10:
                    a.wait(vm=dm[e + 1])
                    rt[e + 1] = self.w3_reads((e + 1) % 9, Wb(e + 1), 0)
            def f1(e=e):
                if e + 1 < 10: rt[e + 1] += self.w3_reads((e + 1) % 9, Wb(e + 1), 1)
            self.five_mfma(Wb(e), H(e, 0), H(e, 1), e == 0, [f0, f1])
        self.stamp(11)
        self.reduce80(96, 12)
        self.stamp(12)
        a.i("s_mov_b32 s62, 0xffff0000")
        a.i("v_lshrrev_b32 v44, 5, v0")
        a.i(f"v_lshl_add_u32 v44, v44, 3, {self.vXO}")
        ost = self.o.get('ostore', '')
        for e in range(5):
            x0, x1 = 220 + 2 * e, 221 + 2 * e
            t = 16 + 4 * (e & 1)
            a.i(f"v_lshlrev_b32 v{t}, 16, v{x0}")
            a.i(f"v_and_b32 v{t+1}, s62, v{x0}")
            a.i(f"v_lshlrev_b32 v{t+2}, 16, v{x1}")
            a.i(f"v_and_b32 v{t+3}, s62, v{x1}")
            for j in (0, 2): a.i(f"v_pk_fma_f32 v[{t+j}:{t+j+1}], v[{96+4*e+j}:{97+4*e+j}], v[{200+4*e+j}:{201+4*e+j}], v[{t+j}:{t+j+1}]")
            a.i(f"v_cvt_pk_bf16_f32 v{24+2*e}, v{t}, v{t+1}")
            a.i(f"v_cvt_pk_bf16_f32 v{25+2*e}, v{t+2}, v{t+3}")
            if e in (1, 3):
                r = 24 + 2 * (e - 1)
                a.nop(2)
                a.i(f"v_permlane32_swap_b32 v{r}, v{r+2}")
                a.i(f"v_permlane32_swap_b32 v{r+1}, v{r+3}")
                a.vmem(f"buffer_store_dwordx4 v[{r}:{r+3}], v44, {SRD_OUT}, s88 offen offset:{16*(e-1)} {ost}".rstrip())
            if e == 4:
                a.vmem(f"buffer_store_dwordx2 v[32:33], {self.vXO}, {SRD_OUT}, s89 offen {ost}".rstrip())

    def role_b(self):
        a = self.a
        a.label("L_ROLE_B")
        Lf1 = a.newlabel("ffn1"); Lv = a.newlabel("vjob"); Lpf = a.newlabel("w1pf")
        a.i(f"s_and_b32 s62, {sCG}, 3")
        a.i("s_cmp_lg_u32 s62, 0")
        a.i(f"s_cbranch_scc1 {Lf1}")
        Lwait = a.newlabel("kvidle")
        a.i(f"s_cmp_ge_u32 {sWR}, 2")
        a.i(f"s_cbranch_scc1 {Lwait}")
        a.i("s_setprio 3")
        a.i(f"s_cmp_eq_u32 {sCG}, 4")
        a.i(f"s_cbranch_scc1 {Lv}")
        a.vm = []; a.lg = []
        self.kv_job(False)
        a.i(f"s_branch {Lwait}")
        a.label(Lv)
        a.vm = []; a.lg = []
        self.kv_job(True)
        a.label(Lwait)
        self.lds_spin_ge(C_KVD, 2, "v246", self.B_CR)
        a.label(Lpf)
        self.stamp(11, lvl=2)
        self.stamp(14)
        a.label(Lf1)
        a.i(f"s_setprio {self.o.get('prioF', 0)}")
        if self.o.get('noB'):
            a.i("s_waitcnt vmcnt(0)")
            a.i("s_branch L_END")
        a.vm = []; a.lg = []
        Lnop = a.newlabel("nopair"); Lhd = a.newlabel("hdone")
        a.i("s_cmp_eq_u32 s99, 0")
        a.i(f"s_cbranch_scc1 {Lnop}")
        if self.o.get('noF1'): a.i(f"s_branch {Lnop}")
        bs = self.o.get('bstart', 'none')
        if bs == 'ring': self.lds_spin_ge(C_GO, 4, "v246", self.B_CR)
        if bs == 'qiss': self.lds_spin_ge(C_QISS, 4, "v246", self.B_CR)
        self.w1tok = {ks: self.w1_dma(ks) for ks in range(NS1)}
        self.ffn1()
        a.i(f"s_branch {Lhd}")
        a.label(Lnop)
        a.i(f"s_setprio {self.o.get('prioB', 0)}")
        self.lds_count(C_XND, self.B_CW, self.B_ONE)
        a.label(Lhd)
        a.vm = []; a.lg = []
        self.h_publish()
        self.stamp(4)
        self.ffn2()
        self.stamp(8)
        if self.o.get('dump') == 'g':
            self.dump_regs(200, 20, 0, self.B_L16)
        self.out_proj()
        a.i("s_waitcnt vmcnt(0)") if self.o.get('prof') else None
        self.stamp(13)
        self.stamp_flush()
        if self.o.get('span'):
            a.i("s_waitcnt vmcnt(0)")
            a.i("s_memrealtime s[90:91]")
            a.i("s_waitcnt lgkmcnt(0)")
            a.i("s_not_b32 s62, s101")
            a.i("v_mov_b32 v1, 8")
            a.i("v_mov_b32 v2, s62")
            a.i("v_mov_b32 v3, s90")
            a.i("s_mov_b64 exec, 1")
            a.i(f"global_atomic_umax v1, v2, {sDBG} sc1")
            a.i(f"global_atomic_umax v1, v3, {sDBG} offset:4 sc1")
            a.i("s_mov_b64 exec, -1")
        a.i("s_branch L_END")

    def build(self):
        a = self.a
        self.prologue()
        self.role_setup()
        a.i("s_waitcnt lgkmcnt(0)")
        a.i(f"s_add_u32 {sN}, {sN}, 1")
        a.vm = []; a.lg = []
        self.stamp(1)
        self.layernorm()
        self.stamp(2)
        if self.o.get('dump') == 'xn':
            self.dump_lds_xn()
        a.i(f"s_cmp_ge_u32 {sW}, 4")
        a.i("s_cbranch_scc1 L_ROLE_B")
        self.role_a()
        self.role_b()
        a.label("L_END")
        a.i("s_endpgm")

    def dump_lds_xn(self):
        a = self.a
        a.i("v_lshlrev_b32 v72, 4, v0")
        a.i(f"s_mul_i32 s70, {sW}, 10240")
        a.i("v_add_u32 v73, s70, v72")
        a.i("s_mul_i32 s71, s2, 81920")
        a.i("s_add_u32 s71, s71, s70")
        a.i(f"s_add_u32 s71, s71, {WS_DBG}")
        for g in range(10):
            a.i(f"ds_read_b128 v[76:79], v73 offset:{g*1024}")
            a.i("s_waitcnt lgkmcnt(0)")
            a.i(f"s_add_u32 s70, s71, {g*1024}")
            a.i(f"buffer_store_dwordx4 v[76:79], v72, {SRD_WS}, s70 offen")
            a.i("s_waitcnt vmcnt(0)")

    def emit(self):
        self.build()
        body = self.a.text()
        hdr = f"""; Fused LayerNorm + multi-query attention + ReLU FFN + gated residual: out = x + (attn(xn) Wo) * silu(relu(xn W1) W2).
;   waves 0-3 : Q projection (one head each), attention over all 2048 keys (K/V fragments streamed through an LDS ring), publish o
; @launch grid=(256,1,1) block=(512,1,1) lds={LDS_TOTAL}
.amdgcn_target "amdgcn-amd-amdhsa--gfx950"
.text
.globl {NAME}_kernel
.p2align 8
.type {NAME}_kernel,@function
{NAME}_kernel:
"""
        ftr = f""".section .rodata,"a"
.p2align 6
.amdhsa_kernel {NAME}_kernel
  .amdhsa_next_free_vgpr 256
  .amdhsa_next_free_sgpr 102
  .amdhsa_accum_offset 256
  .amdhsa_group_segment_fixed_size 0
  .amdhsa_kernarg_size 88
  .amdhsa_user_sgpr_count 2
  .amdhsa_user_sgpr_kernarg_segment_ptr 1
  .amdhsa_system_sgpr_workgroup_id_x 1
  .amdhsa_float_denorm_mode_32 3
.end_amdhsa_kernel
"""
        return hdr + body + ftr

    def hazards(self):
        ins = [t for k, t in self.a.lines if k == 'i']
        probs = check_hazards(ins, "linear")
        body = [t for k, t in self.a.lines[self.loop_start:self.loop_end] if k == 'i']
        probs += check_hazards(body[-40:] + body[:40], "att-backedge")
        probs += check_outstanding(self.a.lines)
        return probs

if __name__ == "__main__":
    opt = {}
    out = None
    for arg in sys.argv[1:]:
        if "=" in arg:
            k, v = arg.split("=", 1); opt[k] = int(v) if v.lstrip('-').isdigit() else v
        else: out = arg
    g = Gen(opt)
    txt = g.emit()
    pr = g.hazards()
    for p in pr: print("HAZARD:", p)
    open(out or "k.s", "w").write(txt)
    n = sum(1 for k, t in g.a.lines if k == 'i')
    print(f"wrote {out or 'k.s'}: {n} instructions, {len(pr)} hazards")
```
